```python
import torch

def _softmax(x, axis=-1):
    return torch.softmax(x, dim=axis)
def _gelu(x):
    return torch.nn.functional.gelu(x, approximate="tanh")
def _silu(x):
    return torch.nn.functional.silu(x)
def _sigmoid(x):
    return torch.sigmoid(x)
def _layernorm(x, axis=-1, eps=1e-5):
    m = x.mean(dim=axis, keepdim=True)
    v = x.var(dim=axis, keepdim=True, unbiased=False)
    return (x - m) / torch.sqrt(v + eps)
def _scatter_add(tgt, idx, src, axis=0):
    return tgt.clone().index_add_(axis, idx, src)
def _segment_sum(src, seg, n):
    out = torch.zeros((n,) + src.shape[1:], dtype=src.dtype)
    return out.index_add_(0, seg, src)
def _pad(x, pw):
    flat = tuple(v for pair in reversed(pw) for v in pair)
    return torch.nn.functional.pad(x, flat)

kernel_name = 'concat_heads__gqa_block_cached__gqa_block_cached__near_ridge'

def setup_inputs():

    _w = (lambda a: (lambda t: t.to(torch.bfloat16) if t.is_floating_point() else t)(torch.as_tensor(a)))
    def _A_setup():
        B, Sq, D = 8, 240, 640
        Hq, Hkv, Sk, Dh = 32, 32, 1024, 192
        assert Hq % Hkv == 0, (Hq, Hkv)
        return {
            "x": _w((lambda *s: torch.randn(*s, dtype=torch.bfloat16) * 0.8)(B, Sq, D)),
            "k_cache": _w((lambda *s: torch.randn(*s, dtype=torch.bfloat16) * 0.8)(B, Hkv, Sk, Dh)),
            "v_cache": _w((lambda *s: torch.randn(*s, dtype=torch.bfloat16) * 0.05)(B, Hkv, Sk, Dh)),
            "wq": _w((lambda *s: torch.randn(*s, dtype=torch.bfloat16) * 0.8)(D, Hq * Dh) * (D ** -0.5)),
            "wo": _w((lambda *s: torch.randn(*s, dtype=torch.bfloat16) * 0.05)(Hq * Dh, D) * ((Hq * Dh) ** -0.5)),
        }
    _A_in = _A_setup()

    def _B_setup():
        B, Sq, D = 8, 240, 640
        Hq, Hkv, Sk, Dh = 32, 32, 1024, 192
        assert Hq % Hkv == 0, (Hq, Hkv)
        return {
            "x": _w((lambda *s: torch.randn(*s, dtype=torch.bfloat16) * 0.8)(B, Sq, D)),
            "k_cache": _w((lambda *s: torch.randn(*s, dtype=torch.bfloat16) * 0.8)(B, Hkv, Sk, Dh)),
            "v_cache": _w((lambda *s: torch.randn(*s, dtype=torch.bfloat16) * 0.05)(B, Hkv, Sk, Dh)),
            "wq": _w((lambda *s: torch.randn(*s, dtype=torch.bfloat16) * 0.8)(D, Hq * Dh) * (D ** -0.5)),
            "wo": _w((lambda *s: torch.randn(*s, dtype=torch.bfloat16) * 0.05)(Hq * Dh, D) * ((Hq * Dh) ** -0.5)),
        }
    _B_in = _B_setup()

    return {
        "A_x": _A_in["x"],
        "A_k_cache": _A_in["k_cache"],
        "A_v_cache": _A_in["v_cache"],
        "A_wq": _A_in["wq"],
        "A_wo": _A_in["wo"],
        "B_x": _B_in["x"],
        "B_k_cache": _B_in["k_cache"],
        "B_v_cache": _B_in["v_cache"],
        "B_wq": _B_in["wq"],
        "B_wo": _B_in["wo"],
    }

def reference(A_x, A_k_cache, A_v_cache, A_wq, A_wo, B_x, B_k_cache, B_v_cache, B_wq, B_wo):
    def _A_ref(x, k_cache, v_cache, wq, wo):
        B, Sq, D = x.shape
        Hq, Dh = 32, 192
        Hkv = k_cache.shape[1]
        rep = Hq // Hkv
        q = (lambda x, *d: x.permute(*d))((x @ wq).reshape(B, Sq, Hq, Dh), 0, 2, 1, 3)
        k = (lambda x, n, axis: torch.repeat_interleave(x, n, dim=axis))(k_cache, rep, axis=1)
        v = (lambda x, n, axis: torch.repeat_interleave(x, n, dim=axis))(v_cache, rep, axis=1)
        scores = torch.einsum("bhqd,bhkd->bhqk", q, k) * (Dh ** -0.5)
        p = _softmax(scores, axis=-1)
        o = torch.einsum("bhqk,bhkd->bhqd", p, v)
        return (lambda x, *d: x.permute(*d))(o, 0, 2, 1, 3).reshape(B, Sq, Hq * Dh) @ wo

    def _B_ref(x, k_cache, v_cache, wq, wo):
        B, Sq, D = x.shape
        Hq, Dh = 32, 192
        Hkv = k_cache.shape[1]
        rep = Hq // Hkv
        q = (lambda x, *d: x.permute(*d))((x @ wq).reshape(B, Sq, Hq, Dh), 0, 2, 1, 3)
        k = (lambda x, n, axis: torch.repeat_interleave(x, n, dim=axis))(k_cache, rep, axis=1)
        v = (lambda x, n, axis: torch.repeat_interleave(x, n, dim=axis))(v_cache, rep, axis=1)
        scores = torch.einsum("bhqd,bhkd->bhqk", q, k) * (Dh ** -0.5)
        p = _softmax(scores, axis=-1)
        o = torch.einsum("bhqk,bhkd->bhqd", p, v)
        return (lambda x, *d: x.permute(*d))(o, 0, 2, 1, 3).reshape(B, Sq, Hq * Dh) @ wo

    a = _A_ref(A_x, A_k_cache, A_v_cache, A_wq, A_wo)
    b = _B_ref(B_x, B_k_cache, B_v_cache, B_wq, B_wo)
    return torch.concatenate([a, b], axis=-1)
```

```python
import re, sys

COST = {"ds": 4, "vmem": 8, "valu": 4, "trans": 8, "salu": 4, "wait": 4, "bar": 8, "mfma": 8, "label": 0, "br": 4}

def kind_of(t):
    op = t.split()[0]
    if op.endswith(":"): return "label"
    if op.startswith("v_mfma"): return "mfma"
    if op.startswith("ds_"): return "ds"
    if op.startswith("buffer_") or op.startswith("global_"): return "vmem"
    if op in ("v_exp_f32", "v_rcp_f32", "v_log_f32"): return "trans"
    if op.startswith("v_"): return "valu"
    if op == "s_waitcnt": return "wait"
    if op.startswith("s_cbranch") or op == "s_branch": return "br"
    if op.startswith("."): return "label"
    return "salu"

class Ins:
    def __init__(self, text, lo=0, hi=10**9, target=None, after=(), dly=0, kind=None, grp=None, dst=None, lneed=None, vneed=None, gneed=None, lzero=False):
        self.text = text; self.kind = kind or kind_of(text); self.cost = COST[self.kind]
        self.lo = lo; self.hi = hi; self.target = lo if target is None else target
        self.after = list(after); self.dly = dly; self.gap = None
        self.grp = grp
        self.dst = dst
        self.lneed = lneed
        self.vneed = vneed
        self.gneed = gneed
        self.lzero = lzero
        self.lcnt = None; self.vcnt = None
    def __repr__(self): return self.text

def regs(c, b, n=1): return {f"{c}{i}" for i in range(b, b + n)}
def rng(c, b, n): return f"{c}{b}" if n == 1 else f"{c}[{b}:{b+n-1}]"

def WAIT(lneed=None, vneed=None, gneed=None, lzero=False, **kw):
    return Ins("s_waitcnt", kind="wait", lneed=lneed, vneed=vneed, gneed=gneed, lzero=lzero, **kw)
def BAR(gneed, **kw):
    return Ins("WAITBAR", kind="bar", gneed=gneed, lzero=True, **kw)

def spread(items, lo, hi):
    tot = sum(i.cost for i in items); acc = 0
    for it in items:
        it.target = lo + (hi - lo) * acc / max(tot, 1)
        it.lo = max(it.lo, lo); it.hi = min(it.hi, hi - 1)
        acc += it.cost
    return items

def schedule(mf, streams, novalu=(), name="", cap=8, verbose=True):
    n = len(mf)
    gaps = [[] for _ in range(n)]
    heads = [0] * len(streams)
    over = 0
    novalu = set(novalu)
    for st in streams:
        h = 10**9
        for it in reversed(st):
            it.hi = min(it.hi, h, n - 1); h = it.hi
    def fits(g, it):
        cur = gaps[g]; used = sum(x.cost for x in cur)
        if used + it.cost > cap: return False
        if it.kind in ("valu", "trans") and g in novalu: return False
        if it.kind == "ds" and any(x.kind == "ds" for x in cur): return False
        return True
    for g in range(n):
        while True:
            cands = []
            for si, st in enumerate(streams):
                if heads[si] >= len(st): continue
                it = st[heads[si]]
                forced = it.hi <= g
                if it.lo > g: continue
                if any(a.gap is None or a.gap + it.dly >= g for a in it.after):
                    if not (forced and all(a.gap is not None for a in it.after)): continue
                cands.append((0 if forced else 1, it.target, si, it, forced))
            if not cands: break
            cands.sort(key=lambda c: (c[0], c[1]))
            used = sum(x.cost for x in gaps[g])
            pick = None
            for c in cands:
                it = c[3]
                if c[4]: pick = c; break
                if not fits(g, it): continue
                if it.target <= g + (1.0 if used == 0 else 6.0): pick = c; break
            if pick is None: break
            it = pick[3]; it.gap = g; it.si = pick[2]; gaps[g].append(it); heads[pick[2]] += 1
        cur = gaps[g]
        if len(cur) == 2 and cur[0].kind == "valu" and cur[1].kind == "ds" and cur[0].si != cur[1].si and cur[0] not in cur[1].after:
            cur.reverse()
        used = sum(x.cost for x in cur)
        pen = max(0, used - cap)
        for a, b in zip(cur, cur[1:]):
            if a.kind in ("valu", "trans") and b.kind in ("ds", "vmem"): pen += 8
        if g in novalu and any(x.kind in ("valu", "trans") for x in cur): pen += 11
        over += pen
    left = [st[h:] for st, h in zip(streams, heads) if h < len(st)]
    assert not left, f"{name}: unplaced {left}"
    if verbose:
        sys.stderr.write(f"[sched {name}] filler {sum(x.cost for g in gaps for x in g)} / {cap*n}, est. overflow {over}\n")
    out = []
    for i in range(n):
        out.append(mf[i]); out += gaps[i]
    return out

def resolve_waits(blocks, trace):
    ds = []; vm = []; groups = []
    for name in trace:
        for it in blocks[name]:
            if it.kind == "ds": ds.append(it)
            elif it.kind == "vmem":
                vm.append(it)
                if it.grp == "first": groups.append(len(vm) - 1)
                elif it.grp == "more": groups[-1] = len(vm) - 1
            elif it.kind in ("wait", "bar") and (it.text in ("s_waitcnt", "WAITBAR")):
                if it.lzero: it.lcnt = 0
                elif it.lneed:
                    rem = set(it.lneed); c = None
                    for k in range(len(ds) - 1, -1, -1):
                        if ds[k].dst and ds[k].dst & rem: c = len(ds) - 1 - k; break
                    assert c is not None, f"lneed never loaded {it.lneed} in {name}"
                    c = min(c, 15)
                    it.lcnt = c if it.lcnt is None else min(it.lcnt, c)
                c = None
                if it.vneed:
                    for k in range(len(vm) - 1, -1, -1):
                        if vm[k].dst and vm[k].dst & it.vneed: c = len(vm) - 1 - k; break
                    assert c is not None, f"vneed never loaded in {name}"
                if it.gneed:
                    c2 = len(vm) - 1 - groups[-it.gneed]
                    c = c2 if c is None else min(c, c2)
                if c is not None:
                    c = min(c, 63)
                    it.vcnt = c if it.vcnt is None else min(it.vcnt, c)

def emit(block):
    out = []
    for it in block:
        if it.text in ("s_waitcnt", "WAITBAR"):
            parts = []
            if it.vcnt is not None: parts.append(f"vmcnt({it.vcnt})")
            if it.lcnt is not None: parts.append(f"lgkmcnt({it.lcnt})")
            assert parts, "unresolved wait"
            out.append("s_waitcnt " + " ".join(parts))
            if it.text == "WAITBAR": out.append("s_barrier")
        else:
            out.append(it.text)
    return out
```

```python
import re
def parse_reg(tok):
    tok = tok.strip().lstrip("-")
    if tok.startswith("abs(") : tok = tok[4:-1]
    m = re.fullmatch(r"([vas])(\d+)", tok)
    if m: return {f"{m.group(1)}{m.group(2)}"}
    m = re.fullmatch(r"([vas])\[(\d+):(\d+)\]", tok)
    if m: return {f"{m.group(1)}{i}" for i in range(int(m.group(2)), int(m.group(3)) + 1)}
    if tok in ("vcc", "m0", "exec"): return {tok}
    return set()
TRANS = ("v_exp_f32", "v_rcp_f32", "v_log_f32", "v_rsq_f32", "v_sqrt_f32")
def decode(line):
    line = line.split(";")[0].strip()
    if not line or line.endswith(":") or line.startswith("."): return None
    sp = line.split(None, 1); op = sp[0]; rest = sp[1] if len(sp) > 1 else ""
    ops = [o.strip() for o in rest.split(",")] if rest else []
    last = ops[-1].split() if ops else []
    mods = last[1:] if last else []
    if ops: ops[-1] = last[0] if last else ""
    R = [parse_reg(o) for o in ops]
    d = dict(op=op, line=line, rd=set(), wr=set(), kind="salu", states=1)
    U = lambda xs: set().union(*xs) if xs else set()
    if op.startswith("v_mfma"):
        d.update(kind="mfma", wr=R[0], rd=R[1] | R[2] | R[3], A=R[1], B=R[2], C=R[3], passes=4 if "16x16x32" in op else 8)
    elif op.startswith("ds_read"): d.update(kind="ds", wr=R[0], rd=R[1], load=True)
    elif op.startswith("ds_write"): d.update(kind="ds", rd=U(R), load=False)
    elif op.startswith("ds_"): d.update(kind="ds", rd=U(R), load=False)
    elif op.startswith("buffer_load") or op.startswith("global_load"):
        if "lds" in mods: d.update(kind="vmem", rd=U(R) | {"m0"}, load=False, dma=True)
        else: d.update(kind="vmem", wr=R[0], rd=U(R[1:]), load=True)
    elif op.startswith("buffer_store"): d.update(kind="vmem", rd=U(R), load=False, data=R[0], wide=("x4" in op or "x3" in op))
    elif op.startswith("global_store"): d.update(kind="vmem", rd=U(R), load=False, data=R[1], wide=("x4" in op or "x3" in op))
    elif op.startswith("buffer_") or op.startswith("global_"): d.update(kind="vmem", rd=U(R), load=False)
    elif op.startswith("v_permlane"): d.update(kind="valu", wr=R[0] | R[1], rd=R[0] | R[1], perm=True)
    elif op.startswith("v_cndmask") and len(R) == 4: d.update(kind="valu", wr=R[0], rd=U(R[1:]))
    elif op.startswith("v_"):
        d.update(kind="valu", wr=R[0], rd=U(R[1:]))
        if op.startswith("v_fmac") or op.startswith("v_writelane"): d["rd"] |= R[0]
        if op in TRANS: d["trans"] = True
        if op.startswith("v_readfirstlane") or op.startswith("v_readlane"): d["rl"] = True
    elif op == "s_nop": d.update(states=int(ops[0]) + 1)
    elif op == "s_waitcnt":
        d["kind"] = "wait"
        m = re.search(r"vmcnt\((\d+)\)", line); d["vm"] = int(m.group(1)) if m else None
        m = re.search(r"lgkmcnt\((\d+)\)", line); d["lg"] = int(m.group(1)) if m else None
    elif op.startswith("s_cmp") or op.startswith("s_cbranch") or op in ("s_barrier", "s_branch", "s_endpgm", "s_setprio", "s_sleep"):
        d.update(rd=U(R))
    elif op.startswith("s_load") or op.startswith("s_mem"):
        d.update(kind="smem", wr=R[0], rd=U(R[1:]))
    else:
        d.update(wr=R[0] if R else set(), rd=U(R[1:]))
    return d

def verify(lines, maxerr=20):
    errs = []
    hist = []
    pos = 0
    dsq = []; vmq = []; smq = []
    def err(msg, d, p=None):
        errs.append(f"{msg}: [{d['line']}]" + (f" after [{p['line']}]" if p else ""))
    cache = {}
    for line in lines:
        if line not in cache: cache[line] = decode(line)
        d = cache[line]
        if d is None: continue
        k = d["kind"]
        touch = d["rd"] | d["wr"]
        if k == "wait":
            if d["vm"] is not None: vmq = vmq[len(vmq) - d["vm"]:] if d["vm"] < len(vmq) and d["vm"] > 0 else ([] if d["vm"] == 0 else vmq)
            if d["lg"] is not None:
                if smq and d["lg"] != 0: pass
                else:
                    dsq = dsq[len(dsq) - d["lg"]:] if d["lg"] < len(dsq) and d["lg"] > 0 else ([] if d["lg"] == 0 else dsq)
                    smq = []
        else:
            for q, nm in ((dsq, "ds"), (vmq, "vmem"), (smq, "smem")):
                for p in q:
                    if p["wr"] & d["rd"] or (p["wr"] & d["wr"] and not (k == nm)):
                        err(f"use of outstanding {nm} load", d, p)
        for (pp, p) in reversed(hist):
            dist = pos - pp - 1 - (p["states"] - 1) * 0
            if dist > 24: break
            pk = p["kind"]
            if pk == "mfma":
                need = 8 if p["passes"] == 4 else 12
                if k == "mfma":
                    if p["wr"] & (d["A"] | d["B"]) and dist < need: err(f"mfma D->AB dist {dist}", d, p)
                    if p["wr"] & d["C"] and p["wr"] != d["C"] and dist < need - 2: err(f"mfma D->C partial dist {dist}", d, p)
                elif p["wr"] & touch and dist < need: err(f"mfma D->use dist {dist}", d, p)
                if k == "valu" and p["C"] & d["wr"] and dist < (3 if p["passes"] == 4 else 7): err(f"mfma C WAR dist {dist}", d, p)
            if pk == "valu":
                vw = {r for r in p["wr"] if r[0] in "va" and r != "vcc"}
                sw = p["wr"] - vw
                if k == "mfma" and vw & d["rd"] and dist < 2: err(f"valu->mfma dist {dist}", d, p)
                if p.get("trans") and k == "valu" and not d.get("trans") and vw & d["rd"] and dist < 1: err("trans->valu", d, p)
                if d.get("perm") and vw & d["rd"] and dist < 2: err(f"valu->permlane dist {dist}", d, p)
                if d.get("rl") and vw & d["rd"] and dist < 1: err("valu->readlane", d, p)
                if k == "valu" and sw & d["rd"] and dist < 2: err("valu sgpr->valu", d, p)
                if k == "vmem" and sw & d["rd"] and dist < 5: err("valu sgpr->vmem", d, p)
            if pk == "salu" and "m0" in p["wr"] and d.get("dma") and dist < 1: err("m0->dma", d, p)
            if pk == "vmem" and p.get("wide") and p["data"] & d["wr"] and dist < 2: err("store data WAR", d, p)
        if k == "ds": dsq.append(d)
        elif k == "vmem": vmq.append(d)
        elif k == "smem": smq.append(d)
        pos += d["states"]
        hist.append((pos - 1, d))
        if len(hist) > 40: hist.pop(0)
        if len(errs) >= maxerr: break
    return errs
```

```python
import sys, math
from asmlib import *
from verify import verify

OPT = dict(nt_kv=1, nt_w=0, nt_x=0, nt_o=0, k2_nt_o=0, k2_nt_w=0, stamps=0)
for a in sys.argv[2:]:
    k, v = a.split("="); OPT[k] = int(v)
NAME = "concat_heads__gqa_block_cached__gqa_block_cached__near_ridge"
MF = "v_mfma_f32_16x16x32_bf16"
def I(t, **kw): return Ins(t, **kw)
def Is(txt): return [Ins(t.strip()) for t in txt.strip().split("\n") if t.strip()]
def mfma(d, a, b, c): return Ins(f"{MF} {d}, {a}, {b}, {c}")
def V4(b): return f"v[{b}:{b+3}]"
def A4(b): return f"a[{b}:{b+3}]"

TILE = 24576; PAIR = 49152; WS = 64 * 12288
vKb = [1, 2]; vK = [3, 4]; vVb = [5, 6, 7, 8]; vV = [9, 10, 11, 12]
vD = [13, 14]; vDkv = 15; vDw = 16; vX = 17; vO = 18; vO3 = 19
vL = [20, 21, 22, 23]; vMi = [24, 25, 26, 27]; vT = 28
NEGM = 48; SP = 64; QF = 160
def negm(qt): return NEGM + 4 * qt
def XY(par, kb, qt): return SP + 4 * ((par * 2 + kb) * 4 + qt)
def Z(kb, qt): return SP + 64 + 4 * (kb * 4 + qt)
def Qf(qt, s): return QF + 4 * (qt * 6 + s)
def Qb(qt, s): return SP + 4 * (qt * 6 + s)
def Oacc(t, qt): return 4 * (t * 4 + qt)
def Xf(n, kb, qt): return 32 * (n % 6) + 4 * (kb * 4 + qt)
FR = 192
def fq(n, f): return FR + 4 * ((f + 8 * (n & 1)) % 16)
sX = 4; sDA = 8; sDB = 12; sO = 16
sK = 20; sV = 22; sWn = 24; sWnum = 26; sXnum = 27; sXn = 28; sK1 = 30; sV1 = 32
sA = 34; sB = 35; sInc = 36; sPe = 37; sPo = 38; sI = 39; sWoff = 40; sWoffV = 41
sXq = [42, 43, 44, 45]; sT = 46; sItem = 47; sMode = 48; sFlag = 49; sC = 50
sWave = 52; sWg = 53; sT2 = 54; sT3 = 55; sThr = 56; sKA = 58
sLd = 60
def S4(b): return f"s[{b}:{b+3}]"
def S2(b): return f"s[{b}:{b+1}]"
def phys(n): return (n + 1) % 6
BG = 76
NPRE_V = 10; NPRE_K = 6

def lastuse_pv(f): return 8 * (f >> 1) + 6 + (f & 1)
def lastuse_qk(f): kt, s = divmod(f, 6); return 24 * kt + 18 + (5 - s)

def reads_v(n, odd):
    out = []
    for f in range(24):
        t, kb = f >> 1, f & 1
        r = fq(n, f)
        for hf in range(2):
            off = odd * TILE + (4 * kb + 2 * hf) * 3072 + (t >> 2) * 1024
            it = I(f"ds_read_b64_tr_b16 a[{r+2*hf}:{r+2*hf+1}], v{vV[t & 3]} offset:{off}", dst=regs("a", r + 2 * hf, 2)); it.f = f
            out.append(it)
    return out
def reads_k(n, odd):
    out = []
    for f in range(24):
        kt, s = divmod(f, 6); r = fq(n, f)
        off = odd * TILE + kt * 6144 + (s >> 1) * 1024
        it = I(f"ds_read_b128 {A4(r)}, v{vK[s & 1]} offset:{off}", dst=regs("a", r, 4)); it.f = f
        out.append(it)
    return out

def dma(srd, soff, m0init, nt):
    n = " nt" if nt else ""
    out = []
    for p in range(3):
        m = I(m0init if p == 0 else "s_add_u32 m0, m0, 896")
        a = I(f"buffer_load_dwordx4 v{vD[0]}, {S4(srd)}, s{soff} offen offset:{p*128}{n} lds", grp="first" if p == 0 else "more", after=[m])
        b = I(f"buffer_load_dwordx4 v{vD[1]}, {S4(srd)}, s{soff} offen offset:{p*128+3072}{n} lds", grp="more")
        out += [m, a, b]
    return out

def phase(name, n, typ, mf, own, nxt, nxt_typ, pre_bar, misc_early, dmas, extra=(), xneed=None, post=()):
    lu = lastuse_pv if typ == "v" else lastuse_qk
    rs = []
    if typ == "v":
        k0 = 48 - len(own)
        for j, it in enumerate(own):
            it.target = -18 + (k0 + j) * 88 / 48 if k0 else j * 70 / 48
            it.hi = min(8 * (it.f >> 1) - 6, BG - 5) if k0 else BG - 5
            if it.f >= 16: it.lo = lu(it.f - 16)
            it.hi = max(it.hi, it.lo)
    else:
        for j, it in enumerate(own):
            kt, s = divmod(it.f, 6)
            it.target = 24 * (kt - 1) + 1 + s * 2.5; it.hi = 24 * kt - 8
            if it.f >= 16: it.lo = lu(it.f - 16)
    rs += own
    for it in pre_bar:
        it.lo = max(it.lo, 0); it.hi = BG - 1; it.target = own[-1].target + 1
    rs += pre_bar
    bar = BAR(5, lo=BG, hi=BG); rs.append(bar)
    for j, it in enumerate(nxt):
        it.lo = max(BG + 1, lu(it.f + 8)); it.after = [bar]
        it.target = BG + 1 + (j * 1.8 if nxt_typ == "v" else j * 1.5); it.hi = 95 if nxt_typ == "v" and j >= 4 else 88
    rs += nxt
    ws = []
    if typ == "v":
        for t in range(1, 12):
            if 8 * t - 1 >= BG: break
            ws.append(WAIT(lneed=regs("a", fq(n, 2 * t), 4) | regs("a", fq(n, 2 * t + 1), 4), lo=8 * t - 3, hi=8 * t - 1, target=8 * t - 2))
    else:
        for kt in range(1, 4):
            ws.append(WAIT(lneed=set().union(*[regs("a", fq(n, 6 * kt + s), 4) for s in range(6)]), lo=24 * kt - 3, hi=24 * kt - 1, target=24 * kt - 2))
    if nxt:
        nf = 2 if nxt_typ == "v" else 6
        ws.append(WAIT(lneed=set().union(*[regs("a", fq(n + 1, f), 4) for f in range(nf)]), vneed=xneed, lo=94, hi=95, target=94.5))
    ms = list(misc_early)
    spread(ms, 2, BG - 6)
    fst = True
    for j, it in enumerate(dmas):
        it.lo = BG + 1 if it.kind == "vmem" else max(it.lo, BG - 4)
        it.target = BG - 2 + j * 1.7
        if it.kind == "vmem": it.after = it.after + [bar]
    ms += dmas
    for it in post: it.lo = BG + 1; it.target = 93;
    ms += list(post)
    return schedule(mf, [ws, rs, ms] + list(extra), novalu=range(BG, BG + 9), name=name)

def softmax(par, kb, lo, hi, zdead=None, sub=None, los=None):
    E = []; D = []; P = []
    for qt in range(4):
        x, z = XY(par, kb, qt), Z(kb, qt)
        src = [x, x + 1, x + 2, x + 3, z, z + 1, z + 2, z + 3]
        for pr in range(4):
            es = []
            for e in range(2):
                r = src[2 * pr + e]
                ex = I(f"v_exp_f32 v{r}, v{r}")
                if sub:
                    sb = I(f"v_add_f32 v{r}, v{r}, v{negm(qt)}", after=[sub[qt]], lo=los[qt][pr >> 1]); P.append(sb); ex.after = [sb]
                E.append(ex); es.append(ex)
                D.append(I(f"v_add_f32 v{vL[qt]}, v{vL[qt]}, v{r}", after=[ex]))
            c = I(f"v_cvt_pk_bf16_f32 v{x+pr}, v{src[2*pr]}, v{src[2*pr+1]}", after=es)
            if zdead: c.hi = zdead(qt)
            D.append(c)
    spread(E, lo, hi - 2)
    for d in D:
        d.target = max(a.target for a in d.after) + 1; d.hi = min(d.hi, hi)
        for a in d.after: a.hi = min(a.hi, d.hi - 1)
    for p, e in zip(P, E): p.target = e.target - 3; p.hi = e.hi - 1
    return ([P] if sub else []) + [E, D]

def mf_w(n):
    out = []
    for t in range(12):
        for qt in range(4):
            d = Qf(qt, t >> 1) if t % 2 == 0 else Qb(qt, t >> 1)
            for kb in range(2):
                out.append(mfma(V4(d), A4(fq(n, 2 * t + kb)), A4(Xf(n, kb, qt)), "0" if (n == 0 and kb == 0) else V4(d)))
    return out
def mf_qk(n, par, first=False):
    out = []
    for kt in range(4):
        for qt in range(4):
            d = XY(par, kt >> 1, qt) if kt % 2 == 0 else Z(kt >> 1, qt)
            order = range(6) if qt % 2 == 0 else range(5, -1, -1)
            for j, s in enumerate(order):
                c = V4(d) if j else ("0" if (first and kt < 2) else V4(negm(qt)))
                out.append(mfma(V4(d), A4(fq(n, 6 * kt + s)), V4(Qf(qt, s)), c))
    return out
def mf_pv(n, par):
    out = []
    for t in range(12):
        for qt in range(4):
            for kb in range(2):
                out.append(mfma(A4(Oacc(t, qt)), A4(fq(n, 2 * t + kb)), V4(XY(par, kb, qt)), A4(Oacc(t, qt))))
    return out
def xload(n, kb, qt):
    r = Xf(n, kb, qt)
    return I(f"buffer_load_dwordx4 {A4(r)}, v{vX}, {S4(sX)}, s{sXq[qt]} offen offset:{(2*n+kb)*64}" + (" nt" if OPT["nt_x"] else ""), dst=regs("a", r, 4))
def xloads(n): return [xload(n, kb, qt) for qt in range(4) for kb in range(2)]
def setv(pair): return [I(f"v_add_u32 v{vV[i]}, {pair*PAIR}, v{vVb[i]}") for i in range(4)]
def setk(pair): return [I(f"v_add_u32 v{vK[i]}, {pair*PAIR}, v{vKb[i]}") for i in range(2)]
def static_dma(tile_n):
    m = tile_n % 42
    m0 = f"s_add_u32 m0, s{sWoff}, {phys(m)*TILE}"
    if m < 10: return [I(f"s_mov_b32 s{sT}, {m*WS}")] + dma(sDA, sT, m0, OPT["nt_w"])
    if m == 10: srd, i = sDA, 0
    elif m == 41: srd, i = sDB, 15
    elif m % 2: srd, i = sDA, (m - 9) // 2
    else: srd, i = sDB, (m - 12) // 2
    return [I(f"s_mov_b32 s{sT}, {i*TILE}")] + dma(srd, sT, m0, OPT["nt_kv"])

def lin(items):
    out = []
    for it in items:
        out.append(it)
        if it.text.startswith("s_add_u32 m0"): out.append(I("s_nop 0"))
    return out

def stamp(idx):
    if not OPT["stamps"]: return []
    return Is(f"""s_memtime s[90:91]
s_waitcnt lgkmcnt(0)
s_lshl_b32 s92, s{sItem}, 4
s_add_u32 s92, s92, {idx}
s_mov_b32 s93, m0
s_mov_b32 m0, s92
v_writelane_b32 v47, s90, m0
s_mov_b32 m0, s93""")

def kernel1():
    B = {}
    c = math.log2(math.e) / math.sqrt(192.0)
    import struct
    cbits = struct.unpack("<I", struct.pack("<f", c))[0]
    B["entry"] = Is(f"""
s_cmp_ge_u32 s2, 256
s_cbranch_scc1 K1_END
s_mov_b32 s{sWg}, s2
s_mov_b64 {S2(sKA)}, s[0:1]
s_mov_b32 s{sMode}, 0
v_lshrrev_b32 v{vT}, 6, v0
v_and_b32 v0, 63, v0
v_mov_b32 v47, 0
v_readfirstlane_b32 s{sWave}, v{vT}
""")
    P = Is(f"""
K1_PRO:
s_load_dwordx2 {S2(sLd)}, {S2(sKA)}, 0
s_load_dwordx2 {S2(sLd+2)}, {S2(sKA)}, 8
s_load_dwordx2 {S2(sLd+4)}, {S2(sKA)}, 16
s_load_dwordx2 {S2(sLd+6)}, {S2(sKA)}, 24
s_load_dwordx2 {S2(sLd+8)}, {S2(sKA)}, 40
s_load_dwordx2 {S2(sLd+10)}, {S2(sKA)}, 48
s_load_dwordx2 {S2(sLd+12)}, {S2(sKA)}, 56
s_load_dwordx2 {S2(sLd+14)}, {S2(sKA)}, 64
s_load_dwordx2 {S2(sLd+16)}, {S2(sKA)}, 96
s_and_b32 s{sT}, s{sWg}, 7
s_lshr_b32 s{sT2}, s{sWg}, 3
s_lshr_b32 s80, s{sT}, 1
s_lshl_b32 s80, s80, 3
s_and_b32 s81, s{sT2}, 7
s_add_u32 s80, s80, s81
s_and_b32 s81, s{sT}, 1
s_lshl_b32 s81, s81, 2
s_lshr_b32 s82, s{sT2}, 3
s_add_u32 s81, s81, s82
s_mul_i32 s82, s81, 307200
s_lshl_b32 s83, s81, 5
s_add_u32 s83, s83, s80
s_mul_i32 s83, s83, 393216
s_mul_i32 s84, s80, 384
s_mul_i32 s85, s80, 720
s_mul_i32 s86, s81, 15
s_add_u32 s85, s85, s86
s_lshl_b32 s85, s85, 10
s_mul_i32 s{sWoff}, s{sWave}, 6144
s_add_u32 s{sWoffV}, s{sWoff}, {TILE}
s_mov_b32 s{sXq[0]}, 0
s_mov_b32 s{sXq[1]}, 20480
s_mov_b32 s{sXq[2]}, 40960
s_mov_b32 s{sXq[3]}, 61440
s_mov_b32 s{sItem}, 0
s_mov_b32 s{sFlag}, 0
s_mov_b32 s{sC}, {cbits:#x}
s_mov_b32 s{sC+1}, {cbits:#x}
s_mov_b32 s{sThr}, 0x4e800000
""")
    t0, t1, t2, t3 = vT, vT + 1, vT + 2, vT + 3
    P += Is(f"""
v_lshrrev_b32 v{t0}, 3, v0
v_and_b32 v{t1}, 7, v0
v_and_b32 v{t2}, 6, v{t0}
v_xor_b32 v{t1}, v{t1}, v{t2}
v_mul_u32_u24 v{vDkv}, 384, v{t0}
v_lshl_add_u32 v{vDkv}, v{t1}, 4, v{vDkv}
v_add_u32 v{vDkv}, s{sWoff}, v{vDkv}
v_and_b32 v{t2}, 4, v{t1}
v_and_b32 v{t3}, 1, v{t1}
v_lshl_or_b32 v{t2}, v{t3}, 1, v{t2}
v_bfe_u32 v{t3}, v{t1}, 1, 1
v_or_b32 v{t1}, v{t2}, v{t3}
v_and_b32 v{t2}, 3, v{t0}
v_lshrrev_b32 v{t3}, 2, v{t0}
v_lshl_add_u32 v{t2}, v{t3}, 3, v{t2}
s_lshr_b32 s86, s{sWave}, 1
s_lshl_b32 s86, s86, 5
s_and_b32 s87, s{sWave}, 1
s_lshl_b32 s87, s87, 2
s_add_u32 s86, s86, s87
v_add_u32 v{t2}, s86, v{t2}
v_mul_u32_u24 v{vDw}, 12288, v{t2}
v_lshl_add_u32 v{vDw}, v{t1}, 4, v{vDw}
v_mov_b32 v{vD[0]}, v{vDw}
v_add_u32 v{vD[1]}, {196608-3072}, v{vDw}
v_and_b32 v{t0}, 15, v0
v_lshrrev_b32 v{t1}, 4, v0
s_lshl_b32 s86, s{sWave}, 6
v_add_u32 v{t2}, s86, v{t0}
v_mul_u32_u24 v{vX}, 1280, v{t2}
v_lshl_add_u32 v{vX}, v{t1}, 4, v{vX}
s_waitcnt lgkmcnt(0)
s_add_u32 s{sX}, s{sLd}, s82
s_addc_u32 s{sX+1}, s{sLd+1}, 0
s_mov_b32 s{sX+2}, 307200
s_mov_b32 s{sX+3}, 0x20000
s_add_u32 s{sDA}, s{sLd+6}, s84
s_addc_u32 s{sDA+1}, s{sLd+7}, 0
s_sub_u32 s{sWnum}, 7864320, s84
s_mov_b32 s{sDA+2}, s{sWnum}
s_mov_b32 s{sDA+3}, 0x20000
""")
    P += lin(static_dma(0)) + xloads(0) + lin(static_dma(1)) + xloads(1)
    P += Is(f"""
s_add_u32 s{sK}, s{sLd+2}, s83
s_addc_u32 s{sK+1}, s{sLd+3}, 0
s_add_u32 s{sV}, s{sLd+4}, s83
s_addc_u32 s{sV+1}, s{sLd+5}, 0
s_add_u32 s{sXn}, s{sLd+8}, s82
s_addc_u32 s{sXn+1}, s{sLd+9}, 0
s_mov_b32 s{sXnum}, 307200
s_add_u32 s{sK1}, s{sLd+10}, s83
s_addc_u32 s{sK1+1}, s{sLd+11}, 0
s_add_u32 s{sV1}, s{sLd+12}, s83
s_addc_u32 s{sV1+1}, s{sLd+13}, 0
s_add_u32 s{sWn}, s{sLd+14}, s84
s_addc_u32 s{sWn+1}, s{sLd+15}, 0
s_add_u32 s{sO}, s{sLd+16}, s85
s_addc_u32 s{sO+1}, s{sLd+17}, 0
s_mov_b32 s{sO+2}, {5*122880+15*1024}
s_mov_b32 s{sO+3}, 0x20000
s_mov_b64 {S2(sDB)}, {S2(sDA)}
s_mov_b32 s{sDB+2}, 0
s_mov_b32 s{sDB+3}, 0x20000
""")
    for m in range(2, 6): P += lin(static_dma(m))
    P += Is(f"""
v_lshrrev_b32 v{t2}, 3, v{t0}
v_mul_u32_u24 v{vKb[0]}, 3072, v{t2}
v_and_b32 v{t2}, 7, v{t0}
v_lshl_add_u32 v{vKb[0]}, v{t2}, 7, v{vKb[0]}
v_and_b32 v{t2}, 6, v{t0}
v_xor_b32 v{t2}, v{t2}, v{t1}
v_lshl_add_u32 v{vKb[0]}, v{t2}, 4, v{vKb[0]}
v_xor_b32 v{vKb[1]}, 64, v{vKb[0]}
v_lshrrev_b32 v{t2}, 5, v0
v_mul_u32_u24 v{vVb[0]}, 3072, v{t2}
v_bfe_u32 v{t2}, v0, 2, 3
v_lshl_add_u32 v{vVb[0]}, v{t2}, 7, v{vVb[0]}
v_and_b32 v{t2}, 6, v{t2}
v_bfe_u32 v{t3}, v0, 1, 1
v_xor_b32 v{t2}, v{t2}, v{t3}
v_lshl_add_u32 v{vVb[0]}, v{t2}, 4, v{vVb[0]}
v_and_b32 v{t2}, 1, v0
v_lshl_add_u32 v{vVb[0]}, v{t2}, 3, v{vVb[0]}
v_xor_b32 v{vVb[1]}, 32, v{vVb[0]}
v_xor_b32 v{vVb[2]}, 64, v{vVb[0]}
v_xor_b32 v{vVb[3]}, 96, v{vVb[0]}
s_lshl_b32 s86, s{sWave}, 12
v_lshlrev_b32 v{vO}, 4, v0
v_add_u32 v{vO}, s86, v{vO}
s_cmp_eq_u32 s{sWave}, 3
s_cselect_b32 s86, 0x80000000, 0
v_add_u32 v{vO3}, s86, v{vO}
s_mov_b32 s87, 0xff800000
s_cselect_b32 s86, 0x71000000, s87
v_mov_b32 v{vMi[0]}, s87
v_mov_b32 v{vMi[1]}, s87
v_mov_b32 v{vMi[2]}, s87
v_mov_b32 v{vMi[3]}, s86
""")
    P += [I(f"v_mov_b32 v{vL[q]}, 0") for q in range(4)]
    P += setv(0)
    P += [BAR(6)]
    P += reads_v(0, 1)[:NPRE_V]
    B["pro"] = P
    B["item"] = Is("K1_ITEM:") + stamp(0) + [WAIT(lneed=regs("a", fq(0, 0), 8), vneed=regs("a", Xf(0, 0, 0), 32))]
    xs = [x for n in range(2, 10) for x in xloads(n)]
    XPH = [11, 11, 11, 11, 10, 10]
    xi = 0
    for n in range(10):
        own = reads_v(n, phys(n) & 1)[NPRE_V:]
        pre = []; early = []
        if n < 9:
            nxt = reads_v(n + 1, phys(n + 1) & 1)[:NPRE_V]; nt_ = "v"
            if phys(n + 1) >> 1 != phys(n) >> 1: pre = setv(phys(n + 1) >> 1)
        else:
            nxt = reads_k(10, 1)[:NPRE_K]; nt_ = "k"; pre = setk(2)
        extra = []
        if n < 6:
            xl = xs[xi:xi + XPH[n]]; xi += XPH[n]
            for it in xl:
                m = 2 + xs.index(it) // 8
                assert m - 6 < n
            spread(xl, 1, BG - 2); extra.append(xl)
        vz = []
        if n >= 5:
            b = 32 * ((n - 1) % 6)
            vz = [I(f"v_accvgpr_write_b32 a{b+i}, 0") for i in range(32)]
        if n == 4:
            early = Is(f"""s_mov_b64 {S2(sDA)}, {S2(sK)}
s_mov_b32 s{sDA+2}, 393216
s_mov_b64 {S2(sDB)}, {S2(sV)}
s_mov_b32 s{sDB+2}, 393216""")
            vz = [I(f"v_mov_b32 v{vD[0]}, v{vDkv}"), I(f"v_mov_b32 v{vD[1]}, v{vDkv}")]
        if vz: spread(vz, 1, BG - 4); extra.append(vz)
        B[f"w{n}"] = phase(f"w{n}", n, "v", mf_w(n), own, nxt, nt_, pre, early, static_dma(n + 6), extra,
                           xneed=regs("a", Xf(n + 1, 0, 0), 32) if n < 9 else None)
    C = stamp(1)
    for s in range(6):
        for qt in range(4):
            a, b = Qf(qt, s), Qb(qt, s)
            for r in (a, a + 2, b, b + 2): C.append(I(f"v_pk_mul_f32 v[{r}:{r+1}], v[{r}:{r+1}], {S2(sC)}"))
        for qt in range(4):
            a, b = Qf(qt, s), Qb(qt, s)
            C += Is(f"""v_cvt_pk_bf16_f32 v{a}, v{a}, v{a+1}
v_cvt_pk_bf16_f32 v{a+1}, v{a+2}, v{a+3}
v_cvt_pk_bf16_f32 v{a+2}, v{b}, v{b+1}
v_cvt_pk_bf16_f32 v{a+3}, v{b+2}, v{b+3}""")
        for qt in range(4):
            a = Qf(qt, s)
            C += Is(f"v_permlane16_swap_b32 v{a}, v{a+2}\nv_permlane16_swap_b32 v{a+1}, v{a+3}")
    C += Is(f"s_cmp_lg_u32 s{sMode}, 0\ns_cbranch_scc1 K1_MAXPASS\nK1_MAXRET:") + stamp(2)
    B["cvt"] = C
    M = []; last = []
    for qt in range(4):
        x = XY(0, 0, qt); m = vT + 2 * qt; t = m + 1
        a = I(f"v_max3_f32 v{m}, v{x}, v{x+1}, v{x+2}", lo=6 * qt + 13)
        b = I(f"v_max3_f32 v{m}, v{m}, v{x+3}, v{vMi[qt]}")
        c_ = I(f"v_mov_b32 v{t}, v{m}")
        d = I(f"v_permlane16_swap_b32 v{m}, v{t}", after=[c_], dly=1)
        e = I(f"v_max_f32 v{m}, v{m}, v{t}")
        f = I(f"v_mov_b32 v{t}, v{m}")
        g = I(f"v_permlane32_swap_b32 v{m}, v{t}", after=[f], dly=1)
        h = I(f"v_max_f32 v{m}, v{m}, v{t}")
        ns = [I(f"v_sub_f32 v{negm(qt)+i}, 0, v{m}", hi=48 + 6 * qt - 3) for i in range(4)]
        st = [a, b, c_, d, e, f, g, h] + ns
        for j, it in enumerate(st): it.target = 6 * qt + 13 + j * 0.5
        M.append(st); last.append(ns[0])
    vz = [I(f"v_accvgpr_write_b32 a{96+i}, 0") for i in range(32)]
    spread(vz, 0, 20)
    sm = softmax(0, 0, 30, 95, sub=last, los=[[0, 24 + 6 * qt + 13] for qt in range(4)])
    early = Is(f"""s_mov_b32 s{sPo}, 0
s_mov_b32 s{sA}, {4*TILE}
s_mov_b32 s{sB}, {3*TILE}
s_mov_b32 s{sInc}, {TILE}
s_mov_b32 s{sI}, 1""")
    B["qk0"] = phase("qk0", 10, "k", mf_qk(10, 0, True), reads_k(10, 1)[NPRE_K:], reads_k(11, 0)[:NPRE_K], "k", setk(0), early,
                     static_dma(16), M + [vz] + sm) + stamp(3) + Is("s_branch K1_LO")
    for par, cur, nx in ((0, sPe, sPo), (1, sPo, sPe)):
        nm = "eo"[par]
        early = Is(f"s_add_u32 s{nx}, s{cur}, {PAIR}\ns_cmp_eq_u32 s{nx}, {3*PAIR}\ns_cselect_b32 s{nx}, 0, s{nx}")
        if par: early.append(Ins(f"s_cmp_eq_u32 s{sI}, 13\ns_cbranch_scc1 K1_FIX1\nK1_RET1:", kind="bar"))
        upd = [I(f"v_add_u32 v{vV[i]}, s{cur}, v{vVb[i]}") for i in range(4)]; spread(upd, 10, 60)
        d = dma(sDA, sA, f"s_add_u32 m0, s{cur}, s{sWoff}", OPT["nt_kv"])
        q = phase("qk" + nm, 11, "k", mf_qk(11, par), reads_k(11, 0)[NPRE_K:], reads_v(12, 1)[:NPRE_V], "v", [], early, d,
                  softmax(1 - par, 1, 0, 90, zdead=lambda qt: 72 + 6 * qt - 1) + [upd], post=Is(f"s_add_u32 s{sA}, s{sA}, s{sInc}"))
        early = []
        if par: early.append(Ins(f"s_cmp_eq_u32 s{sI}, 13\ns_cbranch_scc1 K1_FIX2\nK1_RET2:", kind="bar"))
        upd = [I(f"v_add_u32 v{vK[i]}, s{nx}, v{vKb[i]}") for i in range(2)]; spread(upd, 10, 60)
        d = dma(sDB, sB, f"s_add_u32 m0, s{cur}, s{sWoffV}", OPT["nt_kv"])
        post = Is(f"s_add_u32 s{sB}, s{sB}, s{sInc}")
        if par: post += Is(f"s_add_u32 s{sI}, s{sI}, 2\ns_cmp_lg_u32 s{sI}, 17")
        p = phase("pv" + nm, 12, "v", mf_pv(12, 1 - par), reads_v(12, 1)[NPRE_V:], reads_k(11, 0)[:NPRE_K], "k", [], early, d,
                  softmax(par, 0, 0, 95) + [upd], post=post)
        B["l" + nm] = Is(".p2align 6\nK1_LE:" if par == 0 else "K1_LO:") + q + p + (Is("s_cbranch_scc1 K1_LE") if par else [])
    T = stamp(4) + setv(0) + reads_v(41, 0)[:NPRE_V]
    E, D = softmax(1, 1, 0, 95)
    di = 0
    for j in range(0, 32, 2):
        T += E[j:j + 2]
        if j >= 2: T += D[di:di + 3]; di += 3
    T.append(I("s_nop 0"))
    T += D[di:]
    T.append(WAIT(lneed=regs("a", fq(41, 0), 8)))
    B["tail"] = T
    R = []
    for qt in range(4):
        l = vL[qt]; t = vT + qt
        c1 = I(f"v_mov_b32 v{t}, v{l}")
        d1 = I(f"v_permlane16_swap_b32 v{l}, v{t}", after=[c1], dly=1)
        e1 = I(f"v_add_f32 v{l}, v{l}, v{t}")
        c2 = I(f"v_mov_b32 v{t}, v{l}")
        d2 = I(f"v_permlane32_swap_b32 v{l}, v{t}", after=[c2], dly=1)
        e2 = I(f"v_add_f32 v{l}, v{l}, v{t}")
        f1 = I(f"v_cmp_ngt_f32 {S2(80+2*qt)}, s{sThr}, v{l}")
        f2 = I(f"v_rcp_f32 v{negm(0)+2*qt}, v{l}")
        f3 = I(f"v_mov_b32 v{negm(0)+2*qt+1}, v{negm(0)+2*qt}", after=[f2])
        f4 = I(f"v_mov_b32 v{l}, 0")
        R += [c1, d1, e1, c2, d2, e2, f1, f2, f3, f4]
    spread(R, 2, 70)
    B["pv15"] = phase("pv15", 41, "v", mf_pv(41, 1), reads_v(41, 0)[NPRE_V:], reads_v(0, 1)[:NPRE_V], "v", [], [], static_dma(47), [R])
    Ep = stamp(5) + Is(f"""s_or_b64 s[80:81], s[80:81], s[82:83]
s_or_b64 s[84:85], s[84:85], s[86:87]
s_or_b64 s[80:81], s[80:81], s[84:85]
s_or_b32 s80, s80, s81
s_or_b32 s{sFlag}, s{sFlag}, s80
s_mov_b64 {S2(sX)}, {S2(sXn)}
s_mov_b32 s{sX+2}, s{sXnum}
s_mov_b32 s{sXnum}, 0
s_mov_b32 s{sWnum}, 0
s_mov_b64 {S2(sK)}, {S2(sK1)}
s_mov_b64 {S2(sV)}, {S2(sV1)}""")
    k = 0
    for s in range(6):
        Ep.append(I(f"s_mov_b32 s{sT}, {s*122880}"))
        for qt in range(4):
            tb = SP + 8 * (k % 4); k += 1
            for j in range(4): Ep.append(I(f"v_accvgpr_read_b32 v{tb+j}, a{Oacc(2*s, qt)+j}"))
            for j in range(4): Ep.append(I(f"v_accvgpr_read_b32 v{tb+4+j}, a{Oacc(2*s+1, qt)+j}"))
            rc = negm(0) + 2 * qt
            for j in range(4): Ep.append(I(f"v_pk_mul_f32 v[{tb+2*j}:{tb+2*j+1}], v[{tb+2*j}:{tb+2*j+1}], v[{rc}:{rc+1}]"))
            for j in range(4): Ep.append(I(f"v_cvt_pk_bf16_f32 v{tb+j}, v{tb+2*j}, v{tb+2*j+1}"))
            Ep.append(I(f"buffer_store_dwordx4 {V4(tb)}, v{vO3 if qt == 3 else vO}, {S4(sO)}, s{sT} offen offset:{qt*1024}" + (" nt" if OPT["nt_o"] else "")))
        if s < 2: Ep += xloads(s)
    Ep += stamp(6) + Is(f"""s_add_u32 s{sO}, s{sO}, {192*120*1024}
s_addc_u32 s{sO+1}, s{sO+1}, 0
s_add_u32 s{sItem}, s{sItem}, 1
s_cmp_lt_u32 s{sItem}, 2
s_cbranch_scc1 K1_ITEM""")
    B["epi"] = Ep
    F = Is(f"""s_lshl_b32 s80, s{sWave}, 2
s_add_u32 s80, s80, {6*TILE}
v_mov_b32 v{vT}, s80
v_mov_b32 v{vT+1}, s{sFlag}
v_mov_b32 v{vT+2}, {6*TILE}
ds_write_b32 v{vT}, v{vT+1}
s_waitcnt lgkmcnt(0)
s_barrier
ds_read_b128 {V4(vT+4)}, v{vT+2}
s_waitcnt lgkmcnt(0)
v_or_b32 v{vT+4}, v{vT+4}, v{vT+5}
v_or3_b32 v{vT+4}, v{vT+4}, v{vT+6}, v{vT+7}
s_nop 1
v_readfirstlane_b32 s80, v{vT+4}
s_nop 3
s_cmp_eq_u32 s80, 0
s_cbranch_scc1 K1_DONE
s_cmp_lg_u32 s{sMode}, 0
s_cbranch_scc1 K1_DONE
s_mov_b32 s{sMode}, 1
s_waitcnt vmcnt(0)
s_barrier
s_branch K1_PRO
K1_DONE:""")
    if OPT["stamps"]:
        F += Is(f"""s_load_dwordx2 s[80:81], {S2(sKA)}, 96
s_waitcnt lgkmcnt(0)
s_add_u32 s80, s80, 0x4000000
s_addc_u32 s81, s81, 0
s_mov_b32 s82, 0x100000
s_mov_b32 s83, 0x20000
s_lshl_b32 s84, s{sWg}, 2
s_add_u32 s84, s84, s{sWave}
s_lshl_b32 s84, s84, 8
v_lshlrev_b32 v{vT}, 2, v0
buffer_store_dword v47, v{vT}, s[80:83], s84 offen""")
    F += Is("K1_END:\ns_endpgm")
    B["fin"] = F
    B["fix1"] = Is(f"""K1_FIX1:
s_mov_b64 {S2(sDA)}, {S2(sV)}
s_mov_b32 s{sA}, {15*TILE}
s_branch K1_RET1""")
    B["fix2"] = Is(f"""K1_FIX2:
s_mov_b64 {S2(sDA)}, {S2(sWn)}
s_mov_b32 s{sDA+2}, s{sWnum}
s_mov_b64 {S2(sDB)}, {S2(sWn)}
s_mov_b32 s{sDB+2}, s{sWnum}
s_mov_b32 s{sB}, 0
s_mov_b32 s{sA}, {WS}
s_mov_b32 s{sInc}, {2*WS}
v_mov_b32 v{vD[0]}, v{vDw}
v_add_u32 v{vD[1]}, {196608-3072}, v{vDw}
s_branch K1_RET2""")
    X = Is(f"""K1_MAXPASS:
v_and_b32 v{vT}, 15, v0
v_lshrrev_b32 v{vT+1}, 4, v0
v_mul_u32_u24 v{vT}, 384, v{vT}
v_lshl_add_u32 v{vT}, v{vT+1}, 4, v{vT}
s_mov_b32 s{sT}, 0""") + [I(f"v_mov_b32 v{vMi[q]}, 0xff800000") for q in range(4)] + Is("K1_MAXL:")
    for s in range(6): X.append(I(f"buffer_load_dwordx4 {V4(SP+4*s)}, v{vT}, {S4(sDA)}, s{sT} offen offset:{s*64}"))
    X.append(I("s_waitcnt vmcnt(0)"))
    for qt in range(4):
        for s in range(6): X.append(mfma(V4(SP + 32 + 4 * qt), V4(SP + 4 * s), V4(Qf(qt, s)), V4(SP + 32 + 4 * qt) if s else "0"))
    X.append(I("s_nop 7"))
    for qt in range(4):
        d = SP + 32 + 4 * qt
        X += Is(f"v_max3_f32 v{vMi[qt]}, v{vMi[qt]}, v{d}, v{d+1}\nv_max3_f32 v{vMi[qt]}, v{vMi[qt]}, v{d+2}, v{d+3}")
    X += Is(f"s_add_u32 s{sT}, s{sT}, 6144\ns_cmp_lt_u32 s{sT}, 393216\ns_cbranch_scc1 K1_MAXL\ns_branch K1_MAXRET")
    B["maxpass"] = X
    item = ["item"] + [f"w{n}" for n in range(10)] + ["cvt", "qk0", "lo"] + ["le", "lo"] * 7 + ["tail", "pv15", "epi"]
    trace = ["entry", "pro"] + item + item + ["fin"]
    layout = ["entry", "pro", "item"] + [f"w{n}" for n in range(10)] + ["cvt", "qk0", "le", "lo", "tail", "pv15", "epi", "fin", "fix1", "fix2", "maxpass"]
    resolve_waits(B, trace)
    txt = {k: "\n".join(emit(v)).split("\n") for k, v in B.items()}
    errs = verify([l for b in trace for l in txt[b]])
    tr2 = ["entry", "pro"] + item[:12] + ["maxpass", "maxpass"] + item[12:]
    errs += verify([l for b in tr2 for l in txt[b]])
    for e in errs: sys.stderr.write("K1 HAZARD " + e + "\n")
    return [l for b in layout for l in txt[b]], errs

def kernel2():
    B = {}
    vR = [1, 2, 3, 4]; vDm = 5; vOf = 6; vSt = 7; vW = 8; vRd = 9; t0, t1, t2, t3 = 10, 11, 12, 13
    OB = 64
    def Of(d, kb, qt): return OB + 40 * (d % 4) + 4 * (kb * 5 + qt)
    def acc(t, qt): return 4 * (t * 5 + qt)
    WF = 160
    def wq(f): return WF + 4 * (f % 16)
    sW_ = 4; sOo = 8; sOut = 12; sWv = 16; sLb = 17; sWo = [18, 19]; sOo0 = 20; sOo1 = 21; sCnt = 22; sTt = 23; sRb = [24 + i for i in range(8)]
    P = Is(f"""
s_cmp_ge_u32 s2, 240
s_cbranch_scc1 K2_END
s_and_b32 s40, s2, 7
s_lshr_b32 s41, s2, 3
s_lshr_b32 s42, s40, 2
s_load_dwordx2 s[50:51], s[0:1], 32
s_load_dwordx2 s[56:57], s[0:1], 72
s_load_dwordx2 s[52:53], s[0:1], 80
s_load_dwordx2 s[54:55], s[0:1], 96
v_lshrrev_b32 v{t0}, 6, v0
v_and_b32 v0, 63, v0
s_and_b32 s43, s40, 3
v_readfirstlane_b32 s{sWv}, v{t0}
s_mul_i32 s44, s41, 52
s_lshr_b32 s44, s44, 8
s_mul_i32 s45, s44, 5
s_sub_u32 s45, s41, s45
s_mul_i32 s46, s43, 30
s_mul_i32 s47, s44, 5
s_add_u32 s46, s46, s47
s_mul_i32 s{sLb}, s{sWv}, 32768
v_lshrrev_b32 v{t0}, 3, v0
v_and_b32 v{t1}, 7, v0
v_and_b32 v{t2}, 6, v{t0}
v_xor_b32 v{t1}, v{t1}, v{t2}
v_and_b32 v{t2}, 4, v{t1}
v_and_b32 v{t3}, 1, v{t1}
v_lshl_or_b32 v{t2}, v{t3}, 1, v{t2}
v_bfe_u32 v{t3}, v{t1}, 1, 1
v_or_b32 v{t1}, v{t2}, v{t3}
v_mul_u32_u24 v{vDm}, 1280, v{t0}
v_lshl_add_u32 v{vDm}, v{t1}, 4, v{vDm}
v_lshlrev_b32 v{vOf}, 4, v0
s_lshr_b32 s48, s{sWv}, 1
s_lshl_b32 s48, s48, 7
s_mul_i32 s49, s{sWv}, {64*1280}
s_add_u32 s{sWo[0]}, s49, s48
s_xor_b32 s48, s48, 128
s_add_u32 s{sWo[1]}, s49, s48
s_mul_i32 s{sOo0}, s{sWv}, {2*122880}
s_add_u32 s{sOo1}, s{sOo0}, 122880
s_waitcnt lgkmcnt(0)
s_cmp_eq_u32 s42, 0
s_cselect_b64 s[50:51], s[50:51], s[56:57]
s_lshl_b32 s48, s45, 8
s_add_u32 s{sW_}, s50, s48
s_addc_u32 s{sW_+1}, s51, 0
s_sub_u32 s{sW_+2}, 7864320, s48
s_mov_b32 s{sW_+3}, 0x20000
s_mul_i32 s48, s42, {192*120}
s_add_u32 s48, s48, s46
s_lshl_b32 s48, s48, 10
s_add_u32 s{sOo}, s54, s48
s_addc_u32 s{sOo+1}, s55, 0
s_mov_b32 s{sOo+2}, {191*122880+5*1024}
s_mov_b32 s{sOo+3}, 0x20000
""")
    def wdma(u):
        p = u & 1; out = []
        n = " nt" if OPT["k2_nt_w"] else ""
        for rb in range(8):
            m = I(f"s_add_u32 m0, s{sLb}, {(u % 4)*8192 + rb*1024}")
            so = I(f"s_add_u32 s{sTt}, s{sWo[p]}, {rb*8*1280}")
            out += [m, so, I(f"buffer_load_dwordx4 v{vDm}, {S4(sW_)}, s{sTt} offen{n} lds", grp="first" if rb == 0 else "more")]
        out.append(I(f"s_add_u32 s{sWo[p]}, s{sWo[p]}, {256*1280}"))
        return out
    def oload(d, kb):
        n = " nt" if OPT["k2_nt_o"] else ""
        so = sOo0 if kb == 0 else sOo1
        out = [I(f"buffer_load_dwordx4 {V4(Of(d, kb, qt))}, v{vOf}, {S4(sOo)}, s{so} offen offset:{qt*1024}{n}", dst=regs("v", Of(d, kb, qt), 4)) for qt in range(4)]
        out.append(I(f"s_add_u32 s{sTt}, s{so}, 4096"))
        out.append(I(f"buffer_load_dwordx4 {V4(Of(d, kb, 4))}, v{vOf}, {S4(sOo)}, s{sTt} offen{n}", dst=regs("v", Of(d, kb, 4), 4)))
        out.append(I(f"s_add_u32 s{so}, s{so}, {8*122880}"))
        return out
    def wreads(u):
        out = []
        for tt in range(4):
            for kb in range(2):
                f = 8 * u + 2 * tt + kb; r = wq(f)
                for hf in range(2):
                    it = I(f"ds_read_b64_tr_b16 a[{r+2*hf}:{r+2*hf+1}], v{vR[tt]} offset:{(u % 4)*8192 + (4*kb+2*hf)*1024}", dst=regs("a", r + 2 * hf, 2)); it.f = 2 * tt + kb
                    out.append(it)
        return out
    P += wdma(0) + oload(0, 0) + oload(0, 1) + wdma(1) + wdma(2) + oload(1, 0) + oload(1, 1)
    P += Is(f"""
v_lshrrev_b32 v{t2}, 5, v0
v_lshlrev_b32 v{vR[0]}, 10, v{t2}
v_bfe_u32 v{t2}, v0, 2, 3
v_lshl_add_u32 v{vR[0]}, v{t2}, 7, v{vR[0]}
v_and_b32 v{t2}, 6, v{t2}
v_bfe_u32 v{t3}, v0, 1, 1
v_xor_b32 v{t2}, v{t2}, v{t3}
v_lshl_add_u32 v{vR[0]}, v{t2}, 4, v{vR[0]}
v_and_b32 v{t2}, 1, v0
v_lshl_add_u32 v{vR[0]}, v{t2}, 3, v{vR[0]}
s_and_b32 s48, s{sWv}, 1
s_lshl_b32 s48, s48, 6
v_xor_b32 v{vR[0]}, s48, v{vR[0]}
v_add_u32 v{vR[0]}, s{sLb}, v{vR[0]}
v_xor_b32 v{vR[1]}, 32, v{vR[0]}
v_xor_b32 v{vR[2]}, 64, v{vR[0]}
v_xor_b32 v{vR[3]}, 96, v{vR[0]}
s_lshl_b32 s48, s46, 4
s_mul_i32 s48, s48, 2560
s_mul_i32 s49, s42, 1280
s_add_u32 s48, s48, s49
s_lshl_b32 s49, s45, 8
s_add_u32 s48, s48, s49
s_lshl_b32 s49, s{sWv}, 6
s_add_u32 s48, s48, s49
s_add_u32 s{sOut}, s52, s48
s_addc_u32 s{sOut+1}, s53, 0
s_sub_u32 s{sOut+2}, {8*240*1280*2}, s48
s_mov_b32 s{sOut+3}, 0x20000
v_and_b32 v{t0}, 15, v0
v_lshrrev_b32 v{t1}, 4, v0
v_mul_u32_u24 v{vSt}, 2560, v{t0}
v_lshl_add_u32 v{vSt}, v{t1}, 4, v{vSt}
s_mov_b32 s{sCnt}, 0
""")
    P += [I(f"v_accvgpr_write_b32 a{i}, 0") for i in range(160)]
    NP = 8
    P += [WAIT(gneed=3)] + wreads(0)[:NP] + [WAIT(lneed=regs("a", wq(0), 8), vneed=regs("v", Of(0, 0, 0), 40))]
    B["pro"] = P
    L = Is(".p2align 6\nK2_L:")
    for u in range(8):
        d, p = u >> 1, u & 1
        mf = []
        for tt in range(4):
            for qt in range(5):
                for kb in range(2):
                    a = acc(4 * p + tt, qt)
                    mf.append(mfma(A4(a), A4(wq(8 * u + 2 * tt + kb)), V4(Of(d, kb, qt)), A4(a)))
        own = wreads(u)[NP:]; nxt = wreads(u + 1)[:NP]
        spread(own, 0, 14)
        wv = WAIT(gneed=3, lo=19, hi=21, target=20)
        for it in nxt: it.after = [wv]; it.dly = -1
        spread(nxt, 21, 34)
        ws = [WAIT(lneed=regs("a", wq(8 * u + 2), 8), lo=7, hi=9, target=8),
              WAIT(lneed=regs("a", wq(8 * u + 4), 8), lo=17, hi=19, target=18), wv,
              WAIT(lneed=regs("a", wq(8 * u + 6), 8), lo=27, hi=29, target=28),
              WAIT(lneed=regs("a", wq(8 * u + 8), 8), vneed=regs("v", Of(d + 1, 0, 0), 40) if p else None, lo=38, hi=39, target=38.5)]
        vm = wdma(u + 3) + oload(d + 2, p)
        if u == 7: vm += Is(f"s_add_u32 s{sCnt}, s{sCnt}, 1\ns_cmp_lt_u32 s{sCnt}, 6")
        spread(vm, 0, 40)
        L += schedule(mf, [ws, own + nxt, vm], name=f"k2u{u}")
    L += Is("s_cbranch_scc1 K2_L")
    B["loop"] = L
    E = Is(f"""s_waitcnt vmcnt(0) lgkmcnt(0)
s_barrier""")
    for j in range(1, 4):
        E += Is(f"""s_xor_b32 s48, s{sWv}, {j}
s_mul_i32 s48, s48, 30720
v_add_u32 v{vW}, s48, v{vOf}""")
        for tt in range(2):
            for qt in range(5):
                E.append(I(f"ds_write_b128 v{vW}, {A4(acc(2*j+tt, qt))} offset:{(j-1)*10240 + (tt*5+qt)*1024}"))
    E += Is(f"""s_mul_i32 s48, s{sWv}, 30720
v_add_u32 v{vRd}, s48, v{vOf}""")
    for i in range(40): E.append(I(f"v_accvgpr_read_b32 v{16+i}, a{i}"))
    E += Is("s_waitcnt lgkmcnt(0)\ns_barrier")
    for q in range(10):
        for j in range(3):
            E.append(I(f"ds_read_b128 {V4(64+12*q+4*j)}, v{vRd} offset:{j*10240+q*1024}", dst=regs("v", 64 + 12 * q + 4 * j, 4)))
    for qt in range(5):
        for tt in range(2):
            q = tt * 5 + qt
            E.append(WAIT(lneed=regs("v", 64 + 12 * q, 12)))
            b = 16 + 4 * q
            for j in range(3):
                for h in range(2):
                    E.append(I(f"v_pk_add_f32 v[{b+2*h}:{b+2*h+1}], v[{b+2*h}:{b+2*h+1}], v[{64+12*q+4*j+2*h}:{64+12*q+4*j+2*h+1}]"))
        a, b = 16 + 4 * qt, 16 + 4 * (5 + qt)
        E += Is(f"""v_cvt_pk_bf16_f32 v{a}, v{a}, v{a+1}
v_cvt_pk_bf16_f32 v{a+1}, v{a+2}, v{a+3}
v_cvt_pk_bf16_f32 v{a+2}, v{b}, v{b+1}
v_cvt_pk_bf16_f32 v{a+3}, v{b+2}, v{b+3}
s_mov_b32 s48, {qt*16*2560}
s_nop 0
v_permlane16_swap_b32 v{a}, v{a+2}
v_permlane16_swap_b32 v{a+1}, v{a+3}
buffer_store_dwordx4 {V4(a)}, v{vSt}, {S4(sOut)}, s48 offen""")
    E += Is("K2_END:\ns_endpgm")
    B["epi"] = E
    trace = ["pro"] + ["loop"] * 6 + ["epi"]
    resolve_waits(B, trace)
    txt = {k: "\n".join(emit(v)).split("\n") for k, v in B.items()}
    errs = verify([l for b in trace for l in txt[b]])
    for e in errs: sys.stderr.write("K2 HAZARD " + e + "\n")
    return [l for b in ["pro", "loop", "epi"] for l in txt[b]], errs

def desc(name, vg=512, acc=256):
    return f""".p2align 6
.amdhsa_kernel {name}
  .amdhsa_next_free_vgpr {vg}
  .amdhsa_next_free_sgpr 102
  .amdhsa_accum_offset {acc}
  .amdhsa_group_segment_fixed_size 0
  .amdhsa_kernarg_size 104
  .amdhsa_user_sgpr_count 2
  .amdhsa_user_sgpr_kernarg_segment_ptr 1
  .amdhsa_system_sgpr_workgroup_id_x 1
  .amdhsa_float_denorm_mode_32 3
.end_amdhsa_kernel"""

def main():
    k1, e1 = kernel1(); k2, e2 = kernel2()
    ref = open("cdna_kernels/" + NAME + ".s.ref").read().split("\n")
    head = [l for l in ref if l.startswith(";") and "@launch" not in l and "Override launch" not in l and "grid=ceil" not in l]
    out = head + [f"; @launch kernel=attn_kernel grid=(256,1,1) block=(256,1,1) lds=163840",
                  f"; @launch kernel=oproj_kernel grid=(240,1,1) block=(256,1,1) lds=163840",
                  '.amdgcn_target "amdgcn-amd-amdhsa--gfx950"', ".text"]
    for nm, body in (("attn_kernel", k1), ("oproj_kernel", k2)):
        out += [f".globl {nm}", ".p2align 8", f".type {nm},@function", f"{nm}:"] + body
    out += ['.section .rodata,"a"', desc("attn_kernel"), desc("oproj_kernel")]
    open(sys.argv[1], "w").write("\n".join(out) + "\n")
    if e1 or e2: sys.exit(1)
main()
```

```python
import sys, math
from asmlib import *
from verify import verify

OPT = dict(nt_kv=1, nt_w=0, nt_x=0, nt_o=0, k2_nt_o=0, k2_nt_w=0, stamps=0)
for a in sys.argv[2:]:
    k, v = a.split("="); OPT[k] = int(v)
NAME = "concat_heads__gqa_block_cached__gqa_block_cached__near_ridge"
MF = "v_mfma_f32_16x16x32_bf16"
def I(t, **kw): return Ins(t, **kw)
def Is(txt): return [Ins(t.strip()) for t in txt.strip().split("\n") if t.strip()]
def mfma(d, a, b, c): return Ins(f"{MF} {d}, {a}, {b}, {c}")
def V4(b): return f"v[{b}:{b+3}]"
def A4(b): return f"a[{b}:{b+3}]"

TILE = 24576; PAIR = 49152; WS = 64 * 12288
vKb = [1, 2]; vK = [3, 4]; vVb = [5, 6, 7, 8]; vV = [9, 10, 11, 12]
vD = [13, 14]; vDkv = 15; vDw = 16; vX = 17; vO = 18; vO3 = 19
vL = [20, 21, 22, 23]; vMi = [24, 25, 26, 27]; vT = 28
NEGM = 48; SP = 64; QF = 160
def negm(qt): return NEGM + 4 * qt
def XY(par, kb, qt): return SP + 4 * ((par * 2 + kb) * 4 + qt)
def Z(kb, qt): return SP + 64 + 4 * (kb * 4 + qt)
def Qf(qt, s): return QF + 4 * (qt * 6 + s)
def Qb(qt, s): return SP + 4 * (qt * 6 + s)
def Oacc(t, qt): return 4 * (t * 4 + qt)
def Xf(n, kb, qt): return 32 * (n % 6) + 4 * (kb * 4 + qt)
FR = 192
def fq(n, f): return FR + 4 * ((f + 8 * (n & 1)) % 16)
sX = 4; sDA = 8; sDB = 12; sO = 16
sK = 20; sV = 22; sWn = 24; sWnum = 26; sXnum = 27; sXn = 28; sK1 = 30; sV1 = 32
sA = 34; sB = 35; sInc = 36; sPe = 37; sPo = 38; sI = 39; sWoff = 40; sWoffV = 41
sXq = [42, 43, 44, 45]; sT = 46; sItem = 47; sMode = 48; sFlag = 49; sC = 50
sWave = 52; sWg = 53; sT2 = 54; sT3 = 55; sThr = 56; sKA = 58
sLd = 60
def S4(b): return f"s[{b}:{b+3}]"
def S2(b): return f"s[{b}:{b+1}]"
def phys(n): return (n + 1) % 6
BG = 76
NPRE_V = 10; NPRE_K = 6

def lastuse_pv(f): return 8 * (f >> 1) + 6 + (f & 1)
def lastuse_qk(f): kt, s = divmod(f, 6); return 24 * kt + 18 + (5 - s)

def reads_v(n, odd):
    out = []
    for f in range(24):
        t, kb = f >> 1, f & 1
        r = fq(n, f)
        for hf in range(2):
            off = odd * TILE + (4 * kb + 2 * hf) * 3072 + (t >> 2) * 1024
            it = I(f"ds_read_b64_tr_b16 a[{r+2*hf}:{r+2*hf+1}], v{vV[t & 3]} offset:{off}", dst=regs("a", r + 2 * hf, 2)); it.f = f
            out.append(it)
    return out
def reads_k(n, odd):
    out = []
    for f in range(24):
        kt, s = divmod(f, 6); r = fq(n, f)
        off = odd * TILE + kt * 6144 + (s >> 1) * 1024
        it = I(f"ds_read_b128 {A4(r)}, v{vK[s & 1]} offset:{off}", dst=regs("a", r, 4)); it.f = f
        out.append(it)
    return out

def dma(srd, soff, m0init, nt):
    n = " nt" if nt else ""
    out = []
    for p in range(3):
        m = I(m0init if p == 0 else "s_add_u32 m0, m0, 896")
        a = I(f"buffer_load_dwordx4 v{vD[0]}, {S4(srd)}, s{soff} offen offset:{p*128}{n} lds", grp="first" if p == 0 else "more", after=[m])
        b = I(f"buffer_load_dwordx4 v{vD[1]}, {S4(srd)}, s{soff} offen offset:{p*128+3072}{n} lds", grp="more")
        out += [m, a, b]
    return out

def phase(name, n, typ, mf, own, nxt, nxt_typ, pre_bar, misc_early, dmas, extra=(), xneed=None, post=()):
    lu = lastuse_pv if typ == "v" else lastuse_qk
    rs = []
    if typ == "v":
        k0 = 48 - len(own)
        for j, it in enumerate(own):
            it.target = -18 + (k0 + j) * 88 / 48 if k0 else j * 70 / 48
            it.hi = min(8 * (it.f >> 1) - 6, BG - 5) if k0 else BG - 5
            if it.f >= 16: it.lo = lu(it.f - 16)
            it.hi = max(it.hi, it.lo)
    else:
        for j, it in enumerate(own):
            kt, s = divmod(it.f, 6)
            it.target = 24 * (kt - 1) + 1 + s * 2.5; it.hi = 24 * kt - 8
            if it.f >= 16: it.lo = lu(it.f - 16)
    rs += own
    for it in pre_bar:
        it.lo = max(it.lo, 0); it.hi = BG - 1; it.target = own[-1].target + 1
    rs += pre_bar
    bar = BAR(5, lo=BG, hi=BG); rs.append(bar)
    for j, it in enumerate(nxt):
        it.lo = max(BG + 1, lu(it.f + 8)); it.after = [bar]
        it.target = BG + 1 + (j * 1.8 if nxt_typ == "v" else j * 1.5); it.hi = 95 if nxt_typ == "v" and j >= 4 else 88
    rs += nxt
    ws = []
    if typ == "v":
        for t in range(1, 12):
            if 8 * t - 1 >= BG: break
            ws.append(WAIT(lneed=regs("a", fq(n, 2 * t), 4) | regs("a", fq(n, 2 * t + 1), 4), lo=8 * t - 3, hi=8 * t - 1, target=8 * t - 2))
    else:
        for kt in range(1, 4):
            ws.append(WAIT(lneed=set().union(*[regs("a", fq(n, 6 * kt + s), 4) for s in range(6)]), lo=24 * kt - 3, hi=24 * kt - 1, target=24 * kt - 2))
    if nxt:
        nf = 2 if nxt_typ == "v" else 6
        ws.append(WAIT(lneed=set().union(*[regs("a", fq(n + 1, f), 4) for f in range(nf)]), vneed=xneed, lo=94, hi=95, target=94.5))
    ms = list(misc_early)
    spread(ms, 2, BG - 6)
    fst = True
    for j, it in enumerate(dmas):
        it.lo = BG + 1 if it.kind == "vmem" else max(it.lo, BG - 4)
        it.target = BG - 2 + j * 1.7
        if it.kind == "vmem": it.after = it.after + [bar]
    ms += dmas
    for it in post: it.lo = BG + 1; it.target = 93;
    ms += list(post)
    return schedule(mf, [ws, rs, ms] + list(extra), novalu=range(BG, BG + 9), name=name)

def softmax(par, kb, lo, hi, zdead=None, sub=None, los=None):
    E = []; D = []; P = []
    for qt in range(4):
        x, z = XY(par, kb, qt), Z(kb, qt)
        src = [x, x + 1, x + 2, x + 3, z, z + 1, z + 2, z + 3]
        for pr in range(4):
            es = []
            for e in range(2):
                r = src[2 * pr + e]
                ex = I(f"v_exp_f32 v{r}, v{r}")
                if sub:
                    sb = I(f"v_add_f32 v{r}, v{r}, v{negm(qt)}", after=[sub[qt]], lo=los[qt][pr >> 1]); P.append(sb); ex.after = [sb]
                E.append(ex); es.append(ex)
                D.append(I(f"v_add_f32 v{vL[qt]}, v{vL[qt]}, v{r}", after=[ex]))
            c = I(f"v_cvt_pk_bf16_f32 v{x+pr}, v{src[2*pr]}, v{src[2*pr+1]}", after=es)
            if zdead: c.hi = zdead(qt)
            D.append(c)
    spread(E, lo, hi - 2)
    for d in D:
        d.target = max(a.target for a in d.after) + 1; d.hi = min(d.hi, hi)
        for a in d.after: a.hi = min(a.hi, d.hi - 1)
    for p, e in zip(P, E): p.target = e.target - 3; p.hi = e.hi - 1
    return ([P] if sub else []) + [E, D]

def mf_w(n):
    out = []
    for t in range(12):
        for qt in range(4):
            d = Qf(qt, t >> 1) if t % 2 == 0 else Qb(qt, t >> 1)
            for kb in range(2):
                out.append(mfma(V4(d), A4(fq(n, 2 * t + kb)), A4(Xf(n, kb, qt)), "0" if (n == 0 and kb == 0) else V4(d)))
    return out
def mf_qk(n, par, first=False):
    out = []
    for kt in range(4):
        for qt in range(4):
            d = XY(par, kt >> 1, qt) if kt % 2 == 0 else Z(kt >> 1, qt)
            order = range(6) if qt % 2 == 0 else range(5, -1, -1)
            for j, s in enumerate(order):
                c = V4(d) if j else ("0" if (first and kt < 2) else V4(negm(qt)))
                out.append(mfma(V4(d), A4(fq(n, 6 * kt + s)), V4(Qf(qt, s)), c))
    return out
def mf_pv(n, par):
    out = []
    for t in range(12):
        for qt in range(4):
            for kb in range(2):
                out.append(mfma(A4(Oacc(t, qt)), A4(fq(n, 2 * t + kb)), V4(XY(par, kb, qt)), A4(Oacc(t, qt))))
    return out
def xload(n, kb, qt):
    r = Xf(n, kb, qt)
    return I(f"buffer_load_dwordx4 {A4(r)}, v{vX}, {S4(sX)}, s{sXq[qt]} offen offset:{(2*n+kb)*64}" + (" nt" if OPT["nt_x"] else ""), dst=regs("a", r, 4))
def xloads(n): return [xload(n, kb, qt) for qt in range(4) for kb in range(2)]
def setv(pair): return [I(f"v_add_u32 v{vV[i]}, {pair*PAIR}, v{vVb[i]}") for i in range(4)]
def setk(pair): return [I(f"v_add_u32 v{vK[i]}, {pair*PAIR}, v{vKb[i]}") for i in range(2)]
def static_dma(tile_n):
    m = tile_n % 42
    m0 = f"s_add_u32 m0, s{sWoff}, {phys(m)*TILE}"
    if m < 10: return [I(f"s_mov_b32 s{sT}, {m*WS}")] + dma(sDA, sT, m0, OPT["nt_w"])
    if m == 10: srd, i = sDA, 0
    elif m == 41: srd, i = sDB, 15
    elif m % 2: srd, i = sDA, (m - 9) // 2
    else: srd, i = sDB, (m - 12) // 2
    return [I(f"s_mov_b32 s{sT}, {i*TILE}")] + dma(srd, sT, m0, OPT["nt_kv"])

def lin(items):
    out = []
    for it in items:
        out.append(it)
        if it.text.startswith("s_add_u32 m0"): out.append(I("s_nop 0"))
    return out

def stamp(idx, k2=False):
    if not OPT["stamps"]: return []
    va, vb = (250, 251) if k2 else (46, 47)
    sel = f"s_mov_b32 s92, {idx}" if (k2 or idx >= 48) else f"s_mul_i32 s92, s{sItem}, 24\ns_add_u32 s92, s92, {idx}"
    return Is(f"""s_memtime s[90:91]
s_memrealtime s[94:95]
s_waitcnt lgkmcnt(0)
s_cselect_b32 s96, 1, 0
{sel}
s_mov_b32 s93, m0
s_mov_b32 m0, s92
v_writelane_b32 v{va}, s90, m0
v_writelane_b32 v{vb}, s94, m0
s_mov_b32 m0, s93
s_cmp_lg_u32 s96, 0""")
def stamp_out(karg, wg, wave, tmp, base, k2=False):
    if not OPT["stamps"]: return []
    va = 250 if k2 else 46
    return Is(f"""s_load_dwordx2 s[80:81], {karg}, 96
s_waitcnt lgkmcnt(0)
s_add_u32 s80, s80, {base}
s_addc_u32 s81, s81, 0
s_mov_b32 s82, 0x100000
s_mov_b32 s83, 0x20000
s_lshl_b32 s84, s{wg}, 2
s_add_u32 s84, s84, s{wave}
s_lshl_b32 s84, s84, 9
v_lshlrev_b32 v{tmp}, 3, v0
buffer_store_dwordx2 v[{va}:{va+1}], v{tmp}, s[80:83], s84 offen""")

def kernel1():
    B = {}
    c = math.log2(math.e) / math.sqrt(192.0)
    import struct
    cbits = struct.unpack("<I", struct.pack("<f", c))[0]
    B["entry"] = Is(f"""
s_cmp_ge_u32 s2, 256
s_cbranch_scc1 K1_END
s_mov_b32 s{sWg}, s2
s_mov_b64 {S2(sKA)}, s[0:1]
s_mov_b32 s{sMode}, 0
v_lshrrev_b32 v{vT}, 6, v0
v_and_b32 v0, 63, v0
v_mov_b32 v47, 0
v_readfirstlane_b32 s{sWave}, v{vT}
""") + stamp(48)
    P = Is(f"""
K1_PRO:
s_load_dwordx2 {S2(sLd)}, {S2(sKA)}, 0
s_load_dwordx2 {S2(sLd+2)}, {S2(sKA)}, 8
s_load_dwordx2 {S2(sLd+4)}, {S2(sKA)}, 16
s_load_dwordx2 {S2(sLd+6)}, {S2(sKA)}, 24
s_load_dwordx2 {S2(sLd+8)}, {S2(sKA)}, 40
s_load_dwordx2 {S2(sLd+10)}, {S2(sKA)}, 48
s_load_dwordx2 {S2(sLd+12)}, {S2(sKA)}, 56
s_load_dwordx2 {S2(sLd+14)}, {S2(sKA)}, 64
s_load_dwordx2 {S2(sLd+16)}, {S2(sKA)}, 96
s_and_b32 s{sT}, s{sWg}, 7
s_lshr_b32 s{sT2}, s{sWg}, 3
s_lshr_b32 s80, s{sT}, 1
s_lshl_b32 s80, s80, 3
s_and_b32 s81, s{sT2}, 7
s_add_u32 s80, s80, s81
s_and_b32 s81, s{sT}, 1
s_lshl_b32 s81, s81, 2
s_lshr_b32 s82, s{sT2}, 3
s_add_u32 s81, s81, s82
s_mul_i32 s82, s81, 307200
s_lshl_b32 s83, s81, 5
s_add_u32 s83, s83, s80
s_mul_i32 s83, s83, 393216
s_mul_i32 s84, s80, 384
s_mul_i32 s85, s80, 720
s_mul_i32 s86, s81, 15
s_add_u32 s85, s85, s86
s_lshl_b32 s85, s85, 10
s_mul_i32 s{sWoff}, s{sWave}, 6144
s_add_u32 s{sWoffV}, s{sWoff}, {TILE}
s_mov_b32 s{sXq[0]}, 0
s_mov_b32 s{sXq[1]}, 20480
s_mov_b32 s{sXq[2]}, 40960
s_mov_b32 s{sXq[3]}, 61440
s_mov_b32 s{sItem}, 0
s_mov_b32 s{sFlag}, 0
s_mov_b32 s{sC}, {cbits:#x}
s_mov_b32 s{sC+1}, {cbits:#x}
s_mov_b32 s{sThr}, 0x4e800000
""")
    t0, t1, t2, t3 = vT, vT + 1, vT + 2, vT + 3
    P += Is(f"""
v_lshrrev_b32 v{t0}, 3, v0
v_and_b32 v{t1}, 7, v0
v_and_b32 v{t2}, 6, v{t0}
v_xor_b32 v{t1}, v{t1}, v{t2}
v_mul_u32_u24 v{vDkv}, 384, v{t0}
v_lshl_add_u32 v{vDkv}, v{t1}, 4, v{vDkv}
v_add_u32 v{vDkv}, s{sWoff}, v{vDkv}
v_and_b32 v{t2}, 4, v{t1}
v_and_b32 v{t3}, 1, v{t1}
v_lshl_or_b32 v{t2}, v{t3}, 1, v{t2}
v_bfe_u32 v{t3}, v{t1}, 1, 1
v_or_b32 v{t1}, v{t2}, v{t3}
v_and_b32 v{t2}, 3, v{t0}
v_lshrrev_b32 v{t3}, 2, v{t0}
v_lshl_add_u32 v{t2}, v{t3}, 3, v{t2}
s_lshr_b32 s86, s{sWave}, 1
s_lshl_b32 s86, s86, 5
s_and_b32 s87, s{sWave}, 1
s_lshl_b32 s87, s87, 2
s_add_u32 s86, s86, s87
v_add_u32 v{t2}, s86, v{t2}
v_mul_u32_u24 v{vDw}, 12288, v{t2}
v_lshl_add_u32 v{vDw}, v{t1}, 4, v{vDw}
v_mov_b32 v{vD[0]}, v{vDw}
v_add_u32 v{vD[1]}, {196608-3072}, v{vDw}
v_and_b32 v{t0}, 15, v0
v_lshrrev_b32 v{t1}, 4, v0
s_lshl_b32 s86, s{sWave}, 6
v_add_u32 v{t2}, s86, v{t0}
v_mul_u32_u24 v{vX}, 1280, v{t2}
v_lshl_add_u32 v{vX}, v{t1}, 4, v{vX}
s_waitcnt lgkmcnt(0)
s_add_u32 s{sX}, s{sLd}, s82
s_addc_u32 s{sX+1}, s{sLd+1}, 0
s_mov_b32 s{sX+2}, 307200
s_mov_b32 s{sX+3}, 0x20000
s_add_u32 s{sDA}, s{sLd+6}, s84
s_addc_u32 s{sDA+1}, s{sLd+7}, 0
s_sub_u32 s{sWnum}, 7864320, s84
s_mov_b32 s{sDA+2}, s{sWnum}
s_mov_b32 s{sDA+3}, 0x20000
""")
    P += lin(static_dma(0)) + xloads(0) + lin(static_dma(1)) + xloads(1)
    P += Is(f"""
s_add_u32 s{sK}, s{sLd+2}, s83
s_addc_u32 s{sK+1}, s{sLd+3}, 0
s_add_u32 s{sV}, s{sLd+4}, s83
s_addc_u32 s{sV+1}, s{sLd+5}, 0
s_add_u32 s{sXn}, s{sLd+8}, s82
s_addc_u32 s{sXn+1}, s{sLd+9}, 0
s_mov_b32 s{sXnum}, 307200
s_add_u32 s{sK1}, s{sLd+10}, s83
s_addc_u32 s{sK1+1}, s{sLd+11}, 0
s_add_u32 s{sV1}, s{sLd+12}, s83
s_addc_u32 s{sV1+1}, s{sLd+13}, 0
s_add_u32 s{sWn}, s{sLd+14}, s84
s_addc_u32 s{sWn+1}, s{sLd+15}, 0
s_add_u32 s{sO}, s{sLd+16}, s85
s_addc_u32 s{sO+1}, s{sLd+17}, 0
s_mov_b32 s{sO+2}, {5*122880+15*1024}
s_mov_b32 s{sO+3}, 0x20000
s_mov_b64 {S2(sDB)}, {S2(sDA)}
s_mov_b32 s{sDB+2}, 0
s_mov_b32 s{sDB+3}, 0x20000
""")
    for m in range(2, 6): P += lin(static_dma(m))
    P += Is(f"""
v_lshrrev_b32 v{t2}, 3, v{t0}
v_mul_u32_u24 v{vKb[0]}, 3072, v{t2}
v_and_b32 v{t2}, 7, v{t0}
v_lshl_add_u32 v{vKb[0]}, v{t2}, 7, v{vKb[0]}
v_and_b32 v{t2}, 6, v{t0}
v_xor_b32 v{t2}, v{t2}, v{t1}
v_lshl_add_u32 v{vKb[0]}, v{t2}, 4, v{vKb[0]}
v_xor_b32 v{vKb[1]}, 64, v{vKb[0]}
v_lshrrev_b32 v{t2}, 5, v0
v_mul_u32_u24 v{vVb[0]}, 3072, v{t2}
v_bfe_u32 v{t2}, v0, 2, 3
v_lshl_add_u32 v{vVb[0]}, v{t2}, 7, v{vVb[0]}
v_and_b32 v{t2}, 6, v{t2}
v_bfe_u32 v{t3}, v0, 1, 1
v_xor_b32 v{t2}, v{t2}, v{t3}
v_lshl_add_u32 v{vVb[0]}, v{t2}, 4, v{vVb[0]}
v_and_b32 v{t2}, 1, v0
v_lshl_add_u32 v{vVb[0]}, v{t2}, 3, v{vVb[0]}
v_xor_b32 v{vVb[1]}, 32, v{vVb[0]}
v_xor_b32 v{vVb[2]}, 64, v{vVb[0]}
v_xor_b32 v{vVb[3]}, 96, v{vVb[0]}
s_lshl_b32 s86, s{sWave}, 12
v_lshlrev_b32 v{vO}, 4, v0
v_add_u32 v{vO}, s86, v{vO}
s_cmp_eq_u32 s{sWave}, 3
s_cselect_b32 s86, 0x80000000, 0
v_add_u32 v{vO3}, s86, v{vO}
s_mov_b32 s87, 0xff800000
s_cselect_b32 s86, 0x71000000, s87
v_mov_b32 v{vMi[0]}, s87
v_mov_b32 v{vMi[1]}, s87
v_mov_b32 v{vMi[2]}, s87
v_mov_b32 v{vMi[3]}, s86
""")
    P += [I(f"v_mov_b32 v{vL[q]}, 0") for q in range(4)]
    P += setv(0)
    P += [BAR(6)]
    P += reads_v(0, 1)[:NPRE_V]
    B["pro"] = P
    B["item"] = Is("K1_ITEM:") + stamp(0) + [WAIT(lneed=regs("a", fq(0, 0), 8), vneed=regs("a", Xf(0, 0, 0), 32))]
    xs = [x for n in range(2, 10) for x in xloads(n)]
    XPH = [11, 11, 11, 11, 10, 10]
    xi = 0
    for n in range(10):
        own = reads_v(n, phys(n) & 1)[NPRE_V:]
        pre = []; early = []
        if n < 9:
            nxt = reads_v(n + 1, phys(n + 1) & 1)[:NPRE_V]; nt_ = "v"
            if phys(n + 1) >> 1 != phys(n) >> 1: pre = setv(phys(n + 1) >> 1)
        else:
            nxt = reads_k(10, 1)[:NPRE_K]; nt_ = "k"; pre = setk(2)
        extra = []
        if n < 6:
            xl = xs[xi:xi + XPH[n]]; xi += XPH[n]
            for it in xl:
                m = 2 + xs.index(it) // 8
                assert m - 6 < n
            spread(xl, 1, BG - 2); extra.append(xl)
        vz = []
        if n >= 5:
            b = 32 * ((n - 1) % 6)
            vz = [I(f"v_accvgpr_write_b32 a{b+i}, 0") for i in range(32)]
        if n == 4:
            early = Is(f"""s_mov_b64 {S2(sDA)}, {S2(sK)}
s_mov_b32 s{sDA+2}, 393216
s_mov_b64 {S2(sDB)}, {S2(sV)}
s_mov_b32 s{sDB+2}, 393216""")
            vz = [I(f"v_mov_b32 v{vD[0]}, v{vDkv}"), I(f"v_mov_b32 v{vD[1]}, v{vDkv}")]
        if vz: spread(vz, 1, BG - 4); extra.append(vz)
        B[f"w{n}"] = (stamp(8 + n) if OPT["stamps"] == 2 else []) + phase(f"w{n}", n, "v", mf_w(n), own, nxt, nt_, pre, early, static_dma(n + 6), extra,
                           xneed=regs("a", Xf(n + 1, 0, 0), 32) if n < 9 else None)
    C = stamp(1)
    for s in range(6):
        for qt in range(4):
            a, b = Qf(qt, s), Qb(qt, s)
            for r in (a, a + 2, b, b + 2): C.append(I(f"v_pk_mul_f32 v[{r}:{r+1}], v[{r}:{r+1}], {S2(sC)}"))
        for qt in range(4):
            a, b = Qf(qt, s), Qb(qt, s)
            C += Is(f"""v_cvt_pk_bf16_f32 v{a}, v{a}, v{a+1}
v_cvt_pk_bf16_f32 v{a+1}, v{a+2}, v{a+3}
v_cvt_pk_bf16_f32 v{a+2}, v{b}, v{b+1}
v_cvt_pk_bf16_f32 v{a+3}, v{b+2}, v{b+3}""")
        for qt in range(4):
            a = Qf(qt, s)
            C += Is(f"v_permlane16_swap_b32 v{a}, v{a+2}\nv_permlane16_swap_b32 v{a+1}, v{a+3}")
    C += Is(f"s_cmp_lg_u32 s{sMode}, 0\ns_cbranch_scc1 K1_MAXPASS\nK1_MAXRET:") + stamp(2)
    B["cvt"] = C
    M = []; last = []
    for qt in range(4):
        x = XY(0, 0, qt); m = vT + 2 * qt; t = m + 1
        a = I(f"v_max3_f32 v{m}, v{x}, v{x+1}, v{x+2}", lo=6 * qt + 13)
        b = I(f"v_max3_f32 v{m}, v{m}, v{x+3}, v{vMi[qt]}")
        c_ = I(f"v_mov_b32 v{t}, v{m}")
        d = I(f"v_permlane16_swap_b32 v{m}, v{t}", after=[c_], dly=1)
        e = I(f"v_max_f32 v{m}, v{m}, v{t}")
        f = I(f"v_mov_b32 v{t}, v{m}")
        g = I(f"v_permlane32_swap_b32 v{m}, v{t}", after=[f], dly=1)
        h = I(f"v_max_f32 v{m}, v{m}, v{t}")
        ns = [I(f"v_sub_f32 v{negm(qt)+i}, 0, v{m}", hi=48 + 6 * qt - 3) for i in range(4)]
        st = [a, b, c_, d, e, f, g, h] + ns
        for j, it in enumerate(st): it.target = 6 * qt + 13 + j * 0.5
        M.append(st); last.append(ns[0])
    vz = [I(f"v_accvgpr_write_b32 a{96+i}, 0") for i in range(32)]
    spread(vz, 0, 20)
    sm = softmax(0, 0, 30, 95, sub=last, los=[[0, 24 + 6 * qt + 13] for qt in range(4)])
    early = Is(f"""s_mov_b32 s{sPo}, 0
s_mov_b32 s{sA}, {4*TILE}
s_mov_b32 s{sB}, {3*TILE}
s_mov_b32 s{sInc}, {TILE}
s_mov_b32 s{sI}, 1""")
    B["qk0"] = phase("qk0", 10, "k", mf_qk(10, 0, True), reads_k(10, 1)[NPRE_K:], reads_k(11, 0)[:NPRE_K], "k", setk(0), early,
                     static_dma(16), M + [vz] + sm) + stamp(3) + Is("s_branch K1_LO")
    for par, cur, nx in ((0, sPe, sPo), (1, sPo, sPe)):
        nm = "eo"[par]
        early = Is(f"s_add_u32 s{nx}, s{cur}, {PAIR}\ns_cmp_eq_u32 s{nx}, {3*PAIR}\ns_cselect_b32 s{nx}, 0, s{nx}")
        if par: early.append(Ins(f"s_cmp_eq_u32 s{sI}, 13\ns_cbranch_scc1 K1_FIX1\nK1_RET1:", kind="bar"))
        upd = [I(f"v_add_u32 v{vV[i]}, s{cur}, v{vVb[i]}") for i in range(4)]; spread(upd, 10, 60)
        d = dma(sDA, sA, f"s_add_u32 m0, s{cur}, s{sWoff}", OPT["nt_kv"])
        q = phase("qk" + nm, 11, "k", mf_qk(11, par), reads_k(11, 0)[NPRE_K:], reads_v(12, 1)[:NPRE_V], "v", [], early, d,
                  softmax(1 - par, 1, 0, 90, zdead=lambda qt: 72 + 6 * qt - 1) + [upd], post=Is(f"s_add_u32 s{sA}, s{sA}, s{sInc}"))
        early = []
        if par: early.append(Ins(f"s_cmp_eq_u32 s{sI}, 13\ns_cbranch_scc1 K1_FIX2\nK1_RET2:", kind="bar"))
        upd = [I(f"v_add_u32 v{vK[i]}, s{nx}, v{vKb[i]}") for i in range(2)]; spread(upd, 10, 60)
        d = dma(sDB, sB, f"s_add_u32 m0, s{cur}, s{sWoffV}", OPT["nt_kv"])
        post = Is(f"s_add_u32 s{sB}, s{sB}, s{sInc}")
        if par: post += Is(f"s_add_u32 s{sI}, s{sI}, 2\ns_cmp_lg_u32 s{sI}, 17")
        p = phase("pv" + nm, 12, "v", mf_pv(12, 1 - par), reads_v(12, 1)[NPRE_V:], reads_k(11, 0)[:NPRE_K], "k", [], early, d,
                  softmax(par, 0, 0, 95) + [upd], post=post)
        B["l" + nm] = Is(".p2align 6\nK1_LE:" if par == 0 else "K1_LO:") + q + p + (Is("s_cbranch_scc1 K1_LE") if par else [])
    T = stamp(4) + setv(0) + reads_v(41, 0)[:NPRE_V]
    E, D = softmax(1, 1, 0, 95)
    di = 0
    for j in range(0, 32, 2):
        T += E[j:j + 2]
        if j >= 2: T += D[di:di + 3]; di += 3
    T.append(I("s_nop 0"))
    T += D[di:]
    T.append(WAIT(lneed=regs("a", fq(41, 0), 8)))
    B["tail"] = T
    R = []
    for qt in range(4):
        l = vL[qt]; t = vT + qt
        c1 = I(f"v_mov_b32 v{t}, v{l}")
        d1 = I(f"v_permlane16_swap_b32 v{l}, v{t}", after=[c1], dly=1)
        e1 = I(f"v_add_f32 v{l}, v{l}, v{t}")
        c2 = I(f"v_mov_b32 v{t}, v{l}")
        d2 = I(f"v_permlane32_swap_b32 v{l}, v{t}", after=[c2], dly=1)
        e2 = I(f"v_add_f32 v{l}, v{l}, v{t}")
        f1 = I(f"v_cmp_ngt_f32 {S2(80+2*qt)}, s{sThr}, v{l}")
        f2 = I(f"v_rcp_f32 v{negm(0)+2*qt}, v{l}")
        f3 = I(f"v_mov_b32 v{negm(0)+2*qt+1}, v{negm(0)+2*qt}", after=[f2])
        f4 = I(f"v_mov_b32 v{l}, 0")
        R += [c1, d1, e1, c2, d2, e2, f1, f2, f3, f4]
    spread(R, 2, 70)
    B["pv15"] = phase("pv15", 41, "v", mf_pv(41, 1), reads_v(41, 0)[NPRE_V:], reads_v(0, 1)[:NPRE_V], "v", [], [], static_dma(47), [R])
    Ep = stamp(5) + Is(f"""s_or_b64 s[80:81], s[80:81], s[82:83]
s_or_b64 s[84:85], s[84:85], s[86:87]
s_or_b64 s[80:81], s[80:81], s[84:85]
s_or_b32 s80, s80, s81
s_or_b32 s{sFlag}, s{sFlag}, s80
s_mov_b64 {S2(sX)}, {S2(sXn)}
s_mov_b32 s{sX+2}, s{sXnum}
s_mov_b32 s{sXnum}, 0
s_mov_b32 s{sWnum}, 0
s_mov_b64 {S2(sK)}, {S2(sK1)}
s_mov_b64 {S2(sV)}, {S2(sV1)}""")
    k = 0
    for s in range(6):
        Ep.append(I(f"s_mov_b32 s{sT}, {s*122880}"))
        for qt in range(4):
            tb = SP + 8 * (k % 4); k += 1
            for j in range(4): Ep.append(I(f"v_accvgpr_read_b32 v{tb+j}, a{Oacc(2*s, qt)+j}"))
            for j in range(4): Ep.append(I(f"v_accvgpr_read_b32 v{tb+4+j}, a{Oacc(2*s+1, qt)+j}"))
            rc = negm(0) + 2 * qt
            for j in range(4): Ep.append(I(f"v_pk_mul_f32 v[{tb+2*j}:{tb+2*j+1}], v[{tb+2*j}:{tb+2*j+1}], v[{rc}:{rc+1}]"))
            for j in range(4): Ep.append(I(f"v_cvt_pk_bf16_f32 v{tb+j}, v{tb+2*j}, v{tb+2*j+1}"))
            Ep.append(I(f"buffer_store_dwordx4 {V4(tb)}, v{vO3 if qt == 3 else vO}, {S4(sO)}, s{sT} offen offset:{qt*1024}" + (" nt" if OPT["nt_o"] else "")))
        if s < 2: Ep += xloads(s)
    Ep += stamp(6) + Is(f"""s_add_u32 s{sO}, s{sO}, {192*120*1024}
s_addc_u32 s{sO+1}, s{sO+1}, 0
s_add_u32 s{sItem}, s{sItem}, 1
s_cmp_lt_u32 s{sItem}, 2
s_cbranch_scc1 K1_ITEM""")
    B["epi"] = Ep
    F = Is(f"""s_lshl_b32 s80, s{sWave}, 2
s_add_u32 s80, s80, {6*TILE}
v_mov_b32 v{vT}, s80
v_mov_b32 v{vT+1}, s{sFlag}
v_mov_b32 v{vT+2}, {6*TILE}
ds_write_b32 v{vT}, v{vT+1}
s_waitcnt lgkmcnt(0)
s_barrier
ds_read_b128 {V4(vT+4)}, v{vT+2}
s_waitcnt lgkmcnt(0)
v_or_b32 v{vT+4}, v{vT+4}, v{vT+5}
v_or3_b32 v{vT+4}, v{vT+4}, v{vT+6}, v{vT+7}
s_nop 1
v_readfirstlane_b32 s80, v{vT+4}
s_nop 3
s_cmp_eq_u32 s80, 0
s_cbranch_scc1 K1_DONE
s_cmp_lg_u32 s{sMode}, 0
s_cbranch_scc1 K1_DONE
s_mov_b32 s{sMode}, 1
s_waitcnt vmcnt(0)
s_barrier
s_branch K1_PRO
K1_DONE:""")
    F += stamp(49) + stamp_out(S2(sKA), sWg, sWave, vT, 0x4000000)
    if OPT["stamps"] == 3:
        F += Is(f"""s_cmp_lg_u32 s{sWg}, 17
s_cbranch_scc1 K1_END
s_cmp_lg_u32 s{sWave}, 0
s_cbranch_scc1 K1_END
s_load_dwordx2 s[80:81], {S2(sKA)}, 88
s_mov_b32 s82, 256
s_mov_b32 s83, 0x20000
v_readlane_b32 s84, v47, 48
v_readlane_b32 s85, v46, 48
s_waitcnt lgkmcnt(0)
v_subrev_u32 v47, s84, v47
v_subrev_u32 v46, s85, v46""")
        for j, ix in enumerate([0, 1, 3, 4, 6, 25, 28, 49]):
            F += Is(f"""s_nop 1
v_readlane_b32 s86, v47, {ix}
v_readlane_b32 s87, v46, {ix}
s_nop 1
v_writelane_b32 v{vT+1}, s86, {j}
v_writelane_b32 v{vT+1}, s87, {8+j}""")
        F += Is(f"""v_lshlrev_b32 v{vT}, 2, v0
buffer_store_dword v{vT+1}, v{vT}, s[80:83], 0 offen""")
    F += Is("K1_END:\ns_endpgm")
    B["fin"] = F
    B["fix1"] = Is(f"""K1_FIX1:
s_mov_b64 {S2(sDA)}, {S2(sV)}
s_mov_b32 s{sA}, {15*TILE}
s_branch K1_RET1""")
    B["fix2"] = Is(f"""K1_FIX2:
s_mov_b64 {S2(sDA)}, {S2(sWn)}
s_mov_b32 s{sDA+2}, s{sWnum}
s_mov_b64 {S2(sDB)}, {S2(sWn)}
s_mov_b32 s{sDB+2}, s{sWnum}
s_mov_b32 s{sB}, 0
s_mov_b32 s{sA}, {WS}
s_mov_b32 s{sInc}, {2*WS}
v_mov_b32 v{vD[0]}, v{vDw}
v_add_u32 v{vD[1]}, {196608-3072}, v{vDw}
s_branch K1_RET2""")
    X = Is(f"""K1_MAXPASS:
v_and_b32 v{vT}, 15, v0
v_lshrrev_b32 v{vT+1}, 4, v0
v_mul_u32_u24 v{vT}, 384, v{vT}
v_lshl_add_u32 v{vT}, v{vT+1}, 4, v{vT}
s_mov_b32 s{sT}, 0""") + [I(f"v_mov_b32 v{vMi[q]}, 0xff800000") for q in range(4)] + Is("K1_MAXL:")
    for s in range(6): X.append(I(f"buffer_load_dwordx4 {V4(SP+4*s)}, v{vT}, {S4(sDA)}, s{sT} offen offset:{s*64}"))
    X.append(I("s_waitcnt vmcnt(0)"))
    for qt in range(4):
        for s in range(6): X.append(mfma(V4(SP + 32 + 4 * qt), V4(SP + 4 * s), V4(Qf(qt, s)), V4(SP + 32 + 4 * qt) if s else "0"))
    X.append(I("s_nop 7"))
    for qt in range(4):
        d = SP + 32 + 4 * qt
        X += Is(f"v_max3_f32 v{vMi[qt]}, v{vMi[qt]}, v{d}, v{d+1}\nv_max3_f32 v{vMi[qt]}, v{vMi[qt]}, v{d+2}, v{d+3}")
    X += Is(f"s_add_u32 s{sT}, s{sT}, 6144\ns_cmp_lt_u32 s{sT}, 393216\ns_cbranch_scc1 K1_MAXL\ns_branch K1_MAXRET")
    B["maxpass"] = X
    item = ["item"] + [f"w{n}" for n in range(10)] + ["cvt", "qk0", "lo"] + ["le", "lo"] * 7 + ["tail", "pv15", "epi"]
    trace = ["entry", "pro"] + item + item + ["fin"]
    layout = ["entry", "pro", "item"] + [f"w{n}" for n in range(10)] + ["cvt", "qk0", "le", "lo", "tail", "pv15", "epi", "fin", "fix1", "fix2", "maxpass"]
    resolve_waits(B, trace)
    txt = {k: "\n".join(emit(v)).split("\n") for k, v in B.items()}
    errs = verify([l for b in trace for l in txt[b]])
    tr2 = ["entry", "pro"] + item[:12] + ["maxpass", "maxpass"] + item[12:]
    errs += verify([l for b in tr2 for l in txt[b]])
    for e in errs: sys.stderr.write("K1 HAZARD " + e + "\n")
    return [l for b in layout for l in txt[b]], errs

def kernel2():
    B = {}
    vR = [1, 2, 3, 4]; vDm = 5; vOf = 6; vSt = 7; vW = 8; vRd = 9; t0, t1, t2, t3 = 10, 11, 12, 13
    OB = 64
    def Of(d, kb, qt): return OB + 40 * (d % 4) + 4 * (kb * 5 + qt)
    def acc(t, qt): return 4 * (t * 5 + qt)
    WF = 160
    def wq(f): return WF + 4 * (f % 16)
    sW_ = 4; sOo = 8; sOut = 12; sWv = 16; sLb = 17; sWo = [18, 19]; sOo0 = 20; sOo1 = 21; sCnt = 22; sTt = 23; sRb = [24 + i for i in range(8)]
    P = Is(f"""
s_cmp_ge_u32 s2, 240
s_cbranch_scc1 K2_END
s_and_b32 s40, s2, 7
s_lshr_b32 s41, s2, 3
s_lshr_b32 s42, s40, 2
s_load_dwordx2 s[50:51], s[0:1], 32
s_load_dwordx2 s[56:57], s[0:1], 72
s_load_dwordx2 s[52:53], s[0:1], 80
s_load_dwordx2 s[54:55], s[0:1], 96
v_lshrrev_b32 v{t0}, 6, v0
v_and_b32 v0, 63, v0
s_and_b32 s43, s40, 3
v_readfirstlane_b32 s{sWv}, v{t0}
s_mul_i32 s44, s41, 52
s_lshr_b32 s44, s44, 8
s_mul_i32 s45, s44, 5
s_sub_u32 s45, s41, s45
s_mul_i32 s46, s43, 30
s_mul_i32 s47, s44, 5
s_add_u32 s46, s46, s47
s_mul_i32 s{sLb}, s{sWv}, 32768
v_lshrrev_b32 v{t0}, 3, v0
v_and_b32 v{t1}, 7, v0
v_and_b32 v{t2}, 6, v{t0}
v_xor_b32 v{t1}, v{t1}, v{t2}
v_and_b32 v{t2}, 4, v{t1}
v_and_b32 v{t3}, 1, v{t1}
v_lshl_or_b32 v{t2}, v{t3}, 1, v{t2}
v_bfe_u32 v{t3}, v{t1}, 1, 1
v_or_b32 v{t1}, v{t2}, v{t3}
v_mul_u32_u24 v{vDm}, 1280, v{t0}
v_lshl_add_u32 v{vDm}, v{t1}, 4, v{vDm}
v_lshlrev_b32 v{vOf}, 4, v0
s_lshr_b32 s48, s{sWv}, 1
s_lshl_b32 s48, s48, 7
s_mul_i32 s49, s{sWv}, {64*1280}
s_add_u32 s{sWo[0]}, s49, s48
s_xor_b32 s48, s48, 128
s_add_u32 s{sWo[1]}, s49, s48
s_mul_i32 s{sOo0}, s{sWv}, {2*122880}
s_add_u32 s{sOo1}, s{sOo0}, 122880
s_waitcnt lgkmcnt(0)
s_cmp_eq_u32 s42, 0
s_cselect_b64 s[50:51], s[50:51], s[56:57]
s_lshl_b32 s48, s45, 8
s_add_u32 s{sW_}, s50, s48
s_addc_u32 s{sW_+1}, s51, 0
s_sub_u32 s{sW_+2}, 7864320, s48
s_mov_b32 s{sW_+3}, 0x20000
s_mul_i32 s48, s42, {192*120}
s_add_u32 s48, s48, s46
s_lshl_b32 s48, s48, 10
s_add_u32 s{sOo}, s54, s48
s_addc_u32 s{sOo+1}, s55, 0
s_mov_b32 s{sOo+2}, {191*122880+5*1024}
s_mov_b32 s{sOo+3}, 0x20000
""")
    def wdma(u):
        p = u & 1; out = []
        n = " nt" if OPT["k2_nt_w"] else ""
        for rb in range(8):
            m = I(f"s_add_u32 m0, s{sLb}, {(u % 4)*8192 + rb*1024}")
            so = I(f"s_add_u32 s{sTt}, s{sWo[p]}, {rb*8*1280}")
            out += [m, so, I(f"buffer_load_dwordx4 v{vDm}, {S4(sW_)}, s{sTt} offen{n} lds", grp="first" if rb == 0 else "more")]
        out.append(I(f"s_add_u32 s{sWo[p]}, s{sWo[p]}, {256*1280}"))
        return out
    def oload(d, kb):
        n = " nt" if OPT["k2_nt_o"] else ""
        so = sOo0 if kb == 0 else sOo1
        out = [I(f"buffer_load_dwordx4 {V4(Of(d, kb, qt))}, v{vOf}, {S4(sOo)}, s{so} offen offset:{qt*1024}{n}", dst=regs("v", Of(d, kb, qt), 4)) for qt in range(4)]
        out.append(I(f"s_add_u32 s{sTt}, s{so}, 4096"))
        out.append(I(f"buffer_load_dwordx4 {V4(Of(d, kb, 4))}, v{vOf}, {S4(sOo)}, s{sTt} offen{n}", dst=regs("v", Of(d, kb, 4), 4)))
        out.append(I(f"s_add_u32 s{so}, s{so}, {8*122880}"))
        return out
    def wreads(u):
        out = []
        for tt in range(4):
            for kb in range(2):
                f = 8 * u + 2 * tt + kb; r = wq(f)
                for hf in range(2):
                    it = I(f"ds_read_b64_tr_b16 a[{r+2*hf}:{r+2*hf+1}], v{vR[tt]} offset:{(u % 4)*8192 + (4*kb+2*hf)*1024}", dst=regs("a", r + 2 * hf, 2)); it.f = 2 * tt + kb
                    out.append(it)
        return out
    P += stamp(0, True) + wdma(0) + oload(0, 0) + oload(0, 1) + wdma(1) + wdma(2) + oload(1, 0) + oload(1, 1)
    P += Is(f"""
v_lshrrev_b32 v{t2}, 5, v0
v_lshlrev_b32 v{vR[0]}, 10, v{t2}
v_bfe_u32 v{t2}, v0, 2, 3
v_lshl_add_u32 v{vR[0]}, v{t2}, 7, v{vR[0]}
v_and_b32 v{t2}, 6, v{t2}
v_bfe_u32 v{t3}, v0, 1, 1
v_xor_b32 v{t2}, v{t2}, v{t3}
v_lshl_add_u32 v{vR[0]}, v{t2}, 4, v{vR[0]}
v_and_b32 v{t2}, 1, v0
v_lshl_add_u32 v{vR[0]}, v{t2}, 3, v{vR[0]}
s_and_b32 s48, s{sWv}, 1
s_lshl_b32 s48, s48, 6
v_xor_b32 v{vR[0]}, s48, v{vR[0]}
v_add_u32 v{vR[0]}, s{sLb}, v{vR[0]}
v_xor_b32 v{vR[1]}, 32, v{vR[0]}
v_xor_b32 v{vR[2]}, 64, v{vR[0]}
v_xor_b32 v{vR[3]}, 96, v{vR[0]}
s_lshl_b32 s48, s46, 4
s_mul_i32 s48, s48, 2560
s_mul_i32 s49, s42, 1280
s_add_u32 s48, s48, s49
s_lshl_b32 s49, s45, 8
s_add_u32 s48, s48, s49
s_lshl_b32 s49, s{sWv}, 6
s_add_u32 s48, s48, s49
s_add_u32 s{sOut}, s52, s48
s_addc_u32 s{sOut+1}, s53, 0
s_sub_u32 s{sOut+2}, {8*240*1280*2}, s48
s_mov_b32 s{sOut+3}, 0x20000
v_and_b32 v{t0}, 15, v0
v_lshrrev_b32 v{t1}, 4, v0
v_mul_u32_u24 v{vSt}, 2560, v{t0}
v_lshl_add_u32 v{vSt}, v{t1}, 4, v{vSt}
s_mov_b32 s{sCnt}, 0
""")
    P += [I(f"v_accvgpr_write_b32 a{i}, 0") for i in range(160)]
    NP = 8
    P += [WAIT(gneed=3)] + wreads(0)[:NP] + [WAIT(lneed=regs("a", wq(0), 8), vneed=regs("v", Of(0, 0, 0), 40))]
    B["pro"] = P + stamp(1, True)
    L = Is(".p2align 6\nK2_L:")
    for u in range(8):
        d, p = u >> 1, u & 1
        mf = []
        for tt in range(4):
            for qt in range(5):
                for kb in range(2):
                    a = acc(4 * p + tt, qt)
                    mf.append(mfma(A4(a), A4(wq(8 * u + 2 * tt + kb)), V4(Of(d, kb, qt)), A4(a)))
        own = wreads(u)[NP:]; nxt = wreads(u + 1)[:NP]
        spread(own, 0, 14)
        wv = WAIT(gneed=3, lo=19, hi=21, target=20)
        for it in nxt: it.after = [wv]; it.dly = -1
        spread(nxt, 21, 34)
        ws = [WAIT(lneed=regs("a", wq(8 * u + 2), 8), lo=7, hi=9, target=8),
              WAIT(lneed=regs("a", wq(8 * u + 4), 8), lo=17, hi=19, target=18), wv,
              WAIT(lneed=regs("a", wq(8 * u + 6), 8), lo=27, hi=29, target=28),
              WAIT(lneed=regs("a", wq(8 * u + 8), 8), vneed=regs("v", Of(d + 1, 0, 0), 40) if p else None, lo=38, hi=39, target=38.5)]
        vm = wdma(u + 3) + oload(d + 2, p)
        if u == 7: vm += Is(f"s_add_u32 s{sCnt}, s{sCnt}, 1\ns_cmp_lt_u32 s{sCnt}, 6")
        spread(vm, 0, 40)
        L += schedule(mf, [ws, own + nxt, vm], name=f"k2u{u}")
    L += Is("s_cbranch_scc1 K2_L")
    B["loop"] = L
    E = stamp(2, True) + Is(f"""s_waitcnt vmcnt(0) lgkmcnt(0)
s_barrier""") + stamp(3, True)
    for j in range(1, 4):
        E += Is(f"""s_xor_b32 s48, s{sWv}, {j}
s_mul_i32 s48, s48, 30720
v_add_u32 v{vW}, s48, v{vOf}""")
        for tt in range(2):
            for qt in range(5):
                E.append(I(f"ds_write_b128 v{vW}, {A4(acc(2*j+tt, qt))} offset:{(j-1)*10240 + (tt*5+qt)*1024}"))
    E += Is(f"""s_mul_i32 s48, s{sWv}, 30720
v_add_u32 v{vRd}, s48, v{vOf}""")
    for i in range(40): E.append(I(f"v_accvgpr_read_b32 v{16+i}, a{i}"))
    E += Is("s_waitcnt lgkmcnt(0)\ns_barrier")
    for q in range(10):
        for j in range(3):
            E.append(I(f"ds_read_b128 {V4(64+12*q+4*j)}, v{vRd} offset:{j*10240+q*1024}", dst=regs("v", 64 + 12 * q + 4 * j, 4)))
    for qt in range(5):
        for tt in range(2):
            q = tt * 5 + qt
            E.append(WAIT(lneed=regs("v", 64 + 12 * q, 12)))
            b = 16 + 4 * q
            for j in range(3):
                for h in range(2):
                    E.append(I(f"v_pk_add_f32 v[{b+2*h}:{b+2*h+1}], v[{b+2*h}:{b+2*h+1}], v[{64+12*q+4*j+2*h}:{64+12*q+4*j+2*h+1}]"))
        a, b = 16 + 4 * qt, 16 + 4 * (5 + qt)
        E += Is(f"""v_cvt_pk_bf16_f32 v{a}, v{a}, v{a+1}
v_cvt_pk_bf16_f32 v{a+1}, v{a+2}, v{a+3}
v_cvt_pk_bf16_f32 v{a+2}, v{b}, v{b+1}
v_cvt_pk_bf16_f32 v{a+3}, v{b+2}, v{b+3}
s_mov_b32 s48, {qt*16*2560}
s_nop 0
v_permlane16_swap_b32 v{a}, v{a+2}
v_permlane16_swap_b32 v{a+1}, v{a+3}
buffer_store_dwordx4 {V4(a)}, v{vSt}, {S4(sOut)}, s48 offen""")
    E += stamp(4, True) + stamp_out("s[0:1]", 2, sWv, t0, 0x4100000, True) + Is("K2_END:\ns_endpgm")
    B["epi"] = E
    trace = ["pro"] + ["loop"] * 6 + ["epi"]
    resolve_waits(B, trace)
    txt = {k: "\n".join(emit(v)).split("\n") for k, v in B.items()}
    errs = verify([l for b in trace for l in txt[b]])
    for e in errs: sys.stderr.write("K2 HAZARD " + e + "\n")
    return [l for b in ["pro", "loop", "epi"] for l in txt[b]], errs

def desc(name, vg=512, acc=256):
    return f""".p2align 6
.amdhsa_kernel {name}
  .amdhsa_next_free_vgpr {vg}
  .amdhsa_next_free_sgpr 102
  .amdhsa_accum_offset {acc}
  .amdhsa_group_segment_fixed_size 0
  .amdhsa_kernarg_size 104
  .amdhsa_user_sgpr_count 2
  .amdhsa_user_sgpr_kernarg_segment_ptr 1
  .amdhsa_system_sgpr_workgroup_id_x 1
  .amdhsa_float_denorm_mode_32 3
.end_amdhsa_kernel"""

def main():
    k1, e1 = kernel1(); k2, e2 = kernel2()
    ref = open("cdna_kernels/" + NAME + ".s.ref").read().split("\n")
    head = [l for l in ref if l.startswith(";") and "@launch" not in l and "Override launch" not in l and "grid=ceil" not in l]
    out = head + [f"; @launch kernel=attn_kernel grid=(256,1,1) block=(256,1,1) lds=163840",
                  f"; @launch kernel=oproj_kernel grid=(240,1,1) block=(256,1,1) lds=163840",
                  '.amdgcn_target "amdgcn-amd-amdhsa--gfx950"', ".text"]
    for nm, body in (("attn_kernel", k1), ("oproj_kernel", k2)):
        out += [f".globl {nm}", ".p2align 8", f".type {nm},@function", f"{nm}:"] + body
    out += ['.section .rodata,"a"', desc("attn_kernel"), desc("oproj_kernel")]
    open(sys.argv[1], "w").write("\n".join(out) + "\n")
    if e1 or e2: sys.exit(1)
main()
```

```python
import sys, math
from asmlib import *
from verify import verify

OPT = dict(nt_kv=1, nt_w=0, nt_x=0, nt_o=0, k2_nt_o=0, k2_nt_w=0, stamps=0)
for a in sys.argv[2:]:
    k, v = a.split("="); OPT[k] = int(v)
NAME = "concat_heads__gqa_block_cached__gqa_block_cached__near_ridge"
MF = "v_mfma_f32_16x16x32_bf16"
def I(t, **kw): return Ins(t, **kw)
def Is(txt): return [Ins(t.strip()) for t in txt.strip().split("\n") if t.strip()]
def mfma(d, a, b, c): return Ins(f"{MF} {d}, {a}, {b}, {c}")
def V4(b): return f"v[{b}:{b+3}]"
def A4(b): return f"a[{b}:{b+3}]"

TILE = 24576; PAIR = 49152; WS = 64 * 12288
vKb = [1, 2]; vK = [3, 4]; vVb = [5, 6, 7, 8]; vV = [9, 10, 11, 12]
vD = [13, 14]; vDkv = 15; vDw = 16; vX = 17; vO = 18; vO3 = 19
vL = [20, 21, 22, 23]; vMi = [24, 25, 26, 27]; vT = 28
NEGM = 48; SP = 64; QF = 160
def negm(qt): return NEGM + 4 * qt
def XY(par, kb, qt): return SP + 4 * ((par * 2 + kb) * 4 + qt)
def Z(kb, qt): return SP + 64 + 4 * (kb * 4 + qt)
def Qf(qt, s): return QF + 4 * (qt * 6 + s)
def Qb(qt, s): return SP + 4 * (qt * 6 + s)
def Oacc(t, qt): return 4 * (t * 4 + qt)
def Xf(n, kb, qt): return 32 * (n % 6) + 4 * (kb * 4 + qt)
FR = 192
def fq(n, f): return FR + 4 * ((f + 8 * (n & 1)) % 16)
sX = 4; sDA = 8; sDB = 12; sO = 16
sK = 20; sV = 22; sWn = 24; sWnum = 26; sXnum = 27; sXn = 28; sK1 = 30; sV1 = 32
sA = 34; sB = 35; sInc = 36; sPe = 37; sPo = 38; sI = 39; sWoff = 40; sWoffV = 41
sXq = [42, 43, 44, 45]; sT = 46; sItem = 47; sMode = 48; sFlag = 49; sC = 50
sWave = 52; sWg = 53; sT2 = 54; sT3 = 55; sThr = 56; sKA = 58
sLd = 60
def S4(b): return f"s[{b}:{b+3}]"
def S2(b): return f"s[{b}:{b+1}]"
def phys(n): return (n + 1) % 6
BG = 76
NPRE_V = 10; NPRE_K = 6

def lastuse_pv(f): return 8 * (f >> 1) + 6 + (f & 1)
def lastuse_qk(f): kt, s = divmod(f, 6); return 24 * kt + 18 + (5 - s)

def reads_v(n, odd):
    out = []
    for f in range(24):
        t, kb = f >> 1, f & 1
        r = fq(n, f)
        for hf in range(2):
            off = odd * TILE + (4 * kb + 2 * hf) * 3072 + (t >> 2) * 1024
            it = I(f"ds_read_b64_tr_b16 a[{r+2*hf}:{r+2*hf+1}], v{vV[t & 3]} offset:{off}", dst=regs("a", r + 2 * hf, 2)); it.f = f
            out.append(it)
    return out
def reads_k(n, odd):
    out = []
    for f in range(24):
        kt, s = divmod(f, 6); r = fq(n, f)
        off = odd * TILE + kt * 6144 + (s >> 1) * 1024
        it = I(f"ds_read_b128 {A4(r)}, v{vK[s & 1]} offset:{off}", dst=regs("a", r, 4)); it.f = f
        out.append(it)
    return out

def dma(srd, soff, m0init, nt):
    n = " nt" if nt else ""
    out = []
    for p in range(3):
        m = I(m0init if p == 0 else "s_add_u32 m0, m0, 896")
        a = I(f"buffer_load_dwordx4 v{vD[0]}, {S4(srd)}, s{soff} offen offset:{p*128}{n} lds", grp="first" if p == 0 else "more", after=[m])
        b = I(f"buffer_load_dwordx4 v{vD[1]}, {S4(srd)}, s{soff} offen offset:{p*128+3072}{n} lds", grp="more")
        out += [m, a, b]
    return out

def phase(name, n, typ, mf, own, nxt, nxt_typ, pre_bar, misc_early, dmas, extra=(), xneed=None, post=()):
    lu = lastuse_pv if typ == "v" else lastuse_qk
    rs = []
    if typ == "v":
        k0 = 48 - len(own)
        for j, it in enumerate(own):
            it.target = -18 + (k0 + j) * 88 / 48 if k0 else j * 70 / 48
            it.hi = min(8 * (it.f >> 1) - 6, BG - 5) if k0 else BG - 5
            if it.f >= 16: it.lo = lu(it.f - 16)
            it.hi = max(it.hi, it.lo)
    else:
        for j, it in enumerate(own):
            kt, s = divmod(it.f, 6)
            it.target = 24 * (kt - 1) + 1 + s * 2.5; it.hi = 24 * kt - 8
            if it.f >= 16: it.lo = lu(it.f - 16)
    rs += own
    for it in pre_bar:
        it.lo = max(it.lo, 0); it.hi = BG - 1; it.target = own[-1].target + 1
    rs += pre_bar
    bar = BAR(5, lo=BG, hi=BG); rs.append(bar)
    for j, it in enumerate(nxt):
        it.lo = max(BG + 1, lu(it.f + 8)); it.after = [bar]
        it.target = BG + 1 + (j * 1.8 if nxt_typ == "v" else j * 1.5); it.hi = 95 if nxt_typ == "v" and j >= 4 else 88
    rs += nxt
    ws = []
    if typ == "v":
        for t in range(1, 12):
            if 8 * t - 1 >= BG: break
            ws.append(WAIT(lneed=regs("a", fq(n, 2 * t), 4) | regs("a", fq(n, 2 * t + 1), 4), lo=8 * t - 3, hi=8 * t - 1, target=8 * t - 2))
    else:
        for kt in range(1, 4):
            ws.append(WAIT(lneed=set().union(*[regs("a", fq(n, 6 * kt + s), 4) for s in range(6)]), lo=24 * kt - 3, hi=24 * kt - 1, target=24 * kt - 2))
    if nxt:
        nf = 2 if nxt_typ == "v" else 6
        ws.append(WAIT(lneed=set().union(*[regs("a", fq(n + 1, f), 4) for f in range(nf)]), vneed=xneed, lo=94, hi=95, target=94.5))
    ms = list(misc_early)
    spread(ms, 2, BG - 6)
    fst = True
    for j, it in enumerate(dmas):
        it.lo = BG + 1 if it.kind == "vmem" else max(it.lo, BG - 4)
        it.target = BG - 2 + j * 1.7
        if it.kind == "vmem": it.after = it.after + [bar]
    ms += dmas
    for it in post: it.lo = BG + 1; it.target = 93;
    ms += list(post)
    return schedule(mf, [ws, rs, ms] + list(extra), novalu=range(BG, BG + 9), name=name)

def softmax(par, kb, lo, hi, zdead=None, sub=None, los=None):
    E = []; D = []; P = []
    for qt in range(4):
        x, z = XY(par, kb, qt), Z(kb, qt)
        src = [x, x + 1, x + 2, x + 3, z, z + 1, z + 2, z + 3]
        for pr in range(4):
            es = []
            for e in range(2):
                r = src[2 * pr + e]
                ex = I(f"v_exp_f32 v{r}, v{r}")
                if sub:
                    sb = I(f"v_add_f32 v{r}, v{r}, v{negm(qt)}", after=[sub[qt]], lo=los[qt][pr >> 1]); P.append(sb); ex.after = [sb]
                E.append(ex); es.append(ex)
                D.append(I(f"v_add_f32 v{vL[qt]}, v{vL[qt]}, v{r}", after=[ex]))
            c = I(f"v_cvt_pk_bf16_f32 v{x+pr}, v{src[2*pr]}, v{src[2*pr+1]}", after=es)
            if zdead: c.hi = zdead(qt)
            D.append(c)
    spread(E, lo, hi - 2)
    for d in D:
        d.target = max(a.target for a in d.after) + 1; d.hi = min(d.hi, hi)
        for a in d.after: a.hi = min(a.hi, d.hi - 1)
    for p, e in zip(P, E): p.target = e.target - 3; p.hi = e.hi - 1
    return ([P] if sub else []) + [E, D]

def mf_w(n):
    out = []
    for t in range(12):
        for qt in range(4):
            d = Qf(qt, t >> 1) if t % 2 == 0 else Qb(qt, t >> 1)
            for kb in range(2):
                out.append(mfma(V4(d), A4(fq(n, 2 * t + kb)), A4(Xf(n, kb, qt)), "0" if (n == 0 and kb == 0) else V4(d)))
    return out
def mf_qk(n, par, first=False):
    out = []
    for kt in range(4):
        for qt in range(4):
            d = XY(par, kt >> 1, qt) if kt % 2 == 0 else Z(kt >> 1, qt)
            order = range(6) if qt % 2 == 0 else range(5, -1, -1)
            for j, s in enumerate(order):
                c = V4(d) if j else ("0" if (first and kt < 2) else V4(negm(qt)))
                out.append(mfma(V4(d), A4(fq(n, 6 * kt + s)), V4(Qf(qt, s)), c))
    return out
def mf_pv(n, par):
    out = []
    for t in range(12):
        for qt in range(4):
            for kb in range(2):
                out.append(mfma(A4(Oacc(t, qt)), A4(fq(n, 2 * t + kb)), V4(XY(par, kb, qt)), A4(Oacc(t, qt))))
    return out
def xload(n, kb, qt):
    r = Xf(n, kb, qt)
    return I(f"buffer_load_dwordx4 {A4(r)}, v{vX}, {S4(sX)}, s{sXq[qt]} offen offset:{(2*n+kb)*64}" + (" nt" if OPT["nt_x"] else ""), dst=regs("a", r, 4))
def xloads(n): return [xload(n, kb, qt) for qt in range(4) for kb in range(2)]
def setv(pair): return [I(f"v_add_u32 v{vV[i]}, {pair*PAIR}, v{vVb[i]}") for i in range(4)]
def setk(pair): return [I(f"v_add_u32 v{vK[i]}, {pair*PAIR}, v{vKb[i]}") for i in range(2)]
def static_dma(tile_n):
    m = tile_n % 42
    m0 = f"s_add_u32 m0, s{sWoff}, {phys(m)*TILE}"
    if m < 10: return [I(f"s_mov_b32 s{sT}, {m*WS}")] + dma(sDA, sT, m0, OPT["nt_w"])
    if m == 10: srd, i = sDA, 0
    elif m == 41: srd, i = sDB, 15
    elif m % 2: srd, i = sDA, (m - 9) // 2
    else: srd, i = sDB, (m - 12) // 2
    return [I(f"s_mov_b32 s{sT}, {i*TILE}")] + dma(srd, sT, m0, OPT["nt_kv"])

def lin(items):
    out = []
    for it in items:
        out.append(it)
        if it.text.startswith("s_add_u32 m0"): out.append(I("s_nop 0"))
    return out

def stamp(idx, k2=False):
    if not OPT["stamps"]: return []
    va, vb = (250, 251) if k2 else (46, 47)
    sel = f"s_mov_b32 s92, {idx}" if (k2 or idx >= 48) else f"s_mul_i32 s92, s{sItem}, 24\ns_add_u32 s92, s92, {idx}"
    return Is(f"""s_memtime s[90:91]
s_memrealtime s[94:95]
s_waitcnt lgkmcnt(0)
s_cselect_b32 s96, 1, 0
{sel}
s_mov_b32 s93, m0
s_mov_b32 m0, s92
v_writelane_b32 v{va}, s90, m0
v_writelane_b32 v{vb}, s94, m0
s_mov_b32 m0, s93
s_cmp_lg_u32 s96, 0""")
def stamp_out(karg, wg, wave, tmp, base, k2=False):
    if not OPT["stamps"]: return []
    va = 250 if k2 else 46
    return Is(f"""s_load_dwordx2 s[80:81], {karg}, 96
s_waitcnt lgkmcnt(0)
s_add_u32 s80, s80, {base}
s_addc_u32 s81, s81, 0
s_mov_b32 s82, 0x100000
s_mov_b32 s83, 0x20000
s_lshl_b32 s84, s{wg}, 2
s_add_u32 s84, s84, s{wave}
s_lshl_b32 s84, s84, 9
v_lshlrev_b32 v{tmp}, 3, v0
buffer_store_dwordx2 v[{va}:{va+1}], v{tmp}, s[80:83], s84 offen""")

def kernel1():
    B = {}
    c = math.log2(math.e) / math.sqrt(192.0)
    import struct
    cbits = struct.unpack("<I", struct.pack("<f", c))[0]
    B["entry"] = Is(f"""
s_cmp_ge_u32 s2, 256
s_cbranch_scc1 K1_END
s_mov_b32 s{sWg}, s2
s_mov_b64 {S2(sKA)}, s[0:1]
s_mov_b32 s{sMode}, 0
v_lshrrev_b32 v{vT}, 6, v0
v_and_b32 v0, 63, v0
v_mov_b32 v47, 0
v_readfirstlane_b32 s{sWave}, v{vT}
""") + stamp(48)
    P = Is(f"""
K1_PRO:
s_load_dwordx2 {S2(sLd)}, {S2(sKA)}, 0
s_load_dwordx2 {S2(sLd+2)}, {S2(sKA)}, 8
s_load_dwordx2 {S2(sLd+4)}, {S2(sKA)}, 16
s_load_dwordx2 {S2(sLd+6)}, {S2(sKA)}, 24
s_load_dwordx2 {S2(sLd+8)}, {S2(sKA)}, 40
s_load_dwordx2 {S2(sLd+10)}, {S2(sKA)}, 48
s_load_dwordx2 {S2(sLd+12)}, {S2(sKA)}, 56
s_load_dwordx2 {S2(sLd+14)}, {S2(sKA)}, 64
s_load_dwordx2 {S2(sLd+16)}, {S2(sKA)}, 96
s_and_b32 s{sT}, s{sWg}, 7
s_lshr_b32 s{sT2}, s{sWg}, 3
s_lshr_b32 s80, s{sT}, 1
s_lshl_b32 s80, s80, 3
s_and_b32 s81, s{sT2}, 7
s_add_u32 s80, s80, s81
s_and_b32 s81, s{sT}, 1
s_lshl_b32 s81, s81, 2
s_lshr_b32 s82, s{sT2}, 3
s_add_u32 s81, s81, s82
s_mul_i32 s82, s81, 307200
s_lshl_b32 s83, s81, 5
s_add_u32 s83, s83, s80
s_mul_i32 s83, s83, 393216
s_mul_i32 s84, s80, 384
s_mul_i32 s85, s80, 720
s_mul_i32 s86, s81, 15
s_add_u32 s85, s85, s86
s_lshl_b32 s85, s85, 10
s_mul_i32 s{sWoff}, s{sWave}, 6144
s_add_u32 s{sWoffV}, s{sWoff}, {TILE}
s_mov_b32 s{sXq[0]}, 0
s_mov_b32 s{sXq[1]}, 20480
s_mov_b32 s{sXq[2]}, 40960
s_mov_b32 s{sXq[3]}, 61440
s_mov_b32 s{sItem}, 0
s_mov_b32 s{sFlag}, 0
s_mov_b32 s{sC}, {cbits:#x}
s_mov_b32 s{sC+1}, {cbits:#x}
s_mov_b32 s{sThr}, 0x4e800000
""")
    t0, t1, t2, t3 = vT, vT + 1, vT + 2, vT + 3
    P += Is(f"""
v_lshrrev_b32 v{t0}, 3, v0
v_and_b32 v{t1}, 7, v0
v_and_b32 v{t2}, 6, v{t0}
v_xor_b32 v{t1}, v{t1}, v{t2}
v_mul_u32_u24 v{vDkv}, 384, v{t0}
v_lshl_add_u32 v{vDkv}, v{t1}, 4, v{vDkv}
v_add_u32 v{vDkv}, s{sWoff}, v{vDkv}
v_and_b32 v{t2}, 4, v{t1}
v_and_b32 v{t3}, 1, v{t1}
v_lshl_or_b32 v{t2}, v{t3}, 1, v{t2}
v_bfe_u32 v{t3}, v{t1}, 1, 1
v_or_b32 v{t1}, v{t2}, v{t3}
v_and_b32 v{t2}, 3, v{t0}
v_lshrrev_b32 v{t3}, 2, v{t0}
v_lshl_add_u32 v{t2}, v{t3}, 3, v{t2}
s_lshr_b32 s86, s{sWave}, 1
s_lshl_b32 s86, s86, 5
s_and_b32 s87, s{sWave}, 1
s_lshl_b32 s87, s87, 2
s_add_u32 s86, s86, s87
v_add_u32 v{t2}, s86, v{t2}
v_mul_u32_u24 v{vDw}, 12288, v{t2}
v_lshl_add_u32 v{vDw}, v{t1}, 4, v{vDw}
v_mov_b32 v{vD[0]}, v{vDw}
v_add_u32 v{vD[1]}, {196608-3072}, v{vDw}
v_and_b32 v{t0}, 15, v0
v_lshrrev_b32 v{t1}, 4, v0
s_lshl_b32 s86, s{sWave}, 6
v_add_u32 v{t2}, s86, v{t0}
v_mul_u32_u24 v{vX}, 1280, v{t2}
v_lshl_add_u32 v{vX}, v{t1}, 4, v{vX}
s_waitcnt lgkmcnt(0)
s_add_u32 s{sX}, s{sLd}, s82
s_addc_u32 s{sX+1}, s{sLd+1}, 0
s_mov_b32 s{sX+2}, 307200
s_mov_b32 s{sX+3}, 0x20000
s_add_u32 s{sDA}, s{sLd+6}, s84
s_addc_u32 s{sDA+1}, s{sLd+7}, 0
s_sub_u32 s{sWnum}, 7864320, s84
s_mov_b32 s{sDA+2}, s{sWnum}
s_mov_b32 s{sDA+3}, 0x20000
""")
    P += lin(static_dma(0)) + xloads(0) + lin(static_dma(1)) + xloads(1)
    P += Is(f"""
s_add_u32 s{sK}, s{sLd+2}, s83
s_addc_u32 s{sK+1}, s{sLd+3}, 0
s_add_u32 s{sV}, s{sLd+4}, s83
s_addc_u32 s{sV+1}, s{sLd+5}, 0
s_add_u32 s{sXn}, s{sLd+8}, s82
s_addc_u32 s{sXn+1}, s{sLd+9}, 0
s_mov_b32 s{sXnum}, 307200
s_add_u32 s{sK1}, s{sLd+10}, s83
s_addc_u32 s{sK1+1}, s{sLd+11}, 0
s_add_u32 s{sV1}, s{sLd+12}, s83
s_addc_u32 s{sV1+1}, s{sLd+13}, 0
s_add_u32 s{sWn}, s{sLd+14}, s84
s_addc_u32 s{sWn+1}, s{sLd+15}, 0
s_add_u32 s{sO}, s{sLd+16}, s85
s_addc_u32 s{sO+1}, s{sLd+17}, 0
s_mov_b32 s{sO+2}, {5*122880+15*1024}
s_mov_b32 s{sO+3}, 0x20000
s_mov_b64 {S2(sDB)}, {S2(sDA)}
s_mov_b32 s{sDB+2}, 0
s_mov_b32 s{sDB+3}, 0x20000
""")
    for m in range(2, 6): P += lin(static_dma(m))
    P += Is(f"""
v_lshrrev_b32 v{t2}, 3, v{t0}
v_mul_u32_u24 v{vKb[0]}, 3072, v{t2}
v_and_b32 v{t2}, 7, v{t0}
v_lshl_add_u32 v{vKb[0]}, v{t2}, 7, v{vKb[0]}
v_and_b32 v{t2}, 6, v{t0}
v_xor_b32 v{t2}, v{t2}, v{t1}
v_lshl_add_u32 v{vKb[0]}, v{t2}, 4, v{vKb[0]}
v_xor_b32 v{vKb[1]}, 64, v{vKb[0]}
v_lshrrev_b32 v{t2}, 5, v0
v_mul_u32_u24 v{vVb[0]}, 3072, v{t2}
v_bfe_u32 v{t2}, v0, 2, 3
v_lshl_add_u32 v{vVb[0]}, v{t2}, 7, v{vVb[0]}
v_and_b32 v{t2}, 6, v{t2}
v_bfe_u32 v{t3}, v0, 1, 1
v_xor_b32 v{t2}, v{t2}, v{t3}
v_lshl_add_u32 v{vVb[0]}, v{t2}, 4, v{vVb[0]}
v_and_b32 v{t2}, 1, v0
v_lshl_add_u32 v{vVb[0]}, v{t2}, 3, v{vVb[0]}
v_xor_b32 v{vVb[1]}, 32, v{vVb[0]}
v_xor_b32 v{vVb[2]}, 64, v{vVb[0]}
v_xor_b32 v{vVb[3]}, 96, v{vVb[0]}
s_lshl_b32 s86, s{sWave}, 12
v_lshlrev_b32 v{vO}, 4, v0
v_add_u32 v{vO}, s86, v{vO}
s_cmp_eq_u32 s{sWave}, 3
s_cselect_b32 s86, 0x80000000, 0
v_add_u32 v{vO3}, s86, v{vO}
s_mov_b32 s87, 0xff800000
s_cselect_b32 s86, 0x71000000, s87
v_mov_b32 v{vMi[0]}, s87
v_mov_b32 v{vMi[1]}, s87
v_mov_b32 v{vMi[2]}, s87
v_mov_b32 v{vMi[3]}, s86
""")
    P += [I(f"v_mov_b32 v{vL[q]}, 0") for q in range(4)]
    P += setv(0)
    P += [BAR(6)]
    P += reads_v(0, 1)[:NPRE_V]
    B["pro"] = P
    B["item"] = Is("K1_ITEM:") + stamp(0) + [WAIT(lneed=regs("a", fq(0, 0), 8), vneed=regs("a", Xf(0, 0, 0), 32))]
    xs = [x for n in range(2, 10) for x in xloads(n)]
    XPH = [11, 11, 11, 11, 10, 10]
    xi = 0
    for n in range(10):
        own = reads_v(n, phys(n) & 1)[NPRE_V:]
        pre = []; early = []
        if n < 9:
            nxt = reads_v(n + 1, phys(n + 1) & 1)[:NPRE_V]; nt_ = "v"
            if phys(n + 1) >> 1 != phys(n) >> 1: pre = setv(phys(n + 1) >> 1)
        else:
            nxt = reads_k(10, 1)[:NPRE_K]; nt_ = "k"; pre = setk(2)
        extra = []
        if n < 6:
            xl = xs[xi:xi + XPH[n]]; xi += XPH[n]
            for it in xl:
                m = 2 + xs.index(it) // 8
                assert m - 6 < n
            spread(xl, 1, BG - 2); extra.append(xl)
        vz = []
        if n >= 5:
            b = 32 * ((n - 1) % 6)
            vz = [I(f"v_accvgpr_write_b32 a{b+i}, 0") for i in range(32)]
        if n == 4:
            early = Is(f"""s_mov_b64 {S2(sDA)}, {S2(sK)}
s_mov_b32 s{sDA+2}, 393216
s_mov_b64 {S2(sDB)}, {S2(sV)}
s_mov_b32 s{sDB+2}, 393216""")
            vz = [I(f"v_mov_b32 v{vD[0]}, v{vDkv}"), I(f"v_mov_b32 v{vD[1]}, v{vDkv}")]
        if vz: spread(vz, 1, BG - 4); extra.append(vz)
        B[f"w{n}"] = (stamp(8 + n) if OPT["stamps"] == 2 else []) + phase(f"w{n}", n, "v", mf_w(n), own, nxt, nt_, pre, early, static_dma(n + 6), extra,
                           xneed=regs("a", Xf(n + 1, 0, 0), 32) if n < 9 else None)
    C = stamp(1)
    for s in range(6):
        for qt in range(4):
            a, b = Qf(qt, s), Qb(qt, s)
            for r in (a, a + 2, b, b + 2): C.append(I(f"v_pk_mul_f32 v[{r}:{r+1}], v[{r}:{r+1}], {S2(sC)}"))
        for qt in range(4):
            a, b = Qf(qt, s), Qb(qt, s)
            C += Is(f"""v_cvt_pk_bf16_f32 v{a}, v{a}, v{a+1}
v_cvt_pk_bf16_f32 v{a+1}, v{a+2}, v{a+3}
v_cvt_pk_bf16_f32 v{a+2}, v{b}, v{b+1}
v_cvt_pk_bf16_f32 v{a+3}, v{b+2}, v{b+3}""")
        for qt in range(4):
            a = Qf(qt, s)
            C += Is(f"v_permlane16_swap_b32 v{a}, v{a+2}\nv_permlane16_swap_b32 v{a+1}, v{a+3}")
    C += Is(f"s_cmp_lg_u32 s{sMode}, 0\ns_cbranch_scc1 K1_MAXPASS\nK1_MAXRET:") + stamp(2)
    B["cvt"] = C
    M = []; last = []
    for qt in range(4):
        x = XY(0, 0, qt); m = vT + 2 * qt; t = m + 1
        a = I(f"v_max3_f32 v{m}, v{x}, v{x+1}, v{x+2}", lo=6 * qt + 13)
        b = I(f"v_max3_f32 v{m}, v{m}, v{x+3}, v{vMi[qt]}")
        c_ = I(f"v_mov_b32 v{t}, v{m}")
        d = I(f"v_permlane16_swap_b32 v{m}, v{t}", after=[c_], dly=1)
        e = I(f"v_max_f32 v{m}, v{m}, v{t}")
        f = I(f"v_mov_b32 v{t}, v{m}")
        g = I(f"v_permlane32_swap_b32 v{m}, v{t}", after=[f], dly=1)
        h = I(f"v_max_f32 v{m}, v{m}, v{t}")
        ns = [I(f"v_sub_f32 v{negm(qt)+i}, 0, v{m}", hi=48 + 6 * qt - 3) for i in range(4)]
        st = [a, b, c_, d, e, f, g, h] + ns
        for j, it in enumerate(st): it.target = 6 * qt + 13 + j * 0.5
        M.append(st); last.append(ns[0])
    vz = [I(f"v_accvgpr_write_b32 a{96+i}, 0") for i in range(32)]
    spread(vz, 0, 20)
    sm = softmax(0, 0, 30, 95, sub=last, los=[[0, 24 + 6 * qt + 13] for qt in range(4)])
    early = Is(f"""s_mov_b32 s{sPo}, 0
s_mov_b32 s{sA}, {4*TILE}
s_mov_b32 s{sB}, {3*TILE}
s_mov_b32 s{sInc}, {TILE}
s_mov_b32 s{sI}, 1""")
    B["qk0"] = phase("qk0", 10, "k", mf_qk(10, 0, True), reads_k(10, 1)[NPRE_K:], reads_k(11, 0)[:NPRE_K], "k", setk(0), early,
                     static_dma(16), M + [vz] + sm) + stamp(3) + Is("s_branch K1_LO")
    for par, cur, nx in ((0, sPe, sPo), (1, sPo, sPe)):
        nm = "eo"[par]
        early = Is(f"s_add_u32 s{nx}, s{cur}, {PAIR}\ns_cmp_eq_u32 s{nx}, {3*PAIR}\ns_cselect_b32 s{nx}, 0, s{nx}")
        if par: early.append(Ins(f"s_cmp_eq_u32 s{sI}, 13\ns_cbranch_scc1 K1_FIX1\nK1_RET1:", kind="bar"))
        upd = [I(f"v_add_u32 v{vV[i]}, s{cur}, v{vVb[i]}") for i in range(4)]; spread(upd, 10, 60)
        d = dma(sDA, sA, f"s_add_u32 m0, s{cur}, s{sWoff}", OPT["nt_kv"])
        q = phase("qk" + nm, 11, "k", mf_qk(11, par), reads_k(11, 0)[NPRE_K:], reads_v(12, 1)[:NPRE_V], "v", [], early, d,
                  softmax(1 - par, 1, 0, 90, zdead=lambda qt: 72 + 6 * qt - 1) + [upd], post=Is(f"s_add_u32 s{sA}, s{sA}, s{sInc}"))
        early = []
        if par: early.append(Ins(f"s_cmp_eq_u32 s{sI}, 13\ns_cbranch_scc1 K1_FIX2\nK1_RET2:", kind="bar"))
        upd = [I(f"v_add_u32 v{vK[i]}, s{nx}, v{vKb[i]}") for i in range(2)]; spread(upd, 10, 60)
        d = dma(sDB, sB, f"s_add_u32 m0, s{cur}, s{sWoffV}", OPT["nt_kv"])
        post = Is(f"s_add_u32 s{sB}, s{sB}, s{sInc}")
        if par: post += Is(f"s_add_u32 s{sI}, s{sI}, 2\ns_cmp_lg_u32 s{sI}, 17")
        p = phase("pv" + nm, 12, "v", mf_pv(12, 1 - par), reads_v(12, 1)[NPRE_V:], reads_k(11, 0)[:NPRE_K], "k", [], early, d,
                  softmax(par, 0, 0, 95) + [upd], post=post)
        B["l" + nm] = Is(".p2align 6\nK1_LE:" if par == 0 else "K1_LO:") + q + p + (Is("s_cbranch_scc1 K1_LE") if par else [])
    T = stamp(4) + setv(0) + reads_v(41, 0)[:NPRE_V]
    E, D = softmax(1, 1, 0, 95)
    di = 0
    for j in range(0, 32, 2):
        T += E[j:j + 2]
        if j >= 2: T += D[di:di + 3]; di += 3
    T.append(I("s_nop 0"))
    T += D[di:]
    T.append(WAIT(lneed=regs("a", fq(41, 0), 8)))
    B["tail"] = T
    R = []
    for qt in range(4):
        l = vL[qt]; t = vT + qt
        c1 = I(f"v_mov_b32 v{t}, v{l}")
        d1 = I(f"v_permlane16_swap_b32 v{l}, v{t}", after=[c1], dly=1)
        e1 = I(f"v_add_f32 v{l}, v{l}, v{t}")
        c2 = I(f"v_mov_b32 v{t}, v{l}")
        d2 = I(f"v_permlane32_swap_b32 v{l}, v{t}", after=[c2], dly=1)
        e2 = I(f"v_add_f32 v{l}, v{l}, v{t}")
        f1 = I(f"v_cmp_ngt_f32 {S2(80+2*qt)}, s{sThr}, v{l}")
        f2 = I(f"v_rcp_f32 v{negm(0)+2*qt}, v{l}")
        f3 = I(f"v_mov_b32 v{negm(0)+2*qt+1}, v{negm(0)+2*qt}", after=[f2])
        f4 = I(f"v_mov_b32 v{l}, 0")
        R += [c1, d1, e1, c2, d2, e2, f1, f2, f3, f4]
    spread(R, 2, 70)
    B["pv15"] = phase("pv15", 41, "v", mf_pv(41, 1), reads_v(41, 0)[NPRE_V:], reads_v(0, 1)[:NPRE_V], "v", [], [], static_dma(47), [R])
    Ep = stamp(5) + Is(f"""s_or_b64 s[80:81], s[80:81], s[82:83]
s_or_b64 s[84:85], s[84:85], s[86:87]
s_or_b64 s[80:81], s[80:81], s[84:85]
s_or_b32 s80, s80, s81
s_or_b32 s{sFlag}, s{sFlag}, s80
s_mov_b64 {S2(sX)}, {S2(sXn)}
s_mov_b32 s{sX+2}, s{sXnum}
s_mov_b32 s{sXnum}, 0
s_mov_b32 s{sWnum}, 0
s_mov_b64 {S2(sK)}, {S2(sK1)}
s_mov_b64 {S2(sV)}, {S2(sV1)}""")
    k = 0
    for s in range(6):
        Ep.append(I(f"s_mov_b32 s{sT}, {s*122880}"))
        for qt in range(4):
            tb = SP + 8 * (k % 4); k += 1
            for j in range(4): Ep.append(I(f"v_accvgpr_read_b32 v{tb+j}, a{Oacc(2*s, qt)+j}"))
            for j in range(4): Ep.append(I(f"v_accvgpr_read_b32 v{tb+4+j}, a{Oacc(2*s+1, qt)+j}"))
            rc = negm(0) + 2 * qt
            for j in range(4): Ep.append(I(f"v_pk_mul_f32 v[{tb+2*j}:{tb+2*j+1}], v[{tb+2*j}:{tb+2*j+1}], v[{rc}:{rc+1}]"))
            for j in range(4): Ep.append(I(f"v_cvt_pk_bf16_f32 v{tb+j}, v{tb+2*j}, v{tb+2*j+1}"))
            Ep.append(I(f"buffer_store_dwordx4 {V4(tb)}, v{vO3 if qt == 3 else vO}, {S4(sO)}, s{sT} offen offset:{qt*1024}" + (" nt" if OPT["nt_o"] else "")))
        if s < 2: Ep += xloads(s)
    Ep += stamp(6) + Is(f"""s_add_u32 s{sO}, s{sO}, {192*120*1024}
s_addc_u32 s{sO+1}, s{sO+1}, 0
s_add_u32 s{sItem}, s{sItem}, 1
s_cmp_lt_u32 s{sItem}, 2
s_cbranch_scc1 K1_ITEM""")
    B["epi"] = Ep
    F = Is(f"""s_lshl_b32 s80, s{sWave}, 2
s_add_u32 s80, s80, {6*TILE}
v_mov_b32 v{vT}, s80
v_mov_b32 v{vT+1}, s{sFlag}
v_mov_b32 v{vT+2}, {6*TILE}
ds_write_b32 v{vT}, v{vT+1}
s_waitcnt lgkmcnt(0)
s_barrier
ds_read_b128 {V4(vT+4)}, v{vT+2}
s_waitcnt lgkmcnt(0)
v_or_b32 v{vT+4}, v{vT+4}, v{vT+5}
v_or3_b32 v{vT+4}, v{vT+4}, v{vT+6}, v{vT+7}
s_nop 1
v_readfirstlane_b32 s80, v{vT+4}
s_nop 3
s_cmp_eq_u32 s80, 0
s_cbranch_scc1 K1_DONE
s_cmp_lg_u32 s{sMode}, 0
s_cbranch_scc1 K1_DONE
s_mov_b32 s{sMode}, 1
s_waitcnt vmcnt(0)
s_barrier
s_branch K1_PRO
K1_DONE:""")
    F += stamp(49) + stamp_out(S2(sKA), sWg, sWave, vT, 0x4000000)
    F += Is("K1_END:\ns_endpgm")
    B["fin"] = F
    B["fix1"] = Is(f"""K1_FIX1:
s_mov_b64 {S2(sDA)}, {S2(sV)}
s_mov_b32 s{sA}, {15*TILE}
s_branch K1_RET1""")
    B["fix2"] = Is(f"""K1_FIX2:
s_mov_b64 {S2(sDA)}, {S2(sWn)}
s_mov_b32 s{sDA+2}, s{sWnum}
s_mov_b64 {S2(sDB)}, {S2(sWn)}
s_mov_b32 s{sDB+2}, s{sWnum}
s_mov_b32 s{sB}, 0
s_mov_b32 s{sA}, {WS}
s_mov_b32 s{sInc}, {2*WS}
v_mov_b32 v{vD[0]}, v{vDw}
v_add_u32 v{vD[1]}, {196608-3072}, v{vDw}
s_branch K1_RET2""")
    X = Is(f"""K1_MAXPASS:
v_and_b32 v{vT}, 15, v0
v_lshrrev_b32 v{vT+1}, 4, v0
v_mul_u32_u24 v{vT}, 384, v{vT}
v_lshl_add_u32 v{vT}, v{vT+1}, 4, v{vT}
s_mov_b32 s{sT}, 0""") + [I(f"v_mov_b32 v{vMi[q]}, 0xff800000") for q in range(4)] + Is("K1_MAXL:")
    for s in range(6): X.append(I(f"buffer_load_dwordx4 {V4(SP+4*s)}, v{vT}, {S4(sDA)}, s{sT} offen offset:{s*64}"))
    X.append(I("s_waitcnt vmcnt(0)"))
    for qt in range(4):
        for s in range(6): X.append(mfma(V4(SP + 32 + 4 * qt), V4(SP + 4 * s), V4(Qf(qt, s)), V4(SP + 32 + 4 * qt) if s else "0"))
    X.append(I("s_nop 7"))
    for qt in range(4):
        d = SP + 32 + 4 * qt
        X += Is(f"v_max3_f32 v{vMi[qt]}, v{vMi[qt]}, v{d}, v{d+1}\nv_max3_f32 v{vMi[qt]}, v{vMi[qt]}, v{d+2}, v{d+3}")
    X += Is(f"s_add_u32 s{sT}, s{sT}, 6144\ns_cmp_lt_u32 s{sT}, 393216\ns_cbranch_scc1 K1_MAXL\ns_branch K1_MAXRET")
    B["maxpass"] = X
    item = ["item"] + [f"w{n}" for n in range(10)] + ["cvt", "qk0", "lo"] + ["le", "lo"] * 7 + ["tail", "pv15", "epi"]
    trace = ["entry", "pro"] + item + item + ["fin"]
    layout = ["entry", "pro", "item"] + [f"w{n}" for n in range(10)] + ["cvt", "qk0", "le", "lo", "tail", "pv15", "epi", "fin", "fix1", "fix2", "maxpass"]
    resolve_waits(B, trace)
    txt = {k: "\n".join(emit(v)).split("\n") for k, v in B.items()}
    errs = verify([l for b in trace for l in txt[b]])
    tr2 = ["entry", "pro"] + item[:12] + ["maxpass", "maxpass"] + item[12:]
    errs += verify([l for b in tr2 for l in txt[b]])
    for e in errs: sys.stderr.write("K1 HAZARD " + e + "\n")
    return [l for b in layout for l in txt[b]], errs

def kernel2():
    B = {}
    vR = [1, 2, 3, 4]; vDm = 5; vOf = 6; vSt = 7; vW = 8; vRd = 9; t0, t1, t2, t3 = 10, 11, 12, 13
    OB = 64
    def Of(d, kb, qt): return OB + 40 * (d % 4) + 4 * (kb * 5 + qt)
    def acc(t, qt): return 4 * (t * 5 + qt)
    WF = 160
    def wq(f): return WF + 4 * (f % 16)
    sW_ = 4; sOo = 8; sOut = 12; sWv = 16; sLb = 17; sWo = [18, 19]; sOo0 = 20; sOo1 = 21; sCnt = 22; sTt = 23; sRb = [24 + i for i in range(8)]
    P = Is(f"""
s_cmp_ge_u32 s2, 240
s_cbranch_scc1 K2_END
s_and_b32 s40, s2, 7
s_lshr_b32 s41, s2, 3
s_lshr_b32 s42, s40, 2
s_load_dwordx2 s[50:51], s[0:1], 32
s_load_dwordx2 s[56:57], s[0:1], 72
s_load_dwordx2 s[52:53], s[0:1], 80
s_load_dwordx2 s[54:55], s[0:1], 96
v_lshrrev_b32 v{t0}, 6, v0
v_and_b32 v0, 63, v0
s_and_b32 s43, s40, 3
v_readfirstlane_b32 s{sWv}, v{t0}
s_mul_i32 s44, s41, 52
s_lshr_b32 s44, s44, 8
s_mul_i32 s45, s44, 5
s_sub_u32 s45, s41, s45
s_mul_i32 s46, s43, 30
s_mul_i32 s47, s44, 5
s_add_u32 s46, s46, s47
s_mul_i32 s{sLb}, s{sWv}, 32768
v_lshrrev_b32 v{t0}, 3, v0
v_and_b32 v{t1}, 7, v0
v_and_b32 v{t2}, 6, v{t0}
v_xor_b32 v{t1}, v{t1}, v{t2}
v_and_b32 v{t2}, 4, v{t1}
v_and_b32 v{t3}, 1, v{t1}
v_lshl_or_b32 v{t2}, v{t3}, 1, v{t2}
v_bfe_u32 v{t3}, v{t1}, 1, 1
v_or_b32 v{t1}, v{t2}, v{t3}
v_mul_u32_u24 v{vDm}, 1280, v{t0}
v_lshl_add_u32 v{vDm}, v{t1}, 4, v{vDm}
v_lshlrev_b32 v{vOf}, 4, v0
s_lshr_b32 s48, s{sWv}, 1
s_lshl_b32 s48, s48, 7
s_mul_i32 s49, s{sWv}, {64*1280}
s_add_u32 s{sWo[0]}, s49, s48
s_xor_b32 s48, s48, 128
s_add_u32 s{sWo[1]}, s49, s48
s_mul_i32 s{sOo0}, s{sWv}, {2*122880}
s_add_u32 s{sOo1}, s{sOo0}, 122880
s_waitcnt lgkmcnt(0)
s_cmp_eq_u32 s42, 0
s_cselect_b64 s[50:51], s[50:51], s[56:57]
s_lshl_b32 s48, s45, 8
s_add_u32 s{sW_}, s50, s48
s_addc_u32 s{sW_+1}, s51, 0
s_sub_u32 s{sW_+2}, 7864320, s48
s_mov_b32 s{sW_+3}, 0x20000
s_mul_i32 s48, s42, {192*120}
s_add_u32 s48, s48, s46
s_lshl_b32 s48, s48, 10
s_add_u32 s{sOo}, s54, s48
s_addc_u32 s{sOo+1}, s55, 0
s_mov_b32 s{sOo+2}, {191*122880+5*1024}
s_mov_b32 s{sOo+3}, 0x20000
""")
    def wdma(u):
        p = u & 1; out = []
        n = " nt" if OPT["k2_nt_w"] else ""
        for rb in range(8):
            m = I(f"s_add_u32 m0, s{sLb}, {(u % 4)*8192 + rb*1024}")
            so = I(f"s_add_u32 s{sTt}, s{sWo[p]}, {rb*8*1280}")
            out += [m, so, I(f"buffer_load_dwordx4 v{vDm}, {S4(sW_)}, s{sTt} offen{n} lds", grp="first" if rb == 0 else "more")]
        out.append(I(f"s_add_u32 s{sWo[p]}, s{sWo[p]}, {256*1280}"))
        return out
    def oload(d, kb):
        n = " nt" if OPT["k2_nt_o"] else ""
        so = sOo0 if kb == 0 else sOo1
        out = [I(f"buffer_load_dwordx4 {V4(Of(d, kb, qt))}, v{vOf}, {S4(sOo)}, s{so} offen offset:{qt*1024}{n}", dst=regs("v", Of(d, kb, qt), 4)) for qt in range(4)]
        out.append(I(f"s_add_u32 s{sTt}, s{so}, 4096"))
        out.append(I(f"buffer_load_dwordx4 {V4(Of(d, kb, 4))}, v{vOf}, {S4(sOo)}, s{sTt} offen{n}", dst=regs("v", Of(d, kb, 4), 4)))
        out.append(I(f"s_add_u32 s{so}, s{so}, {8*122880}"))
        return out
    def wreads(u):
        out = []
        for tt in range(4):
            for kb in range(2):
                f = 8 * u + 2 * tt + kb; r = wq(f)
                for hf in range(2):
                    it = I(f"ds_read_b64_tr_b16 a[{r+2*hf}:{r+2*hf+1}], v{vR[tt]} offset:{(u % 4)*8192 + (4*kb+2*hf)*1024}", dst=regs("a", r + 2 * hf, 2)); it.f = 2 * tt + kb
                    out.append(it)
        return out
    P += stamp(0, True) + wdma(0) + oload(0, 0) + oload(0, 1) + wdma(1) + wdma(2) + oload(1, 0) + oload(1, 1)
    P += Is(f"""
v_lshrrev_b32 v{t2}, 5, v0
v_lshlrev_b32 v{vR[0]}, 10, v{t2}
v_bfe_u32 v{t2}, v0, 2, 3
v_lshl_add_u32 v{vR[0]}, v{t2}, 7, v{vR[0]}
v_and_b32 v{t2}, 6, v{t2}
v_bfe_u32 v{t3}, v0, 1, 1
v_xor_b32 v{t2}, v{t2}, v{t3}
v_lshl_add_u32 v{vR[0]}, v{t2}, 4, v{vR[0]}
v_and_b32 v{t2}, 1, v0
v_lshl_add_u32 v{vR[0]}, v{t2}, 3, v{vR[0]}
s_and_b32 s48, s{sWv}, 1
s_lshl_b32 s48, s48, 6
v_xor_b32 v{vR[0]}, s48, v{vR[0]}
v_add_u32 v{vR[0]}, s{sLb}, v{vR[0]}
v_xor_b32 v{vR[1]}, 32, v{vR[0]}
v_xor_b32 v{vR[2]}, 64, v{vR[0]}
v_xor_b32 v{vR[3]}, 96, v{vR[0]}
s_lshl_b32 s48, s46, 4
s_mul_i32 s48, s48, 2560
s_mul_i32 s49, s42, 1280
s_add_u32 s48, s48, s49
s_lshl_b32 s49, s45, 8
s_add_u32 s48, s48, s49
s_lshl_b32 s49, s{sWv}, 6
s_add_u32 s48, s48, s49
s_add_u32 s{sOut}, s52, s48
s_addc_u32 s{sOut+1}, s53, 0
s_sub_u32 s{sOut+2}, {8*240*1280*2}, s48
s_mov_b32 s{sOut+3}, 0x20000
v_and_b32 v{t0}, 15, v0
v_lshrrev_b32 v{t1}, 4, v0
v_mul_u32_u24 v{vSt}, 2560, v{t0}
v_lshl_add_u32 v{vSt}, v{t1}, 4, v{vSt}
s_mov_b32 s{sCnt}, 0
""")
    P += [I(f"v_accvgpr_write_b32 a{i}, 0") for i in range(160)]
    NP = 8
    P += [WAIT(gneed=3)] + wreads(0)[:NP] + [WAIT(lneed=regs("a", wq(0), 8), vneed=regs("v", Of(0, 0, 0), 40))]
    B["pro"] = P + stamp(1, True)
    L = Is(".p2align 6\nK2_L:")
    for u in range(8):
        d, p = u >> 1, u & 1
        mf = []
        for tt in range(4):
            for qt in range(5):
                for kb in range(2):
                    a = acc(4 * p + tt, qt)
                    mf.append(mfma(A4(a), A4(wq(8 * u + 2 * tt + kb)), V4(Of(d, kb, qt)), A4(a)))
        own = wreads(u)[NP:]; nxt = wreads(u + 1)[:NP]
        spread(own, 0, 14)
        wv = WAIT(gneed=3, lo=19, hi=21, target=20)
        for it in nxt: it.after = [wv]; it.dly = -1
        spread(nxt, 21, 34)
        ws = [WAIT(lneed=regs("a", wq(8 * u + 2), 8), lo=7, hi=9, target=8),
              WAIT(lneed=regs("a", wq(8 * u + 4), 8), lo=17, hi=19, target=18), wv,
              WAIT(lneed=regs("a", wq(8 * u + 6), 8), lo=27, hi=29, target=28),
              WAIT(lneed=regs("a", wq(8 * u + 8), 8), vneed=regs("v", Of(d + 1, 0, 0), 40) if p else None, lo=38, hi=39, target=38.5)]
        vm = wdma(u + 3) + oload(d + 2, p)
        if u == 7: vm += Is(f"s_add_u32 s{sCnt}, s{sCnt}, 1\ns_cmp_lt_u32 s{sCnt}, 6")
        spread(vm, 0, 40)
        L += schedule(mf, [ws, own + nxt, vm], name=f"k2u{u}")
    L += Is("s_cbranch_scc1 K2_L")
    B["loop"] = L
    E = stamp(2, True) + Is(f"""s_waitcnt vmcnt(0) lgkmcnt(0)
s_barrier""") + stamp(3, True)
    for j in range(1, 4):
        E += Is(f"""s_xor_b32 s48, s{sWv}, {j}
s_mul_i32 s48, s48, 30720
v_add_u32 v{vW}, s48, v{vOf}""")
        for tt in range(2):
            for qt in range(5):
                E.append(I(f"ds_write_b128 v{vW}, {A4(acc(2*j+tt, qt))} offset:{(j-1)*10240 + (tt*5+qt)*1024}"))
    E += Is(f"""s_mul_i32 s48, s{sWv}, 30720
v_add_u32 v{vRd}, s48, v{vOf}""")
    for i in range(40): E.append(I(f"v_accvgpr_read_b32 v{16+i}, a{i}"))
    E += Is("s_waitcnt lgkmcnt(0)\ns_barrier")
    for q in range(10):
        for j in range(3):
            E.append(I(f"ds_read_b128 {V4(64+12*q+4*j)}, v{vRd} offset:{j*10240+q*1024}", dst=regs("v", 64 + 12 * q + 4 * j, 4)))
    for qt in range(5):
        for tt in range(2):
            q = tt * 5 + qt
            E.append(WAIT(lneed=regs("v", 64 + 12 * q, 12)))
            b = 16 + 4 * q
            for j in range(3):
                for h in range(2):
                    E.append(I(f"v_pk_add_f32 v[{b+2*h}:{b+2*h+1}], v[{b+2*h}:{b+2*h+1}], v[{64+12*q+4*j+2*h}:{64+12*q+4*j+2*h+1}]"))
        a, b = 16 + 4 * qt, 16 + 4 * (5 + qt)
        E += Is(f"""v_cvt_pk_bf16_f32 v{a}, v{a}, v{a+1}
v_cvt_pk_bf16_f32 v{a+1}, v{a+2}, v{a+3}
v_cvt_pk_bf16_f32 v{a+2}, v{b}, v{b+1}
v_cvt_pk_bf16_f32 v{a+3}, v{b+2}, v{b+3}
s_mov_b32 s48, {qt*16*2560}
s_nop 0
v_permlane16_swap_b32 v{a}, v{a+2}
v_permlane16_swap_b32 v{a+1}, v{a+3}
buffer_store_dwordx4 {V4(a)}, v{vSt}, {S4(sOut)}, s48 offen""")
    E += stamp(4, True) + stamp_out("s[0:1]", 2, sWv, t0, 0x4100000, True)
    if OPT["stamps"] == 3:
        E += Is(f"""s_cmp_lg_u32 s2, 17
s_cbranch_scc1 K2_END
s_cmp_lg_u32 s{sWv}, 0
s_cbranch_scc1 K2_END
s_sub_u32 s80, s80, 0x100000
s_subb_u32 s81, s81, 0
buffer_load_dwordx2 v[46:47], v{t0}, s[80:83], s84 offen
s_load_dwordx2 s[76:77], s[0:1], 88
s_mov_b32 s78, 256
s_mov_b32 s79, 0x20000
s_waitcnt vmcnt(0) lgkmcnt(0)
v_readlane_b32 s84, v47, 48
v_readlane_b32 s85, v46, 48
v_mov_b32 v{t1}, 0
s_nop 1
v_subrev_u32 v47, s84, v47
v_subrev_u32 v46, s85, v46
v_subrev_u32 v251, s84, v251""")
        for j, (r, ix) in enumerate([(47, 0), (47, 1), (47, 3), (47, 4), (47, 6), (47, 25), (47, 27), (47, 28), (47, 49), (251, 0), (251, 1), (251, 2), (251, 4), (46, 3), (46, 4), (46, 49)]):
            E += Is(f"""s_nop 1
v_readlane_b32 s86, v{r}, {ix}
s_nop 1
v_writelane_b32 v{t1}, s86, {j}""")
        E += Is(f"""v_lshlrev_b32 v{t0}, 2, v0
buffer_store_dword v{t1}, v{t0}, s[76:79], 0 offen""")
    E += Is("K2_END:\ns_endpgm")
    B["epi"] = E
    trace = ["pro"] + ["loop"] * 6 + ["epi"]
    resolve_waits(B, trace)
    txt = {k: "\n".join(emit(v)).split("\n") for k, v in B.items()}
    errs = verify([l for b in trace for l in txt[b]])
    for e in errs: sys.stderr.write("K2 HAZARD " + e + "\n")
    return [l for b in ["pro", "loop", "epi"] for l in txt[b]], errs

def desc(name, vg=512, acc=256):
    return f""".p2align 6
.amdhsa_kernel {name}
  .amdhsa_next_free_vgpr {vg}
  .amdhsa_next_free_sgpr 102
  .amdhsa_accum_offset {acc}
  .amdhsa_group_segment_fixed_size 0
  .amdhsa_kernarg_size 104
  .amdhsa_user_sgpr_count 2
  .amdhsa_user_sgpr_kernarg_segment_ptr 1
  .amdhsa_system_sgpr_workgroup_id_x 1
  .amdhsa_float_denorm_mode_32 3
.end_amdhsa_kernel"""

def main():
    k1, e1 = kernel1(); k2, e2 = kernel2()
    ref = open("cdna_kernels/" + NAME + ".s.ref").read().split("\n")
    head = [l for l in ref if l.startswith(";") and "@launch" not in l and "Override launch" not in l and "grid=ceil" not in l]
    out = head + [f"; @launch kernel=attn_kernel grid=(256,1,1) block=(256,1,1) lds=163840",
                  f"; @launch kernel=oproj_kernel grid=(240,1,1) block=(256,1,1) lds=163840",
                  '.amdgcn_target "amdgcn-amd-amdhsa--gfx950"', ".text"]
    for nm, body in (("attn_kernel", k1), ("oproj_kernel", k2)):
        out += [f".globl {nm}", ".p2align 8", f".type {nm},@function", f"{nm}:"] + body
    out += ['.section .rodata,"a"', desc("attn_kernel"), desc("oproj_kernel")]
    open(sys.argv[1], "w").write("\n".join(out) + "\n")
    if e1 or e2: sys.exit(1)
main()
```

```python
import re, sys

COST = {"ds": 4, "vmem": 8, "valu": 4, "trans": 8, "salu": 4, "wait": 4, "bar": 8, "mfma": 8, "label": 0, "br": 4}

def kind_of(t):
    op = t.split()[0]
    if op.endswith(":"): return "label"
    if op.startswith("v_mfma"): return "mfma"
    if op.startswith("ds_"): return "ds"
    if op.startswith("buffer_") or op.startswith("global_"): return "vmem"
    if op in ("v_exp_f32", "v_rcp_f32", "v_log_f32"): return "trans"
    if op.startswith("v_"): return "valu"
    if op == "s_waitcnt": return "wait"
    if op.startswith("s_cbranch") or op == "s_branch": return "br"
    if op.startswith("."): return "label"
    return "salu"

class Ins:
    def __init__(self, text, lo=0, hi=10**9, target=None, after=(), dly=0, kind=None, grp=None, dst=None, lneed=None, vneed=None, gneed=None, lzero=False):
        self.text = text; self.kind = kind or kind_of(text); self.cost = COST[self.kind]
        self.lo = lo; self.hi = hi; self.target = lo if target is None else target
        self.after = list(after); self.dly = dly; self.gap = None
        self.grp = grp
        self.dst = dst
        self.lneed = lneed
        self.vneed = vneed
        self.gneed = gneed
        self.lzero = lzero
        self.lcnt = None; self.vcnt = None
    def __repr__(self): return self.text

def regs(c, b, n=1): return {f"{c}{i}" for i in range(b, b + n)}
def rng(c, b, n): return f"{c}{b}" if n == 1 else f"{c}[{b}:{b+n-1}]"

def WAIT(lneed=None, vneed=None, gneed=None, lzero=False, **kw):
    return Ins("s_waitcnt", kind="wait", lneed=lneed, vneed=vneed, gneed=gneed, lzero=lzero, **kw)
def BAR(vneed=None, **kw):
    return Ins("WAITBAR", kind="bar", vneed=vneed, lzero=True, **kw)

def spread(items, lo, hi, skip=()):
    tot = sum(i.cost for i in items); acc = 0
    av = [g for g in range(lo, hi) if g not in skip]
    for it in items:
        x = len(av) * acc / max(tot, 1)
        it.target = av[int(x)] + (x - int(x))
        it.lo = max(it.lo, lo); it.hi = min(it.hi, hi - 1)
        acc += it.cost
    return items

PRIM = ("ds", "vmem", "trans", "bar")
def _run(n, streams, novalu, cap, lags, spill, ahead):
    for st in streams:
        for it in st: it.gap = None
    gaps = [[] for _ in range(n)]
    heads = [0] * len(streams)
    over = 0
    def fits(g, it):
        cur = gaps[g]; used = sum(x.cost for x in cur)
        if used + it.cost > cap: return False
        if it.kind in ("valu", "trans") and g in novalu: return False
        if it.kind == "ds" and any(x.kind == "ds" or (x.kind == "valu" and (x.si == it.si0 or x in it.after)) for x in cur): return False
        return True
    for g in range(n):
        while True:
            cands = []
            for si, st in enumerate(streams):
                if heads[si] >= len(st): continue
                it = st[heads[si]]; it.si0 = si
                forced = it.hi <= g
                if it.lo > g: continue
                if any(a.gap is None or a.gap + it.dly >= g for a in it.after):
                    if not (forced and all(a.gap is not None for a in it.after)): continue
                cands.append((it, si, forced))
            if not cands: break
            used = sum(x.cost for x in gaps[g])
            pick = None
            F = [c for c in cands if c[2]]
            if F: pick = min(F, key=lambda c: (c[0].kind not in PRIM, c[0].target))
            else:
                ok = [c for c in cands if fits(g, c[0])]
                urgent = [c for c in ok if c[0].hi <= g + 1 and c[0].target <= g + 1]
                Pm = sorted([c for c in ok if c[0].kind in PRIM and c[0].target <= g + ahead], key=lambda c: c[0].target)
                Sc = sorted([c for c in ok if c[0].kind not in PRIM], key=lambda c: c[0].target)
                if used == 0:
                    late = [c for c in Sc if c[0].target + lags < g]
                    dsdue = [c for c in ok if c[0].kind == "ds" and c[0].target <= g + ahead + 2]
                    if urgent and any(c[0].kind in PRIM for c in urgent): pick = [c for c in urgent if c[0].kind in PRIM][0]
                    elif late and dsdue: pick = dsdue[0]
                    elif late: pick = late[0]
                    elif Pm: pick = Pm[0]
                    elif Sc and Sc[0][0].target <= g + 1: pick = Sc[0]
                else:
                    ds = [c for c in ok if c[0].kind == "ds" and c[0].target <= g + ahead + 3]
                    if urgent: pick = urgent[0]
                    elif Sc and Sc[0][0].target <= g + 1: pick = Sc[0]
                    elif ds: pick = ds[0]
                    elif Sc and Sc[0][0].target <= g + 8: pick = Sc[0]
                if pick is None and g not in novalu:
                    lag = [c for c in cands if c[0].kind in ("valu", "trans") and c[0].target + spill < g]
                    if lag: pick = min(lag, key=lambda c: c[0].target)
            if pick is None: break
            it = pick[0]; it.gap = g; it.si = pick[1]; gaps[g].append(it); heads[pick[1]] += 1
        cur = gaps[g]
        ch = True
        while ch:
            ch = False
            for k in range(len(cur) - 1):
                a, b = cur[k], cur[k + 1]
                if a.kind in ("valu", "trans") and b.kind in ("ds", "vmem", "salu") and a.si != b.si and a not in b.after:
                    cur[k], cur[k + 1] = b, a; ch = True
        used = sum(x.cost for x in cur)
        pen = max(0, used - cap)
        for a, b in zip(cur, cur[1:]):
            if a.kind in ("valu", "trans") and b.kind in ("ds", "vmem"): pen += 8
            if a.kind == "ds" and b.kind == "ds": pen += 3
            if a in b.after and a.kind != "bar" and b.dly >= 0: pen += 4
        if g in novalu and any(x.kind in ("valu", "trans") for x in cur): pen += 11
        over += pen
    left = [st[h:] for st, h in zip(streams, heads) if h < len(st)]
    if left: return 10**9, None
    late = sum(max(0, it.gap - it.target) for st in streams for it in st if it.kind in ("ds", "vmem"))
    return over + late * 0.01, gaps

def schedule(mf, streams, novalu=(), name="", cap=8, verbose=True):
    n = len(mf); novalu = set(novalu)
    streams = [st for st in streams if st]
    for st in streams:
        h = 10**9
        for it in reversed(st):
            it.hi = min(it.hi, h, n - 1); h = it.hi
    best = None
    for lags in (1, 2, 3, 4, 6, 8, 12):
        for spill in (4, 6, 9, 14, 20, 99):
            for ahead in (0.5, 1.0, 2.0, 3.0):
                o, gaps = _run(n, streams, novalu, cap, lags, spill, ahead)
                if best is None or o < best[0]: best = (o, (lags, spill, ahead))
            if best[0] < 2: break
        if best[0] < 2: break
    over, gaps = _run(n, streams, novalu, cap, *best[1])
    assert gaps is not None, f"{name}: unplaced items"
    out = []
    for i in range(n):
        out.append(mf[i])
        for it in gaps[i]:
            need = 0
            for a in it.after:
                if a.kind == "bar" or it.dly < 0: continue
                for k in range(max(0, len(out) - 4), len(out)):
                    if out[k] is a: need = max(need, 1 + it.dly - (len(out) - 1 - k))
            if need > 0: out.append(Ins(f"s_nop {need-1}"))
            out.append(it)
    if verbose:
        sys.stderr.write(f"[sched {name}] filler {sum(x.cost for g in gaps for x in g)} / {cap*n}, est. overflow {int(over)} {best[1]}\n")
    return out

def resolve_waits(blocks, trace):
    ds = []; vm = []; groups = []
    for name in trace:
        for it in blocks[name]:
            if it.kind == "ds": ds.append(it)
            elif it.kind == "vmem":
                vm.append(it)
                if it.grp == "first": groups.append(len(vm) - 1)
                elif it.grp == "more": groups[-1] = len(vm) - 1
            elif it.kind in ("wait", "bar") and (it.text in ("s_waitcnt", "WAITBAR")):
                if it.lzero: it.lcnt = 0
                elif it.lneed:
                    rem = set(it.lneed); c = None
                    for k in range(len(ds) - 1, -1, -1):
                        if ds[k].dst and ds[k].dst & rem: c = len(ds) - 1 - k; break
                    assert c is not None, f"lneed never loaded {it.lneed} in {name}"
                    c = min(c, 15)
                    it.lcnt = c if it.lcnt is None else min(it.lcnt, c)
                c = None
                if it.vneed:
                    for k in range(len(vm) - 1, -1, -1):
                        if vm[k].dst and vm[k].dst & it.vneed: c = len(vm) - 1 - k; break
                    assert c is not None, f"vneed never loaded in {name}"
                if it.gneed:
                    c2 = len(vm) - 1 - groups[-it.gneed]
                    c = c2 if c is None else min(c, c2)
                if c is not None:
                    c = min(c, 63)
                    it.vcnt = c if it.vcnt is None else min(it.vcnt, c)

def emit(block):
    out = []
    for it in block:
        if it.text in ("s_waitcnt", "WAITBAR"):
            parts = []
            if it.vcnt is not None: parts.append(f"vmcnt({it.vcnt})")
            if it.lcnt is not None: parts.append(f"lgkmcnt({it.lcnt})")
            assert parts, "unresolved wait"
            out.append("s_waitcnt " + " ".join(parts))
            if it.text == "WAITBAR": out.append("s_barrier")
        else:
            out.append(it.text)
    return out
```

```python
import sys, math
from asmlib import *
from verify import verify

OPT = dict(nt_kv=1, nt_w=0, nt_x=0, nt_o=0, k2_nt_o=0, k2_nt_w=0, stamps=0, ovl=1, ne0=6, nc9=7, pf=1, cpf=1)
for a in sys.argv[2:]:
    k, v = a.split("="); OPT[k] = int(v)
NAME = "concat_heads__gqa_block_cached__gqa_block_cached__near_ridge"
MF = "v_mfma_f32_16x16x32_bf16"
def I(t, **kw): return Ins(t, **kw)
def Is(txt): return [Ins(t.strip()) for t in txt.strip().split("\n") if t.strip()]
def mfma(d, a, b, c): return Ins(f"{MF} {d}, {a}, {b}, {c}")
def V4(b): return f"v[{b}:{b+3}]"
def A4(b): return f"a[{b}:{b+3}]"

TILE = 24576; WS = 64 * 12288
X0 = 0; RING = 32768; X1 = 131072
def slot(i): return RING + i * TILE
vK = [[1, 2], [3, 4]]; KW = [0, 65536]
vV = [[5, 6, 7, 8], [9, 10, 11, 12]]; VW = [32768, 98304]
vXr = [[13, 14], [15, 16]]
vD = [17, 18]; vDkv = 19; vDw = 20; vDx = 21; vO = 22; vO3 = 23
vL = [24, 25, 26, 27]; vMi = [28, 29, 30, 31]; vT = 32
NEGM = 48; SP = 64; QF = 160
RCP = 48
def negm(qt): return NEGM + 4 * qt
def XY(par, kb, qt): return SP + 4 * ((par * 2 + kb) * 4 + qt)
def Z(kb, qt): return SP + 64 + 4 * (kb * 4 + qt)
def Qf(qt, s): return QF + 4 * (qt * 6 + s)
def Qb(qt, s):
    return SP + 4 * (qt * 6 + s)
def Oacc(t, qt): return 4 * (t * 4 + qt)
def Xf(n, kb, qt): return 32 * (n & 1) + 4 * (qt * 2 + kb)
FR = 192
def fq(n, f): return FR + 4 * ((f + 8 * (n & 1)) % 16)
sX = 4; sDA = 8; sDB = 12; sO = 16
sK = 20; sV = 22; sNb = 24; sNnum = 26; sNs = 27; sNd = 28; sXnum = 29; sN2 = 30; sMask = 32
sA = 34; sB = 35; sI = 39; sWoff = 40; sXoff = 41
sOs = [42, 43, 44, 45, 37, 38]; sT = 46; sItem = 47; sMode = 48; sFlag = 49; sC = 50
sWave = 52; sWg = 53; sT2 = 54; sT3 = 55; sThr = 56; sKA = 58
sLd = 60
sP1 = 60; vPf = 44
FLG = 0x3000000; XCH = 0x3100000
def S4(b): return f"s[{b}:{b+3}]"
def S2(b): return f"s[{b}:{b+1}]"
BG = 76
NOV = range(BG, BG + 9)
NPRE_V = 10; NPRE_K = 6
OSTRIDE = 48 * 120 * 1024

def lastuse_pv(f): return 8 * (f >> 1) + 6 + (f & 1)
def lastuse_qk(f): kt, s = divmod(f, 6); return 24 * kt + 18 + (5 - s)

def reads_v(n, base):
    out = []
    for f in range(24):
        t, kb = f >> 1, f & 1
        r = fq(n, f)
        for hf in range(2):
            off = base + (4 * kb + 2 * hf) * 3072 + (t >> 2) * 1024
            w = 1 if off >= VW[1] else 0
            it = I(f"ds_read_b64_tr_b16 a[{r+2*hf}:{r+2*hf+1}], v{vV[w][t & 3]} offset:{off-VW[w]}", dst=regs("a", r + 2 * hf, 2)); it.f = f
            out.append(it)
    return out
def reads_k(n, base):
    out = []
    for f in range(24):
        kt, s = divmod(f, 6); r = fq(n, f)
        off = base + kt * 6144 + (s >> 1) * 1024
        w = 1 if off >= KW[1] else 0
        it = I(f"ds_read_b128 {A4(r)}, v{vK[w][s & 1]} offset:{off-KW[w]}", dst=regs("a", r, 4)); it.f = f
        out.append(it)
    return out
def reads_x(n):
    return [I(f"ds_read_b128 {A4(Xf(n, kb, qt))}, v{vXr[n & 1][kb]} offset:{qt*2048}", dst=regs("a", Xf(n, kb, qt), 4)) for qt in range(4) for kb in range(2)]

def dma(srd, soff, base, nt):
    n = " nt" if nt else ""
    out = []
    for p in range(3):
        m = I(f"s_add_u32 m0, s{sWoff}, {base + 896*p}")
        a = I(f"buffer_load_dwordx4 v{vD[0]}, {S4(srd)}, s{soff} offen offset:{p*128}{n} lds", dst={f"L{base}"}, after=[m])
        b = I(f"buffer_load_dwordx4 v{vD[1]}, {S4(srd)}, s{soff} offen offset:{p*128+3072}{n} lds", dst={f"L{base}"})
        out += [m, a, b]
    return out
def dma_w(m): return [I(f"s_mov_b32 s{sT2}, {m*WS}")] + dma(sDA, sT2, slot(m % 4), OPT["nt_w"])
def dma_k(i, base): return [I(f"s_mov_b32 s{sT2}, {i*TILE}")] + dma(sDA, sT2, base, OPT["nt_kv"])
def dma_v(i, base): return [I(f"s_mov_b32 s{sT2}, {i*TILE}")] + dma(sDB, sT2, base, OPT["nt_kv"])
def dma_n(m): return [I(f"s_mul_i32 s{sT2}, s{sNs}, {m}")] + dma(sDA, sT2, slot(m), OPT["nt_w"])
def hd(d): return d[:-6]
def tl(d): return d[-6:]
def dma_x(n):
    out = []; base = X1 if n & 1 else X0
    for j in range(8):
        if j % 4 == 0: out.append(I(f"s_add_u32 m0, s{sXoff}, {base + j*1024}"))
        out.append(I(f"s_mov_b32 s{sT}, {j*10240 - (j % 4)*1024 + n*128}"))
        out.append(I(f"buffer_load_dwordx4 v{vDx}, {S4(sX)}, s{sT} offen offset:{(j % 4)*1024}" + (" nt" if OPT["nt_x"] else "") + " lds", dst={f"X{n&1}_{j>>1}"}))
    return out

def phase(name, n, typ, mf, own, nxt, nxt_typ, pub, early, dmas, extra=(), post=(), early_hi=BG - 6, endneed=None):
    lu = lastuse_pv if typ == "v" else lastuse_qk
    rs = []
    if typ == "v":
        k0 = 48 - len(own)
        for j, it in enumerate(own):
            it.target = -18 + (k0 + j) * 88 / 48
            it.hi = min(8 * (it.f >> 1) - 6, BG - 5)
            if it.f >= 16: it.lo = lu(it.f - 16)
            it.hi = max(it.hi, it.lo)
    else:
        for j, it in enumerate(own):
            kt, s = divmod(it.f, 6)
            it.target = 24 * (kt - 1) + 1 + s * 2.5; it.hi = 24 * kt - 8
            if it.f >= 16: it.lo = lu(it.f - 16)
    rs += own
    bar = BAR(pub if isinstance(pub, set) else {f"L{pub}"}, lo=BG, hi=BG); rs.append(bar)
    for j, it in enumerate(nxt):
        it.lo = max(BG + 1, lu(it.f + 8)); it.after = [bar]
        it.target = BG + 1 + (j * 1.8 if nxt_typ == "v" else j * 1.5); it.hi = 95 if nxt_typ == "v" and j >= 4 else 88
    rs += nxt
    ws = []
    if typ == "v":
        for t in range(1, 12):
            if 8 * t - 1 >= BG: break
            ws.append(WAIT(lneed=regs("a", fq(n, 2 * t), 4) | regs("a", fq(n, 2 * t + 1), 4), lo=8 * t - 3, hi=8 * t - 1, target=8 * t - 2))
    else:
        for kt in range(1, 4):
            ws.append(WAIT(lneed=set().union(*[regs("a", fq(n, 6 * kt + s), 4) for s in range(6)]), lo=24 * kt - 3, hi=24 * kt - 1, target=24 * kt - 2))
    nf = 2 if nxt_typ == "v" else 6
    ws.append(WAIT(lneed=set().union(*[regs("a", fq(n + 1, f), 4) for f in range(nf)]) | (endneed or set()), lo=94, hi=95, target=94.5))
    ms = list(early)
    spread(ms, 1, early_hi)
    nv = sum(1 for it in dmas if it.kind == "vmem"); k = 0
    for it in dmas:
        it.lo = BG + 1 if it.kind == "vmem" else BG - 4
        it.target = BG + 2 + k * min(8.0, 17.0 / max(nv, 1)) - (0 if it.kind == "vmem" else 2.5)
        if it.kind == "vmem": it.after = it.after + [bar]; k += 1
    ms += dmas
    for it in post: it.lo = BG + 1; it.target = 90
    ms += list(post)
    return schedule(mf, [ws, rs, ms] + list(extra), novalu=NOV, name=name)

def softmax(par, kb, lo, hi, zdead=None, sub=None, los=None, skip=NOV):
    E = []; D = []; P = []
    for qt in range(4):
        x, z = XY(par, kb, qt), Z(kb, qt)
        src = [x, x + 1, x + 2, x + 3, z, z + 1, z + 2, z + 3]
        for pr in range(4):
            es = []
            for e in range(2):
                r = src[2 * pr + e]
                ex = I(f"v_exp_f32 v{r}, v{r}")
                if sub:
                    sb = I(f"v_add_f32 v{r}, v{r}, v{negm(qt)}", after=[sub[qt]], lo=los[qt][pr >> 1]); P.append(sb); ex.after = [sb]
                E.append(ex); es.append(ex)
                D.append(I(f"v_add_f32 v{vL[qt]}, v{vL[qt]}, v{r}", after=[ex]))
            c = I(f"v_cvt_pk_bf16_f32 v{x+pr}, v{src[2*pr]}, v{src[2*pr+1]}", after=es)
            if zdead: c.hi = zdead(qt)
            D.append(c)
    spread(E, lo, hi, skip)
    for e in E: e.hi = 94
    for d in D:
        d.target = max(a.target for a in d.after) + 1
        for a in d.after: a.hi = min(a.hi, d.hi - 1)
    for p, e in zip(P, E): p.target = e.target - 3; p.hi = e.hi - 1
    return ([P] if sub else []) + [E, D]

def mf_w(n):
    out = []
    for t in range(12):
        for qt in range(4):
            d = Qf(qt, t >> 1) if t % 2 == 0 else Qb(qt, t >> 1)
            for kb in range(2):
                out.append(mfma(V4(d), A4(fq(n, 2 * t + kb)), A4(Xf(n, kb, qt)), "0" if (n == 0 and kb == 0) else V4(d)))
    return out
def mf_qk(n, par, first=False):
    out = []
    for kt in range(4):
        for qt in range(4):
            d = XY(par, kt >> 1, qt) if kt % 2 == 0 else Z(kt >> 1, qt)
            order = range(6) if qt % 2 == 0 else range(5, -1, -1)
            for j, s in enumerate(order):
                c = V4(d) if j else ("0" if (first and kt < 2) else V4(negm(qt)))
                out.append(mfma(V4(d), A4(fq(n, 6 * kt + s)), V4(Qf(qt, s)), c))
    return out
def mf_pv(n, par, first=False):
    out = []
    for t in range(12):
        for qt in range(4):
            for kb in range(2):
                out.append(mfma(A4(Oacc(t, qt)), A4(fq(n, 2 * t + kb)), V4(XY(par, kb, qt)), "0" if (first and kb == 0) else A4(Oacc(t, qt))))
    return out

ETMP = [32, 40, 56]
def epi_unit(u, packed):
    s, qt = divmod(u, 4)
    tb = ETMP[u % 3] if not OPT["stamps"] else [32, 56][u % 2]
    out = []
    rc = RCP + 2 * qt
    for h in range(2):
        for j in range(4): out.append(I(f"v_accvgpr_read_b32 v{tb+4*h+j}, a{Oacc(2*s+h, qt)+j}"))
        if packed:
            for j in range(2): out.append(I(f"v_pk_mul_f32 v[{tb+4*h+2*j}:{tb+4*h+2*j+1}], v[{tb+4*h+2*j}:{tb+4*h+2*j+1}], v[{rc}:{rc+1}]"))
        else:
            for j in range(4): out.append(I(f"v_mul_f32 v{tb+4*h+j}, v{tb+4*h+j}, v{rc}"))
        for j in range(2): out.append(I(f"v_cvt_pk_bf16_f32 v{tb+2*h+j}, v{tb+4*h+2*j}, v{tb+4*h+2*j+1}"))
    out.append(I(f"buffer_store_dwordx4 {V4(tb)}, v{vO3 if qt == 3 else vO}, {S4(sO)}, s{sOs[s]} offen offset:{qt*1024}" + ["", " nt", " sc1", " sc0 sc1"][OPT["nt_o"]]))
    return out
def cvt_unit(s, qt, packed):
    a, b = Qf(qt, s), Qb(qt, s)
    out = []
    if packed:
        for r in (a, a + 2, b, b + 2): out.append(I(f"v_pk_mul_f32 v[{r}:{r+1}], v[{r}:{r+1}], {S2(sC)}"))
    else:
        for r in (a, a + 1, a + 2, a + 3, b, b + 1, b + 2, b + 3): out.append(I(f"v_mul_f32 v{r}, s{sC}, v{r}"))
    out += Is(f"""v_cvt_pk_bf16_f32 v{a}, v{a}, v{a+1}
v_cvt_pk_bf16_f32 v{a+1}, v{a+2}, v{a+3}
v_cvt_pk_bf16_f32 v{a+2}, v{b}, v{b+1}
v_cvt_pk_bf16_f32 v{a+3}, v{b+2}, v{b+3}""")
    sw = Is(f"v_permlane16_swap_b32 v{a}, v{a+2}\nv_permlane16_swap_b32 v{a+1}, v{a+3}")
    return out, sw

def pf():
    return [I(f"v_add_u32 v{vPf}, s{sXoff}, v{vO}")] + [I(f"buffer_load_dwordx4 {V4(40)}, v{vPf}, {S4(sP1)}, " + ("0" if j < 4 else f"s{sT3}") + f" offen offset:{(j % 4)*1024}", dst=regs("v", 40, 4)) for j in range(6)]

def lin(items):
    out = []
    for k, it in enumerate(items):
        out.append(it)
        if it.text.startswith("s_add_u32 m0") and items[k + 1].kind == "vmem": out.append(I("s_nop 0"))
    return out

def stamp(idx, k2=False):
    if not OPT["stamps"]: return []
    va, vb = (250, 251) if k2 else (46, 47)
    if idx < 0: sel = f"s_mul_i32 s92, s{sItem}, 24\ns_add_u32 s92, s92, s{sI}\ns_add_u32 s92, s92, 8"
    else: sel = f"s_mov_b32 s92, {idx}" if (k2 or idx >= 48) else f"s_mul_i32 s92, s{sItem}, 24\ns_add_u32 s92, s92, {idx}"
    return Is(f"""s_memtime s[90:91]
s_memrealtime s[94:95]
s_waitcnt lgkmcnt(0)
s_cselect_b32 s96, 1, 0
{sel}
s_mov_b32 s93, m0
s_mov_b32 m0, s92
v_writelane_b32 v{va}, s90, m0
v_writelane_b32 v{vb}, s94, m0
s_mov_b32 m0, s93
s_cmp_lg_u32 s96, 0""")
def stamp_out(karg, wg, wave, tmp, base, k2=False):
    if not OPT["stamps"]: return []
    va = 250 if k2 else 46
    return Is(f"""s_load_dwordx2 s[80:81], {karg}, 96
s_waitcnt lgkmcnt(0)
s_add_u32 s80, s80, {base}
s_addc_u32 s81, s81, 0
s_mov_b32 s82, 0x100000
s_mov_b32 s83, 0x20000
s_lshl_b32 s84, s{wg}, 2
s_add_u32 s84, s84, s{wave}
s_lshl_b32 s84, s84, 9
v_lshlrev_b32 v{tmp}, 3, v0
buffer_store_dwordx2 v[{va}:{va+1}], v{tmp}, s[80:83], s84 offen""")


def kernel1():
    B = {}
    c = math.log2(math.e) / math.sqrt(192.0)
    import struct
    cbits = struct.unpack("<I", struct.pack("<f", c))[0]
    B["entry"] = Is(f"""
s_cmp_ge_u32 s2, 256
s_cbranch_scc1 K1_END
s_mov_b32 s{sWg}, s2
s_mov_b64 {S2(sKA)}, s[0:1]
s_mov_b32 s{sMode}, 0""") + (Is(f"""
s_getpc_b64 s[90:91]
K1_PC:
s_lshr_b32 s92, s2, 3
s_lshl_b32 s92, s92, 12
v_lshl_add_u32 v36, v0, 4, s92
v_min_u32 v36, (K_CODE_END-K1_PC-32)&0xfffffff0, v36
s_and_b32 s90, s90, 0xfffffff0
v_mov_b32 v37, s91
v_add_co_u32 v36, vcc, s90, v36
s_nop 1
v_addc_co_u32 v37, vcc, 0, v37, vcc""") + [I("global_load_dwordx4 v[40:43], v[36:37], off", dst=regs("v", 40, 4))] if OPT["cpf"] else []) + Is(f"""
v_lshrrev_b32 v{vT}, 6, v0
v_and_b32 v0, 63, v0
v_mov_b32 v47, 0
v_readfirstlane_b32 s{sWave}, v{vT}
""") + stamp(48)
    P = Is("K1_PRO:") + [I(f"s_load_dwordx2 {S2(sLd+2*i)}, {S2(sKA)}, {8*i}") for i in range(10)] + Is(f"""
s_load_dwordx2 s[80:81], {S2(sKA)}, 96
s_lshr_b32 s{sT2}, s{sWg}, 3
s_and_b32 s88, s{sWg}, 1
s_and_b32 s89, s{sT2}, 7
s_lshl_b32 s82, s88, 3
s_add_u32 s84, s82, s89
s_bfe_u32 s83, s{sWg}, 0x10001
s_lshl_b32 s83, s83, 2
s_lshr_b32 s82, s{sT2}, 3
s_add_u32 s{sT}, s83, s82
s_mul_i32 s82, s{sT}, 307200
s_lshl_b32 s83, s{sT}, 5
s_add_u32 s83, s83, s84
s_mul_i32 s83, s83, 393216
s_mul_i32 s84, s84, 384
s_bfe_u32 s{sT3}, s{sWg}, 0x10002
s_lshl_b32 s85, s{sT3}, 5
s_lshl_b32 s86, s88, 4
s_add_u32 s85, s85, s86
s_add_u32 s85, s85, s89
s_mul_i32 s85, s85, 720
s_mul_i32 s86, s{sT}, 15
s_add_u32 s85, s85, s86
s_lshl_b32 s85, s85, 10
s_and_b32 s88, s{sWg}, 3
s_lshl_b32 s89, s{sT2}, 2
s_add_u32 s88, s88, s89
s_mul_i32 s{sWoff}, s{sWave}, 6144
s_lshl_b32 s{sXoff}, s{sWave}, 13
""")
    t0, t1, t2, t3 = vT, vT + 1, vT + 2, vT + 3
    P += Is(f"""
v_lshrrev_b32 v{t0}, 3, v0
v_and_b32 v{t1}, 7, v0
v_and_b32 v{t2}, 6, v{t0}
v_xor_b32 v{t1}, v{t1}, v{t2}
v_mul_u32_u24 v{vDkv}, 384, v{t0}
v_lshl_add_u32 v{vDkv}, v{t1}, 4, v{vDkv}
v_add_u32 v{vDkv}, s{sWoff}, v{vDkv}
s_lshl_b32 s86, s{sWave}, 6
v_add_u32 v{t2}, s86, v{t0}
v_mul_u32_u24 v{vDx}, 1280, v{t2}
v_lshl_add_u32 v{vDx}, v{t1}, 4, v{vDx}
v_and_b32 v{t2}, 4, v{t1}
v_and_b32 v{t3}, 1, v{t1}
v_lshl_or_b32 v{t2}, v{t3}, 1, v{t2}
v_bfe_u32 v{t3}, v{t1}, 1, 1
v_or_b32 v{t1}, v{t2}, v{t3}
v_and_b32 v{t2}, 3, v{t0}
v_lshrrev_b32 v{t3}, 2, v{t0}
v_lshl_add_u32 v{t2}, v{t3}, 3, v{t2}
s_lshr_b32 s86, s{sWave}, 1
s_lshl_b32 s86, s86, 5
s_and_b32 s87, s{sWave}, 1
s_lshl_b32 s87, s87, 2
s_add_u32 s86, s86, s87
v_add_u32 v{t2}, s86, v{t2}
v_mul_u32_u24 v{vDw}, 12288, v{t2}
v_lshl_add_u32 v{vDw}, v{t1}, 4, v{vDw}
v_mov_b32 v{vD[0]}, v{vDw}
v_add_u32 v{vD[1]}, {196608-3072}, v{vDw}
s_waitcnt lgkmcnt(0)
s_cmp_eq_u32 s{sT3}, 0
s_cselect_b64 {S2(sLd)}, {S2(sLd)}, {S2(sLd+10)}
s_cselect_b64 {S2(sLd+2)}, {S2(sLd+2)}, {S2(sLd+12)}
s_cselect_b64 {S2(sLd+4)}, {S2(sLd+4)}, {S2(sLd+14)}
s_cselect_b64 {S2(sLd+6)}, {S2(sLd+6)}, {S2(sLd+16)}
s_cselect_b64 {S2(sLd+8)}, {S2(sLd+8)}, {S2(sLd+18)}
s_add_u32 s{sX}, s{sLd}, s82
s_addc_u32 s{sX+1}, s{sLd+1}, 0
s_mov_b32 s{sX+2}, 307200
s_mov_b32 s{sX+3}, 0x20000
s_add_u32 s{sDA}, s{sLd+6}, s84
s_addc_u32 s{sDA+1}, s{sLd+7}, 0
s_sub_u32 s{sDA+2}, 7864320, s84
s_mov_b32 s{sDA+3}, 0x20000
""")
    P += lin(dma_w(0)) + dma_x(0)
    P += Is(f"""
s_add_u32 s{sK}, s{sLd+2}, s83
s_addc_u32 s{sK+1}, s{sLd+3}, 0
s_add_u32 s{sV}, s{sLd+4}, s83
s_addc_u32 s{sV+1}, s{sLd+5}, 0
s_add_u32 s{sNb}, s{sDA}, 6144
s_addc_u32 s{sNb+1}, s{sDA+1}, 0
s_sub_u32 s{sNnum}, s{sDA+2}, 6144
s_mov_b32 s{sNs}, {WS}
s_mov_b32 s{sNd}, {196608-3072}
s_mov_b64 {S2(sMask)}, 0
s_mov_b32 s{sXnum}, 307200
s_mul_i32 s86, s88, 61440
s_add_u32 s{sN2}, s{sLd+8}, s86
s_addc_u32 s{sN2+1}, s{sLd+9}, 0
s_mul_i32 s86, s88, {3*12288}
s_add_u32 s86, s86, {256*12288+6144}
s_add_u32 s{sP1}, s{sLd+6}, s86
s_addc_u32 s{sP1+1}, s{sLd+7}, 0
s_mov_b32 s{sP1+2}, {2*12288+6144}
s_mov_b32 s{sP1+3}, 0x20000
s_mov_b32 s{sT3}, 4096
s_add_u32 s{sO}, s80, s85
s_addc_u32 s{sO+1}, s81, 0
s_sub_u32 s{sO}, s{sO}, {OSTRIDE}
s_subb_u32 s{sO+1}, s{sO+1}, 0
s_mov_b32 s{sO+2}, 0
s_mov_b32 s{sO+3}, 0x20000
s_lshl_b32 s86, s{sWg}, 7
s_add_u32 s86, s86, {FLG}
s_add_u32 s{sDB}, s80, s86
s_addc_u32 s{sDB+1}, s81, 0
s_mov_b32 s{sDB+2}, 128
s_mov_b32 s{sDB+3}, 0x20000
s_mov_b32 s{sItem}, 0
s_mov_b32 s{sFlag}, 0
s_mov_b32 s{sC}, {cbits:#x}
s_mov_b32 s{sC+1}, {cbits:#x}
s_mov_b32 s{sThr}, 0x4e800000
""") + [I(f"s_mov_b32 s{sOs[s]}, {s*122880}") for s in range(6)]
    kb0, vb0 = vK[0][0], vV[0][0]
    P += Is(f"""
v_and_b32 v{t0}, 15, v0
v_lshrrev_b32 v{t1}, 4, v0
v_and_b32 v{t2}, 6, v{t0}
v_xor_b32 v{t3}, v{t2}, v{t1}
v_lshlrev_b32 v{t3}, 4, v{t3}
v_lshl_add_u32 v{vXr[0][0]}, v{t0}, 7, v{t3}
v_add_u32 v{vXr[0][0]}, s{sXoff}, v{vXr[0][0]}
v_xor_b32 v{vXr[0][1]}, 64, v{vXr[0][0]}
v_add_u32 v{vXr[1][0]}, {X1}, v{vXr[0][0]}
v_add_u32 v{vXr[1][1]}, {X1}, v{vXr[0][1]}
v_lshrrev_b32 v{t2}, 3, v{t0}
v_mul_u32_u24 v{kb0}, 3072, v{t2}
v_and_b32 v{t2}, 7, v{t0}
v_lshl_add_u32 v{kb0}, v{t2}, 7, v{kb0}
v_add_u32 v{kb0}, v{kb0}, v{t3}
v_xor_b32 v{vK[0][1]}, 64, v{kb0}
v_add_u32 v{vK[1][0]}, {KW[1]}, v{kb0}
v_add_u32 v{vK[1][1]}, {KW[1]}, v{vK[0][1]}
v_lshrrev_b32 v{t2}, 5, v0
v_mul_u32_u24 v{vb0}, 3072, v{t2}
v_bfe_u32 v{t2}, v0, 2, 3
v_lshl_add_u32 v{vb0}, v{t2}, 7, v{vb0}
v_and_b32 v{t2}, 6, v{t2}
v_bfe_u32 v{t3}, v0, 1, 1
v_xor_b32 v{t2}, v{t2}, v{t3}
v_lshl_add_u32 v{vb0}, v{t2}, 4, v{vb0}
v_and_b32 v{t2}, 1, v0
v_lshl_add_u32 v{vb0}, v{t2}, 3, v{vb0}
v_add_u32 v{vb0}, {VW[0]}, v{vb0}
v_xor_b32 v{vV[0][1]}, 32, v{vb0}
v_xor_b32 v{vV[0][2]}, 64, v{vb0}
v_xor_b32 v{vV[0][3]}, 96, v{vb0}
""") + [I(f"v_add_u32 v{vV[1][i]}, {VW[1]-VW[0]}, v{vV[0][i]}") for i in range(4)] + Is(f"""
s_lshl_b32 s86, s{sWave}, 12
v_lshlrev_b32 v{vO}, 4, v0
v_add_u32 v{vO}, s86, v{vO}
s_cmp_eq_u32 s{sWave}, 3
s_cselect_b32 s86, 0x80000000, 0
v_add_u32 v{vO3}, s86, v{vO}
s_mov_b32 s87, 0xff800000
s_cselect_b32 s86, 0x71000000, s87
v_mov_b32 v{vMi[0]}, s87
v_mov_b32 v{vMi[1]}, s87
v_mov_b32 v{vMi[2]}, s87
v_mov_b32 v{vMi[3]}, s86
""")
    P += [I(f"v_mov_b32 v{vL[q]}, 0") for q in range(4)]
    P += lin(dma_w(1)) + dma_x(1) + lin(dma_w(2)) + lin(dma_w(3))
    P += [I(f"buffer_store_dwordx4 {V4(vL[0])}, v{vO}, {S4(sDB)}, 0 offen")]
    P += [BAR({f"L{slot(0)}"})]
    P += reads_v(0, slot(0))[:NPRE_V]
    B["pro"] = P
    XALL = lambda n: {f"X{n&1}_{q}" for q in range(4)}
    B["item"] = Is("K1_ITEM:") + stamp(0) + [WAIT(vneed=XALL(0))] + reads_x(0) + [WAIT(lzero=True)]
    NE0 = OPT["ne0"]
    EW = {0: list(range(NE0, 8))}
    rest = list(range(8, 24)); per = [3, 3, 2, 2, 2, 2, 2]
    for n in range(1, 8): EW[n] = rest[:per[n - 1]]; rest = rest[per[n - 1]:]
    NC9 = OPT["nc9"]
    cunits = [(s, qt) for s in range(6) for qt in range(4)]
    for n in range(10):
        own = reads_v(n, slot(n % 4))[NPRE_V:]
        early = []; extra = []
        if n < 9: nxt = reads_v(n + 1, slot((n + 1) % 4))[:NPRE_V]; nt_ = "v"; pub = slot((n + 1) % 4)
        else: nxt = reads_k(10, X0)[:NPRE_K]; nt_ = "k"; pub = X0
        def wtile(n): return {6: dma_k(1, slot(2)), 7: dma_k(0, X0), 8: dma_k(2, slot(0)), 9: dma_v(1, slot(1))}.get(n) or dma_w(n + 4)
        if n > 0: early += tl(wtile(n - 1))
        if n == 6:
            early += Is(f"""s_mov_b64 {S2(sDA)}, {S2(sK)}
s_mov_b32 s{sDA+2}, 393216
s_mov_b64 {S2(sDB)}, {S2(sV)}
s_mov_b32 s{sDB+2}, 393216
v_mov_b32 v{vD[0]}, v{vDkv}
v_mov_b32 v{vD[1]}, v{vDkv}""")
        if n < 8: early += dma_x(n + 2)
        if n == 8: early += dma_v(0, slot(3))
        es = []
        if OPT["ovl"]:
            for u in EW.get(n, []): es += epi_unit(u, False)
            if es: extra.append(spread(es, 0, 56 if n == 0 else 95, NOV))
        if n < 9:
            xr = reads_x(n + 1); st = []
            x0 = 58 if n == 0 else 46
            for q in range(4):
                if q % 2 == 0: st.append(WAIT(vneed={f"X{(n+1)&1}_{q}", f"X{(n+1)&1}_{q+1}"}))
                st += xr[2 * q:2 * q + 2]
            spread(st, x0, BG - 5)
            if n == 0 and es:
                for it in xr: it.after = [es[-1]]
            extra.append(st)
        if n == 9 and NC9:
            cs = []; sw = []
            for (s, qt) in cunits[:NC9]:
                a, b = cvt_unit(s, qt, False)
                a[0].lo = 16 * s + 8 + 2 * qt + 1 + 8
                for x in b: x.after = [a[-1]]; x.dly = 1
                cs += a; sw += b
            spread(cs, 17, 92, NOV)
            for x in sw: x.target = x.after[0].target + 2
            extra += [cs, sw]
        d = hd(wtile(n))
        B[f"w{n}"] = (stamp(8 + n) if OPT["stamps"] == 2 else []) + phase(f"w{n}", n, "v", mf_w(n), own, nxt, nt_, pub, early, d, extra, early_hi=70)
    C = stamp(1); pend = []
    for (s, qt) in cunits[NC9:]:
        a, b = cvt_unit(s, qt, True)
        C += a[:4] + pend + a[4:]; pend = b
    C += Is(f"s_cmp_lg_u32 s{sMode}, 0\ns_nop 0") + pend + Is("s_cbranch_scc1 K1_MAXPASS\nK1_MAXRET:\ns_nop 0") + stamp(2)
    B["cvt"] = C
    M = []; last = []
    for qt in range(4):
        x = XY(0, 0, qt); m = vT + 2 * qt; t = m + 1
        a = I(f"v_max3_f32 v{m}, v{x}, v{x+1}, v{x+2}", lo=6 * qt + 13)
        b = I(f"v_max3_f32 v{m}, v{m}, v{x+3}, v{vMi[qt]}")
        c_ = I(f"v_mov_b32 v{t}, v{m}")
        d = I(f"v_permlane16_swap_b32 v{m}, v{t}", after=[c_], dly=1)
        e = I(f"v_max_f32 v{m}, v{m}, v{t}")
        f = I(f"v_mov_b32 v{t}, v{m}")
        g = I(f"v_permlane32_swap_b32 v{m}, v{t}", after=[f], dly=1)
        h = I(f"v_max_f32 v{m}, v{m}, v{t}")
        ns = [I(f"v_sub_f32 v{negm(qt)+i}, 0, v{m}", hi=48 + 6 * qt - 3) for i in range(4)]
        st = [a, b, c_, d, e, f, g, h] + ns
        for j, it in enumerate(st): it.target = 6 * qt + 13 + j * 0.5
        M.append(st); last.append(ns[0])
    sm = softmax(0, 0, 26, 93, sub=last, los=[[0, 24 + 6 * qt + 13] for qt in range(4)])
    early = Is(f"""s_mov_b32 s{sA}, {3*TILE}
s_mov_b32 s{sB}, {2*TILE}
s_mov_b32 s{sI}, 0
s_add_u32 s{sO}, s{sO}, {OSTRIDE}
s_addc_u32 s{sO+1}, s{sO+1}, 0
s_mov_b32 s{sO+2}, {5*122880+15*1024}""") + tl(dma_v(1, slot(1)))
    B["qk0"] = phase("qk0", 10, "k", mf_qk(10, 0, True), reads_k(10, X0)[NPRE_K:], reads_k(11, slot(2))[:NPRE_K], "k", slot(2), early,
                     hd(dma_v(15, X1)), M + sm, early_hi=24) + stamp(3)
    def half(nm, par, mode):
        ks, vs, kn, vp = slot(2 * par), slot(2 * par + 1), slot(2 - 2 * par), slot(3 - 2 * par)
        kd = lambda: dma(sDA, sA, ks, OPT["nt_kv"])
        vd = lambda b: dma(sDB, sB, b, OPT["nt_kv"])
        extra = []
        if mode == "first": early = tl(dma_v(15, X1))
        elif mode == "last" and par: early = tl(dma_n(1)) + Is(f"s_mov_b32 s{sX+2}, s{sXnum}") + dma_x(0)
        else: early = tl(vd(vp)) + Is(f"s_add_u32 s{sB}, s{sB}, {TILE}")
        if mode == "last" and par == 0:
            early += Is(f"""s_mov_b64 {S2(sDA)}, {S2(sNb)}
s_mov_b32 s{sDA+2}, s{sNnum}
v_cndmask_b32 v{vD[0]}, v{vDw}, v{vDkv}, {S2(sMask)}
v_add_u32 v{vD[1]}, s{sNd}, v{vD[0]}""")
            if OPT["pf"]: extra = [spread(pf(), 30, 95, NOV)]
        q = phase("qk" + nm, 11, "k", mf_qk(11, par), reads_k(11, ks)[NPRE_K:], reads_v(12, vs)[:NPRE_V], "v", vs, early,
                  hd(dma_n(2 * par) if mode == "last" else kd()),
                  softmax(1 - par, 1, 0, BG - 2, zdead=lambda qt: 72 + 6 * qt - 1) + extra, early_hi=72)
        post = []
        if par and mode == "loop": post += Is(f"s_add_u32 s{sI}, s{sI}, 1\ns_cmp_lg_u32 s{sI}, 6")
        early = tl(dma_n(2 * par)) if mode == "last" else tl(kd()) + Is(f"s_add_u32 s{sA}, s{sA}, {TILE}")
        if mode == "last" and par: nxt, nty, pub = reads_v(41, X1)[:NPRE_V], "v", {f"L{X1}", "v40"}
        else: nxt, nty, pub = reads_k(11, kn)[:NPRE_K], "k", kn
        p = phase("pv" + nm, 12, "v", mf_pv(12, 1 - par, mode == "first"), reads_v(12, vs)[NPRE_V:], nxt, nty, pub, early,
                  hd(dma_n(2 * par + 1) if mode == "last" else vd(vs)), softmax(par, 0, 0, 93), post=post, early_hi=72)
        return q + p
    B["peel"] = half("1", 1, "first")
    B["loop"] = Is(".p2align 6\nK1_L:") + (stamp(-1) if OPT["stamps"] == 4 else []) + half("e", 0, "loop") + half("o", 1, "loop") + Is("s_cbranch_scc1 K1_L")
    B["last"] = (stamp(-1) if OPT["stamps"] == 4 else []) + half("14", 0, "last") + half("15", 1, "last")
    T = stamp(4)
    E, D = softmax(1, 1, 0, 93)
    di = 0
    for j in range(0, 32, 2):
        T += E[j:j + 2]
        if j >= 2: T += D[di:di + 3]; di += 3
    T.append(I("s_nop 0"))
    T += D[di:]
    T += [I(f"v_mov_b32 v{vT+q}, v{vL[q]}") for q in range(4)]
    T += [I(f"v_permlane16_swap_b32 v{vL[q]}, v{vT+q}") for q in range(4)]
    T += [I(f"v_add_f32 v{vL[q]}, v{vL[q]}, v{vT+q}") for q in range(4)]
    B["tail"] = T
    R = []
    c2 = [I(f"v_mov_b32 v{vT+q}, v{vL[q]}") for q in range(4)]
    d2 = [I(f"v_permlane32_swap_b32 v{vL[q]}, v{vT+q}", after=[c2[q]], dly=1) for q in range(4)]
    R = c2 + d2 + [I(f"v_add_f32 v{vL[q]}, v{vL[q]}, v{vT+q}") for q in range(4)]
    rc = [I(f"v_rcp_f32 v{RCP+2*q}, v{vL[q]}") for q in range(4)]
    R += rc + [I(f"v_cmp_ngt_f32 {S2(80+2*q)}, s{sThr}, v{vL[q]}") for q in range(4)]
    R += [I(f"v_mov_b32 v{RCP+2*q+1}, v{RCP+2*q}") for q in range(4)] + [I(f"v_mov_b32 v{vL[q]}, 0") for q in range(4)]
    spread(R, 0, 24)
    for it in R: it.hi = 95
    es = []
    for u in range(NE0 if OPT["ovl"] else 0):
        e = epi_unit(u, False); e[0].lo = 16 * (u // 4) + 8 + 2 * (u % 4) + 1 + 8; es += e
    spread(es, 24, 95, NOV)
    post = Is(f"""s_or_b64 s[80:81], s[80:81], s[82:83]
s_or_b64 s[84:85], s[84:85], s[86:87]
s_or_b64 s[80:81], s[80:81], s[84:85]
s_or_b32 s80, s80, s81
s_or_b32 s{sFlag}, s{sFlag}, s80""")
    early = tl(dma_n(3)) + Is(f"""s_mov_b32 s{sXnum}, 0
s_mov_b64 {S2(sNb)}, {S2(sN2)}
s_mov_b32 s{sNnum}, {61440 if OPT["pf"] else 0}
s_mov_b32 s{sNs}, {TILE}
s_mov_b32 s{sNd}, 0
s_mov_b64 {S2(sMask)}, -1
s_mov_b32 s{sP1+2}, 0
s_add_u32 s{sK}, s{sK}, {16*393216}
s_addc_u32 s{sK+1}, s{sK+1}, 0
s_add_u32 s{sV}, s{sV}, {16*393216}
s_addc_u32 s{sV+1}, s{sV+1}, 0""")
    B["pv15"] = phase("pv15", 41, "v", mf_pv(41, 1), reads_v(41, X1)[NPRE_V:], reads_v(0, slot(0))[:NPRE_V], "v", slot(0), early, dma_x(1), [R + es], post=post) + stamp(5)
    nxtitem = Is(f"s_add_u32 s{sItem}, s{sItem}, 1\ns_cmp_lt_u32 s{sItem}, 2\ns_cbranch_scc1 K1_ITEM")
    Ep = []
    for u in range(NE0 if OPT["ovl"] else 0, 24): Ep += epi_unit(u, True)
    if OPT["ovl"]: B["br"] = stamp(6) + nxtitem; B["epi"] = Ep
    else: B["br"] = Ep + stamp(6) + nxtitem; B["epi"] = []
    F = [WAIT(vneed=XALL(1), lzero=True)] + Is(f"""s_barrier
s_lshl_b32 s80, s{sWave}, 2
v_mov_b32 v{SP}, s80
v_mov_b32 v{SP+1}, s{sFlag}
v_mov_b32 v{SP+2}, 0
ds_write_b32 v{SP}, v{SP+1}
s_waitcnt lgkmcnt(0)
s_barrier
ds_read_b128 {V4(SP+4)}, v{SP+2}
s_waitcnt lgkmcnt(0)
v_or_b32 v{SP+4}, v{SP+4}, v{SP+5}
v_or3_b32 v{SP+4}, v{SP+4}, v{SP+6}, v{SP+7}
s_nop 1
v_readfirstlane_b32 s80, v{SP+4}
s_nop 3
s_cmp_eq_u32 s80, 0
s_cbranch_scc1 K1_DONE
s_cmp_lg_u32 s{sMode}, 0
s_cbranch_scc1 K1_DONE
s_mov_b32 s{sMode}, 1
s_waitcnt vmcnt(0)
s_barrier
s_branch K1_PRO
K1_DONE:""")
    F += stamp(49) + stamp_out(S2(sKA), sWg, sWave, vT, 0x4000000)
    F += Is("K1_END:\ns_endpgm")
    B["fin"] = F
    X = Is(f"""K1_MAXPASS:
v_and_b32 v{vT}, 15, v0
v_lshrrev_b32 v{vT+1}, 4, v0
v_mul_u32_u24 v{vT}, 384, v{vT}
v_lshl_add_u32 v{vT}, v{vT+1}, 4, v{vT}
s_mov_b32 s{sT}, 0""") + [I(f"v_mov_b32 v{vMi[q]}, 0xff800000") for q in range(4)] + Is("K1_MAXL:")
    for s in range(6): X.append(I(f"buffer_load_dwordx4 {V4(SP+4*s)}, v{vT}, {S4(sDA)}, s{sT} offen offset:{s*64}"))
    X.append(I("s_waitcnt vmcnt(0)"))
    for qt in range(4):
        for s in range(6): X.append(mfma(V4(SP + 32 + 4 * qt), V4(SP + 4 * s), V4(Qf(qt, s)), V4(SP + 32 + 4 * qt) if s else "0"))
    X.append(I("s_nop 7"))
    for qt in range(4):
        d = SP + 32 + 4 * qt
        X += Is(f"v_max3_f32 v{vMi[qt]}, v{vMi[qt]}, v{d}, v{d+1}\nv_max3_f32 v{vMi[qt]}, v{vMi[qt]}, v{d+2}, v{d+3}")
    X += Is(f"s_add_u32 s{sT}, s{sT}, 6144\ns_cmp_lt_u32 s{sT}, 393216\ns_cbranch_scc1 K1_MAXL\ns_branch K1_MAXRET")
    B["maxpass"] = X
    item = ["item"] + [f"w{n}" for n in range(10)] + ["cvt", "qk0", "peel"] + ["loop"] * 6 + ["last", "tail", "pv15", "br"]
    trace = ["entry", "pro"] + item + item + ["epi", "fin"]
    layout = ["entry", "pro", "item"] + [f"w{n}" for n in range(10)] + ["cvt", "qk0", "peel", "loop", "last", "tail", "pv15", "br", "epi", "fin", "maxpass"]
    resolve_waits(B, trace)
    txt = {k: "\n".join(emit(v)).split("\n") for k, v in B.items()}
    errs = verify([l for b in trace for l in txt[b]])
    tr2 = ["entry", "pro"] + item[:12] + ["maxpass", "maxpass"] + item[12:]
    errs += verify([l for b in tr2 for l in txt[b]])
    for e in errs: sys.stderr.write("K1 HAZARD " + e + "\n")
    return [l for b in layout for l in txt[b]], errs

def kernel2():
    B = {}
    vR = [1, 2, 3, 4]; vDm = 5; vOf = 6; vSt = 7; vW = 8; vRd = 9; t0, t1, t2, t3 = 10, 11, 12, 13
    OB = 64
    def Of(d, kb, qt): return OB + 40 * (d % 4) + 4 * (kb * 5 + qt)
    def acc(t, qt): return 4 * (t * 5 + qt)
    WF = 160
    def wq(f): return WF + 4 * f
    sW_ = 4; sOo = 8; sOut = 12; sWv = 16; sLb = 17; sWo = [18, 19]; sOo0 = 20; sOo1 = 21; sCnt = 22; sTt = 23
    sXs = 24; sXr = 28; sFl = 32; sJ = 36; sWa = 37; sWb = 38; sMy = 39
    P = Is(f"""
s_cmp_ge_u32 s2, 240
s_cbranch_scc1 K2_END
s_load_dwordx2 s[50:51], s[0:1], 32
s_load_dwordx2 s[56:57], s[0:1], 72
s_load_dwordx2 s[52:53], s[0:1], 80
s_load_dwordx2 s[54:55], s[0:1], 96
v_lshrrev_b32 v{t0}, 6, v0
v_and_b32 v0, 63, v0
s_lshr_b32 s41, s2, 3
v_readfirstlane_b32 s{sWv}, v{t0}
s_bfe_u32 s42, s2, 0x10002
s_bfe_u32 s43, s2, 0x10001
s_and_b32 s40, s2, 1
s_mul_i32 s44, s41, 52
s_lshr_b32 s44, s44, 8
s_mul_i32 s45, s44, 5
s_sub_u32 s45, s41, s45
s_lshr_b32 s{sWa}, s{sWv}, 1
s_and_b32 s{sWb}, s{sWv}, 1
s_mul_i32 s46, s43, 60
s_mul_i32 s47, s44, 10
s_add_u32 s46, s46, s47
s_mul_i32 s47, s{sWa}, 5
s_add_u32 s46, s46, s47
s_lshl_b32 s{sLb}, s{sWb}, 16
s_lshl_b32 s47, s{sWa}, 12
s_add_u32 s{sMy}, s{sLb}, s47
v_lshrrev_b32 v{t0}, 3, v0
v_and_b32 v{t1}, 7, v0
v_and_b32 v{t2}, 6, v{t0}
v_xor_b32 v{t1}, v{t1}, v{t2}
v_and_b32 v{t2}, 4, v{t1}
v_and_b32 v{t3}, 1, v{t1}
v_lshl_or_b32 v{t2}, v{t3}, 1, v{t2}
v_bfe_u32 v{t3}, v{t1}, 1, 1
v_or_b32 v{t1}, v{t2}, v{t3}
v_mul_u32_u24 v{vDm}, 1280, v{t0}
v_lshl_add_u32 v{vDm}, v{t1}, 4, v{vDm}
v_lshlrev_b32 v{vOf}, 4, v0
s_mul_i32 s49, s40, {1536*1280}
s_mul_i32 s48, s{sWb}, {64*1280}
s_add_u32 s49, s49, s48
s_mul_i32 s48, s{sWa}, {32*1280}
s_add_u32 s49, s49, s48
s_lshl_b32 s48, s40, 7
s_add_u32 s{sWo[0]}, s49, s48
s_xor_b32 s48, s48, 128
s_add_u32 s{sWo[1]}, s49, s48
s_mul_i32 s{sOo0}, s{sWb}, {2*122880}
s_add_u32 s{sOo1}, s{sOo0}, 122880
s_mov_b32 s{sJ}, {128*1280}
s_waitcnt lgkmcnt(0)
s_cmp_eq_u32 s42, 0
s_cselect_b64 s[50:51], s[50:51], s[56:57]
s_lshl_b32 s48, s45, 8
s_add_u32 s{sW_}, s50, s48
s_addc_u32 s{sW_+1}, s51, 0
s_mul_i32 s49, s40, {1536*1280}
s_add_u32 s49, s49, {4608*1280}
s_sub_u32 s{sW_+2}, s49, s48
s_mov_b32 s{sW_+3}, 0x20000
s_lshl_b32 s48, s42, 1
s_add_u32 s48, s48, s40
s_mul_i32 s48, s48, {96*120}
s_add_u32 s48, s48, s46
s_lshl_b32 s48, s48, 10
s_add_u32 s{sOo}, s54, s48
s_addc_u32 s{sOo+1}, s55, 0
s_mov_b32 s{sOo+2}, {95*122880+5*1024}
s_mov_b32 s{sOo+3}, 0x20000
""")
    def wdma(d, jump=False):
        out = []
        n = " nt" if OPT["k2_nt_w"] else ""
        for p in range(2):
            out.append(I(f"s_add_u32 m0, s{sMy}, {(d % 4)*16384 + p*8192}"))
            for r in range(4):
                out += [I(f"s_add_u32 s{sTt}, s{sWo[p]}, {r*(8*1280-1024)}"),
                        I(f"buffer_load_dwordx4 v{vDm}, {S4(sW_)}, s{sTt} offen offset:{r*1024}{n} lds", dst={f"W{d%4}"})]
            out.append(I(f"s_add_u32 s{sWo[p]}, s{sWo[p]}, " + (f"s{sJ}" if jump else f"{128*1280}")))
        return out
    def oload(d, kb):
        n = " nt" if OPT["k2_nt_o"] else ""
        so = sOo0 if kb == 0 else sOo1
        out = [I(f"buffer_load_dwordx4 {V4(Of(d, kb, qt))}, v{vOf}, {S4(sOo)}, s{so} offen offset:{qt*1024}{n}", dst=regs("v", Of(d, kb, qt), 4)) for qt in range(4)]
        out.append(I(f"s_add_u32 s{sTt}, s{so}, 4096"))
        out.append(I(f"buffer_load_dwordx4 {V4(Of(d, kb, 4))}, v{vOf}, {S4(sOo)}, s{sTt} offen{n}", dst=regs("v", Of(d, kb, 4), 4)))
        out.append(I(f"s_add_u32 s{so}, s{so}, {4*122880}"))
        return out
    def wreads(d):
        out = []
        for t in range(8):
            for kb in range(2):
                r = wq(2 * t + kb)
                for hf in range(2):
                    it = I(f"ds_read_b64_tr_b16 a[{r+2*hf}:{r+2*hf+1}], v{vR[t & 3]} offset:{(d % 4)*16384 + (t >> 2)*8192 + (4*kb+2*hf)*1024}", dst=regs("a", r + 2 * hf, 2)); it.f = 2 * t + kb
                    out.append(it)
        return out
    P += stamp(0, True) + wdma(0) + oload(0, 0) + oload(0, 1) + wdma(1) + oload(1, 0) + oload(1, 1) + wdma(2)
    P += Is(f"""
v_lshrrev_b32 v{t2}, 5, v0
v_lshlrev_b32 v{vR[0]}, 10, v{t2}
v_bfe_u32 v{t2}, v0, 2, 3
v_lshl_add_u32 v{vR[0]}, v{t2}, 7, v{vR[0]}
v_and_b32 v{t2}, 6, v{t2}
v_bfe_u32 v{t3}, v0, 1, 1
v_xor_b32 v{t2}, v{t2}, v{t3}
v_lshl_add_u32 v{vR[0]}, v{t2}, 4, v{vR[0]}
v_and_b32 v{t2}, 1, v0
v_lshl_add_u32 v{vR[0]}, v{t2}, 3, v{vR[0]}
s_lshl_b32 s48, s{sWb}, 6
v_xor_b32 v{vR[0]}, s48, v{vR[0]}
v_add_u32 v{vR[0]}, s{sLb}, v{vR[0]}
v_xor_b32 v{vR[1]}, 32, v{vR[0]}
v_xor_b32 v{vR[2]}, 64, v{vR[0]}
v_xor_b32 v{vR[3]}, 96, v{vR[0]}
s_lshl_b32 s48, s46, 4
s_mul_i32 s48, s48, 2560
s_mul_i32 s49, s42, 1280
s_add_u32 s48, s48, s49
s_lshl_b32 s49, s45, 8
s_add_u32 s48, s48, s49
s_lshl_b32 s49, s40, 1
s_add_u32 s49, s49, s{sWb}
s_lshl_b32 s49, s49, 6
s_add_u32 s48, s48, s49
s_add_u32 s{sOut}, s52, s48
s_addc_u32 s{sOut+1}, s53, 0
s_sub_u32 s{sOut+2}, {8*240*1280*2}, s48
s_mov_b32 s{sOut+3}, 0x20000
s_lshl_b32 s48, s2, 2
s_add_u32 s48, s48, s{sWv}
s_xor_b32 s49, s48, 4
s_mul_i32 s48, s48, 10240
s_mul_i32 s49, s49, 10240
s_add_u32 s48, s48, {XCH}
s_add_u32 s49, s49, {XCH}
s_add_u32 s{sXs}, s54, s48
s_addc_u32 s{sXs+1}, s55, 0
s_mov_b32 s{sXs+2}, 10240
s_mov_b32 s{sXs+3}, 0x20000
s_add_u32 s{sXr}, s54, s49
s_addc_u32 s{sXr+1}, s55, 0
s_mov_b32 s{sXr+2}, 10240
s_mov_b32 s{sXr+3}, 0x20000
s_add_u32 s{sFl}, s54, {FLG}
s_addc_u32 s{sFl+1}, s55, 0
s_mov_b32 s{sFl+2}, {256*128}
s_mov_b32 s{sFl+3}, 0x20000
v_and_b32 v{t0}, 15, v0
v_lshrrev_b32 v{t1}, 4, v0
v_mul_u32_u24 v{vSt}, 2560, v{t0}
v_lshl_add_u32 v{vSt}, v{t1}, 4, v{vSt}
s_mov_b32 s{sCnt}, 0
""")
    P += [I(f"v_accvgpr_write_b32 a{i}, 0") for i in range(160)]
    NP = 8; G = 60
    P += [BAR({"W0"})] + wreads(0)[:NP] + [WAIT(lneed=regs("a", wq(0), 8), vneed=regs("v", Of(0, 0, 0), 40))]
    B["pro"] = P + stamp(1, True)
    L = Is(".p2align 6\nK2_L:")
    for d in range(4):
        mf = []
        for t in range(8):
            for qt in range(5):
                for kb in range(2):
                    a = acc(t, qt)
                    mf.append(mfma(A4(a), A4(wq(2 * t + kb)), V4(Of(d, kb, qt)), A4(a)))
        own = wreads(d)[NP:]; nxt = wreads(d + 1)[:NP]
        spread(own, 0, G - 6)
        for it in own: it.hi = min(it.hi, 10 * (it.f >> 1) - 7); it.target = min(it.target, it.hi - 1)
        bar = BAR({f"W{(d+1)%4}"}, lo=G, hi=G)
        for it in nxt: it.after = [bar]
        spread(nxt, G + 1, 76)
        ws = [WAIT(lneed=regs("a", wq(2 * t), 8), lo=10 * t - 3, hi=10 * t - 1, target=10 * t - 2) for t in range(1, 7)]
        ws.append(WAIT(lneed=regs("a", wq(0), 8), vneed=regs("v", Of(d + 1, 0, 0), 40), lo=78, hi=79, target=78.5))
        vm = []
        if d == 0: vm += Is(f"s_cmp_eq_u32 s{sCnt}, 2\ns_cselect_b32 s{sJ}, {1536*1280}, 0\ns_add_u32 s{sJ}, s{sJ}, {128*1280}")
        w = wdma(d + 3, jump=(d == 0)); h = len(w) // 2
        vm += oload(d + 2, 0) + w[:h] + oload(d + 2, 1) + w[h:]
        if d == 3: vm += Is(f"s_add_u32 s{sCnt}, s{sCnt}, 1\ns_cmp_lt_u32 s{sCnt}, 6")
        spread(vm, 0, 80, [G])
        L += schedule(mf, [ws, own + [bar] + nxt, vm], name=f"k2d{d}")
    L += Is("s_cbranch_scc1 K2_L")
    B["loop"] = L
    E = stamp(2, True) + Is(f"""s_waitcnt vmcnt(0) lgkmcnt(0)
s_barrier
s_xor_b32 s48, s{sWv}, 1
s_mul_i32 s48, s48, 20480
v_add_u32 v{vW}, s48, v{vOf}
s_mul_i32 s48, s{sWv}, 20480
v_add_u32 v{vRd}, s48, v{vOf}""")
    for k, j in enumerate((3, 1)):
        for q in range(10): E.append(I(f"ds_write_b128 v{vW}, {A4(40*j + 4*q)} offset:{k*10240 + q*1024}"))
    for i in range(40): E.append(I(f"v_accvgpr_read_b32 v{16+i}, a{80+i}"))
    E += Is("s_waitcnt lgkmcnt(0)\ns_barrier")
    for q in range(20): E.append(I(f"ds_read_b128 {V4(64+4*q)}, v{vRd} offset:{q*1024}", dst=regs("v", 64 + 4 * q, 4)))
    E += Is("s_mov_b32 s48, 4096\ns_mov_b32 s49, 8192")
    so = lambda q: ["0", "s48", "s49"][q // 4]
    for q in range(10):
        E.append(WAIT(lneed=regs("v", 64 + 4 * q, 4)))
        for h in range(2): E.append(I(f"v_pk_add_f32 v[{16+4*q+2*h}:{16+4*q+2*h+1}], v[{16+4*q+2*h}:{16+4*q+2*h+1}], v[{64+4*q+2*h}:{64+4*q+2*h+1}]"))
        E.append(I(f"buffer_store_dwordx4 {V4(16+4*q)}, v{vOf}, {S4(sXs)}, {so(q)} offen offset:{(q%4)*1024} sc1"))
    for i in range(40): E.append(I(f"v_accvgpr_read_b32 v{160+i}, a{i}"))
    E.append(WAIT(lzero=True))
    for h in range(20): E.append(I(f"v_pk_add_f32 v[{160+2*h}:{161+2*h}], v[{160+2*h}:{161+2*h}], v[{104+2*h}:{105+2*h}]"))
    E += Is(f"""s_lshl_b32 s44, s2, 7
s_xor_b32 s45, s44, 128
v_mov_b32 v{t0}, 0
v_mov_b32 v{t1}, 1
s_waitcnt vmcnt(0)
s_barrier""") + stamp(3, True) + Is(f"""s_cmp_lg_u32 s{sWv}, 0
s_cbranch_scc1 K2_POLL
s_mov_b64 exec, 1
buffer_store_dword v{t1}, v{t0}, {S4(sFl)}, s44 offen sc1
s_mov_b64 exec, -1
K2_POLL:
buffer_load_dword v{t2}, v{t0}, {S4(sFl)}, s45 offen sc1
s_waitcnt vmcnt(0)
v_readfirstlane_b32 s46, v{t2}
s_nop 3
s_cmp_eq_u32 s46, 1
s_cbranch_scc1 K2_GO
s_sleep 1
s_branch K2_POLL
K2_GO:""") + stamp(4, True)
    order = [q for qt in range(5) for q in (qt, 5 + qt)]
    for q in order: E.append(I(f"buffer_load_dwordx4 {V4(64+4*q)}, v{vOf}, {S4(sXr)}, {so(q)} offen offset:{(q%4)*1024} sc1", dst=regs("v", 64 + 4 * q, 4)))
    for qt in range(5):
        E.append(WAIT(vneed=regs("v", 64 + 4 * (5 + qt), 4)))
        for q in (qt, 5 + qt):
            for h in range(2): E.append(I(f"v_pk_add_f32 v[{160+4*q+2*h}:{160+4*q+2*h+1}], v[{160+4*q+2*h}:{160+4*q+2*h+1}], v[{64+4*q+2*h}:{64+4*q+2*h+1}]"))
        a, b = 160 + 4 * qt, 160 + 4 * (5 + qt)
        E += Is(f"""v_cvt_pk_bf16_f32 v{a}, v{a}, v{a+1}
v_cvt_pk_bf16_f32 v{a+1}, v{a+2}, v{a+3}
v_cvt_pk_bf16_f32 v{a+2}, v{b}, v{b+1}
v_cvt_pk_bf16_f32 v{a+3}, v{b+2}, v{b+3}
s_mov_b32 s47, {qt*16*2560}
s_nop 0
v_permlane16_swap_b32 v{a}, v{a+2}
v_permlane16_swap_b32 v{a+1}, v{a+3}
buffer_store_dwordx4 {V4(a)}, v{vSt}, {S4(sOut)}, s47 offen""")
    E += stamp(5, True) + stamp_out("s[0:1]", 2, sWv, t0, 0x4100000, True)
    E += Is("K2_END:\ns_endpgm")
    B["epi"] = E
    trace = ["pro"] + ["loop"] * 6 + ["epi"]
    resolve_waits(B, trace)
    txt = {k: "\n".join(emit(v)).split("\n") for k, v in B.items()}
    errs = verify([l for b in trace for l in txt[b]])
    for e in errs: sys.stderr.write("K2 HAZARD " + e + "\n")
    return [l for b in ["pro", "loop", "epi"] for l in txt[b]], errs

def desc(name, vg=512, acc=256):
    return f""".p2align 6
.amdhsa_kernel {name}
  .amdhsa_next_free_vgpr {vg}
  .amdhsa_next_free_sgpr 102
  .amdhsa_accum_offset {acc}
  .amdhsa_group_segment_fixed_size 0
  .amdhsa_kernarg_size 104
  .amdhsa_user_sgpr_count 2
  .amdhsa_user_sgpr_kernarg_segment_ptr 1
  .amdhsa_system_sgpr_workgroup_id_x 1
  .amdhsa_float_denorm_mode_32 3
.end_amdhsa_kernel"""

def main():
    k1, e1 = kernel1(); k2, e2 = kernel2()
    ref = open("cdna_kernels/" + NAME + ".s.ref").read().split("\n")
    head = [l for l in ref if l.startswith(";") and "@launch" not in l and "Override launch" not in l and "grid=ceil" not in l]
    out = head + [f"; @launch kernel=attn_kernel grid=(256,1,1) block=(256,1,1) lds=163840",
                  f"; @launch kernel=oproj_kernel grid=(240,1,1) block=(256,1,1) lds=163840",
                  '.amdgcn_target "amdgcn-amd-amdhsa--gfx950"', ".text"]
    for nm, body in (("attn_kernel", k1), ("oproj_kernel", k2)):
        out += [f".globl {nm}", ".p2align 8", f".type {nm},@function", f"{nm}:"] + body
    out += ["K_CODE_END:", "s_endpgm", '.section .rodata,"a"', desc("attn_kernel"), desc("oproj_kernel")]
    open(sys.argv[1], "w").write("\n".join(out) + "\n")
    if e1 or e2: sys.exit(1)
main()
```

```python
import sys, math
from asmlib import *
from verify import verify

OPT = dict(nt_kv=1, nt_w=0, nt_x=0, nt_o=2, k2_nt_o=2, k2_nt_w=0, stamps=0, ovl=1, ne0=6, nc9=7, pf=1, cpf=1, kvpf=0, kvpos=0, kvc=0, tlb=0, ord7=0)
for a in sys.argv[2:]:
    k, v = a.split("="); OPT[k] = int(v)
NAME = "concat_heads__gqa_block_cached__gqa_block_cached__near_ridge"
MF = "v_mfma_f32_16x16x32_bf16"
def I(t, **kw): return Ins(t, **kw)
def Is(txt): return [Ins(t.strip()) for t in txt.strip().split("\n") if t.strip()]
def mfma(d, a, b, c): return Ins(f"{MF} {d}, {a}, {b}, {c}")
def V4(b): return f"v[{b}:{b+3}]"
def A4(b): return f"a[{b}:{b+3}]"

TILE = 24576; WS = 64 * 12288
X0 = 0; RING = 32768; X1 = 131072
def slot(i): return RING + i * TILE
vK = [[1, 2], [3, 4]]; KW = [0, 65536]
vV = [[5, 6, 7, 8], [9, 10, 11, 12]]; VW = [32768, 98304]
vXr = [[13, 14], [15, 16]]
vD = [17, 18]; vDkv = 19; vDw = 20; vDx = 21; vO = 22; vO3 = 23
vL = [24, 25, 26, 27]; vMi = [28, 29, 30, 31]; vT = 32
NEGM = 48; SP = 64; QF = 160
RCP = 48
def negm(qt): return NEGM + 4 * qt
def XY(par, kb, qt): return SP + 4 * ((par * 2 + kb) * 4 + qt)
def Z(kb, qt): return SP + 64 + 4 * (kb * 4 + qt)
def Qf(qt, s): return QF + 4 * (qt * 6 + s)
def Qb(qt, s):
    return SP + 4 * (qt * 6 + s)
def Oacc(t, qt): return 4 * (t * 4 + qt)
def Xf(n, kb, qt): return 32 * (n & 1) + 4 * (qt * 2 + kb)
FR = 192
def fq(n, f): return FR + 4 * ((f + 8 * (n & 1)) % 16)
sX = 4; sDA = 8; sDB = 12; sO = 16
sK = 20; sV = 22; sNb = 24; sNnum = 26; sNs = 27; sNd = 28; sXnum = 29; sN2 = 30; sMask = 32
sA = 34; sB = 35; sI = 39; sWoff = 40; sXoff = 41
sOs = [42, 43, 44, 45, 37, 38]; sT = 46; sItem = 47; sMode = 48; sFlag = 49; sC = 50
sWave = 52; sWg = 53; sT2 = 54; sT3 = 55; sThr = 56; sKA = 58
sLd = 4
sP1 = 60; vPf = 248; vPoll = 228
sWoP = 64; sOutP = 66; sWsP = 68; sSig = 70; sPfo = 71; sDb = 72; sCo = 76; sOn = 77; sSp = 78
FLG = 0x3000000; XCH = 0x3100000
def S4(b): return f"s[{b}:{b+3}]"
def S2(b): return f"s[{b}:{b+1}]"
BG = 76
NOV = range(BG, BG + 9)
NPRE_V = 10; NPRE_K = 6
OSTRIDE = 48 * 120 * 1024

def lastuse_pv(f): return 8 * (f >> 1) + 6 + (f & 1)
def lastuse_qk(f): kt, s = divmod(f, 6); return 24 * kt + 18 + (5 - s)

def reads_v(n, base):
    out = []
    for f in range(24):
        t, kb = f >> 1, f & 1
        r = fq(n, f)
        for hf in range(2):
            off = base + (4 * kb + 2 * hf) * 3072 + (t >> 2) * 1024
            w = 1 if off >= VW[1] else 0
            it = I(f"ds_read_b64_tr_b16 a[{r+2*hf}:{r+2*hf+1}], v{vV[w][t & 3]} offset:{off-VW[w]}", dst=regs("a", r + 2 * hf, 2)); it.f = f
            out.append(it)
    return out
def reads_k(n, base):
    out = []
    for f in range(24):
        kt, s = divmod(f, 6); r = fq(n, f)
        off = base + kt * 6144 + (s >> 1) * 1024
        w = 1 if off >= KW[1] else 0
        it = I(f"ds_read_b128 {A4(r)}, v{vK[w][s & 1]} offset:{off-KW[w]}", dst=regs("a", r, 4)); it.f = f
        out.append(it)
    return out
def reads_x(n):
    return [I(f"ds_read_b128 {A4(Xf(n, kb, qt))}, v{vXr[n & 1][kb]} offset:{qt*2048}", dst=regs("a", Xf(n, kb, qt), 4)) for qt in range(4) for kb in range(2)]

def dma(srd, soff, base, nt):
    n = " nt" if nt else ""
    out = []
    for p in range(3):
        m = I(f"s_add_u32 m0, s{sWoff}, {base + 896*p}")
        a = I(f"buffer_load_dwordx4 v{vD[0]}, {S4(srd)}, s{soff} offen offset:{p*128}{n} lds", dst={f"L{base}"}, after=[m])
        b = I(f"buffer_load_dwordx4 v{vD[1]}, {S4(srd)}, s{soff} offen offset:{p*128+3072}{n} lds", dst={f"L{base}"})
        out += [m, a, b]
    return out
def dma_w(m): return [I(f"s_mov_b32 s{sT2}, {m*WS}")] + dma(sDA, sT2, slot(m % 4), OPT["nt_w"])
def dma_k(i, base): return [I(f"s_mov_b32 s{sT2}, {i*TILE}")] + dma(sDA, sT2, base, OPT["nt_kv"])
def dma_v(i, base): return [I(f"s_mov_b32 s{sT2}, {i*TILE}")] + dma(sDB, sT2, base, OPT["nt_kv"])
def dma_n(m): return [I(f"s_mul_i32 s{sT2}, s{sNs}, {m}")] + dma(sDA, sT2, slot(m), OPT["nt_w"])
def hd(d): return d[:-6]
def tl(d): return d[-6:]
def dma_x(n):
    out = []; base = X1 if n & 1 else X0
    for j in range(8):
        if j % 4 == 0: out.append(I(f"s_add_u32 m0, s{sXoff}, {base + j*1024}"))
        out.append(I(f"s_mov_b32 s{sT}, {j*10240 - (j % 4)*1024 + n*128}"))
        out.append(I(f"buffer_load_dwordx4 v{vDx}, {S4(sX)}, s{sT} offen offset:{(j % 4)*1024}" + (" nt" if OPT["nt_x"] else "") + " lds", dst={f"X{n&1}_{j>>1}"}))
    return out

def phase(name, n, typ, mf, own, nxt, nxt_typ, pub, early, dmas, extra=(), post=(), early_hi=BG - 6, endneed=None):
    lu = lastuse_pv if typ == "v" else lastuse_qk
    rs = []
    if typ == "v":
        k0 = 48 - len(own)
        for j, it in enumerate(own):
            it.target = -18 + (k0 + j) * 88 / 48
            it.hi = min(8 * (it.f >> 1) - 6, BG - 5)
            if it.f >= 16: it.lo = lu(it.f - 16)
            it.hi = max(it.hi, it.lo)
    else:
        for j, it in enumerate(own):
            kt, s = divmod(it.f, 6)
            it.target = 24 * (kt - 1) + 1 + s * 2.5; it.hi = 24 * kt - 8
            if it.f >= 16: it.lo = lu(it.f - 16)
    rs += own
    bar = BAR(pub if isinstance(pub, set) else {f"L{pub}"}, lo=BG, hi=BG); rs.append(bar)
    for j, it in enumerate(nxt):
        it.lo = max(BG + 1, lu(it.f + 8)); it.after = [bar]
        it.target = BG + 1 + (j * 1.8 if nxt_typ == "v" else j * 1.5); it.hi = 95 if nxt_typ == "v" and j >= 4 else 88
    rs += nxt
    ws = []
    if typ == "v":
        for t in range(1, 12):
            if 8 * t - 1 >= BG: break
            ws.append(WAIT(lneed=regs("a", fq(n, 2 * t), 4) | regs("a", fq(n, 2 * t + 1), 4), lo=8 * t - 3, hi=8 * t - 1, target=8 * t - 2))
    else:
        for kt in range(1, 4):
            ws.append(WAIT(lneed=set().union(*[regs("a", fq(n, 6 * kt + s), 4) for s in range(6)]), lo=24 * kt - 3, hi=24 * kt - 1, target=24 * kt - 2))
    nf = 2 if nxt_typ == "v" else 6
    ws.append(WAIT(lneed=set().union(*[regs("a", fq(n + 1, f), 4) for f in range(nf)]) | (endneed or set()), lo=94, hi=95, target=94.5))
    ms = list(early)
    spread(ms, 1, early_hi)
    nv = sum(1 for it in dmas if it.kind == "vmem"); k = 0
    for it in dmas:
        it.lo = BG + 1 if it.kind == "vmem" else BG - 4
        it.target = BG + 2 + k * min(8.0, 17.0 / max(nv, 1)) - (0 if it.kind == "vmem" else 2.5)
        if it.kind == "vmem": it.after = it.after + [bar]; k += 1
    ms += dmas
    for it in post: it.lo = BG + 1; it.target = 90
    ms += list(post)
    return schedule(mf, [ws, rs, ms] + list(extra), novalu=NOV, name=name)

def softmax(par, kb, lo, hi, zdead=None, sub=None, los=None, skip=NOV):
    E = []; D = []; P = []
    for qt in range(4):
        x, z = XY(par, kb, qt), Z(kb, qt)
        src = [x, x + 1, x + 2, x + 3, z, z + 1, z + 2, z + 3]
        for pr in range(4):
            es = []
            for e in range(2):
                r = src[2 * pr + e]
                ex = I(f"v_exp_f32 v{r}, v{r}")
                if sub:
                    sb = I(f"v_add_f32 v{r}, v{r}, v{negm(qt)}", after=[sub[qt]], lo=los[qt][pr >> 1]); P.append(sb); ex.after = [sb]
                E.append(ex); es.append(ex)
                D.append(I(f"v_add_f32 v{vL[qt]}, v{vL[qt]}, v{r}", after=[ex]))
            c = I(f"v_cvt_pk_bf16_f32 v{x+pr}, v{src[2*pr]}, v{src[2*pr+1]}", after=es)
            if zdead: c.hi = zdead(qt)
            D.append(c)
    spread(E, lo, hi, skip)
    for e in E: e.hi = 94
    for d in D:
        d.target = max(a.target for a in d.after) + 1
        for a in d.after: a.hi = min(a.hi, d.hi - 1)
    for p, e in zip(P, E): p.target = e.target - 3; p.hi = e.hi - 1
    return ([P] if sub else []) + [E, D]

def mf_w(n):
    out = []
    for t in range(12):
        for qt in range(4):
            d = Qf(qt, t >> 1) if t % 2 == 0 else Qb(qt, t >> 1)
            for kb in range(2):
                out.append(mfma(V4(d), A4(fq(n, 2 * t + kb)), A4(Xf(n, kb, qt)), "0" if (n == 0 and kb == 0) else V4(d)))
    return out
def mf_qk(n, par, first=False):
    out = []
    for kt in range(4):
        for qt in range(4):
            d = XY(par, kt >> 1, qt) if kt % 2 == 0 else Z(kt >> 1, qt)
            order = range(6) if qt % 2 == 0 else range(5, -1, -1)
            for j, s in enumerate(order):
                c = V4(d) if j else ("0" if (first and kt < 2) else V4(negm(qt)))
                out.append(mfma(V4(d), A4(fq(n, 6 * kt + s)), V4(Qf(qt, s)), c))
    return out
def mf_pv(n, par, first=False):
    out = []
    for t in range(12):
        for qt in range(4):
            for kb in range(2):
                out.append(mfma(A4(Oacc(t, qt)), A4(fq(n, 2 * t + kb)), V4(XY(par, kb, qt)), "0" if (first and kb == 0) else A4(Oacc(t, qt))))
    return out

ETMP = [32, 40, 56]
def epi_unit(u, packed):
    s, qt = divmod(u, 4)
    tb = ETMP[u % 3] if not OPT["stamps"] else [32, 56][u % 2]
    out = []
    rc = RCP + 2 * qt
    for h in range(2):
        for j in range(4): out.append(I(f"v_accvgpr_read_b32 v{tb+4*h+j}, a{Oacc(2*s+h, qt)+j}"))
        if packed:
            for j in range(2): out.append(I(f"v_pk_mul_f32 v[{tb+4*h+2*j}:{tb+4*h+2*j+1}], v[{tb+4*h+2*j}:{tb+4*h+2*j+1}], v[{rc}:{rc+1}]"))
        else:
            for j in range(4): out.append(I(f"v_mul_f32 v{tb+4*h+j}, v{tb+4*h+j}, v{rc}"))
        for j in range(2): out.append(I(f"v_cvt_pk_bf16_f32 v{tb+2*h+j}, v{tb+4*h+2*j}, v{tb+4*h+2*j+1}"))
    out.append(I(f"buffer_store_dwordx4 {V4(tb)}, v{vO3 if qt == 3 else vO}, {S4(sO)}, s{sOs[s]} offen offset:{qt*1024}" + ["", " nt", " sc1", " sc0 sc1"][OPT["nt_o"]], dst={"OST"}))
    return out
def cvt_unit(s, qt, packed):
    a, b = Qf(qt, s), Qb(qt, s)
    out = []
    if packed:
        for r in (a, a + 2, b, b + 2): out.append(I(f"v_pk_mul_f32 v[{r}:{r+1}], v[{r}:{r+1}], {S2(sC)}"))
    else:
        for r in (a, a + 1, a + 2, a + 3, b, b + 1, b + 2, b + 3): out.append(I(f"v_mul_f32 v{r}, s{sC}, v{r}"))
    out += Is(f"""v_cvt_pk_bf16_f32 v{a}, v{a}, v{a+1}
v_cvt_pk_bf16_f32 v{a+1}, v{a+2}, v{a+3}
v_cvt_pk_bf16_f32 v{a+2}, v{b}, v{b+1}
v_cvt_pk_bf16_f32 v{a+3}, v{b+2}, v{b+3}""")
    sw = Is(f"v_permlane16_swap_b32 v{a}, v{a+2}\nv_permlane16_swap_b32 v{a+1}, v{a+3}")
    return out, sw

def pf():
    return [I(f"v_add_u32 v{vPf}, s{sPfo}, v{vO}")] + [I(f"buffer_load_dwordx4 {V4(252)}, v{vPf}, {S4(sP1)}, " + ("0" if j < 4 else f"s{sT3}") + f" offen offset:{(j % 4)*1024}", dst=regs("v", 252, 4)) for j in range(6)]

def lin(items):
    out = []
    for k, it in enumerate(items):
        out.append(it)
        if it.text.startswith("s_add_u32 m0") and items[k + 1].kind == "vmem": out.append(I("s_nop 0"))
    return out

def stamp(idx, k2=False):
    if not OPT["stamps"]: return []
    va, vb = (250, 251) if k2 else (46, 47)
    if idx < 0: sel = f"s_mul_i32 s92, s{sItem}, 24\ns_add_u32 s92, s92, s{sI}\ns_add_u32 s92, s92, 8"
    else: sel = f"s_mov_b32 s92, {idx}" if (k2 or idx >= 48) else f"s_mul_i32 s92, s{sItem}, 24\ns_add_u32 s92, s92, {idx}"
    return Is(f"""s_memtime s[90:91]
s_memrealtime s[94:95]
s_waitcnt lgkmcnt(0)
s_cselect_b32 s96, 1, 0
{sel}
s_mov_b32 s93, m0
s_mov_b32 m0, s92
v_writelane_b32 v{va}, s90, m0
v_writelane_b32 v{vb}, s94, m0
s_mov_b32 m0, s93
s_cmp_lg_u32 s96, 0""")
def stamp_out(karg, wg, wave, tmp, base, k2=False):
    if not OPT["stamps"]: return []
    va = 250 if k2 else 46
    return Is(f"""s_load_dwordx2 s[80:81], {karg}, 96
s_waitcnt lgkmcnt(0)
s_add_u32 s80, s80, {base}
s_addc_u32 s81, s81, 0
s_mov_b32 s82, 0x100000
s_mov_b32 s83, 0x20000
s_lshl_b32 s84, s{wg}, 2
s_add_u32 s84, s84, s{wave}
s_lshl_b32 s84, s84, 9
v_lshlrev_b32 v{tmp}, 3, v0
buffer_store_dwordx2 v[{va}:{va+1}], v{tmp}, s[80:83], s84 offen""")


def kernel1():
    B = {}
    c = math.log2(math.e) / math.sqrt(192.0)
    import struct
    cbits = struct.unpack("<I", struct.pack("<f", c))[0]
    B["entry"] = Is(f"""
s_cmp_ge_u32 s2, 256
s_cbranch_scc1 K1_END
s_mov_b32 s{sWg}, s2
s_mov_b64 {S2(sKA)}, s[0:1]
s_mov_b32 s{sMode}, 0
s_mov_b32 s{sSig}, 0
s_mov_b32 s{sSp}, 0""") + (Is(f"""
s_getpc_b64 s[90:91]
K1_PC:
s_lshr_b32 s92, s2, 3
s_lshl_b32 s92, s92, 12
v_lshl_add_u32 v36, v0, 4, s92
v_min_u32 v36, (K_CODE_END-K1_PC-32)&0xfffffff0, v36
s_and_b32 s90, s90, 0xfffffff0
v_mov_b32 v37, s91
v_add_co_u32 v36, vcc, s90, v36
s_nop 1
v_addc_co_u32 v37, vcc, 0, v37, vcc""") + [I("global_load_dwordx4 v[40:43], v[36:37], off", dst=regs("v", 40, 4))] if OPT["cpf"] else []) + Is(f"""
v_lshrrev_b32 v{vT}, 6, v0
v_and_b32 v0, 63, v0
v_mov_b32 v47, 0
v_readfirstlane_b32 s{sWave}, v{vT}
""") + stamp(48)
    P = Is("K1_PRO:") + Is(f"""
s_load_dwordx4 s[4:7], {S2(sKA)}, 0
s_load_dwordx4 s[8:11], {S2(sKA)}, 16
s_load_dwordx4 s[12:15], {S2(sKA)}, 32
s_load_dwordx4 s[16:19], {S2(sKA)}, 48
s_load_dwordx4 s[20:23], {S2(sKA)}, 64
s_load_dwordx4 s[24:27], {S2(sKA)}, 80
s_load_dwordx2 {S2(sWsP)}, {S2(sKA)}, 96
s_lshr_b32 s{sT2}, s{sWg}, 3
s_and_b32 s88, s{sWg}, 1
s_and_b32 s89, s{sT2}, 7
s_lshl_b32 s82, s88, 3
s_add_u32 s84, s82, s89
s_bfe_u32 s83, s{sWg}, 0x10001
s_lshl_b32 s83, s83, 2
s_lshr_b32 s82, s{sT2}, 3
s_add_u32 s{sT}, s83, s82
s_mul_i32 s82, s{sT}, 307200
s_lshl_b32 s83, s{sT}, 5
s_add_u32 s83, s83, s84
s_mul_i32 s83, s83, 393216
s_mul_i32 s84, s84, 384
s_bfe_u32 s{sT3}, s{sWg}, 0x10002
s_lshl_b32 s85, s{sT3}, 5
s_lshl_b32 s86, s88, 4
s_add_u32 s85, s85, s86
s_add_u32 s85, s85, s89
s_mul_i32 s85, s85, 720
s_mul_i32 s86, s{sT}, 15
s_add_u32 s85, s85, s86
s_lshl_b32 s85, s85, 10
s_and_b32 s88, s{sWg}, 3
s_lshl_b32 s89, s{sT2}, 2
s_add_u32 s88, s88, s89
s_mul_i32 s{sWoff}, s{sWave}, 6144
s_lshl_b32 s{sXoff}, s{sWave}, 13
""")
    t0, t1, t2, t3 = vT, vT + 1, vT + 2, vT + 3
    P += Is(f"""
v_lshrrev_b32 v{t0}, 3, v0
v_and_b32 v{t1}, 7, v0
v_and_b32 v{t2}, 6, v{t0}
v_xor_b32 v{t1}, v{t1}, v{t2}
v_mul_u32_u24 v{vDkv}, 384, v{t0}
v_lshl_add_u32 v{vDkv}, v{t1}, 4, v{vDkv}
v_add_u32 v{vDkv}, s{sWoff}, v{vDkv}
s_lshl_b32 s86, s{sWave}, 6
v_add_u32 v{t2}, s86, v{t0}
v_mul_u32_u24 v{vDx}, 1280, v{t2}
v_lshl_add_u32 v{vDx}, v{t1}, 4, v{vDx}
v_and_b32 v{t2}, 4, v{t1}
v_and_b32 v{t3}, 1, v{t1}
v_lshl_or_b32 v{t2}, v{t3}, 1, v{t2}
v_bfe_u32 v{t3}, v{t1}, 1, 1
v_or_b32 v{t1}, v{t2}, v{t3}
v_and_b32 v{t2}, 3, v{t0}
v_lshrrev_b32 v{t3}, 2, v{t0}
v_lshl_add_u32 v{t2}, v{t3}, 3, v{t2}
s_lshr_b32 s86, s{sWave}, 1
s_lshl_b32 s86, s86, 5
s_and_b32 s87, s{sWave}, 1
s_lshl_b32 s87, s87, 2
s_add_u32 s86, s86, s87
v_add_u32 v{t2}, s86, v{t2}
v_mul_u32_u24 v{vDw}, 12288, v{t2}
v_lshl_add_u32 v{vDw}, v{t1}, 4, v{vDw}
v_mov_b32 v{vD[0]}, v{vDw}
v_add_u32 v{vD[1]}, {196608-3072}, v{vDw}
s_waitcnt lgkmcnt(0)
s_cmp_eq_u32 s{sT3}, 0
s_cselect_b64 s[90:91], s[4:5], s[14:15]
s_cselect_b64 s[92:93], s[6:7], s[16:17]
s_cselect_b64 s[94:95], s[8:9], s[18:19]
s_cselect_b64 s[96:97], s[10:11], s[20:21]
s_cselect_b64 {S2(sWoP)}, s[12:13], s[22:23]
s_mov_b64 {S2(sOutP)}, s[24:25]
s_mov_b64 {S2(sDb)}, s[26:27]
s_add_u32 s{sX}, s90, s82
s_addc_u32 s{sX+1}, s91, 0
s_mov_b32 s{sX+2}, 307200
s_mov_b32 s{sX+3}, 0x20000
s_add_u32 s{sDA}, s96, s84
s_addc_u32 s{sDA+1}, s97, 0
s_sub_u32 s{sDA+2}, 7864320, s84
s_mov_b32 s{sDA+3}, 0x20000
""")
    P += lin(dma_w(0)) + dma_x(0)
    P += Is(f"""
s_add_u32 s{sK}, s92, s83
s_addc_u32 s{sK+1}, s93, 0
s_add_u32 s{sV}, s94, s83
s_addc_u32 s{sV+1}, s95, 0
s_mov_b32 s{sDb+2}, 256
s_mov_b32 s{sDb+3}, 0x20000
s_bfe_u32 s{sCo}, s{sWg}, 0x20001
s_lshl_b32 s{sCo}, s{sCo}, 6
s_mov_b32 s{sPfo}, s{sXoff}
s_cmp_eq_u32 s{sSig}, 0
s_cselect_b32 s{sOn}, {5*122880+15*1024}, 0
s_add_u32 s{sNb}, s{sDA}, 6144
s_addc_u32 s{sNb+1}, s{sDA+1}, 0
s_sub_u32 s{sNnum}, s{sDA+2}, 6144
s_mov_b32 s{sNs}, {WS}
s_mov_b32 s{sNd}, {196608-3072}
s_mov_b64 {S2(sMask)}, 0
s_mov_b32 s{sXnum}, 307200
s_mul_i32 s86, s88, 61440
s_add_u32 s{sN2}, s{sWoP}, s86
s_addc_u32 s{sN2+1}, s{sWoP+1}, 0
s_mul_i32 s86, s88, {4*12288}
s_add_u32 s86, s86, {128*12288+6144}
s_add_u32 s{sP1}, s96, s86
s_addc_u32 s{sP1+1}, s97, 0
s_mov_b32 s{sP1+2}, {3*12288+6144}
s_mov_b32 s{sP1+3}, 0x20000
s_mov_b32 s{sT3}, 4096
s_add_u32 s{sO}, s{sWsP}, s85
s_addc_u32 s{sO+1}, s{sWsP+1}, 0
s_sub_u32 s{sO}, s{sO}, {OSTRIDE}
s_subb_u32 s{sO+1}, s{sO+1}, 0
s_mov_b32 s{sO+2}, 0
s_mov_b32 s{sO+3}, 0x20000
s_lshl_b32 s86, s{sWg}, 7
s_add_u32 s86, s86, {FLG}
s_add_u32 s{sDB}, s{sWsP}, s86
s_addc_u32 s{sDB+1}, s{sWsP+1}, 0
s_mov_b32 s{sDB+2}, 128
s_mov_b32 s{sDB+3}, 0x20000
s_mov_b32 s{sItem}, 0
s_mov_b32 s{sFlag}, 0
s_mov_b32 s{sC}, {cbits:#x}
s_mov_b32 s{sC+1}, {cbits:#x}
s_mov_b32 s{sThr}, 0x4e800000
""") + [I(f"s_mov_b32 s{sOs[s]}, {s*122880}") for s in range(6)]
    kb0, vb0 = vK[0][0], vV[0][0]
    P += Is(f"""
v_and_b32 v{t0}, 15, v0
v_lshrrev_b32 v{t1}, 4, v0
v_and_b32 v{t2}, 6, v{t0}
v_xor_b32 v{t3}, v{t2}, v{t1}
v_lshlrev_b32 v{t3}, 4, v{t3}
v_lshl_add_u32 v{vXr[0][0]}, v{t0}, 7, v{t3}
v_add_u32 v{vXr[0][0]}, s{sXoff}, v{vXr[0][0]}
v_xor_b32 v{vXr[0][1]}, 64, v{vXr[0][0]}
v_add_u32 v{vXr[1][0]}, {X1}, v{vXr[0][0]}
v_add_u32 v{vXr[1][1]}, {X1}, v{vXr[0][1]}
v_lshrrev_b32 v{t2}, 3, v{t0}
v_mul_u32_u24 v{kb0}, 3072, v{t2}
v_and_b32 v{t2}, 7, v{t0}
v_lshl_add_u32 v{kb0}, v{t2}, 7, v{kb0}
v_add_u32 v{kb0}, v{kb0}, v{t3}
v_xor_b32 v{vK[0][1]}, 64, v{kb0}
v_add_u32 v{vK[1][0]}, {KW[1]}, v{kb0}
v_add_u32 v{vK[1][1]}, {KW[1]}, v{vK[0][1]}
v_lshrrev_b32 v{t2}, 5, v0
v_mul_u32_u24 v{vb0}, 3072, v{t2}
v_bfe_u32 v{t2}, v0, 2, 3
v_lshl_add_u32 v{vb0}, v{t2}, 7, v{vb0}
v_and_b32 v{t2}, 6, v{t2}
v_bfe_u32 v{t3}, v0, 1, 1
v_xor_b32 v{t2}, v{t2}, v{t3}
v_lshl_add_u32 v{vb0}, v{t2}, 4, v{vb0}
v_and_b32 v{t2}, 1, v0
v_lshl_add_u32 v{vb0}, v{t2}, 3, v{vb0}
v_add_u32 v{vb0}, {VW[0]}, v{vb0}
v_xor_b32 v{vV[0][1]}, 32, v{vb0}
v_xor_b32 v{vV[0][2]}, 64, v{vb0}
v_xor_b32 v{vV[0][3]}, 96, v{vb0}
""") + [I(f"v_add_u32 v{vV[1][i]}, {VW[1]-VW[0]}, v{vV[0][i]}") for i in range(4)] + Is(f"""
s_lshl_b32 s86, s{sWave}, 12
v_lshlrev_b32 v{vO}, 4, v0
v_add_u32 v{vO}, s86, v{vO}
s_cmp_eq_u32 s{sWave}, 3
s_cselect_b32 s86, 0x80000000, 0
v_add_u32 v{vO3}, s86, v{vO}
s_mov_b32 s87, 0xff800000
s_cselect_b32 s86, 0x71000000, s87
v_mov_b32 v{vMi[0]}, s87
v_mov_b32 v{vMi[1]}, s87
v_mov_b32 v{vMi[2]}, s87
v_mov_b32 v{vMi[3]}, s86
""")
    P += [I(f"v_mov_b32 v{vL[q]}, 0") for q in range(4)]
    P += lin(dma_w(1)) + dma_x(1) + lin(hd(dma_w(2)))
    P += [I(f"buffer_store_dwordx4 {V4(vL[0])}, v{vO}, {S4(sDB)}, 0 offen sc1", dst={"OST"})]
    P += [BAR({f"L{slot(0)}"})]
    P += reads_v(0, slot(0))[:NPRE_V]
    B["pro"] = P
    XALL = lambda n: {f"X{n&1}_{q}" for q in range(4)}
    B["item"] = Is("K1_ITEM:") + stamp(0) + [WAIT(vneed=XALL(0))] + reads_x(0) + [WAIT(lzero=True)]
    NE0 = OPT["ne0"]
    EW = {0: list(range(NE0, 8))}
    rest = list(range(8, 24)); per = [3, 3, 2, 2, 2, 2, 2]
    for n in range(1, 8): EW[n] = rest[:per[n - 1]]; rest = rest[per[n - 1]:]
    NC9 = OPT["nc9"]
    cunits = [(s, qt) for s in range(6) for qt in range(4)]
    for n in range(10):
        own = reads_v(n, slot(n % 4))[NPRE_V:]
        early = []; extra = []
        if n < 9: nxt = reads_v(n + 1, slot((n + 1) % 4))[:NPRE_V]; nt_ = "v"; pub = slot((n + 1) % 4)
        else: nxt = reads_k(10, X0)[:NPRE_K]; nt_ = "k"; pub = X0
        def wtile(n): return {7: dma_k(0, X0), 8: dma_k(1, slot(2)), 9: dma_v(0, slot(3))}.get(n) or dma_w(n + 3)
        early += tl(wtile(n - 1))
        if n == 7:
            early += Is(f"""s_mov_b64 {S2(sDA)}, {S2(sK)}
s_mov_b32 s{sDA+2}, 393216
s_mov_b64 {S2(sDB)}, {S2(sV)}
s_mov_b32 s{sDB+2}, 393216
v_mov_b32 v{vD[0]}, v{vDkv}
v_mov_b32 v{vD[1]}, v{vDkv}""")
        if n < 8: early += dma_x(n + 2)
        es = []
        if OPT["ovl"]:
            for u in EW.get(n, []): es += epi_unit(u, False)
            if es: extra.append(spread(es, 0, 56 if n == 0 else 95, NOV))
        if n < 9:
            xr = reads_x(n + 1); st = []
            x0 = 58 if n == 0 else 46
            for q in range(4):
                if q % 2 == 0: st.append(WAIT(vneed={f"X{(n+1)&1}_{q}", f"X{(n+1)&1}_{q+1}"}))
                st += xr[2 * q:2 * q + 2]
            spread(st, x0, BG - 5)
            if n == 0 and es:
                for it in xr: it.after = [es[-1]]
            extra.append(st)
        if n == 9:
            pub = {f"L{X0}", "OST"}
            fl = Is(f"""v_mov_b32 v{vT}, s{sWave}
v_lshlrev_b32 v{vT}, 2, v{vT}
v_mov_b32 v{vT+1}, s{sFlag}""") + [Ins(f"ds_write_b32 v{vT}, v{vT+1} offset:{X0+TILE}")]
            fl[-1].cost = 8
            extra.append(spread(fl, 0, 14))
        if n == 9 and NC9:
            cs = []; sw = []
            for (s, qt) in cunits[:NC9]:
                a, b = cvt_unit(s, qt, False)
                a[0].lo = 16 * s + 8 + 2 * qt + 1 + 8
                for x in b: x.after = [a[-1]]; x.dly = 1
                cs += a; sw += b
            spread(cs, 17, 92, NOV)
            for x in sw: x.target = x.after[0].target + 2
            extra += [cs, sw]
        d = hd(wtile(n))
        B[f"w{n}"] = (stamp(8 + n) if OPT["stamps"] == 2 else []) + phase(f"w{n}", n, "v", mf_w(n), own, nxt, nt_, pub, early, d, extra, early_hi=56 if n == 8 else 70)
    C = stamp(1) + Is(f"v_mov_b32 v{vT+2}, 0") + [I(f"ds_read_b128 {V4(vT+4)}, v{vT+2} offset:{X0+TILE}", dst=regs("v", vT + 4, 4))]; pend = []
    dm = lin(tl(dma_v(0, slot(3))))
    for k, (s, qt) in enumerate(cunits[NC9:]):
        a, b = cvt_unit(s, qt, True)
        if k % 4 == 1:
            while dm:
                x = dm.pop(0); C.append(x)
                if x.kind == "vmem": break
        C += a[:4] + pend + a[4:]; pend = b
    C += dm + [WAIT(lzero=True)] + Is(f"""v_or_b32 v{vT+4}, v{vT+4}, v{vT+5}
v_or3_b32 v{vT+4}, v{vT+4}, v{vT+6}, v{vT+7}
s_cmp_lt_u32 s{sSig}, s{sItem}
v_readfirstlane_b32 s80, v{vT+4}
s_cbranch_scc1 K1_SIG
K1_SIGRET:""")
    C += Is(f"s_cmp_lg_u32 s{sMode}, 0\ns_nop 0") + pend + Is("s_cbranch_scc1 K1_MAXPASS\nK1_MAXRET:\ns_nop 0") + stamp(2)
    B["cvt"] = C
    M = []; last = []
    for qt in range(4):
        x = XY(0, 0, qt); m = vT + 2 * qt; t = m + 1
        a = I(f"v_max3_f32 v{m}, v{x}, v{x+1}, v{x+2}", lo=6 * qt + 13)
        b = I(f"v_max3_f32 v{m}, v{m}, v{x+3}, v{vMi[qt]}")
        c_ = I(f"v_mov_b32 v{t}, v{m}")
        d = I(f"v_permlane16_swap_b32 v{m}, v{t}", after=[c_], dly=1)
        e = I(f"v_max_f32 v{m}, v{m}, v{t}")
        f = I(f"v_mov_b32 v{t}, v{m}")
        g = I(f"v_permlane32_swap_b32 v{m}, v{t}", after=[f], dly=1)
        h = I(f"v_max_f32 v{m}, v{m}, v{t}")
        ns = [I(f"v_sub_f32 v{negm(qt)+i}, 0, v{m}", hi=48 + 6 * qt - 3) for i in range(4)]
        st = [a, b, c_, d, e, f, g, h] + ns
        for j, it in enumerate(st): it.target = 6 * qt + 13 + j * 0.5
        M.append(st); last.append(ns[0])
    sm = softmax(0, 0, 26, 93, sub=last, los=[[0, 24 + 6 * qt + 13] for qt in range(4)])
    early = Is(f"""s_mov_b32 s{sA}, {3*TILE}
s_mov_b32 s{sB}, {2*TILE}
s_mov_b32 s{sI}, 0
s_add_u32 s{sO}, s{sO}, {OSTRIDE}
s_addc_u32 s{sO+1}, s{sO+1}, 0
s_mov_b32 s{sO+2}, s{sOn}
s_mov_b32 s{sOn}, {5*122880+15*1024}""") + dma_k(2, slot(0))
    B["qk0"] = phase("qk0", 10, "k", mf_qk(10, 0, True), reads_k(10, X0)[NPRE_K:], reads_k(11, slot(2))[:NPRE_K], "k", slot(2), early,
                     hd(dma_v(1, slot(1))), M + sm, early_hi=70) + stamp(3)
    def half(nm, par, mode):
        ks, vs, kn, vp = slot(2 * par), slot(2 * par + 1), slot(2 - 2 * par), slot(3 - 2 * par)
        kd = lambda: dma(sDA, sA, ks, OPT["nt_kv"])
        vd = lambda b: dma(sDB, sB, b, OPT["nt_kv"])
        last = mode == "last"
        if mode == "first": early = tl(dma_v(1, slot(1)))
        elif last and par: early = tl(dma_n(0)) + Is(f"s_mov_b32 s{sX+2}, s{sXnum}") + dma_x(0)
        else: early = tl(vd(vp)) + Is(f"s_add_u32 s{sB}, s{sB}, {TILE}")
        qtile = (lambda: dma_n(1) if par else dma_v(15, X1)) if last else kd
        q = phase("qk" + nm, 11, "k", mf_qk(11, par), reads_k(11, ks)[NPRE_K:], reads_v(12, vs)[:NPRE_V], "v", vs, early, hd(qtile()),
                  softmax(1 - par, 1, 0, BG - 2, zdead=lambda qt: 72 + 6 * qt - 1), early_hi=72)
        post = []
        if par and mode == "loop": post += Is(f"s_add_u32 s{sI}, s{sI}, 1\ns_cmp_lg_u32 s{sI}, 6")
        early = tl(qtile()) + ([] if last else Is(f"s_add_u32 s{sA}, s{sA}, {TILE}"))
        if last and par == 0:
            early += Is(f"""s_mov_b64 {S2(sDA)}, {S2(sNb)}
s_mov_b32 s{sDA+2}, s{sNnum}
v_cndmask_b32 v{vD[0]}, v{vDw}, v{vDkv}, {S2(sMask)}
v_add_u32 v{vD[1]}, s{sNd}, v{vD[0]}""")
        if last and par: nxt, nty, pub = reads_v(41, X1)[:NPRE_V], "v", X1
        else: nxt, nty, pub = reads_k(11, kn)[:NPRE_K], "k", kn
        p = phase("pv" + nm, 12, "v", mf_pv(12, 1 - par, mode == "first"), reads_v(12, vs)[NPRE_V:], nxt, nty, pub, early,
                  hd(dma_n(2 * par) if last else vd(vs)), softmax(par, 0, 0, 93), post=post, early_hi=72)
        return q + p
    B["peel"] = half("1", 1, "first")
    B["loop"] = Is(".p2align 6\nK1_L:") + (stamp(-1) if OPT["stamps"] == 4 else []) + half("e", 0, "loop") + half("o", 1, "loop") + Is("s_cbranch_scc1 K1_L")
    B["last"] = (stamp(-1) if OPT["stamps"] == 4 else []) + half("14", 0, "last") + half("15", 1, "last")
    T = stamp(4)
    E, D = softmax(1, 1, 0, 93)
    di = 0
    for j in range(0, 32, 2):
        T += E[j:j + 2]
        if j >= 2: T += D[di:di + 3]; di += 3
    T.append(I("s_nop 0"))
    T += D[di:]
    T += [I(f"v_mov_b32 v{vT+q}, v{vL[q]}") for q in range(4)]
    T += [I(f"v_permlane16_swap_b32 v{vL[q]}, v{vT+q}") for q in range(4)]
    T += [I(f"v_add_f32 v{vL[q]}, v{vL[q]}, v{vT+q}") for q in range(4)]
    B["tail"] = T
    R = []
    c2 = [I(f"v_mov_b32 v{vT+q}, v{vL[q]}") for q in range(4)]
    d2 = [I(f"v_permlane32_swap_b32 v{vL[q]}, v{vT+q}", after=[c2[q]], dly=1) for q in range(4)]
    R = c2 + d2 + [I(f"v_add_f32 v{vL[q]}, v{vL[q]}, v{vT+q}") for q in range(4)]
    rc = [I(f"v_rcp_f32 v{RCP+2*q}, v{vL[q]}") for q in range(4)]
    R += rc + [I(f"v_cmp_ngt_f32 {S2(80+2*q)}, s{sThr}, v{vL[q]}") for q in range(4)]
    R += [I(f"v_mov_b32 v{RCP+2*q+1}, v{RCP+2*q}") for q in range(4)] + [I(f"v_mov_b32 v{vL[q]}, 0") for q in range(4)]
    spread(R, 0, 24)
    for it in R: it.hi = 95
    es = []
    for u in range(NE0 if OPT["ovl"] else 0):
        e = epi_unit(u, False); e[0].lo = 16 * (u // 4) + 8 + 2 * (u % 4) + 1 + 8; es += e
    spread(es, 24, 95, NOV)
    post = Is(f"""s_or_b64 s[80:81], s[80:81], s[82:83]
s_or_b64 s[84:85], s[84:85], s[86:87]
s_or_b64 s[80:81], s[80:81], s[84:85]
s_or_b32 s80, s80, s81
s_or_b32 s{sFlag}, s{sFlag}, s80""")
    post[0].after = [x for x in R if x.text.startswith("v_cmp")][-1:]; post[0].dly = 2
    early = pf() + [I(f"buffer_load_dwordx4 {V4(vPoll)}, off, {S4(sDb)}, s{sCo} sc1", dst=regs("v", vPoll, 4))] + Is(f"""s_mov_b32 s{sXnum}, 0
s_mov_b64 {S2(sNb)}, {S2(sN2)}
s_mov_b32 s{sNnum}, {2*TILE}
s_mov_b32 s{sNs}, {TILE}
s_mov_b32 s{sNd}, 0
s_mov_b64 {S2(sMask)}, -1
s_add_u32 s{sP1}, s{sN2}, {2*TILE}
s_addc_u32 s{sP1+1}, s{sN2+1}, 0
s_mov_b32 s{sP1+2}, 12288
s_lshl_b32 s{sPfo}, s{sWave}, 11
s_add_u32 s{sK}, s{sK}, {16*393216}
s_addc_u32 s{sK+1}, s{sK+1}, 0
s_add_u32 s{sV}, s{sV}, {16*393216}
s_addc_u32 s{sV+1}, s{sV+1}, 0""")
    B["pv15"] = phase("pv15", 41, "v", mf_pv(41, 1), reads_v(41, X1)[NPRE_V:], reads_v(0, slot(0))[:NPRE_V], "v", slot(0), early, dma_x(1), [R + es], post=post) + stamp(5)
    nxtitem = Is(f"s_add_u32 s{sItem}, s{sItem}, 1\ns_cmp_lt_u32 s{sItem}, 2\ns_cbranch_scc1 K1_ITEM")
    B["br"] = stamp(6) + nxtitem
    k2trace = oproj(B, [epi_unit(u, True) for u in range(NE0, 24)], {f"L{slot(2)}"} | XALL(1))
    B["sig"] = Is(f"""K1_SIG:
s_cmp_lg_u32 s{sMode}, 0
s_cselect_b32 s80, 0, s80
s_cmp_lg_u32 s80, 0
s_cbranch_scc1 K1_SIGRET
s_mov_b32 s{sSig}, 1
s_cmp_lg_u32 s{sWave}, 0
s_cbranch_scc1 K1_SIGRET
s_and_b32 s80, s{sWg}, 1
s_lshl_b32 s80, s80, 2
s_add_u32 s80, s80, s{sCo}
v_mov_b32 v{vT+4}, 1
s_mov_b64 exec, 1
buffer_atomic_add v{vT+4}, off, {S4(sDb)}, s80
s_mov_b64 exec, -1
s_branch K1_SIGRET""")
    X = Is(f"""K1_MAXPASS:
v_and_b32 v{vT}, 15, v0
v_lshrrev_b32 v{vT+1}, 4, v0
v_mul_u32_u24 v{vT}, 384, v{vT}
v_lshl_add_u32 v{vT}, v{vT+1}, 4, v{vT}
s_mov_b32 s{sT}, 0""") + [I(f"v_mov_b32 v{vMi[q]}, 0xff800000") for q in range(4)] + Is("K1_MAXL:")
    for s in range(6): X.append(I(f"buffer_load_dwordx4 {V4(SP+4*s)}, v{vT}, {S4(sDA)}, s{sT} offen offset:{s*64}"))
    X.append(I("s_waitcnt vmcnt(0)"))
    for qt in range(4):
        for s in range(6): X.append(mfma(V4(SP + 32 + 4 * qt), V4(SP + 4 * s), V4(Qf(qt, s)), V4(SP + 32 + 4 * qt) if s else "0"))
    X.append(I("s_nop 7"))
    for qt in range(4):
        d = SP + 32 + 4 * qt
        X += Is(f"v_max3_f32 v{vMi[qt]}, v{vMi[qt]}, v{d}, v{d+1}\nv_max3_f32 v{vMi[qt]}, v{vMi[qt]}, v{d+2}, v{d+3}")
    X += Is(f"s_add_u32 s{sT}, s{sT}, 6144\ns_cmp_lt_u32 s{sT}, 393216\ns_cbranch_scc1 K1_MAXL\ns_branch K1_MAXRET")
    B["maxpass"] = X
    item = ["item"] + [f"w{n}" for n in range(10)] + ["cvt", "qk0", "peel"] + ["loop"] * 6 + ["last", "tail", "pv15", "br"]
    trace = ["entry", "pro"] + item + item + k2trace
    layout = ["entry", "pro", "item"] + [f"w{n}" for n in range(10)] + ["cvt", "qk0", "peel", "loop", "last", "tail", "pv15", "br", "k2pro", "k2loop", "k2epi", "k2side", "sig", "maxpass"]
    resolve_waits(B, trace)
    txt = {k: "\n".join(emit(v)).split("\n") for k, v in B.items()}
    errs = verify([l for b in trace for l in txt[b]])
    tr2 = ["entry", "pro"] + item[:12] + ["maxpass", "maxpass"] + item[12:]
    errs += verify([l for b in tr2 for l in txt[b]])
    for e in errs: sys.stderr.write("K1 HAZARD " + e + "\n")
    return [l for b in layout for l in txt[b]], errs

def oproj(B, units, dummies):
    vR = [1, 2, 3, 4]; vDm = 5; vOf = 6; vSt = 7; vW = 8; vRd = 9; t0, t1, t2, t3 = 10, 11, 12, 13; vP2 = 14
    OB = 64
    def Of(d, kb, qt): return OB + 40 * (d % 4) + 4 * (kb * 5 + qt)
    def acc(t, qt): return 4 * (t * 5 + qt)
    WF = 192
    def wq(f): return WF + 4 * f
    sW_ = 4; sOo = 8; sOut = 12; sXs = 20; sXr = 24; sFl = 28
    sLb = 32; sWo = [33, 34]; sOo0 = 35; sOo1 = 36; sCnt = 39; sTt = 46; sJ = 40; sWa = 41; sWb = 54; sMy = 50; sC1 = 51; sJob = 55
    sWv = sWave
    P = [WAIT(vneed=dummies, lzero=True)] + Is(f"""
s_barrier
s_lshl_b32 s80, s{sWave}, 2
s_add_u32 s80, s80, {X1}
v_mov_b32 v{t0}, s80
v_mov_b32 v{t1}, s{sFlag}
v_mov_b32 v{vW}, {X1}
ds_write_b32 v{t0}, v{t1}
s_lshr_b32 s{sJob}, s{sWg}, 3
s_bfe_u32 s82, s{sWg}, 0x10002
s_bfe_u32 s83, s{sWg}, 0x10001
s_and_b32 s80, s{sWg}, 1
s_mul_i32 s84, s{sJob}, 52
s_lshr_b32 s84, s84, 8
s_mul_i32 s85, s84, 5
s_sub_u32 s85, s{sJob}, s85
s_lshr_b32 s{sWa}, s{sWv}, 1
s_and_b32 s{sWb}, s{sWv}, 1
s_mul_i32 s86, s83, 60
s_mul_i32 s87, s84, 10
s_add_u32 s86, s86, s87
s_mul_i32 s87, s{sWa}, 5
s_add_u32 s86, s86, s87
s_lshl_b32 s{sLb}, s{sWb}, 16
s_lshl_b32 s87, s{sWa}, 12
s_add_u32 s{sMy}, s{sLb}, s87
v_lshrrev_b32 v{t0}, 3, v0
v_and_b32 v{t1}, 7, v0
v_and_b32 v{t2}, 6, v{t0}
v_xor_b32 v{t1}, v{t1}, v{t2}
v_and_b32 v{t2}, 4, v{t1}
v_and_b32 v{t3}, 1, v{t1}
v_lshl_or_b32 v{t2}, v{t3}, 1, v{t2}
v_bfe_u32 v{t3}, v{t1}, 1, 1
v_or_b32 v{t1}, v{t2}, v{t3}
v_mul_u32_u24 v{vDm}, 1280, v{t0}
v_lshl_add_u32 v{vDm}, v{t1}, 4, v{vDm}
v_lshlrev_b32 v{vOf}, 4, v0
s_mul_i32 s89, s80, {1536*1280}
s_mul_i32 s88, s{sWb}, {64*1280}
s_add_u32 s89, s89, s88
s_mul_i32 s88, s{sWa}, {32*1280}
s_add_u32 s89, s89, s88
s_lshl_b32 s88, s80, 7
s_add_u32 s{sWo[0]}, s89, s88
s_xor_b32 s88, s88, 128
s_add_u32 s{sWo[1]}, s89, s88
s_mul_i32 s{sOo0}, s{sWb}, {2*122880}
s_add_u32 s{sOo1}, s{sOo0}, 122880
s_lshl_b32 s88, s85, 8
s_add_u32 s{sW_}, s{sWoP}, s88
s_addc_u32 s{sW_+1}, s{sWoP+1}, 0
s_mul_i32 s89, s80, {1536*1280}
s_add_u32 s89, s89, {4608*1280}
s_sub_u32 s{sW_+2}, s89, s88
s_mov_b32 s{sW_+3}, 0x20000
s_lshl_b32 s88, s82, 1
s_add_u32 s88, s88, s80
s_mul_i32 s88, s88, {96*120}
s_add_u32 s88, s88, s86
s_lshl_b32 s88, s88, 10
s_add_u32 s{sOo}, s{sWsP}, s88
s_addc_u32 s{sOo+1}, s{sWsP+1}, 0
s_mov_b32 s{sOo+3}, 0x20000
s_cmp_lt_u32 s{sJob}, 30
s_cselect_b32 s{sOo+2}, {95*122880+5*1024}, 0
s_cselect_b32 s{sW_+2}, s{sW_+2}, 0
s_lshl_b32 s{sC1}, s80, 2
s_add_u32 s{sC1}, s{sC1}, s{sCo}
s_add_u32 s{sC1}, s{sC1}, 8
s_waitcnt lgkmcnt(0)
s_barrier""") + [I(f"ds_read_b128 {V4(224)}, v{vW}", dst=regs("v", 224, 4))]
    def wdma(d, jump=False):
        out = []
        for p in range(2):
            out.append(I(f"s_add_u32 m0, s{sMy}, {(d % 4)*16384 + p*8192}"))
            for r in range(4):
                out += [I(f"s_add_u32 s{sTt}, s{sWo[p]}, {r*(8*1280-1024)}"),
                        I(f"buffer_load_dwordx4 v{vDm}, {S4(sW_)}, s{sTt} offen offset:{r*1024} lds", dst={f"W{d%4}"})]
            out.append(I(f"s_add_u32 s{sWo[p]}, s{sWo[p]}, " + (f"s{sJ}" if jump else f"{128*1280}")))
        return out
    def oload(d, kb):
        n = " sc1"
        so = sOo0 if kb == 0 else sOo1
        out = [I(f"buffer_load_dwordx4 {V4(Of(d, kb, qt))}, v{vOf}, {S4(sOo)}, s{so} offen offset:{qt*1024}{n}", dst=regs("v", Of(d, kb, qt), 4)) for qt in range(4)]
        out.append(I(f"s_add_u32 s{sTt}, s{so}, 4096"))
        out.append(I(f"buffer_load_dwordx4 {V4(Of(d, kb, 4))}, v{vOf}, {S4(sOo)}, s{sTt} offen{n}", dst=regs("v", Of(d, kb, 4), 4)))
        out.append(I(f"s_add_u32 s{so}, s{so}, {4*122880}"))
        return out
    def wreads(d):
        out = []
        for t in range(8):
            for kb in range(2):
                r = wq(2 * t + kb)
                for hf in range(2):
                    it = I(f"ds_read_b64_tr_b16 a[{r+2*hf}:{r+2*hf+1}], v{vR[t & 3]} offset:{(d % 4)*16384 + (t >> 2)*8192 + (4*kb+2*hf)*1024}", dst=regs("a", r + 2 * hf, 2)); it.f = 2 * t + kb
                    out.append(it)
        return out
    P += wdma(0) + [WAIT(lzero=True)] + Is(f"""
v_or_b32 v224, v224, v225
v_or3_b32 v224, v224, v226, v227
v_and_b32 v225, v{vPoll}, v{vPoll+1}
s_cmp_lg_u32 s{sMode}, 0
v_readfirstlane_b32 s88, v224
v_readfirstlane_b32 s89, v225
s_nop 3
s_cselect_b32 s88, 0, s88
s_cmp_lg_u32 s88, 0
s_cbranch_scc1 K1_REDO
s_cmp_lg_u32 s89, 32
s_cbranch_scc1 K2_SPIN0
K2_RET0:""")
    rest = Is(f"""
v_lshrrev_b32 v{t2}, 5, v0
v_lshlrev_b32 v{vR[0]}, 10, v{t2}
v_bfe_u32 v{t2}, v0, 2, 3
v_lshl_add_u32 v{vR[0]}, v{t2}, 7, v{vR[0]}
v_and_b32 v{t2}, 6, v{t2}
v_bfe_u32 v{t3}, v0, 1, 1
v_xor_b32 v{t2}, v{t2}, v{t3}
v_lshl_add_u32 v{vR[0]}, v{t2}, 4, v{vR[0]}
v_and_b32 v{t2}, 1, v0
v_lshl_add_u32 v{vR[0]}, v{t2}, 3, v{vR[0]}
s_lshl_b32 s88, s{sWb}, 6
v_xor_b32 v{vR[0]}, s88, v{vR[0]}
v_add_u32 v{vR[0]}, s{sLb}, v{vR[0]}
v_xor_b32 v{vR[1]}, 32, v{vR[0]}
v_xor_b32 v{vR[2]}, 64, v{vR[0]}
v_xor_b32 v{vR[3]}, 96, v{vR[0]}
s_lshl_b32 s88, s86, 4
s_mul_i32 s88, s88, 2560
s_mul_i32 s89, s82, 1280
s_add_u32 s88, s88, s89
s_lshl_b32 s89, s85, 8
s_add_u32 s88, s88, s89
s_lshl_b32 s89, s80, 1
s_add_u32 s89, s89, s{sWb}
s_lshl_b32 s89, s89, 6
s_add_u32 s88, s88, s89
s_add_u32 s{sOut}, s{sOutP}, s88
s_addc_u32 s{sOut+1}, s{sOutP+1}, 0
s_sub_u32 s{sOut+2}, {8*240*1280*2}, s88
s_mov_b32 s{sOut+3}, 0x20000
s_lshl_b32 s88, s{sWg}, 2
s_add_u32 s88, s88, s{sWv}
s_xor_b32 s89, s88, 4
s_mul_i32 s88, s88, 10240
s_mul_i32 s89, s89, 10240
s_add_u32 s88, s88, {XCH}
s_add_u32 s89, s89, {XCH}
s_add_u32 s{sXs}, s{sWsP}, s88
s_addc_u32 s{sXs+1}, s{sWsP+1}, 0
s_mov_b32 s{sXs+2}, 10240
s_mov_b32 s{sXs+3}, 0x20000
s_add_u32 s{sXr}, s{sWsP}, s89
s_addc_u32 s{sXr+1}, s{sWsP+1}, 0
s_mov_b32 s{sXr+2}, 10240
s_mov_b32 s{sXr+3}, 0x20000
s_add_u32 s{sFl}, s{sWsP}, {FLG}
s_addc_u32 s{sFl+1}, s{sWsP+1}, 0
s_mov_b32 s{sFl+2}, {256*128}
s_mov_b32 s{sFl+3}, 0x20000
v_and_b32 v{t0}, 15, v0
v_lshrrev_b32 v{t1}, 4, v0
v_mul_u32_u24 v{vSt}, 2560, v{t0}
v_lshl_add_u32 v{vSt}, v{t1}, 4, v{vSt}
s_mov_b32 s{sCnt}, 0
""")
    ld = oload(0, 0) + oload(0, 1) + wdma(1) + oload(1, 0) + oload(1, 1) + wdma(2)
    nv = sum(1 for x in ld if x.kind == "vmem"); per = -(-nv // len(units))
    NE0 = 24 - len(units); cleared = set()
    def clear(rs):
        out = [I(f"v_accvgpr_write_b32 a{r}, 0") for r in rs if r < 160 and r not in cleared]; cleared.update(rs); return out
    ureg = lambda u: [Oacc(2 * (u // 4) + h, u % 4) + j for h in range(2) for j in range(4)]
    P += rest
    for k, un in enumerate(units):
        c = 0
        while ld and c < per:
            x = ld.pop(0); P.append(x); c += x.kind == "vmem"
        P += un + clear(ureg(NE0 + k))
        if k < NE0: P += clear(ureg(k))
    P += ld
    assert len([r for r in cleared if r < 160]) == 160
    NP = 8; G = 60
    P += stamp(49) + Is(f"s_cmp_ge_u32 s{sJob}, 30\ns_cbranch_scc1 K2_IDLE")
    P += [BAR({"W0"})] + wreads(0)[:NP] + [WAIT(lneed=regs("a", wq(0), 8), vneed=regs("v", Of(0, 0, 0), 40))]
    B["k2pro"] = P + stamp(50)
    L = Is(".p2align 6\nK2_L:")
    for d in range(4):
        mf = []
        for t in range(8):
            for qt in range(5):
                for kb in range(2):
                    a = acc(t, qt)
                    mf.append(mfma(A4(a), A4(wq(2 * t + kb)), V4(Of(d, kb, qt)), A4(a)))
        own = wreads(d)[NP:]; nxt = wreads(d + 1)[:NP]
        spread(own, 0, G - 6)
        for it in own: it.hi = min(it.hi, 10 * (it.f >> 1) - 7); it.target = min(it.target, it.hi - 1)
        bar = BAR({f"W{(d+1)%4}"} | ({"OST"} if d == 2 else set()), lo=G, hi=G)
        for it in nxt: it.after = [bar]
        spread(nxt, G + 1, 76)
        ws = [WAIT(lneed=regs("a", wq(2 * t), 8), lo=10 * t - 3, hi=10 * t - 1, target=10 * t - 2) for t in range(1, 7)]
        ws.append(WAIT(lneed=regs("a", wq(0), 8), vneed=regs("v", Of(d + 1, 0, 0), 40) | ({f"v{vP2}"} if d == 1 else set()), lo=78, hi=79, target=78.5))
        vm = []
        if d == 0: vm += Is(f"s_cmp_eq_u32 s{sCnt}, 2\ns_cselect_b32 s{sJ}, {1536*1280}, 0\ns_add_u32 s{sJ}, s{sJ}, {128*1280}")
        if d == 1: vm += [I(f"buffer_load_dword v{vP2}, off, {S4(sDb)}, s{sC1} sc1", dst={f"v{vP2}"})]
        w = wdma(d + 3, jump=(d == 0)); h = len(w) // 2
        if d == 2:
            chk = Is(f"v_readfirstlane_b32 s88, v{vP2}\ns_cmp_eq_u32 s{sCnt}, 2\ns_cselect_b32 s89, 32, 0")
            br = Ins("s_cmp_lt_u32 s88, s89\ns_cbranch_scc1 K2_SPIN1\nK2_RET1:", kind="bar", after=[chk[0]], dly=2)
            sg = Ins(f"s_cmp_eq_u32 s{sCnt}, 0\ns_cbranch_scc1 K2_SIG\nK2_RET2:", kind="bar", after=[bar])
            vm += chk + [br] + oload(d + 2, 0) + w[:h] + oload(d + 2, 1) + w[h:] + [sg]
        else: vm += oload(d + 2, 0) + w[:h] + oload(d + 2, 1) + w[h:]
        if d == 3: vm += Is(f"s_add_u32 s{sCnt}, s{sCnt}, 1\ns_cmp_lt_u32 s{sCnt}, 6")
        spread(vm, 0, 80, [G])
        L += schedule(mf, [ws, own + [bar] + nxt, vm], name=f"k2d{d}")
    L += Is("s_cbranch_scc1 K2_L")
    B["k2loop"] = L
    RD = 64; SN = 144; KP = 184
    E = stamp(51) + Is(f"""s_waitcnt vmcnt(0) lgkmcnt(0)
s_barrier
s_xor_b32 s88, s{sWv}, 1
s_mul_i32 s88, s88, 20480
v_add_u32 v{vW}, s88, v{vOf}
s_mul_i32 s88, s{sWv}, 20480
v_add_u32 v{vRd}, s88, v{vOf}""")
    for k, j in enumerate((3, 1)):
        for q in range(10): E.append(I(f"ds_write_b128 v{vW}, {A4(40*j + 4*q)} offset:{k*10240 + q*1024}"))
    for i in range(40): E.append(I(f"v_accvgpr_read_b32 v{SN+i}, a{80+i}"))
    E += Is("s_waitcnt lgkmcnt(0)\ns_barrier")
    for q in range(20): E.append(I(f"ds_read_b128 {V4(RD+4*q)}, v{vRd} offset:{q*1024}", dst=regs("v", RD + 4 * q, 4)))
    E += Is("s_mov_b32 s88, 4096\ns_mov_b32 s89, 8192")
    so = lambda q: ["0", "s88", "s89"][q // 4]
    pa = lambda a, b: I(f"v_pk_add_f32 v[{a}:{a+1}], v[{a}:{a+1}], v[{b}:{b+1}]")
    for q in range(10):
        E.append(WAIT(lneed=regs("v", RD + 4 * q, 4)))
        for h in range(2): E.append(pa(SN + 4 * q + 2 * h, RD + 4 * q + 2 * h))
        E.append(I(f"buffer_store_dwordx4 {V4(SN+4*q)}, v{vOf}, {S4(sXs)}, {so(q)} offen offset:{(q%4)*1024} sc1"))
    for i in range(40): E.append(I(f"v_accvgpr_read_b32 v{KP+i}, a{i}"))
    E.append(WAIT(lzero=True))
    for h in range(20): E.append(pa(KP + 2 * h, RD + 40 + 2 * h))
    E += Is(f"""s_lshl_b32 s84, s{sWg}, 7
s_xor_b32 s85, s84, 128
v_mov_b32 v{t1}, 1
s_waitcnt vmcnt(0)
s_barrier""") + stamp(52) + Is(f"""s_cmp_lg_u32 s{sWv}, 0
s_cbranch_scc1 K2_POLL
s_mov_b64 exec, 1
buffer_store_dword v{t1}, off, {S4(sFl)}, s84 sc1
s_mov_b64 exec, -1
K2_POLL:
buffer_load_dword v{t2}, off, {S4(sFl)}, s85 sc1
s_waitcnt vmcnt(0)
v_readfirstlane_b32 s86, v{t2}
s_nop 3
s_cmp_eq_u32 s86, 1
s_cbranch_scc1 K2_GO
s_add_u32 s{sSp}, s{sSp}, 1
s_cmp_gt_u32 s{sSp}, 0x40000
s_cbranch_scc1 K2_GO
s_sleep 1
s_branch K2_POLL
K2_GO:""") + stamp(53)
    order = [q for qt in range(5) for q in (qt, 5 + qt)]
    for q in order: E.append(I(f"buffer_load_dwordx4 {V4(RD+4*q)}, v{vOf}, {S4(sXr)}, {so(q)} offen offset:{(q%4)*1024} sc1", dst=regs("v", RD + 4 * q, 4)))
    for qt in range(5):
        E.append(WAIT(vneed=regs("v", RD + 4 * (5 + qt), 4)))
        for q in (qt, 5 + qt):
            for h in range(2): E.append(pa(KP + 4 * q + 2 * h, RD + 4 * q + 2 * h))
        a, b = KP + 4 * qt, KP + 4 * (5 + qt)
        E += Is(f"""v_cvt_pk_bf16_f32 v{a}, v{a}, v{a+1}
v_cvt_pk_bf16_f32 v{a+1}, v{a+2}, v{a+3}
v_cvt_pk_bf16_f32 v{a+2}, v{b}, v{b+1}
v_cvt_pk_bf16_f32 v{a+3}, v{b+2}, v{b+3}
s_mov_b32 s87, {qt*16*2560}
s_nop 0
v_permlane16_swap_b32 v{a}, v{a+2}
v_permlane16_swap_b32 v{a+1}, v{a+3}
buffer_store_dwordx4 {V4(a)}, v{vSt}, {S4(sOut)}, s87 offen""")
    E += stamp(54) + Is("K1_DONE:") + stamp_out(S2(sKA), sWg, sWave, t0, 0x4000000)
    E += Is("K1_END:\ns_endpgm")
    B["k2epi"] = E
    sig = lambda ret: Is(f"""s_cmp_lg_u32 s{sWv}, 0
s_cbranch_scc1 {ret}
v_mov_b32 v{t0}, 1
s_mov_b64 exec, 1
buffer_atomic_add v{t0}, off, {S4(sDb)}, s{sC1}
s_mov_b64 exec, -1
s_branch {ret}""")
    B["k2side"] = Is(f"""K1_REDO:
s_mov_b32 s{sMode}, 1
s_waitcnt vmcnt(0)
s_barrier
s_branch K1_PRO
K2_SPIN0:
s_add_u32 s{sSp}, s{sSp}, 1
s_cmp_gt_u32 s{sSp}, 0x40000
s_cbranch_scc1 K2_RET0
s_sleep 8
buffer_load_dwordx2 v[{vPoll}:{vPoll+1}], off, {S4(sDb)}, s{sCo} sc1
s_waitcnt vmcnt(0)
v_and_b32 v225, v{vPoll}, v{vPoll+1}
s_nop 0
v_readfirstlane_b32 s89, v225
s_nop 3
s_cmp_lg_u32 s89, 32
s_cbranch_scc1 K2_SPIN0
s_branch K2_RET0
K2_SPIN1:
s_add_u32 s{sSp}, s{sSp}, 1
s_cmp_gt_u32 s{sSp}, 0x40000
s_cbranch_scc1 K2_RET1
s_sleep 4
buffer_load_dword v{vP2}, off, {S4(sDb)}, s{sC1} sc1
s_waitcnt vmcnt(0)
v_readfirstlane_b32 s88, v{vP2}
s_nop 3
s_cmp_lt_u32 s88, 32
s_cbranch_scc1 K2_SPIN1
s_branch K2_RET1
K2_SIG:""") + sig("K2_RET2") + Is("K2_IDLE:\ns_waitcnt vmcnt(0)\ns_barrier") + sig("K1_DONE")
    return ["k2pro"] + ["k2loop"] * 6 + ["k2epi"]

def desc(name, vg=512, acc=256):
    return f""".p2align 6
.amdhsa_kernel {name}
  .amdhsa_next_free_vgpr {vg}
  .amdhsa_next_free_sgpr 102
  .amdhsa_accum_offset {acc}
  .amdhsa_group_segment_fixed_size 0
  .amdhsa_kernarg_size 104
  .amdhsa_user_sgpr_count 2
  .amdhsa_user_sgpr_kernarg_segment_ptr 1
  .amdhsa_system_sgpr_workgroup_id_x 1
  .amdhsa_float_denorm_mode_32 3
.end_amdhsa_kernel"""

def main():
    k1, e1 = kernel1()
    ref = open("cdna_kernels/" + NAME + ".s.ref").read().split("\n")
    head = [l for l in ref if l.startswith(";") and "@launch" not in l]
    nm = NAME + "_kernel"
    out = head + [f"; @launch grid=(256,1,1) block=(256,1,1) lds=163840",
                  '.amdgcn_target "amdgcn-amd-amdhsa--gfx950"', ".text"]
    out += [f".globl {nm}", ".p2align 8", f".type {nm},@function", f"{nm}:"] + k1
    out += ["K_CODE_END:", "s_endpgm", '.section .rodata,"a"', desc(nm)]
    open(sys.argv[1], "w").write("\n".join(out) + "\n")
    if e1: sys.exit(1)
main()
```

```python
import re, sys

COST = {"ds": 4, "vmem": 8, "valu": 4, "trans": 8, "salu": 4, "wait": 4, "bar": 8, "mfma": 8, "label": 0, "br": 4}

def kind_of(t):
    op = t.split()[0]
    if op.endswith(":"): return "label"
    if op.startswith("v_mfma"): return "mfma"
    if op.startswith("ds_"): return "ds"
    if op.startswith("buffer_") or op.startswith("global_"): return "vmem"
    if op in ("v_exp_f32", "v_rcp_f32", "v_log_f32"): return "trans"
    if op.startswith("v_"): return "valu"
    if op == "s_waitcnt": return "wait"
    if op.startswith("s_cbranch") or op == "s_branch": return "br"
    if op.startswith("."): return "label"
    return "salu"

class Ins:
    def __init__(self, text, lo=0, hi=10**9, target=None, after=(), dly=0, kind=None, grp=None, dst=None, lneed=None, vneed=None, gneed=None, lzero=False):
        self.text = text; self.kind = kind or kind_of(text); self.cost = COST[self.kind]
        self.lo = lo; self.hi = hi; self.target = lo if target is None else target
        self.after = list(after); self.dly = dly; self.gap = None
        self.grp = grp
        self.dst = dst
        self.lneed = lneed
        self.vneed = vneed
        self.gneed = gneed
        self.lzero = lzero
        self.lcnt = None; self.vcnt = None
    def __repr__(self): return self.text

def regs(c, b, n=1): return {f"{c}{i}" for i in range(b, b + n)}
def rng(c, b, n): return f"{c}{b}" if n == 1 else f"{c}[{b}:{b+n-1}]"

def WAIT(lneed=None, vneed=None, gneed=None, lzero=False, **kw):
    return Ins("s_waitcnt", kind="wait", lneed=lneed, vneed=vneed, gneed=gneed, lzero=lzero, **kw)
def BAR(vneed=None, **kw):
    return Ins("WAITBAR", kind="bar", vneed=vneed, lzero=True, **kw)

def spread(items, lo, hi, skip=()):
    tot = sum(i.cost for i in items); acc = 0
    av = [g for g in range(lo, hi) if g not in skip]
    for it in items:
        x = len(av) * acc / max(tot, 1)
        it.target = av[int(x)] + (x - int(x))
        it.lo = max(it.lo, lo); it.hi = min(it.hi, hi - 1)
        acc += it.cost
    return items

def even(items, lo, hi, skip=()):
    vm = [x for x in items if x.kind == "vmem"]
    pos = []
    for k in range(len(vm)):
        p = int(lo + (hi - lo) * (k + 0.5) / len(vm))
        while p in skip: p += 1
        pos.append(p)
    nxt = hi - 1; k = len(vm)
    for x in reversed(items):
        if x.kind == "vmem":
            k -= 1; nxt = pos[k]; x.lo = max(x.lo, nxt); x.target = nxt - 5; x.hi = nxt + 1
        else:
            x.target = nxt - 2.5; x.hi = min(x.hi, max(nxt - 1, 0)) if k < len(vm) else x.hi
    return items

PRIM = ("ds", "vmem", "trans", "bar")
def _run(n, streams, novalu, cap, lags, spill, ahead):
    for st in streams:
        for it in st: it.gap = None
    gaps = [[] for _ in range(n)]
    heads = [0] * len(streams)
    over = 0
    def fits(g, it):
        cur = gaps[g]; used = sum(x.cost for x in cur)
        if used + it.cost > cap: return False
        if it.kind in ("valu", "trans") and g in novalu: return False
        if it.kind == "ds" and any(x.kind == "ds" or (x.kind == "valu" and (x.si == it.si0 or x in it.after)) for x in cur): return False
        return True
    for g in range(n):
        while True:
            cands = []
            for si, st in enumerate(streams):
                if heads[si] >= len(st): continue
                it = st[heads[si]]; it.si0 = si
                forced = it.hi <= g
                if it.lo > g: continue
                if any(a.gap is None or a.gap + it.dly >= g for a in it.after):
                    if not (forced and all(a.gap is not None for a in it.after)): continue
                cands.append((it, si, forced))
            if not cands: break
            used = sum(x.cost for x in gaps[g])
            pick = None
            F = [c for c in cands if c[2]]
            if F: pick = min(F, key=lambda c: (c[0].kind not in PRIM, c[0].target))
            else:
                ok = [c for c in cands if fits(g, c[0])]
                urgent = [c for c in ok if c[0].hi <= g + 1 and c[0].target <= g + 1]
                Pm = sorted([c for c in ok if c[0].kind in PRIM and c[0].target <= g + ahead], key=lambda c: c[0].target)
                Sc = sorted([c for c in ok if c[0].kind not in PRIM], key=lambda c: c[0].target)
                if used == 0:
                    late = [c for c in Sc if c[0].target + lags < g]
                    dsdue = [c for c in ok if c[0].kind == "ds" and c[0].target <= g + ahead + 2]
                    if urgent and any(c[0].kind in PRIM for c in urgent): pick = [c for c in urgent if c[0].kind in PRIM][0]
                    elif late and dsdue: pick = dsdue[0]
                    elif late: pick = late[0]
                    elif Pm: pick = Pm[0]
                    elif Sc and Sc[0][0].target <= g + 1: pick = Sc[0]
                else:
                    ds = [c for c in ok if c[0].kind == "ds" and c[0].target <= g + ahead + 3]
                    if urgent: pick = urgent[0]
                    elif Sc and Sc[0][0].target <= g + 1: pick = Sc[0]
                    elif ds: pick = ds[0]
                    elif Sc and Sc[0][0].target <= g + 8: pick = Sc[0]
                if pick is None and g not in novalu:
                    lag = [c for c in cands if c[0].kind in ("valu", "trans") and c[0].target + spill < g]
                    if lag: pick = min(lag, key=lambda c: c[0].target)
            if pick is None: break
            it = pick[0]; it.gap = g; it.si = pick[1]; gaps[g].append(it); heads[pick[1]] += 1
        cur = gaps[g]
        ch = True
        while ch:
            ch = False
            for k in range(len(cur) - 1):
                a, b = cur[k], cur[k + 1]
                if a.kind in ("valu", "trans") and b.kind in ("ds", "vmem", "salu") and a.si != b.si and a not in b.after:
                    cur[k], cur[k + 1] = b, a; ch = True
        used = sum(x.cost for x in cur)
        pen = max(0, used - cap)
        for a, b in zip(cur, cur[1:]):
            if a.kind in ("valu", "trans") and b.kind in ("ds", "vmem"): pen += 8
            if a.kind == "ds" and b.kind == "ds": pen += 3
            if a in b.after and a.kind != "bar" and b.dly >= 0: pen += 4
        if g in novalu and any(x.kind in ("valu", "trans") for x in cur): pen += 11
        over += pen
    left = [st[h:] for st, h in zip(streams, heads) if h < len(st)]
    if left: return 10**9, None
    late = sum(max(0, it.gap - it.target) for st in streams for it in st if it.kind in ("ds", "vmem"))
    return over + late * 0.01, gaps

def schedule(mf, streams, novalu=(), name="", cap=8, verbose=True):
    n = len(mf); novalu = set(novalu)
    streams = [st for st in streams if st]
    for st in streams:
        h = 10**9
        for it in reversed(st):
            it.hi = min(it.hi, h, n - 1); h = it.hi
    best = None
    for lags in (1, 2, 3, 4, 6, 8, 12):
        for spill in (4, 6, 9, 14, 20, 99):
            for ahead in (0.5, 1.0, 2.0, 3.0):
                o, gaps = _run(n, streams, novalu, cap, lags, spill, ahead)
                if best is None or o < best[0]: best = (o, (lags, spill, ahead))
            if best[0] < 2: break
        if best[0] < 2: break
    over, gaps = _run(n, streams, novalu, cap, *best[1])
    assert gaps is not None, f"{name}: unplaced items"
    out = []
    for i in range(n):
        out.append(mf[i])
        for it in gaps[i]:
            need = 0
            for a in it.after:
                if a.kind == "bar" or it.dly < 0: continue
                for k in range(max(0, len(out) - 4), len(out)):
                    if out[k] is a: need = max(need, 1 + it.dly - (len(out) - 1 - k))
            if need > 0: out.append(Ins(f"s_nop {need-1}"))
            out.append(it)
    if verbose:
        sys.stderr.write(f"[sched {name}] filler {sum(x.cost for g in gaps for x in g)} / {cap*n}, est. overflow {int(over)} {best[1]}\n")
    return out

def resolve_waits(blocks, trace):
    ds = []; vm = []; groups = []
    for name in trace:
        for it in blocks[name]:
            if it.kind == "ds": ds.append(it)
            elif it.kind == "vmem":
                vm.append(it)
                if it.grp == "first": groups.append(len(vm) - 1)
                elif it.grp == "more": groups[-1] = len(vm) - 1
            elif it.kind in ("wait", "bar") and (it.text in ("s_waitcnt", "WAITBAR")):
                if it.lzero: it.lcnt = 0
                elif it.lneed:
                    rem = set(it.lneed); c = None
                    for k in range(len(ds) - 1, -1, -1):
                        if ds[k].dst and ds[k].dst & rem: c = len(ds) - 1 - k; break
                    assert c is not None, f"lneed never loaded {it.lneed} in {name}"
                    c = min(c, 15)
                    it.lcnt = c if it.lcnt is None else min(it.lcnt, c)
                c = None
                if it.vneed:
                    for k in range(len(vm) - 1, -1, -1):
                        if vm[k].dst and vm[k].dst & it.vneed: c = len(vm) - 1 - k; break
                    assert c is not None, f"vneed never loaded in {name}"
                if it.gneed:
                    c2 = len(vm) - 1 - groups[-it.gneed]
                    c = c2 if c is None else min(c, c2)
                if c is not None:
                    c = min(c, 63)
                    it.vcnt = c if it.vcnt is None else min(it.vcnt, c)

def emit(block):
    out = []
    for it in block:
        if it.text in ("s_waitcnt", "WAITBAR"):
            parts = []
            if it.vcnt is not None: parts.append(f"vmcnt({it.vcnt})")
            if it.lcnt is not None: parts.append(f"lgkmcnt({it.lcnt})")
            assert parts, "unresolved wait"
            out.append("s_waitcnt " + " ".join(parts))
            if it.text == "WAITBAR": out.append("s_barrier")
        else:
            out.append(it.text)
    return out
```

```python
import sys, math
from asmlib import *
from verify import verify

OPT = dict(nt_kv=1, nt_w=0, nt_x=0, nt_o=2, k2_nt_o=2, k2_nt_w=0, stamps=0, ovl=1, ne0=6, nc9=7, pf=1, cpf=1, k2e=9, sigs=4, pfs=5, cpl=1, k2fix=0, osc=1, ev=1, lmf=0, padn=0, padm=0)
for a in sys.argv[2:]:
    k, v = a.split("="); OPT[k] = int(v)
NAME = "concat_heads__gqa_block_cached__gqa_block_cached__near_ridge"
MF = "v_mfma_f32_16x16x32_bf16"
def I(t, **kw): return Ins(t, **kw)
def Is(txt): return [Ins(t.strip()) for t in txt.strip().split("\n") if t.strip()]
def mfma(d, a, b, c): return Ins(f"{MF} {d}, {a}, {b}, {c}")
def V4(b): return f"v[{b}:{b+3}]"
def A4(b): return f"a[{b}:{b+3}]"

TILE = 24576; WS = 64 * 12288
X0 = 0; RING = 32768; X1 = 131072
def slot(i): return RING + i * TILE
vK = [[1, 2], [3, 4]]; KW = [0, 65536]
vV = [[5, 6, 7, 8], [9, 10, 11, 12]]; VW = [32768, 98304]
vXr = [[13, 14], [15, 16]]
vD = [17, 18]; vDkv = 19; vDw = 20; vDx = 21; vO = 22; vO3 = 23
vL = [24, 25, 26, 27]; vMi = [28, 29, 30, 31]; vT = 32
NEGM = 48; SP = 64; QF = 160
RCP = 48
def negm(qt): return NEGM + 4 * qt
def XY(par, kb, qt): return SP + 4 * ((par * 2 + kb) * 4 + qt)
def Z(kb, qt): return SP + 64 + 4 * (kb * 4 + qt)
def Qf(qt, s): return QF + 4 * (qt * 6 + s)
def Qb(qt, s):
    return SP + 4 * (qt * 6 + s)
def Oacc(t, qt): return 4 * (t * 4 + qt)
def Xf(n, kb, qt): return 32 * (n & 1) + 4 * (qt * 2 + kb)
FR = 192
def fq(n, f): return FR + 4 * ((f + 8 * (n & 1)) % 16)
sX = 4; sDA = 8; sDB = 12; sO = 16
sK = 20; sV = 22; sNb = 24; sNnum = 26; sNs = 27; sNd = 28; sXnum = 29; sN2 = 30; sMask = 32
sA = 34; sB = 35; sI = 39; sWoff = 40; sXoff = 41
sOs = [42, 43, 44, 45, 37, 38]; sT = 46; sItem = 47; sMode = 48; sFlag = 49; sC = 50
sWave = 52; sWg = 53; sT2 = 54; sT3 = 55; sThr = 56; sKA = 58
sLd = 4
sP1 = 60; vPf = 248; vPoll = 228
sWoP = 64; sOutP = 66; sWsP = 68; sSig = 70; sPfo = 71; sDb = 72; sCo = 76; sOn = 77; sSp = 78
sCp = 97; sK2n = 79; sXd = 57; sAll = 36; sXn = 98; sK2O = 100; FLO = RING + 3 * TILE
FLG = 0x3000000; XCH = 0x3100000
def S4(b): return f"s[{b}:{b+3}]"
def S2(b): return f"s[{b}:{b+1}]"
BG = 76
NOV = range(BG, BG + 9)
NPRE_V = 10; NPRE_K = 6
OSTRIDE = 48 * 120 * 1024

def lastuse_pv(f): return 8 * (f >> 1) + 6 + (f & 1)
def lastuse_qk(f): kt, s = divmod(f, 6); return 24 * kt + 18 + (5 - s)

def reads_v(n, base):
    out = []
    for f in range(24):
        t, kb = f >> 1, f & 1
        r = fq(n, f)
        for hf in range(2):
            off = base + (4 * kb + 2 * hf) * 3072 + (t >> 2) * 1024
            w = 1 if off >= VW[1] else 0
            it = I(f"ds_read_b64_tr_b16 a[{r+2*hf}:{r+2*hf+1}], v{vV[w][t & 3]} offset:{off-VW[w]}", dst=regs("a", r + 2 * hf, 2)); it.f = f
            out.append(it)
    return out
def reads_k(n, base):
    out = []
    for f in range(24):
        kt, s = divmod(f, 6); r = fq(n, f)
        off = base + kt * 6144 + (s >> 1) * 1024
        w = 1 if off >= KW[1] else 0
        it = I(f"ds_read_b128 {A4(r)}, v{vK[w][s & 1]} offset:{off-KW[w]}", dst=regs("a", r, 4)); it.f = f
        out.append(it)
    return out
def reads_x(n):
    return [I(f"ds_read_b128 {A4(Xf(n, kb, qt))}, v{vXr[n & 1][kb]} offset:{qt*2048}", dst=regs("a", Xf(n, kb, qt), 4)) for qt in range(4) for kb in range(2)]

def dma(srd, soff, base, nt):
    n = " nt" if nt else ""
    out = []
    for p in range(3):
        m = I(f"s_add_u32 m0, s{sWoff}, {base + 896*p}")
        a = I(f"buffer_load_dwordx4 v{vD[0]}, {S4(srd)}, s{soff} offen offset:{p*128}{n} lds", dst={f"L{base}"}, after=[m])
        b = I(f"buffer_load_dwordx4 v{vD[1]}, {S4(srd)}, s{soff} offen offset:{p*128+3072}{n} lds", dst={f"L{base}"})
        out += [m, a, b]
    return out
def dma_w(m): return [I(f"s_mov_b32 s{sT2}, {m*WS}")] + dma(sDA, sT2, slot(m % 4), OPT["nt_w"])
def dma_k(i, base): return [I(f"s_mov_b32 s{sT2}, {i*TILE}")] + dma(sDA, sT2, base, OPT["nt_kv"])
def dma_v(i, base): return [I(f"s_mov_b32 s{sT2}, {i*TILE}")] + dma(sDB, sT2, base, OPT["nt_kv"])
def dma_n(m): return [I(f"s_mul_i32 s{sT2}, s{sNs}, {m}")] + dma(sDA, sT2, slot(m), OPT["nt_w"])
def hd(d): return d[:-6]
def tl(d): return d[-6:]
def dma_x(n):
    out = []; base = X1 if n & 1 else X0
    for j in range(8):
        if j % 4 == 0: out.append(I(f"s_add_u32 m0, s{sXoff}, {base + j*1024}"))
        out.append(I(f"s_mov_b32 s{sT}, {j*10240 - (j % 4)*1024 + n*128}"))
        out.append(I(f"buffer_load_dwordx4 v{vDx}, {S4(sX)}, s{sT} offen offset:{(j % 4)*1024}" + (" nt" if OPT["nt_x"] else "") + " lds", dst={f"X{n&1}_{j>>1}"}))
    return out

def phase(name, n, typ, mf, own, nxt, nxt_typ, pub, early, dmas, extra=(), post=(), early_hi=BG - 6, endneed=None):
    lu = lastuse_pv if typ == "v" else lastuse_qk
    rs = []
    if typ == "v":
        k0 = 48 - len(own)
        for j, it in enumerate(own):
            it.target = -18 + (k0 + j) * 88 / 48
            it.hi = min(8 * (it.f >> 1) - 6, BG - 5)
            if it.f >= 16: it.lo = lu(it.f - 16)
            it.hi = max(it.hi, it.lo)
    else:
        for j, it in enumerate(own):
            kt, s = divmod(it.f, 6)
            it.target = 24 * (kt - 1) + 1 + s * 2.5; it.hi = 24 * kt - 8
            if it.f >= 16: it.lo = lu(it.f - 16)
    rs += own
    bar = BAR(pub if isinstance(pub, set) else {f"L{pub}"}, lo=BG, hi=BG); rs.append(bar)
    for j, it in enumerate(nxt):
        it.lo = max(BG + 1, lu(it.f + 8)); it.after = [bar]
        it.target = BG + 1 + (j * 1.8 if nxt_typ == "v" else j * 1.5); it.hi = 95 if nxt_typ == "v" and j >= 4 else 88
    rs += nxt
    ws = []
    if typ == "v":
        for t in range(1, 12):
            if 8 * t - 1 >= BG: break
            ws.append(WAIT(lneed=regs("a", fq(n, 2 * t), 4) | regs("a", fq(n, 2 * t + 1), 4), lo=8 * t - 3, hi=8 * t - 1, target=8 * t - 2))
    else:
        for kt in range(1, 4):
            ws.append(WAIT(lneed=set().union(*[regs("a", fq(n, 6 * kt + s), 4) for s in range(6)]), lo=24 * kt - 3, hi=24 * kt - 1, target=24 * kt - 2))
    nf = 2 if nxt_typ == "v" else 6
    ws.append(WAIT(lneed=set().union(*[regs("a", fq(n + 1, f), 4) for f in range(nf)]) | (endneed or set()), lo=94, hi=95, target=94.5))
    ms = list(early)
    spread(ms, 1, early_hi)
    nv = sum(1 for it in dmas if it.kind == "vmem"); k = 0
    for it in dmas:
        it.lo = BG + 1 if it.kind == "vmem" else BG - 4
        it.target = BG + 2 + k * min(8.0, 17.0 / max(nv, 1)) - (0 if it.kind == "vmem" else 2.5)
        if it.kind == "vmem": it.after = it.after + [bar]; k += 1
    ms += dmas
    for it in post: it.lo = BG + 1; it.target = 90
    ms += list(post)
    return schedule(mf, [ws, rs, ms] + list(extra), novalu=NOV, name=name)

def softmax(par, kb, lo, hi, zdead=None, sub=None, los=None, skip=NOV):
    E = []; D = []; P = []
    for qt in range(4):
        x, z = XY(par, kb, qt), Z(kb, qt)
        src = [x, x + 1, x + 2, x + 3, z, z + 1, z + 2, z + 3]
        for pr in range(4):
            es = []
            for e in range(2):
                r = src[2 * pr + e]
                ex = I(f"v_exp_f32 v{r}, v{r}")
                if sub:
                    sb = I(f"v_add_f32 v{r}, v{r}, v{negm(qt)}", after=[sub[qt]], lo=los[qt][pr >> 1]); P.append(sb); ex.after = [sb]
                E.append(ex); es.append(ex)
                if not OPT["lmf"]: D.append(I(f"v_add_f32 v{vL[qt]}, v{vL[qt]}, v{r}", after=[ex]))
            c = I(f"v_cvt_pk_bf16_f32 v{x+pr}, v{src[2*pr]}, v{src[2*pr+1]}", after=es)
            if zdead: c.hi = zdead(qt)
            D.append(c)
    spread(E, lo, hi, skip)
    for e in E: e.hi = 94
    for d in D:
        d.target = max(a.target for a in d.after) + 1
        for a in d.after: a.hi = min(a.hi, d.hi - 1)
    for p, e in zip(P, E): p.target = e.target - 3; p.hi = e.hi - 1
    return ([P] if sub else []) + [E, D]

def mf_w(n):
    out = []
    for t in range(12):
        for qt in range(4):
            d = Qf(qt, t >> 1) if t % 2 == 0 else Qb(qt, t >> 1)
            for kb in range(2):
                out.append(mfma(V4(d), A4(fq(n, 2 * t + kb)), A4(Xf(n, kb, qt)), "0" if (n == 0 and kb == 0) else V4(d)))
    return out
def mf_qk(n, par, first=False):
    out = []
    for kt in range(4):
        for qt in range(4):
            d = XY(par, kt >> 1, qt) if kt % 2 == 0 else Z(kt >> 1, qt)
            order = range(6) if qt % 2 == 0 else range(5, -1, -1)
            for j, s in enumerate(order):
                c = V4(d) if j else ("0" if (first and kt < 2) else V4(negm(qt)))
                out.append(mfma(V4(d), A4(fq(n, 6 * kt + s)), V4(Qf(qt, s)), c))
    return out
def mf_l(par, first=False):
    if not OPT["lmf"]: return []
    return [mfma(V4(vL[0]), V4(32 + 4 * qt), V4(XY(par, kb, qt)), "0" if (first and qt + kb == 0) else V4(vL[0])) for kb in range(2) for qt in range(4)]
def mf_pv(n, par, first=False):
    out = []
    for t in range(12):
        for qt in range(4):
            for kb in range(2):
                out.append(mfma(A4(Oacc(t, qt)), A4(fq(n, 2 * t + kb)), V4(XY(par, kb, qt)), "0" if (first and kb == 0) else A4(Oacc(t, qt))))
    return out

ETMP = [32, 40, 56]
def epi_unit(u, packed, k2=False):
    s, qt = divmod(u, 4)
    tb = [24, 32, 56][u % 3] if k2 else ETMP[u % 3] if not OPT["stamps"] else [32, 56][u % 2]
    out = []
    rc = RCP + 2 * qt
    for h in range(2):
        for j in range(4): out.append(I(f"v_accvgpr_read_b32 v{tb+4*h+j}, a{Oacc(2*s+h, qt)+j}"))
        if packed:
            for j in range(2): out.append(I(f"v_pk_mul_f32 v[{tb+4*h+2*j}:{tb+4*h+2*j+1}], v[{tb+4*h+2*j}:{tb+4*h+2*j+1}], v[{rc}:{rc+1}]"))
        else:
            for j in range(4): out.append(I(f"v_mul_f32 v{tb+4*h+j}, v{tb+4*h+j}, v{rc}"))
        for j in range(2): out.append(I(f"v_cvt_pk_bf16_f32 v{tb+2*h+j}, v{tb+4*h+2*j}, v{tb+4*h+2*j+1}"))
    out.append(I(f"buffer_store_dwordx4 {V4(tb)}, v{vO3 if qt == 3 else vO}, {S4(sO)}, s{sOs[s]} offen offset:{qt*1024}" + ["", " nt", " sc1", " sc0 sc1"][OPT["nt_o"]], dst={"OST"}))
    return out
def cvt_unit(s, qt, packed):
    a, b = Qf(qt, s), Qb(qt, s)
    out = []
    if packed:
        for r in (a, a + 2, b, b + 2): out.append(I(f"v_pk_mul_f32 v[{r}:{r+1}], v[{r}:{r+1}], {S2(sC)}"))
    else:
        for r in (a, a + 1, a + 2, a + 3, b, b + 1, b + 2, b + 3): out.append(I(f"v_mul_f32 v{r}, s{sC}, v{r}"))
    out += Is(f"""v_cvt_pk_bf16_f32 v{a}, v{a}, v{a+1}
v_cvt_pk_bf16_f32 v{a+1}, v{a+2}, v{a+3}
v_cvt_pk_bf16_f32 v{a+2}, v{b}, v{b+1}
v_cvt_pk_bf16_f32 v{a+3}, v{b+2}, v{b+3}""")
    sw = Is(f"v_permlane16_swap_b32 v{a}, v{a+2}\nv_permlane16_swap_b32 v{a+1}, v{a+3}")
    return out, sw

def pf():
    return [I(f"v_add_u32 v{vPf}, s{sPfo}, v{vO}")] + [I(f"buffer_load_dwordx4 {V4(252)}, v{vPf}, {S4(sP1)}, " + ("0" if j < 4 else f"s{sT3}") + f" offen offset:{(j % 4)*1024}", dst=regs("v", 252, 4)) for j in range(6)]

def atomic(v, so, srd=None):
    it = Ins(f"s_mov_b64 exec, 1\nbuffer_atomic_add v{v}, off, {S4(srd or sDb)}, s{so}\ns_mov_b64 exec, -1", kind="vmem"); it.cost = 8
    return it
def codepf(va, first):
    out = []
    if first: out = [Ins("s_getpc_b64 s[82:83]\nK1_PC2:", kind="salu")] + Is(f"""s_sub_u32 s82, s82, K1_PC2-K1_ITEM
s_subb_u32 s83, s83, 0
s_and_b32 s82, s82, 0xfffffff0
s_lshr_b32 s84, s{sWg}, 3
s_lshl_b32 s84, s84, 2
s_add_u32 s84, s84, s{sWave}
s_lshl_b32 s84, s84, 10
v_lshl_add_u32 v{va}, v0, 4, s84
v_min_u32 v{va}, (K_CODE_END-K1_ITEM-32)&0xfffffff0, v{va}
v_mov_b32 v{va+1}, s83
v_add_co_u32 v{va}, vcc, s82, v{va}""")
    if first:
        c = I(f"v_addc_co_u32 v{va+1}, vcc, 0, v{va+1}, vcc", after=[out[-1]], dly=1); out.append(c)
        return out
    return [I(f"global_load_dword v30, v[{va}:{va+1}], off", dst={"v30"})]

def lin(items):
    out = []
    for k, it in enumerate(items):
        out.append(it)
        if it.text.startswith("s_add_u32 m0") and items[k + 1].kind == "vmem": out.append(I("s_nop 0"))
    return out

def stamp(idx, k2=False):
    if not OPT["stamps"]: return []
    va, vb = (22, 23) if idx >= 51 else (46, 47)
    if idx == -2: sel = "s_add_u32 s92, s39, 31"
    elif idx < 0: sel = f"s_mul_i32 s92, s{sItem}, 24\ns_add_u32 s92, s92, s{sI}\ns_add_u32 s92, s92, 8"
    else: sel = f"s_mov_b32 s92, {idx}" if (k2 or idx >= 48) else f"s_mul_i32 s92, s{sItem}, 24\ns_add_u32 s92, s92, {idx}"
    return Is(f"""s_memtime s[90:91]
s_memrealtime s[94:95]
s_waitcnt lgkmcnt(0)
s_cselect_b32 s96, 1, 0
{sel}
s_mov_b32 s93, m0
s_mov_b32 m0, s92
v_writelane_b32 v{va}, s90, m0
v_writelane_b32 v{vb}, s94, m0
s_mov_b32 m0, s93
s_cmp_lg_u32 s96, 0""")
def stamp_out(karg, wg, wave, tmp, base, k2=False):
    if not OPT["stamps"]: return []
    va = 22
    return Is(f"""s_load_dwordx2 s[80:81], {karg}, 96
s_waitcnt lgkmcnt(0)
s_add_u32 s80, s80, {base}
s_addc_u32 s81, s81, 0
s_mov_b32 s82, 0x100000
s_mov_b32 s83, 0x20000
s_lshl_b32 s84, s{wg}, 2
s_add_u32 s84, s84, s{wave}
s_lshl_b32 s84, s84, 9
v_lshlrev_b32 v{tmp}, 3, v0
buffer_store_dwordx2 v[{va}:{va+1}], v{tmp}, s[80:83], s84 offen""")


def kernel1():
    B = {}
    c = math.log2(math.e) / math.sqrt(192.0)
    import struct
    cbits = struct.unpack("<I", struct.pack("<f", c))[0]
    B["entry"] = Is(f"""
s_cmp_ge_u32 s2, 256
s_cbranch_scc1 K1_END
s_mov_b32 s{sWg}, s2
s_mov_b64 {S2(sKA)}, s[0:1]
s_mov_b32 s{sMode}, 0
s_mov_b32 s{sSig}, 0
s_mov_b32 s{sSp}, 0""") + (Is(f"""
s_getpc_b64 s[90:91]
K1_PC:
s_lshr_b32 s92, s2, 3
s_lshl_b32 s92, s92, 12
v_lshl_add_u32 v36, v0, 4, s92
v_min_u32 v36, (K_CODE_END-K1_PC-32)&0xfffffff0, v36
s_and_b32 s90, s90, 0xfffffff0
v_mov_b32 v37, s91
v_add_co_u32 v36, vcc, s90, v36
s_nop 1
v_addc_co_u32 v37, vcc, 0, v37, vcc""") + [I("global_load_dwordx4 v[40:43], v[36:37], off", dst=regs("v", 40, 4))] if OPT["cpf"] else []) + Is(f"""
v_lshrrev_b32 v{vT}, 6, v0
v_and_b32 v0, 63, v0
v_mov_b32 v47, 0
v_readfirstlane_b32 s{sWave}, v{vT}
""") + stamp(48)
    P = Is("K1_PRO:") + Is(f"""
s_load_dwordx4 s[4:7], {S2(sKA)}, 0
s_load_dwordx4 s[8:11], {S2(sKA)}, 16
s_load_dwordx4 s[12:15], {S2(sKA)}, 32
s_load_dwordx4 s[16:19], {S2(sKA)}, 48
s_load_dwordx4 s[20:23], {S2(sKA)}, 64
s_load_dwordx4 s[24:27], {S2(sKA)}, 80
s_load_dwordx2 {S2(sWsP)}, {S2(sKA)}, 96
s_lshr_b32 s{sT2}, s{sWg}, 3
s_and_b32 s88, s{sWg}, 1
s_and_b32 s89, s{sT2}, 7
s_lshl_b32 s82, s88, 3
s_add_u32 s84, s82, s89
s_bfe_u32 s83, s{sWg}, 0x10001
s_lshl_b32 s83, s83, 2
s_lshr_b32 s82, s{sT2}, 3
s_add_u32 s{sT}, s83, s82
s_mul_i32 s82, s{sT}, 307200
s_lshl_b32 s83, s{sT}, 5
s_add_u32 s83, s83, s84
s_mul_i32 s83, s83, 393216
s_mul_i32 s84, s84, 384
s_bfe_u32 s{sT3}, s{sWg}, 0x10002
s_lshl_b32 s85, s{sT3}, 5
s_lshl_b32 s86, s88, 4
s_add_u32 s85, s85, s86
s_add_u32 s85, s85, s89
s_mul_i32 s85, s85, 720
s_mul_i32 s86, s{sT}, 15
s_add_u32 s85, s85, s86
s_lshl_b32 s85, s85, 10
s_and_b32 s88, s{sWg}, 3
s_lshl_b32 s89, s{sT2}, 2
s_add_u32 s88, s88, s89
s_mul_i32 s{sWoff}, s{sWave}, 6144
s_lshl_b32 s{sXoff}, s{sWave}, 13
""")
    t0, t1, t2, t3 = vT, vT + 1, vT + 2, vT + 3
    P += Is(f"""
v_lshrrev_b32 v{t0}, 3, v0
v_and_b32 v{t1}, 7, v0
v_and_b32 v{t2}, 6, v{t0}
v_xor_b32 v{t1}, v{t1}, v{t2}
v_mul_u32_u24 v{vDkv}, 384, v{t0}
v_lshl_add_u32 v{vDkv}, v{t1}, 4, v{vDkv}
v_add_u32 v{vDkv}, s{sWoff}, v{vDkv}
s_lshl_b32 s86, s{sWave}, 6
v_add_u32 v{t2}, s86, v{t0}
v_mul_u32_u24 v{vDx}, 1280, v{t2}
v_lshl_add_u32 v{vDx}, v{t1}, 4, v{vDx}
v_and_b32 v{t2}, 4, v{t1}
v_and_b32 v{t3}, 1, v{t1}
v_lshl_or_b32 v{t2}, v{t3}, 1, v{t2}
v_bfe_u32 v{t3}, v{t1}, 1, 1
v_or_b32 v{t1}, v{t2}, v{t3}
v_and_b32 v{t2}, 3, v{t0}
v_lshrrev_b32 v{t3}, 2, v{t0}
v_lshl_add_u32 v{t2}, v{t3}, 3, v{t2}
s_lshr_b32 s86, s{sWave}, 1
s_lshl_b32 s86, s86, 5
s_and_b32 s87, s{sWave}, 1
s_lshl_b32 s87, s87, 2
s_add_u32 s86, s86, s87
v_add_u32 v{t2}, s86, v{t2}
v_mul_u32_u24 v{vDw}, 12288, v{t2}
v_lshl_add_u32 v{vDw}, v{t1}, 4, v{vDw}
v_mov_b32 v{vD[0]}, v{vDw}
v_add_u32 v{vD[1]}, {196608-3072}, v{vDw}
s_waitcnt lgkmcnt(0)
s_cmp_eq_u32 s{sT3}, 0
s_cselect_b64 s[90:91], s[4:5], s[14:15]
s_cselect_b64 s[92:93], s[6:7], s[16:17]
s_cselect_b64 s[94:95], s[8:9], s[18:19]
s_cselect_b64 s[96:97], s[10:11], s[20:21]
s_cselect_b64 {S2(sWoP)}, s[12:13], s[22:23]
s_mov_b64 {S2(sOutP)}, s[24:25]
s_mov_b64 {S2(sDb)}, s[26:27]
s_add_u32 s{sX}, s90, s82
s_addc_u32 s{sX+1}, s91, 0
s_mov_b32 s{sX+2}, 307200
s_mov_b32 s{sX+3}, 0x20000
s_add_u32 s{sDA}, s96, s84
s_addc_u32 s{sDA+1}, s97, 0
s_sub_u32 s{sDA+2}, 7864320, s84
s_mov_b32 s{sDA+3}, 0x20000
""")
    P += lin(dma_w(0)) + dma_x(0)
    P += Is(f"""
s_add_u32 s{sK}, s92, s83
s_addc_u32 s{sK+1}, s93, 0
s_add_u32 s{sV}, s94, s83
s_addc_u32 s{sV+1}, s95, 0
s_mov_b32 s{sDb+2}, 256
s_mov_b32 s{sDb+3}, 0x20000
s_bfe_u32 s{sCo}, s{sWg}, 0x20001
s_lshl_b32 s{sCo}, s{sCo}, 6
s_mov_b32 s{sPfo}, s{sXoff}
s_cmp_eq_u32 s{sSig}, 0
s_cselect_b32 s{sOn}, {5*122880+15*1024}, 0
s_add_u32 s{sNb}, s{sDA}, 6144
s_addc_u32 s{sNb+1}, s{sDA+1}, 0
s_sub_u32 s{sNnum}, s{sDA+2}, 6144
s_mov_b32 s{sNs}, {WS}
s_mov_b32 s{sNd}, {196608-3072}
s_mov_b64 {S2(sMask)}, 0
s_mov_b32 s{sXnum}, 307200
s_mul_i32 s86, s88, 61440
s_add_u32 s{sN2}, s{sWoP}, s86
s_addc_u32 s{sN2+1}, s{sWoP+1}, 0
s_mul_i32 s86, s88, {4*12288}
s_add_u32 s86, s86, {128*12288+6144}
s_add_u32 s{sP1}, s96, s86
s_addc_u32 s{sP1+1}, s97, 0
s_mov_b32 s{sP1+2}, {3*12288+6144}
s_mov_b32 s{sP1+3}, 0x20000
s_mov_b32 s{sT3}, 4096
s_add_u32 s{sO}, s{sWsP}, s85
s_addc_u32 s{sO+1}, s{sWsP+1}, 0
s_sub_u32 s{sO}, s{sO}, {OSTRIDE}
s_subb_u32 s{sO+1}, s{sO+1}, 0
s_mov_b32 s{sO+2}, 0
s_mov_b32 s{sO+3}, 0x20000
s_lshl_b32 s86, s{sWg}, 7
s_add_u32 s86, s86, {FLG}
s_add_u32 s{sDB}, s{sWsP}, s86
s_addc_u32 s{sDB+1}, s{sWsP+1}, 0
s_cmp_eq_u32 s{sMode}, 0
s_cselect_b32 s{sDB+2}, 128, 0
s_mov_b32 s{sDB+3}, 0x20000
s_mov_b32 s{sItem}, 0
s_mov_b32 s{sFlag}, 0
s_mov_b32 s{sXd}, 0
s_mov_b32 s{sCp}, 0x1000
s_mov_b64 {S2(sXn)}, {S2(sX)}
s_lshr_b32 s80, s{sWg}, 3
s_mul_i32 s84, s80, 52
s_lshr_b32 s84, s84, 8
s_mul_i32 s85, s84, 5
s_sub_u32 s85, s80, s85
s_and_b32 s81, s{sWg}, 1
s_and_b32 s82, s{sWave}, 1
s_lshr_b32 s83, s{sWave}, 1
s_xor_b32 s86, s81, s82
s_xor_b32 s86, s86, 1
s_lshl_b32 s86, s86, 7
s_lshl_b32 s87, s85, 8
s_add_u32 s86, s86, s87
s_mul_i32 s87, s83, {64*1280}
s_add_u32 s86, s86, s87
s_cmp_lt_u32 s80, 30
s_cselect_b32 s86, s86, 0
s_mul_i32 s87, s81, {1536*1280}
s_add_u32 s86, s86, s87
s_add_u32 s{sWoP}, s{sWoP}, s86
s_addc_u32 s{sWoP+1}, s{sWoP+1}, 0
s_sub_u32 s{sK2n}, 7864320, s86
s_bfe_u32 s86, s{sWg}, 0x10001
s_mul_i32 s86, s86, 60
s_mul_i32 s87, s84, 10
s_add_u32 s86, s86, s87
s_mul_i32 s87, s82, 5
s_add_u32 s86, s86, s87
s_bfe_u32 s87, s{sWg}, 0x10002
s_lshl_b32 s88, s87, 1
s_add_u32 s88, s88, s81
s_mul_i32 s88, s88, {96*120}
s_add_u32 s88, s88, s86
s_lshl_b32 s88, s88, 10
s_add_u32 s{sK2O}, s{sWsP}, s88
s_addc_u32 s{sK2O+1}, s{sWsP+1}, 0
s_mul_i32 s88, s86, {16*2560}
s_mul_i32 s87, s87, 1280
s_add_u32 s88, s88, s87
s_lshl_b32 s87, s85, 8
s_add_u32 s88, s88, s87
s_lshl_b32 s87, s81, 1
s_add_u32 s87, s87, s83
s_lshl_b32 s87, s87, 6
s_add_u32 s88, s88, s87
s_add_u32 s{sOutP}, s{sOutP}, s88
s_addc_u32 s{sOutP+1}, s{sOutP+1}, 0
s_mov_b32 s{sC}, {cbits:#x}
s_mov_b32 s{sC+1}, {cbits:#x}
s_mov_b32 s{sThr}, 0x4e800000
""") + [I(f"s_mov_b32 s{sOs[s]}, {s*122880}") for s in range(6)]
    kb0, vb0 = vK[0][0], vV[0][0]
    P += Is(f"""
v_and_b32 v{t0}, 15, v0
v_lshrrev_b32 v{t1}, 4, v0
v_and_b32 v{t2}, 6, v{t0}
v_xor_b32 v{t3}, v{t2}, v{t1}
v_lshlrev_b32 v{t3}, 4, v{t3}
v_lshl_add_u32 v{vXr[0][0]}, v{t0}, 7, v{t3}
v_add_u32 v{vXr[0][0]}, s{sXoff}, v{vXr[0][0]}
v_xor_b32 v{vXr[0][1]}, 64, v{vXr[0][0]}
v_add_u32 v{vXr[1][0]}, {X1}, v{vXr[0][0]}
v_add_u32 v{vXr[1][1]}, {X1}, v{vXr[0][1]}
v_lshrrev_b32 v{t2}, 3, v{t0}
v_mul_u32_u24 v{kb0}, 3072, v{t2}
v_and_b32 v{t2}, 7, v{t0}
v_lshl_add_u32 v{kb0}, v{t2}, 7, v{kb0}
v_add_u32 v{kb0}, v{kb0}, v{t3}
v_xor_b32 v{vK[0][1]}, 64, v{kb0}
v_add_u32 v{vK[1][0]}, {KW[1]}, v{kb0}
v_add_u32 v{vK[1][1]}, {KW[1]}, v{vK[0][1]}
v_lshrrev_b32 v{t2}, 5, v0
v_mul_u32_u24 v{vb0}, 3072, v{t2}
v_bfe_u32 v{t2}, v0, 2, 3
v_lshl_add_u32 v{vb0}, v{t2}, 7, v{vb0}
v_and_b32 v{t2}, 6, v{t2}
v_bfe_u32 v{t3}, v0, 1, 1
v_xor_b32 v{t2}, v{t2}, v{t3}
v_lshl_add_u32 v{vb0}, v{t2}, 4, v{vb0}
v_and_b32 v{t2}, 1, v0
v_lshl_add_u32 v{vb0}, v{t2}, 3, v{vb0}
v_add_u32 v{vb0}, {VW[0]}, v{vb0}
v_xor_b32 v{vV[0][1]}, 32, v{vb0}
v_xor_b32 v{vV[0][2]}, 64, v{vb0}
v_xor_b32 v{vV[0][3]}, 96, v{vb0}
""") + [I(f"v_add_u32 v{vV[1][i]}, {VW[1]-VW[0]}, v{vV[0][i]}") for i in range(4)] + Is(f"""
s_lshl_b32 s86, s{sWave}, 12
v_lshlrev_b32 v{vO}, 4, v0
v_add_u32 v{vO}, s86, v{vO}
s_cmp_eq_u32 s{sWave}, 3
s_cselect_b32 s86, 0x80000000, 0
v_add_u32 v{vO3}, s86, v{vO}
""")
    P += [I(f"v_mov_b32 v{vL[q]}, 0") for q in range(4)]
    P += lin(dma_w(1)) + dma_x(1) + lin(hd(dma_w(2)))
    P += [I(f"buffer_store_dwordx4 {V4(vL[0])}, v{vO}, {S4(sDB)}, 0 offen sc1", dst={"OST"})]
    P += [BAR({f"L{slot(0)}"})]
    P += reads_v(0, slot(0))[:NPRE_V]
    XALL = lambda n: {f"X{n&1}_{q}" for q in range(4)}
    B["pro"] = P + [WAIT(vneed=XALL(0))] + reads_x(0) + Is("s_branch K1_ITEM")
    B["item"] = Is("K1_ITEM:") + stamp(0) + [WAIT(lzero=True)]
    NE0 = OPT["ne0"]
    EW = {0: list(range(NE0, 8))}
    rest = list(range(8, 24)); per = [3, 3, 2, 2, 2, 2, 2]
    for n in range(1, 8): EW[n] = rest[:per[n - 1]]; rest = rest[per[n - 1]:]
    NC9 = OPT["nc9"]
    cunits = [(s, qt) for s in range(6) for qt in range(4)]
    for n in range(10):
        own = reads_v(n, slot(n % 4))[NPRE_V:]
        early = []; extra = []
        if n < 9: nxt = reads_v(n + 1, slot((n + 1) % 4))[:NPRE_V]; nt_ = "v"; pub = slot((n + 1) % 4)
        else: nxt = reads_k(10, X0)[:NPRE_K]; nt_ = "k"; pub = X0
        def wtile(n): return {7: dma_k(0, X0), 8: dma_k(1, slot(2)), 9: dma_v(0, slot(3))}.get(n) or dma_w(n + 3)
        early += tl(wtile(n - 1))
        if n == 7:
            early += Is(f"""s_mov_b64 {S2(sDA)}, {S2(sK)}
s_mov_b32 s{sDA+2}, 393216
s_mov_b64 {S2(sDB)}, {S2(sV)}
s_mov_b32 s{sDB+2}, 393216
v_mov_b32 v{vD[0]}, v{vDkv}
v_mov_b32 v{vD[1]}, v{vDkv}""")
        if n < 8: early += dma_x(n + 2)
        es = []
        if OPT["ovl"]:
            for u in EW.get(n, []): es += epi_unit(u, False)
            if es: extra.append(spread(es, 0, 56 if n == 0 else 95, NOV))
        if n < 9:
            xr = reads_x(n + 1); st = []
            x0 = 58 if n == 0 else 46
            for q in range(4):
                if q % 2 == 0: st.append(WAIT(vneed={f"X{(n+1)&1}_{q}", f"X{(n+1)&1}_{q+1}"}))
                st += xr[2 * q:2 * q + 2]
            spread(st, x0, BG - 5)
            if n == 0 and es:
                for it in xr: it.after = [es[-1]]
            extra.append(st)
        if n == 9:
            pub = {f"L{X0}", "OST"}
        if n == 9 and NC9:
            cs = []; sw = []
            for (s, qt) in cunits[:NC9]:
                a, b = cvt_unit(s, qt, False)
                a[0].lo = 16 * s + 8 + 2 * qt + 1 + 8
                for x in b: x.after = [a[-1]]; x.dly = 1
                cs += a; sw += b
            spread(cs, 17, 92, NOV)
            for x in sw: x.target = x.after[0].target + 2
            extra += [cs, sw]
        d = hd(wtile(n))
        B[f"w{n}"] = (stamp(8 + n) if OPT["stamps"] == 2 else []) + phase(f"w{n}", n, "v", mf_w(n), own, nxt, nt_, pub, early, d, extra, early_hi=56 if n == 8 else 70)
    C = stamp(1); pend = []
    dm = lin(tl(dma_v(0, slot(3))))
    for k, (s, qt) in enumerate(cunits[NC9:]):
        a, b = cvt_unit(s, qt, True)
        if k % 4 == 1:
            while dm:
                x = dm.pop(0); C.append(x)
                if x.kind == "vmem": break
        C += a[:4] + pend + a[4:]; pend = b
    C += dm + Is(f"""s_mov_b32 s87, 0xff800000
s_cmp_eq_u32 s{sWave}, 3
s_cselect_b32 s86, 0x71000000, s87
v_mov_b32 v{vMi[0]}, s87
v_mov_b32 v{vMi[1]}, s87
v_mov_b32 v{vMi[2]}, s87
v_mov_b32 v{vMi[3]}, s86""")
    C += Is(f"s_cmp_lg_u32 s{sMode}, 0\ns_nop 0") + pend + Is("s_cbranch_scc1 K1_MAXPASS\nK1_MAXRET:\ns_nop 0") + stamp(2)
    B["cvt"] = C
    M = []; last = []
    for qt in range(4):
        x = XY(0, 0, qt); m = vT + 2 * qt; t = m + 1
        a = I(f"v_max3_f32 v{m}, v{x}, v{x+1}, v{x+2}", lo=6 * qt + 13)
        b = I(f"v_max3_f32 v{m}, v{m}, v{x+3}, v{vMi[qt]}")
        c_ = I(f"v_mov_b32 v{t}, v{m}")
        d = I(f"v_permlane16_swap_b32 v{m}, v{t}", after=[c_], dly=1)
        e = I(f"v_max_f32 v{m}, v{m}, v{t}")
        f = I(f"v_mov_b32 v{t}, v{m}")
        g = I(f"v_permlane32_swap_b32 v{m}, v{t}", after=[f], dly=1)
        h = I(f"v_max_f32 v{m}, v{m}, v{t}")
        ns = [I(f"v_sub_f32 v{negm(qt)+i}, 0, v{m}", hi=48 + 6 * qt - 3) for i in range(4)]
        st = [a, b, c_, d, e, f, g, h] + ns
        for j, it in enumerate(st): it.target = 6 * qt + 13 + j * 0.5
        M.append(st); last.append(ns[0])
    sm = softmax(0, 0, 26, 93, sub=last, los=[[0, 24 + 6 * qt + 13] for qt in range(4)])
    early = Is(f"""s_mov_b32 s{sA}, {3*TILE}
s_mov_b32 s{sB}, {2*TILE}
s_mov_b32 s{sI}, 0
s_add_u32 s{sO}, s{sO}, {OSTRIDE}
s_addc_u32 s{sO+1}, s{sO+1}, 0
s_mov_b32 s{sO+2}, s{sOn}
s_mov_b32 s{sOn}, {5*122880+15*1024}""") + dma_k(2, slot(0))
    hand = Is(f"""v_mov_b32 v31, 1
s_and_b32 s80, s{sWg}, 1
s_lshl_b32 s80, s80, 2
s_add_u32 s80, s80, s{sCo}
s_cmp_eq_u32 s{sAll}, 0
s_cselect_b32 s81, s{sItem}, 0
s_cmp_lt_u32 s{sSig}, s81
s_cselect_b32 s80, s80, 0x1000
s_cselect_b32 s{sSig}, 1, s{sSig}
s_cmp_eq_u32 s{sWave}, 0
s_cselect_b32 s80, s80, 0x1000""") + [atomic(31, 80)]
    B["qk0"] = phase("qk0", 10, "k", mf_qk(10, 0, True), reads_k(10, X0)[NPRE_K:], reads_k(11, slot(2))[:NPRE_K], "k", slot(2), early,
                     hd(dma_v(1, slot(1))), M + sm, early_hi=70) + stamp(3)
    def half(nm, par, mode):
        ks, vs, kn, vp = slot(2 * par), slot(2 * par + 1), slot(2 - 2 * par), slot(3 - 2 * par)
        kd = lambda: dma(sDA, sA, ks, OPT["nt_kv"])
        vd = lambda b: dma(sDB, sB, b, OPT["nt_kv"])
        last = mode == "last"
        if mode == "first": early = hand + tl(dma_v(1, slot(1))) + (codepf(28, True) if OPT["cpl"] else [])
        elif last and par: early = tl(dma_n(0)) + dma_x(0)
        else: early = (codepf(28, False) if OPT["cpl"] and par == 0 else []) + tl(vd(vp)) + Is(f"s_add_u32 s{sB}, s{sB}, {TILE}")
        if last and par == 0:
            early += Is(f"""s_mov_b64 {S2(sX)}, {S2(sXn)}
s_mov_b32 s{sX+2}, s{sXnum}
v_lshrrev_b32 v28, 3, v0
v_mul_u32_u24 v28, 1280, v28
v_and_b32 v29, 0x70, v{vDw}
v_add_u32 v28, v28, v29
v_cndmask_b32 v{vDx}, v{vDx}, v28, {S2(sMask)}""")
        sel = []
        if mode == "first" and OPT["lmf"]:
            sel = Is("v_and_b32 v47, 3, v0\nv_mov_b32 v46, 0x3f803f80")
            for qt in range(4):
                c_ = I(f"v_cmp_eq_u32 s[86:87], {qt}, v47")
                sel += [c_, I(f"v_cndmask_b32 v{32+4*qt}, 0, v46, s[86:87]", after=[c_], dly=1)] + [I(f"v_mov_b32 v{32+4*qt+j}, v{32+4*qt}") for j in range(1, 4)]
            sel = [spread(sel, 2, 70)]
        qtile = (lambda: dma_n(1) if par else dma_v(15, X1)) if last else kd
        q = phase("qk" + nm, 11, "k", mf_qk(11, par), reads_k(11, ks)[NPRE_K:], reads_v(12, vs)[:NPRE_V], "v", vs, early, hd(qtile()),
                  softmax(1 - par, 1, 0, BG - 2, zdead=lambda qt: 72 + 6 * qt - 1) + sel, early_hi=72)
        post = []
        if par and mode == "loop": post += Is(f"s_add_u32 s{sI}, s{sI}, 1\ns_cmp_lg_u32 s{sI}, 6")
        early = tl(qtile()) + ([] if last else Is(f"s_add_u32 s{sA}, s{sA}, {TILE}"))
        if last and par == 0:
            early += Is(f"""s_mov_b64 {S2(sDA)}, {S2(sNb)}
s_mov_b32 s{sDA+2}, s{sNnum}
v_cndmask_b32 v{vD[0]}, v{vDw}, v{vDkv}, {S2(sMask)}
v_add_u32 v{vD[1]}, s{sNd}, v{vD[0]}""")
        if last and par: nxt, nty, pub = reads_v(41, X1)[:NPRE_V], "v", X1
        else: nxt, nty, pub = reads_k(11, kn)[:NPRE_K], "k", kn
        p = phase("pv" + nm, 12, "v", mf_pv(12, 1 - par, mode == "first"), reads_v(12, vs)[NPRE_V:], nxt, nty, pub, early,
                  hd(dma_n(2 * par) if last else vd(vs)), softmax(par, 0, 0, 93), post=post, early_hi=72)
        pad = lambda: Is("\n".join(["s_nop 3"] * OPT["padn"])) + [mfma(V4(32 + 4 * (k // 2 % 3)), V4(Qf(k % 4, k % 6)), V4(Qf((k + 1) % 4, (k * 5 + 2) % 6)), V4(32 + 4 * (k // 2 % 3)) if k % 2 else "0") for k in range(OPT["padm"])]
        return q + pad() + mf_l(1 - par, mode == "first") + p + pad()
    B["peel"] = half("1", 1, "first")
    B["loop"] = Is(".p2align 6\nK1_L:") + (stamp(-1) if OPT["stamps"] == 4 else []) + half("e", 0, "loop") + half("o", 1, "loop") + Is("s_cbranch_scc1 K1_L")
    B["last"] = (stamp(-1) if OPT["stamps"] == 4 else []) + half("14", 0, "last") + half("15", 1, "last")
    T = stamp(4)
    E, D = softmax(1, 1, 0, 93)
    di = 0; nd = 1 if OPT["lmf"] else 3
    for j in range(0, 32, 2):
        T += E[j:j + 2]
        if j >= 2: T += D[di:di + nd]; di += nd
    T.append(I("s_nop 0"))
    T += D[di:]
    if OPT["lmf"]:
        T += mf_l(1); R = []
    else:
        T += [I(f"v_mov_b32 v{vT+q}, v{vL[q]}") for q in range(4)]
        T += [I(f"v_permlane16_swap_b32 v{vL[q]}, v{vT+q}") for q in range(4)]
        T += [I(f"v_add_f32 v{vL[q]}, v{vL[q]}, v{vT+q}") for q in range(4)]
        c2 = [I(f"v_mov_b32 v{vT+q}, v{vL[q]}") for q in range(4)]
        d2 = [I(f"v_permlane32_swap_b32 v{vL[q]}, v{vT+q}", after=[c2[q]], dly=1) for q in range(4)]
        R = c2 + d2 + [I(f"v_add_f32 v{vL[q]}, v{vL[q]}, v{vT+q}") for q in range(4)]
    B["tail"] = T
    rc = [I(f"v_rcp_f32 v{RCP+2*q}, v{vL[q]}", lo=8) for q in range(4)]
    R += rc + [I(f"v_cmp_ngt_f32 {S2(80+2*q)}, s{sThr}, v{vL[q]}") for q in range(4)]
    R += [I(f"v_mov_b32 v{RCP+2*q+1}, v{RCP+2*q}") for q in range(4)] + ([] if OPT["lmf"] else [I(f"v_mov_b32 v{vL[q]}, 0") for q in range(4)])
    spread(R, 0, 24)
    for it in R: it.hi = 95
    es = []
    for u in range(NE0 if OPT["ovl"] else 0):
        e = epi_unit(u, False); e[0].lo = 16 * (u // 4) + 8 + 2 * (u % 4) + 1 + 8; es += e
    spread(es, 24, 95, NOV)
    fl = Is(f"""s_or_b64 s[80:81], s[80:81], s[82:83]
s_or_b64 s[84:85], s[84:85], s[86:87]
s_or_b64 s[80:81], s[80:81], s[84:85]
s_or_b32 s80, s80, s81
s_or_b32 s{sFlag}, s{sFlag}, s80
s_lshl_b32 s80, s{sWave}, 2
s_add_u32 s80, s80, {FLO}
v_mov_b32 v160, s80
v_mov_b32 v161, s{sFlag}
v_mov_b32 v162, {FLO}""") + [Ins("ds_write_b32 v160, v161")]
    fl[-1].cost = 8
    fl[0].after = [x for x in R if x.text.startswith("v_cmp")][-1:]; fl[0].dly = 2
    early = pf() + [I(f"buffer_load_dwordx2 v[{vPoll}:{vPoll+1}], off, {S4(sDb)}, s{sCp} sc1", dst=regs("v", vPoll, 4))] + Is(f"""s_add_u32 s{sX}, s{sX}, s{sXd}
s_addc_u32 s{sX+1}, s{sX+1}, 0
s_sub_u32 s{sX+2}, s{sX+2}, s{sXd}""") + fl
    f1 = I(f"ds_read_b128 {V4(164)}, v162", dst=regs("v", 164, 4), lo=BG + 1, target=BG + 3)
    f2 = WAIT(lneed=regs("v", 164, 4), lo=88, target=88)
    f3 = Is("v_or_b32 v164, v164, v165\nv_or3_b32 v164, v164, v166, v167")
    f4 = I(f"v_readfirstlane_b32 s{sAll}, v164", after=[f3[1]])
    for x in f3 + [f4]: x.target = 89
    B["pv15"] = phase("pv15", 41, "v", mf_pv(41, 1), reads_v(41, X1)[NPRE_V:], reads_v(0, slot(0))[:NPRE_V], "v", {f"L{slot(0)}", f"L{slot(2)}"} | XALL(0),
                      early, dma_x(1), [R + es, [f1, f2] + f3 + [f4]]) + stamp(5)
    B["br"] = stamp(6) + Is(f"s_cmp_lg_u32 s{sMode}, 0\ns_cselect_b32 s{sAll}, 0, s{sAll}\ns_cmp_eq_u32 s{sItem}, 0\ns_cbranch_scc1 K1_MID")
    B["mid"] = Is("K1_MID:") + reads_x(0) + Is(f"""s_mov_b32 s{sItem}, 1
s_mov_b32 s{sCp}, s{sCo}
s_mov_b32 s{sXd}, {128*1280-128}
s_mov_b64 {S2(sXn)}, {S2(sWoP)}
s_mov_b32 s{sXnum}, s{sK2n}
s_mov_b64 {S2(sNb)}, {S2(sN2)}
s_mov_b32 s{sNnum}, {2*TILE}
s_mov_b32 s{sNs}, {TILE}
s_mov_b32 s{sNd}, 0
s_mov_b64 {S2(sMask)}, -1
s_add_u32 s{sP1}, s{sN2}, {2*TILE}
s_addc_u32 s{sP1+1}, s{sN2+1}, 0
s_mov_b32 s{sP1+2}, 12288
s_lshl_b32 s{sPfo}, s{sWave}, 11
s_add_u32 s{sK}, s{sK}, {16*393216}
s_addc_u32 s{sK+1}, s{sK+1}, 0
s_add_u32 s{sV}, s{sV}, {16*393216}
s_addc_u32 s{sV+1}, s{sV+1}, 0""")
    k2trace, k2idle = oproj(B, NE0)
    X = Is(f"""K1_MAXPASS:
v_and_b32 v{vT}, 15, v0
v_lshrrev_b32 v{vT+1}, 4, v0
v_mul_u32_u24 v{vT}, 384, v{vT}
v_lshl_add_u32 v{vT}, v{vT+1}, 4, v{vT}
s_mov_b32 s{sT}, 0""") + [I(f"v_mov_b32 v{vMi[q]}, 0xff800000") for q in range(4)] + Is("K1_MAXL:")
    for s in range(6): X.append(I(f"buffer_load_dwordx4 {V4(SP+4*s)}, v{vT}, {S4(sDA)}, s{sT} offen offset:{s*64}"))
    X.append(I("s_waitcnt vmcnt(0)"))
    for qt in range(4):
        for s in range(6): X.append(mfma(V4(SP + 32 + 4 * qt), V4(SP + 4 * s), V4(Qf(qt, s)), V4(SP + 32 + 4 * qt) if s else "0"))
    X.append(I("s_nop 7"))
    for qt in range(4):
        d = SP + 32 + 4 * qt
        X += Is(f"v_max3_f32 v{vMi[qt]}, v{vMi[qt]}, v{d}, v{d+1}\nv_max3_f32 v{vMi[qt]}, v{vMi[qt]}, v{d+2}, v{d+3}")
    X += Is(f"s_add_u32 s{sT}, s{sT}, 6144\ns_cmp_lt_u32 s{sT}, 393216\ns_cbranch_scc1 K1_MAXL\ns_branch K1_MAXRET")
    B["maxpass"] = X
    item = ["item"] + [f"w{n}" for n in range(10)] + ["cvt", "qk0", "peel"] + ["loop"] * 6 + ["last", "tail", "pv15", "br"]
    trace = ["entry", "pro"] + item + ["mid"] + item + k2trace
    layout = ["entry", "pro", "mid", "item"] + [f"w{n}" for n in range(10)] + ["cvt", "qk0", "peel", "loop", "last", "tail", "pv15", "br", "k2pro", "k2head", "k2loop", "k2tail", "k2epi", "k2fin", "k2side", "k2idle", "maxpass"]
    resolve_waits(B, trace)
    txt = {k: "\n".join(emit(v)).split("\n") for k, v in B.items()}
    errs = verify([l for b in trace for l in txt[b]])
    tr2 = ["entry", "pro"] + item[:12] + ["maxpass", "maxpass"] + item[12:]
    errs += verify([l for b in tr2 for l in txt[b]])
    errs += verify([l for b in ["entry", "pro"] + item + ["mid"] + item + k2idle for l in txt[b]])
    for e in errs: sys.stderr.write("K1 HAZARD " + e + "\n")
    return [l for b in layout for l in txt[b]], errs

def oproj(B, NE0):
    vR = [[1, 2, 3, 4], [5, 6, 7, 8]]; vOf = 9; vSt = 10; vW = 11; vRd = 12; t0, t1, t2, t3 = 13, 14, 15, 16; vP2 = 17; vLp = 18; vOne = 19
    KS = [X0, X1, RING]; EX = 65536
    QL = [("v", 224 + 4 * i) for i in range(8)] + [("a", Oacc(2 * (u // 4) + h, u % 4)) for u in range(11) for h in range(2)]
    def Of(d, kb, qt): return QL[10 * (d % 3) + 5 * kb + qt]
    R4 = lambda r: f"{r[0]}[{r[1]}:{r[1]+3}]"
    Oset = lambda d, kbs=(0, 1): set().union(*[regs(*Of(d, kb, qt), 4) for kb in kbs for qt in range(5)])
    def acc(t, qt): return 64 + 4 * (t * 5 + qt)
    def wq(f): return 192 + 4 * f
    sW_ = sX; sOo = 8; sOut = 12; sXs = 20; sXr = 24; sFl = 28
    sWt = 32; sOk = [33, 34]; sCnt = 39; sTt = 46; sJ = 40; sC1 = 51; sC1w = 50; sWb = 54
    def wdma(d, jump=False):
        out = []
        for j in range(8):
            if j % 4 == 0: out.append(I(f"s_add_u32 m0, s{sXoff}, {KS[d % 3] + j*1024}"))
            out += [I(f"s_add_u32 s{sTt}, s{sWt}, {j*10240 - (j % 4)*1024}"),
                    I(f"buffer_load_dwordx4 v{vDx}, {S4(sW_)}, s{sTt} offen offset:{(j % 4)*1024} lds", dst={f"X{d%3}_{j>>1}"})]
        out.append(I(f"s_add_u32 s{sWt}, s{sWt}, " + ("0" if OPT["k2fix"] & 1 else f"s{sJ}" if jump else f"{128*1280}")))
        return out
    Wt = lambda d: {f"X{d%3}_{q}" for q in range(4)}
    def oload(d, kb):
        so = sOk[kb]
        out = [I(f"buffer_load_dwordx4 {R4(Of(d, kb, qt))}, v{vOf}, {S4(sOo)}, s{so} offen offset:{qt*1024} sc1", dst=regs(*Of(d, kb, qt), 4)) for qt in range(4)]
        out.append(I(f"s_add_u32 s{sTt}, s{so}, 4096"))
        out.append(I(f"buffer_load_dwordx4 {R4(Of(d, kb, 4))}, v{vOf}, {S4(sOo)}, s{sTt} offen sc1", dst=regs(*Of(d, kb, 4), 4)))
        out.append(I(f"s_add_u32 s{so}, s{so}, {0 if OPT['k2fix'] & 2 else 4*122880}"))
        if not OPT["osc"]:
            for x in out: x.text = x.text.replace(" sc1", "")
        return out
    def wreads(d):
        out = []; w = 1 if KS[d % 3] == X1 else 0
        for t in range(8):
            for kb in range(2):
                r = wq(2 * t + kb)
                for hf in range(2):
                    it = I(f"ds_read_b64_tr_b16 a[{r+2*hf}:{r+2*hf+1}], v{vR[w][t & 3]} offset:{KS[d % 3] - w*X1 + (t >> 2)*8192 + (4*kb+2*hf)*1024}", dst=regs("a", r + 2 * hf, 2)); it.f = 2 * t + kb
                    out.append(it)
        return out
    NP = 8; G = 60
    P = [WAIT(vneed=regs("v", vPoll, 4))] + Is(f"""
v_min_u32 v{t0}, v{vPoll}, v{vPoll+1}
s_cmp_lg_u32 s{sAll}, 0
v_readfirstlane_b32 s89, v{t0}
s_cbranch_scc1 K1_REDO
s_and_b32 s{sC1}, s{sWg}, 7
s_lshl_b32 s{sC1}, s{sC1}, 7
s_add_u32 s{sC1}, s{sC1}, 64
s_cmp_eq_u32 s{sWave}, 0
s_cselect_b32 s{sC1w}, s{sC1}, 0x10000
s_add_u32 s{sFl}, s{sWsP}, {FLG}
s_addc_u32 s{sFl+1}, s{sWsP+1}, 0
s_mov_b32 s{sFl+2}, {256*128}
s_mov_b32 s{sFl+3}, 0x20000
v_mov_b32 v{vOne}, 1
v_lshlrev_b32 v{vOf}, 4, v0
s_mov_b64 {S2(sOo)}, {S2(sK2O)}
s_mov_b32 s{sOo+2}, {95*122880+5*1024}
s_mov_b32 s{sOo+3}, 0x20000
s_lshr_b32 s{sWb}, s{sWave}, 1
s_mul_i32 s{sOk[0]}, s{sWb}, {2*122880}
s_add_u32 s{sOk[1]}, s{sOk[0]}, 122880
s_cmp_lt_u32 s89, 32
s_cbranch_scc1 K2_SPIN0
K2_RET0:
s_cmp_ge_u32 s{sWg}, 240
s_cbranch_scc1 K2_IDLE""")
    B["k2pro"] = P
    r0 = vR[0][0]
    assert NE0 >= 6
    H = oload(0, 0) + oload(0, 1) + oload(1, 0) + oload(1, 1) + Is(f"""
v_lshrrev_b32 v{t2}, 5, v0
v_lshlrev_b32 v{r0}, 10, v{t2}
v_bfe_u32 v{t2}, v0, 2, 3
v_lshl_add_u32 v{r0}, v{t2}, 7, v{r0}
v_and_b32 v{t2}, 6, v{t2}
v_bfe_u32 v{t3}, v0, 1, 1
v_xor_b32 v{t2}, v{t2}, v{t3}
v_lshl_add_u32 v{r0}, v{t2}, 4, v{r0}
v_and_b32 v{t2}, 1, v0
v_lshl_add_u32 v{r0}, v{t2}, 3, v{r0}
s_xor_b32 s88, s{sWb}, 1
s_lshl_b32 s88, s88, 6
v_xor_b32 v{r0}, s88, v{r0}
s_lshl_b32 s88, s{sWb}, 14
v_add_u32 v{r0}, s88, v{r0}
v_xor_b32 v{vR[0][1]}, 32, v{r0}
v_xor_b32 v{vR[0][2]}, 64, v{r0}
v_xor_b32 v{vR[0][3]}, 96, v{r0}
s_mov_b32 s{sWt}, {128*1280+128}
s_mov_b32 s{sCnt}, 0""") + [I(f"v_add_u32 v{vR[1][i]}, {X1}, v{vR[0][i]}") for i in range(4)] + wreads(0)[:NP]
    late = Is(f"""
s_mov_b64 {S2(sOut)}, {S2(sOutP)}
s_mov_b32 s{sOut+2}, {79*2560+64}
s_mov_b32 s{sOut+3}, 0x20000
s_lshl_b32 s88, s{sWg}, 2
s_add_u32 s88, s88, s{sWave}
s_xor_b32 s89, s88, 4
s_mul_i32 s88, s88, 10240
s_mul_i32 s89, s89, 10240
s_add_u32 s88, s88, {XCH}
s_add_u32 s89, s89, {XCH}
s_add_u32 s{sXs}, s{sWsP}, s88
s_addc_u32 s{sXs+1}, s{sWsP+1}, 0
s_mov_b32 s{sXs+2}, 10240
s_mov_b32 s{sXs+3}, 0x20000
s_add_u32 s{sXr}, s{sWsP}, s89
s_addc_u32 s{sXr+1}, s{sWsP+1}, 0
s_mov_b32 s{sXr+2}, 10240
s_mov_b32 s{sXr+3}, 0x20000
s_xor_b32 s88, s{sWave}, 2
s_mul_i32 s88, s88, 20480
s_add_u32 s88, s88, {EX}
v_add_u32 v{vW}, s88, v{vOf}
s_mul_i32 s88, s{sWave}, 20480
s_add_u32 s88, s88, {EX}
v_add_u32 v{vRd}, s88, v{vOf}
v_and_b32 v{t0}, 15, v0
v_lshrrev_b32 v{t1}, 4, v0
v_lshl_add_u32 v{t0}, v{t0}, 2, v{t1}
v_lshlrev_b32 v{t0}, 4, v{t0}
v_add_u32 v{vLp}, s88, v{t0}
v_lshrrev_b32 v{t0}, 2, v0
v_and_b32 v{t1}, 3, v0
v_mul_u32_u24 v{vSt}, 2560, v{t0}
v_lshl_add_u32 v{vSt}, v{t1}, 4, v{vSt}
s_mov_b32 s88, 4096
s_mov_b32 s89, 8192""") + (Is("v_mov_b32 v22, v46\nv_mov_b32 v23, v47") if OPT["stamps"] else [])
    u0 = max(NE0 + OPT["k2e"], 11); NT = 2 if OPT["stamps"] == 9 else 3
    held = {0: []}
    for u in range(NE0, u0):
        e = epi_unit(u, True, True)
        if u >= u0 - NT: held[0].append(e.pop())
        H += e
    H += [WAIT(lneed=regs("a", wq(0), 8), vneed=Oset(0))] + stamp(49)
    left = list(range(u0, 24)); body = {}
    for d in range(6):
        body[d] = []; held[d + 1] = []
        for u in left[d * NT:(d + 1) * NT]:
            e = epi_unit(u, False, True); held[d + 1].append(e.pop()); body[d] += e
    SG = max(d for d in held if held[d]) + 1
    assert SG <= 5
    TM = 24
    so = lambda q: ["0", "s88", "s89"][q // 4]
    def step(d, mode):
        mf = []
        for t in range(8):
            for qt in range(5):
                for kb in range(2):
                    a = acc(t, qt)
                    mf.append(mfma(V4(a), A4(wq(2 * t + kb)), R4(Of(d, kb, qt)), "0" if (d == 0 and kb == 0) else V4(a)))
        own = wreads(d)[NP:]
        ws = [WAIT(lneed=regs("a", wq(2 * t), 8), lo=10 * t - 3, hi=10 * t - 1, target=10 * t - 2) for t in range(1, 7)]
        if d == 23:
            G2 = 39
            spread(own, 0, 24)
            for it in own: it.hi = G2 - 4
            w3 = [I(f"ds_write_b128 v{vW}, {V4(64 + 4*q)} offset:{q*1024}", lo=24, target=24 + q, hi=G2 - 3) for q in range(10)]
            for x in w3: x.cost = 8
            bar = BAR(None, lo=G2, hi=G2)
            rd = [I(f"ds_read_b128 {V4(TM + 4*q)}, v{vRd} offset:{q*1024}", dst=regs("v", TM + 4 * q, 4), after=[bar]) for q in range(10)]
            spread(rd, G2 + 1, G2 + 11)
            ad = []
            for q in range(10):
                if q % 2 == 0: ad.append(WAIT(lneed=regs("v", TM + 4 * q, 8), after=[rd[q + 1]]))
                ad += [I(f"v_add_f32 v{104+4*q+j}, v{104+4*q+j}, v{TM+4*q+j}") for j in range(4)]
                ad.append(I(f"buffer_store_dwordx4 {V4(104+4*q)}, v{vOf}, {S4(sXs)}, {so(q)} offen offset:{(q%4)*1024} sc1"))
            spread(ad, G2 + 9, 80)
            return schedule(mf, [ws[:3], own + [bar] + rd, w3, ad], novalu=range(G2, G2 + 9), name=f"k2s{d}")
        nxt = wreads(d + 1)[:NP]
        spread(own, 0, G - 6)
        for it in own: it.hi = min(it.hi, 10 * (it.f >> 1) - 7); it.target = min(it.target, it.hi - 1)
        bar = BAR(Wt(d + 1) | ({"OST"} if (mode == "head" and d == SG) else set()), lo=G, hi=G)
        for it in nxt: it.after = [bar]
        spread(nxt, G + 1, 76)
        ws.append(WAIT(lneed=regs("a", wq(0), 8), vneed=Oset(d + 1), lo=78, hi=79, target=78.5))
        vm = []; pos = d % 3
        if mode == "loop" and pos == 0:
            vm += Is(f"s_cmp_eq_u32 s{sCnt}, 1\ns_cselect_b32 s88, s{sC1}, 0x10000\ns_cselect_b32 s{sJ}, {1536*1280}, 0\ns_add_u32 s{sJ}, s{sJ}, {128*1280}")
            vm += [I(f"buffer_load_dword v{vP2}, off, {S4(sFl)}, s88 sc1", dst={f"v{vP2}"})]
        if d > 0: vm += oload(d + 1, 1)
        if mode == "head": vm += held[d]
        if d + 2 <= 23: vm += wdma(d + 2, jump=(mode == "loop" and pos == 0))
        if mode == "loop" and pos == 1:
            chk = Is(f"v_readfirstlane_b32 s88, v{vP2}\ns_cmp_eq_u32 s{sCnt}, 1\ns_cselect_b32 s89, 32, 0")
            vm = chk + vm + [Ins("s_cmp_lt_u32 s88, s89\ns_cbranch_scc1 K2_SPIN1\nK2_RET1:", kind="bar")]
        if d + 2 <= 23: vm += oload(d + 2, 0)
        if mode == "head" and d == SG:
            at = atomic(vOne, sC1w, sFl); at.after = [bar]; vm.append(at)
        if mode == "loop" and pos == 2: vm += Is(f"s_add_u32 s{sCnt}, s{sCnt}, 1\ns_cmp_lt_u32 s{sCnt}, 5")
        if d == 22: vm += late
        if OPT['ev'] and d < 22: even(vm, 0, 80, [G])
        else: spread(vm, 0, 80 if d < 22 else 56, [G])
        es = []
        if mode == "head" and body[d]:
            es = body[d]
            for k in range(len(es) // 20): es[20 * k].after = [held[d][k]]; es[20 * k].dly = 1
            spread(es, held[d][0].lo + 2, 79, range(G, G + 9))
        return schedule(mf, [ws, own + [bar] + nxt, vm, es], novalu=range(G, G + 9), name=f"k2s{d}")
    B["k2head"] = H + [x for d in range(6) for x in step(d, "head") + (stamp(40 + d, True) if OPT["stamps"] == 5 and d < 5 else [])] + stamp(50)
    B["k2loop"] = Is(".p2align 6\nK2_L:") + [x for d in range(6, 9) for x in step(d, "loop")] + (stamp(-2) if OPT["stamps"] == 5 else []) + Is("s_cbranch_scc1 K2_L")
    B["k2tail"] = stamp(47, True) + [x for d in range(21, 24) for x in step(d, "tail") + (stamp(55 + d - 21) if OPT["stamps"] == 5 and d == 22 else stamp(45, True) if OPT["stamps"] == 5 and d == 21 else [])]
    KP = 184; RD = 64
    pa = lambda a, b: I(f"v_pk_add_f32 v[{a}:{a+1}], v[{a}:{a+1}], v[{b}:{b+1}]")
    E = stamp(51) + (Is(f"v_writelane_b32 v22, s{sSp}, 61") if OPT["stamps"] else []) + [I(f"ds_write_b128 v{vW}, {V4(144 + 4*q)} offset:{10240 + q*1024}") for q in range(10)]
    E += Is(f"""s_lshl_b32 s84, s{sWg}, 7
s_xor_b32 s85, s84, 128
s_cmp_eq_u32 s{sWave}, 0
s_cselect_b32 s84, s84, 0x10000
s_waitcnt vmcnt(0) lgkmcnt(0)
s_barrier
s_mov_b64 exec, 1
buffer_store_dword v{vOne}, off, {S4(sFl)}, s84 sc1
s_mov_b64 exec, -1""") + stamp(52) + [I(f"buffer_load_dword v{t2}, off, {S4(sFl)}, s85 sc1", dst={f"v{t2}"})]
    E += [I(f"ds_read_b128 {V4(TM + 4*q)}, v{vRd} offset:{10240 + q*1024}", dst=regs("v", TM + 4 * q, 4)) for q in range(10)]
    E += [WAIT(lzero=True)] + [pa(KP + 2 * h, TM + 2 * h) for h in range(20)]
    E += Is(f"""K2_POLL:
s_waitcnt vmcnt(0)
v_readfirstlane_b32 s86, v{t2}
s_nop 3
s_cmp_eq_u32 s86, 1
s_cbranch_scc1 K2_GO
s_add_u32 s{sSp}, s{sSp}, 1
s_cmp_gt_u32 s{sSp}, 0x40000
s_cbranch_scc1 K2_GO
buffer_load_dword v{t2}, off, {S4(sFl)}, s85 sc1
s_branch K2_POLL""")
    B["k2epi"] = E
    E = Is("K2_GO:") + stamp(53)
    order = [q for qt in range(5) for q in (qt, 5 + qt)]
    for q in order: E.append(I(f"buffer_load_dwordx4 {V4(RD+4*q)}, v{vOf}, {S4(sXr)}, {so(q)} offen offset:{(q%4)*1024} sc1", dst=regs("v", RD + 4 * q, 4)))
    for qt in range(5):
        E.append(WAIT(vneed=regs("v", RD + 4 * (5 + qt), 4)))
        for q in (qt, 5 + qt):
            for h in range(2): E.append(pa(KP + 4 * q + 2 * h, RD + 4 * q + 2 * h))
        a, b = KP + 4 * qt, KP + 4 * (5 + qt)
        E += Is(f"""v_cvt_pk_bf16_f32 v{a}, v{a}, v{a+1}
v_cvt_pk_bf16_f32 v{a+1}, v{a+2}, v{a+3}
v_cvt_pk_bf16_f32 v{a+2}, v{b}, v{b+1}
v_cvt_pk_bf16_f32 v{a+3}, v{b+2}, v{b+3}
s_nop 1
v_permlane16_swap_b32 v{a}, v{a+2}
v_permlane16_swap_b32 v{a+1}, v{a+3}
ds_write_b128 v{vLp}, {V4(a)} offset:{qt*1024}""") + [I(f"ds_read_b128 {V4(144+4*qt)}, v{vRd} offset:{qt*1024}", dst=regs("v", 144 + 4 * qt, 4))]
    for qt in range(5):
        E += [I(f"s_mov_b32 s87, {qt*16*2560}"), WAIT(lneed=regs("v", 144 + 4 * qt, 4)), I(f"buffer_store_dwordx4 {V4(144+4*qt)}, v{vSt}, {S4(sOut)}, s87 offen")]
    E += stamp(54) + (Is(f"v_writelane_b32 v22, s{sSp}, 60\nv_writelane_b32 v23, s87, 60") if OPT["stamps"] else []) + Is("K1_DONE:") + stamp_out(S2(sKA), sWg, sWave, t0, 0x4000000)
    E += Is("K1_END:\ns_endpgm")
    B["k2fin"] = E
    spin = lambda nm, ret, ld, rd: Is(f"""{nm}:
s_add_u32 s{sSp}, s{sSp}, 1
s_cmp_gt_u32 s{sSp}, 0x40000
s_cbranch_scc1 {ret}
s_sleep 4
{ld}
s_waitcnt vmcnt(0)
{rd}
s_nop 3
s_cmp_lt_u32 s88, 32
s_cbranch_scc1 {nm}
s_branch {ret}""")
    B["k2side"] = Is(f"""K1_REDO:
s_mov_b32 s{sMode}, 1
s_waitcnt vmcnt(0) lgkmcnt(0)
s_barrier
s_branch K1_PRO""") + spin("K2_SPIN0", "K2_RET0", f"buffer_load_dwordx2 v[{vPoll}:{vPoll+1}], off, {S4(sDb)}, s{sCo} sc1", f"v_min_u32 v{t0}, v{vPoll}, v{vPoll+1}\ns_nop 0\nv_readfirstlane_b32 s88, v{t0}") \
        + spin("K2_SPIN1", "K2_RET1", f"buffer_load_dword v{vP2}, off, {S4(sFl)}, s{sC1} sc1", f"v_readfirstlane_b32 s88, v{vP2}")
    D = Is("K2_IDLE:")
    for u in range(NE0, 24): D += epi_unit(u, True)
    D += Is("s_waitcnt vmcnt(0)\ns_barrier") + [atomic(vOne, sC1w, sFl)]
    if OPT["pfs"]:
        S0 = OPT["pfs"]
        D += Is(f"""s_mov_b64 {S2(sOo)}, {S2(sWoP)}
s_mov_b32 s{sOo+2}, s{sK2n}
s_mov_b32 s{sOo+3}, 0x20000
s_bfe_u32 s80, s{sWg}, 0x10003
s_lshl_b32 s80, s80, 14
s_add_u32 s80, s80, {S0*163840}
s_mov_b32 s81, {S0*5}
K2_PFL:""") + [I(f"buffer_load_dwordx4 {V4(64+4*j)}, v{vO}, {S4(sOo)}, s80 offen offset:{j*1024}", dst=regs("v", 64 + 4 * j, 4)) for j in range(4)] + Is(f"""s_add_u32 s81, s81, 1
s_cmp_eq_u32 s81, 60
s_cselect_b32 s82, {1536*1280}, 0
s_add_u32 s80, s80, s82
s_add_u32 s80, s80, 32768
s_waitcnt vmcnt(24)
s_cmp_lt_u32 s81, 120
s_cbranch_scc1 K2_PFL""")
    D += (Is("v_mov_b32 v22, v46\nv_mov_b32 v23, v47") if OPT["stamps"] else []) + Is("s_branch K1_DONE")
    B["k2idle"] = D
    return ["k2pro", "k2head"] + ["k2loop"] * 5 + ["k2tail", "k2epi", "k2fin"], ["k2pro", "k2idle"]

def desc(name, vg=512, acc=256):
    return f""".p2align 6
.amdhsa_kernel {name}
  .amdhsa_next_free_vgpr {vg}
  .amdhsa_next_free_sgpr 102
  .amdhsa_accum_offset {acc}
  .amdhsa_group_segment_fixed_size 0
  .amdhsa_kernarg_size 104
  .amdhsa_user_sgpr_count 2
  .amdhsa_user_sgpr_kernarg_segment_ptr 1
  .amdhsa_system_sgpr_workgroup_id_x 1
  .amdhsa_float_denorm_mode_32 3
.end_amdhsa_kernel"""

def main():
    k1, e1 = kernel1()
    ref = open("cdna_kernels/" + NAME + ".s.ref").read().split("\n")
    head = [l for l in ref if l.startswith(";") and "@launch" not in l]
    nm = NAME + "_kernel"
    out = head + [f"; @launch grid=(256,1,1) block=(256,1,1) lds=163840",
                  '.amdgcn_target "amdgcn-amd-amdhsa--gfx950"', ".text"]
    out += [f".globl {nm}", ".p2align 8", f".type {nm},@function", f"{nm}:"] + k1
    out += ["K_CODE_END:", "s_endpgm", '.section .rodata,"a"', desc(nm)]
    open(sys.argv[1], "w").write("\n".join(out) + "\n")
    if e1: sys.exit(1)
main()
```

```python
import sys, math
from asmlib import *
from verify import verify

OPT = dict(nt_kv=1, nt_w=0, nt_x=0, nt_o=2, k2_nt_o=2, k2_nt_w=0, stamps=0, ovl=1, ne0=6, nc9=7, pf=1, cpf=1, k2e=9, sigs=4, pfs=5, cpl=1, k2fix=0, osc=1, ev=1, lmf=0, padn=0, padm=0, enc=0)
for a in sys.argv[2:]:
    k, v = a.split("="); OPT[k] = int(v)
NAME = "concat_heads__gqa_block_cached__gqa_block_cached__near_ridge"
MF = "v_mfma_f32_16x16x32_bf16"
def I(t, **kw): return Ins(t, **kw)
def Is(txt): return [Ins(t.strip()) for t in txt.strip().split("\n") if t.strip()]
def mfma(d, a, b, c): return Ins(f"{MF} {d}, {a}, {b}, {c}")
def V4(b): return f"v[{b}:{b+3}]"
def A4(b): return f"a[{b}:{b+3}]"

TILE = 24576; WS = 64 * 12288
X0 = 0; RING = 32768; X1 = 131072
def slot(i): return RING + i * TILE
vK = [[1, 2], [3, 4]]; KW = [0, 65536]
vV = [[5, 6, 7, 8], [9, 10, 11, 12]]; VW = [32768, 98304]
vXr = [[13, 14], [15, 16]]
vD = [17, 18]; vDkv = 19; vDw = 20; vDx = 21; vO = 22; vO3 = 23
vL = [24, 25, 26, 27]; vMi = [28, 29, 30, 31]; vT = 32
NEGM = 48; SP = 64; QF = 160
RCP = 48
def negm(qt): return NEGM + 4 * qt
def XY(par, kb, qt): return SP + 4 * ((par * 2 + kb) * 4 + qt)
def Z(kb, qt): return SP + 64 + 4 * (kb * 4 + qt)
def Qf(qt, s): return QF + 4 * (qt * 6 + s)
def Qb(qt, s):
    return SP + 4 * (qt * 6 + s)
def Oacc(t, qt): return 4 * (t * 4 + qt)
def Xf(n, kb, qt): return 32 * (n & 1) + 4 * (qt * 2 + kb)
FR = 192
def fq(n, f): return FR + 4 * ((f + 8 * (n & 1)) % 16)
sX = 4; sDA = 8; sDB = 12; sO = 16
sK = 20; sV = 22; sNb = 24; sNnum = 26; sNs = 27; sNd = 28; sXnum = 29; sN2 = 30; sMask = 32
sA = 34; sB = 35; sI = 39; sWoff = 40; sXoff = 41
sOs = [42, 43, 44, 45, 37, 38]; sT = 46; sItem = 47; sMode = 48; sFlag = 49; sC = 50
sWave = 52; sWg = 53; sT2 = 54; sT3 = 55; sThr = 56; sKA = 58
sLd = 4
sP1 = 60; vPf = 248; vPoll = 228
sWoP = 64; sOutP = 66; sWsP = 68; sSig = 70; sPfo = 71; sDb = 72; sCo = 76; sOn = 77; sSp = 78
sCp = 97; sK2n = 79; sXd = 57; sAll = 36; sXn = 98; sK2O = 100; FLO = RING + 3 * TILE
FLG = 0x3000000; XCH = 0x3100000
def S4(b): return f"s[{b}:{b+3}]"
def S2(b): return f"s[{b}:{b+1}]"
BG = 76
NOV = range(BG, BG + 9)
NPRE_V = 10; NPRE_K = 6
OSTRIDE = 48 * 120 * 1024

def lastuse_pv(f): return 8 * (f >> 1) + 6 + (f & 1)
def lastuse_qk(f): kt, s = divmod(f, 6); return 24 * kt + 18 + (5 - s)

def reads_v(n, base):
    out = []
    for f in range(24):
        t, kb = f >> 1, f & 1
        r = fq(n, f)
        for hf in range(2):
            off = base + (4 * kb + 2 * hf) * 3072 + (t >> 2) * 1024
            w = 1 if off >= VW[1] else 0
            it = I(f"ds_read_b64_tr_b16 a[{r+2*hf}:{r+2*hf+1}], v{vV[w][t & 3]} offset:{off-VW[w]}", dst=regs("a", r + 2 * hf, 2)); it.f = f
            out.append(it)
    return out
def reads_k(n, base):
    out = []
    for f in range(24):
        kt, s = divmod(f, 6); r = fq(n, f)
        off = base + kt * 6144 + (s >> 1) * 1024
        w = 1 if off >= KW[1] else 0
        it = I(f"ds_read_b128 {A4(r)}, v{vK[w][s & 1]} offset:{off-KW[w]}", dst=regs("a", r, 4)); it.f = f
        out.append(it)
    return out
def reads_x(n):
    return [I(f"ds_read_b128 {A4(Xf(n, kb, qt))}, v{vXr[n & 1][kb]} offset:{qt*2048}", dst=regs("a", Xf(n, kb, qt), 4)) for qt in range(4) for kb in range(2)]

def dma(srd, soff, base, nt):
    n = " nt" if nt else ""
    out = []
    for p in range(3):
        m = I(f"s_add_u32 m0, s{sWoff}, {base + 896*p}")
        a = I(f"buffer_load_dwordx4 v{vD[0]}, {S4(srd)}, s{soff} offen offset:{p*128}{n} lds", dst={f"L{base}"}, after=[m])
        b = I(f"buffer_load_dwordx4 v{vD[1]}, {S4(srd)}, s{soff} offen offset:{p*128+3072}{n} lds", dst={f"L{base}"})
        out += [m, a, b]
    return out
def dma_w(m): return [I(f"s_mov_b32 s{sT2}, {m*WS}")] + dma(sDA, sT2, slot(m % 4), OPT["nt_w"])
def dma_k(i, base): return [I(f"s_mov_b32 s{sT2}, {i*TILE}")] + dma(sDA, sT2, base, OPT["nt_kv"])
def dma_v(i, base): return [I(f"s_mov_b32 s{sT2}, {i*TILE}")] + dma(sDB, sT2, base, OPT["nt_kv"])
def dma_n(m): return [I(f"s_mul_i32 s{sT2}, s{sNs}, {m}")] + dma(sDA, sT2, slot(m), OPT["nt_w"])
def hd(d): return d[:-6]
def tl(d): return d[-6:]
def dma_x(n):
    out = []; base = X1 if n & 1 else X0
    for j in range(8):
        if j % 4 == 0: out.append(I(f"s_add_u32 m0, s{sXoff}, {base + j*1024}"))
        out.append(I(f"s_mov_b32 s{sT}, {j*10240 - (j % 4)*1024 + n*128}"))
        out.append(I(f"buffer_load_dwordx4 v{vDx}, {S4(sX)}, s{sT} offen offset:{(j % 4)*1024}" + (" nt" if OPT["nt_x"] else "") + " lds", dst={f"X{n&1}_{j>>1}"}))
    return out

def phase(name, n, typ, mf, own, nxt, nxt_typ, pub, early, dmas, extra=(), post=(), early_hi=BG - 6, endneed=None):
    lu = lastuse_pv if typ == "v" else lastuse_qk
    rs = []
    if typ == "v":
        k0 = 48 - len(own)
        for j, it in enumerate(own):
            it.target = -18 + (k0 + j) * 88 / 48
            it.hi = min(8 * (it.f >> 1) - 6, BG - 5)
            if it.f >= 16: it.lo = lu(it.f - 16)
            it.hi = max(it.hi, it.lo)
    else:
        for j, it in enumerate(own):
            kt, s = divmod(it.f, 6)
            it.target = 24 * (kt - 1) + 1 + s * 2.5; it.hi = 24 * kt - 8
            if it.f >= 16: it.lo = lu(it.f - 16)
    rs += own
    bar = BAR(pub if isinstance(pub, set) else {f"L{pub}"}, lo=BG, hi=BG); rs.append(bar)
    for j, it in enumerate(nxt):
        it.lo = max(BG + 1, lu(it.f + 8)); it.after = [bar]
        it.target = BG + 1 + (j * 1.8 if nxt_typ == "v" else j * 1.5); it.hi = 95 if nxt_typ == "v" and j >= 4 else 88
    rs += nxt
    ws = []
    if typ == "v":
        for t in range(1, 12):
            if 8 * t - 1 >= BG: break
            ws.append(WAIT(lneed=regs("a", fq(n, 2 * t), 4) | regs("a", fq(n, 2 * t + 1), 4), lo=8 * t - 3, hi=8 * t - 1, target=8 * t - 2))
    else:
        for kt in range(1, 4):
            ws.append(WAIT(lneed=set().union(*[regs("a", fq(n, 6 * kt + s), 4) for s in range(6)]), lo=24 * kt - 3, hi=24 * kt - 1, target=24 * kt - 2))
    nf = 2 if nxt_typ == "v" else 6
    ws.append(WAIT(lneed=set().union(*[regs("a", fq(n + 1, f), 4) for f in range(nf)]) | (endneed or set()), lo=94, hi=95, target=94.5))
    ms = list(early)
    spread(ms, 1, early_hi)
    nv = sum(1 for it in dmas if it.kind == "vmem"); k = 0
    for it in dmas:
        it.lo = BG + 1 if it.kind == "vmem" else BG - 4
        it.target = BG + 2 + k * min(8.0, 17.0 / max(nv, 1)) - (0 if it.kind == "vmem" else 2.5)
        if it.kind == "vmem": it.after = it.after + [bar]; k += 1
    ms += dmas
    for it in post: it.lo = BG + 1; it.target = 90
    ms += list(post)
    return schedule(mf, [ws, rs, ms] + list(extra), novalu=NOV, name=name)

def softmax(par, kb, lo, hi, zdead=None, sub=None, los=None, skip=NOV):
    E = []; D = []; P = []
    for qt in range(4):
        x, z = XY(par, kb, qt), Z(kb, qt)
        src = [x, x + 1, x + 2, x + 3, z, z + 1, z + 2, z + 3]
        for pr in range(4):
            es = []
            for e in range(2):
                r = src[2 * pr + e]
                ex = I(f"v_exp_f32 v{r}, v{r}")
                if sub:
                    sb = I(f"v_add_f32 v{r}, v{r}, v{negm(qt)}", after=[sub[qt]], lo=los[qt][pr >> 1]); P.append(sb); ex.after = [sb]
                E.append(ex); es.append(ex)
                if not OPT["lmf"]: D.append(I(f"v_add_f32 v{vL[qt]}, v{vL[qt]}, v{r}", after=[ex]))
            c = I(f"v_cvt_pk_bf16_f32 v{x+pr}, v{src[2*pr]}, v{src[2*pr+1]}", after=es)
            if zdead: c.hi = zdead(qt)
            D.append(c)
    spread(E, lo, hi, skip)
    for e in E: e.hi = 94
    for d in D:
        d.target = max(a.target for a in d.after) + 1
        for a in d.after: a.hi = min(a.hi, d.hi - 1)
    for p, e in zip(P, E): p.target = e.target - 3; p.hi = e.hi - 1
    return ([P] if sub else []) + [E, D]

def mf_w(n):
    out = []
    for t in range(12):
        for qt in range(4):
            d = Qf(qt, t >> 1) if t % 2 == 0 else Qb(qt, t >> 1)
            for kb in range(2):
                out.append(mfma(V4(d), A4(fq(n, 2 * t + kb)), A4(Xf(n, kb, qt)), "0" if (n == 0 and kb == 0) else V4(d)))
    return out
def mf_qk(n, par, first=False):
    out = []
    for kt in range(4):
        for qt in range(4):
            d = XY(par, kt >> 1, qt) if kt % 2 == 0 else Z(kt >> 1, qt)
            order = range(6) if qt % 2 == 0 else range(5, -1, -1)
            for j, s in enumerate(order):
                c = V4(d) if j else ("0" if (first and kt < 2) else V4(negm(qt)))
                out.append(mfma(V4(d), A4(fq(n, 6 * kt + s)), V4(Qf(qt, s)), c))
    return out
def mf_l(par, first=False):
    if not OPT["lmf"]: return []
    return [mfma(V4(vL[0]), V4(32 + 4 * qt), V4(XY(par, kb, qt)), "0" if (first and qt + kb == 0) else V4(vL[0])) for kb in range(2) for qt in range(4)]
def mf_pv(n, par, first=False):
    out = []
    for t in range(12):
        for qt in range(4):
            for kb in range(2):
                out.append(mfma(A4(Oacc(t, qt)), A4(fq(n, 2 * t + kb)), V4(XY(par, kb, qt)), "0" if (first and kb == 0) else A4(Oacc(t, qt))))
    return out

ETMP = [32, 40, 56]
def epi_unit(u, packed, k2=False):
    s, qt = divmod(u, 4)
    tb = [24, 32, 56][u % 3] if k2 else ETMP[u % 3] if not OPT["stamps"] else [32, 56][u % 2]
    out = []
    rc = RCP + 2 * qt
    for h in range(2):
        for j in range(4): out.append(I(f"v_accvgpr_read_b32 v{tb+4*h+j}, a{Oacc(2*s+h, qt)+j}"))
        if packed:
            for j in range(2): out.append(I(f"v_pk_mul_f32 v[{tb+4*h+2*j}:{tb+4*h+2*j+1}], v[{tb+4*h+2*j}:{tb+4*h+2*j+1}], v[{rc}:{rc+1}]"))
        else:
            for j in range(4): out.append(I(f"v_mul_f32 v{tb+4*h+j}, v{tb+4*h+j}, v{rc}"))
        for j in range(2): out.append(I(f"v_cvt_pk_bf16_f32 v{tb+2*h+j}, v{tb+4*h+2*j}, v{tb+4*h+2*j+1}"))
    out.append(I(f"buffer_store_dwordx4 {V4(tb)}, v{vO3 if qt == 3 else vO}, {S4(sO)}, s{sOs[s]} offen offset:{qt*1024}" + ["", " nt", " sc1", " sc0 sc1"][OPT["nt_o"]], dst={"OST"}))
    return out
def cvt_unit(s, qt, packed):
    a, b = Qf(qt, s), Qb(qt, s)
    out = []
    if packed:
        for r in (a, a + 2, b, b + 2): out.append(I(f"v_pk_mul_f32 v[{r}:{r+1}], v[{r}:{r+1}], {S2(sC)}"))
    else:
        for r in (a, a + 1, a + 2, a + 3, b, b + 1, b + 2, b + 3): out.append(I(f"v_mul_f32 v{r}, s{sC}, v{r}"))
    out += Is(f"""v_cvt_pk_bf16_f32 v{a}, v{a}, v{a+1}
v_cvt_pk_bf16_f32 v{a+1}, v{a+2}, v{a+3}
v_cvt_pk_bf16_f32 v{a+2}, v{b}, v{b+1}
v_cvt_pk_bf16_f32 v{a+3}, v{b+2}, v{b+3}""")
    sw = Is(f"v_permlane16_swap_b32 v{a}, v{a+2}\nv_permlane16_swap_b32 v{a+1}, v{a+3}")
    return out, sw

def pf():
    return [I(f"v_add_u32 v{vPf}, s{sPfo}, v{vO}")] + [I(f"buffer_load_dwordx4 {V4(252)}, v{vPf}, {S4(sP1)}, " + ("0" if j < 4 else f"s{sT3}") + f" offen offset:{(j % 4)*1024}", dst=regs("v", 252, 4)) for j in range(6)]

def atomic(v, so, srd=None):
    it = Ins(f"s_mov_b64 exec, 1\nbuffer_atomic_add v{v}, off, {S4(srd or sDb)}, s{so}\ns_mov_b64 exec, -1", kind="vmem"); it.cost = 8
    return it
def codepf(va, first):
    out = []
    if first: out = [Ins("s_getpc_b64 s[82:83]\nK1_PC2:", kind="salu")] + Is(f"""s_sub_u32 s82, s82, K1_PC2-K1_ITEM
s_subb_u32 s83, s83, 0
s_and_b32 s82, s82, 0xfffffff0
s_lshr_b32 s84, s{sWg}, 3
s_lshl_b32 s84, s84, 2
s_add_u32 s84, s84, s{sWave}
s_lshl_b32 s84, s84, 10
v_lshl_add_u32 v{va}, v0, 4, s84
v_min_u32 v{va}, (K_CODE_END-K1_ITEM-32)&0xfffffff0, v{va}
v_mov_b32 v{va+1}, s83
v_add_co_u32 v{va}, vcc, s82, v{va}""")
    if first:
        c = I(f"v_addc_co_u32 v{va+1}, vcc, 0, v{va+1}, vcc", after=[out[-1]], dly=1); out.append(c)
        return out
    return [I(f"global_load_dword v30, v[{va}:{va+1}], off", dst={"v30"})]

def lin(items):
    out = []
    for k, it in enumerate(items):
        out.append(it)
        if it.text.startswith("s_add_u32 m0") and items[k + 1].kind == "vmem": out.append(I("s_nop 0"))
    return out

def stamp(idx, k2=False):
    if not OPT["stamps"]: return []
    va, vb = (22, 23) if idx >= 51 else (46, 47)
    if idx == -2: sel = "s_add_u32 s92, s39, 31"
    elif idx < 0: sel = f"s_mul_i32 s92, s{sItem}, 24\ns_add_u32 s92, s92, s{sI}\ns_add_u32 s92, s92, 8"
    else: sel = f"s_mov_b32 s92, {idx}" if (k2 or idx >= 48) else f"s_mul_i32 s92, s{sItem}, 24\ns_add_u32 s92, s92, {idx}"
    return Is(f"""s_memtime s[90:91]
s_memrealtime s[94:95]
s_waitcnt lgkmcnt(0)
s_cselect_b32 s96, 1, 0
{sel}
s_mov_b32 s93, m0
s_mov_b32 m0, s92
v_writelane_b32 v{va}, s90, m0
v_writelane_b32 v{vb}, s94, m0
s_mov_b32 m0, s93
s_cmp_lg_u32 s96, 0""")
def stamp_out(karg, wg, wave, tmp, base, k2=False):
    if not OPT["stamps"]: return []
    va = 22
    return Is(f"""s_load_dwordx2 s[80:81], {karg}, 96
s_waitcnt lgkmcnt(0)
s_add_u32 s80, s80, {base}
s_addc_u32 s81, s81, 0
s_mov_b32 s82, 0x100000
s_mov_b32 s83, 0x20000
s_lshl_b32 s84, s{wg}, 2
s_add_u32 s84, s84, s{wave}
s_lshl_b32 s84, s84, 9
v_lshlrev_b32 v{tmp}, 3, v0
buffer_store_dwordx2 v[{va}:{va+1}], v{tmp}, s[80:83], s84 offen""")


def kernel1():
    B = {}
    c = math.log2(math.e) / math.sqrt(192.0)
    import struct
    cbits = struct.unpack("<I", struct.pack("<f", c))[0]
    B["entry"] = Is(f"""
s_cmp_ge_u32 s2, 256
s_cbranch_scc1 K1_END
s_mov_b32 s{sWg}, s2
s_mov_b64 {S2(sKA)}, s[0:1]
s_mov_b32 s{sMode}, 0
s_mov_b32 s{sSig}, 0
s_mov_b32 s{sSp}, 0""") + (Is(f"""
s_getpc_b64 s[90:91]
K1_PC:
s_lshr_b32 s92, s2, 3
s_lshl_b32 s92, s92, 12
v_lshl_add_u32 v36, v0, 4, s92
v_min_u32 v36, (K_CODE_END-K1_PC-32)&0xfffffff0, v36
s_and_b32 s90, s90, 0xfffffff0
v_mov_b32 v37, s91
v_add_co_u32 v36, vcc, s90, v36
s_nop 1
v_addc_co_u32 v37, vcc, 0, v37, vcc""") + [I("global_load_dwordx4 v[40:43], v[36:37], off", dst=regs("v", 40, 4))] if OPT["cpf"] else []) + Is(f"""
v_lshrrev_b32 v{vT}, 6, v0
v_and_b32 v0, 63, v0
v_mov_b32 v47, 0
v_readfirstlane_b32 s{sWave}, v{vT}
""") + stamp(48)
    P = Is("K1_PRO:") + Is(f"""
s_load_dwordx4 s[4:7], {S2(sKA)}, 0
s_load_dwordx4 s[8:11], {S2(sKA)}, 16
s_load_dwordx4 s[12:15], {S2(sKA)}, 32
s_load_dwordx4 s[16:19], {S2(sKA)}, 48
s_load_dwordx4 s[20:23], {S2(sKA)}, 64
s_load_dwordx4 s[24:27], {S2(sKA)}, 80
s_load_dwordx2 {S2(sWsP)}, {S2(sKA)}, 96
s_lshr_b32 s{sT2}, s{sWg}, 3
s_and_b32 s88, s{sWg}, 1
s_and_b32 s89, s{sT2}, 7
s_lshl_b32 s82, s88, 3
s_add_u32 s84, s82, s89
s_bfe_u32 s83, s{sWg}, 0x10001
s_lshl_b32 s83, s83, 2
s_lshr_b32 s82, s{sT2}, 3
s_add_u32 s{sT}, s83, s82
s_mul_i32 s82, s{sT}, 307200
s_lshl_b32 s83, s{sT}, 5
s_add_u32 s83, s83, s84
s_mul_i32 s83, s83, 393216
s_mul_i32 s84, s84, 384
s_bfe_u32 s{sT3}, s{sWg}, 0x10002
s_lshl_b32 s85, s{sT3}, 5
s_lshl_b32 s86, s88, 4
s_add_u32 s85, s85, s86
s_add_u32 s85, s85, s89
s_mul_i32 s85, s85, 720
s_mul_i32 s86, s{sT}, 15
s_add_u32 s85, s85, s86
s_lshl_b32 s85, s85, 10
s_and_b32 s88, s{sWg}, 3
s_lshl_b32 s89, s{sT2}, 2
s_add_u32 s88, s88, s89
s_mul_i32 s{sWoff}, s{sWave}, 6144
s_lshl_b32 s{sXoff}, s{sWave}, 13
""")
    t0, t1, t2, t3 = vT, vT + 1, vT + 2, vT + 3
    P += Is(f"""
v_lshrrev_b32 v{t0}, 3, v0
v_and_b32 v{t1}, 7, v0
v_and_b32 v{t2}, 6, v{t0}
v_xor_b32 v{t1}, v{t1}, v{t2}
v_mul_u32_u24 v{vDkv}, 384, v{t0}
v_lshl_add_u32 v{vDkv}, v{t1}, 4, v{vDkv}
v_add_u32 v{vDkv}, s{sWoff}, v{vDkv}
s_lshl_b32 s86, s{sWave}, 6
v_add_u32 v{t2}, s86, v{t0}
v_mul_u32_u24 v{vDx}, 1280, v{t2}
v_lshl_add_u32 v{vDx}, v{t1}, 4, v{vDx}
v_and_b32 v{t2}, 4, v{t1}
v_and_b32 v{t3}, 1, v{t1}
v_lshl_or_b32 v{t2}, v{t3}, 1, v{t2}
v_bfe_u32 v{t3}, v{t1}, 1, 1
v_or_b32 v{t1}, v{t2}, v{t3}
v_and_b32 v{t2}, 3, v{t0}
v_lshrrev_b32 v{t3}, 2, v{t0}
v_lshl_add_u32 v{t2}, v{t3}, 3, v{t2}
s_lshr_b32 s86, s{sWave}, 1
s_lshl_b32 s86, s86, 5
s_and_b32 s87, s{sWave}, 1
s_lshl_b32 s87, s87, 2
s_add_u32 s86, s86, s87
v_add_u32 v{t2}, s86, v{t2}
v_mul_u32_u24 v{vDw}, 12288, v{t2}
v_lshl_add_u32 v{vDw}, v{t1}, 4, v{vDw}
v_mov_b32 v{vD[0]}, v{vDw}
v_add_u32 v{vD[1]}, {196608-3072}, v{vDw}
s_waitcnt lgkmcnt(0)
s_cmp_eq_u32 s{sT3}, 0
s_cselect_b64 s[90:91], s[4:5], s[14:15]
s_cselect_b64 s[92:93], s[6:7], s[16:17]
s_cselect_b64 s[94:95], s[8:9], s[18:19]
s_cselect_b64 s[96:97], s[10:11], s[20:21]
s_cselect_b64 {S2(sWoP)}, s[12:13], s[22:23]
s_mov_b64 {S2(sOutP)}, s[24:25]
s_mov_b64 {S2(sDb)}, s[26:27]
s_add_u32 s{sX}, s90, s82
s_addc_u32 s{sX+1}, s91, 0
s_mov_b32 s{sX+2}, 307200
s_mov_b32 s{sX+3}, 0x20000
s_add_u32 s{sDA}, s96, s84
s_addc_u32 s{sDA+1}, s97, 0
s_sub_u32 s{sDA+2}, 7864320, s84
s_mov_b32 s{sDA+3}, 0x20000
""")
    P += lin(dma_w(0)) + dma_x(0)
    P += Is(f"""
s_add_u32 s{sK}, s92, s83
s_addc_u32 s{sK+1}, s93, 0
s_add_u32 s{sV}, s94, s83
s_addc_u32 s{sV+1}, s95, 0
s_mov_b32 s{sDb+2}, 256
s_mov_b32 s{sDb+3}, 0x20000
s_bfe_u32 s{sCo}, s{sWg}, 0x20001
s_lshl_b32 s{sCo}, s{sCo}, 6
s_mov_b32 s{sPfo}, s{sXoff}
s_cmp_eq_u32 s{sSig}, 0
s_cselect_b32 s{sOn}, {5*122880+15*1024}, 0
s_add_u32 s{sNb}, s{sDA}, 6144
s_addc_u32 s{sNb+1}, s{sDA+1}, 0
s_sub_u32 s{sNnum}, s{sDA+2}, 6144
s_mov_b32 s{sNs}, {WS}
s_mov_b32 s{sNd}, {196608-3072}
s_mov_b64 {S2(sMask)}, 0
s_mov_b32 s{sXnum}, 307200
s_mul_i32 s86, s88, 61440
s_add_u32 s{sN2}, s{sWoP}, s86
s_addc_u32 s{sN2+1}, s{sWoP+1}, 0
s_mul_i32 s86, s88, {4*12288}
s_add_u32 s86, s86, {128*12288+6144}
s_add_u32 s{sP1}, s96, s86
s_addc_u32 s{sP1+1}, s97, 0
s_mov_b32 s{sP1+2}, {3*12288+6144}
s_mov_b32 s{sP1+3}, 0x20000
s_mov_b32 s{sT3}, 4096
s_add_u32 s{sO}, s{sWsP}, s85
s_addc_u32 s{sO+1}, s{sWsP+1}, 0
s_sub_u32 s{sO}, s{sO}, {OSTRIDE}
s_subb_u32 s{sO+1}, s{sO+1}, 0
s_mov_b32 s{sO+2}, 0
s_mov_b32 s{sO+3}, 0x20000
s_lshl_b32 s86, s{sWg}, 7
s_add_u32 s86, s86, {FLG}
s_add_u32 s{sDB}, s{sWsP}, s86
s_addc_u32 s{sDB+1}, s{sWsP+1}, 0
s_cmp_eq_u32 s{sMode}, 0
s_cselect_b32 s{sDB+2}, 128, 0
s_mov_b32 s{sDB+3}, 0x20000
s_mov_b32 s{sItem}, 0
s_mov_b32 s{sFlag}, 0
s_mov_b32 s{sXd}, 0
s_mov_b32 s{sCp}, 0x1000
s_mov_b64 {S2(sXn)}, {S2(sX)}
s_lshr_b32 s80, s{sWg}, 3
s_mul_i32 s84, s80, 52
s_lshr_b32 s84, s84, 8
s_mul_i32 s85, s84, 5
s_sub_u32 s85, s80, s85
s_and_b32 s81, s{sWg}, 1
s_and_b32 s82, s{sWave}, 1
s_lshr_b32 s83, s{sWave}, 1
s_xor_b32 s86, s81, s82
s_xor_b32 s86, s86, 1
s_lshl_b32 s86, s86, 7
s_lshl_b32 s87, s85, 8
s_add_u32 s86, s86, s87
s_mul_i32 s87, s83, {64*1280}
s_add_u32 s86, s86, s87
s_cmp_lt_u32 s80, 30
s_cselect_b32 s86, s86, 0
s_mul_i32 s87, s81, {1536*1280}
s_add_u32 s86, s86, s87
s_add_u32 s{sWoP}, s{sWoP}, s86
s_addc_u32 s{sWoP+1}, s{sWoP+1}, 0
s_sub_u32 s{sK2n}, 7864320, s86
s_bfe_u32 s86, s{sWg}, 0x10001
s_mul_i32 s86, s86, 60
s_mul_i32 s87, s84, 10
s_add_u32 s86, s86, s87
s_mul_i32 s87, s82, 5
s_add_u32 s86, s86, s87
s_bfe_u32 s87, s{sWg}, 0x10002
s_lshl_b32 s88, s87, 1
s_add_u32 s88, s88, s81
s_mul_i32 s88, s88, {96*120}
s_add_u32 s88, s88, s86
s_lshl_b32 s88, s88, 10
s_add_u32 s{sK2O}, s{sWsP}, s88
s_addc_u32 s{sK2O+1}, s{sWsP+1}, 0
s_mul_i32 s88, s86, {16*2560}
s_mul_i32 s87, s87, 1280
s_add_u32 s88, s88, s87
s_lshl_b32 s87, s85, 8
s_add_u32 s88, s88, s87
s_lshl_b32 s87, s81, 1
s_add_u32 s87, s87, s83
s_lshl_b32 s87, s87, 6
s_add_u32 s88, s88, s87
s_add_u32 s{sOutP}, s{sOutP}, s88
s_addc_u32 s{sOutP+1}, s{sOutP+1}, 0
s_mov_b32 s{sC}, {cbits:#x}
s_mov_b32 s{sC+1}, {cbits:#x}
s_mov_b32 s{sThr}, 0x4e800000
""") + [I(f"s_mov_b32 s{sOs[s]}, {s*122880}") for s in range(6)]
    kb0, vb0 = vK[0][0], vV[0][0]
    P += Is(f"""
v_and_b32 v{t0}, 15, v0
v_lshrrev_b32 v{t1}, 4, v0
v_and_b32 v{t2}, 6, v{t0}
v_xor_b32 v{t3}, v{t2}, v{t1}
v_lshlrev_b32 v{t3}, 4, v{t3}
v_lshl_add_u32 v{vXr[0][0]}, v{t0}, 7, v{t3}
v_add_u32 v{vXr[0][0]}, s{sXoff}, v{vXr[0][0]}
v_xor_b32 v{vXr[0][1]}, 64, v{vXr[0][0]}
v_add_u32 v{vXr[1][0]}, {X1}, v{vXr[0][0]}
v_add_u32 v{vXr[1][1]}, {X1}, v{vXr[0][1]}
v_lshrrev_b32 v{t2}, 3, v{t0}
v_mul_u32_u24 v{kb0}, 3072, v{t2}
v_and_b32 v{t2}, 7, v{t0}
v_lshl_add_u32 v{kb0}, v{t2}, 7, v{kb0}
v_add_u32 v{kb0}, v{kb0}, v{t3}
v_xor_b32 v{vK[0][1]}, 64, v{kb0}
v_add_u32 v{vK[1][0]}, {KW[1]}, v{kb0}
v_add_u32 v{vK[1][1]}, {KW[1]}, v{vK[0][1]}
v_lshrrev_b32 v{t2}, 5, v0
v_mul_u32_u24 v{vb0}, 3072, v{t2}
v_bfe_u32 v{t2}, v0, 2, 3
v_lshl_add_u32 v{vb0}, v{t2}, 7, v{vb0}
v_and_b32 v{t2}, 6, v{t2}
v_bfe_u32 v{t3}, v0, 1, 1
v_xor_b32 v{t2}, v{t2}, v{t3}
v_lshl_add_u32 v{vb0}, v{t2}, 4, v{vb0}
v_and_b32 v{t2}, 1, v0
v_lshl_add_u32 v{vb0}, v{t2}, 3, v{vb0}
v_add_u32 v{vb0}, {VW[0]}, v{vb0}
v_xor_b32 v{vV[0][1]}, 32, v{vb0}
v_xor_b32 v{vV[0][2]}, 64, v{vb0}
v_xor_b32 v{vV[0][3]}, 96, v{vb0}
""") + [I(f"v_add_u32 v{vV[1][i]}, {VW[1]-VW[0]}, v{vV[0][i]}") for i in range(4)] + Is(f"""
s_lshl_b32 s86, s{sWave}, 12
v_lshlrev_b32 v{vO}, 4, v0
v_add_u32 v{vO}, s86, v{vO}
s_cmp_eq_u32 s{sWave}, 3
s_cselect_b32 s86, 0x80000000, 0
v_add_u32 v{vO3}, s86, v{vO}
""")
    P += [I(f"v_mov_b32 v{vL[q]}, 0") for q in range(4)]
    P += lin(dma_w(1)) + dma_x(1) + lin(hd(dma_w(2)))
    P += [I(f"buffer_store_dwordx4 {V4(vL[0])}, v{vO}, {S4(sDB)}, 0 offen sc1", dst={"OST"})]
    P += [BAR({f"L{slot(0)}"})]
    P += reads_v(0, slot(0))[:NPRE_V]
    XALL = lambda n: {f"X{n&1}_{q}" for q in range(4)}
    B["pro"] = P + [WAIT(vneed=XALL(0))] + reads_x(0) + Is("s_branch K1_ITEM")
    B["item"] = Is("K1_ITEM:") + stamp(0) + [WAIT(lzero=True)]
    NE0 = OPT["ne0"]
    EW = {0: list(range(NE0, 8))}
    rest = list(range(8, 24)); per = [3, 3, 2, 2, 2, 2, 2]
    for n in range(1, 8): EW[n] = rest[:per[n - 1]]; rest = rest[per[n - 1]:]
    NC9 = OPT["nc9"]
    cunits = [(s, qt) for s in range(6) for qt in range(4)]
    for n in range(10):
        own = reads_v(n, slot(n % 4))[NPRE_V:]
        early = []; extra = []
        if n < 9: nxt = reads_v(n + 1, slot((n + 1) % 4))[:NPRE_V]; nt_ = "v"; pub = slot((n + 1) % 4)
        else: nxt = reads_k(10, X0)[:NPRE_K]; nt_ = "k"; pub = X0
        def wtile(n): return {7: dma_k(0, X0), 8: dma_k(1, slot(2)), 9: dma_v(0, slot(3))}.get(n) or dma_w(n + 3)
        early += tl(wtile(n - 1))
        if n == 7:
            early += Is(f"""s_mov_b64 {S2(sDA)}, {S2(sK)}
s_mov_b32 s{sDA+2}, 393216
s_mov_b64 {S2(sDB)}, {S2(sV)}
s_mov_b32 s{sDB+2}, 393216
v_mov_b32 v{vD[0]}, v{vDkv}
v_mov_b32 v{vD[1]}, v{vDkv}""")
        if n < 8: early += dma_x(n + 2)
        es = []
        if OPT["ovl"]:
            for u in EW.get(n, []): es += epi_unit(u, False)
            if es: extra.append(spread(es, 0, 56 if n == 0 else 95, NOV))
        if n < 9:
            xr = reads_x(n + 1); st = []
            x0 = 58 if n == 0 else 46
            for q in range(4):
                if q % 2 == 0: st.append(WAIT(vneed={f"X{(n+1)&1}_{q}", f"X{(n+1)&1}_{q+1}"}))
                st += xr[2 * q:2 * q + 2]
            spread(st, x0, BG - 5)
            if n == 0 and es:
                for it in xr: it.after = [es[-1]]
            extra.append(st)
        if n == 9:
            pub = {f"L{X0}", "OST"}
        if n == 9 and NC9:
            cs = []; sw = []
            for (s, qt) in cunits[:NC9]:
                a, b = cvt_unit(s, qt, False)
                a[0].lo = 16 * s + 8 + 2 * qt + 1 + 8
                for x in b: x.after = [a[-1]]; x.dly = 1
                cs += a; sw += b
            spread(cs, 17, 92, NOV)
            for x in sw: x.target = x.after[0].target + 2
            extra += [cs, sw]
        d = hd(wtile(n))
        B[f"w{n}"] = (stamp(8 + n) if OPT["stamps"] == 2 else []) + phase(f"w{n}", n, "v", mf_w(n), own, nxt, nt_, pub, early, d, extra, early_hi=56 if n == 8 else 70)
    C = stamp(1); pend = []
    dm = lin(tl(dma_v(0, slot(3))))
    for k, (s, qt) in enumerate(cunits[NC9:]):
        a, b = cvt_unit(s, qt, True)
        if k % 4 == 1:
            while dm:
                x = dm.pop(0); C.append(x)
                if x.kind == "vmem": break
        C += a[:4] + pend + a[4:]; pend = b
    C += dm + Is(f"""s_mov_b32 s87, 0xff800000
s_cmp_eq_u32 s{sWave}, 3
s_cselect_b32 s86, 0x71000000, s87
v_mov_b32 v{vMi[0]}, s87
v_mov_b32 v{vMi[1]}, s87
v_mov_b32 v{vMi[2]}, s87
v_mov_b32 v{vMi[3]}, s86""")
    C += Is(f"s_cmp_lg_u32 s{sMode}, 0\ns_nop 0") + pend + Is("s_cbranch_scc1 K1_MAXPASS\nK1_MAXRET:\ns_nop 0") + stamp(2)
    B["cvt"] = C
    M = []; last = []
    for qt in range(4):
        x = XY(0, 0, qt); m = vT + 2 * qt; t = m + 1
        a = I(f"v_max3_f32 v{m}, v{x}, v{x+1}, v{x+2}", lo=6 * qt + 13)
        b = I(f"v_max3_f32 v{m}, v{m}, v{x+3}, v{vMi[qt]}")
        c_ = I(f"v_mov_b32 v{t}, v{m}")
        d = I(f"v_permlane16_swap_b32 v{m}, v{t}", after=[c_], dly=1)
        e = I(f"v_max_f32 v{m}, v{m}, v{t}")
        f = I(f"v_mov_b32 v{t}, v{m}")
        g = I(f"v_permlane32_swap_b32 v{m}, v{t}", after=[f], dly=1)
        h = I(f"v_max_f32 v{m}, v{m}, v{t}")
        ns = [I(f"v_sub_f32 v{negm(qt)+i}, 0, v{m}", hi=48 + 6 * qt - 3) for i in range(4)]
        st = [a, b, c_, d, e, f, g, h] + ns
        for j, it in enumerate(st): it.target = 6 * qt + 13 + j * 0.5
        M.append(st); last.append(ns[0])
    sm = softmax(0, 0, 26, 93, sub=last, los=[[0, 24 + 6 * qt + 13] for qt in range(4)])
    early = Is(f"""s_mov_b32 s{sA}, {3*TILE}
s_mov_b32 s{sB}, {2*TILE}
s_mov_b32 s{sI}, 0
s_add_u32 s{sO}, s{sO}, {OSTRIDE}
s_addc_u32 s{sO+1}, s{sO+1}, 0
s_mov_b32 s{sO+2}, s{sOn}
s_mov_b32 s{sOn}, {5*122880+15*1024}""") + dma_k(2, slot(0))
    hand = Is(f"""v_mov_b32 v31, 1
s_and_b32 s80, s{sWg}, 1
s_lshl_b32 s80, s80, 2
s_add_u32 s80, s80, s{sCo}
s_cmp_eq_u32 s{sAll}, 0
s_cselect_b32 s81, s{sItem}, 0
s_cmp_lt_u32 s{sSig}, s81
s_cselect_b32 s80, s80, 0x1000
s_cselect_b32 s{sSig}, 1, s{sSig}
s_cmp_eq_u32 s{sWave}, 0
s_cselect_b32 s80, s80, 0x1000""") + [atomic(31, 80)]
    B["qk0"] = phase("qk0", 10, "k", mf_qk(10, 0, True), reads_k(10, X0)[NPRE_K:], reads_k(11, slot(2))[:NPRE_K], "k", slot(2), early,
                     hd(dma_v(1, slot(1))), M + sm, early_hi=70) + stamp(3)
    def half(nm, par, mode):
        ks, vs, kn, vp = slot(2 * par), slot(2 * par + 1), slot(2 - 2 * par), slot(3 - 2 * par)
        kd = lambda: dma(sDA, sA, ks, OPT["nt_kv"])
        vd = lambda b: dma(sDB, sB, b, OPT["nt_kv"])
        last = mode == "last"
        if mode == "first": early = hand + tl(dma_v(1, slot(1))) + (codepf(28, True) if OPT["cpl"] else [])
        elif last and par: early = tl(dma_n(0)) + dma_x(0)
        else: early = (codepf(28, False) if OPT["cpl"] and par == 0 else []) + tl(vd(vp)) + Is(f"s_add_u32 s{sB}, s{sB}, {TILE}")
        if last and par == 0:
            early += Is(f"""s_mov_b64 {S2(sX)}, {S2(sXn)}
s_mov_b32 s{sX+2}, s{sXnum}
v_lshrrev_b32 v28, 3, v0
v_mul_u32_u24 v28, 1280, v28
v_and_b32 v29, 0x70, v{vDw}
v_add_u32 v28, v28, v29
v_cndmask_b32 v{vDx}, v{vDx}, v28, {S2(sMask)}""")
        sel = []
        if mode == "first" and OPT["lmf"]:
            sel = Is("v_and_b32 v47, 3, v0\nv_mov_b32 v46, 0x3f803f80")
            for qt in range(4):
                c_ = I(f"v_cmp_eq_u32 s[86:87], {qt}, v47")
                sel += [c_, I(f"v_cndmask_b32 v{32+4*qt}, 0, v46, s[86:87]", after=[c_], dly=1)] + [I(f"v_mov_b32 v{32+4*qt+j}, v{32+4*qt}") for j in range(1, 4)]
            sel = [spread(sel, 2, 70)]
        qtile = (lambda: dma_n(1) if par else dma_v(15, X1)) if last else kd
        q = phase("qk" + nm, 11, "k", mf_qk(11, par), reads_k(11, ks)[NPRE_K:], reads_v(12, vs)[:NPRE_V], "v", vs, early, hd(qtile()),
                  softmax(1 - par, 1, 0, BG - 2, zdead=lambda qt: 72 + 6 * qt - 1) + sel, early_hi=72)
        post = []
        if par and mode == "loop": post += Is(f"s_add_u32 s{sI}, s{sI}, 1\ns_cmp_lg_u32 s{sI}, 6")
        early = tl(qtile()) + ([] if last else Is(f"s_add_u32 s{sA}, s{sA}, {TILE}"))
        if last and par == 0:
            early += Is(f"""s_mov_b64 {S2(sDA)}, {S2(sNb)}
s_mov_b32 s{sDA+2}, s{sNnum}
v_cndmask_b32 v{vD[0]}, v{vDw}, v{vDkv}, {S2(sMask)}
v_add_u32 v{vD[1]}, s{sNd}, v{vD[0]}""")
        if last and par: nxt, nty, pub = reads_v(41, X1)[:NPRE_V], "v", X1
        else: nxt, nty, pub = reads_k(11, kn)[:NPRE_K], "k", kn
        p = phase("pv" + nm, 12, "v", mf_pv(12, 1 - par, mode == "first"), reads_v(12, vs)[NPRE_V:], nxt, nty, pub, early,
                  hd(dma_n(2 * par) if last else vd(vs)), softmax(par, 0, 0, 93), post=post, early_hi=72)
        pad = lambda: Is("\n".join(["s_nop 3"] * OPT["padn"])) + [mfma(V4(32 + 4 * (k // 2 % 3)), V4(Qf(k % 4, k % 6)), V4(Qf((k + 1) % 4, (k * 5 + 2) % 6)), V4(32 + 4 * (k // 2 % 3)) if k % 2 else "0") for k in range(OPT["padm"])]
        return q + pad() + mf_l(1 - par, mode == "first") + p + pad()
    B["peel"] = half("1", 1, "first")
    B["loop"] = Is(".p2align 6\nK1_L:") + (stamp(-1) if OPT["stamps"] == 4 else []) + half("e", 0, "loop") + half("o", 1, "loop") + Is("s_cbranch_scc1 K1_L")
    B["last"] = (stamp(-1) if OPT["stamps"] == 4 else []) + half("14", 0, "last") + half("15", 1, "last")
    T = stamp(4)
    E, D = softmax(1, 1, 0, 93)
    di = 0; nd = 1 if OPT["lmf"] else 3
    for j in range(0, 32, 2):
        T += E[j:j + 2]
        if j >= 2: T += D[di:di + nd]; di += nd
    T.append(I("s_nop 0"))
    T += D[di:]
    if OPT["lmf"]:
        T += mf_l(1); R = []
    else:
        T += [I(f"v_mov_b32 v{vT+q}, v{vL[q]}") for q in range(4)]
        T += [I(f"v_permlane16_swap_b32 v{vL[q]}, v{vT+q}") for q in range(4)]
        T += [I(f"v_add_f32 v{vL[q]}, v{vL[q]}, v{vT+q}") for q in range(4)]
        c2 = [I(f"v_mov_b32 v{vT+q}, v{vL[q]}") for q in range(4)]
        d2 = [I(f"v_permlane32_swap_b32 v{vL[q]}, v{vT+q}", after=[c2[q]], dly=1) for q in range(4)]
        R = c2 + d2 + [I(f"v_add_f32 v{vL[q]}, v{vL[q]}, v{vT+q}") for q in range(4)]
    B["tail"] = T
    rc = [I(f"v_rcp_f32 v{RCP+2*q}, v{vL[q]}", lo=8) for q in range(4)]
    R += rc + [I(f"v_cmp_ngt_f32 {S2(80+2*q)}, s{sThr}, v{vL[q]}") for q in range(4)]
    R += [I(f"v_mov_b32 v{RCP+2*q+1}, v{RCP+2*q}") for q in range(4)] + ([] if OPT["lmf"] else [I(f"v_mov_b32 v{vL[q]}, 0") for q in range(4)])
    spread(R, 0, 24)
    for it in R: it.hi = 95
    es = []
    for u in range(NE0 if OPT["ovl"] else 0):
        e = epi_unit(u, False); e[0].lo = 16 * (u // 4) + 8 + 2 * (u % 4) + 1 + 8; es += e
    spread(es, 24, 95, NOV)
    fl = Is(f"""s_or_b64 s[80:81], s[80:81], s[82:83]
s_or_b64 s[84:85], s[84:85], s[86:87]
s_or_b64 s[80:81], s[80:81], s[84:85]
s_or_b32 s80, s80, s81
s_or_b32 s{sFlag}, s{sFlag}, s80
s_lshl_b32 s80, s{sWave}, 2
s_add_u32 s80, s80, {FLO}
v_mov_b32 v160, s80
v_mov_b32 v161, s{sFlag}
v_mov_b32 v162, {FLO}""") + [Ins("ds_write_b32 v160, v161")]
    fl[-1].cost = 8
    fl[0].after = [x for x in R if x.text.startswith("v_cmp")][-1:]; fl[0].dly = 2
    early = pf() + [I(f"buffer_load_dwordx2 v[{vPoll}:{vPoll+1}], off, {S4(sDb)}, s{sCp} sc1", dst=regs("v", vPoll, 4))] + Is(f"""s_add_u32 s{sX}, s{sX}, s{sXd}
s_addc_u32 s{sX+1}, s{sX+1}, 0
s_sub_u32 s{sX+2}, s{sX+2}, s{sXd}""") + fl
    f1 = I(f"ds_read_b128 {V4(164)}, v162", dst=regs("v", 164, 4), lo=BG + 1, target=BG + 3)
    f2 = WAIT(lneed=regs("v", 164, 4), lo=88, target=88)
    f3 = Is("v_or_b32 v164, v164, v165\nv_or3_b32 v164, v164, v166, v167")
    f4 = I(f"v_readfirstlane_b32 s{sAll}, v164", after=[f3[1]])
    for x in f3 + [f4]: x.target = 89
    B["pv15"] = phase("pv15", 41, "v", mf_pv(41, 1), reads_v(41, X1)[NPRE_V:], reads_v(0, slot(0))[:NPRE_V], "v", {f"L{slot(0)}", f"L{slot(2)}"} | XALL(0),
                      early, dma_x(1), [R + es, [f1, f2] + f3 + [f4]]) + stamp(5)
    B["br"] = stamp(6) + Is(f"s_cmp_lg_u32 s{sMode}, 0\ns_cselect_b32 s{sAll}, 0, s{sAll}\ns_cmp_eq_u32 s{sItem}, 0\ns_cbranch_scc1 K1_MID")
    B["mid"] = Is("K1_MID:") + reads_x(0) + Is(f"""s_mov_b32 s{sItem}, 1
s_mov_b32 s{sCp}, s{sCo}
s_mov_b32 s{sXd}, {128*1280-128}
s_mov_b64 {S2(sXn)}, {S2(sWoP)}
s_mov_b32 s{sXnum}, s{sK2n}
s_mov_b64 {S2(sNb)}, {S2(sN2)}
s_mov_b32 s{sNnum}, {2*TILE}
s_mov_b32 s{sNs}, {TILE}
s_mov_b32 s{sNd}, 0
s_mov_b64 {S2(sMask)}, -1
s_add_u32 s{sP1}, s{sN2}, {2*TILE}
s_addc_u32 s{sP1+1}, s{sN2+1}, 0
s_mov_b32 s{sP1+2}, 12288
s_lshl_b32 s{sPfo}, s{sWave}, 11
s_add_u32 s{sK}, s{sK}, {16*393216}
s_addc_u32 s{sK+1}, s{sK+1}, 0
s_add_u32 s{sV}, s{sV}, {16*393216}
s_addc_u32 s{sV+1}, s{sV+1}, 0""")
    k2trace, k2idle = oproj(B, NE0)
    X = Is(f"""K1_MAXPASS:
v_and_b32 v{vT}, 15, v0
v_lshrrev_b32 v{vT+1}, 4, v0
v_mul_u32_u24 v{vT}, 384, v{vT}
v_lshl_add_u32 v{vT}, v{vT+1}, 4, v{vT}
s_mov_b32 s{sT}, 0""") + [I(f"v_mov_b32 v{vMi[q]}, 0xff800000") for q in range(4)] + Is("K1_MAXL:")
    for s in range(6): X.append(I(f"buffer_load_dwordx4 {V4(SP+4*s)}, v{vT}, {S4(sDA)}, s{sT} offen offset:{s*64}"))
    X.append(I("s_waitcnt vmcnt(0)"))
    for qt in range(4):
        for s in range(6): X.append(mfma(V4(SP + 32 + 4 * qt), V4(SP + 4 * s), V4(Qf(qt, s)), V4(SP + 32 + 4 * qt) if s else "0"))
    X.append(I("s_nop 7"))
    for qt in range(4):
        d = SP + 32 + 4 * qt
        X += Is(f"v_max3_f32 v{vMi[qt]}, v{vMi[qt]}, v{d}, v{d+1}\nv_max3_f32 v{vMi[qt]}, v{vMi[qt]}, v{d+2}, v{d+3}")
    X += Is(f"s_add_u32 s{sT}, s{sT}, 6144\ns_cmp_lt_u32 s{sT}, 393216\ns_cbranch_scc1 K1_MAXL\ns_branch K1_MAXRET")
    B["maxpass"] = X
    item = ["item"] + [f"w{n}" for n in range(10)] + ["cvt", "qk0", "peel"] + ["loop"] * 6 + ["last", "tail", "pv15", "br"]
    trace = ["entry", "pro"] + item + ["mid"] + item + k2trace
    layout = ["entry", "pro", "mid", "item"] + [f"w{n}" for n in range(10)] + ["cvt", "qk0", "peel", "loop", "last", "tail", "pv15", "br", "k2pro", "k2head", "k2loop", "k2tail", "k2epi", "k2fin", "k2side", "k2idle", "maxpass"]
    resolve_waits(B, trace)
    txt = {k: "\n".join(emit(v)).split("\n") for k, v in B.items()}
    errs = verify([l for b in trace for l in txt[b]])
    tr2 = ["entry", "pro"] + item[:12] + ["maxpass", "maxpass"] + item[12:]
    errs += verify([l for b in tr2 for l in txt[b]])
    errs += verify([l for b in ["entry", "pro"] + item + ["mid"] + item + k2idle for l in txt[b]])
    for e in errs: sys.stderr.write("K1 HAZARD " + e + "\n")
    return [l for b in layout for l in txt[b]], errs

def oproj(B, NE0):
    vR = [[1, 2, 3, 4], [5, 6, 7, 8]]; vOf = 9; vSt = 10; vW = 11; vRd = 12; t0, t1, t2, t3 = 13, 14, 15, 16; vP2 = 17; vLp = 18; vOne = 19
    KS = [X0, X1, RING]; EX = 65536
    QL = [("v", 224 + 4 * i) for i in range(8)] + [("a", Oacc(2 * (u // 4) + h, u % 4)) for u in range(11) for h in range(2)]
    def Of(d, kb, qt): return QL[10 * (d % 3) + 5 * kb + qt]
    R4 = lambda r: f"{r[0]}[{r[1]}:{r[1]+3}]"
    Oset = lambda d, kbs=(0, 1): set().union(*[regs(*Of(d, kb, qt), 4) for kb in kbs for qt in range(5)])
    def acc(t, qt): return 64 + 4 * (t * 5 + qt)
    def wq(f): return 192 + 4 * f
    sW_ = sX; sOo = 8; sOut = 12; sXs = 20; sXr = 24; sFl = 28
    sWt = 32; sOk = [33, 34]; sCnt = 39; sTt = 46; sJ = 40; sC1 = 51; sC1w = 50; sWb = 54
    def wdma(d, jump=False):
        out = []
        for j in range(8):
            if j % 4 == 0: out.append(I(f"s_add_u32 m0, s{sXoff}, {KS[d % 3] + j*1024}"))
            out += [I(f"s_add_u32 s{sTt}, s{sWt}, {j*10240 - (j % 4)*1024}"),
                    I(f"buffer_load_dwordx4 v{vDx}, {S4(sW_)}, s{sTt} offen offset:{(j % 4)*1024} lds", dst={f"X{d%3}_{j>>1}"})]
        out.append(I(f"s_add_u32 s{sWt}, s{sWt}, " + ("0" if OPT["k2fix"] & 1 else f"s{sJ}" if jump else f"{128*1280}")))
        return out
    Wt = lambda d: {f"X{d%3}_{q}" for q in range(4)}
    def oload(d, kb):
        so = sOk[kb]
        out = [I(f"buffer_load_dwordx4 {R4(Of(d, kb, qt))}, v{vOf}, {S4(sOo)}, s{so} offen offset:{qt*1024} sc1", dst=regs(*Of(d, kb, qt), 4)) for qt in range(4)]
        out.append(I(f"s_add_u32 s{sTt}, s{so}, 4096"))
        out.append(I(f"buffer_load_dwordx4 {R4(Of(d, kb, 4))}, v{vOf}, {S4(sOo)}, s{sTt} offen sc1", dst=regs(*Of(d, kb, 4), 4)))
        out.append(I(f"s_add_u32 s{so}, s{so}, {0 if OPT['k2fix'] & 2 else 4*122880}"))
        if not OPT["osc"]:
            for x in out: x.text = x.text.replace(" sc1", "")
        return out
    def wreads(d):
        out = []; w = 1 if KS[d % 3] == X1 else 0
        for t in range(8):
            for kb in range(2):
                r = wq(2 * t + kb)
                for hf in range(2):
                    it = I(f"ds_read_b64_tr_b16 a[{r+2*hf}:{r+2*hf+1}], v{vR[w][t & 3]} offset:{KS[d % 3] - w*X1 + (t >> 2)*8192 + (4*kb+2*hf)*1024}", dst=regs("a", r + 2 * hf, 2)); it.f = 2 * t + kb
                    out.append(it)
        return out
    NP = 8; G = 60
    P = [WAIT(vneed=regs("v", vPoll, 4))] + Is(f"""
v_min_u32 v{t0}, v{vPoll}, v{vPoll+1}
s_cmp_lg_u32 s{sAll}, 0
v_readfirstlane_b32 s89, v{t0}
s_cbranch_scc1 K1_REDO
s_and_b32 s{sC1}, s{sWg}, 7
s_lshl_b32 s{sC1}, s{sC1}, 7
s_add_u32 s{sC1}, s{sC1}, 64
s_cmp_eq_u32 s{sWave}, 0
s_cselect_b32 s{sC1w}, s{sC1}, 0x10000
s_add_u32 s{sFl}, s{sWsP}, {FLG}
s_addc_u32 s{sFl+1}, s{sWsP+1}, 0
s_mov_b32 s{sFl+2}, {256*128}
s_mov_b32 s{sFl+3}, 0x20000
v_mov_b32 v{vOne}, 1
v_lshlrev_b32 v{vOf}, 4, v0
s_mov_b64 {S2(sOo)}, {S2(sK2O)}
s_mov_b32 s{sOo+2}, {95*122880+5*1024}
s_mov_b32 s{sOo+3}, 0x20000
s_lshr_b32 s{sWb}, s{sWave}, 1
s_mul_i32 s{sOk[0]}, s{sWb}, {2*122880}
s_add_u32 s{sOk[1]}, s{sOk[0]}, 122880
s_cmp_lt_u32 s89, 32
s_cbranch_scc1 K2_SPIN0
K2_RET0:
s_cmp_ge_u32 s{sWg}, 240
s_cbranch_scc1 K2_IDLE""")
    B["k2pro"] = P
    r0 = vR[0][0]
    assert NE0 >= 6
    H = oload(0, 0) + oload(0, 1) + oload(1, 0) + oload(1, 1) + Is(f"""
v_lshrrev_b32 v{t2}, 5, v0
v_lshlrev_b32 v{r0}, 10, v{t2}
v_bfe_u32 v{t2}, v0, 2, 3
v_lshl_add_u32 v{r0}, v{t2}, 7, v{r0}
v_and_b32 v{t2}, 6, v{t2}
v_bfe_u32 v{t3}, v0, 1, 1
v_xor_b32 v{t2}, v{t2}, v{t3}
v_lshl_add_u32 v{r0}, v{t2}, 4, v{r0}
v_and_b32 v{t2}, 1, v0
v_lshl_add_u32 v{r0}, v{t2}, 3, v{r0}
s_xor_b32 s88, s{sWb}, 1
s_lshl_b32 s88, s88, 6
v_xor_b32 v{r0}, s88, v{r0}
s_lshl_b32 s88, s{sWb}, 14
v_add_u32 v{r0}, s88, v{r0}
v_xor_b32 v{vR[0][1]}, 32, v{r0}
v_xor_b32 v{vR[0][2]}, 64, v{r0}
v_xor_b32 v{vR[0][3]}, 96, v{r0}
s_mov_b32 s{sWt}, {128*1280+128}
s_mov_b32 s{sCnt}, 0""") + [I(f"v_add_u32 v{vR[1][i]}, {X1}, v{vR[0][i]}") for i in range(4)] + wreads(0)[:NP]
    late = Is(f"""
s_mov_b64 {S2(sOut)}, {S2(sOutP)}
s_mov_b32 s{sOut+2}, {79*2560+64}
s_mov_b32 s{sOut+3}, 0x20000
s_lshl_b32 s88, s{sWg}, 2
s_add_u32 s88, s88, s{sWave}
s_xor_b32 s89, s88, 4
s_mul_i32 s88, s88, 10240
s_mul_i32 s89, s89, 10240
s_add_u32 s88, s88, {XCH}
s_add_u32 s89, s89, {XCH}
s_add_u32 s{sXs}, s{sWsP}, s88
s_addc_u32 s{sXs+1}, s{sWsP+1}, 0
s_mov_b32 s{sXs+2}, 10240
s_mov_b32 s{sXs+3}, 0x20000
s_add_u32 s{sXr}, s{sWsP}, s89
s_addc_u32 s{sXr+1}, s{sWsP+1}, 0
s_mov_b32 s{sXr+2}, 10240
s_mov_b32 s{sXr+3}, 0x20000
s_xor_b32 s88, s{sWave}, 2
s_mul_i32 s88, s88, 20480
s_add_u32 s88, s88, {EX}
v_add_u32 v{vW}, s88, v{vOf}
s_mul_i32 s88, s{sWave}, 20480
s_add_u32 s88, s88, {EX}
v_add_u32 v{vRd}, s88, v{vOf}
v_and_b32 v{t0}, 15, v0
v_lshrrev_b32 v{t1}, 4, v0
v_lshl_add_u32 v{t0}, v{t0}, 2, v{t1}
v_lshlrev_b32 v{t0}, 4, v{t0}
v_add_u32 v{vLp}, s88, v{t0}
v_lshrrev_b32 v{t0}, 2, v0
v_and_b32 v{t1}, 3, v0
v_mul_u32_u24 v{vSt}, 2560, v{t0}
v_lshl_add_u32 v{vSt}, v{t1}, 4, v{vSt}
s_mov_b32 s88, 4096
s_mov_b32 s89, 8192""") + (Is("v_mov_b32 v22, v46\nv_mov_b32 v23, v47") if OPT["stamps"] else [])
    u0 = max(NE0 + OPT["k2e"], 11); NT = 2 if OPT["stamps"] == 9 else 3
    held = {0: []}
    for u in range(NE0, u0):
        e = epi_unit(u, True, True)
        if u >= u0 - NT: held[0].append(e.pop())
        H += e
    H += [WAIT(lneed=regs("a", wq(0), 8), vneed=Oset(0))] + stamp(49)
    left = list(range(u0, 24)); body = {}
    for d in range(6):
        body[d] = []; held[d + 1] = []
        for u in left[d * NT:(d + 1) * NT]:
            e = epi_unit(u, False, True); held[d + 1].append(e.pop()); body[d] += e
    SG = max(d for d in held if held[d]) + 1
    assert SG <= 5
    TM = 24
    so = lambda q: ["0", "s88", "s89"][q // 4]
    def step(d, mode):
        mf = []
        for t in range(8):
            for qt in range(5):
                for kb in range(2):
                    a = acc(t, qt)
                    mf.append(mfma(V4(a), A4(wq(2 * t + kb)), R4(Of(d, kb, qt)), "0" if (d == 0 and kb == 0) else V4(a)))
        own = wreads(d)[NP:]
        ws = [WAIT(lneed=regs("a", wq(2 * t), 8), lo=10 * t - 3, hi=10 * t - 1, target=10 * t - 2) for t in range(1, 7)]
        if d == 23:
            G2 = 39
            spread(own, 0, 24)
            for it in own: it.hi = G2 - 4
            w3 = [I(f"ds_write_b128 v{vW}, {V4(64 + 4*q)} offset:{q*1024}", lo=24, target=24 + q, hi=G2 - 3) for q in range(10)]
            for x in w3: x.cost = 8
            bar = BAR(None, lo=G2, hi=G2)
            rd = [I(f"ds_read_b128 {V4(TM + 4*q)}, v{vRd} offset:{q*1024}", dst=regs("v", TM + 4 * q, 4), after=[bar]) for q in range(10)]
            spread(rd, G2 + 1, G2 + 11)
            ad = []
            for q in range(10):
                if q % 2 == 0: ad.append(WAIT(lneed=regs("v", TM + 4 * q, 8), after=[rd[q + 1]]))
                ad += [I(f"v_add_f32 v{104+4*q+j}, v{104+4*q+j}, v{TM+4*q+j}") for j in range(4)]
                ad.append(I(f"buffer_store_dwordx4 {V4(104+4*q)}, v{vOf}, {S4(sXs)}, {so(q)} offen offset:{(q%4)*1024} sc1"))
            spread(ad, G2 + 9, 80)
            return schedule(mf, [ws[:3], own + [bar] + rd, w3, ad], novalu=range(G2, G2 + 9), name=f"k2s{d}")
        nxt = wreads(d + 1)[:NP]
        spread(own, 0, G - 6)
        for it in own: it.hi = min(it.hi, 10 * (it.f >> 1) - 7); it.target = min(it.target, it.hi - 1)
        bar = BAR(Wt(d + 1) | ({"OST"} if (mode == "head" and d == SG) else set()), lo=G, hi=G)
        for it in nxt: it.after = [bar]
        spread(nxt, G + 1, 76)
        ws.append(WAIT(lneed=regs("a", wq(0), 8), vneed=Oset(d + 1), lo=78, hi=79, target=78.5))
        vm = []; pos = d % 3
        if mode == "loop" and pos == 0:
            vm += Is(f"s_cmp_eq_u32 s{sCnt}, 1\ns_cselect_b32 s88, s{sC1}, 0x10000\ns_cselect_b32 s{sJ}, {1536*1280}, 0\ns_add_u32 s{sJ}, s{sJ}, {128*1280}")
            vm += [I(f"buffer_load_dword v{vP2}, off, {S4(sFl)}, s88 sc1", dst={f"v{vP2}"})]
        if d > 0: vm += oload(d + 1, 1)
        if mode == "head": vm += held[d]
        if d + 2 <= 23: vm += wdma(d + 2, jump=(mode == "loop" and pos == 0))
        if mode == "loop" and pos == 1:
            chk = Is(f"v_readfirstlane_b32 s88, v{vP2}\ns_cmp_eq_u32 s{sCnt}, 1\ns_cselect_b32 s89, 32, 0")
            vm = chk + vm + [Ins("s_cmp_lt_u32 s88, s89\ns_cbranch_scc1 K2_SPIN1\nK2_RET1:", kind="bar")]
        if d + 2 <= 23: vm += oload(d + 2, 0)
        if mode == "head" and d == SG:
            at = atomic(vOne, sC1w, sFl); at.after = [bar]; vm.append(at)
        if mode == "loop" and pos == 2: vm += Is(f"s_add_u32 s{sCnt}, s{sCnt}, 1\ns_cmp_lt_u32 s{sCnt}, 5")
        if d == 22: vm += late
        if OPT['ev'] and d < 22: even(vm, 0, 80, [G])
        else: spread(vm, 0, 80 if d < 22 else 56, [G])
        es = []
        if mode == "head" and body[d]:
            es = body[d]
            for k in range(len(es) // 20): es[20 * k].after = [held[d][k]]; es[20 * k].dly = 1
            spread(es, held[d][0].lo + 2, 79, range(G, G + 9))
        return schedule(mf, [ws, own + [bar] + nxt, vm, es], novalu=range(G, G + 9), name=f"k2s{d}")
    B["k2head"] = H + [x for d in range(6) for x in step(d, "head") + (stamp(40 + d, True) if OPT["stamps"] == 5 and d < 5 else [])] + stamp(50)
    B["k2loop"] = Is(".p2align 6\nK2_L:") + [x for d in range(6, 9) for x in step(d, "loop")] + (stamp(-2) if OPT["stamps"] == 5 else []) + Is("s_cbranch_scc1 K2_L")
    B["k2tail"] = stamp(47, True) + [x for d in range(21, 24) for x in step(d, "tail") + (stamp(55 + d - 21) if OPT["stamps"] == 5 and d == 22 else stamp(45, True) if OPT["stamps"] == 5 and d == 21 else [])]
    KP = 184; RD = 64
    pa = lambda a, b: I(f"v_pk_add_f32 v[{a}:{a+1}], v[{a}:{a+1}], v[{b}:{b+1}]")
    E = stamp(51) + (Is(f"v_writelane_b32 v22, s{sSp}, 61") if OPT["stamps"] else []) + [I(f"ds_write_b128 v{vW}, {V4(144 + 4*q)} offset:{10240 + q*1024}") for q in range(10)]
    E += Is(f"""s_lshl_b32 s84, s{sWg}, 7
s_xor_b32 s85, s84, 128
s_cmp_eq_u32 s{sWave}, 0
s_cselect_b32 s84, s84, 0x10000
s_waitcnt vmcnt(0) lgkmcnt(0)
s_barrier
s_mov_b64 exec, 1
buffer_store_dword v{vOne}, off, {S4(sFl)}, s84 sc1
s_mov_b64 exec, -1""") + stamp(52) + [I(f"buffer_load_dword v{t2}, off, {S4(sFl)}, s85 sc1", dst={f"v{t2}"})]
    E += [I(f"ds_read_b128 {V4(TM + 4*q)}, v{vRd} offset:{10240 + q*1024}", dst=regs("v", TM + 4 * q, 4)) for q in range(10)]
    E += [WAIT(lzero=True)] + [pa(KP + 2 * h, TM + 2 * h) for h in range(20)]
    E += Is(f"""K2_POLL:
s_waitcnt vmcnt(0)
v_readfirstlane_b32 s86, v{t2}
s_nop 3
s_cmp_eq_u32 s86, 1
s_cbranch_scc1 K2_GO
s_add_u32 s{sSp}, s{sSp}, 1
s_cmp_gt_u32 s{sSp}, 0x40000
s_cbranch_scc1 K2_GO
buffer_load_dword v{t2}, off, {S4(sFl)}, s85 sc1
s_branch K2_POLL""")
    B["k2epi"] = E
    E = Is("K2_GO:") + stamp(53)
    order = [q for qt in range(5) for q in (qt, 5 + qt)]
    for q in order: E.append(I(f"buffer_load_dwordx4 {V4(RD+4*q)}, v{vOf}, {S4(sXr)}, {so(q)} offen offset:{(q%4)*1024} sc1", dst=regs("v", RD + 4 * q, 4)))
    for qt in range(5):
        E.append(WAIT(vneed=regs("v", RD + 4 * (5 + qt), 4)))
        for q in (qt, 5 + qt):
            for h in range(2): E.append(pa(KP + 4 * q + 2 * h, RD + 4 * q + 2 * h))
        a, b = KP + 4 * qt, KP + 4 * (5 + qt)
        E += Is(f"""v_cvt_pk_bf16_f32 v{a}, v{a}, v{a+1}
v_cvt_pk_bf16_f32 v{a+1}, v{a+2}, v{a+3}
v_cvt_pk_bf16_f32 v{a+2}, v{b}, v{b+1}
v_cvt_pk_bf16_f32 v{a+3}, v{b+2}, v{b+3}
s_nop 1
v_permlane16_swap_b32 v{a}, v{a+2}
v_permlane16_swap_b32 v{a+1}, v{a+3}
ds_write_b128 v{vLp}, {V4(a)} offset:{qt*1024}""") + [I(f"ds_read_b128 {V4(144+4*qt)}, v{vRd} offset:{qt*1024}", dst=regs("v", 144 + 4 * qt, 4))]
    for qt in range(5):
        E += [I(f"s_mov_b32 s87, {qt*16*2560}"), WAIT(lneed=regs("v", 144 + 4 * qt, 4)), I(f"buffer_store_dwordx4 {V4(144+4*qt)}, v{vSt}, {S4(sOut)}, s87 offen")]
    E += stamp(54) + (Is(f"v_writelane_b32 v22, s{sSp}, 60\nv_writelane_b32 v23, s87, 60") if OPT["stamps"] else []) + Is("K1_DONE:") + stamp_out(S2(sKA), sWg, sWave, t0, 0x4000000)
    if OPT["enc"]:
        r, a, b, dv = {1: (23, 48, 48, 1), 2: (23, 48, 54, 1), 3: (22, 3, 4, 10), 4: (22, 27, 28, 10), 5: (23, 3, 4, 1), 6: (23, 27, 28, 1), 7: (23, 49, 51, 1), 8: (23, 0, 1, 1), 9: (22, 48, 54, 10)}[OPT["enc"]]
        E += Is(f"""s_cmp_lg_u32 s{sWg}, 17
s_cbranch_scc1 K1_END
s_cmp_lg_u32 s{sWave}, 0
s_cbranch_scc1 K1_END
v_readlane_b32 s84, v{r}, {a}
v_readlane_b32 s85, v{r}, {b}
v_readlane_b32 s86, v23, 48
s_nop 3
s_sub_u32 s85, s85, s84""") + (Is("s_mul_hi_u32 s85, s85, 429496730") if dv == 10 else []) + Is("""s_min_u32 s85, s85, 60000
s_add_u32 s85, s85, 30000
K1_ENC:
s_memrealtime s[90:91]
s_waitcnt lgkmcnt(0)
s_sub_u32 s90, s90, s86
s_cmp_lt_u32 s90, s85
s_cbranch_scc1 K1_ENC""")
    E += Is("K1_END:\ns_endpgm")
    B["k2fin"] = E
    spin = lambda nm, ret, ld, rd: Is(f"""{nm}:
s_add_u32 s{sSp}, s{sSp}, 1
s_cmp_gt_u32 s{sSp}, 0x40000
s_cbranch_scc1 {ret}
s_sleep 4
{ld}
s_waitcnt vmcnt(0)
{rd}
s_nop 3
s_cmp_lt_u32 s88, 32
s_cbranch_scc1 {nm}
s_branch {ret}""")
    B["k2side"] = Is(f"""K1_REDO:
s_mov_b32 s{sMode}, 1
s_waitcnt vmcnt(0) lgkmcnt(0)
s_barrier
s_branch K1_PRO""") + spin("K2_SPIN0", "K2_RET0", f"buffer_load_dwordx2 v[{vPoll}:{vPoll+1}], off, {S4(sDb)}, s{sCo} sc1", f"v_min_u32 v{t0}, v{vPoll}, v{vPoll+1}\ns_nop 0\nv_readfirstlane_b32 s88, v{t0}") \
        + spin("K2_SPIN1", "K2_RET1", f"buffer_load_dword v{vP2}, off, {S4(sFl)}, s{sC1} sc1", f"v_readfirstlane_b32 s88, v{vP2}")
    D = Is("K2_IDLE:")
    for u in range(NE0, 24): D += epi_unit(u, True)
    D += Is("s_waitcnt vmcnt(0)\ns_barrier") + [atomic(vOne, sC1w, sFl)]
    if OPT["pfs"]:
        S0 = OPT["pfs"]
        D += Is(f"""s_mov_b64 {S2(sOo)}, {S2(sWoP)}
s_mov_b32 s{sOo+2}, s{sK2n}
s_mov_b32 s{sOo+3}, 0x20000
s_bfe_u32 s80, s{sWg}, 0x10003
s_lshl_b32 s80, s80, 14
s_add_u32 s80, s80, {S0*163840}
s_mov_b32 s81, {S0*5}
K2_PFL:""") + [I(f"buffer_load_dwordx4 {V4(64+4*j)}, v{vO}, {S4(sOo)}, s80 offen offset:{j*1024}", dst=regs("v", 64 + 4 * j, 4)) for j in range(4)] + Is(f"""s_add_u32 s81, s81, 1
s_cmp_eq_u32 s81, 60
s_cselect_b32 s82, {1536*1280}, 0
s_add_u32 s80, s80, s82
s_add_u32 s80, s80, 32768
s_waitcnt vmcnt(24)
s_cmp_lt_u32 s81, 120
s_cbranch_scc1 K2_PFL""")
    D += (Is("v_mov_b32 v22, v46\nv_mov_b32 v23, v47") if OPT["stamps"] else []) + Is("s_branch K1_DONE")
    B["k2idle"] = D
    return ["k2pro", "k2head"] + ["k2loop"] * 5 + ["k2tail", "k2epi", "k2fin"], ["k2pro", "k2idle"]

def desc(name, vg=512, acc=256):
    return f""".p2align 6
.amdhsa_kernel {name}
  .amdhsa_next_free_vgpr {vg}
  .amdhsa_next_free_sgpr 102
  .amdhsa_accum_offset {acc}
  .amdhsa_group_segment_fixed_size 0
  .amdhsa_kernarg_size 104
  .amdhsa_user_sgpr_count 2
  .amdhsa_user_sgpr_kernarg_segment_ptr 1
  .amdhsa_system_sgpr_workgroup_id_x 1
  .amdhsa_float_denorm_mode_32 3
.end_amdhsa_kernel"""

def main():
    k1, e1 = kernel1()
    ref = open("cdna_kernels/" + NAME + ".s.ref").read().split("\n")
    head = [l for l in ref if l.startswith(";") and "@launch" not in l]
    nm = NAME + "_kernel"
    out = head + [f"; @launch grid=(256,1,1) block=(256,1,1) lds=163840",
                  '.amdgcn_target "amdgcn-amd-amdhsa--gfx950"', ".text"]
    out += [f".globl {nm}", ".p2align 8", f".type {nm},@function", f"{nm}:"] + k1
    out += ["K_CODE_END:", "s_endpgm", '.section .rodata,"a"', desc(nm)]
    open(sys.argv[1], "w").write("\n".join(out) + "\n")
    if e1: sys.exit(1)
main()
```

```python
import sys, math
from asmlib import *
from verify import verify

OPT = dict(nt_kv=1, nt_w=0, nt_x=0, nt_o=2, k2_nt_o=2, k2_nt_w=0, stamps=0, ovl=1, ne0=6, nc9=7, pf=1, cpf=1, k2e=9, sigs=4, pfs=5, cpl=1, k2fix=0, osc=1, ev=1, lmf=1, padn=0, padm=0, enc=0, kvn=0, kv0=10, kvpos=70, kvph=7, encb=30000, outp=0)
for a in sys.argv[2:]:
    k, v = a.split("="); OPT[k] = int(v)
NAME = "concat_heads__gqa_block_cached__gqa_block_cached__near_ridge"
MF = "v_mfma_f32_16x16x32_bf16"
def I(t, **kw): return Ins(t, **kw)
def Is(txt): return [Ins(t.strip()) for t in txt.strip().split("\n") if t.strip()]
def mfma(d, a, b, c): return Ins(f"{MF} {d}, {a}, {b}, {c}")
def V4(b): return f"v[{b}:{b+3}]"
def A4(b): return f"a[{b}:{b+3}]"

TILE = 24576; WS = 64 * 12288
X0 = 0; RING = 32768; X1 = 131072
def slot(i): return RING + i * TILE
vK = [[1, 2], [3, 4]]; KW = [0, 65536]
vV = [[5, 6, 7, 8], [9, 10, 11, 12]]; VW = [32768, 98304]
vXr = [[13, 14], [15, 16]]
vD = [17, 18]; vDkv = 19; vDw = 20; vDx = 21; vO = 22; vO3 = 23
vL = [24, 25, 26, 27]; vMi = [40, 41, 42, 43]; vT = 32
NEGM = 48; SP = 64; QF = 160
RCP = 48
def negm(qt): return NEGM + 4 * qt
def XY(par, kb, qt): return SP + 4 * ((par * 2 + kb) * 4 + qt)
def Z(kb, qt): return SP + 64 + 4 * (kb * 4 + qt)
def Qf(qt, s): return QF + 4 * (qt * 6 + s)
def Qb(qt, s):
    return SP + 4 * (qt * 6 + s)
def Oacc(t, qt): return 4 * (t * 4 + qt)
def Xf(n, kb, qt): return 32 * (n & 1) + 4 * (qt * 2 + kb)
FR = 192
def fq(n, f): return FR + 4 * ((f + 8 * (n & 1)) % 16)
sX = 4; sDA = 8; sDB = 12; sO = 16
sK = 20; sV = 22; sNb = 24; sNnum = 26; sNs = 27; sNd = 28; sXnum = 29; sN2 = 30; sMask = 32
sA = 34; sB = 35; sI = 39; sWoff = 40; sXoff = 41
sOs = [42, 43, 44, 45, 37, 38]; sT = 46; sItem = 47; sMode = 48; sFlag = 49; sC = 50
sWave = 52; sWg = 53; sT2 = 54; sT3 = 55; sThr = 56; sKA = 58
sLd = 4
sP1 = 60; vPf = 248; vPoll = 228
sWoP = 64; sOutP = 66; sWsP = 68; sSig = 70; sPfo = 71; sDb = 72; sCo = 76; sOn = 77; sSp = 78
sCp = 97; sKvn = 3; sK2n = 79; sXd = 57; sAll = 36; sXn = 98; sK2O = 100; FLO = RING + 3 * TILE
FLG = 0x3000000; XCH = 0x3100000
def S4(b): return f"s[{b}:{b+3}]"
def S2(b): return f"s[{b}:{b+1}]"
BG = 76
NOV = range(BG, BG + 9)
NPRE_V = 10; NPRE_K = 6
OSTRIDE = 48 * 120 * 1024

def lastuse_pv(f): return 8 * (f >> 1) + 6 + (f & 1)
def lastuse_qk(f): kt, s = divmod(f, 6); return 24 * kt + 18 + (5 - s)

def reads_v(n, base):
    out = []
    for f in range(24):
        t, kb = f >> 1, f & 1
        r = fq(n, f)
        for hf in range(2):
            off = base + (4 * kb + 2 * hf) * 3072 + (t >> 2) * 1024
            w = 1 if off >= VW[1] else 0
            it = I(f"ds_read_b64_tr_b16 a[{r+2*hf}:{r+2*hf+1}], v{vV[w][t & 3]} offset:{off-VW[w]}", dst=regs("a", r + 2 * hf, 2)); it.f = f
            out.append(it)
    return out
def reads_k(n, base):
    out = []
    for f in range(24):
        kt, s = divmod(f, 6); r = fq(n, f)
        off = base + kt * 6144 + (s >> 1) * 1024
        w = 1 if off >= KW[1] else 0
        it = I(f"ds_read_b128 {A4(r)}, v{vK[w][s & 1]} offset:{off-KW[w]}", dst=regs("a", r, 4)); it.f = f
        out.append(it)
    return out
def reads_x(n):
    return [I(f"ds_read_b128 {A4(Xf(n, kb, qt))}, v{vXr[n & 1][kb]} offset:{qt*2048}", dst=regs("a", Xf(n, kb, qt), 4)) for qt in range(4) for kb in range(2)]

def dma(srd, soff, base, nt):
    n = " nt" if nt else ""
    out = []
    for p in range(3):
        m = I(f"s_add_u32 m0, s{sWoff}, {base + 896*p}")
        a = I(f"buffer_load_dwordx4 v{vD[0]}, {S4(srd)}, s{soff} offen offset:{p*128}{n} lds", dst={f"L{base}"}, after=[m])
        b = I(f"buffer_load_dwordx4 v{vD[1]}, {S4(srd)}, s{soff} offen offset:{p*128+3072}{n} lds", dst={f"L{base}"})
        out += [m, a, b]
    return out
def dma_w(m): return [I(f"s_mov_b32 s{sT2}, {m*WS}")] + dma(sDA, sT2, slot(m % 4), OPT["nt_w"])
def dma_k(i, base): return [I(f"s_mov_b32 s{sT2}, {i*TILE}")] + dma(sDA, sT2, base, OPT["nt_kv"])
def dma_v(i, base): return [I(f"s_mov_b32 s{sT2}, {i*TILE}")] + dma(sDB, sT2, base, OPT["nt_kv"])
def dma_n(m): return [I(f"s_mul_i32 s{sT2}, s{sNs}, {m}")] + dma(sDA, sT2, slot(m), OPT["nt_w"])
def hd(d): return d[:-6]
def tl(d): return d[-6:]
def dma_x(n):
    out = []; base = X1 if n & 1 else X0
    for j in range(8):
        if j % 4 == 0: out.append(I(f"s_add_u32 m0, s{sXoff}, {base + j*1024}"))
        out.append(I(f"s_mov_b32 s{sT}, {j*10240 - (j % 4)*1024 + n*128}"))
        out.append(I(f"buffer_load_dwordx4 v{vDx}, {S4(sX)}, s{sT} offen offset:{(j % 4)*1024}" + (" nt" if OPT["nt_x"] else "") + " lds", dst={f"X{n&1}_{j>>1}"}))
    return out

def phase(name, n, typ, mf, own, nxt, nxt_typ, pub, early, dmas, extra=(), post=(), early_hi=BG - 6, endneed=None):
    lu = lastuse_pv if typ == "v" else lastuse_qk
    rs = []
    if typ == "v":
        k0 = 48 - len(own)
        for j, it in enumerate(own):
            it.target = -18 + (k0 + j) * 88 / 48
            it.hi = min(8 * (it.f >> 1) - 6, BG - 5)
            if it.f >= 16: it.lo = lu(it.f - 16)
            it.hi = max(it.hi, it.lo)
    else:
        for j, it in enumerate(own):
            kt, s = divmod(it.f, 6)
            it.target = 24 * (kt - 1) + 1 + s * 2.5; it.hi = 24 * kt - 8
            if it.f >= 16: it.lo = lu(it.f - 16)
    rs += own
    bar = BAR(pub if isinstance(pub, set) else {f"L{pub}"}, lo=BG, hi=BG); rs.append(bar)
    for j, it in enumerate(nxt):
        it.lo = max(BG + 1, lu(it.f + 8)); it.after = [bar]
        it.target = BG + 1 + (j * 1.8 if nxt_typ == "v" else j * 1.5); it.hi = 95 if nxt_typ == "v" and j >= 4 else 88
    rs += nxt
    ws = []
    if typ == "v":
        for t in range(1, 12):
            if 8 * t - 1 >= BG: break
            ws.append(WAIT(lneed=regs("a", fq(n, 2 * t), 4) | regs("a", fq(n, 2 * t + 1), 4), lo=8 * t - 3, hi=8 * t - 1, target=8 * t - 2))
    else:
        for kt in range(1, 4):
            ws.append(WAIT(lneed=set().union(*[regs("a", fq(n, 6 * kt + s), 4) for s in range(6)]), lo=24 * kt - 3, hi=24 * kt - 1, target=24 * kt - 2))
    nf = 2 if nxt_typ == "v" else 6
    ws.append(WAIT(lneed=set().union(*[regs("a", fq(n + 1, f), 4) for f in range(nf)]) | (endneed or set()), lo=94, hi=95, target=94.5))
    ms = list(early)
    spread(ms, 1, early_hi)
    nv = sum(1 for it in dmas if it.kind == "vmem"); k = 0
    for it in dmas:
        it.lo = BG + 1 if it.kind == "vmem" else BG - 4
        it.target = BG + 2 + k * min(8.0, 17.0 / max(nv, 1)) - (0 if it.kind == "vmem" else 2.5)
        if it.kind == "vmem": it.after = it.after + [bar]; k += 1
    ms += dmas
    for it in post: it.lo = BG + 1; it.target = 90
    ms += list(post)
    return schedule(mf, [ws, rs, ms] + list(extra), novalu=NOV, name=name)

def softmax(par, kb, lo, hi, zdead=None, sub=None, los=None, skip=NOV):
    E = []; D = []; P = []
    for qt in range(4):
        x, z = XY(par, kb, qt), Z(kb, qt)
        src = [x, x + 1, x + 2, x + 3, z, z + 1, z + 2, z + 3]
        for pr in range(4):
            es = []
            for e in range(2):
                r = src[2 * pr + e]
                ex = I(f"v_exp_f32 v{r}, v{r}")
                if sub:
                    sb = I(f"v_add_f32 v{r}, v{r}, v{negm(qt)}", after=[sub[qt]], lo=los[qt][pr >> 1]); P.append(sb); ex.after = [sb]
                E.append(ex); es.append(ex)
                if not OPT["lmf"]: D.append(I(f"v_add_f32 v{vL[qt]}, v{vL[qt]}, v{r}", after=[ex]))
            c = I(f"v_cvt_pk_bf16_f32 v{x+pr}, v{src[2*pr]}, v{src[2*pr+1]}", after=es)
            if zdead: c.hi = zdead(qt)
            D.append(c)
    spread(E, lo, hi, skip)
    for e in E: e.hi = 94
    for d in D:
        d.target = max(a.target for a in d.after) + 1
        for a in d.after: a.hi = min(a.hi, d.hi - 1)
    for p, e in zip(P, E): p.target = e.target - 3; p.hi = e.hi - 1
    return ([P] if sub else []) + [E, D]

def mf_w(n):
    out = []
    for t in range(12):
        for qt in range(4):
            d = Qf(qt, t >> 1) if t % 2 == 0 else Qb(qt, t >> 1)
            for kb in range(2):
                out.append(mfma(V4(d), A4(fq(n, 2 * t + kb)), A4(Xf(n, kb, qt)), "0" if (n == 0 and kb == 0) else V4(d)))
    return out
def mf_qk(n, par, first=False):
    out = []
    for kt in range(4):
        for qt in range(4):
            d = XY(par, kt >> 1, qt) if kt % 2 == 0 else Z(kt >> 1, qt)
            order = range(6) if qt % 2 == 0 else range(5, -1, -1)
            for j, s in enumerate(order):
                c = V4(d) if j else ("0" if (first and kt < 2) else V4(negm(qt)))
                out.append(mfma(V4(d), A4(fq(n, 6 * kt + s)), V4(Qf(qt, s)), c))
    return out
def mf_l(par, first=False):
    if not OPT["lmf"]: return []
    return [mfma(V4(vL[0]), V4(32 + 4 * qt), V4(XY(par, kb, qt)), "0" if (first and qt + kb == 0) else V4(vL[0])) for kb in range(2) for qt in range(4)]
def mf_pv(n, par, first=False):
    out = []
    for t in range(12):
        for qt in range(4):
            for kb in range(2):
                out.append(mfma(A4(Oacc(t, qt)), A4(fq(n, 2 * t + kb)), V4(XY(par, kb, qt)), "0" if (first and kb == 0) else A4(Oacc(t, qt))))
    return out

ETMP = [32, 40, 56]
def epi_unit(u, packed, k2=False):
    s, qt = divmod(u, 4)
    tb = ETMP[u % 3] if OPT["stamps"] in (0, 6) else [24, 32, 56][u % 3] if k2 else [32, 56][u % 2]
    out = []
    rc = RCP + 2 * qt
    for h in range(2):
        for j in range(4): out.append(I(f"v_accvgpr_read_b32 v{tb+4*h+j}, a{Oacc(2*s+h, qt)+j}"))
        if packed:
            for j in range(2): out.append(I(f"v_pk_mul_f32 v[{tb+4*h+2*j}:{tb+4*h+2*j+1}], v[{tb+4*h+2*j}:{tb+4*h+2*j+1}], v[{rc}:{rc+1}]"))
        else:
            for j in range(4): out.append(I(f"v_mul_f32 v{tb+4*h+j}, v{tb+4*h+j}, v{rc}"))
        for j in range(2): out.append(I(f"v_cvt_pk_bf16_f32 v{tb+2*h+j}, v{tb+4*h+2*j}, v{tb+4*h+2*j+1}"))
    out.append(I(f"buffer_store_dwordx4 {V4(tb)}, v{vO3 if qt == 3 else vO}, {S4(sO)}, s{sOs[s]} offen offset:{qt*1024}" + ["", " nt", " sc1", " sc0 sc1"][OPT["nt_o"]], dst={"OST"}))
    return out
def cvt_unit(s, qt, packed):
    a, b = Qf(qt, s), Qb(qt, s)
    out = []
    if packed:
        for r in (a, a + 2, b, b + 2): out.append(I(f"v_pk_mul_f32 v[{r}:{r+1}], v[{r}:{r+1}], {S2(sC)}"))
    else:
        for r in (a, a + 1, a + 2, a + 3, b, b + 1, b + 2, b + 3): out.append(I(f"v_mul_f32 v{r}, s{sC}, v{r}"))
    out += Is(f"""v_cvt_pk_bf16_f32 v{a}, v{a}, v{a+1}
v_cvt_pk_bf16_f32 v{a+1}, v{a+2}, v{a+3}
v_cvt_pk_bf16_f32 v{a+2}, v{b}, v{b+1}
v_cvt_pk_bf16_f32 v{a+3}, v{b+2}, v{b+3}""")
    sw = Is(f"v_permlane16_swap_b32 v{a}, v{a+2}\nv_permlane16_swap_b32 v{a+1}, v{a+3}")
    return out, sw

def pf():
    return [I(f"v_add_u32 v{vPf}, s{sPfo}, v{vO}")] + [I(f"buffer_load_dwordx4 {V4(252)}, v{vPf}, {S4(sP1)}, " + ("0" if j < 4 else f"s{sT3}") + f" offen offset:{(j % 4)*1024}", dst=regs("v", 252, 4)) for j in range(6)]

def atomic(v, so, srd=None):
    it = Ins(f"s_mov_b64 exec, 1\nbuffer_atomic_add v{v}, off, {S4(srd or sDb)}, s{so}\ns_mov_b64 exec, -1", kind="vmem"); it.cost = 8
    return it
def codepf(va, first):
    out = []
    if first: out = [Ins("s_getpc_b64 s[82:83]\nK1_PC2:", kind="salu")] + Is(f"""s_sub_u32 s82, s82, K1_PC2-K1_ITEM
s_subb_u32 s83, s83, 0
s_and_b32 s82, s82, 0xfffffff0
s_lshr_b32 s84, s{sWg}, 3
s_lshl_b32 s84, s84, 2
s_add_u32 s84, s84, s{sWave}
s_lshl_b32 s84, s84, 10
v_lshl_add_u32 v{va}, v0, 4, s84
v_min_u32 v{va}, (K_CODE_END-K1_ITEM-32)&0xfffffff0, v{va}
v_mov_b32 v{va+1}, s83
v_add_co_u32 v{va}, vcc, s82, v{va}""")
    if first:
        c = I(f"v_addc_co_u32 v{va+1}, vcc, 0, v{va+1}, vcc", after=[out[-1]], dly=1); out.append(c)
        return out
    return [I(f"global_load_dword v30, v[{va}:{va+1}], off", dst={"v30"})]

def lin(items):
    out = []
    for k, it in enumerate(items):
        out.append(it)
        if it.text.startswith("s_add_u32 m0") and items[k + 1].kind == "vmem": out.append(I("s_nop 0"))
    return out

def stamp(idx, k2=False):
    if not OPT["stamps"]: return []
    va, vb = (22, 23) if idx >= 51 else (31, 31) if OPT['stamps'] == 6 else (46, 47)
    if idx == -2: sel = "s_add_u32 s92, s39, 31"
    elif idx < 0: sel = f"s_mul_i32 s92, s{sItem}, 24\ns_add_u32 s92, s92, s{sI}\ns_add_u32 s92, s92, 8"
    else: sel = f"s_mov_b32 s92, {idx}" if (k2 or idx >= 48) else f"s_mul_i32 s92, s{sItem}, 24\ns_add_u32 s92, s92, {idx}"
    return Is(f"""s_memtime s[90:91]
s_memrealtime s[94:95]
s_waitcnt lgkmcnt(0)
s_cselect_b32 s96, 1, 0
{sel}
s_mov_b32 s93, m0
s_mov_b32 m0, s92
v_writelane_b32 v{vb}, s94, m0
v_writelane_b32 v{va}, s90, m0
s_mov_b32 m0, s93
s_cmp_lg_u32 s96, 0""")
def stamp_out(karg, wg, wave, tmp, base, k2=False):
    if not OPT["stamps"]: return []
    va = 22
    return Is(f"""s_load_dwordx2 s[80:81], {karg}, 96
s_waitcnt lgkmcnt(0)
s_add_u32 s80, s80, {base}
s_addc_u32 s81, s81, 0
s_mov_b32 s82, 0x100000
s_mov_b32 s83, 0x20000
s_lshl_b32 s84, s{wg}, 2
s_add_u32 s84, s84, s{wave}
s_lshl_b32 s84, s84, 9
v_lshlrev_b32 v{tmp}, 3, v0
buffer_store_dwordx2 v[{va}:{va+1}], v{tmp}, s[80:83], s84 offen""")


def kernel1():
    B = {}
    c = math.log2(math.e) / math.sqrt(192.0)
    import struct
    cbits = struct.unpack("<I", struct.pack("<f", c))[0]
    B["entry"] = Is(f"""
s_cmp_ge_u32 s2, 256
s_cbranch_scc1 K1_END
s_mov_b32 s{sWg}, s2
s_mov_b64 {S2(sKA)}, s[0:1]
s_mov_b32 s{sMode}, 0
s_mov_b32 s{sSig}, 0
s_mov_b32 s{sSp}, 0""") + (Is(f"""
s_getpc_b64 s[90:91]
K1_PC:
s_lshr_b32 s92, s2, 3
s_lshl_b32 s92, s92, 12
v_lshl_add_u32 v36, v0, 4, s92
v_min_u32 v36, (K_CODE_END-K1_PC-32)&0xfffffff0, v36
s_and_b32 s90, s90, 0xfffffff0
v_mov_b32 v37, s91
v_add_co_u32 v36, vcc, s90, v36
s_nop 1
v_addc_co_u32 v37, vcc, 0, v37, vcc""") + [I("global_load_dwordx4 v[40:43], v[36:37], off", dst=regs("v", 40, 4))] if OPT["cpf"] else []) + Is(f"""
v_lshrrev_b32 v{vT}, 6, v0
v_and_b32 v0, 63, v0
v_mov_b32 v47, 0
v_readfirstlane_b32 s{sWave}, v{vT}
""") + stamp(48)
    P = Is("K1_PRO:") + Is(f"""
s_load_dwordx4 s[4:7], {S2(sKA)}, 0
s_load_dwordx4 s[8:11], {S2(sKA)}, 16
s_load_dwordx4 s[12:15], {S2(sKA)}, 32
s_load_dwordx4 s[16:19], {S2(sKA)}, 48
s_load_dwordx4 s[20:23], {S2(sKA)}, 64
s_load_dwordx4 s[24:27], {S2(sKA)}, 80
s_load_dwordx2 {S2(sWsP)}, {S2(sKA)}, 96
s_lshr_b32 s{sT2}, s{sWg}, 3
s_and_b32 s88, s{sWg}, 1
s_and_b32 s89, s{sT2}, 7
s_lshl_b32 s82, s88, 3
s_add_u32 s84, s82, s89
s_bfe_u32 s83, s{sWg}, 0x10001
s_lshl_b32 s83, s83, 2
s_lshr_b32 s82, s{sT2}, 3
s_add_u32 s{sT}, s83, s82
s_mul_i32 s82, s{sT}, 307200
s_lshl_b32 s83, s{sT}, 5
s_add_u32 s83, s83, s84
s_mul_i32 s83, s83, 393216
s_mul_i32 s84, s84, 384
s_bfe_u32 s{sT3}, s{sWg}, 0x10002
s_lshl_b32 s85, s{sT3}, 5
s_lshl_b32 s86, s88, 4
s_add_u32 s85, s85, s86
s_add_u32 s85, s85, s89
s_mul_i32 s85, s85, 720
s_mul_i32 s86, s{sT}, 15
s_add_u32 s85, s85, s86
s_lshl_b32 s85, s85, 10
s_and_b32 s88, s{sWg}, 3
s_lshl_b32 s89, s{sT2}, 2
s_add_u32 s88, s88, s89
s_mul_i32 s{sWoff}, s{sWave}, 6144
s_lshl_b32 s{sXoff}, s{sWave}, 13
""")
    t0, t1, t2, t3 = vT, vT + 1, vT + 2, vT + 3
    P += Is(f"""
v_lshrrev_b32 v{t0}, 3, v0
v_and_b32 v{t1}, 7, v0
v_and_b32 v{t2}, 6, v{t0}
v_xor_b32 v{t1}, v{t1}, v{t2}
v_mul_u32_u24 v{vDkv}, 384, v{t0}
v_lshl_add_u32 v{vDkv}, v{t1}, 4, v{vDkv}
v_add_u32 v{vDkv}, s{sWoff}, v{vDkv}
s_lshl_b32 s86, s{sWave}, 6
v_add_u32 v{t2}, s86, v{t0}
v_mul_u32_u24 v{vDx}, 1280, v{t2}
v_lshl_add_u32 v{vDx}, v{t1}, 4, v{vDx}
v_and_b32 v{t2}, 4, v{t1}
v_and_b32 v{t3}, 1, v{t1}
v_lshl_or_b32 v{t2}, v{t3}, 1, v{t2}
v_bfe_u32 v{t3}, v{t1}, 1, 1
v_or_b32 v{t1}, v{t2}, v{t3}
v_and_b32 v{t2}, 3, v{t0}
v_lshrrev_b32 v{t3}, 2, v{t0}
v_lshl_add_u32 v{t2}, v{t3}, 3, v{t2}
s_lshr_b32 s86, s{sWave}, 1
s_lshl_b32 s86, s86, 5
s_and_b32 s87, s{sWave}, 1
s_lshl_b32 s87, s87, 2
s_add_u32 s86, s86, s87
v_add_u32 v{t2}, s86, v{t2}
v_mul_u32_u24 v{vDw}, 12288, v{t2}
v_lshl_add_u32 v{vDw}, v{t1}, 4, v{vDw}
v_mov_b32 v{vD[0]}, v{vDw}
v_add_u32 v{vD[1]}, {196608-3072}, v{vDw}
s_waitcnt lgkmcnt(0)
s_cmp_eq_u32 s{sT3}, 0
s_cselect_b64 s[90:91], s[4:5], s[14:15]
s_cselect_b64 s[92:93], s[6:7], s[16:17]
s_cselect_b64 s[94:95], s[8:9], s[18:19]
s_cselect_b64 s[96:97], s[10:11], s[20:21]
s_cselect_b64 {S2(sWoP)}, s[12:13], s[22:23]
s_mov_b64 {S2(sOutP)}, s[24:25]
s_mov_b64 {S2(sDb)}, s[26:27]
s_add_u32 s{sX}, s90, s82
s_addc_u32 s{sX+1}, s91, 0
s_mov_b32 s{sX+2}, 307200
s_mov_b32 s{sX+3}, 0x20000
s_add_u32 s{sDA}, s96, s84
s_addc_u32 s{sDA+1}, s97, 0
s_sub_u32 s{sDA+2}, 7864320, s84
s_mov_b32 s{sDA+3}, 0x20000
""")
    P += lin(dma_w(0)) + dma_x(0)
    P += Is(f"""
s_add_u32 s{sK}, s92, s83
s_addc_u32 s{sK+1}, s93, 0
s_add_u32 s{sV}, s94, s83
s_addc_u32 s{sV+1}, s95, 0
s_mov_b32 s{sDb+2}, 256
s_mov_b32 s{sDb+3}, 0x20000
s_bfe_u32 s{sCo}, s{sWg}, 0x20001
s_lshl_b32 s{sCo}, s{sCo}, 6
s_mov_b32 s{sPfo}, s{sXoff}
s_cmp_eq_u32 s{sSig}, 0
s_cselect_b32 s{sOn}, {5*122880+15*1024}, 0
s_add_u32 s{sNb}, s{sDA}, 6144
s_addc_u32 s{sNb+1}, s{sDA+1}, 0
s_sub_u32 s{sNnum}, s{sDA+2}, 6144
s_mov_b32 s{sNs}, {WS}
s_mov_b32 s{sNd}, {196608-3072}
s_mov_b64 {S2(sMask)}, 0
s_mov_b32 s{sXnum}, 307200
s_mul_i32 s86, s88, 61440
s_add_u32 s{sN2}, s{sWoP}, s86
s_addc_u32 s{sN2+1}, s{sWoP+1}, 0
s_mul_i32 s86, s88, {4*12288}
s_add_u32 s86, s86, {128*12288+6144}
s_add_u32 s{sP1}, s96, s86
s_addc_u32 s{sP1+1}, s97, 0
s_mov_b32 s{sP1+2}, {3*12288+6144}
s_mov_b32 s{sP1+3}, 0x20000
s_mov_b32 s{sT3}, 4096
s_add_u32 s{sO}, s{sWsP}, s85
s_addc_u32 s{sO+1}, s{sWsP+1}, 0
s_sub_u32 s{sO}, s{sO}, {OSTRIDE}
s_subb_u32 s{sO+1}, s{sO+1}, 0
s_mov_b32 s{sO+2}, 0
s_mov_b32 s{sO+3}, 0x20000
s_lshl_b32 s86, s{sWg}, 7
s_add_u32 s86, s86, {FLG}
s_add_u32 s{sDB}, s{sWsP}, s86
s_addc_u32 s{sDB+1}, s{sWsP+1}, 0
s_cmp_eq_u32 s{sMode}, 0
s_cselect_b32 s{sDB+2}, 128, 0
s_mov_b32 s{sDB+3}, 0x20000
s_mov_b32 s{sItem}, 0
s_mov_b32 s{sFlag}, 0
s_mov_b32 s{sXd}, 0
s_mov_b32 s{sCp}, 0x1000
s_mov_b32 s{sKvn}, 393216
s_mov_b64 {S2(sXn)}, {S2(sX)}
s_lshr_b32 s80, s{sWg}, 3
s_mul_i32 s84, s80, 52
s_lshr_b32 s84, s84, 8
s_mul_i32 s85, s84, 5
s_sub_u32 s85, s80, s85
s_and_b32 s81, s{sWg}, 1
s_and_b32 s82, s{sWave}, 1
s_lshr_b32 s83, s{sWave}, 1
s_xor_b32 s86, s81, s82
s_xor_b32 s86, s86, 1
s_lshl_b32 s86, s86, 7
s_lshl_b32 s87, s85, 8
s_add_u32 s86, s86, s87
s_mul_i32 s87, s83, {64*1280}
s_add_u32 s86, s86, s87
s_cmp_lt_u32 s80, 30
s_cselect_b32 s86, s86, 0
s_mul_i32 s87, s81, {1536*1280}
s_add_u32 s86, s86, s87
s_add_u32 s{sWoP}, s{sWoP}, s86
s_addc_u32 s{sWoP+1}, s{sWoP+1}, 0
s_sub_u32 s{sK2n}, 7864320, s86
s_bfe_u32 s86, s{sWg}, 0x10001
s_mul_i32 s86, s86, 60
s_mul_i32 s87, s84, 10
s_add_u32 s86, s86, s87
s_mul_i32 s87, s82, 5
s_add_u32 s86, s86, s87
s_bfe_u32 s87, s{sWg}, 0x10002
s_lshl_b32 s88, s87, 1
s_add_u32 s88, s88, s81
s_mul_i32 s88, s88, {96*120}
s_add_u32 s88, s88, s86
s_lshl_b32 s88, s88, 10
s_add_u32 s{sK2O}, s{sWsP}, s88
s_addc_u32 s{sK2O+1}, s{sWsP+1}, 0
s_mul_i32 s88, s86, {16*2560}
s_mul_i32 s87, s87, 1280
s_add_u32 s88, s88, s87
s_lshl_b32 s87, s85, 8
s_add_u32 s88, s88, s87
s_lshl_b32 s87, s81, 1
s_add_u32 s87, s87, s83
s_lshl_b32 s87, s87, 6
s_add_u32 s88, s88, s87
s_add_u32 s{sOutP}, s{sOutP}, s88
s_addc_u32 s{sOutP+1}, s{sOutP+1}, 0
s_mov_b32 s{sC}, {cbits:#x}
s_mov_b32 s{sC+1}, {cbits:#x}
s_mov_b32 s{sThr}, 0x4e800000
""") + [I(f"s_mov_b32 s{sOs[s]}, {s*122880}") for s in range(6)]
    kb0, vb0 = vK[0][0], vV[0][0]
    P += Is(f"""
v_and_b32 v{t0}, 15, v0
v_lshrrev_b32 v{t1}, 4, v0
v_and_b32 v{t2}, 6, v{t0}
v_xor_b32 v{t3}, v{t2}, v{t1}
v_lshlrev_b32 v{t3}, 4, v{t3}
v_lshl_add_u32 v{vXr[0][0]}, v{t0}, 7, v{t3}
v_add_u32 v{vXr[0][0]}, s{sXoff}, v{vXr[0][0]}
v_xor_b32 v{vXr[0][1]}, 64, v{vXr[0][0]}
v_add_u32 v{vXr[1][0]}, {X1}, v{vXr[0][0]}
v_add_u32 v{vXr[1][1]}, {X1}, v{vXr[0][1]}
v_lshrrev_b32 v{t2}, 3, v{t0}
v_mul_u32_u24 v{kb0}, 3072, v{t2}
v_and_b32 v{t2}, 7, v{t0}
v_lshl_add_u32 v{kb0}, v{t2}, 7, v{kb0}
v_add_u32 v{kb0}, v{kb0}, v{t3}
v_xor_b32 v{vK[0][1]}, 64, v{kb0}
v_add_u32 v{vK[1][0]}, {KW[1]}, v{kb0}
v_add_u32 v{vK[1][1]}, {KW[1]}, v{vK[0][1]}
v_lshrrev_b32 v{t2}, 5, v0
v_mul_u32_u24 v{vb0}, 3072, v{t2}
v_bfe_u32 v{t2}, v0, 2, 3
v_lshl_add_u32 v{vb0}, v{t2}, 7, v{vb0}
v_and_b32 v{t2}, 6, v{t2}
v_bfe_u32 v{t3}, v0, 1, 1
v_xor_b32 v{t2}, v{t2}, v{t3}
v_lshl_add_u32 v{vb0}, v{t2}, 4, v{vb0}
v_and_b32 v{t2}, 1, v0
v_lshl_add_u32 v{vb0}, v{t2}, 3, v{vb0}
v_add_u32 v{vb0}, {VW[0]}, v{vb0}
v_xor_b32 v{vV[0][1]}, 32, v{vb0}
v_xor_b32 v{vV[0][2]}, 64, v{vb0}
v_xor_b32 v{vV[0][3]}, 96, v{vb0}
""") + [I(f"v_add_u32 v{vV[1][i]}, {VW[1]-VW[0]}, v{vV[0][i]}") for i in range(4)] + Is(f"""
s_lshl_b32 s86, s{sWave}, 12
v_lshlrev_b32 v{vO}, 4, v0
v_add_u32 v{vO}, s86, v{vO}
s_cmp_eq_u32 s{sWave}, 3
s_cselect_b32 s86, 0x80000000, 0
v_add_u32 v{vO3}, s86, v{vO}
""")
    P += [I(f"v_mov_b32 v{vL[q]}, 0") for q in range(4)]
    P += lin(dma_w(1)) + dma_x(1) + lin(hd(dma_w(2)))
    P += [I(f"buffer_store_dwordx4 {V4(vL[0])}, v{vO}, {S4(sDB)}, 0 offen sc1", dst={"OST"})]
    P += [BAR({f"L{slot(0)}"})]
    P += reads_v(0, slot(0))[:NPRE_V]
    XALL = lambda n: {f"X{n&1}_{q}" for q in range(4)}
    B["pro"] = P + [WAIT(vneed=XALL(0))] + reads_x(0) + Is("s_branch K1_ITEM")
    B["item"] = Is("K1_ITEM:") + stamp(0) + [WAIT(lzero=True)]
    NE0 = OPT["ne0"]
    EW = {0: list(range(NE0, 8))}
    rest = list(range(8, 24)); per = [3, 3, 2, 2, 2, 2, 2]
    for n in range(1, 8): EW[n] = rest[:per[n - 1]]; rest = rest[per[n - 1]:]
    NC9 = OPT["nc9"]
    cunits = [(s, qt) for s in range(6) for qt in range(4)]
    for n in range(10):
        own = reads_v(n, slot(n % 4))[NPRE_V:]
        early = []; extra = []
        if n < 9: nxt = reads_v(n + 1, slot((n + 1) % 4))[:NPRE_V]; nt_ = "v"; pub = slot((n + 1) % 4)
        else: nxt = reads_k(10, X0)[:NPRE_K]; nt_ = "k"; pub = X0
        def wtile(n): return {7: dma_k(0, X0), 8: dma_k(1, slot(2)), 9: dma_v(0, slot(3))}.get(n) or dma_w(n + 3)
        early += tl(wtile(n - 1))
        if n == 7:
            early += Is(f"""s_mov_b64 {S2(sDA)}, {S2(sK)}
s_mov_b32 s{sDA+2}, 393216
s_mov_b64 {S2(sDB)}, {S2(sV)}
s_mov_b32 s{sDB+2}, 393216
v_mov_b32 v{vD[0]}, v{vDkv}
v_mov_b32 v{vD[1]}, v{vDkv}""")
        if n < 8: early += dma_x(n + 2)
        es = []
        if OPT["ovl"]:
            for u in EW.get(n, []): es += epi_unit(u, False)
            if es: extra.append(spread(es, 0, 56 if n == 0 else 95, NOV))
        if n < 9:
            xr = reads_x(n + 1); st = []
            x0 = 58 if n == 0 else 46
            for q in range(4):
                if q % 2 == 0: st.append(WAIT(vneed={f"X{(n+1)&1}_{q}", f"X{(n+1)&1}_{q+1}"}))
                st += xr[2 * q:2 * q + 2]
            spread(st, x0, BG - 5)
            if n == 0 and es:
                for it in xr: it.after = [es[-1]]
            extra.append(st)
        if n == 9:
            pub = {f"L{X0}", "OST"}
        if OPT["kvn"] and n < OPT["kvph"]:
            seq = [(k, i) for i in range(2, 15) for (k, i) in ((0, i + 1), (1, i))] + [(1, 15)]
            seq = seq[OPT["kv0"]:]
            st = []
            if n == 0: st += Is(f"""s_mov_b64 s[84:85], {S2(sK)}
s_mov_b32 s86, s{sKvn}
s_mov_b32 s87, 0x20000
s_mov_b64 {S2(sDB)}, {S2(sV)}
s_mov_b32 s{sDB+2}, s{sKvn}""")
            for j in range(OPT["kvn"]):
                x = n * OPT["kvn"] + j
                k, i = seq[x % len(seq)]; off = [3328, 128, 3072][x // len(seq)]
                st += [I(f"s_mov_b32 s88, {i*TILE}"), I(f"buffer_load_dword v49, v{vDkv}, {S4(sDB if k else 84)}, s88 offen offset:{off}", dst={"v49"})]
            extra.append(spread(st, OPT["kvpos"] - (12 if n == 0 else 0), OPT["kvpos"] + 3 * OPT["kvn"]))
        if n == 9 and NC9:
            cs = []; sw = []
            for (s, qt) in cunits[:NC9]:
                a, b = cvt_unit(s, qt, False)
                a[0].lo = 16 * s + 8 + 2 * qt + 1 + 8
                for x in b: x.after = [a[-1]]; x.dly = 1
                cs += a; sw += b
            spread(cs, 17, 92, NOV)
            for x in sw: x.target = x.after[0].target + 2
            extra += [cs, sw]
        d = hd(wtile(n))
        B[f"w{n}"] = (stamp(8 + n) if OPT["stamps"] == 2 else []) + phase(f"w{n}", n, "v", mf_w(n), own, nxt, nt_, pub, early, d, extra, early_hi=56 if n == 8 else 70)
    C = stamp(1); pend = []
    dm = lin(tl(dma_v(0, slot(3))))
    for k, (s, qt) in enumerate(cunits[NC9:]):
        a, b = cvt_unit(s, qt, True)
        if k % 4 == 1:
            while dm:
                x = dm.pop(0); C.append(x)
                if x.kind == "vmem": break
        C += a[:4] + pend + a[4:]; pend = b
    C += dm + Is(f"""s_mov_b32 s87, 0xff800000
s_cmp_eq_u32 s{sWave}, 3
s_cselect_b32 s86, 0x71000000, s87
v_mov_b32 v{vMi[0]}, s87
v_mov_b32 v{vMi[1]}, s87
v_mov_b32 v{vMi[2]}, s87
v_mov_b32 v{vMi[3]}, s86""")
    C += Is(f"s_cmp_lg_u32 s{sMode}, 0\ns_nop 0") + pend + Is("s_cbranch_scc1 K1_MAXPASS\nK1_MAXRET:\ns_nop 0") + stamp(2)
    B["cvt"] = C
    M = []; last = []
    for qt in range(4):
        x = XY(0, 0, qt); m = vT + 2 * qt; t = m + 1
        a = I(f"v_max3_f32 v{m}, v{x}, v{x+1}, v{x+2}", lo=6 * qt + 13)
        b = I(f"v_max3_f32 v{m}, v{m}, v{x+3}, v{vMi[qt]}")
        c_ = I(f"v_mov_b32 v{t}, v{m}")
        d = I(f"v_permlane16_swap_b32 v{m}, v{t}", after=[c_], dly=1)
        e = I(f"v_max_f32 v{m}, v{m}, v{t}")
        f = I(f"v_mov_b32 v{t}, v{m}")
        g = I(f"v_permlane32_swap_b32 v{m}, v{t}", after=[f], dly=1)
        h = I(f"v_max_f32 v{m}, v{m}, v{t}")
        ns = [I(f"v_sub_f32 v{negm(qt)+i}, 0, v{m}", hi=48 + 6 * qt - 3) for i in range(4)]
        st = [a, b, c_, d, e, f, g, h] + ns
        for j, it in enumerate(st): it.target = 6 * qt + 13 + j * 0.5
        M.append(st); last.append(ns[0])
    sm = softmax(0, 0, 26, 93, sub=last, los=[[0, 24 + 6 * qt + 13] for qt in range(4)])
    early = Is(f"""s_mov_b32 s{sA}, {3*TILE}
s_mov_b32 s{sB}, {2*TILE}
s_mov_b32 s{sI}, 0
s_add_u32 s{sO}, s{sO}, {OSTRIDE}
s_addc_u32 s{sO+1}, s{sO+1}, 0
s_mov_b32 s{sO+2}, s{sOn}
s_mov_b32 s{sOn}, {5*122880+15*1024}""") + dma_k(2, slot(0))
    hand = Is(f"""v_mov_b32 v29, 1
s_and_b32 s80, s{sWg}, 1
s_lshl_b32 s80, s80, 2
s_add_u32 s80, s80, s{sCo}
s_cmp_eq_u32 s{sAll}, 0
s_cselect_b32 s81, s{sItem}, 0
s_cmp_lt_u32 s{sSig}, s81
s_cselect_b32 s80, s80, 0x1000
s_cselect_b32 s{sSig}, 1, s{sSig}
s_cmp_eq_u32 s{sWave}, 0
s_cselect_b32 s80, s80, 0x1000""") + [atomic(29, 80)]
    B["qk0"] = phase("qk0", 10, "k", mf_qk(10, 0, True), reads_k(10, X0)[NPRE_K:], reads_k(11, slot(2))[:NPRE_K], "k", slot(2), early,
                     hd(dma_v(1, slot(1))), M + sm, early_hi=70) + stamp(3)
    def half(nm, par, mode):
        ks, vs, kn, vp = slot(2 * par), slot(2 * par + 1), slot(2 - 2 * par), slot(3 - 2 * par)
        kd = lambda: dma(sDA, sA, ks, OPT["nt_kv"])
        vd = lambda b: dma(sDB, sB, b, OPT["nt_kv"])
        last = mode == "last"
        if mode == "first": early = hand + tl(dma_v(1, slot(1))) + (codepf(28, True) if OPT["cpl"] else [])
        elif last and par: early = tl(dma_n(0)) + dma_x(0)
        else: early = (codepf(28, False) if OPT["cpl"] and par == 0 else []) + tl(vd(vp)) + Is(f"s_add_u32 s{sB}, s{sB}, {TILE}")
        if last and par == 0:
            early += Is(f"""s_mov_b64 {S2(sX)}, {S2(sXn)}
s_mov_b32 s{sX+2}, s{sXnum}
v_lshrrev_b32 v28, 3, v0
v_mul_u32_u24 v28, 1280, v28
v_and_b32 v29, 0x70, v{vDw}
v_add_u32 v28, v28, v29
v_cndmask_b32 v{vDx}, v{vDx}, v28, {S2(sMask)}""")
        sel = []
        if mode == "first" and OPT["lmf"]:
            sel = Is("v_and_b32 v47, 3, v0\nv_mov_b32 v46, 0x3f803f80")
            for qt in range(4):
                c_ = I(f"v_cmp_eq_u32 s[86:87], {qt}, v47")
                sel += [c_, I(f"v_cndmask_b32 v{32+4*qt}, 0, v46, s[86:87]", after=[c_], dly=1)] + [I(f"v_mov_b32 v{32+4*qt+j}, v{32+4*qt}") for j in range(1, 4)]
            sel = [spread(sel, 2, 70)]
        qtile = (lambda: dma_n(1) if par else dma_v(15, X1)) if last else kd
        q = phase("qk" + nm, 11, "k", mf_qk(11, par), reads_k(11, ks)[NPRE_K:], reads_v(12, vs)[:NPRE_V], "v", vs, early, hd(qtile()),
                  softmax(1 - par, 1, 0, BG - 2, zdead=lambda qt: 72 + 6 * qt - 1) + sel, early_hi=72)
        post = []
        if par and mode == "loop": post += Is(f"s_add_u32 s{sI}, s{sI}, 1\ns_cmp_lg_u32 s{sI}, 6")
        early = tl(qtile()) + ([] if last else Is(f"s_add_u32 s{sA}, s{sA}, {TILE}"))
        if last and par == 0:
            early += Is(f"""s_mov_b64 {S2(sDA)}, {S2(sNb)}
s_mov_b32 s{sDA+2}, s{sNnum}
v_cndmask_b32 v{vD[0]}, v{vDw}, v{vDkv}, {S2(sMask)}
v_add_u32 v{vD[1]}, s{sNd}, v{vD[0]}""")
        if last and par: nxt, nty, pub = reads_v(41, X1)[:NPRE_V], "v", X1
        else: nxt, nty, pub = reads_k(11, kn)[:NPRE_K], "k", kn
        p = phase("pv" + nm, 12, "v", mf_pv(12, 1 - par, mode == "first"), reads_v(12, vs)[NPRE_V:], nxt, nty, pub, early,
                  hd(dma_n(2 * par) if last else vd(vs)), softmax(par, 0, 0, 93), post=post, early_hi=72)
        pad = lambda: Is("\n".join(["s_nop 3"] * OPT["padn"])) + [mfma(V4(32 + 4 * (k // 2 % 3)), V4(Qf(k % 4, k % 6)), V4(Qf((k + 1) % 4, (k * 5 + 2) % 6)), V4(32 + 4 * (k // 2 % 3)) if k % 2 else "0") for k in range(OPT["padm"])]
        return q + pad() + mf_l(1 - par, mode == "first") + p + pad()
    B["peel"] = half("1", 1, "first")
    B["loop"] = Is(".p2align 6\nK1_L:") + (stamp(-1) if OPT["stamps"] in (4, 6) else []) + half("e", 0, "loop") + half("o", 1, "loop") + Is("s_cbranch_scc1 K1_L")
    B["last"] = (stamp(-1) if OPT["stamps"] in (4, 6) else []) + half("14", 0, "last") + half("15", 1, "last")
    T = stamp(4)
    E, D = softmax(1, 1, 0, 93)
    di = 0; nd = 1 if OPT["lmf"] else 3
    for j in range(0, 32, 2):
        T += E[j:j + 2]
        if j >= 2: T += D[di:di + nd]; di += nd
    T.append(I("s_nop 0"))
    T += D[di:]
    if OPT["lmf"]:
        T += mf_l(1); R = []
    else:
        T += [I(f"v_mov_b32 v{vT+q}, v{vL[q]}") for q in range(4)]
        T += [I(f"v_permlane16_swap_b32 v{vL[q]}, v{vT+q}") for q in range(4)]
        T += [I(f"v_add_f32 v{vL[q]}, v{vL[q]}, v{vT+q}") for q in range(4)]
        c2 = [I(f"v_mov_b32 v{vT+q}, v{vL[q]}") for q in range(4)]
        d2 = [I(f"v_permlane32_swap_b32 v{vL[q]}, v{vT+q}", after=[c2[q]], dly=1) for q in range(4)]
        R = c2 + d2 + [I(f"v_add_f32 v{vL[q]}, v{vL[q]}, v{vT+q}") for q in range(4)]
    B["tail"] = T
    rc = [I(f"v_rcp_f32 v{RCP+2*q}, v{vL[q]}", lo=8) for q in range(4)]
    R += rc + [I(f"v_cmp_ngt_f32 {S2(80+2*q)}, s{sThr}, v{vL[q]}") for q in range(4)]
    R += [I(f"v_mov_b32 v{RCP+2*q+1}, v{RCP+2*q}") for q in range(4)] + ([] if OPT["lmf"] else [I(f"v_mov_b32 v{vL[q]}, 0") for q in range(4)])
    spread(R, 0, 24)
    for it in R: it.hi = 95
    es = []
    for u in range(NE0 if OPT["ovl"] else 0):
        e = epi_unit(u, False); e[0].lo = 16 * (u // 4) + 8 + 2 * (u % 4) + 1 + 8; es += e
    spread(es, 24, 95, NOV)
    fl = Is(f"""s_or_b64 s[80:81], s[80:81], s[82:83]
s_or_b64 s[84:85], s[84:85], s[86:87]
s_or_b64 s[80:81], s[80:81], s[84:85]
s_or_b32 s80, s80, s81
s_or_b32 s{sFlag}, s{sFlag}, s80
s_lshl_b32 s80, s{sWave}, 2
s_add_u32 s80, s80, {FLO}
v_mov_b32 v160, s80
v_mov_b32 v161, s{sFlag}
v_mov_b32 v162, {FLO}""") + [Ins("ds_write_b32 v160, v161")]
    fl[-1].cost = 8
    fl[0].after = [x for x in R if x.text.startswith("v_cmp")][-1:]; fl[0].dly = 2
    early = pf() + [I(f"buffer_load_dwordx2 v[{vPoll}:{vPoll+1}], off, {S4(sDb)}, s{sCp} sc1", dst=regs("v", vPoll, 4))] + Is(f"""s_add_u32 s{sX}, s{sX}, s{sXd}
s_addc_u32 s{sX+1}, s{sX+1}, 0
s_sub_u32 s{sX+2}, s{sX+2}, s{sXd}""") + fl
    f1 = I(f"ds_read_b128 {V4(164)}, v162", dst=regs("v", 164, 4), lo=BG + 1, target=BG + 3)
    f2 = WAIT(lneed=regs("v", 164, 4), lo=88, target=88)
    f3 = Is("v_or_b32 v164, v164, v165\nv_or3_b32 v164, v164, v166, v167")
    f4 = I(f"v_readfirstlane_b32 s{sAll}, v164", after=[f3[1]])
    for x in f3 + [f4]: x.target = 89
    B["pv15"] = phase("pv15", 41, "v", mf_pv(41, 1), reads_v(41, X1)[NPRE_V:], reads_v(0, slot(0))[:NPRE_V], "v", {f"L{slot(0)}", f"L{slot(2)}"} | XALL(0),
                      early, dma_x(1), [R + es, [f1, f2] + f3 + [f4]]) + stamp(5)
    B["br"] = stamp(6) + Is(f"s_cmp_lg_u32 s{sMode}, 0\ns_cselect_b32 s{sAll}, 0, s{sAll}\ns_cmp_eq_u32 s{sItem}, 0\ns_cbranch_scc1 K1_MID")
    B["mid"] = Is("K1_MID:") + reads_x(0) + Is(f"""s_mov_b32 s{sItem}, 1
s_mov_b32 s{sCp}, s{sCo}
s_mov_b32 s{sKvn}, 0
s_mov_b32 s{sXd}, {128*1280-128}
s_mov_b64 {S2(sXn)}, {S2(sWoP)}
s_mov_b32 s{sXnum}, s{sK2n}
s_mov_b64 {S2(sNb)}, {S2(sN2)}
s_mov_b32 s{sNnum}, {2*TILE}
s_mov_b32 s{sNs}, {TILE}
s_mov_b32 s{sNd}, 0
s_mov_b64 {S2(sMask)}, -1
s_add_u32 s{sP1}, s{sN2}, {2*TILE}
s_addc_u32 s{sP1+1}, s{sN2+1}, 0
s_mov_b32 s{sP1+2}, 12288
s_lshl_b32 s{sPfo}, s{sWave}, 11
s_add_u32 s{sK}, s{sK}, {16*393216}
s_addc_u32 s{sK+1}, s{sK+1}, 0
s_add_u32 s{sV}, s{sV}, {16*393216}
s_addc_u32 s{sV+1}, s{sV+1}, 0""")
    k2trace, k2idle = oproj(B, NE0)
    X = Is(f"""K1_MAXPASS:
v_and_b32 v{vT}, 15, v0
v_lshrrev_b32 v{vT+1}, 4, v0
v_mul_u32_u24 v{vT}, 384, v{vT}
v_lshl_add_u32 v{vT}, v{vT+1}, 4, v{vT}
s_mov_b32 s{sT}, 0""") + [I(f"v_mov_b32 v{vMi[q]}, 0xff800000") for q in range(4)] + Is("K1_MAXL:")
    for s in range(6): X.append(I(f"buffer_load_dwordx4 {V4(SP+4*s)}, v{vT}, {S4(sDA)}, s{sT} offen offset:{s*64}"))
    X.append(I("s_waitcnt vmcnt(0)"))
    for qt in range(4):
        for s in range(6): X.append(mfma(V4(SP + 32 + 4 * qt), V4(SP + 4 * s), V4(Qf(qt, s)), V4(SP + 32 + 4 * qt) if s else "0"))
    X.append(I("s_nop 7"))
    for qt in range(4):
        d = SP + 32 + 4 * qt
        X += Is(f"v_max3_f32 v{vMi[qt]}, v{vMi[qt]}, v{d}, v{d+1}\nv_max3_f32 v{vMi[qt]}, v{vMi[qt]}, v{d+2}, v{d+3}")
    X += Is(f"s_add_u32 s{sT}, s{sT}, 6144\ns_cmp_lt_u32 s{sT}, 393216\ns_cbranch_scc1 K1_MAXL\ns_branch K1_MAXRET")
    B["maxpass"] = X
    item = ["item"] + [f"w{n}" for n in range(10)] + ["cvt", "qk0", "peel"] + ["loop"] * 6 + ["last", "tail", "pv15", "br"]
    trace = ["entry", "pro"] + item + ["mid"] + item + k2trace
    layout = ["entry", "pro", "mid", "item"] + [f"w{n}" for n in range(10)] + ["cvt", "qk0", "peel", "loop", "last", "tail", "pv15", "br", "k2pro", "k2head", "k2loop", "k2tail", "k2epi", "k2fin", "k2side", "k2idle", "maxpass"]
    resolve_waits(B, trace)
    txt = {k: "\n".join(emit(v)).split("\n") for k, v in B.items()}
    errs = verify([l for b in trace for l in txt[b]])
    tr2 = ["entry", "pro"] + item[:12] + ["maxpass", "maxpass"] + item[12:]
    errs += verify([l for b in tr2 for l in txt[b]])
    errs += verify([l for b in ["entry", "pro"] + item + ["mid"] + item + k2idle for l in txt[b]])
    for e in errs: sys.stderr.write("K1 HAZARD " + e + "\n")
    return [l for b in layout for l in txt[b]], errs

def oproj(B, NE0):
    vR = [[1, 2, 3, 4], [5, 6, 7, 8]]; vOf = 9; vSt = 10; vW = 11; vRd = 12; t0, t1, t2, t3 = 13, 14, 15, 16; vP2 = 17; vLp = 18; vOne = 19
    KS = [X0, X1, RING]; EX = 65536
    QL = [("v", 224 + 4 * i) for i in range(8)] + [("a", Oacc(2 * (u // 4) + h, u % 4)) for u in range(11) for h in range(2)]
    def Of(d, kb, qt): return QL[10 * (d % 3) + 5 * kb + qt]
    R4 = lambda r: f"{r[0]}[{r[1]}:{r[1]+3}]"
    Oset = lambda d, kbs=(0, 1): set().union(*[regs(*Of(d, kb, qt), 4) for kb in kbs for qt in range(5)])
    def acc(t, qt): return 64 + 4 * (t * 5 + qt)
    def wq(f): return 192 + 4 * f
    sW_ = sX; sOo = 8; sOut = 12; sXs = 20; sXr = 24; sFl = 28
    sWt = 32; sOk = [33, 34]; sCnt = 39; sTt = 46; sJ = 40; sC1 = 51; sC1w = 50; sWb = 54
    def wdma(d, jump=False):
        out = []
        for j in range(8):
            if j % 4 == 0: out.append(I(f"s_add_u32 m0, s{sXoff}, {KS[d % 3] + j*1024}"))
            out += [I(f"s_add_u32 s{sTt}, s{sWt}, {j*10240 - (j % 4)*1024}"),
                    I(f"buffer_load_dwordx4 v{vDx}, {S4(sW_)}, s{sTt} offen offset:{(j % 4)*1024} lds", dst={f"X{d%3}_{j>>1}"})]
        out.append(I(f"s_add_u32 s{sWt}, s{sWt}, " + ("0" if OPT["k2fix"] & 1 else f"s{sJ}" if jump else f"{128*1280}")))
        return out
    Wt = lambda d: {f"X{d%3}_{q}" for q in range(4)}
    def oload(d, kb):
        so = sOk[kb]
        out = [I(f"buffer_load_dwordx4 {R4(Of(d, kb, qt))}, v{vOf}, {S4(sOo)}, s{so} offen offset:{qt*1024} sc1", dst=regs(*Of(d, kb, qt), 4)) for qt in range(4)]
        out.append(I(f"s_add_u32 s{sTt}, s{so}, 4096"))
        out.append(I(f"buffer_load_dwordx4 {R4(Of(d, kb, 4))}, v{vOf}, {S4(sOo)}, s{sTt} offen sc1", dst=regs(*Of(d, kb, 4), 4)))
        out.append(I(f"s_add_u32 s{so}, s{so}, {0 if OPT['k2fix'] & 2 else 4*122880}"))
        if not OPT["osc"]:
            for x in out: x.text = x.text.replace(" sc1", "")
        return out
    def wreads(d):
        out = []; w = 1 if KS[d % 3] == X1 else 0
        for t in range(8):
            for kb in range(2):
                r = wq(2 * t + kb)
                for hf in range(2):
                    it = I(f"ds_read_b64_tr_b16 a[{r+2*hf}:{r+2*hf+1}], v{vR[w][t & 3]} offset:{KS[d % 3] - w*X1 + (t >> 2)*8192 + (4*kb+2*hf)*1024}", dst=regs("a", r + 2 * hf, 2)); it.f = 2 * t + kb
                    out.append(it)
        return out
    NP = 8; G = 60
    P = [WAIT(vneed=regs("v", vPoll, 4))] + Is(f"""
v_min_u32 v{t0}, v{vPoll}, v{vPoll+1}
s_cmp_lg_u32 s{sAll}, 0
v_readfirstlane_b32 s89, v{t0}
s_cbranch_scc1 K1_REDO
s_and_b32 s{sC1}, s{sWg}, 7
s_lshl_b32 s{sC1}, s{sC1}, 7
s_add_u32 s{sC1}, s{sC1}, 64
s_cmp_eq_u32 s{sWave}, 0
s_cselect_b32 s{sC1w}, s{sC1}, 0x10000
s_add_u32 s{sFl}, s{sWsP}, {FLG}
s_addc_u32 s{sFl+1}, s{sWsP+1}, 0
s_mov_b32 s{sFl+2}, {256*128}
s_mov_b32 s{sFl+3}, 0x20000
v_mov_b32 v{vOne}, 1
v_lshlrev_b32 v{vOf}, 4, v0
s_mov_b64 {S2(sOo)}, {S2(sK2O)}
s_mov_b32 s{sOo+2}, {95*122880+5*1024}
s_mov_b32 s{sOo+3}, 0x20000
s_lshr_b32 s{sWb}, s{sWave}, 1
s_mul_i32 s{sOk[0]}, s{sWb}, {2*122880}
s_add_u32 s{sOk[1]}, s{sOk[0]}, 122880
s_cmp_lt_u32 s89, 32
s_cbranch_scc1 K2_SPIN0
K2_RET0:
s_cmp_ge_u32 s{sWg}, 240
s_cbranch_scc1 K2_IDLE""")
    B["k2pro"] = P
    r0 = vR[0][0]
    assert NE0 >= 6
    H = oload(0, 0) + oload(0, 1) + oload(1, 0) + oload(1, 1) + Is(f"""
v_lshrrev_b32 v{t2}, 5, v0
v_lshlrev_b32 v{r0}, 10, v{t2}
v_bfe_u32 v{t2}, v0, 2, 3
v_lshl_add_u32 v{r0}, v{t2}, 7, v{r0}
v_and_b32 v{t2}, 6, v{t2}
v_bfe_u32 v{t3}, v0, 1, 1
v_xor_b32 v{t2}, v{t2}, v{t3}
v_lshl_add_u32 v{r0}, v{t2}, 4, v{r0}
v_and_b32 v{t2}, 1, v0
v_lshl_add_u32 v{r0}, v{t2}, 3, v{r0}
s_xor_b32 s88, s{sWb}, 1
s_lshl_b32 s88, s88, 6
v_xor_b32 v{r0}, s88, v{r0}
s_lshl_b32 s88, s{sWb}, 14
v_add_u32 v{r0}, s88, v{r0}
v_xor_b32 v{vR[0][1]}, 32, v{r0}
v_xor_b32 v{vR[0][2]}, 64, v{r0}
v_xor_b32 v{vR[0][3]}, 96, v{r0}
s_mov_b32 s{sWt}, {128*1280+128}
s_mov_b32 s{sCnt}, 0""") + [I(f"v_add_u32 v{vR[1][i]}, {X1}, v{vR[0][i]}") for i in range(4)] + wreads(0)[:NP]
    late = Is(f"""
s_mov_b64 {S2(sOut)}, {S2(sOutP)}
s_mov_b32 s{sOut+2}, {79*2560+64}
s_mov_b32 s{sOut+3}, 0x20000
s_lshl_b32 s88, s{sWg}, 2
s_add_u32 s88, s88, s{sWave}
s_xor_b32 s89, s88, 4
s_mul_i32 s88, s88, 10240
s_mul_i32 s89, s89, 10240
s_add_u32 s88, s88, {XCH}
s_add_u32 s89, s89, {XCH}
s_add_u32 s{sXs}, s{sWsP}, s88
s_addc_u32 s{sXs+1}, s{sWsP+1}, 0
s_mov_b32 s{sXs+2}, 10240
s_mov_b32 s{sXs+3}, 0x20000
s_add_u32 s{sXr}, s{sWsP}, s89
s_addc_u32 s{sXr+1}, s{sWsP+1}, 0
s_mov_b32 s{sXr+2}, 10240
s_mov_b32 s{sXr+3}, 0x20000
s_xor_b32 s88, s{sWave}, 2
s_mul_i32 s88, s88, 20480
s_add_u32 s88, s88, {EX}
v_add_u32 v{vW}, s88, v{vOf}
s_mul_i32 s88, s{sWave}, 20480
s_add_u32 s88, s88, {EX}
v_add_u32 v{vRd}, s88, v{vOf}
v_and_b32 v{t0}, 15, v0
v_lshrrev_b32 v{t1}, 4, v0
v_lshl_add_u32 v{t0}, v{t0}, 2, v{t1}
v_lshlrev_b32 v{t0}, 4, v{t0}
v_add_u32 v{vLp}, s88, v{t0}
v_lshrrev_b32 v{t0}, 2, v0
v_and_b32 v{t1}, 3, v0
v_mul_u32_u24 v{vSt}, 2560, v{t0}
v_lshl_add_u32 v{vSt}, v{t1}, 4, v{vSt}
s_mov_b32 s88, 4096
s_mov_b32 s89, 8192""") + (Is("v_mov_b32 v22, v46\nv_mov_b32 v23, v47" if OPT["stamps"] != 6 else "v_mov_b32 v22, v31\nv_mov_b32 v23, v31") if OPT["stamps"] else [])
    u0 = max(NE0 + OPT["k2e"], 11); NT = 2 if OPT["stamps"] == 9 else 3
    held = {0: []}
    for u in range(NE0, u0):
        e = epi_unit(u, True, True)
        if u >= u0 - NT: held[0].append(e.pop())
        H += e
    H += [WAIT(lneed=regs("a", wq(0), 8), vneed=Oset(0))] + stamp(49)
    left = list(range(u0, 24)); body = {}
    for d in range(6):
        body[d] = []; held[d + 1] = []
        for u in left[d * NT:(d + 1) * NT]:
            e = epi_unit(u, False, True); held[d + 1].append(e.pop()); body[d] += e
    SG = max(d for d in held if held[d]) + 1
    assert SG <= 5
    TM = 24
    so = lambda q: ["0", "s88", "s89"][q // 4]
    def step(d, mode):
        mf = []
        for t in range(8):
            for qt in range(5):
                for kb in range(2):
                    a = acc(t, qt)
                    mf.append(mfma(V4(a), A4(wq(2 * t + kb)), R4(Of(d, kb, qt)), "0" if (d == 0 and kb == 0) else V4(a)))
        own = wreads(d)[NP:]
        ws = [WAIT(lneed=regs("a", wq(2 * t), 8), lo=10 * t - 3, hi=10 * t - 1, target=10 * t - 2) for t in range(1, 7)]
        if d == 23:
            G2 = 39
            spread(own, 0, 24)
            for it in own: it.hi = G2 - 4
            w3 = [I(f"ds_write_b128 v{vW}, {V4(64 + 4*q)} offset:{q*1024}", lo=24, target=24 + q, hi=G2 - 3) for q in range(10)]
            for x in w3: x.cost = 8
            bar = BAR(None, lo=G2, hi=G2)
            rd = [I(f"ds_read_b128 {V4(TM + 4*q)}, v{vRd} offset:{q*1024}", dst=regs("v", TM + 4 * q, 4), after=[bar]) for q in range(10)]
            spread(rd, G2 + 1, G2 + 11)
            ad = []
            for q in range(10):
                if q % 2 == 0: ad.append(WAIT(lneed=regs("v", TM + 4 * q, 8), after=[rd[q + 1]]))
                ad += [I(f"v_add_f32 v{104+4*q+j}, v{104+4*q+j}, v{TM+4*q+j}") for j in range(4)]
                ad.append(I(f"buffer_store_dwordx4 {V4(104+4*q)}, v{vOf}, {S4(sXs)}, {so(q)} offen offset:{(q%4)*1024} sc1"))
            spread(ad, G2 + 9, 80)
            return schedule(mf, [ws[:3], own + [bar] + rd, w3, ad], novalu=range(G2, G2 + 9), name=f"k2s{d}")
        nxt = wreads(d + 1)[:NP]
        spread(own, 0, G - 6)
        for it in own: it.hi = min(it.hi, 10 * (it.f >> 1) - 7); it.target = min(it.target, it.hi - 1)
        bar = BAR(Wt(d + 1) | ({"OST"} if (mode == "head" and d == SG) else set()), lo=G, hi=G)
        for it in nxt: it.after = [bar]
        spread(nxt, G + 1, 76)
        ws.append(WAIT(lneed=regs("a", wq(0), 8), vneed=Oset(d + 1), lo=78, hi=79, target=78.5))
        vm = []; pos = d % 3
        if mode == "loop" and pos == 0:
            vm += Is(f"s_cmp_eq_u32 s{sCnt}, 1\ns_cselect_b32 s88, s{sC1}, 0x10000\ns_cselect_b32 s{sJ}, {1536*1280}, 0\ns_add_u32 s{sJ}, s{sJ}, {128*1280}")
            vm += [I(f"buffer_load_dword v{vP2}, off, {S4(sFl)}, s88 sc1", dst={f"v{vP2}"})]
        if d > 0: vm += oload(d + 1, 1)
        if mode == "head": vm += held[d]
        if d + 2 <= 23: vm += wdma(d + 2, jump=(mode == "loop" and pos == 0))
        if mode == "loop" and pos == 1:
            chk = Is(f"v_readfirstlane_b32 s88, v{vP2}\ns_cmp_eq_u32 s{sCnt}, 1\ns_cselect_b32 s89, 32, 0")
            vm = chk + vm + [Ins("s_cmp_lt_u32 s88, s89\ns_cbranch_scc1 K2_SPIN1\nK2_RET1:", kind="bar")]
        if d + 2 <= 23: vm += oload(d + 2, 0)
        if mode == "head" and d == SG:
            at = atomic(vOne, sC1w, sFl); at.after = [bar]; vm.append(at)
        if mode == "loop" and pos == 2: vm += Is(f"s_add_u32 s{sCnt}, s{sCnt}, 1\ns_cmp_lt_u32 s{sCnt}, 5")
        if d == 22: vm += late
        if OPT['ev'] and d < 22: even(vm, 0, 80, [G])
        else: spread(vm, 0, 80 if d < 22 else 56, [G])
        es = []
        if mode == "head" and body[d]:
            es = body[d]
            for k in range(len(es) // 20): es[20 * k].after = [held[d][k]]; es[20 * k].dly = 1
            spread(es, held[d][0].lo + 2, 79, range(G, G + 9))
        return schedule(mf, [ws, own + [bar] + nxt, vm, es], novalu=range(G, G + 9), name=f"k2s{d}")
    B["k2head"] = H + [x for d in range(6) for x in step(d, "head") + (stamp(40 + d, True) if OPT["stamps"] == 5 and d < 5 else [])] + stamp(50)
    B["k2loop"] = Is(".p2align 6\nK2_L:") + [x for d in range(6, 9) for x in step(d, "loop")] + (stamp(-2) if OPT["stamps"] == 5 else []) + Is("s_cbranch_scc1 K2_L")
    B["k2tail"] = stamp(47, True) + [x for d in range(21, 24) for x in step(d, "tail") + (stamp(55 + d - 21) if OPT["stamps"] == 5 and d == 22 else stamp(45, True) if OPT["stamps"] == 5 and d == 21 else [])]
    KP = 184; RD = 64
    pa = lambda a, b: I(f"v_pk_add_f32 v[{a}:{a+1}], v[{a}:{a+1}], v[{b}:{b+1}]")
    E = stamp(51) + (Is(f"v_writelane_b32 v22, s{sSp}, 61") if OPT["stamps"] else []) + [I(f"ds_write_b128 v{vW}, {V4(144 + 4*q)} offset:{10240 + q*1024}") for q in range(10)]
    E += Is(f"""s_lshl_b32 s84, s{sWg}, 7
s_xor_b32 s85, s84, 128
s_cmp_eq_u32 s{sWave}, 0
s_cselect_b32 s84, s84, 0x10000
s_waitcnt vmcnt(0) lgkmcnt(0)
s_barrier
s_mov_b64 exec, 1
buffer_store_dword v{vOne}, off, {S4(sFl)}, s84 sc1
s_mov_b64 exec, -1""") + stamp(52) + [I(f"buffer_load_dword v{t2}, off, {S4(sFl)}, s85 sc1", dst={f"v{t2}"})]
    E += [I(f"ds_read_b128 {V4(TM + 4*q)}, v{vRd} offset:{10240 + q*1024}", dst=regs("v", TM + 4 * q, 4)) for q in range(10)]
    E += [WAIT(lzero=True)] + [pa(KP + 2 * h, TM + 2 * h) for h in range(20)]
    E += Is(f"""K2_POLL:
s_waitcnt vmcnt(0)
v_readfirstlane_b32 s86, v{t2}
s_nop 3
s_cmp_eq_u32 s86, 1
s_cbranch_scc1 K2_GO
s_add_u32 s{sSp}, s{sSp}, 1
s_cmp_gt_u32 s{sSp}, 0x40000
s_cbranch_scc1 K2_GO
buffer_load_dword v{t2}, off, {S4(sFl)}, s85 sc1
s_branch K2_POLL""")
    B["k2epi"] = E
    E = Is("K2_GO:") + stamp(53)
    order = [q for qt in range(5) for q in (qt, 5 + qt)]
    for q in order: E.append(I(f"buffer_load_dwordx4 {V4(RD+4*q)}, v{vOf}, {S4(sXr)}, {so(q)} offen offset:{(q%4)*1024} sc1", dst=regs("v", RD + 4 * q, 4)))
    for qt in range(5):
        E.append(WAIT(vneed=regs("v", RD + 4 * (5 + qt), 4)))
        for q in (qt, 5 + qt):
            for h in range(2): E.append(pa(KP + 4 * q + 2 * h, RD + 4 * q + 2 * h))
        a, b = KP + 4 * qt, KP + 4 * (5 + qt)
        E += Is(f"""v_cvt_pk_bf16_f32 v{a}, v{a}, v{a+1}
v_cvt_pk_bf16_f32 v{a+1}, v{a+2}, v{a+3}
v_cvt_pk_bf16_f32 v{a+2}, v{b}, v{b+1}
v_cvt_pk_bf16_f32 v{a+3}, v{b+2}, v{b+3}
s_nop 1
v_permlane16_swap_b32 v{a}, v{a+2}
v_permlane16_swap_b32 v{a+1}, v{a+3}
ds_write_b128 v{vLp}, {V4(a)} offset:{qt*1024}""") + [I(f"ds_read_b128 {V4(144+4*qt)}, v{vRd} offset:{qt*1024}", dst=regs("v", 144 + 4 * qt, 4))]
    for qt in range(5):
        E += [I(f"s_mov_b32 s87, {qt*16*2560}"), WAIT(lneed=regs("v", 144 + 4 * qt, 4)), I(f"buffer_store_dwordx4 {V4(144+4*qt)}, v{vSt}, {S4(sOut)}, s87 offen" + ["", " sc1", " nt", " sc0 sc1"][OPT["outp"]])]
    E += stamp(54) + (Is(f"v_writelane_b32 v22, s{sSp}, 60\nv_writelane_b32 v23, s87, 60") if OPT["stamps"] else []) + Is("K1_DONE:") + stamp_out(S2(sKA), sWg, sWave, t0, 0x4000000)
    if OPT["enc"]:
        r, a, b, dv = {1: (23, 48, 48, 1), 2: (23, 48, 54, 1), 3: (22, 3, 4, 10), 4: (22, 27, 28, 10), 5: (23, 3, 4, 1), 6: (23, 27, 28, 1), 7: (23, 49, 51, 1), 8: (23, 0, 1, 1), 9: (22, 48, 54, 10)}[OPT["enc"]]
        E += Is(f"""s_cmp_lg_u32 s{sWg}, 17
s_cbranch_scc1 K1_END
s_cmp_lg_u32 s{sWave}, 0
s_cbranch_scc1 K1_END
v_readlane_b32 s84, v{r}, {a}
v_readlane_b32 s85, v{r}, {b}
v_readlane_b32 s86, v23, 48
s_nop 3
s_sub_u32 s85, s85, s84""") + (Is("s_mul_hi_u32 s85, s85, 429496730") if dv == 10 else []) + Is(f"""s_min_u32 s85, s85, 60000
s_add_u32 s85, s85, {OPT['encb']}
K1_ENC:
s_memrealtime s[90:91]
s_waitcnt lgkmcnt(0)
s_sub_u32 s90, s90, s86
s_cmp_lt_u32 s90, s85
s_cbranch_scc1 K1_ENC""")
    E += Is("K1_END:\ns_endpgm")
    B["k2fin"] = E
    spin = lambda nm, ret, ld, rd: Is(f"""{nm}:
s_add_u32 s{sSp}, s{sSp}, 1
s_cmp_gt_u32 s{sSp}, 0x40000
s_cbranch_scc1 {ret}
s_sleep 4
{ld}
s_waitcnt vmcnt(0)
{rd}
s_nop 3
s_cmp_lt_u32 s88, 32
s_cbranch_scc1 {nm}
s_branch {ret}""")
    B["k2side"] = Is(f"""K1_REDO:
s_mov_b32 s{sMode}, 1
s_waitcnt vmcnt(0) lgkmcnt(0)
s_barrier
s_branch K1_PRO""") + spin("K2_SPIN0", "K2_RET0", f"buffer_load_dwordx2 v[{vPoll}:{vPoll+1}], off, {S4(sDb)}, s{sCo} sc1", f"v_min_u32 v{t0}, v{vPoll}, v{vPoll+1}\ns_nop 0\nv_readfirstlane_b32 s88, v{t0}") \
        + spin("K2_SPIN1", "K2_RET1", f"buffer_load_dword v{vP2}, off, {S4(sFl)}, s{sC1} sc1", f"v_readfirstlane_b32 s88, v{vP2}")
    D = Is("K2_IDLE:")
    for u in range(NE0, 24): D += epi_unit(u, True)
    D += Is("s_waitcnt vmcnt(0)\ns_barrier") + [atomic(vOne, sC1w, sFl)]
    if OPT["pfs"]:
        S0 = OPT["pfs"]
        D += Is(f"""s_mov_b64 {S2(sOo)}, {S2(sWoP)}
s_mov_b32 s{sOo+2}, s{sK2n}
s_mov_b32 s{sOo+3}, 0x20000
s_bfe_u32 s80, s{sWg}, 0x10003
s_lshl_b32 s80, s80, 14
s_add_u32 s80, s80, {S0*163840}
s_mov_b32 s81, {S0*5}
K2_PFL:""") + [I(f"buffer_load_dwordx4 {V4(64+4*j)}, v{vO}, {S4(sOo)}, s80 offen offset:{j*1024}", dst=regs("v", 64 + 4 * j, 4)) for j in range(4)] + Is(f"""s_add_u32 s81, s81, 1
s_cmp_eq_u32 s81, 60
s_cselect_b32 s82, {1536*1280}, 0
s_add_u32 s80, s80, s82
s_add_u32 s80, s80, 32768
s_waitcnt vmcnt(24)
s_cmp_lt_u32 s81, 120
s_cbranch_scc1 K2_PFL""")
    D += (Is("v_mov_b32 v22, v46\nv_mov_b32 v23, v47" if OPT["stamps"] != 6 else "v_mov_b32 v22, v31\nv_mov_b32 v23, v31") if OPT["stamps"] else []) + Is("s_branch K1_DONE")
    B["k2idle"] = D
    return ["k2pro", "k2head"] + ["k2loop"] * 5 + ["k2tail", "k2epi", "k2fin"], ["k2pro", "k2idle"]

def desc(name, vg=512, acc=256):
    return f""".p2align 6
.amdhsa_kernel {name}
  .amdhsa_next_free_vgpr {vg}
  .amdhsa_next_free_sgpr 102
  .amdhsa_accum_offset {acc}
  .amdhsa_group_segment_fixed_size 0
  .amdhsa_kernarg_size 104
  .amdhsa_user_sgpr_count 2
  .amdhsa_user_sgpr_kernarg_segment_ptr 1
  .amdhsa_system_sgpr_workgroup_id_x 1
  .amdhsa_float_denorm_mode_32 3
.end_amdhsa_kernel"""

def main():
    k1, e1 = kernel1()
    ref = open("cdna_kernels/" + NAME + ".s.ref").read().split("\n")
    head = [l for l in ref if l.startswith(";") and "@launch" not in l]
    nm = NAME + "_kernel"
    out = head + [f"; @launch grid=(256,1,1) block=(256,1,1) lds=163840",
                  '.amdgcn_target "amdgcn-amd-amdhsa--gfx950"', ".text"]
    out += [f".globl {nm}", ".p2align 8", f".type {nm},@function", f"{nm}:"] + k1
    out += ["K_CODE_END:", "s_endpgm", '.section .rodata,"a"', desc(nm)]
    open(sys.argv[1], "w").write("\n".join(out) + "\n")
    if e1: sys.exit(1)
main()
```

```python
import re
def parse_reg(tok):
    tok = tok.strip().lstrip("-")
    if tok.startswith("abs(") : tok = tok[4:-1]
    m = re.fullmatch(r"([vas])(\d+)", tok)
    if m: return {f"{m.group(1)}{m.group(2)}"}
    m = re.fullmatch(r"([vas])\[(\d+):(\d+)\]", tok)
    if m: return {f"{m.group(1)}{i}" for i in range(int(m.group(2)), int(m.group(3)) + 1)}
    if tok in ("vcc", "m0", "exec"): return {tok}
    return set()
TRANS = ("v_exp_f32", "v_rcp_f32", "v_log_f32", "v_rsq_f32", "v_sqrt_f32")
def decode(line):
    line = line.split(";")[0].strip()
    if not line or line.endswith(":") or line.startswith("."): return None
    sp = line.split(None, 1); op = sp[0]; rest = sp[1] if len(sp) > 1 else ""
    ops = [o.strip() for o in rest.split(",")] if rest else []
    last = ops[-1].split() if ops else []
    mods = last[1:] if last else []
    if ops: ops[-1] = last[0] if last else ""
    R = [parse_reg(o) for o in ops]
    d = dict(op=op, line=line, rd=set(), wr=set(), kind="salu", states=1)
    U = lambda xs: set().union(*xs) if xs else set()
    if op.startswith("v_mfma"):
        d.update(kind="mfma", wr=R[0], rd=R[1] | R[2] | R[3], A=R[1], B=R[2], C=R[3], passes=4 if "16x16x32" in op else 8)
    elif op.startswith("v_smfmac"):
        d.update(kind="mfma", wr=R[0], rd=R[0] | R[1] | R[2] | R[3], A=R[1] | R[3], B=R[2], C=R[0], passes=8)
    elif op.startswith("ds_read"): d.update(kind="ds", wr=R[0], rd=R[1], load=True)
    elif op.startswith("ds_write"): d.update(kind="ds", rd=U(R), load=False)
    elif op.startswith("ds_"): d.update(kind="ds", rd=U(R), load=False)
    elif op.startswith("buffer_load") or op.startswith("global_load"):
        if "lds" in mods: d.update(kind="vmem", rd=U(R) | {"m0"}, load=False, dma=True)
        else: d.update(kind="vmem", wr=R[0], rd=U(R[1:]), load=True)
    elif op.startswith("buffer_store"): d.update(kind="vmem", rd=U(R), load=False, data=R[0], wide=("x4" in op or "x3" in op))
    elif op.startswith("global_store"): d.update(kind="vmem", rd=U(R), load=False, data=R[1], wide=("x4" in op or "x3" in op))
    elif op.startswith("buffer_") or op.startswith("global_"): d.update(kind="vmem", rd=U(R), load=False)
    elif op.startswith("v_permlane"): d.update(kind="valu", wr=R[0] | R[1], rd=R[0] | R[1], perm=True)
    elif op.startswith("v_cndmask") and len(R) == 4: d.update(kind="valu", wr=R[0], rd=U(R[1:]))
    elif op.startswith("v_"):
        d.update(kind="valu", wr=R[0], rd=U(R[1:]))
        if op.startswith("v_fmac") or op.startswith("v_writelane"): d["rd"] |= R[0]
        if op in TRANS: d["trans"] = True
        if op.startswith("v_readfirstlane") or op.startswith("v_readlane"): d["rl"] = True
    elif op == "s_nop": d.update(states=int(ops[0]) + 1)
    elif op == "s_waitcnt":
        d["kind"] = "wait"
        m = re.search(r"vmcnt\((\d+)\)", line); d["vm"] = int(m.group(1)) if m else None
        m = re.search(r"lgkmcnt\((\d+)\)", line); d["lg"] = int(m.group(1)) if m else None
    elif op.startswith("s_cmp") or op.startswith("s_bitcmp") or op.startswith("s_cbranch") or op in ("s_barrier", "s_branch", "s_endpgm", "s_setprio", "s_sleep"):
        d.update(rd=U(R))
    elif op.startswith("s_load") or op.startswith("s_mem"):
        d.update(kind="smem", wr=R[0], rd=U(R[1:]))
    else:
        d.update(wr=R[0] if R else set(), rd=U(R[1:]))
    return d

def verify(lines, maxerr=20):
    errs = []
    hist = []
    pos = 0
    dsq = []; vmq = []; smq = []
    def err(msg, d, p=None):
        errs.append(f"{msg}: [{d['line']}]" + (f" after [{p['line']}]" if p else ""))
    cache = {}
    skip = None
    for line in lines:
        if skip:
            if line.strip() == skip: skip = None
            continue
        if line.startswith("s_cbranch_scc1 K1_KV"): skip = line.split()[1] + ":"
        if line not in cache: cache[line] = decode(line)
        d = cache[line]
        if d is None: continue
        k = d["kind"]
        touch = d["rd"] | d["wr"]
        if k == "wait":
            if d["vm"] is not None: vmq = vmq[len(vmq) - d["vm"]:] if d["vm"] < len(vmq) and d["vm"] > 0 else ([] if d["vm"] == 0 else vmq)
            if d["lg"] is not None:
                if smq and d["lg"] != 0: pass
                else:
                    dsq = dsq[len(dsq) - d["lg"]:] if d["lg"] < len(dsq) and d["lg"] > 0 else ([] if d["lg"] == 0 else dsq)
                    smq = []
        else:
            for q, nm in ((dsq, "ds"), (vmq, "vmem"), (smq, "smem")):
                for p in q:
                    if p["wr"] & d["rd"] or (p["wr"] & d["wr"] and not (k == nm)):
                        err(f"use of outstanding {nm} load", d, p)
        for (pp, p) in reversed(hist):
            dist = pos - pp - 1 - (p["states"] - 1) * 0
            if dist > 24: break
            pk = p["kind"]
            if pk == "mfma":
                need = 8 if p["passes"] == 4 else 12
                if k == "mfma":
                    if p["wr"] & (d["A"] | d["B"]) and dist < need: err(f"mfma D->AB dist {dist}", d, p)
                    if p["wr"] & d["C"] and p["wr"] != d["C"] and dist < need - 2: err(f"mfma D->C partial dist {dist}", d, p)
                elif p["wr"] & touch and dist < need: err(f"mfma D->use dist {dist}", d, p)
                if k == "valu" and p["C"] & d["wr"] and dist < (3 if p["passes"] == 4 else 7): err(f"mfma C WAR dist {dist}", d, p)
            if pk == "valu":
                vw = {r for r in p["wr"] if r[0] in "va" and r != "vcc"}
                sw = p["wr"] - vw
                if k == "mfma" and vw & d["rd"] and dist < 2: err(f"valu->mfma dist {dist}", d, p)
                if p.get("trans") and k == "valu" and not d.get("trans") and vw & d["rd"] and dist < 1: err("trans->valu", d, p)
                if d.get("perm") and vw & d["rd"] and dist < 2: err(f"valu->permlane dist {dist}", d, p)
                if d.get("rl") and vw & d["rd"] and dist < 1: err("valu->readlane", d, p)
                if k == "valu" and sw & d["rd"] and dist < 2: err("valu sgpr->valu", d, p)
                if k == "vmem" and sw & d["rd"] and dist < 5: err("valu sgpr->vmem", d, p)
            if pk == "salu" and "m0" in p["wr"] and d.get("dma") and dist < 1: err("m0->dma", d, p)
            if pk == "vmem" and p.get("wide") and p["data"] & d["wr"] and dist < 2: err("store data WAR", d, p)
        if k == "ds": dsq.append(d)
        elif k == "vmem": vmq.append(d)
        elif k == "smem": smq.append(d)
        pos += d["states"]
        hist.append((pos - 1, d))
        if len(hist) > 40: hist.pop(0)
        if len(errs) >= maxerr: break
    return errs
```

```python
import sys, math
from asmlib import *
from verify import verify

OPT = dict(nt_kv=1, nt_w=0, nt_x=0, nt_o=2, k2_nt_o=2, k2_nt_w=0, stamps=0, ovl=1, ne0=6, nc9=7, pf=1, cpf=1, k2e=9, sigs=4, pfs=5, cpl=1, k2fix=0, osc=1, ev=1, lmf=1, padn=0, padm=0, enc=0, kvn=0, kv0=10, kvpos=70, kvph=7, encb=30000, outp=0, na0=2, bg15=60, hgap=8, rot=0, wpf=1, hold=1, padi=0, cpw=0x88, vmx=63, xq=3, xp=3)
for a in sys.argv[2:]:
    k, v = a.split("="); assert k in OPT, k; OPT[k] = int(v, 0)
NAME = "concat_heads__gqa_block_cached__gqa_block_cached__near_ridge"
MF = "v_mfma_f32_16x16x32_bf16"
def I(t, **kw): return Ins(t, **kw)
def Is(txt): return [Ins(t.strip()) for t in txt.strip().split("\n") if t.strip()]
def mfma(d, a, b, c): return Ins(f"{MF} {d}, {a}, {b}, {c}")
def V4(b): return f"v[{b}:{b+3}]"
def A4(b): return f"a[{b}:{b+3}]"

TILE = 24576; WS = 64 * 12288
X0 = 0; RING = 32768; X1 = 131072
def slot(i): return RING + i * TILE
vK = [[1, 2], [3, 4]]; KW = [0, 65536]
vV = [[5, 6, 7, 8], [9, 10, 11, 12]]; VW = [32768, 98304]
vXr = [[13, 14], [15, 16]]
vD = [17, 18]; vDkv = 19; vDw = 20; vDx = 21; vO = 22; vO3 = 23
vL = [24, 25, 26, 27]; vMi = [40, 41, 42, 43]; vT = 32
NEGM = 48; SP = 64; QF = 160
RCP = 48
def negm(qt): return NEGM + 4 * qt
def XY(par, kb, qt): return SP + 4 * ((par * 2 + kb) * 4 + qt)
def Z(kb, qt): return SP + 64 + 4 * (kb * 4 + qt)
def Qf(qt, s): return QF + 4 * (qt * 6 + s)
def Qb(qt, s):
    return SP + 4 * (qt * 6 + s)
def Oacc(t, qt): return 4 * (t * 4 + qt)
def Xf(n, kb, qt): return 32 * (n & 1) + 4 * (qt * 2 + kb)
FR = 192
def fq(n, f): return FR + 4 * ((f + 8 * (n & 1)) % 16)
sX = 4; sDA = 8; sDB = 12; sO = 16
sK = 20; sV = 22; sNb = 24; sNnum = 26; sNs = 27; sNd = 28; sXnum = 29; sN2 = 30; sMask = 32
sA = 34; sB = 35; sI = 39; sWoff = 40; sXoff = 41
sOs = [42, 43, 44, 45, 37, 38]; sT = 46; sItem = 47; sMode = 48; sFlag = 49; sC = 50
sWave = 52; sWg = 53; sT2 = 54; sT3 = 55; sThr = 56; sKA = 58
sLd = 4
sP1 = 60; vPf = 248; vPoll = 228
sWoP = 64; sOutP = 66; sWsP = 68; sSig = 70; sPfo = 71; sDb = 72; sCo = 76; sOn = 77; sSp = 78
sCp = 97; sKvn = 3; sK2n = 79; sXk = 57; sXst = 2; sWk = 0; sAll = 36; sXn = 98; sK2O = 100; FLO = RING + 3 * TILE
FLG = 0x3000000; XCH = 0x3100000
def S4(b): return f"s[{b}:{b+3}]"
def S2(b): return f"s[{b}:{b+1}]"
BG = 76
NOV = range(BG, BG + 9)
NPRE_V = 10; NPRE_K = 6
OSTRIDE = 48 * 120 * 1024

def lastuse_pv(f): return 8 * (f >> 1) + 6 + (f & 1)
def lastuse_qk(f): kt, s = divmod(f, 6); return 24 * kt + 18 + (5 - s)

def reads_v(n, base):
    out = []
    for f in range(24):
        t, kb = f >> 1, f & 1
        r = fq(n, f)
        for hf in range(2):
            off = base + (4 * kb + 2 * hf) * 3072 + (t >> 2) * 1024
            w = 1 if off >= VW[1] else 0
            it = I(f"ds_read_b64_tr_b16 a[{r+2*hf}:{r+2*hf+1}], v{vV[w][t & 3]} offset:{off-VW[w]}", dst=regs("a", r + 2 * hf, 2)); it.f = f
            out.append(it)
    return out
def reads_k(n, base):
    out = []
    for f in range(24):
        kt, s = divmod(f, 6); r = fq(n, f)
        off = base + kt * 6144 + (s >> 1) * 1024
        w = 1 if off >= KW[1] else 0
        it = I(f"ds_read_b128 {A4(r)}, v{vK[w][s & 1]} offset:{off-KW[w]}", dst=regs("a", r, 4)); it.f = f
        out.append(it)
    return out
def reads_x(n):
    return [I(f"ds_read_b128 {A4(Xf(n, kb, qt))}, v{vXr[n & 1][kb]} offset:{qt*2048}", dst=regs("a", Xf(n, kb, qt), 4)) for qt in range(4) for kb in range(2)]

def dma(srd, soff, base, nt):
    n = " nt" if nt else ""
    out = []
    for p in range(3):
        m = I(f"s_add_u32 m0, s{sWoff}, {base + 896*p}")
        a = I(f"buffer_load_dwordx4 v{vD[0]}, {S4(srd)}, s{soff} offen offset:{p*128}{n} lds", dst={f"L{base}"}, after=[m])
        b = I(f"buffer_load_dwordx4 v{vD[1]}, {S4(srd)}, s{soff} offen offset:{p*128+3072}{n} lds", dst={f"L{base}"})
        out += [m, a, b]
    return out
def dma_w(m): return Is(f"s_add_u32 s{sWk}, s{sWk}, s{sNs}\ns_cmp_eq_u32 s{sWk}, {10*WS}\ns_cselect_b32 s{sWk}, 0, s{sWk}") + dma(sDA, sWk, slot(m % 4), OPT["nt_w"])
def dma_k(i, base): return [I(f"s_mov_b32 s{sT2}, {i*TILE}")] + dma(sDA, sT2, base, OPT["nt_kv"])
def dma_v(i, base): return [I(f"s_mov_b32 s{sT2}, {i*TILE}")] + dma(sDB, sT2, base, OPT["nt_kv"])
dma_n = dma_w
def hd(d): return d[:-6]
def tl(d): return d[-6:]
def dma_x(n):
    out = Is(f"s_add_u32 s{sXk}, s{sXk}, s{sXst}\ns_cmp_eq_u32 s{sXk}, 1280\ns_cselect_b32 s{sXk}, 0, s{sXk}"); base = X1 if n & 1 else X0
    for j in range(8):
        if j % 4 == 0: out.append(I(f"s_add_u32 m0, s{sXoff}, {base + j*1024}"))
        out.append(I(f"s_add_u32 s{sT}, s{sXk}, {j*10240 - (j % 4)*1024}"))
        out.append(I(f"buffer_load_dwordx4 v{vDx}, {S4(sX)}, s{sT} offen offset:{(j % 4)*1024}" + (" nt" if OPT["nt_x"] else "") + " lds", dst={f"X{n&1}_{j>>1}"}))
    return out

def phase(name, n, typ, mf, own, nxt, nxt_typ, pub, early, dmas, extra=(), post=(), early_hi=None, bg=BG, dend=None):
    lu = lastuse_pv if typ == "v" else lastuse_qk
    N = len(mf)
    rs = []
    if typ == "v":
        k0 = 48 - len(own)
        for j, it in enumerate(own):
            it.target = j * (bg - 6) / len(own)
            it.hi = min(8 * (it.f >> 1) - 6, bg - 5)
            if it.f >= 16: it.lo = lu(it.f - 16)
            it.hi = max(it.hi, it.lo)
    else:
        for j, it in enumerate(own):
            kt, s = divmod(it.f, 6)
            it.target = 24 * (kt - 1) + 1 + s * 2.5; it.hi = 24 * kt - 8
            if it.f >= 16: it.lo = lu(it.f - 16)
    rs += own
    bar = BAR(pub if isinstance(pub, set) else {f"L{pub}"}, lo=bg, hi=bg); rs.append(bar)
    for j, it in enumerate(nxt):
        it.lo = max(bg + 1, lu(it.f + 8)); it.after = [bar]
        it.target = bg + 1 + (j * 1.8 if nxt_typ == "v" else j * 1.5); it.hi = N - 1 if nxt_typ == "v" and j >= 4 else N - 8
    rs += nxt
    ws = []
    if typ == "v":
        for t in range(1, 12):
            if 8 * t - 1 >= bg: break
            ws.append(WAIT(lneed=regs("a", fq(n, 2 * t), 4) | regs("a", fq(n, 2 * t + 1), 4), lo=8 * t - 3, hi=8 * t - 1, target=8 * t - 2))
    else:
        for kt in range(1, 4):
            ws.append(WAIT(lneed=set().union(*[regs("a", fq(n, 6 * kt + s), 4) for s in range(6)]), lo=24 * kt - 3, hi=24 * kt - 1, target=24 * kt - 2))
    nf = 2 if nxt_typ == "v" else 6
    ws.append(WAIT(lneed=set().union(*[regs("a", fq(n + 1, f), 4) for f in range(nf)]), lo=N - 2, hi=N - 1, target=N - 1.5))
    ms = list(early)
    spread(ms, 1, early_hi or bg - 6)
    nv = sum(1 for it in dmas if it.kind == "vmem"); k = 0
    for it in dmas:
        it.lo = bg + 1 if it.kind == "vmem" else bg - 4
        it.target = bg + 2 + k * min(12.0, ((dend or N) - bg - 3) / max(nv, 1)) - (0 if it.kind == "vmem" else 2.5)
        if it.kind == "vmem": it.after = it.after + [bar]; k += 1
    ms += dmas
    for it in post: it.lo = bg + 1; it.target = N - 6
    ms += list(post)
    return schedule(mf, [ws, rs, ms] + list(extra), novalu=range(bg, bg + 9), name=name)

def softmax(groups, lo, hi, sub=None, skip=NOV):
    E = []; D = []; P = []
    for (par, kb, qt, l0, l1, h, sb_) in groups:
        x, z = XY(par, kb, qt), Z(kb, qt)
        src = [x, x + 1, x + 2, x + 3, z, z + 1, z + 2, z + 3]
        for pr in range(4):
            es = []
            for e in range(2):
                r = src[2 * pr + e]
                ex = I(f"v_exp_f32 v{r}, v{r}", lo=(l0, l1)[pr >> 1])
                if sb_:
                    sb = I(f"v_add_f32 v{r}, v{r}, v{negm(qt)}", after=[sub[qt]] if sub else [], lo=(l0, l1)[pr >> 1]); sb.ex = ex; P.append(sb); ex.after = [sb]
                E.append(ex); es.append(ex)
            D.append(I(f"v_cvt_pk_bf16_f32 v{x+pr}, v{src[2*pr]}, v{src[2*pr+1]}", after=es, hi=h))
    spread(E, lo, hi, skip)
    for e in E: e.hi = 10**9
    for d in D:
        d.target = max(a.target for a in d.after) + 1
        for a in d.after: a.hi = d.hi - 1
    for p in P: p.target = p.ex.target - 3; p.hi = p.ex.hi - 1
    return [P, E, D]
def g_old(par, kb, qts, N, inqk):
    return [(par, kb, qt, 0, 0, (48 * kb + 24 + 6 * qt - 1) if inqk else N - 1, False) for qt in qts]
def g_new(par, qts):
    return [(par, 0, qt, 6 * qt + 13, 24 + 6 * qt + 13, 95, False) for qt in qts]

def mf_w(n):
    out = []
    for t in range(12):
        for qt in range(4):
            d = Qf(qt, t >> 1) if t % 2 == 0 else Qb(qt, t >> 1)
            for kb in range(2):
                out.append(mfma(V4(d), A4(fq(n, 2 * t + kb)), A4(Xf(n, kb, qt)), "0" if (n == 0 and kb == 0) else V4(d)))
    return out
def mf_qk(n, par, first=False):
    out = []
    for kt in range(4):
        for qt in range(4):
            d = XY(par, kt >> 1, qt) if kt % 2 == 0 else Z(kt >> 1, qt)
            order = range(6) if qt % 2 == 0 else range(5, -1, -1)
            for j, s in enumerate(order):
                c = V4(d) if j else ("0" if (first and kt < 2) else V4(negm(qt)))
                out.append(mfma(V4(d), A4(fq(n, 6 * kt + s)), V4(Qf(qt, s)), c))
    return out
def mf_l(par, first=False):
    return [mfma(V4(vL[0]), V4(32 + 4 * qt), V4(XY(par, kb, qt)), "0" if (first and qt + kb == 0) else V4(vL[0])) for kb in range(2) for qt in range(4)]
def mf_pv(n, par, first=False):
    out = []
    for t in range(12):
        for qt in range(4):
            for kb in range(2):
                out.append(mfma(A4(Oacc(t, qt)), A4(fq(n, 2 * t + kb)), V4(XY(par, kb, qt)), "0" if (first and kb == 0) else A4(Oacc(t, qt))))
    return out

ETMP = [32, 40, 56]
def epi_unit(u, packed, k2=False):
    s, qt = divmod(u, 4)
    tb = ETMP[u % 3] if OPT["stamps"] in (0, 6, 7) else [24, 32, 56][u % 3] if k2 else [32, 56][u % 2]
    out = []
    rc = RCP + 2 * qt
    for h in range(2):
        for j in range(4): out.append(I(f"v_accvgpr_read_b32 v{tb+4*h+j}, a{Oacc(2*s+h, qt)+j}"))
        if packed:
            for j in range(2): out.append(I(f"v_pk_mul_f32 v[{tb+4*h+2*j}:{tb+4*h+2*j+1}], v[{tb+4*h+2*j}:{tb+4*h+2*j+1}], v[{rc}:{rc+1}]"))
        else:
            for j in range(4): out.append(I(f"v_mul_f32 v{tb+4*h+j}, v{tb+4*h+j}, v{rc}"))
        for j in range(2): out.append(I(f"v_cvt_pk_bf16_f32 v{tb+2*h+j}, v{tb+4*h+2*j}, v{tb+4*h+2*j+1}"))
    out.append(I(f"buffer_store_dwordx4 {V4(tb)}, v{vO3 if qt == 3 else vO}, {S4(sO)}, s{sOs[s]} offen offset:{qt*1024}" + ["", " nt", " sc1", " sc0 sc1"][OPT["nt_o"]], dst={"OST"}))
    return out
def cvt_unit(s, qt, packed):
    a, b = Qf(qt, s), Qb(qt, s)
    out = []
    if packed:
        for r in (a, a + 2, b, b + 2): out.append(I(f"v_pk_mul_f32 v[{r}:{r+1}], v[{r}:{r+1}], {S2(sC)}"))
    else:
        for r in (a, a + 1, a + 2, a + 3, b, b + 1, b + 2, b + 3): out.append(I(f"v_mul_f32 v{r}, s{sC}, v{r}"))
    out += Is(f"""v_cvt_pk_bf16_f32 v{a}, v{a}, v{a+1}
v_cvt_pk_bf16_f32 v{a+1}, v{a+2}, v{a+3}
v_cvt_pk_bf16_f32 v{a+2}, v{b}, v{b+1}
v_cvt_pk_bf16_f32 v{a+3}, v{b+2}, v{b+3}""")
    sw = Is(f"v_permlane16_swap_b32 v{a}, v{a+2}\nv_permlane16_swap_b32 v{a+1}, v{a+3}")
    return out, sw

def pf():
    return [I(f"v_add_u32 v{vPf}, s{sPfo}, v{vO}")] + [I(f"buffer_load_dwordx4 {V4(252)}, v{vPf}, {S4(sP1)}, " + ("0" if j < 4 else f"s{sT3}") + f" offen offset:{(j % 4)*1024}", dst=regs("v", 252, 4)) for j in range(6)]

def atomic(v, so, srd=None):
    it = Ins(f"s_mov_b64 exec, 1\nbuffer_atomic_add v{v}, off, {S4(srd or sDb)}, s{so}\ns_mov_b64 exec, -1", kind="vmem"); it.cost = 8
    return it
def codepf():
    return [I("global_load_dword v30, v[28:29], off", dst={"v30"})] if OPT["cpl"] else []

def lin(items):
    out = []
    for k, it in enumerate(items):
        out.append(it)
        if it.text.startswith("s_add_u32 m0") and items[k + 1].kind == "vmem": out.append(I("s_nop 0"))
    return out

def stamp(idx, k2=False):
    if not OPT["stamps"]: return []
    va, vb = (22, 23) if idx >= 51 else (31, 31) if OPT['stamps'] >= 6 else (46, 47)
    if idx == -2: sel = "s_add_u32 s92, s39, 31"
    elif idx < 0: sel = f"s_mul_i32 s92, s{sItem}, 24\ns_add_u32 s92, s92, s{sI}\ns_add_u32 s92, s92, 8"
    else: sel = f"s_mov_b32 s92, {idx}" if (k2 or idx >= 48) else f"s_mul_i32 s92, s{sItem}, 24\ns_add_u32 s92, s92, {idx}"
    return Is(f"""s_memtime s[90:91]
s_memrealtime s[94:95]
s_waitcnt lgkmcnt(0)
s_cselect_b32 s96, 1, 0
{sel}
s_mov_b32 s93, m0
s_mov_b32 m0, s92
v_writelane_b32 v{vb}, s94, m0
v_writelane_b32 v{va}, s90, m0
s_mov_b32 m0, s93
s_cmp_lg_u32 s96, 0""")
def stamp_out(karg, wg, wave, tmp, base, k2=False):
    if not OPT["stamps"]: return []
    va = 22
    return Is(f"""s_load_dwordx2 s[80:81], {karg}, 96
s_waitcnt lgkmcnt(0)
s_add_u32 s80, s80, {base}
s_addc_u32 s81, s81, 0
s_mov_b32 s82, 0x100000
s_mov_b32 s83, 0x20000
s_lshl_b32 s84, s{wg}, 2
s_add_u32 s84, s84, s{wave}
s_lshl_b32 s84, s84, 9
v_lshlrev_b32 v{tmp}, 3, v0
buffer_store_dwordx2 v[{va}:{va+1}], v{tmp}, s[80:83], s84 offen""")


def kernel1():
    B = {}
    c = math.log2(math.e) / math.sqrt(192.0)
    import struct
    cbits = struct.unpack("<I", struct.pack("<f", c))[0]
    B["entry"] = Is(f"""
s_cmp_ge_u32 s2, 256
s_cbranch_scc1 K1_END
s_mov_b32 s{sWg}, s2
s_mov_b64 {S2(sKA)}, s[0:1]
s_mov_b32 s{sMode}, 0
s_mov_b32 s{sSig}, 0
s_mov_b32 s{sSp}, 0""") + (Is(f"""
s_getpc_b64 s[90:91]
K1_PC:
s_lshr_b32 s92, s2, 3
s_lshl_b32 s92, s92, 12
v_lshl_add_u32 v28, v0, 4, s92
v_min_u32 v28, (K_CODE_END-K1_PC-32)&0xfffffff0, v28
s_and_b32 s90, s90, 0xfffffff0
v_mov_b32 v29, s91
v_add_co_u32 v28, vcc, s90, v28
s_nop 1
v_addc_co_u32 v29, vcc, 0, v29, vcc""") + codepf()) + Is(f"""
v_lshrrev_b32 v{vT}, 6, v0
v_and_b32 v0, 63, v0
v_mov_b32 v47, 0
v_readfirstlane_b32 s{sWave}, v{vT}
""") + stamp(48)
    P = Is("K1_PRO:") + Is(f"""
s_load_dwordx4 s[4:7], {S2(sKA)}, 0
s_load_dwordx4 s[8:11], {S2(sKA)}, 16
s_load_dwordx4 s[12:15], {S2(sKA)}, 32
s_load_dwordx4 s[16:19], {S2(sKA)}, 48
s_load_dwordx4 s[20:23], {S2(sKA)}, 64
s_load_dwordx4 s[24:27], {S2(sKA)}, 80
s_load_dwordx2 {S2(sWsP)}, {S2(sKA)}, 96
s_lshr_b32 s{sT2}, s{sWg}, 3
s_and_b32 s88, s{sWg}, 1
s_and_b32 s89, s{sT2}, 7
s_lshl_b32 s82, s88, 3
s_add_u32 s84, s82, s89
s_bfe_u32 s83, s{sWg}, 0x10001
s_lshl_b32 s83, s83, 2
s_lshr_b32 s82, s{sT2}, 3
s_add_u32 s{sT}, s83, s82
s_mul_i32 s82, s{sT}, 307200
s_lshl_b32 s83, s{sT}, 5
s_add_u32 s83, s83, s84
s_mul_i32 s83, s83, 393216
s_mul_i32 s84, s84, 384
s_bfe_u32 s{sT3}, s{sWg}, 0x10002
s_lshl_b32 s85, s{sT3}, 5
s_lshl_b32 s86, s88, 4
s_add_u32 s85, s85, s86
s_add_u32 s85, s85, s89
s_mul_i32 s85, s85, 720
s_mul_i32 s86, s{sT}, 15
s_add_u32 s85, s85, s86
s_lshl_b32 s85, s85, 10
s_lshr_b32 s86, s{sT2}, 3
s_mul_i32 s86, s86, 5
s_lshr_b32 s86, s86, 1
s_add_u32 s86, s86, s89
s_cmp_ge_u32 s86, 10
s_cselect_b32 s87, 10, 0
s_sub_u32 s86, s86, s87
s_mul_i32 s86, s86, {OPT["rot"]}
s_sub_u32 s86, s86, 1
s_mul_i32 s{sWk}, s86, {WS}
s_mul_i32 s{sXk}, s86, 128
s_mov_b32 s{sXst}, 128
s_and_b32 s88, s{sWg}, 3
s_lshl_b32 s89, s{sT2}, 2
s_add_u32 s88, s88, s89
s_mul_i32 s{sWoff}, s{sWave}, 6144
s_lshl_b32 s{sXoff}, s{sWave}, 13
""")
    t0, t1, t2, t3 = vT, vT + 1, vT + 2, vT + 3
    P += Is(f"""
v_lshrrev_b32 v{t0}, 3, v0
v_and_b32 v{t1}, 7, v0
v_and_b32 v{t2}, 6, v{t0}
v_xor_b32 v{t1}, v{t1}, v{t2}
v_mul_u32_u24 v{vDkv}, 384, v{t0}
v_lshl_add_u32 v{vDkv}, v{t1}, 4, v{vDkv}
v_add_u32 v{vDkv}, s{sWoff}, v{vDkv}
s_lshl_b32 s86, s{sWave}, 6
v_add_u32 v{t2}, s86, v{t0}
v_mul_u32_u24 v{vDx}, 1280, v{t2}
v_lshl_add_u32 v{vDx}, v{t1}, 4, v{vDx}
v_and_b32 v{t2}, 4, v{t1}
v_and_b32 v{t3}, 1, v{t1}
v_lshl_or_b32 v{t2}, v{t3}, 1, v{t2}
v_bfe_u32 v{t3}, v{t1}, 1, 1
v_or_b32 v{t1}, v{t2}, v{t3}
v_and_b32 v{t2}, 3, v{t0}
v_lshrrev_b32 v{t3}, 2, v{t0}
v_lshl_add_u32 v{t2}, v{t3}, 3, v{t2}
s_lshr_b32 s86, s{sWave}, 1
s_lshl_b32 s86, s86, 5
s_and_b32 s87, s{sWave}, 1
s_lshl_b32 s87, s87, 2
s_add_u32 s86, s86, s87
v_add_u32 v{t2}, s86, v{t2}
v_mul_u32_u24 v{vDw}, 12288, v{t2}
v_lshl_add_u32 v{vDw}, v{t1}, 4, v{vDw}
v_mov_b32 v{vD[0]}, v{vDw}
v_add_u32 v{vD[1]}, {196608-3072}, v{vDw}
s_waitcnt lgkmcnt(0)
s_cmp_eq_u32 s{sT3}, 0
s_cselect_b64 s[90:91], s[4:5], s[14:15]
s_cselect_b64 s[92:93], s[6:7], s[16:17]
s_cselect_b64 s[94:95], s[8:9], s[18:19]
s_cselect_b64 s[96:97], s[10:11], s[20:21]
s_cselect_b64 {S2(sWoP)}, s[12:13], s[22:23]
s_mov_b64 {S2(sOutP)}, s[24:25]
s_mov_b64 {S2(sDb)}, s[26:27]
s_add_u32 s{sX}, s90, s82
s_addc_u32 s{sX+1}, s91, 0
s_mov_b32 s{sX+2}, 307200
s_mov_b32 s{sX+3}, 0x20000
s_add_u32 s{sDA}, s96, s84
s_addc_u32 s{sDA+1}, s97, 0
s_sub_u32 s{sDA+2}, 7864320, s84
s_mov_b32 s{sDA+3}, 0x20000
s_mov_b32 s{sNs}, {WS}
""")
    P += lin(dma_w(0)) + dma_x(0)
    P += Is(f"""
s_add_u32 s{sK}, s92, s83
s_addc_u32 s{sK+1}, s93, 0
s_add_u32 s{sV}, s94, s83
s_addc_u32 s{sV+1}, s95, 0
s_mov_b32 s{sDb+2}, 256
s_mov_b32 s{sDb+3}, 0x20000
s_bfe_u32 s{sCo}, s{sWg}, 0x20001
s_lshl_b32 s{sCo}, s{sCo}, 6
s_mov_b32 s{sPfo}, s{sXoff}
s_cmp_eq_u32 s{sSig}, 0
s_cselect_b32 s{sOn}, {5*122880+15*1024}, 0
s_add_u32 s{sNb}, s{sDA}, 6144
s_addc_u32 s{sNb+1}, s{sDA+1}, 0
s_sub_u32 s{sNnum}, s{sDA+2}, 6144
s_mov_b32 s{sNd}, {196608-3072}
s_mov_b64 {S2(sMask)}, 0
s_mov_b32 s{sXnum}, 307200
s_mul_i32 s86, s88, 61440
s_add_u32 s{sN2}, s{sWoP}, s86
s_addc_u32 s{sN2+1}, s{sWoP+1}, 0
s_mul_i32 s86, s88, {4*12288}
s_add_u32 s86, s86, {128*12288+6144}
s_add_u32 s{sP1}, s96, s86
s_addc_u32 s{sP1+1}, s97, 0
s_mov_b32 s{sP1+2}, {(3*12288+6144) * OPT['wpf']}
s_mov_b32 s{sP1+3}, 0x20000
s_mov_b32 s{sT3}, 4096
s_add_u32 s{sO}, s{sWsP}, s85
s_addc_u32 s{sO+1}, s{sWsP+1}, 0
s_sub_u32 s{sO}, s{sO}, {OSTRIDE}
s_subb_u32 s{sO+1}, s{sO+1}, 0
s_mov_b32 s{sO+2}, 0
s_mov_b32 s{sO+3}, 0x20000
s_lshl_b32 s86, s{sWg}, 7
s_add_u32 s86, s86, {FLG}
s_add_u32 s{sDB}, s{sWsP}, s86
s_addc_u32 s{sDB+1}, s{sWsP+1}, 0
s_cmp_eq_u32 s{sMode}, 0
s_cselect_b32 s{sDB+2}, 128, 0
s_mov_b32 s{sDB+3}, 0x20000
s_mov_b32 s{sItem}, 0
s_mov_b32 s{sFlag}, 0
s_mov_b32 s{sCp}, 0x1000
s_and_b32 s{sKvn}, s{sWg}, 1
s_xor_b32 s{sKvn}, s{sKvn}, 1
s_mov_b64 {S2(sXn)}, {S2(sX)}
s_lshr_b32 s80, s{sWg}, 3
s_mul_i32 s84, s80, 52
s_lshr_b32 s84, s84, 8
s_mul_i32 s85, s84, 5
s_sub_u32 s85, s80, s85
s_and_b32 s81, s{sWg}, 1
s_and_b32 s82, s{sWave}, 1
s_lshr_b32 s83, s{sWave}, 1
s_xor_b32 s86, s81, s82
s_xor_b32 s86, s86, 1
s_lshl_b32 s86, s86, 7
s_lshl_b32 s87, s85, 8
s_add_u32 s86, s86, s87
s_mul_i32 s87, s83, {64*1280}
s_add_u32 s86, s86, s87
s_cmp_lt_u32 s80, 30
s_cselect_b32 s86, s86, 0
s_mul_i32 s87, s81, {1536*1280}
s_add_u32 s86, s86, s87
s_add_u32 s{sWoP}, s{sWoP}, s86
s_addc_u32 s{sWoP+1}, s{sWoP+1}, 0
s_sub_u32 s{sK2n}, 7864320, s86
s_bfe_u32 s86, s{sWg}, 0x10001
s_mul_i32 s86, s86, 60
s_mul_i32 s87, s84, 10
s_add_u32 s86, s86, s87
s_mul_i32 s87, s82, 5
s_add_u32 s86, s86, s87
s_bfe_u32 s87, s{sWg}, 0x10002
s_lshl_b32 s88, s87, 1
s_add_u32 s88, s88, s81
s_mul_i32 s88, s88, {96*120}
s_add_u32 s88, s88, s86
s_lshl_b32 s88, s88, 10
s_add_u32 s{sK2O}, s{sWsP}, s88
s_addc_u32 s{sK2O+1}, s{sWsP+1}, 0
s_mul_i32 s88, s86, {16*2560}
s_mul_i32 s87, s87, 1280
s_add_u32 s88, s88, s87
s_lshl_b32 s87, s85, 8
s_add_u32 s88, s88, s87
s_lshl_b32 s87, s81, 1
s_add_u32 s87, s87, s83
s_lshl_b32 s87, s87, 6
s_add_u32 s88, s88, s87
s_add_u32 s{sOutP}, s{sOutP}, s88
s_addc_u32 s{sOutP+1}, s{sOutP+1}, 0
s_mov_b32 s{sC}, {cbits:#x}
s_mov_b32 s{sC+1}, {cbits:#x}
s_mov_b32 s{sThr}, 0x4e800000
""") + [I(f"s_mov_b32 s{sOs[s]}, {s*122880}") for s in range(6)]
    kb0, vb0 = vK[0][0], vV[0][0]
    P += Is(f"""
v_and_b32 v{t0}, 15, v0
v_lshrrev_b32 v{t1}, 4, v0
v_and_b32 v{t2}, 6, v{t0}
v_xor_b32 v{t3}, v{t2}, v{t1}
v_lshlrev_b32 v{t3}, 4, v{t3}
v_lshl_add_u32 v{vXr[0][0]}, v{t0}, 7, v{t3}
v_add_u32 v{vXr[0][0]}, s{sXoff}, v{vXr[0][0]}
v_xor_b32 v{vXr[0][1]}, 64, v{vXr[0][0]}
v_add_u32 v{vXr[1][0]}, {X1}, v{vXr[0][0]}
v_add_u32 v{vXr[1][1]}, {X1}, v{vXr[0][1]}
v_lshrrev_b32 v{t2}, 3, v{t0}
v_mul_u32_u24 v{kb0}, 3072, v{t2}
v_and_b32 v{t2}, 7, v{t0}
v_lshl_add_u32 v{kb0}, v{t2}, 7, v{kb0}
v_add_u32 v{kb0}, v{kb0}, v{t3}
v_xor_b32 v{vK[0][1]}, 64, v{kb0}
v_add_u32 v{vK[1][0]}, {KW[1]}, v{kb0}
v_add_u32 v{vK[1][1]}, {KW[1]}, v{vK[0][1]}
v_lshrrev_b32 v{t2}, 5, v0
v_mul_u32_u24 v{vb0}, 3072, v{t2}
v_bfe_u32 v{t2}, v0, 2, 3
v_lshl_add_u32 v{vb0}, v{t2}, 7, v{vb0}
v_and_b32 v{t2}, 6, v{t2}
v_bfe_u32 v{t3}, v0, 1, 1
v_xor_b32 v{t2}, v{t2}, v{t3}
v_lshl_add_u32 v{vb0}, v{t2}, 4, v{vb0}
v_and_b32 v{t2}, 1, v0
v_lshl_add_u32 v{vb0}, v{t2}, 3, v{vb0}
v_add_u32 v{vb0}, {VW[0]}, v{vb0}
v_xor_b32 v{vV[0][1]}, 32, v{vb0}
v_xor_b32 v{vV[0][2]}, 64, v{vb0}
v_xor_b32 v{vV[0][3]}, 96, v{vb0}
""") + [I(f"v_add_u32 v{vV[1][i]}, {VW[1]-VW[0]}, v{vV[0][i]}") for i in range(4)] + Is(f"""
s_lshl_b32 s86, s{sWave}, 12
v_lshlrev_b32 v{vO}, 4, v0
v_add_u32 v{vO}, s86, v{vO}
s_cmp_eq_u32 s{sWave}, 3
s_cselect_b32 s86, 0x80000000, 0
v_add_u32 v{vO3}, s86, v{vO}
""")
    P += [I(f"v_mov_b32 v{vL[q]}, 0") for q in range(4)]
    P += lin(dma_w(1)) + dma_x(1) + lin(hd(dma_w(2)))
    P += [I(f"buffer_store_dwordx4 {V4(vL[0])}, v{vO}, {S4(sDB)}, 0 offen sc1", dst={"OST"})]
    P += [BAR({f"L{slot(0)}"})]
    P += reads_v(0, slot(0))[:NPRE_V]
    XALL = lambda n: {f"X{n&1}_{q}" for q in range(4)}
    B["pro"] = P + [WAIT(vneed=XALL(0))] + reads_x(0) + Is("s_branch K1_ITEM")
    B["item"] = Is("K1_ITEM:") + stamp(0) + [WAIT(lzero=True)]
    NE0 = OPT["ne0"]
    EW = {0: list(range(NE0, 8))}
    rest = list(range(8, 24)); per = [3, 3, 2, 2, 2, 2, 2]
    for n in range(1, 8): EW[n] = rest[:per[n - 1]]; rest = rest[per[n - 1]:]
    NC9 = OPT["nc9"]
    cunits = [(s, qt) for s in range(6) for qt in range(4)]
    for n in range(10):
        own = reads_v(n, slot(n % 4))[NPRE_V:]
        early = []; extra = []
        if n < 9: nxt = reads_v(n + 1, slot((n + 1) % 4))[:NPRE_V]; nt_ = "v"; pub = slot((n + 1) % 4)
        else: nxt = reads_k(10, X0)[:NPRE_K]; nt_ = "k"; pub = X0
        def wtile(n): return {7: dma_k(0, X0), 8: dma_k(1, slot(2)), 9: dma_v(0, slot(3))}.get(n) or dma_w(n + 3)
        early += tl(wtile(n - 1))
        if n == 7:
            early += Is(f"""s_mov_b64 {S2(sDA)}, {S2(sK)}
s_mov_b32 s{sDA+2}, 393216
s_mov_b64 {S2(sDB)}, {S2(sV)}
s_mov_b32 s{sDB+2}, 393216
v_mov_b32 v{vD[0]}, v{vDkv}
v_mov_b32 v{vD[1]}, v{vDkv}""")
        if n < 8: early += dma_x(n + 2)
        if (OPT['cpw'] >> n) & 1: early += codepf()
        es = []; sts = []
        for u in EW.get(n, []):
            e = epi_unit(u, False)
            if OPT["hold"]:
                x = e.pop(); x.after = [e[-1], early[-1]]; sts.append(x)
            es += e
        if es: extra.append(spread(es, 0, 56 if n == 0 else 90 if OPT["hold"] else 95, NOV))
        if sts: extra.append(spread(sts, 72, 96, [BG]))
        if n < 9:
            xr = reads_x(n + 1); st = []
            x0 = 58 if n == 0 else 46
            for q in range(4):
                if q % 2 == 0: st.append(WAIT(vneed={f"X{(n+1)&1}_{q}", f"X{(n+1)&1}_{q+1}"}))
                st += xr[2 * q:2 * q + 2]
            spread(st, x0, BG - 5)
            if n == 0 and es:
                for it in xr: it.after = [es[-1]]
            extra.append(st)
        if n == 9:
            pub = {f"L{X0}", "OST"}
        if OPT["kvn"] and n < OPT["kvph"]:
            seq = [(k, i) for i in range(2, 15) for (k, i) in ((0, i + 1), (1, i))] + [(1, 15)]
            tot = OPT["kvn"] * OPT["kvph"]; n1 = min(tot, len(seq)); n2 = tot - n1
            lst = [(1,) + seq[j * len(seq) // n1] for j in range(n1)] + [(0,) + seq[j * len(seq) // n2] for j in range(n2)]
            lst.sort(key=lambda e: seq.index(e[1:]))
            st = []
            if n == 0: st += Is(f"""s_mov_b64 s[84:85], {S2(sK)}
s_mov_b32 s86, {9*393216}
s_mov_b32 s87, 0x20000
s_mov_b64 {S2(sDB)}, {S2(sV)}
s_mov_b32 s{sDB+2}, {9*393216}""")
            body = "\n".join(f"s_mov_b32 s88, {i*TILE + o*8*393216}\nbuffer_load_dword v49, v{vDkv}, {S4(sDB if k else 84)}, s88 offen offset:3328" for (o, k, i) in lst[n * OPT["kvn"]:(n + 1) * OPT["kvn"]])
            st.append(Ins(f"s_cmp_eq_u32 s{sKvn}, 0\ns_cbranch_scc1 K1_KV{n}\n{body}\nK1_KV{n}:", kind="bar"))
            early += st
        if n == 9 and NC9:
            cs = []; sw = []
            for (s, qt) in cunits[:NC9]:
                a, b = cvt_unit(s, qt, False)
                a[0].lo = 16 * s + 8 + 2 * qt + 1 + 8
                for x in b: x.after = [a[-1]]; x.dly = 1
                cs += a; sw += b
            spread(cs, 17, 92, NOV)
            for x in sw: x.target = x.after[0].target + 2
            extra += [cs, sw]
        d = hd(wtile(n))
        B[f"w{n}"] = (stamp(8 + n) if OPT["stamps"] == 7 else []) + phase(f"w{n}", n, "v", mf_w(n), own, nxt, nt_, pub, early, d, extra, early_hi=56 if n == 8 else 70)
    C = stamp(1); pend = []
    dm = lin(tl(dma_v(0, slot(3))))
    for k, (s, qt) in enumerate(cunits[NC9:]):
        a, b = cvt_unit(s, qt, True)
        if k % 4 == 1:
            while dm:
                x = dm.pop(0); C.append(x)
                if x.kind == "vmem": break
        C += a[:4] + pend + a[4:]; pend = b
    C += dm + Is(f"""s_mov_b32 s87, 0xff800000
s_cmp_eq_u32 s{sWave}, 3
s_cselect_b32 s86, 0x71000000, s87
v_mov_b32 v{vMi[0]}, s87
v_mov_b32 v{vMi[1]}, s87
v_mov_b32 v{vMi[2]}, s87
v_mov_b32 v{vMi[3]}, s86""")
    C += Is(f"s_cmp_lg_u32 s{sMode}, 0\ns_nop 0") + pend + Is("s_cbranch_scc1 K1_MAXPASS\nK1_MAXRET:\ns_nop 0") + stamp(2)
    B["cvt"] = C
    M = []; last = []
    for qt in range(4):
        x = XY(0, 0, qt); m = vT + 2 * qt; t = m + 1
        a = I(f"v_max3_f32 v{m}, v{x}, v{x+1}, v{x+2}", lo=6 * qt + 13)
        b = I(f"v_max3_f32 v{m}, v{m}, v{x+3}, v{vMi[qt]}")
        c_ = I(f"v_mov_b32 v{t}, v{m}")
        d = I(f"v_permlane16_swap_b32 v{m}, v{t}", after=[c_], dly=1)
        e = I(f"v_max_f32 v{m}, v{m}, v{t}")
        f = I(f"v_mov_b32 v{t}, v{m}")
        g = I(f"v_permlane32_swap_b32 v{m}, v{t}", after=[f], dly=1)
        h = I(f"v_max_f32 v{m}, v{m}, v{t}")
        ns = [I(f"v_sub_f32 v{negm(qt)+i}, 0, v{m}", hi=48 + 6 * qt - 3) for i in range(4)]
        st = [a, b, c_, d, e, f, g, h] + ns
        for j, it in enumerate(st): it.target = 6 * qt + 13 + j * 0.5
        M.append(st); last.append(ns[0])
    NA0 = OPT['na0']
    sm = softmax([(0, 0, qt, 0, 24 + 6 * qt + 13, 95, True) for qt in range(NA0)], 28, 93, sub=last)
    early = Is(f"""s_mov_b32 s{sA}, {3*TILE}
s_mov_b32 s{sB}, {2*TILE}
s_mov_b32 s{sI}, 0
s_add_u32 s{sO}, s{sO}, {OSTRIDE}
s_addc_u32 s{sO+1}, s{sO+1}, 0
s_mov_b32 s{sO+2}, s{sOn}
s_mov_b32 s{sOn}, {5*122880+15*1024}""") + dma_k(2, slot(0))
    hand = Is(f"""v_mov_b32 v30, 1
s_and_b32 s80, s{sWg}, 1
s_lshl_b32 s80, s80, 2
s_add_u32 s80, s80, s{sCo}
s_cmp_eq_u32 s{sAll}, 0
s_cselect_b32 s81, s{sItem}, 0
s_cmp_lt_u32 s{sSig}, s81
s_cselect_b32 s80, s80, 0x1000
s_cselect_b32 s{sSig}, 1, s{sSig}
s_cmp_eq_u32 s{sWave}, 0
s_cselect_b32 s80, s80, 0x1000""") + [atomic(30, 80)]
    B["qk0"] = phase("qk0", 10, "k", mf_qk(10, 0, True), reads_k(10, X0)[NPRE_K:], reads_k(11, slot(2))[:NPRE_K], "k", slot(2), early,
                     hd(dma_v(1, slot(1))), M + sm, early_hi=70) + stamp(3)
    def half(nm, par, mode, xq=0, xp=0):
        ks, vs, kn, vp = slot(2 * par), slot(2 * par + 1), slot(2 - 2 * par), slot(3 - 2 * par)
        kd = lambda: dma(sDA, sA, ks, OPT["nt_kv"])
        vd = lambda b: dma(sDB, sB, b, OPT["nt_kv"])
        last = mode == "last"; first = mode == "first"
        if first: early = tl(dma_v(1, slot(1)))
        elif last and par: early = tl(dma_n(0)) + dma_x(0)
        else: early = (codepf() if par == 0 and not last else []) + tl(vd(vp)) + Is(f"s_add_u32 s{sB}, s{sB}, {TILE}")
        if last and par == 0:
            early += Is(f"""s_mov_b64 {S2(sX)}, {S2(sXn)}
s_mov_b32 s{sX+2}, s{sXnum}
s_cmp_eq_u32 s{sItem}, 1
s_cselect_b32 s{sXk}, {(-128*1280) & 0xffffffff}, s{sXk}
s_cselect_b32 s{sXst}, {128*1280}, s{sXst}
s_movk_i32 s80, 0x70
v_lshrrev_b32 v30, 3, v0
v_mul_u32_u24 v30, 1280, v30
v_and_or_b32 v30, v{vDw}, s80, v30
v_cndmask_b32 v{vDx}, v{vDx}, v30, {S2(sMask)}""") + codepf()
        mp = mf_pv(12, 1 - par, first) + mf_l(1 - par, first) + (mf_l(1) if last and par else [])
        NP_ = len(mp)
        gq = g_old(1 - par, 1, range(4), 96, True); gp = g_old(par, 0, range(4), NP_, False); hq = BG - 2
        if first: gq = [g[:6] + (True,) for g in g_old(0, 0, range(NA0, 4), 96, True)] + gq; hq = 88
        if last and par == 0:
            gq = gq + g_new(0, [0]); hq = 93
            gp = g_old(0, 0, [1, 2, 3], NP_, False) + g_old(0, 1, [0, 1], NP_, False)
        if last and par:
            gq = g_old(0, 1, [2, 3], 96, True) + g_new(1, [0, 1, 2]); hq = 93
            gp = [(1, 0, 3, 0, 0, 101, False)] + [(1, 1, qt, 4, 6, 105 + qt, False) for qt in range(4)]
        def burst(gs):
            if not gs: return []
            _, E, D = softmax(gs, 0, 90); out = []
            for j in range(0, len(E), 2):
                out += E[j:j + 2] + (D[j // 2 - 1:j // 2] if j else [])
            return out + Is("s_nop 0") + D[-1:]
        bq = burst(gq[:xq]); gq = gq[xq:]; bp = burst(gp[:xp]); gp = gp[xp:]
        qtile = (lambda: dma_n(1) if par else dma_v(15, X1)) if last else kd
        q = bq + phase("qk" + nm, 11, "k", mf_qk(11, par), reads_k(11, ks)[NPRE_K:], reads_v(12, vs)[:NPRE_V], "v", vs, early, hd(qtile()),
                  softmax(gq, 0, hq), early_hi=72)
        post = []
        if par and mode == "loop": post += Is(f"s_add_u32 s{sI}, s{sI}, 1\ns_cmp_lg_u32 s{sI}, 6")
        early = tl(qtile()) + ([] if last else Is(f"s_add_u32 s{sA}, s{sA}, {TILE}"))
        sel = []
        if first:
            early = hand + early
            sel = Is("v_and_b32 v47, 3, v0\nv_mov_b32 v46, 0x3f803f80")
            for qt in range(4):
                c_ = I(f"v_cmp_eq_u32 s[86:87], {qt}, v47")
                sel += [c_, I(f"v_cndmask_b32 v{32+4*qt}, 0, v46, s[86:87]", after=[c_], dly=1)] + [I(f"v_mov_b32 v{32+4*qt+j}, v{32+4*qt}") for j in range(1, 4)]
            sel = [spread(sel, 2, 92, NOV)]
        if last and par == 0:
            early += Is(f"""s_mov_b64 {S2(sDA)}, {S2(sNb)}
s_mov_b32 s{sDA+2}, s{sNnum}
s_cmp_eq_u32 s{sItem}, 1
s_cselect_b32 s{sWk}, {(-TILE) & 0xffffffff}, s{sWk}
s_cselect_b32 s{sNs}, {TILE}, s{sNs}
v_cndmask_b32 v{vD[0]}, v{vDw}, v{vDkv}, {S2(sMask)}
v_add_u32 v{vD[1]}, s{sNd}, v{vD[0]}""")
        d = hd(dma_n(2 * par) if last else vd(vs))
        if last and par:
            nxt, nty, pub = reads_v(41, X1)[:NPRE_V], "v", X1
            x = pf(); early += x[:4]; d += x[4:] + [I(f"buffer_load_dwordx2 v[{vPoll}:{vPoll+1}], off, {S4(sDb)}, s{sCp} sc1", dst=regs("v", vPoll, 4))]
        else: nxt, nty, pub = reads_k(11, kn)[:NPRE_K], "k", kn
        p = bp + phase("pv" + nm, 12, "v", mp, reads_v(12, vs)[NPRE_V:], nxt, nty, pub, early, d,
                  softmax(gp, 0, NP_ - (7 if last and par else 3)) + sel, post=post, early_hi=72)
        pad = lambda: Is("\n".join(["s_nop 3"] * OPT["padn"]))
        if OPT["padi"]: return q + Is(f"s_cmp_lg_u32 s{sItem}, {OPT['padi']-1}\ns_cbranch_scc1 K1_KVP{nm}") + pad() + pad() + Is(f"K1_KVP{nm}:") + p
        return q + pad() + p + pad()
    two = OPT["xq"] or OPT["xp"]
    B["peel"] = half("1", 1, "first") + (Is(f"s_cmp_eq_u32 s{sItem}, 0\ns_cbranch_scc1 K1_LA") if two else [])
    st = lambda: stamp(-1) if OPT["stamps"] in (4, 6) else []
    B["loop"] = Is(".p2align 6\nK1_L:") + st() + half("e", 0, "loop") + half("o", 1, "loop") + Is("s_cbranch_scc1 K1_L\nK1_LX:")
    B["loopa"] = Is(".p2align 6\nK1_LA:") + st() + half("ea", 0, "loop", OPT["xq"], OPT["xp"]) + half("oa", 1, "loop", OPT["xq"], OPT["xp"]) + Is("s_cbranch_scc1 K1_LA") if two else []
    B["loopx"] = Is("s_branch K1_LX") if two else []
    B["last"] = (stamp(-1) if OPT["stamps"] in (4, 6) else []) + half("14", 0, "last") + half("15", 1, "last")
    B["tail"] = stamp(4)
    B15 = OPT["bg15"]
    R = [I(f"v_rcp_f32 v{RCP+2*q}, v{vL[q]}", lo=7) for q in range(4)] + [I(f"v_cmp_ngt_f32 {S2(80+2*q)}, s{sThr}, v{vL[q]}") for q in range(4)]
    spread(R, 7, 17)
    for it in R: it.hi = 95
    es = []; sts = []; dx1 = dma_x(1)
    for u in range(NE0):
        e = epi_unit(u, False); e[0].lo = 16 * (u // 4) + 2 * (u % 4) + 1 + 8; e[10].lo = e[0].lo + 8
        if OPT["hold"] and u >= NE0 - 3:
            x = e.pop(); x.after = [e[-1], dx1[-1]]; x.target = 92; sts.append(x)
        es += e
    spread(es, 15, 94, range(B15, B15 + 9))
    fl = Is(f"""s_or_b64 s[80:81], s[80:81], s[82:83]
s_or_b64 s[84:85], s[84:85], s[86:87]
s_or_b64 s[80:81], s[80:81], s[84:85]
s_or_b32 s80, s80, s81
s_or_b32 s{sFlag}, s{sFlag}, s80
s_lshl_b32 s80, s{sWave}, 2
s_add_u32 s80, s80, {FLO}
v_mov_b32 v160, s80
v_mov_b32 v161, s{sFlag}
v_mov_b32 v162, {FLO}""") + [Ins("ds_write_b32 v160, v161")]
    fl[-1].cost = 8
    fl[0].after = [x for x in R if x.text.startswith("v_cmp")][-1:]; fl[0].dly = 2
    early = fl
    f1 = I(f"ds_read_b128 {V4(164)}, v162", dst=regs("v", 164, 4), lo=B15 + 1, target=B15 + 3)
    f2 = WAIT(lneed=regs("v", 164, 4), lo=88, target=88)
    f3 = Is("v_or_b32 v164, v164, v165\nv_or3_b32 v164, v164, v166, v167")
    f4 = I(f"v_readfirstlane_b32 s{sAll}, v164", after=[f3[1]])
    for x in f3 + [f4]: x.target = 89
    B["pv15"] = phase("pv15", 41, "v", mf_pv(41, 1), reads_v(41, X1)[NPRE_V:], reads_v(0, slot(0))[:NPRE_V], "v", {f"L{slot(0)}", f"L{slot(2)}"} | XALL(0),
                      early, dx1, [R + es, [f1, f2] + f3 + [f4], sts], bg=B15, dend=90 if OPT['hold'] else None) + stamp(5)
    B["br"] = stamp(6) + Is(f"s_cmp_lg_u32 s{sMode}, 0\ns_cselect_b32 s{sAll}, 0, s{sAll}\ns_cmp_eq_u32 s{sItem}, 0\ns_cbranch_scc1 K1_MID")
    B["mid"] = Is("K1_MID:") + reads_x(0) + Is(f"""s_mov_b32 s{sItem}, 1
s_mov_b32 s{sCp}, s{sCo}
s_mov_b32 s{sKvn}, 0
s_mov_b64 {S2(sXn)}, {S2(sWoP)}
s_mov_b32 s{sXnum}, s{sK2n}
s_mov_b64 {S2(sNb)}, {S2(sN2)}
s_mov_b32 s{sNnum}, {2*TILE}
s_mov_b32 s{sNd}, 0
s_mov_b64 {S2(sMask)}, -1
s_add_u32 s{sP1}, s{sN2}, {2*TILE}
s_addc_u32 s{sP1+1}, s{sN2+1}, 0
s_mov_b32 s{sP1+2}, 12288
s_lshl_b32 s{sPfo}, s{sWave}, 11
s_add_u32 s{sK}, s{sK}, {16*393216}
s_addc_u32 s{sK+1}, s{sK+1}, 0
s_add_u32 s{sV}, s{sV}, {16*393216}
s_addc_u32 s{sV+1}, s{sV+1}, 0""")
    k2trace, k2idle = oproj(B, NE0)
    X = Is(f"""K1_MAXPASS:
v_and_b32 v{vT}, 15, v0
v_lshrrev_b32 v{vT+1}, 4, v0
v_mul_u32_u24 v{vT}, 384, v{vT}
v_lshl_add_u32 v{vT}, v{vT+1}, 4, v{vT}
s_mov_b32 s{sT}, 0""") + [I(f"v_mov_b32 v{vMi[q]}, 0xff800000") for q in range(4)] + Is("K1_MAXL:")
    for s in range(6): X.append(I(f"buffer_load_dwordx4 {V4(SP+4*s)}, v{vT}, {S4(sDA)}, s{sT} offen offset:{s*64}"))
    X.append(I("s_waitcnt vmcnt(0)"))
    for qt in range(4):
        for s in range(6): X.append(mfma(V4(SP + 32 + 4 * qt), V4(SP + 4 * s), V4(Qf(qt, s)), V4(SP + 32 + 4 * qt) if s else "0"))
    X.append(I("s_nop 7"))
    for qt in range(4):
        d = SP + 32 + 4 * qt
        X += Is(f"v_max3_f32 v{vMi[qt]}, v{vMi[qt]}, v{d}, v{d+1}\nv_max3_f32 v{vMi[qt]}, v{vMi[qt]}, v{d+2}, v{d+3}")
    X += Is(f"s_add_u32 s{sT}, s{sT}, 6144\ns_cmp_lt_u32 s{sT}, 393216\ns_cbranch_scc1 K1_MAXL\ns_branch K1_MAXRET")
    B["maxpass"] = X
    item = ["item"] + [f"w{n}" for n in range(10)] + ["cvt", "qk0", "peel"] + ["loop"] * 6 + ["last", "tail", "pv15", "br"]
    item0 = [("loopa" if (b == "loop" and two) else b) for b in item]
    trace = ["entry", "pro"] + item0 + ["mid"] + item + k2trace
    layout = ["entry", "pro", "mid", "item"] + [f"w{n}" for n in range(10)] + ["cvt", "qk0", "peel", "loop", "last", "tail", "pv15", "br", "k2pro", "k2head", "k2loop", "k2tail", "k2epi", "k2fin", "loopa", "loopx", "k2side", "k2idle", "maxpass"]
    resolve_waits(B, trace)
    for it in B["loop"] + B["peel"]:
        if it.text == "WAITBAR": it.vcnt = min(it.vcnt, OPT["vmx"])
    txt = {k: "\n".join(emit(v)).split("\n") for k, v in B.items()}
    errs = verify([l for b in trace for l in txt[b]])
    tr2 = ["entry", "pro"] + item[:12] + ["maxpass", "maxpass"] + item[12:]
    errs += verify([l for b in tr2 for l in txt[b]])
    errs += verify([l for b in ["entry", "pro"] + item + ["mid"] + item + k2idle for l in txt[b]])
    for e in errs: sys.stderr.write("K1 HAZARD " + e + "\n")
    return [l for b in layout for l in txt[b]], errs

def oproj(B, NE0):
    vR = [[1, 2, 3, 4], [5, 6, 7, 8]]; vOf = 9; vSt = 10; vW = 11; vRd = 12; t0, t1, t2, t3 = 13, 14, 15, 16; vP2 = 17; vLp = 18; vOne = 19
    KS = [X0, X1, RING]; EX = 65536
    QL = [("v", 224 + 4 * i) for i in range(8)] + [("a", Oacc(2 * (u // 4) + h, u % 4)) for u in range(11) for h in range(2)]
    def Of(d, kb, qt): return QL[10 * (d % 3) + 5 * kb + qt]
    R4 = lambda r: f"{r[0]}[{r[1]}:{r[1]+3}]"
    Oset = lambda d, kbs=(0, 1): set().union(*[regs(*Of(d, kb, qt), 4) for kb in kbs for qt in range(5)])
    def acc(t, qt): return 64 + 4 * (t * 5 + qt)
    def wq(f): return 192 + 4 * f
    sW_ = sX; sOo = 8; sOut = 12; sXs = 20; sXr = 24; sFl = 28
    sWt = 32; sOk = [33, 34]; sCnt = 39; sTt = 46; sJ = 40; sC1 = 51; sC1w = 50; sWb = 54
    def wdma(d, jump=False):
        out = []
        for j in range(8):
            if j % 4 == 0: out.append(I(f"s_add_u32 m0, s{sXoff}, {KS[d % 3] + j*1024}"))
            out += [I(f"s_add_u32 s{sTt}, s{sWt}, {j*10240 - (j % 4)*1024}"),
                    I(f"buffer_load_dwordx4 v{vDx}, {S4(sW_)}, s{sTt} offen offset:{(j % 4)*1024} lds", dst={f"X{d%3}_{j>>1}"})]
        out.append(I(f"s_add_u32 s{sWt}, s{sWt}, " + ("0" if OPT["k2fix"] & 1 else f"s{sJ}" if jump else f"{128*1280}")))
        return out
    Wt = lambda d: {f"X{d%3}_{q}" for q in range(4)}
    def oload(d, kb):
        so = sOk[kb]
        out = [I(f"buffer_load_dwordx4 {R4(Of(d, kb, qt))}, v{vOf}, {S4(sOo)}, s{so} offen offset:{qt*1024} sc1", dst=regs(*Of(d, kb, qt), 4)) for qt in range(4)]
        out.append(I(f"s_add_u32 s{sTt}, s{so}, 4096"))
        out.append(I(f"buffer_load_dwordx4 {R4(Of(d, kb, 4))}, v{vOf}, {S4(sOo)}, s{sTt} offen sc1", dst=regs(*Of(d, kb, 4), 4)))
        out.append(I(f"s_add_u32 s{so}, s{so}, {0 if OPT['k2fix'] & 2 else 4*122880}"))
        if not OPT["osc"]:
            for x in out: x.text = x.text.replace(" sc1", "")
        return out
    def wreads(d):
        out = []; w = 1 if KS[d % 3] == X1 else 0
        for t in range(8):
            for kb in range(2):
                r = wq(2 * t + kb)
                for hf in range(2):
                    it = I(f"ds_read_b64_tr_b16 a[{r+2*hf}:{r+2*hf+1}], v{vR[w][t & 3]} offset:{KS[d % 3] - w*X1 + (t >> 2)*8192 + (4*kb+2*hf)*1024}", dst=regs("a", r + 2 * hf, 2)); it.f = 2 * t + kb
                    out.append(it)
        return out
    NP = 8; G = 60
    P = [WAIT(vneed=regs("v", vPoll, 4))] + Is(f"""
v_min_u32 v{t0}, v{vPoll}, v{vPoll+1}
s_cmp_lg_u32 s{sAll}, 0
v_readfirstlane_b32 s89, v{t0}
s_cbranch_scc1 K1_REDO
s_and_b32 s{sC1}, s{sWg}, 7
s_lshl_b32 s{sC1}, s{sC1}, 7
s_add_u32 s{sC1}, s{sC1}, 64
s_cmp_eq_u32 s{sWave}, 0
s_cselect_b32 s{sC1w}, s{sC1}, 0x10000
s_add_u32 s{sFl}, s{sWsP}, {FLG}
s_addc_u32 s{sFl+1}, s{sWsP+1}, 0
s_mov_b32 s{sFl+2}, {256*128}
s_mov_b32 s{sFl+3}, 0x20000
v_mov_b32 v{vOne}, 1
v_lshlrev_b32 v{vOf}, 4, v0
v_mov_b32 v{RCP+1}, v{RCP}
v_mov_b32 v{RCP+3}, v{RCP+2}
v_mov_b32 v{RCP+5}, v{RCP+4}
v_mov_b32 v{RCP+7}, v{RCP+6}
s_mov_b64 {S2(sOo)}, {S2(sK2O)}
s_mov_b32 s{sOo+2}, {95*122880+5*1024}
s_mov_b32 s{sOo+3}, 0x20000
s_lshr_b32 s{sWb}, s{sWave}, 1
s_mul_i32 s{sOk[0]}, s{sWb}, {2*122880}
s_add_u32 s{sOk[1]}, s{sOk[0]}, 122880
s_cmp_lt_u32 s89, 32
s_cbranch_scc1 K2_SPIN0
K2_RET0:
s_cmp_ge_u32 s{sWg}, 240
s_cbranch_scc1 K2_IDLE""")
    B["k2pro"] = P
    r0 = vR[0][0]
    assert NE0 >= 6
    ld = oload(0, 0) + oload(0, 1) + oload(1, 0) + oload(1, 1)
    H = Is(f"""
v_lshrrev_b32 v{t2}, 5, v0
v_lshlrev_b32 v{r0}, 10, v{t2}
v_bfe_u32 v{t2}, v0, 2, 3
v_lshl_add_u32 v{r0}, v{t2}, 7, v{r0}
v_and_b32 v{t2}, 6, v{t2}
v_bfe_u32 v{t3}, v0, 1, 1
v_xor_b32 v{t2}, v{t2}, v{t3}
v_lshl_add_u32 v{r0}, v{t2}, 4, v{r0}
v_and_b32 v{t2}, 1, v0
v_lshl_add_u32 v{r0}, v{t2}, 3, v{r0}
s_xor_b32 s88, s{sWb}, 1
s_lshl_b32 s88, s88, 6
v_xor_b32 v{r0}, s88, v{r0}
s_lshl_b32 s88, s{sWb}, 14
v_add_u32 v{r0}, s88, v{r0}
v_xor_b32 v{vR[0][1]}, 32, v{r0}
v_xor_b32 v{vR[0][2]}, 64, v{r0}
v_xor_b32 v{vR[0][3]}, 96, v{r0}
s_mov_b32 s{sWt}, {2*128*1280}
s_mov_b32 s{sCnt}, 0""") + [I(f"v_add_u32 v{vR[1][i]}, {X1}, v{vR[0][i]}") for i in range(4)] + wreads(0)[:NP]
    late = Is(f"""
s_mov_b64 {S2(sOut)}, {S2(sOutP)}
s_mov_b32 s{sOut+2}, {79*2560+64}
s_mov_b32 s{sOut+3}, 0x20000
s_lshl_b32 s88, s{sWg}, 2
s_add_u32 s88, s88, s{sWave}
s_xor_b32 s89, s88, 4
s_mul_i32 s88, s88, 10240
s_mul_i32 s89, s89, 10240
s_add_u32 s88, s88, {XCH}
s_add_u32 s89, s89, {XCH}
s_add_u32 s{sXs}, s{sWsP}, s88
s_addc_u32 s{sXs+1}, s{sWsP+1}, 0
s_mov_b32 s{sXs+2}, 10240
s_mov_b32 s{sXs+3}, 0x20000
s_add_u32 s{sXr}, s{sWsP}, s89
s_addc_u32 s{sXr+1}, s{sWsP+1}, 0
s_mov_b32 s{sXr+2}, 10240
s_mov_b32 s{sXr+3}, 0x20000
s_xor_b32 s88, s{sWave}, 2
s_mul_i32 s88, s88, 20480
s_add_u32 s88, s88, {EX}
v_add_u32 v{vW}, s88, v{vOf}
s_mul_i32 s88, s{sWave}, 20480
s_add_u32 s88, s88, {EX}
v_add_u32 v{vRd}, s88, v{vOf}
v_and_b32 v{t0}, 15, v0
v_lshrrev_b32 v{t1}, 4, v0
v_lshl_add_u32 v{t0}, v{t0}, 2, v{t1}
v_lshlrev_b32 v{t0}, 4, v{t0}
v_add_u32 v{vLp}, s88, v{t0}
v_lshrrev_b32 v{t0}, 2, v0
v_and_b32 v{t1}, 3, v0
v_mul_u32_u24 v{vSt}, 2560, v{t0}
v_lshl_add_u32 v{vSt}, v{t1}, 4, v{vSt}
s_mov_b32 s88, 4096
s_mov_b32 s89, 8192""") + (Is("v_mov_b32 v22, v46\nv_mov_b32 v23, v47" if OPT["stamps"] < 6 else "v_mov_b32 v22, v31\nv_mov_b32 v23, v31") if OPT["stamps"] else [])
    u0 = max(NE0 + OPT["k2e"], 11); NT = 2 if OPT["stamps"] == 9 else 3
    held = {0: []}
    for u in range(NE0, u0):
        e = epi_unit(u, True, True)
        if u >= u0 - NT: held[0].append(e.pop())
        H += e
    H0 = H; H = []; gap = OPT["hgap"]
    for k, x in enumerate(H0):
        if k % gap == 0:
            while ld:
                y = ld.pop(0); H.append(y)
                if y.kind == "vmem": break
        H.append(x)
    H += ld + [WAIT(lneed=regs("a", wq(0), 8), vneed=Oset(0))] + stamp(49)
    left = list(range(u0, 24)); body = {}
    for d in range(6):
        body[d] = []; held[d + 1] = []
        for u in left[d * NT:(d + 1) * NT]:
            e = epi_unit(u, False, True); held[d + 1].append(e.pop()); body[d] += e
    SG = max(d for d in held if held[d]) + 1
    assert SG <= 5
    TM = 24
    so = lambda q: ["0", "s88", "s89"][q // 4]
    def step(d, mode):
        mf = []
        for t in range(8):
            for qt in range(5):
                for kb in range(2):
                    a = acc(t, qt)
                    mf.append(mfma(V4(a), A4(wq(2 * t + kb)), R4(Of(d, kb, qt)), "0" if (d == 0 and kb == 0) else V4(a)))
        own = wreads(d)[NP:]
        ws = [WAIT(lneed=regs("a", wq(2 * t), 8), lo=10 * t - 3, hi=10 * t - 1, target=10 * t - 2) for t in range(1, 7)]
        if d == 23:
            G2 = 39
            spread(own, 0, 24)
            for it in own: it.hi = G2 - 4
            w3 = [I(f"ds_write_b128 v{vW}, {V4(64 + 4*q)} offset:{q*1024}", lo=24, target=24 + q, hi=G2 - 3) for q in range(10)]
            for x in w3: x.cost = 8
            bar = BAR(None, lo=G2, hi=G2)
            rd = [I(f"ds_read_b128 {V4(TM + 4*q)}, v{vRd} offset:{q*1024}", dst=regs("v", TM + 4 * q, 4), after=[bar]) for q in range(10)]
            spread(rd, G2 + 1, G2 + 11)
            ad = []
            for q in range(10):
                if q % 2 == 0: ad.append(WAIT(lneed=regs("v", TM + 4 * q, 8), after=[rd[q + 1]]))
                ad += [I(f"v_add_f32 v{104+4*q+j}, v{104+4*q+j}, v{TM+4*q+j}") for j in range(4)]
                ad.append(I(f"buffer_store_dwordx4 {V4(104+4*q)}, v{vOf}, {S4(sXs)}, {so(q)} offen offset:{(q%4)*1024} sc1"))
            spread(ad, G2 + 9, 80)
            return schedule(mf, [ws[:3], own + [bar] + rd, w3, ad], novalu=range(G2, G2 + 9), name=f"k2s{d}")
        nxt = wreads(d + 1)[:NP]
        spread(own, 0, G - 6)
        for it in own: it.hi = min(it.hi, 10 * (it.f >> 1) - 7); it.target = min(it.target, it.hi - 1)
        bar = BAR(Wt(d + 1) | ({"OST"} if (mode == "head" and d == SG) else set()), lo=G, hi=G)
        for it in nxt: it.after = [bar]
        spread(nxt, G + 1, 76)
        ws.append(WAIT(lneed=regs("a", wq(0), 8), vneed=Oset(d + 1), lo=78, hi=79, target=78.5))
        vm = []; pos = d % 3
        if mode == "loop" and pos == 0:
            vm += Is(f"s_cmp_eq_u32 s{sCnt}, 1\ns_cselect_b32 s88, s{sC1}, 0x10000\ns_cselect_b32 s{sJ}, {1536*1280}, 0\ns_add_u32 s{sJ}, s{sJ}, {128*1280}")
            vm += [I(f"buffer_load_dword v{vP2}, off, {S4(sFl)}, s88 sc1", dst={f"v{vP2}"})]
        if d > 0: vm += oload(d + 1, 1)
        if mode == "head": vm += held[d]
        if d + 2 <= 23: vm += wdma(d + 2, jump=(mode == "loop" and pos == 0))
        if mode == "loop" and pos == 1:
            chk = Is(f"v_readfirstlane_b32 s88, v{vP2}\ns_cmp_eq_u32 s{sCnt}, 1\ns_cselect_b32 s89, 32, 0")
            vm = chk + vm + [Ins("s_cmp_lt_u32 s88, s89\ns_cbranch_scc1 K2_SPIN1\nK2_RET1:", kind="bar")]
        if d + 2 <= 23: vm += oload(d + 2, 0)
        if mode == "head" and d == SG:
            at = atomic(vOne, sC1w, sFl); at.after = [bar]; vm.append(at)
        if mode == "loop" and pos == 2: vm += Is(f"s_add_u32 s{sCnt}, s{sCnt}, 1\ns_cmp_lt_u32 s{sCnt}, 5")
        if d == 22: vm += late
        if OPT['ev'] and d < 22: even(vm, 0, 80, [G])
        else: spread(vm, 0, 80 if d < 22 else 56, [G])
        es = []
        if mode == "head" and body[d]:
            es = body[d]
            for k in range(len(es) // 20): es[20 * k].after = [held[d][k]]; es[20 * k].dly = 1
            spread(es, held[d][0].lo + 2, 79, range(G, G + 9))
        return schedule(mf, [ws, own + [bar] + nxt, vm, es], novalu=range(G, G + 9), name=f"k2s{d}")
    B["k2head"] = H + [x for d in range(6) for x in step(d, "head") + (stamp(40 + d, True) if OPT["stamps"] == 5 and d < 5 else [])] + stamp(50)
    B["k2loop"] = Is(".p2align 6\nK2_L:") + [x for d in range(6, 9) for x in step(d, "loop")] + (stamp(-2) if OPT["stamps"] == 5 else []) + Is("s_cbranch_scc1 K2_L")
    B["k2tail"] = stamp(47, True) + [x for d in range(21, 24) for x in step(d, "tail") + (stamp(55 + d - 21) if OPT["stamps"] == 5 and d == 22 else stamp(45, True) if OPT["stamps"] == 5 and d == 21 else [])]
    KP = 184; RD = 64
    pa = lambda a, b: I(f"v_pk_add_f32 v[{a}:{a+1}], v[{a}:{a+1}], v[{b}:{b+1}]")
    E = stamp(51) + (Is(f"v_writelane_b32 v22, s{sSp}, 61\ns_getreg_b32 s87, hwreg(HW_REG_XCC_ID)\nv_writelane_b32 v22, s87, 62\ns_memrealtime s[90:91]\ns_waitcnt lgkmcnt(0)\nv_writelane_b32 v22, s90, 63") if OPT["stamps"] else []) + [I(f"ds_write_b128 v{vW}, {V4(144 + 4*q)} offset:{10240 + q*1024}") for q in range(10)]
    E += Is(f"""s_lshl_b32 s84, s{sWg}, 7
s_xor_b32 s85, s84, 128
s_cmp_eq_u32 s{sWave}, 0
s_cselect_b32 s84, s84, 0x10000
s_waitcnt vmcnt(0) lgkmcnt(0)
s_barrier
s_mov_b64 exec, 1
buffer_store_dword v{vOne}, off, {S4(sFl)}, s84 sc1
s_mov_b64 exec, -1""") + stamp(52) + [I(f"buffer_load_dword v{t2}, off, {S4(sFl)}, s85 sc1", dst={f"v{t2}"})]
    E += [I(f"ds_read_b128 {V4(TM + 4*q)}, v{vRd} offset:{10240 + q*1024}", dst=regs("v", TM + 4 * q, 4)) for q in range(10)]
    E += [WAIT(lzero=True)] + [pa(KP + 2 * h, TM + 2 * h) for h in range(20)]
    E += Is(f"""K2_POLL:
s_waitcnt vmcnt(0)
v_readfirstlane_b32 s86, v{t2}
s_nop 3
s_cmp_eq_u32 s86, 1
s_cbranch_scc1 K2_GO
s_add_u32 s{sSp}, s{sSp}, 1
s_cmp_gt_u32 s{sSp}, 0x40000
s_cbranch_scc1 K2_GO
buffer_load_dword v{t2}, off, {S4(sFl)}, s85 sc1
s_branch K2_POLL""")
    B["k2epi"] = E
    E = Is("K2_GO:") + stamp(53)
    order = [q for qt in range(5) for q in (qt, 5 + qt)]
    for q in order: E.append(I(f"buffer_load_dwordx4 {V4(RD+4*q)}, v{vOf}, {S4(sXr)}, {so(q)} offen offset:{(q%4)*1024} sc1", dst=regs("v", RD + 4 * q, 4)))
    for qt in range(5):
        E.append(WAIT(vneed=regs("v", RD + 4 * (5 + qt), 4)))
        for q in (qt, 5 + qt):
            for h in range(2): E.append(pa(KP + 4 * q + 2 * h, RD + 4 * q + 2 * h))
        a, b = KP + 4 * qt, KP + 4 * (5 + qt)
        E += Is(f"""v_cvt_pk_bf16_f32 v{a}, v{a}, v{a+1}
v_cvt_pk_bf16_f32 v{a+1}, v{a+2}, v{a+3}
v_cvt_pk_bf16_f32 v{a+2}, v{b}, v{b+1}
v_cvt_pk_bf16_f32 v{a+3}, v{b+2}, v{b+3}
s_nop 1
v_permlane16_swap_b32 v{a}, v{a+2}
v_permlane16_swap_b32 v{a+1}, v{a+3}
ds_write_b128 v{vLp}, {V4(a)} offset:{qt*1024}""") + [I(f"ds_read_b128 {V4(144+4*qt)}, v{vRd} offset:{qt*1024}", dst=regs("v", 144 + 4 * qt, 4))]
    for qt in range(5):
        E += [I(f"s_mov_b32 s87, {qt*16*2560}"), WAIT(lneed=regs("v", 144 + 4 * qt, 4)), I(f"buffer_store_dwordx4 {V4(144+4*qt)}, v{vSt}, {S4(sOut)}, s87 offen" + ["", " sc1", " nt", " sc0 sc1"][OPT["outp"]])]
    E += stamp(54) + (Is(f"v_writelane_b32 v22, s{sSp}, 60\nv_writelane_b32 v23, s87, 60") if OPT["stamps"] else []) + Is("K1_DONE:") + stamp_out(S2(sKA), sWg, sWave, t0, 0x4000000)
    if OPT["enc"]:
        r, a, b, dv = {1: (23, 48, 48, 1), 2: (23, 48, 54, 1), 3: (22, 3, 4, 10), 4: (22, 27, 28, 10), 5: (23, 3, 4, 1), 6: (23, 27, 28, 1), 7: (23, 49, 51, 1), 8: (23, 0, 1, 1), 9: (22, 48, 54, 10)}[OPT["enc"]]
        E += Is(f"""s_cmp_lg_u32 s{sWg}, 17
s_cbranch_scc1 K1_END
s_cmp_lg_u32 s{sWave}, 0
s_cbranch_scc1 K1_END
v_readlane_b32 s84, v{r}, {a}
v_readlane_b32 s85, v{r}, {b}
v_readlane_b32 s86, v23, 48
s_nop 3
s_sub_u32 s85, s85, s84""") + (Is("s_mul_hi_u32 s85, s85, 429496730") if dv == 10 else []) + Is(f"""s_min_u32 s85, s85, 60000
s_add_u32 s85, s85, {OPT['encb']}
K1_ENC:
s_memrealtime s[90:91]
s_waitcnt lgkmcnt(0)
s_sub_u32 s90, s90, s86
s_cmp_lt_u32 s90, s85
s_cbranch_scc1 K1_ENC""")
    E += Is("K1_END:\ns_endpgm")
    B["k2fin"] = E
    spin = lambda nm, ret, ld, rd: Is(f"""{nm}:
s_add_u32 s{sSp}, s{sSp}, 1
s_cmp_gt_u32 s{sSp}, 0x40000
s_cbranch_scc1 {ret}
s_sleep 4
{ld}
s_waitcnt vmcnt(0)
{rd}
s_nop 3
s_cmp_lt_u32 s88, 32
s_cbranch_scc1 {nm}
s_branch {ret}""")
    B["k2side"] = Is(f"""K1_REDO:
s_mov_b32 s{sMode}, 1
s_waitcnt vmcnt(0) lgkmcnt(0)
s_barrier
s_branch K1_PRO""") + spin("K2_SPIN0", "K2_RET0", f"buffer_load_dwordx2 v[{vPoll}:{vPoll+1}], off, {S4(sDb)}, s{sCo} sc1", f"v_min_u32 v{t0}, v{vPoll}, v{vPoll+1}\ns_nop 0\nv_readfirstlane_b32 s88, v{t0}") \
        + spin("K2_SPIN1", "K2_RET1", f"buffer_load_dword v{vP2}, off, {S4(sFl)}, s{sC1} sc1", f"v_readfirstlane_b32 s88, v{vP2}")
    D = Is("K2_IDLE:")
    for u in range(NE0, 24): D += epi_unit(u, True)
    D += Is("s_waitcnt vmcnt(0)\ns_barrier") + [atomic(vOne, sC1w, sFl)]
    if OPT["pfs"]:
        S0 = OPT["pfs"]
        D += Is(f"""s_mov_b64 {S2(sOo)}, {S2(sWoP)}
s_mov_b32 s{sOo+2}, s{sK2n}
s_mov_b32 s{sOo+3}, 0x20000
s_bfe_u32 s80, s{sWg}, 0x10003
s_lshl_b32 s80, s80, 14
s_add_u32 s80, s80, {S0*163840}
s_mov_b32 s81, {S0*5}
K2_PFL:""") + [I(f"buffer_load_dwordx4 {V4(64+4*j)}, v{vO}, {S4(sOo)}, s80 offen offset:{j*1024}", dst=regs("v", 64 + 4 * j, 4)) for j in range(4)] + Is(f"""s_add_u32 s81, s81, 1
s_cmp_eq_u32 s81, 60
s_cselect_b32 s82, {1536*1280}, 0
s_add_u32 s80, s80, s82
s_add_u32 s80, s80, 32768
s_waitcnt vmcnt(24)
s_cmp_lt_u32 s81, 120
s_cbranch_scc1 K2_PFL""")
    D += (Is("v_mov_b32 v22, v46\nv_mov_b32 v23, v47" if OPT["stamps"] < 6 else "v_mov_b32 v22, v31\nv_mov_b32 v23, v31") if OPT["stamps"] else []) + Is("s_branch K1_DONE")
    B["k2idle"] = D
    return ["k2pro", "k2head"] + ["k2loop"] * 5 + ["k2tail", "k2epi", "k2fin"], ["k2pro", "k2idle"]

def desc(name, vg=512, acc=256):
    return f""".p2align 6
.amdhsa_kernel {name}
  .amdhsa_next_free_vgpr {vg}
  .amdhsa_next_free_sgpr 102
  .amdhsa_accum_offset {acc}
  .amdhsa_group_segment_fixed_size 0
  .amdhsa_kernarg_size 104
  .amdhsa_user_sgpr_count 2
  .amdhsa_user_sgpr_kernarg_segment_ptr 1
  .amdhsa_system_sgpr_workgroup_id_x 1
  .amdhsa_float_denorm_mode_32 3
.end_amdhsa_kernel"""

def main():
    k1, e1 = kernel1()
    ref = open("cdna_kernels/" + NAME + ".s.ref").read().split("\n")
    head = [l for l in ref if l.startswith(";") and "@launch" not in l]
    nm = NAME + "_kernel"
    out = head + [f"; @launch grid=(256,1,1) block=(256,1,1) lds=163840",
                  '.amdgcn_target "amdgcn-amd-amdhsa--gfx950"', ".text"]
    out += [f".globl {nm}", ".p2align 8", f".type {nm},@function", f"{nm}:"] + k1
    out += ["K_CODE_END:", "s_endpgm", '.section .rodata,"a"', desc(nm)]
    open(sys.argv[1], "w").write("\n".join(out) + "\n")
    if e1: sys.exit(1)
main()
```

```python
import sys, math, re
from asmlib import *
from verify import verify

OPT = dict(nt_kv=1, nt_w=0, nt_x=0, nt_o=2, k2_nt_o=2, k2_nt_w=0, stamps=0, ovl=1, ne0=6, nc9=7, pf=1, cpf=1, k2e=9, sigs=4, pfs=0, cpl=1, k2fix=0, osc=1, ev=1, lmf=1, padn=0, padm=0, enc=0, kvn=0, kv0=10, kvpos=70, kvph=7, encb=30000, outp=0, na0=2, bg15=60, hgap=8, rot=0, wpf=1, hold=1, padi=0, cpw=0x88, vmx=63, xq=3, xp=2, me=0x3f, mo=0x3f, cw8=4, pq=2, pp=0, lq=0, lp=0, la1=0, pskip=2, cpfirst=0, m1=0, adp=9, adn=2, nfl=0, tw=0, rmp=0, k2n=3, cpk=0x88888, fag=62, wop=1, mrg=4, adv0=8, advf=55, asy=2, fbg=12, plg=45, p1g=120, sge=1, ckg=52, nsp=0)
for a in sys.argv[2:]:
    k, v = a.split("="); assert k in OPT, k; OPT[k] = int(v, 0)
NAME = "concat_heads__gqa_block_cached__gqa_block_cached__near_ridge"
MF = "v_mfma_f32_16x16x32_bf16"
def I(t, **kw): return Ins(t, **kw)
def Is(txt): return [Ins(t.strip()) for t in txt.strip().split("\n") if t.strip()]
def mfma(d, a, b, c): return Ins(f"{MF} {d}, {a}, {b}, {c}")
def V4(b): return f"v[{b}:{b+3}]"
def A4(b): return f"a[{b}:{b+3}]"

TILE = 24576; WS = 64 * 12288
X0 = 0; RING = 32768; X1 = 131072
def slot(i): return RING + i * TILE
vK = [[1, 2], [3, 4]]; KW = [0, 65536]
vV = [[5, 6, 7, 8], [9, 10, 11, 12]]; VW = [32768, 98304]
vXr = [[13, 14], [15, 16]]
vD = [17, 18]; vDkv = 19; vDw = 20; vDx = 21; vO = 22; vO3 = 23
vL = [24, 25, 26, 27]; vMi = [40, 41, 42, 43]; vT = 32
NEGM = 48; SP = 64; QF = 160
RCP = 48
def negm(qt): return NEGM + 4 * qt
def XY(par, kb, qt): return SP + 4 * ((par * 2 + kb) * 4 + qt)
def Z(kb, qt): return SP + 64 + 4 * (kb * 4 + qt)
def Qf(qt, s): return QF + 4 * (qt * 6 + s)
def Qb(qt, s):
    return SP + 4 * (qt * 6 + s)
def Oacc(t, qt): return 4 * (t * 4 + qt)
def Xf(n, kb, qt): return 32 * (n & 1) + 4 * (kb * 4 + qt)
FR = 192
def fq(n, f): return FR + 4 * ((f + 8 * (n & 1)) % 16)
sX = 4; sDA = 8; sDB = 12; sO = 16
sK = 20; sV = 22; sNb = 24; sNnum = 26; sNs = 27; sNd = 28; sXnum = 29; sN2 = 30; sMask = 32
sA = 34; sB = 35; sI = 39; sWoff = 40; sXoff = 41
sOs = [42, 43, 44, 45, 37, 38]; sT = 46; sItem = 47; sMode = 48; sFlag = 49; sC = 50
sWave = 52; sWg = 53; sT2 = 54; sT3 = 55; sThr = 56; sKA = 58
sLd = 4
sP1 = 60; vPf = 248; vPoll = 228
sWoP = 64; sOutP = 66; sWsP = 68; sSig = 70; sPfo = 71; sDb = 72; sCo = 76; sOn = 77; sSp = 78
sCp = 97; sBk = 3; sK2n = 79; sXk = 57; sXst = 2; sWk = 0; sSel = 1; sAll = 36; sXn = 98; sK2O = 100; FLO = RING + 3 * TILE
FLG = 0x2e00000; XCH = 0x2f00000
def S4(b): return f"s[{b}:{b+3}]"
def S2(b): return f"s[{b}:{b+1}]"
BG = 76
NOV = range(BG, BG + 9)
NPRE_V = 10; NPRE_K = 6
OSTRIDE = 24 * 120 * 1024

def lastuse_pv(f): return 8 * (f >> 1) + 6 + (f & 1)
def lastuse_qk(f): kt, s = divmod(f, 6); return 24 * kt + 18 + (5 - s)

def reads_v(n, base):
    out = []
    for f in range(24):
        t, kb = f >> 1, f & 1
        r = fq(n, f)
        for hf in range(2):
            off = base + (4 * kb + 2 * hf) * 3072 + (t >> 2) * 1024
            w = 1 if off >= VW[1] else 0
            it = I(f"ds_read_b64_tr_b16 a[{r+2*hf}:{r+2*hf+1}], v{vV[w][t & 3]} offset:{off-VW[w]}", dst=regs("a", r + 2 * hf, 2)); it.f = f
            out.append(it)
    return out
def reads_k(n, base):
    out = []
    for f in range(24):
        kt, s = divmod(f, 6); r = fq(n, f)
        off = base + kt * 6144 + (s >> 1) * 1024
        w = 1 if off >= KW[1] else 0
        it = I(f"ds_read_b128 {A4(r)}, v{vK[w][s & 1]} offset:{off-KW[w]}", dst=regs("a", r, 4)); it.f = f
        out.append(it)
    return out
def reads_x(n):
    return [I(f"ds_read_b128 {A4(Xf(n, kb, qt))}, v{vXr[n & 1][kb]} offset:{qt*2048}", dst=regs("a", Xf(n, kb, qt), 4)) for qt in range(4) for kb in range(2)]

def dma(srd, soff, base, nt):
    n = " nt" if nt else ""
    out = []
    for p in range(3):
        m = I(f"s_add_u32 m0, s{sWoff}, {base + 896*p}")
        a = I(f"buffer_load_dwordx4 v{vD[0]}, {S4(srd)}, s{soff} offen offset:{p*128}{n} lds", dst={f"L{base}"}, after=[m])
        b = I(f"buffer_load_dwordx4 v{vD[1]}, {S4(srd)}, s{soff} offen offset:{p*128+3072}{n} lds", dst={f"L{base}"})
        out += [m, a, b]
    return out
def dma_w(m): return Is(f"s_add_u32 s{sWk}, s{sWk}, s{sNs}\ns_cmp_eq_u32 s{sWk}, {10*WS}\ns_cselect_b32 s{sWk}, 0, s{sWk}") + dma(sDA, sWk, slot(m % 4), OPT["nt_w"])
def dma_k(i, base): return [I(f"s_mov_b32 s{sT2}, {i*TILE}")] + dma(sDA, sT2, base, OPT["nt_kv"])
def dma_v(i, base): return [I(f"s_mov_b32 s{sT2}, {i*TILE}")] + dma(sDB, sT2, base, OPT["nt_kv"])
dma_n = dma_w
def hd(d): return d[:-6]
def tl(d): return d[-6:]
def dma_x(n):
    out = Is(f"s_add_u32 s{sXk}, s{sXk}, s{sXst}\ns_cmp_eq_u32 s{sXk}, 1280\ns_cselect_b32 s{sXk}, 0, s{sXk}"); base = X1 if n & 1 else X0
    for j in range(8):
        if j % 4 == 0: out.append(I(f"s_add_u32 m0, s{sXoff}, {base + j*1024}"))
        out.append(I(f"s_add_u32 s{sT}, s{sXk}, {j*10240 - (j % 4)*1024}"))
        out.append(I(f"buffer_load_dwordx4 v{vDx}, {S4(sX)}, s{sT} offen offset:{(j % 4)*1024}" + (" nt" if OPT["nt_x"] else "") + " lds", dst={f"X{n&1}_{j>>1}"}))
    return out

def phase(name, n, typ, mf, own, nxt, nxt_typ, pub, early, dmas, extra=(), post=(), early_hi=None, bg=BG, dend=None, endx=frozenset()):
    lu = lastuse_pv if typ == "v" else lastuse_qk
    N = len(mf)
    rs = []
    if typ == "v":
        k0 = 48 - len(own)
        for j, it in enumerate(own):
            it.target = j * (bg - 6) / len(own)
            it.hi = min(8 * (it.f >> 1) - 6, bg - 5)
            if it.f >= 16: it.lo = lu(it.f - 16)
            it.hi = max(it.hi, it.lo)
    else:
        for j, it in enumerate(own):
            kt, s = divmod(it.f, 6)
            it.target = 24 * (kt - 1) + 1 + s * 2.5; it.hi = 24 * kt - 8
            if it.f >= 16: it.lo = lu(it.f - 16)
    rs += own
    bar = BAR(pub if isinstance(pub, set) else {f"L{pub}"}, lo=bg, hi=bg); rs.append(bar)
    for j, it in enumerate(nxt):
        it.lo = max(bg + 1, lu(it.f + 8)); it.after = [bar]
        it.target = bg + 1 + (j * 1.8 if nxt_typ == "v" else j * 1.5); it.hi = N - 1 if nxt_typ == "v" and j >= 4 else N - 8
    rs += nxt
    ws = []
    if typ == "v":
        for t in range(1, 12):
            if 8 * t - 1 >= bg: break
            ws.append(WAIT(lneed=regs("a", fq(n, 2 * t), 4) | regs("a", fq(n, 2 * t + 1), 4), lo=8 * t - 3, hi=8 * t - 1, target=8 * t - 2))
    else:
        for kt in range(1, 4):
            ws.append(WAIT(lneed=set().union(*[regs("a", fq(n, 6 * kt + s), 4) for s in range(6)]), lo=24 * kt - 3, hi=24 * kt - 1, target=24 * kt - 2))
    nf = 2 if nxt_typ == "v" else 6
    ws.append(WAIT(lneed=set().union(*[regs("a", fq(n + 1, f), 4) for f in range(nf)]) | endx, lo=N - 2, hi=N - 1, target=N - 1.5))
    ms = list(early)
    spread(ms, 1, early_hi or bg - 6)
    nv = sum(1 for it in dmas if it.kind == "vmem"); k = 0
    for it in dmas:
        it.lo = bg + 1 if it.kind == "vmem" else bg - 4
        it.target = bg + 2 + k * min(12.0, ((dend or N) - bg - 3) / max(nv, 1)) - (0 if it.kind == "vmem" else 2.5)
        if it.kind == "vmem": it.after = it.after + [bar]; k += 1
    ms += dmas
    for it in post: it.lo = bg + 1; it.target = N - 6
    ms += list(post)
    return schedule(mf, [ws, rs, ms] + list(extra), novalu=range(bg, bg + 9), name=name)

def softmax(groups, lo, hi, sub=None, skip=NOV):
    E = []; D = []; P = []
    for (par, kb, qt, l0, l1, h, sb_) in groups:
        x, z = XY(par, kb, qt), Z(kb, qt)
        src = [x, x + 1, x + 2, x + 3, z, z + 1, z + 2, z + 3]
        for pr in range(4):
            es = []
            for e in range(2):
                r = src[2 * pr + e]
                ex = I(f"v_exp_f32 v{r}, v{r}", lo=(l0, l1)[pr >> 1])
                if sb_:
                    sb = I(f"v_add_f32 v{r}, v{r}, v{negm(qt)}", after=[sub[qt]] if sub else [], lo=(l0, l1)[pr >> 1]); sb.ex = ex; P.append(sb); ex.after = [sb]
                E.append(ex); es.append(ex)
            D.append(I(f"v_cvt_pk_bf16_f32 v{x+pr}, v{src[2*pr]}, v{src[2*pr+1]}", after=es, hi=h))
    spread(E, lo, hi, skip)
    for e in E: e.hi = 10**9
    for d in D:
        d.target = max(a.target for a in d.after) + 1
        for a in d.after: a.hi = d.hi - 1
    for p in P: p.target = p.ex.target - 3; p.hi = p.ex.hi - 1
    return [P, E, D]
def g_old(par, kb, qts, N, inqk):
    return [(par, kb, qt, 0, 0, (48 * kb + 24 + 6 * qt - 1) if inqk else N - 1, False) for qt in qts]
def g_new(par, qts):
    return [(par, 0, qt, 6 * qt + 13, 24 + 6 * qt + 13, 95, False) for qt in qts]

def mf_w(n):
    out = []
    for t in range(12):
        for qt in range(4):
            d = Qf(qt, t >> 1) if t % 2 == 0 else Qb(qt, t >> 1)
            for kb in range(2):
                out.append(mfma(V4(d), A4(fq(n, 2 * t + kb)), A4(Xf(n, kb, qt)), "0" if (n == 0 and kb == 0) else V4(d)))
    return out
def mf_qk(n, par, first=False):
    out = []
    for kt in range(4):
        for qt in range(4):
            d = XY(par, kt >> 1, qt) if kt % 2 == 0 else Z(kt >> 1, qt)
            order = range(6) if qt % 2 == 0 else range(5, -1, -1)
            for j, s in enumerate(order):
                c = V4(d) if j else ("0" if (first and kt < 2) else V4(negm(qt)))
                out.append(mfma(V4(d), A4(fq(n, 6 * kt + s)), V4(Qf(qt, s)), c))
    return out
def mf_l(par, first=False):
    return [mfma(V4(vL[0]), V4(32 + 4 * qt), V4(XY(par, kb, qt)), "0" if (first and qt + kb == 0) else V4(vL[0])) for kb in range(2) for qt in range(4)]
def mf_pv(n, par, first=False):
    out = []
    for t in range(12):
        for qt in range(4):
            for kb in range(2):
                out.append(mfma(A4(Oacc(t, qt)), A4(fq(n, 2 * t + kb)), V4(XY(par, kb, qt)), "0" if (first and kb == 0) else A4(Oacc(t, qt))))
    return out

ETMP = [32, 40, 56]
def epi_unit(u, packed, k2=False):
    s, qt = divmod(u, 4)
    tb = ETMP[u % 3] if OPT["stamps"] in (0, 6, 7, 8, 9) else [24, 32, 56][u % 3] if k2 else [32, 56][u % 2]
    out = []
    rc = RCP + 2 * qt
    for h in range(2):
        for j in range(4): out.append(I(f"v_accvgpr_read_b32 v{tb+4*h+j}, a{Oacc(2*s+h, qt)+j}"))
        if packed:
            for j in range(2): out.append(I(f"v_pk_mul_f32 v[{tb+4*h+2*j}:{tb+4*h+2*j+1}], v[{tb+4*h+2*j}:{tb+4*h+2*j+1}], v[{rc}:{rc+1}]"))
        else:
            for j in range(4): out.append(I(f"v_mul_f32 v{tb+4*h+j}, v{tb+4*h+j}, v{rc}"))
        for j in range(2): out.append(I(f"v_cvt_pk_bf16_f32 v{tb+2*h+j}, v{tb+4*h+2*j}, v{tb+4*h+2*j+1}"))
    out.append(I(f"buffer_store_dwordx4 {V4(tb)}, v{vO3 if qt == 3 else vO}, {S4(sO)}, s{sOs[s]} offen offset:{qt*1024}" + ["", " nt", " sc1", " sc0 sc1"][OPT["nt_o"]], dst={"OST"}))
    return out
def cvt_unit(s, qt, packed):
    a, b = Qf(qt, s), Qb(qt, s)
    out = []
    if packed:
        for r in (a, a + 2, b, b + 2): out.append(I(f"v_pk_mul_f32 v[{r}:{r+1}], v[{r}:{r+1}], {S2(sC)}"))
    else:
        for r in (a, a + 1, a + 2, a + 3, b, b + 1, b + 2, b + 3): out.append(I(f"v_mul_f32 v{r}, s{sC}, v{r}"))
    out += Is(f"""v_cvt_pk_bf16_f32 v{a}, v{a}, v{a+1}
v_cvt_pk_bf16_f32 v{a+1}, v{a+2}, v{a+3}
v_cvt_pk_bf16_f32 v{a+2}, v{b}, v{b+1}
v_cvt_pk_bf16_f32 v{a+3}, v{b+2}, v{b+3}""")
    sw = Is(f"v_permlane16_swap_b32 v{a}, v{a+2}\nv_permlane16_swap_b32 v{a+1}, v{a+3}")
    return out, sw

def pf():
    return [I(f"v_add_u32 v{vPf}, s{sPfo}, v{vO}")] + [I(f"buffer_load_dwordx4 {V4(252)}, v{vPf}, {S4(sP1)}, " + ("0" if j < 4 else f"s{sT3}") + f" offen offset:{(j % 4)*1024}", dst=regs("v", 252, 4)) for j in range(6)]

def atomic(v, so, srd=None):
    it = Ins(f"s_mov_b64 exec, 1\nbuffer_atomic_add v{v}, off, {S4(srd or sDb)}, s{so}\ns_mov_b64 exec, -1", kind="vmem"); it.cost = 8
    return it
def codepf():
    return [I("global_load_dword v30, v[28:29], off", dst={"v30"})] if OPT["cpl"] else []

def jobid(d, t):
    if not OPT["rmp"]: return f"s_mov_b32 s{d}, s{sWg}"
    return f"""s_lshr_b32 s{t}, s{sWg}, 4
s_xor_b32 s{t}, s{t}, s{sWg}
s_and_b32 s{t}, s{t}, 1
s_mul_i32 s{t}, s{t}, 17
s_cmp_ge_u32 s{sWg}, 224
s_cselect_b32 s{t}, s{t}, 0
s_xor_b32 s{d}, s{sWg}, s{t}"""

def lin(items):
    out = []
    for k, it in enumerate(items):
        out.append(it)
        if it.text.startswith("s_add_u32 m0") and items[k + 1].kind == "vmem": out.append(I("s_nop 0"))
    return out

def stamp(idx, k2=False):
    if not OPT["stamps"]: return []
    if OPT["stamps"] == 9:
        if idx not in (48, 54): return []
        return Is(f"s_memrealtime s[94:95]\ns_waitcnt lgkmcnt(0)\nv_writelane_b32 v{31 if idx == 48 else 22}, s94, {idx}")
    va, vb = (22, 23) if idx >= 51 else (31, 31) if OPT['stamps'] >= 6 else (46, 47)
    if idx == -2: sel = "s_add_u32 s92, s39, 31"
    elif idx < 0: sel = f"s_mul_i32 s92, s{sItem}, 24\ns_add_u32 s92, s92, s{sI}\ns_add_u32 s92, s92, 8"
    else: sel = f"s_mov_b32 s92, {idx}" if (k2 or idx >= 48) else f"s_mul_i32 s92, s{sItem}, 24\ns_add_u32 s92, s92, {idx}"
    return Is(f"""s_memtime s[90:91]
s_memrealtime s[94:95]
s_waitcnt lgkmcnt(0)
s_cselect_b32 s96, 1, 0
{sel}
s_mov_b32 s93, m0
s_mov_b32 m0, s92
v_writelane_b32 v{vb}, s94, m0
v_writelane_b32 v{va}, s90, m0
s_mov_b32 m0, s93
s_cmp_lg_u32 s96, 0""")
def stamp_out(karg, wg, wave, tmp, base, k2=False):
    if not OPT["stamps"]: return []
    va = 22
    return Is(f"""s_load_dwordx2 s[80:81], {karg}, 96
s_waitcnt lgkmcnt(0)
s_add_u32 s80, s80, {base}
s_addc_u32 s81, s81, 0
s_mov_b32 s82, 0x100000
s_mov_b32 s83, 0x20000
s_lshl_b32 s84, s{wg}, 2
s_add_u32 s84, s84, s{wave}
s_lshl_b32 s84, s84, 9
v_lshlrev_b32 v{tmp}, 3, v0
buffer_store_dwordx2 v[{va}:{va+1}], v{tmp}, s[80:83], s84 offen""")


def pst(idx):
    if OPT["stamps"] != 8: return []
    return Is(f"s_memtime s[28:29]\ns_waitcnt lgkmcnt(0)\nv_writelane_b32 v31, s28, {idx}") if idx < 18 else stamp(idx, True)
def kernel1():
    B = {}
    c = math.log2(math.e) / math.sqrt(192.0)
    import struct
    cbits = struct.unpack("<I", struct.pack("<f", c))[0]
    selinit = f"s_mov_b32 s{sSel}, {OPT['me']}" if OPT['me'] == OPT['mo'] else f"s_getreg_b32 s{sSel}, hwreg(HW_REG_XCC_ID, 0, 1)\ns_cmp_eq_u32 s{sSel}, 0\ns_cselect_b32 s{sSel}, {OPT['me']}, {OPT['mo']}"
    kload = lambda b: Is(f"s_load_dwordx16 s[4:19], {b}, 0\ns_load_dwordx8 s[20:27], {b}, 64\ns_load_dwordx2 {S2(sWsP)}, {b}, 96")
    B["kre"] = kload(S2(sKA)) + Is("s_branch K1_PRO")
    B["entry"] = Is("s_cmp_ge_u32 s2, 256\ns_cbranch_scc1 K1_END") + kload("s[0:1]") + Is(f"""
v_lshrrev_b32 v{vT}, 6, v0
v_and_b32 v0, 63, v0
s_mov_b32 s{sWg}, s2
v_readfirstlane_b32 s{sWave}, v{vT}
s_mov_b64 {S2(sKA)}, s[0:1]
s_mov_b32 s{sMode}, 0
s_mov_b32 s{sSig}, 0""") + stamp(48)
    cpa = Is(f"""
s_getpc_b64 s[90:91]
K1_PC:
s_lshr_b32 s86, s{sWg}, 3
s_lshl2_add_u32 s86, s86, s{sWave}
s_lshl_b32 s86, s86, 10
v_lshl_add_u32 v28, v0, 4, s86
v_min_u32 v28, (K_CODE_END-K1_PC-32)&0xfffffff0, v28
s_and_b32 s90, s90, 0xfffffff0
v_mov_b32 v29, s91
v_add_co_u32 v28, vcc, s90, v28
s_mov_b32 s{sSp}, 0
s_nop 0
v_addc_co_u32 v29, vcc, 0, v29, vcc""") + codepf()
    t0, t1, t2, t3 = vT, vT + 1, vT + 2, vT + 3
    P = Is(f"""K1_PRO:
s_lshr_b32 s82, s{sWg}, 6
s_and_b32 s83, s{sWg}, 2
s_lshl1_add_u32 s81, s83, s82
s_mul_i32 s82, s81, 307200
s_lshl_b32 s{sXoff}, s{sWave}, 13
s_lshl_b32 s86, s{sWave}, 6
v_lshrrev_b32 v{t0}, 3, v0
v_and_b32 v{t1}, 7, v0
v_and_b32 v{t2}, 6, v{t0}
v_xor_b32 v{t1}, v{t1}, v{t2}
v_add_u32 v{t2}, s86, v{t0}
v_mul_u32_u24 v{vDx}, 1280, v{t2}
v_lshl_add_u32 v{vDx}, v{t1}, 4, v{vDx}
s_bfe_u32 s{sT3}, s{sWg}, 0x10002
s_waitcnt lgkmcnt(0)
s_cselect_b64 s[92:93], s[16:17], s[6:7]
s_cselect_b64 s[4:5], s[14:15], s[4:5]
s_add_u32 s{sX}, s4, s82
s_addc_u32 s{sX+1}, s5, 0
s_mov_b32 s{sX+2}, 307200
s_mov_b32 s{sX+3}, 0x20000
s_mov_b32 s{sXk}, 0""") + pst(16) + (cpa if OPT['cpfirst'] else []) + dma_x(0)[3:] + ([] if OPT['cpfirst'] else cpa) + Is(f"""
s_cmp_eq_u32 s{sT3}, 0
s_cselect_b64 s[94:95], s[8:9], s[18:19]
s_cselect_b64 s[96:97], s[10:11], s[20:21]
s_cselect_b64 {S2(sWoP)}, s[12:13], s[22:23]
s_mov_b64 {S2(sOutP)}, s[24:25]
s_mov_b64 {S2(sDb)}, s[26:27]
s_lshr_b32 s{sT2}, s{sWg}, 3
s_and_b32 s88, s{sWg}, 1
s_and_b32 s89, s{sT2}, 7
s_lshl3_add_u32 s80, s88, s89
s_mul_i32 s84, s80, 384
s_mul_i32 s{sWoff}, s{sWave}, 6144
v_mul_u32_u24 v{vDkv}, 384, v{t0}
v_lshl_add_u32 v{vDkv}, v{t1}, 4, v{vDkv}
v_add_u32 v{vDkv}, s{sWoff}, v{vDkv}
v_and_b32 v{t2}, 4, v{t1}
v_and_b32 v{t3}, 1, v{t1}
v_lshl_or_b32 v{t2}, v{t3}, 1, v{t2}
v_bfe_u32 v{t3}, v{t1}, 1, 1
v_or_b32 v{t1}, v{t2}, v{t3}
v_and_b32 v{t2}, 3, v{t0}
v_lshrrev_b32 v{t3}, 2, v{t0}
v_lshl_add_u32 v{t2}, v{t3}, 3, v{t2}
s_lshr_b32 s86, s{sWave}, 1
s_lshl_b32 s86, s86, 5
s_and_b32 s87, s{sWave}, 1
s_lshl2_add_u32 s86, s87, s86
v_add_u32 v{t2}, s86, v{t2}
v_mul_u32_u24 v{vDw}, 12288, v{t2}
v_lshl_add_u32 v{vDw}, v{t1}, 4, v{vDw}
v_mov_b32 v{vD[0]}, v{vDw}
v_add_u32 v{vD[1]}, {196608-3072}, v{vDw}
s_add_u32 s{sDA}, s96, s84
s_addc_u32 s{sDA+1}, s97, 0
s_sub_u32 s{sDA+2}, 7864320, s84
s_mov_b32 s{sDA+3}, 0x20000
s_mov_b32 s{sNs}, {WS}
s_mov_b32 s{sWk}, 0
s_mov_b32 s{sXst}, 128
""")
    P0 = P
    P = Is(f"""
s_lshl_b32 s83, s81, 5
s_add_u32 s83, s83, s80
s_mul_i32 s83, s83, 393216
s_lshl_b32 s85, s{sT3}, 5
s_lshl_b32 s86, s88, 4
s_add_u32 s85, s85, s86
s_add_u32 s85, s85, s89
s_and_b32 s86, s89, 4
s_add_u32 s85, s85, s86
s_mul_i32 s85, s85, 720
s_mul_i32 s86, s81, 15
s_add_u32 s85, s85, s86
s_lshl_b32 s85, s85, 10
s_and_b32 s88, s{sWg}, 3
s_lshl_b32 s89, s{sT2}, 2
s_add_u32 s88, s88, s89
s_add_u32 s{sK}, s92, s83
s_addc_u32 s{sK+1}, s93, 0
s_add_u32 s{sV}, s94, s83
s_addc_u32 s{sV+1}, s95, 0
s_mov_b32 s{sDb+2}, 256
s_mov_b32 s{sDb+3}, 0x20000
s_bfe_u32 s{sCo}, s{sWg}, 0x20001
s_lshl_b32 s{sCo}, s{sCo}, 6
s_mov_b32 s{sPfo}, s{sXoff}
s_cmp_eq_u32 s{sSig}, 0
s_cselect_b32 s{sOn}, {5*122880+15*1024}, 0
s_add_u32 s{sNb}, s{sDA}, 6144
s_addc_u32 s{sNb+1}, s{sDA+1}, 0
s_sub_u32 s{sNnum}, s{sDA+2}, 6144
s_mov_b32 s{sNd}, {196608-3072}
s_mov_b64 {S2(sMask)}, 0
s_mov_b32 s{sXnum}, 307200
s_mul_i32 s86, s88, 61440
s_add_u32 s{sN2}, s{sWoP}, s86
s_addc_u32 s{sN2+1}, s{sWoP+1}, 0
s_mul_i32 s86, s88, {4*12288}
s_add_u32 s86, s86, {128*12288+6144}
s_add_u32 s{sP1}, s96, s86
s_addc_u32 s{sP1+1}, s97, 0
s_mov_b32 s{sP1+2}, {(3*12288+6144) * OPT['wpf']}
s_mov_b32 s{sP1+3}, 0x20000
s_mov_b32 s{sT3}, 4096
s_add_u32 s{sO}, s{sWsP}, s85
s_addc_u32 s{sO+1}, s{sWsP+1}, 0
s_sub_u32 s{sO}, s{sO}, {OSTRIDE}
s_subb_u32 s{sO+1}, s{sO+1}, 0
s_mov_b32 s{sO+2}, 0
s_mov_b32 s{sO+3}, 0x20000
s_lshl_b32 s86, s{sWg}, 7
s_add_u32 s86, s86, {FLG}
s_add_u32 s{sDB}, s{sWsP}, s86
s_addc_u32 s{sDB+1}, s{sWsP+1}, 0
s_cmp_eq_u32 s{sMode}, 0
s_cselect_b32 s{sDB+2}, 128, 0
s_mov_b32 s{sDB+3}, 0x20000
s_mov_b32 s{sItem}, 0
s_mov_b32 s{sFlag}, 0
s_mov_b32 s{sCp}, 0x1000
{selinit}
s_mov_b32 s{sBk}, 0
s_mov_b64 {S2(sXn)}, {S2(sX)}
s_lshr_b32 s80, s{sWg}, 4
s_mul_i32 s84, s80, 52
s_lshr_b32 s84, s84, 8
s_mul_i32 s85, s84, 5
s_sub_u32 s85, s80, s85
s_and_b32 s81, s{sWg}, 1
s_bfe_u32 s89, s{sWg}, 0x10003
s_lshl1_add_u32 s89, s81, s89
s_and_b32 s82, s{sWave}, 1
s_lshr_b32 s83, s{sWave}, 1
s_xor_b32 s86, s81, s82
s_xor_b32 s86, s86, 1
s_lshl_b32 s86, s86, 7
s_lshl_b32 s87, s85, 8
s_add_u32 s86, s86, s87
s_mul_i32 s87, s83, {64*1280}
s_add_u32 s86, s86, s87
s_mul_i32 s87, s89, {768*1280}
s_add_u32 s86, s86, s87
s_add_u32 s{sWoP}, s{sWoP}, s86
s_addc_u32 s{sWoP+1}, s{sWoP+1}, 0
s_sub_u32 s{sK2n}, 7864320, s86
s_cmp_lt_u32 s80, 15
s_cselect_b32 s{sK2n}, s{sK2n}, 0
s_bfe_u32 s86, s{sWg}, 0x10001
s_mul_i32 s86, s86, 60
s_mul_i32 s87, s84, 20
s_add_u32 s86, s86, s87
s_mul_i32 s87, s{sWave}, 5
s_add_u32 s86, s86, s87
s_bfe_u32 s87, s{sWg}, 0x10002
s_lshl2_add_u32 s88, s87, s89
s_mul_i32 s88, s88, {48*120}
s_add_u32 s88, s88, s86
s_lshl_b32 s88, s88, 10
s_add_u32 s{sK2O}, s{sWsP}, s88
s_addc_u32 s{sK2O+1}, s{sWsP+1}, 0
s_mul_i32 s88, s86, {16*2560}
s_mul_i32 s87, s87, 1280
s_add_u32 s88, s88, s87
s_lshl_b32 s87, s85, 8
s_add_u32 s88, s88, s87
s_lshl_b32 s87, s89, 6
s_add_u32 s88, s88, s87
s_add_u32 s{sOutP}, s{sOutP}, s88
s_addc_u32 s{sOutP+1}, s{sOutP+1}, 0
s_mov_b32 s{sC}, {cbits:#x}
s_mov_b32 s{sC+1}, {cbits:#x}
s_mov_b32 s{sThr}, 0x5d800000
""") + [I(f"s_mov_b32 s{sOs[s]}, {s*122880}") for s in range(6)]
    kb0, vb0 = vK[0][0], vV[0][0]
    P += Is(f"""
v_and_b32 v{t0}, 15, v0
v_lshrrev_b32 v{t1}, 4, v0
v_and_b32 v{t2}, 6, v{t0}
v_xor_b32 v{t3}, v{t2}, v{t1}
v_lshlrev_b32 v{t3}, 4, v{t3}
v_lshl_add_u32 v{vXr[0][0]}, v{t0}, 7, v{t3}
v_add_u32 v{vXr[0][0]}, s{sXoff}, v{vXr[0][0]}
v_xor_b32 v{vXr[0][1]}, 64, v{vXr[0][0]}
v_add_u32 v{vXr[1][0]}, {X1}, v{vXr[0][0]}
v_add_u32 v{vXr[1][1]}, {X1}, v{vXr[0][1]}
v_lshrrev_b32 v{t2}, 3, v{t0}
v_mul_u32_u24 v{kb0}, 3072, v{t2}
v_and_b32 v{t2}, 7, v{t0}
v_lshl_add_u32 v{kb0}, v{t2}, 7, v{kb0}
v_add_u32 v{kb0}, v{kb0}, v{t3}
v_xor_b32 v{vK[0][1]}, 64, v{kb0}
v_add_u32 v{vK[1][0]}, {KW[1]}, v{kb0}
v_add_u32 v{vK[1][1]}, {KW[1]}, v{vK[0][1]}
v_lshrrev_b32 v{t2}, 5, v0
v_mul_u32_u24 v{vb0}, 3072, v{t2}
v_bfe_u32 v{t2}, v0, 2, 3
v_lshl_add_u32 v{vb0}, v{t2}, 7, v{vb0}
v_and_b32 v{t2}, 6, v{t2}
v_bfe_u32 v{t3}, v0, 1, 1
v_xor_b32 v{t2}, v{t2}, v{t3}
v_lshl_add_u32 v{vb0}, v{t2}, 4, v{vb0}
v_and_b32 v{t2}, 1, v0
v_lshl_add_u32 v{vb0}, v{t2}, 3, v{vb0}
v_add_u32 v{vb0}, {VW[0]}, v{vb0}
v_xor_b32 v{vV[0][1]}, 32, v{vb0}
v_xor_b32 v{vV[0][2]}, 64, v{vb0}
v_xor_b32 v{vV[0][3]}, 96, v{vb0}
""") + [I(f"v_add_u32 v{vV[1][i]}, {VW[1]-VW[0]}, v{vV[0][i]}") for i in range(4)] + Is(f"""
s_lshl_b32 s86, s{sWave}, 12
v_lshlrev_b32 v{vO}, 4, v0
v_add_u32 v{vO}, s86, v{vO}
s_cmp_eq_u32 s{sWave}, 3
s_cselect_b32 s86, 0x80000000, 0
v_add_u32 v{vO3}, s86, v{vO}
""")
    P += [I(f"v_mov_b32 v{vL[q]}, 0") for q in range(4)]
    ld = lin(dma_w(0)[3:]) + lin(dma_w(1)) + dma_x(1) + lin(hd(dma_w(2)))
    rest = P; P = P0; nv = 0
    for x in ld:
        P.append(x)
        if x.kind == "vmem":
            nv += 1; c_ = 0
            while rest and nv > OPT["pskip"] and (c_ < 9 or rest[0].text.split()[0] in ("s_addc_u32", "s_subb_u32", "s_cselect_b32", "s_cselect_b64")):
                P.append(rest.pop(0)); c_ += 1
    P += rest + pst(19)
    P += [I(f"buffer_store_dwordx4 {V4(vL[0])}, v{vO}, {S4(sDB)}, 0 offen sc1", dst={"OST"})]
    XALL = lambda n: {f"X{n&1}_{q}" for q in range(4)}
    P += [WAIT(vneed=XALL(0) | {f"L{slot(0)}"})] + reads_x(0) + Is("s_barrier")
    B["pro"] = P + pst(20) + reads_v(0, slot(0))[:NPRE_V] + Is("s_branch K1_ITEM")
    B["item"] = Is("K1_ITEM:") + stamp(0) + [WAIT(lzero=True)]
    NE0 = OPT["ne0"]
    EW = {0: list(range(NE0, 8))}
    rest = list(range(8, 24)); per = [3, 3, 2, 2, 2, 2, 2]
    for n in range(1, 8): EW[n] = rest[:per[n - 1]]; rest = rest[per[n - 1]:]
    NC9 = OPT["nc9"]
    cunits = [(s, qt) for s in range(6) for qt in range(4)]
    cold = dma_k(0, X0) + dma_k(1, slot(2)) + dma_v(0, slot(3)); C8 = 2 if OPT["la1"] else OPT["cw8"]
    cut = lambda p: 10 * (p // 3) + (0, 4, 7)[p % 3]
    pairs = lambda a, b: cold[cut(a):cut(b)]
    for n in range(10):
        own = reads_v(n, slot(n % 4))[NPRE_V:]
        early = []; extra = []; post = []; endx = set()
        if n < 9: nxt = reads_v(n + 1, slot((n + 1) % 4))[:NPRE_V]; nt_ = "v"; pub = slot((n + 1) % 4)
        else: nxt = reads_k(10, X0)[:NPRE_K]; nt_ = "k"; pub = X0
        if n < 8: early += tl(dma_w(n + 2))
        if n == 8: early += pairs(1, 1 + C8)
        if n == 9: early += pairs(2 + C8, 6 if OPT["la1"] else 8)
        if n == 7:
            early += Is(f"""s_mov_b64 {S2(sDA)}, {S2(sK)}
s_mov_b32 s{sDA+2}, 393216
s_mov_b64 {S2(sDB)}, {S2(sV)}
s_mov_b32 s{sDB+2}, 393216
v_mov_b32 v{vD[0]}, v{vDkv}
v_mov_b32 v{vD[1]}, v{vDkv}""")
        if n < 8: early += dma_x(n + 2)
        if (OPT['cpw'] >> n) & 1: early += codepf()
        if n == 8 and OPT["nfl"]:
            fill = Is(f"s_lshl2_add_u32 s88, s{sWg}, s{sWave}\ns_mul_i32 s88, s88, 10240\ns_add_u32 s88, s88, {XCH}")
            fill += [Ins(f"s_add_u32 s80, s{sWsP}, s88\ns_addc_u32 s81, s{sWsP+1}, 0", kind="bar"), Ins(f"s_or_b32 s88, s{sItem}, s{sMode}\ns_cselect_b32 s82, 0, 10240", kind="bar")]
            fill += Is("s_mov_b32 s83, 0x20000\ns_mov_b32 s88, 8192\nv_lshlrev_b32 v36, 4, v0") + [I(f"v_mov_b32 v{32+j}, -1") for j in range(4)]
            st = [I(f"buffer_store_dwordx4 v[32:35], v36, s[80:83], {['0', f's{sT3}', 's88'][q // 4]} offen offset:{(q % 4)*1024} sc1") for q in range(10)]
            extra.append(spread(fill, 4, 34) + spread(st, 36, 95, [BG]))
        if n == 8: post = Is(f"""s_mov_b32 s87, 0xff800000
s_cmp_eq_u32 s{sWave}, 3
s_cselect_b32 s86, 0x71000000, s87
v_mov_b32 v{vMi[0]}, s87
v_mov_b32 v{vMi[1]}, s87
v_mov_b32 v{vMi[2]}, s87
v_mov_b32 v{vMi[3]}, s86""")
        es = []; sts = []; us = EW.get(n, [])
        for u in us:
            e = epi_unit(u, False)
            if OPT["hold"] and u >= us[-1] - 2:
                x = e.pop(); x.after = [e[-1], early[-1]]; sts.append(x)
            es += e
        late0 = n == 0 and NE0 < 6
        if es: extra.append(spread(es, 0, (BG + 14 if late0 else 70) if n == 0 else 90, NOV))
        if sts: extra.append(spread(sts, 72, 96, [BG]))
        if n < 9:
            xr = reads_x(n + 1); st = []
            for q in range(4):
                if q % 2 == 0: st.append(WAIT(vneed={f"X{(n+1)&1}_{q}", f"X{(n+1)&1}_{q+1}"}))
                st += xr[2 * q:2 * q + 2]
            spread(st, 46, BG - 5)
            if n == 0:
                for q in range(4):
                    la = [x for x in es if x.text.endswith(f" a{Oacc(3, q) + 3}")]
                    for it in xr[2 * q:2 * q + 2]:
                        it.after = la
                        if q == 3 and late0: it.lo = BG + 1; it.hi = 88; it.target = BG + 4
                    if la: la[0].hi = BG - 1 if q == 3 and late0 else BG - 8
                endx = regs("a", Xf(1, 0, 0), 32)
            extra.append(st)
        if n == 9:
            pub = {f"L{X0}", "OST"}
        if OPT["kvn"] and n < OPT["kvph"]:
            seq = [(k, i) for i in range(2, 15) for (k, i) in ((0, i + 1), (1, i))] + [(1, 15)]
            tot = OPT["kvn"] * OPT["kvph"]; n1 = min(tot, len(seq)); n2 = tot - n1
            lst = [(1,) + seq[j * len(seq) // n1] for j in range(n1)] + [(0,) + seq[j * len(seq) // n2] for j in range(n2)]
            lst.sort(key=lambda e: seq.index(e[1:]))
            st = []
            if n == 0: st += Is(f"""s_mov_b64 s[84:85], {S2(sK)}
s_mov_b32 s86, {9*393216}
s_mov_b32 s87, 0x20000
s_mov_b64 {S2(sDB)}, {S2(sV)}
s_mov_b32 s{sDB+2}, {9*393216}""")
            body = "\n".join(f"s_mov_b32 s88, {i*TILE + o*8*393216}\nbuffer_load_dword v49, v{vDkv}, {S4(sDB if k else 84)}, s88 offen offset:3328" for (o, k, i) in lst[n * OPT["kvn"]:(n + 1) * OPT["kvn"]])
            st.append(Ins(f"s_cmp_eq_u32 s{sKvn}, 0\ns_cbranch_scc1 K1_KV{n}\n{body}\nK1_KV{n}:", kind="bar"))
            early += st
        if n == 9 and NC9:
            cs = []; sw = []
            for (s, qt) in cunits[:NC9]:
                a, b = cvt_unit(s, qt, False)
                a[0].lo = 16 * s + 8 + 2 * qt + 1 + 8
                for x in b: x.after = [a[-1]]; x.dly = 1
                cs += a; sw += b
            spread(cs, 17, 92, NOV)
            for x in sw: x.target = x.after[0].target + 2
            extra += [cs, sw]
        d = hd(dma_w(n + 3)) if n < 7 else pairs(0, 1) if n == 7 else pairs(1 + C8, 2 + C8) if n == 8 else pairs(6, 7) if OPT['la1'] else pairs(8, 9)
        B[f"w{n}"] = (stamp(8 + n) if OPT["stamps"] == 7 else []) + phase(f"w{n}", n, "v", mf_w(n), own, nxt, nt_, pub, early, d, extra, early_hi=70, post=post, endx=endx)
    C = stamp(1); pend = []
    for k, (s, qt) in enumerate(cunits[NC9:]):
        a, b = cvt_unit(s, qt, True)
        C += a[:4] + pend + a[4:]; pend = b
    C += Is(f"s_cmp_lg_u32 s{sMode}, 0\ns_nop 0") + pend + Is("s_cbranch_scc1 K1_MAXPASS\nK1_MAXRET:\ns_nop 0") + stamp(2)
    B["cvt"] = C
    M = []; last = []
    for qt in range(4):
        x = XY(0, 0, qt); m = vT + 2 * qt; t = m + 1
        a = I(f"v_max3_f32 v{m}, v{x}, v{x+1}, v{x+2}", lo=6 * qt + 13)
        b = I(f"v_max3_f32 v{m}, v{m}, v{x+3}, v{vMi[qt]}")
        c_ = I(f"v_mov_b32 v{t}, v{m}")
        d = I(f"v_permlane16_swap_b32 v{m}, v{t}", after=[c_], dly=1)
        e = I(f"v_max_f32 v{m}, v{m}, v{t}")
        f = I(f"v_mov_b32 v{t}, v{m}")
        g = I(f"v_permlane32_swap_b32 v{m}, v{t}", after=[f], dly=1)
        h = I(f"v_max_f32 v{m}, v{m}, v{t}")
        ns = [I(f"v_sub_f32 v{negm(qt)+i}, 0, v{m}", hi=48 + 6 * qt - 3) for i in range(4)]
        st = [a, b, c_, d, e, f, g, h] + ns
        for j, it in enumerate(st): it.target = 6 * qt + 13 + j * 0.5
        M.append(st); last.append(ns[0])
    NA0 = OPT['na0']
    sm = softmax([(0, 0, qt, 0, 24 + 6 * qt + 13, 95, True) for qt in range(NA0)], 28, 93, sub=last)
    early = Is(f"""s_mov_b32 s{sA}, {3*TILE}
s_mov_b32 s{sB}, {TILE if OPT["la1"] else 2*TILE}
s_mov_b32 s{sI}, 0
s_add_u32 s{sO}, s{sO}, {OSTRIDE}
s_addc_u32 s{sO+1}, s{sO+1}, 0
s_mov_b32 s{sO+2}, s{sOn}
s_mov_b32 s{sOn}, {5*122880+15*1024}""") + (pairs(7, 9) if OPT["la1"] else dma_k(2, slot(0)))
    hand = Is(f"""v_mov_b32 v30, 1
s_and_b32 s80, s{sWg}, 1
s_lshl_b32 s80, s80, 2
s_add_u32 s80, s80, s{sCo}
s_cmp_eq_u32 s{sAll}, 0
s_cselect_b32 s81, s{sItem}, 0
s_cmp_lt_u32 s{sSig}, s81
s_cselect_b32 s80, s80, 0x1000
s_cselect_b32 s{sSig}, 1, s{sSig}
s_cmp_eq_u32 s{sWave}, 0
s_cselect_b32 s80, s80, 0x1000""") + [atomic(30, 80)]
    B["qk0"] = phase("qk0", 10, "k", mf_qk(10, 0, True), reads_k(10, X0)[NPRE_K:], reads_k(11, slot(2))[:NPRE_K], "k", slot(2), early,
                     hd(dma_k(2, slot(0)) if OPT['la1'] else dma_v(1, slot(1))), M + sm, early_hi=70) + stamp(3)
    def half(nm, par, mode, xq=0, xp=0):
        ks, vs, kn, vp = slot(2 * par), slot(2 * par + 1), slot(2 - 2 * par), slot(3 - 2 * par)
        kd = lambda: dma(sDA, sA, ks, OPT["nt_kv"])
        vd = lambda b: dma(sDB, sB, b, OPT["nt_kv"])
        last = mode == "last"; first = mode == "first"
        if first: early = tl(dma_v(1, slot(1)))
        elif last and par: early = tl(dma_n(0)) + dma_x(0)
        else: early = (codepf() if par == 0 and not last else []) + tl(vd(vp)) + Is(f"s_add_u32 s{sB}, s{sB}, {TILE}")
        if OPT["la1"]:
            if first: early = tl(dma_k(2, slot(0)))
            elif not (last and par): early = (codepf() if par == 0 and not last else []) + tl(dma(sDA, sA, kn, OPT["nt_kv"])) + Is(f"s_add_u32 s{sA}, s{sA}, {TILE}")
            if last and par == 0: early += dma_v(14, vp)[:7]
        if last and par == 0:
            early += Is(f"""s_mov_b64 {S2(sX)}, {S2(sXn)}
s_mov_b32 s{sX+2}, s{sXnum}
s_cmp_eq_u32 s{sItem}, 1
s_cselect_b32 s{sXk}, {(-128*1280) & 0xffffffff}, s{sXk}
s_cselect_b32 s{sXst}, {128*1280}, s{sXst}
s_movk_i32 s80, 0x70
v_lshrrev_b32 v30, 3, v0
v_mul_u32_u24 v30, 1280, v30
v_and_or_b32 v30, v{vDw}, s80, v30
v_cndmask_b32 v{vDx}, v{vDx}, v30, {S2(sMask)}""") + codepf()
        mp = mf_pv(12, 1 - par, first) + mf_l(1 - par, first) + (mf_l(1) if last and par else [])
        NP_ = len(mp)
        gq = g_old(1 - par, 1, range(4), 96, True); gp = g_old(par, 0, range(4), NP_, False); hq = BG - 2
        if first: gq = [g[:6] + (True,) for g in g_old(0, 0, range(NA0, 4), 96, True)] + gq; hq = 88
        if last and par == 0:
            gq = gq + g_new(0, [0]); hq = 93
            gp = g_old(0, 0, [1, 2, 3], NP_, False) + g_old(0, 1, [0, 1], NP_, False)
        if last and par:
            gq = g_old(0, 1, [2, 3], 96, True) + g_new(1, [0, 1, 2]); hq = 93
            gp = [(1, 0, 3, 0, 0, 101, False)] + [(1, 1, qt, 4, 6, 105 + qt, False) for qt in range(4)]
        def burst(gs):
            if not gs: return []
            P_, E, D = softmax(gs, 0, 90); out = list(P_)
            for j in range(0, len(E), 2):
                out += E[j:j + 2] + (D[j // 2 - 1:j // 2] if j else [])
            return out + Is("s_nop 0") + D[-1:]
        bq = burst(gq[:xq]); gq = gq[xq:]; bp = burst(gp[:xp]); gp = gp[xp:]
        qtile = (lambda: dma_n(1) if par else dma_v(15, X1)) if last else kd
        tq = hd(qtile())
        if OPT["la1"] and not (last and par): tq = dma_v(14, vp)[7:] if last else hd(vd(vp))
        q = bq + phase("qk" + nm, 11, "k", mf_qk(11, par), reads_k(11, ks)[NPRE_K:], reads_v(12, vs)[:NPRE_V], "v", vs, early, tq,
                  softmax(gq, 0, hq), early_hi=72)
        post = []
        if par and mode == "loop": post += Is(f"s_add_u32 s{sI}, s{sI}, 1\ns_or_b32 s80, s{sSel}, 0x40\ns_bitcmp0_b32 s80, s{sI}")
        early = tl(qtile()) + ([] if last else Is(f"s_add_u32 s{sA}, s{sA}, {TILE}"))
        if OPT["la1"] and not (last and par): early = dma_v(15, X1) if last else tl(vd(vp)) + Is(f"s_add_u32 s{sB}, s{sB}, {TILE}")
        if OPT["adp"] and mode == "loop" and (xq or xp):
            early = early + Is(f"s_getreg_b32 s80, hwreg(HW_REG_IB_STS, 0, 4)\ns_cmp_ge_u32 s80, {OPT['adp']}\ns_addc_u32 s{sBk}, s{sBk}, 0")
        sel = []
        if first:
            early = hand + early
            if OPT["tw"] & 2: early = early + Is(f"v_mul_u32_u24 v30, 122880, v0") + [I(f"buffer_load_dword v30, v30, {S4(sO)}, 0 offen sc1", dst={"v30"})]
            sel = Is("v_and_b32 v47, 3, v0\nv_mov_b32 v46, 0x3f803f80")
            for qt in range(4):
                c_ = I(f"v_cmp_eq_u32 s[86:87], {qt}, v47")
                sel += [c_, I(f"v_cndmask_b32 v{32+4*qt}, 0, v46, s[86:87]", after=[c_], dly=1)] + [I(f"v_mov_b32 v{32+4*qt+j}, v{32+4*qt}") for j in range(1, 4)]
            sel = [spread(sel, 2, 92, NOV)]
        if last and par == 0:
            early += Is(f"""s_mov_b64 {S2(sDA)}, {S2(sNb)}
s_mov_b32 s{sDA+2}, s{sNnum}
s_cmp_eq_u32 s{sItem}, 1
s_cselect_b32 s{sWk}, {(-TILE) & 0xffffffff}, s{sWk}
s_cselect_b32 s{sNs}, {TILE}, s{sNs}
v_cndmask_b32 v{vD[0]}, v{vDw}, v{vDkv}, {S2(sMask)}
v_add_u32 v{vD[1]}, s{sNd}, v{vD[0]}""")
        d = hd(dma_n(2 * par) if last else kd() if OPT['la1'] else vd(vs))
        if last and par:
            nxt, nty, pub = reads_v(41, X1)[:NPRE_V], "v", X1
            x = pf(); early += x[:4]; d += x[4:] + [I(f"buffer_load_dwordx2 v[{vPoll}:{vPoll+1}], off, {S4(sDb)}, s{sCp} sc1", dst=regs("v", vPoll, 4))]
        else: nxt, nty, pub = reads_k(11, kn)[:NPRE_K], "k", kn
        p = bp + phase("pv" + nm, 12, "v", mp, reads_v(12, vs)[NPRE_V:], nxt, nty, pub, early, d,
                  softmax(gp, 0, NP_ - (7 if last and par else 3)) + sel, post=post, early_hi=72)
        pad = lambda: Is("\n".join(["s_nop 3"] * OPT["padn"]))
        if OPT["padi"]: return q + Is(f"s_cmp_lg_u32 s{sItem}, {OPT['padi']-1}\ns_cbranch_scc1 K1_KVP{nm}") + pad() + pad() + Is(f"K1_KVP{nm}:") + p
        return q + pad() + p + pad()
    two = OPT["xq"] or OPT["xp"]
    B["peel"] = half("1", 1, "first", OPT["pq"], OPT["pp"]) + (Is(f"s_bitcmp1_b32 s{sSel}, 0\ns_cbranch_scc1 K1_LA") if two else [])
    st = lambda: stamp(-1) if OPT["stamps"] in (4, 6) else []
    B["loop"] = Is(".p2align 6\nK1_L:") + st() + half("e", 0, "loop") + half("o", 1, "loop") + Is("s_cbranch_scc1 K1_L")
    B["loope"] = Is(f"s_cmp_lg_u32 s{sI}, 6\ns_cbranch_scc1 K1_LA\nK1_LX:") if two else []
    B["loopa"] = Is(".p2align 6\nK1_LA:") + st() + half("ea", 0, "loop", OPT["xq"], OPT["xp"]) + half("oa", 1, "loop", OPT["xq"], OPT["xp"]) + Is("s_cbranch_scc1 K1_L") if two else []
    B["loopx"] = Is(f"s_cmp_lg_u32 s{sI}, 6\ns_cbranch_scc1 K1_LA\ns_branch K1_LX") if two else []
    B["last"] = (stamp(-1) if OPT["stamps"] in (4, 6) else []) + half("14", 0, "last", OPT["lq"], OPT["lp"]) + half("15", 1, "last")
    B["tail"] = stamp(4)
    B15 = OPT["bg15"]
    R = [I(f"v_rcp_f32 v{RCP+2*q}, v{vL[q]}", lo=7) for q in range(4)] + [I(f"v_cmp_ngt_f32 {S2(80+2*q)}, s{sThr}, v{vL[q]}") for q in range(4)]
    spread(R, 7, 17)
    for it in R: it.hi = 95
    es = []; sts = []; dx1 = dma_x(1)
    for u in range(NE0):
        e = epi_unit(u, False); e[0].lo = 16 * (u // 4) + 2 * (u % 4) + 1 + 8; e[10].lo = e[0].lo + 8
        if OPT["hold"] and u >= NE0 - 3:
            x = e.pop(); x.after = [e[-1], dx1[-1]]; x.target = 92; sts.append(x)
        es += e
    spread(es, 15, 94, range(B15, B15 + 9))
    fl = Is(f"""s_or_b64 s[80:81], s[80:81], s[82:83]
s_or_b64 s[84:85], s[84:85], s[86:87]
s_or_b64 s[80:81], s[80:81], s[84:85]
s_or_b32 s80, s80, s81
s_or_b32 s{sFlag}, s{sFlag}, s80
s_lshl_b32 s80, s{sWave}, 2
s_add_u32 s80, s80, {FLO}
v_mov_b32 v160, s80
v_mov_b32 v161, s{sFlag}
v_mov_b32 v162, {FLO}""") + [Ins("ds_write_b32 v160, v161")]
    fl[-1].cost = 8
    fl[0].after = [x for x in R if x.text.startswith("v_cmp")][-1:]; fl[0].dly = 2
    early = fl
    f1 = I(f"ds_read_b128 {V4(164)}, v162", dst=regs("v", 164, 4), lo=B15 + 1, target=B15 + 3)
    f2 = WAIT(lneed=regs("v", 164, 4), lo=88, target=88)
    f3 = Is("v_or_b32 v164, v164, v165\nv_or3_b32 v164, v164, v166, v167")
    f4 = I(f"v_readfirstlane_b32 s{sAll}, v164", after=[f3[1]])
    for x in f3 + [f4]: x.target = 89
    B["pv15"] = phase("pv15", 41, "v", mf_pv(41, 1), reads_v(41, X1)[NPRE_V:], reads_v(0, slot(0))[:NPRE_V], "v", {f"L{slot(0)}", f"L{slot(2)}"} | XALL(0),
                      early, dx1, [R + es, [f1, f2] + f3 + [f4], sts], bg=B15, dend=90 if OPT['hold'] else None) + stamp(5)
    B["br"] = stamp(6) + Is(f"s_cmp_lg_u32 s{sMode}, 0\ns_cselect_b32 s{sAll}, 0, s{sAll}\ns_cmp_eq_u32 s{sItem}, 0\ns_cbranch_scc1 K1_MID")
    B["mid"] = Is("K1_MID:") + reads_x(0) + Is(f"""s_mov_b32 s{sItem}, 1
s_mov_b32 s{sCp}, s{sCo}
s_cmp_ge_u32 s{sBk}, {OPT['adn']}
s_cselect_b32 s{sSel}, 63, {OPT['m1']}
s_mov_b64 {S2(sXn)}, {S2(sWoP)}
s_mov_b32 s{sXnum}, s{sK2n}
s_mov_b64 {S2(sNb)}, {S2(sN2)}
s_mov_b32 s{sNnum}, {2*TILE*OPT['wop']}
s_mov_b32 s{sNd}, 0
s_mov_b64 {S2(sMask)}, -1
s_add_u32 s{sP1}, s{sN2}, {2*TILE}
s_addc_u32 s{sP1+1}, s{sN2+1}, 0
s_mov_b32 s{sP1+2}, {12288*OPT['wop']}
s_lshl_b32 s{sPfo}, s{sWave}, 11
s_add_u32 s{sK}, s{sK}, {16*393216}
s_addc_u32 s{sK+1}, s{sK+1}, 0
s_add_u32 s{sV}, s{sV}, {16*393216}
s_addc_u32 s{sV+1}, s{sV+1}, 0""")
    k2tr, k2lay = oproj(B, NE0); k2trace = k2tr[0]; k2idle = ["k2pro", "k2idle"]
    X = Is(f"""K1_MAXPASS:
v_and_b32 v{vT}, 15, v0
v_lshrrev_b32 v{vT+1}, 4, v0
v_mul_u32_u24 v{vT}, 384, v{vT}
v_lshl_add_u32 v{vT}, v{vT+1}, 4, v{vT}
s_mov_b32 s{sT}, 0""") + [I(f"v_mov_b32 v{vMi[q]}, 0xff800000") for q in range(4)] + Is("K1_MAXL:")
    for s in range(6): X.append(I(f"buffer_load_dwordx4 {V4(SP+4*s)}, v{vT}, {S4(sDA)}, s{sT} offen offset:{s*64}"))
    X.append(I("s_waitcnt vmcnt(0)"))
    for qt in range(4):
        for s in range(6): X.append(mfma(V4(SP + 32 + 4 * qt), V4(SP + 4 * s), V4(Qf(qt, s)), V4(SP + 32 + 4 * qt) if s else "0"))
    X.append(I("s_nop 7"))
    for qt in range(4):
        d = SP + 32 + 4 * qt
        X += Is(f"v_max3_f32 v{vMi[qt]}, v{vMi[qt]}, v{d}, v{d+1}\nv_max3_f32 v{vMi[qt]}, v{vMi[qt]}, v{d+2}, v{d+3}")
    X += Is(f"s_add_u32 s{sT}, s{sT}, 6144\ns_cmp_lt_u32 s{sT}, 393216\ns_cbranch_scc1 K1_MAXL\ns_branch K1_MAXRET")
    B["maxpass"] = X
    item = ["item"] + [f"w{n}" for n in range(10)] + ["cvt", "qk0", "peel"] + ["loop"] * 6 + ["last", "tail", "pv15", "br"]
    k_ = item.index("loop")
    item0 = item[:k_] + ["loopa", "loopa", "loop", "loopa", "loop", "loopa"] + item[k_ + 6:] if two else item
    if not two: assert OPT["me"] == 0 and OPT["mo"] == 0
    trace = ["entry", "pro"] + item0 + ["mid"] + item + k2trace
    layout = ["entry", "pro", "mid", "item"] + [f"w{n}" for n in range(10)] + ["cvt", "qk0", "peel", "loop", "loope", "last", "tail", "pv15", "br", *k2lay, "loopa", "loopx", "k2side", "k2idle", "maxpass"]
    for t_ in k2tr: resolve_waits(B, trace[:-5] + t_)
    for it in B["loop"] + B["peel"]:
        if it.text == "WAITBAR": it.vcnt = min(it.vcnt, OPT["vmx"])
    txt = {k: "\n".join(emit(v)).split("\n") for k, v in B.items()}
    errs = verify([l for b in trace for l in txt[b]])
    tr2 = ["entry", "pro"] + item[:12] + ["maxpass", "maxpass"] + item[12:]
    errs += verify([l for b in tr2 for l in txt[b]])
    errs += verify([l for b in ["entry", "pro"] + item + ["mid"] + item + k2idle for l in txt[b]])
    for t_ in k2tr:
        errs += verify([l for b in item[-4:] + t_ for l in txt[b]])
        errs += verify([l.replace("K1_KVX", "K2_X") for b in t_ for l in txt[b]])
        errs += verify([l for b in t_[:4] + ["k2wx" + t_[-1][-1], t_[-1]] for l in txt[b]])
    for e in errs: sys.stderr.write("K1 HAZARD " + e + "\n")
    return [l for b in layout for l in txt[b]], errs

def oproj1(B, NE0, X, N):
    vR = [[1, 2, 3, 4], [5, 6, 7, 8]]; vOf = 9; vSt = 10; vFl = 11; vRd = 12; t0, t1, t2, t3 = 13, 14, 15, 16; vP2 = 17; vLp = 18; vOne = 19
    KS = [X0, X1, RING]; EX = 65536; SEL = 32
    uq = lambda u: [("a", Oacc(2 * (u // 4) + h, u % 4)) for h in range(2)]
    OF = {}
    def Of(d, kb, qt): return OF[d, kb, qt]
    M = OPT["mrg"] - (N & 1); DM = N - M; MD = list(range(DM, N)); U = (N - 1) >> 1
    src = lambda d: (d, 0) if d < 24 else (d - (N - 24), 1)
    NT = OPT["k2n"]; u0 = max(NE0 + OPT["k2e"], 11); left = list(range(u0, 24))
    frs = [(d, kb, qt) for d in range(N) for kb in range(2) for qt in range(5)]
    A0 = OPT["adv0"]; rate = (10 * N - 15 - 10 * A0) / (DM - 1 - A0 + OPT["advf"] / 100.0)
    cum = lambda d: 15 + 10 * (d + 1) if d < A0 else min(10 * N, int(round(15 + 10 * A0 + rate * (d + 1 - A0))))
    OS = {d: frs[(cum(d - 1) if d >= 0 else 0):cum(d)] for d in range(-1, DM)}
    pool = [("v", 224 + 4 * i) for i in range(8)] + [q for u in range(u0) for q in uq(u)]
    for d in range(-1, DM):
        for f in OS[d]: OF[f] = pool.pop(0)
        if d >= 0: pool += [OF[d, kb, qt] for kb in range(2) for qt in range(5)] + [q for u in left[d * NT:(d + 1) * NT] for q in uq(u)]
    RDQ = pool
    CK = {min(d for d in OS if any(f[0] >= m for f in OS[d])): m for m in (12, 24) if m < N}
    R4 = lambda r: f"{r[0]}[{r[1]}:{r[1]+3}]"
    Oset = lambda d, kbs=(0, 1): set().union(*[regs(*Of(d, kb, qt), 4) for kb in kbs for qt in range(5)])
    def acc(t, qt): return 64 + 4 * (t * 5 + qt)
    def wq(f): return 192 + 4 * (f % 16)
    sW_ = sX; sOo = 8; sOut = 12; sXs = 20; sFl = 28
    sTt = 46; sC1 = 51; sC1w = 50; sXo = [32, 33, 34, 35]; sTs = 39; sXr = 24; sGx = 40; sGs = 54; sFo = 55
    def wdma(u, h):
        d_, fo = src(2 * u)
        off = (d_ * 64 + (3072 - 768 if d_ >= 12 else 0) + fo * 1536) * 1280
        out = [I(f"s_add_u32 m0, s{sXoff}, {KS[u % 3] + h*4096}")]
        for j in range(4 * h, 4 * h + 4):
            out += [I(f"s_mov_b32 s{sTt}, {off + j*10240 - (j % 4)*1024}"),
                    I(f"buffer_load_dwordx4 v{vDx}, {S4(sW_)}, s{sTt} offen offset:{(j % 4)*1024} lds", dst={f"X{u%3}_{j>>1}"})]
        return out
    Wt = lambda u: {f"X{u%3}_{q}" for q in range(4)}
    def oload(fs):
        out = []; cur = None
        for (d, kb, qt) in fs:
            off = (2 * src(d)[0] + kb + 96 * src(d)[1]) * 122880 + (qt // 4) * 4096
            if off != cur: out.append(I(f"s_mov_b32 s{sTt}, {off}")); cur = off
            out.append(I(f"buffer_load_dwordx4 {R4(Of(d, kb, qt))}, v{vOf}, {S4(sOo)}, s{sTt} offen offset:{(qt % 4)*1024} sc1", dst=regs(*Of(d, kb, qt), 4)))
        return out
    def wreads(ds):
        out = []; f = 0
        for t in range(8):
            for d in ds:
                base = KS[(d >> 1) % 3]; w = 1 if base == X1 else 0
                for kb in range(2):
                    r = wq(f)
                    for hf in range(2):
                        it = I(f"ds_read_b64_tr_b16 a[{r+2*hf}:{r+2*hf+1}], v{vR[w][t & 3]} offset:{base - w*X1 + (d & 1)*16384 + (t >> 2)*8192 + (4*kb+2*hf)*1024}", dst=regs("a", r + 2 * hf, 2)); it.f = f
                        out.append(it)
                    f += 1
        return out
    NP = 8; G = 60
    P = [WAIT(vneed=regs("v", vPoll, 4))] + Is(f"""
v_min_u32 v{t0}, v{vPoll}, v{vPoll+1}
s_cmp_lg_u32 s{sAll}, 0
v_readfirstlane_b32 s89, v{t0}
s_cbranch_scc1 K1_REDO
v_lshlrev_b32 v{vOf}, 4, v0
s_mov_b64 {S2(sOo)}, {S2(sK2O)}
s_mov_b32 s{sOo+2}, {143*122880+5*1024}
s_mov_b32 s{sOo+3}, 0x20000
s_cmp_lt_u32 s89, 32
s_cbranch_scc1 K2_SPIN0
K2_RET0:
s_cmp_ge_u32 s{sWg}, 240
s_cbranch_scc1 K2_IDLE""")
    B["k2pro"] = P
    common = lambda: Is(f"""
s_and_b32 s{sC1}, s{sWg}, 7
s_lshl_b32 s{sC1}, s{sC1}, 7
s_add_u32 s{sC1}, s{sC1}, 64
s_cmp_eq_u32 s{sWave}, 0
s_cselect_b32 s{sC1w}, s{sC1}, 0x10000
s_add_u32 s{sFl}, s{sWsP}, {FLG}
s_addc_u32 s{sFl+1}, s{sWsP+1}, 0
s_mov_b32 s{sFl+2}, {256*128}
s_mov_b32 s{sFl+3}, 0x20000
v_mov_b32 v{vOne}, 1
v_mov_b32 v{RCP+1}, v{RCP}
v_mov_b32 v{RCP+3}, v{RCP+2}
v_mov_b32 v{RCP+5}, v{RCP+4}
v_mov_b32 v{RCP+7}, v{RCP+6}""")
    r0 = vR[0][0]
    assert NE0 >= 4
    ld = oload(OS[-1])
    H = Is(f"""
v_lshrrev_b32 v{t2}, 5, v0
v_lshlrev_b32 v{r0}, 10, v{t2}
v_bfe_u32 v{t2}, v0, 2, 3
v_lshl_add_u32 v{r0}, v{t2}, 7, v{r0}
v_and_b32 v{t2}, 6, v{t2}
v_bfe_u32 v{t3}, v0, 1, 1
v_xor_b32 v{t2}, v{t2}, v{t3}
v_lshl_add_u32 v{r0}, v{t2}, 4, v{r0}
v_and_b32 v{t2}, 1, v0
v_lshl_add_u32 v{r0}, v{t2}, 3, v{r0}
s_andn2_b32 s88, 8, s{sWg}
s_lshl_b32 s88, s88, 3
v_xor_b32 v{r0}, s88, v{r0}
v_xor_b32 v{vR[0][1]}, 32, v{r0}
v_xor_b32 v{vR[0][2]}, 64, v{r0}
v_xor_b32 v{vR[0][3]}, 96, v{r0}""") + wreads([0])[:NP] + [I(f"v_add_u32 v{vR[1][i]}, {X1}, v{vR[0][i]}") for i in range(4)] + common()
    pair = lambda a, b: Ins(a + "\n" + b, kind="bar")
    late = Is(f"""
s_mov_b64 {S2(sOut)}, {S2(sOutP)}
s_mov_b32 s{sOut+2}, {79*2560+64}
s_mov_b32 s{sOut+3}, 0x20000""") + [pair(f"s_add_u32 s{sXs}, s{sWsP}, {XCH}", f"s_addc_u32 s{sXs+1}, s{sWsP+1}, 0")] + Is(f"""
s_mov_b32 s{sXs+2}, {960*15360}
s_mov_b32 s{sXs+3}, 0x20000
s_lshl2_add_u32 s88, s{sWg}, s{sWave}
s_mul_i32 s{sXo[0]}, s88, 15360
s_xor_b32 s89, s88, 32
s_mul_i32 s{sXo[1]}, s89, 15360
s_xor_b32 s89, s88, 4
s_mul_i32 s{sXo[2]}, s89, 15360
s_xor_b32 s89, s88, 36
s_mul_i32 s{sXo[3]}, s89, 15360
s_mul_i32 s88, s{sWave}, 5120
s_add_u32 s88, s88, {EX}
v_add_u32 v{vRd}, s88, v{vOf}
v_and_b32 v{t0}, 15, v0
v_lshrrev_b32 v{t1}, 4, v0
v_lshl_add_u32 v{t2}, v{t0}, 2, v{t1}
v_lshlrev_b32 v{t2}, 4, v{t2}
v_add_u32 v{vLp}, s88, v{t2}
v_lshlrev_b32 v{t1}, 2, v{t1}
v_sub_u32 v{t0}, v{t0}, v{t1}
v_and_b32 v{t1}, 1, v{t0}
v_lshlrev_b32 v{t1}, 4, v{t1}
v_mov_b32 v{t2}, 0x3f80
v_lshlrev_b32 v{t1}, v{t1}, v{t2}
v_lshrrev_b32 v{t0}, 1, v{t0}""")
    c0 = I(f"v_cmp_eq_u32 s[84:85], 0, v{t0}"); c1 = I(f"v_cmp_eq_u32 s[86:87], 1, v{t0}")
    late += [c0, c1, I(f"v_mov_b32 v{SEL+2}, 0"), I(f"v_mov_b32 v{SEL+3}, 0"), I(f"v_cndmask_b32 v{SEL}, 0, v{t1}, s[84:85]"), I(f"v_cndmask_b32 v{SEL+1}, 0, v{t1}, s[86:87]")]
    late += Is(f"""v_mov_b32 v{SEL+4}, 0
v_mov_b32 v{SEL+5}, 0
v_mov_b32 v{SEL+6}, v{SEL}
v_mov_b32 v{SEL+7}, v{SEL+1}
v_lshrrev_b32 v{t0}, 2, v0
v_and_b32 v{t1}, 3, v0
v_mul_u32_u24 v{vSt}, 2560, v{t0}
v_lshl_add_u32 v{vSt}, v{t1}, 4, v{vSt}
v_min_u32 v{t1}, 2, v0
v_add_u32 v{t1}, 1, v{t1}
v_and_b32 v{t0}, 1, v{t1}
v_lshrrev_b32 v{t1}, 1, v{t1}
v_lshl_or_b32 v{t0}, v{t0}, 3, v{t1}
v_xor_b32 v{t0}, s{sWg}, v{t0}
v_lshlrev_b32 v{vFl}, 7, v{t0}
v_min_u32 v{t1}, 2, v0
v_lshl_add_u32 v{vFl}, v{t1}, 2, v{vFl}
s_add_u32 s{sXo[2]}, s{sXo[2]}, 5120
s_add_u32 s{sXo[3]}, s{sXo[3]}, 10240
s_mov_b32 s{sGx}, 0
s_lshl_b32 s{sFo}, s{sWg}, 7""") + [pair(f"s_cmp_eq_u32 s{sWave}, 0", f"s_cselect_b32 s{sFo}, s{sFo}, 0x10000")] + Is("""""") + (Is("v_mov_b32 v22, v31\nv_mov_b32 v23, v31") if OPT["stamps"] else [])
    held = {0: []}
    for u in range(NE0, u0):
        e = epi_unit(u, True, True)
        if u >= u0 - NT: held[0].append(e.pop())
        H += e
    H0 = H; H = []; gap = OPT["hgap"]
    for k, x in enumerate(H0):
        if k % gap == 0:
            while ld:
                y = ld.pop(0); H.append(y)
                if y.kind == "vmem": break
        H.append(x)
    H += ld + [WAIT(lneed=regs("a", wq(0), 8), vneed=Oset(0))] + stamp(49)
    body = {}
    for d in range(N):
        body[d] = []; held[d + 1] = []
        for u in left[d * NT:(d + 1) * NT]:
            e = epi_unit(u, False, True); held[d + 1].append(e.pop()); body[d] += e
    SG = (max(d for d in held if held[d]) + 1) | (0 if OPT['sge'] else 1)
    assert SG <= 7
    poll = f"buffer_load_dword v{t2}, v{vFl}, {S4(sFl)}, 0 offen sc1"
    RD = lambda rho, qt: RDQ[qt * 3 + rho - 1]
    def rload(rho, so):
        out = []
        for qt in range(5):
            if qt == 4: out.append(I(f"s_add_u32 s{sTt}, s{so}, 4096"))
            out.append(I(f"buffer_load_dwordx4 {R4(RD(rho, qt))}, v{vOf}, {S4(sXs)}, s{sTt if qt == 4 else so} offen offset:{(qt % 4)*1024} sc1", dst=regs(*RD(rho, qt), 4)))
        return out
    radd = lambda rhos, qt: [mfma(V4(acc(6 + h, qt)), V4(SEL + 4 * h), R4(RD(rho, qt)), V4(acc(6 + h, qt))) for h in range(2) for rho in rhos]
    flag = lambda off: Ins(f"s_mov_b64 exec, 1\nbuffer_store_dword v{vOne}, off, {S4(sFl)}, s{sFo} offset:{off} sc1\ns_mov_b64 exec, -1", kind="vmem")
    def mfs(ds):
        mf = []; n = 2 * len(ds)
        for t in range(8):
            for qt in range(5):
                ks = [(i, d, kb) for i, (d, kb) in enumerate((d, kb) for d in ds for kb in range(2))]
                if qt & 1 and len(ds) > 1: ks.reverse()
                for (i, d, kb) in ks:
                    a = acc(t, qt)
                    mf.append(mfma(V4(a), A4(wq(n * t + i)), R4(Of(d, kb, qt)), "0" if (d == 0 and kb == 0) else V4(a)))
        return mf
    def step(d):
        own = wreads([d])[NP:]; pre = d == DM - 1
        nx = MD if pre else [d + 1]
        nxt = wreads(nx)[:max(NP, 4 * len(nx))]
        hasb = (d & 1) or pre or d == SG
        ws = [WAIT(lneed=regs("a", wq(2 * t), 8), lo=10 * t - 3, hi=10 * t - 1, target=10 * t - 2) for t in range(1, 7 if hasb else 8)]
        ws.append(WAIT(lneed=regs("a", wq(0), 8 * len(nx)), vneed=set().union(*[Oset(x) for x in nx]), lo=78, hi=79, target=78.5))
        g = G - 6 if pre and M > 2 else G
        spread(own, 0, g - 6)
        for it in own: it.hi = min(it.hi, 10 * (it.f >> 1) - 7); it.target = min(it.target, it.hi - 1)
        rs = own; nov = ()
        if hasb:
            bar = BAR(Wt(U if pre else (d + 1) >> 1) | ({"OST"} if d == SG else set()), lo=g, hi=g); rs = rs + [bar]; nov = range(g, g + 9)
            for it in nxt: it.after = [bar]
        spread(nxt, g + 1, 73 if pre else 76)
        vm = []
        cadr = lambda m: f"s{sC1}" + (" offset:128" if m == 24 else "")
        if d in CK: vm += [I(f"buffer_load_dword v{vP2}, off, {S4(sFl)}, {cadr(CK[d])} sc1", dst={f"v{vP2}"})]
        if d % 4 == 3 or pre: vm += codepf()
        fs = OS[d]; k2_ = len([f for f in fs if f[0] < CK.get(d, 99)]); k = min(5, k2_)
        vm += oload(fs[:k]) + held[d]
        for x in WS.get(d, []): vm += wdma(*x)
        if d in CK:
            vm += oload(fs[k:k2_]); k = k2_
            rf = I(f"v_readfirstlane_b32 s88, v{vP2}")
            ck = [WAIT(vneed={f"v{vP2}"}), rf, Ins(f"s_cmp_lt_u32 s88, 32\ns_cbranch_scc1 K2_SPIN{CK[d]}{X}\nK2_RET{CK[d]}{X}:", kind="bar", after=[rf], dly=2)]
            n1 = len(vm); vm += ck
        vm += oload(fs[k:])
        if d == SG:
            at = atomic(vOne, sC1w, sFl); at.after = [bar]; vm.append(at)
        if d in CK:
            n_a = sum(x.kind == "vmem" for x in vm[:n1]); n_b = sum(x.kind == "vmem" for x in vm[n1:])
            c_ = max(OPT["ckg"], int(76 * n_a / (n_a + n_b)) - 4)
            if hasb and g - 5 < c_ < g + 9: c_ = g + 9 if n_b <= 3 else g - 5
            even(vm[:n1], 0, c_, [g]); even(vm[n1 + 3:], c_ + 5, 80, [g])
            for x in ck: x.lo = c_; x.target = c_; x.hi = c_ + 4
        else: even(vm, 0, int(0.8 * OPT["advf"]) if pre else 80, [g])
        es = body[d]
        if es:
            for k in range(len(es) // 20): es[20 * k].after = [held[d][k]] if NT == 3 else held[d][-1:]; es[20 * k].dly = 1
            spread(es, held[d][0].lo + 2, 79, nov)
        if d == 14: es = spread(late, 0, 79); assert d not in CK
        return schedule(mfs([d]), [ws, rs + nxt, vm, es], novalu=nov, name=f"k2s{d}{X}") + (stamp(50) if d == 5 else stamp(47, True) if d == 13 else stamp(56) if pre else [])
    WS = {d: [((d >> 1) + 2, d & 1)] for d in range(2 * (U - 1))}
    if 2 * U - 3 >= DM - 1: WS[2 * U - 4] += WS.pop(2 * U - 3)
    assert max(WS) < DM - 1
    def final():
        n = 2 * M; T = 5 * n
        own = wreads(MD)[max(NP, 2 * n):]
        for it in own:
            t, i = divmod(it.f, n)
            it.target = T * (t - 1) + i * (T - 9) / n; it.hi = T * t - 7
            if it.f >= 16: it.lo = T * ((it.f - 16) // n) + 4 * n + (it.f - 16) % n
        ws = [WAIT(lneed=set().union(*[regs("a", wq(n * t + i), 4) for i in range(n)]), lo=T * t - 3, hi=T * t - 1, target=T * t - 2) for t in range(1, 8)]
        sn = []
        for jl in range(3):
            for qt in range(5):
                a, b = acc(2 * jl, qt), acc(2 * jl + 1, qt)
                c = Is(f"""v_cvt_pk_bf16_f32 v{a}, v{a}, v{a+1}
v_cvt_pk_bf16_f32 v{a+1}, v{a+2}, v{a+3}
v_cvt_pk_bf16_f32 v{a+2}, v{b}, v{b+1}
v_cvt_pk_bf16_f32 v{a+3}, v{b+2}, v{b+3}""")
                if qt in (0, 4): c.append(I(f"s_add_u32 s{sTs}, s{sXo[0]}, {(2 - jl)*5120 + (qt // 4)*4096}"))
                c.append(I(f"buffer_store_dwordx4 {V4(a)}, v{vOf}, {S4(sXs)}, s{sTs} offen offset:{(qt % 4)*1024} sc1", dst={f"SN{jl}"}))
                lo = T * (2 * jl + 1) + n * (qt + 1) - 1 + 8
                for k, x in enumerate(c): x.lo = lo if k >= 2 else lo - 8; x.target = lo + k * 0.5 - 1
                sn += c
        ev = []; nov = []
        for jl in range(3):
            F = min(2 * T * (jl + 1) + 12 + OPT["fag"], 8 * T - OPT["fbg"])
            b_ = Ins("WAITBAR", kind="bar", vneed={f"SN{jl}"}, lo=F, hi=F); f_ = flag(4 * (2 - jl)); f_.after = [b_]; f_.target = F + 1; f_.hi = F + 3
            for x in sn[jl * len(sn) // 3:(jl + 1) * len(sn) // 3]: x.hi = F - 1
            ev += [b_, f_]; nov += range(F, F + 9)
        P1 = 8 * T - OPT["p1g"]; NS = OPT["nsp"]
        c = I(f"v_cmp_eq_u32 s[84:85], 1, v{t2}")
        sp = [I(poll, dst={f"v{t2}"}, lo=P1), WAIT(vneed={f"v{t2}"}, lo=P1 + 56), c, I(f"s_and_b32 s{sGx}, s84, {(0, 4, 6, 7)[NS]}", after=[c], dly=2)] if NS else []
        for x in sp[2:]: x.target = P1 + 57
        ld = []
        for rho in (3, 2, 1)[:NS]: ld += [pair(f"s_bitcmp1_b32 s{sGx}, {rho-1}", f"s_cselect_b32 s{sGs}, s{sXo[rho]}, 0x80000000")] + rload(rho, sGs)
        spread(ld, P1 + 62, min(8 * T - 2, P1 + 62 + 20 * NS))
        PL = 8 * T - OPT["plg"]
        ld.insert(len([x for x in ld if x.target < PL]), I(poll, dst={f"v{t2}"}, lo=PL))
        return schedule(mfs(MD), [ws, own, sn, ev, sp + ld], novalu=nov, name="k2fin")
    if "k2head" not in B: B["k2head"] = H + [x for d in range(A0) for x in step(d)] + (Is(f"s_bitcmp0_b32 s{sWg}, 0\ns_cbranch_scc1 K2_BODYe") if OPT["asy"] else [])
    assert SG < A0 and min(CK) >= A0
    B["k2body" + X] = Is(f"K2_BODY{X}:") + [x for d in range(A0, DM) for x in step(d)] + final()
    sys.stderr.write(f"[k2] SG {SG} CK {CK} loads/step {[len(OS[d]) for d in sorted(OS)]} spare quads {len(RDQ)}\n")
    E = stamp(51) + (Is(f"v_writelane_b32 v22, s{sSp}, 61\ns_getreg_b32 s87, hwreg(HW_REG_XCC_ID)\nv_writelane_b32 v22, s87, 62\nv_writelane_b32 v22, s{sBk}, 59\ns_memrealtime s[90:91]\ns_waitcnt lgkmcnt(0)\nv_writelane_b32 v22, s90, 63") if OPT["stamps"] in (6, 7, 8) else [])
    def rel(L):
        for x in L: x.text = re.sub(r"\b(K2_WX|K2_W1|K2_W2|K2_W3|K2_GO|K2_PS)\b", r"\1" + X, x.text)
        return L
    xadd = lambda: [x for qt in range(5) for x in radd((2, 3), qt)]
    E += stamp(52) + Is(f"s_cmp_eq_u32 s{sGx}, 7\ns_cbranch_scc1 K2_GO") + [WAIT(vneed={f"v{t2}"})] + Is(f"""K2_PS:
v_cmp_eq_u32 s[84:85], 1, v{t2}
s_add_u32 s{sSp}, s{sSp}, 1
s_cmp_gt_u32 s{sSp}, 0x40000
s_nop 0
s_cselect_b32 s84, 7, s84
s_andn2_b32 s85, s84, s{sGx}
s_or_b32 s{sGx}, s{sGx}, s84
s_and_b32 s{sGx}, s{sGx}, 7""")
    for rho in (3, 2, 1): E += Is(f"s_bitcmp0_b32 s85, {rho-1}\ns_cbranch_scc1 K2_W{rho}") + rload(rho, sXo[rho]) + Is(f"K2_W{rho}:")
    E += Is(f"s_cmp_lg_u32 s{sGx}, 7\ns_cbranch_scc1 K2_WX")
    B["k2epi" + X] = rel(E)
    B["k2wx" + X] = rel(Is(f"K2_WX:\n{poll}\ns_waitcnt vmcnt(0)\ns_branch K2_PS"))
    E = Is("K2_GO:") + stamp(53)
    def fin(qt):
        a, b = acc(6, qt), acc(7, qt)
        return Is(f"""v_cvt_pk_bf16_f32 v{a}, v{a}, v{a+1}
v_cvt_pk_bf16_f32 v{a+1}, v{a+2}, v{a+3}
v_cvt_pk_bf16_f32 v{a+2}, v{b}, v{b+1}
v_cvt_pk_bf16_f32 v{a+3}, v{b+2}, v{b+3}
s_nop 1
v_permlane16_swap_b32 v{a}, v{a+2}
v_permlane16_swap_b32 v{a+1}, v{a+3}
ds_write_b128 v{vLp}, {V4(a)} offset:{qt*1024}""") + [I(f"ds_read_b128 {V4(144+4*qt)}, v{vRd} offset:{qt*1024}", dst=regs("v", 144 + 4 * qt, 4))]
    out = lambda qt: [I(f"s_mov_b32 s87, {qt*16*2560}"), WAIT(lneed=regs("v", 144 + 4 * qt, 4)), I(f"buffer_store_dwordx4 {V4(144+4*qt)}, v{vSt}, {S4(sOut)}, s87 offen")]
    for qt in range(5):
        E += Is(f"s_waitcnt vmcnt({4 - qt})") + radd((3, 2, 1), qt)
        if qt >= 1: E += fin(qt - 1)
    E += out(0) + out(1) + out(2) + fin(4) + out(3) + out(4)
    E += stamp(54) + (Is(f"v_writelane_b32 v22, s{sSp}, 60\nv_writelane_b32 v23, s87, 60") if OPT["stamps"] else [])
    B["k2fin" + X] = rel(E) + (Is("s_branch K1_DONE") if OPT["stamps"] else Is("s_endpgm"))
    B["k2end"] = Is("K1_DONE:") + stamp_out(S2(sKA), sWg, sWave, t0, 0x4000000) + Is("K1_END:\ns_endpgm")
    spin = lambda nm, ret, ld, rd: Is(f"""{nm}:
s_add_u32 s{sSp}, s{sSp}, 1
s_cmp_gt_u32 s{sSp}, 0x40000
s_cbranch_scc1 {ret}
s_sleep 4
{ld}
s_waitcnt vmcnt(0)
{rd}
s_nop 3
s_cmp_lt_u32 s88, 32
s_cbranch_scc1 {nm}
s_branch {ret}""")
    B["k2side"] = Is(f"""K1_REDO:
s_mov_b32 s{sMode}, 1
s_waitcnt vmcnt(0) lgkmcnt(0)
s_barrier""") + B["kre"] + spin("K2_SPIN0", "K2_RET0", f"buffer_load_dwordx2 v[{vPoll}:{vPoll+1}], off, {S4(sDb)}, s{sCo} sc1", f"v_min_u32 v{t0}, v{vPoll}, v{vPoll+1}\ns_nop 0\nv_readfirstlane_b32 s88, v{t0}")
    B["k2sp" + X] = [x for m in CK.values() for x in spin(f"K2_SPIN{m}{X}", f"K2_RET{m}{X}", f"buffer_load_dword v{vP2}, off, {S4(sFl)}, s{sC1}" + (" offset:128" if m == 24 else "") + " sc1", f"v_readfirstlane_b32 s88, v{vP2}")]
    D = Is("K2_IDLE:") + common()
    for u in range(NE0, 24): D += epi_unit(u, True)
    D += Is("s_waitcnt vmcnt(0)\ns_barrier") + [atomic(vOne, sC1w, sFl)]
    D += (Is("v_mov_b32 v22, v31\nv_mov_b32 v23, v31") if OPT["stamps"] else []) + (stamp(54) if OPT["stamps"] == 9 else []) + Is("s_branch K1_DONE")
    B["k2idle"] = D
    return ["k2pro", "k2head", "k2body" + X, "k2epi" + X, "k2fin" + X]

def oproj(B, NE0):
    a = OPT["asy"]
    tr = [oproj1(B, NE0, "o", 24 - a)] + ([oproj1(B, NE0, "e", 24 + a)] if a else [])
    lay = ["k2pro", "k2head"] + [b + x for x in ("oe" if a else "o") for b in ("k2body", "k2epi", "k2fin", "k2wx", "k2sp")] + ["k2end"]
    return tr, lay

def desc(name, vg=512, acc=256):
    return f""".p2align 6
.amdhsa_kernel {name}
  .amdhsa_next_free_vgpr {vg}
  .amdhsa_next_free_sgpr 102
  .amdhsa_accum_offset {acc}
  .amdhsa_group_segment_fixed_size 0
  .amdhsa_kernarg_size 104
  .amdhsa_user_sgpr_count 2
  .amdhsa_user_sgpr_kernarg_segment_ptr 1
  .amdhsa_system_sgpr_workgroup_id_x 1
  .amdhsa_float_denorm_mode_32 3
.end_amdhsa_kernel"""

def main():
    k1, e1 = kernel1()
    ref = open("cdna_kernels/" + NAME + ".s.ref").read().split("\n")
    head = [l for l in ref if l.startswith(";") and "@launch" not in l]
    nm = NAME + "_kernel"
    out = head + [f"; @launch grid=(256,1,1) block=(256,1,1) lds=163840",
                  '.amdgcn_target "amdgcn-amd-amdhsa--gfx950"', ".text"]
    out += [f".globl {nm}", ".p2align 8", f".type {nm},@function", f"{nm}:"] + k1
    out += ["K_CODE_END:", "s_endpgm", '.section .rodata,"a"', desc(nm)]
    open(sys.argv[1], "w").write("\n".join(out) + "\n")
    if e1: sys.exit(1)
main()
```

```python
import sys, math, re
from asmlib import *
from verify import verify

OPT = dict(nt_kv=1, nt_w=0, nt_x=0, nt_o=2, k2_nt_o=2, k2_nt_w=0, stamps=0, ovl=1, ne0=6, nc9=7, pf=1, cpf=1, k2e=9, sigs=4, pfs=0, cpl=1, k2fix=0, osc=1, ev=1, lmf=1, padn=0, padm=0, enc=0, kvn=0, kv0=10, kvpos=70, kvph=7, encb=30000, outp=0, na0=2, bg15=60, hgap=8, rot=0, wpf=1, hold=1, padi=0, cpw=0x88, vmx=63, xq=3, xp=2, me=0x3f, mo=0x3f, cw8=4, pq=2, pp=0, lq=0, lp=0, la1=0, pskip=2, cpfirst=0, m1=0, adp=9, adn=2, nfl=0, tw=0, rmp=0, k2n=3, cpk=0x88888, fag=62, wop=1, mrg=4, adv0=8, advf=55, asy=2, fbg=12, plg=45, p1g=120, sge=1, ckg=52, nsp=0, woa=0, wsh=2)
for a in sys.argv[2:]:
    k, v = a.split("="); assert k in OPT, k; OPT[k] = int(v, 0)
NAME = "concat_heads__gqa_block_cached__gqa_block_cached__near_ridge"
MF = "v_mfma_f32_16x16x32_bf16"
def I(t, **kw): return Ins(t, **kw)
def Is(txt): return [Ins(t.strip()) for t in txt.strip().split("\n") if t.strip()]
def mfma(d, a, b, c): return Ins(f"{MF} {d}, {a}, {b}, {c}")
def V4(b): return f"v[{b}:{b+3}]"
def A4(b): return f"a[{b}:{b+3}]"

TILE = 24576; WS = 64 * 12288
X0 = 0; RING = 32768; X1 = 131072
def slot(i): return RING + i * TILE
vK = [[1, 2], [3, 4]]; KW = [0, 65536]
vV = [[5, 6, 7, 8], [9, 10, 11, 12]]; VW = [32768, 98304]
vXr = [[13, 14], [15, 16]]
vD = [17, 18]; vDkv = 19; vDw = 20; vDx = 21; vO = 22; vO3 = 23
vL = [24, 25, 26, 27]; vMi = [40, 41, 42, 43]; vT = 32
NEGM = 48; SP = 64; QF = 160
RCP = 48
def negm(qt): return NEGM + 4 * qt
def XY(par, kb, qt): return SP + 4 * ((par * 2 + kb) * 4 + qt)
def Z(kb, qt): return SP + 64 + 4 * (kb * 4 + qt)
def Qf(qt, s): return QF + 4 * (qt * 6 + s)
def Qb(qt, s):
    return SP + 4 * (qt * 6 + s)
def Oacc(t, qt): return 4 * (t * 4 + qt)
def Xf(n, kb, qt): return 32 * (n & 1) + 4 * (kb * 4 + qt)
FR = 192
def fq(n, f): return FR + 4 * ((f + 8 * (n & 1)) % 16)
sX = 4; sDA = 8; sDB = 12; sO = 16
sK = 20; sV = 22; sNb = 24; sNnum = 26; sNs = 27; sNd = 28; sXnum = 29; sN2 = 30; sMask = 32
sA = 34; sB = 35; sI = 39; sWoff = 40; sXoff = 41
sOs = [42, 43, 44, 45, 37, 38]; sT = 46; sItem = 47; sMode = 48; sFlag = 49; sC = 50
sWave = 52; sWg = 53; sT2 = 54; sT3 = 55; sThr = 56; sKA = 58
sLd = 4
sP1 = 60; vPf = 248; vPoll = 228
sWoP = 64; sOutP = 66; sWsP = 68; sSig = 70; sPfo = 71; sDb = 72; sCo = 76; sOn = 77; sSp = 78
sCp = 97; sBk = 3; sK2n = 79; sXk = 57; sXst = 2; sWk = 0; sSel = 1; sAll = 36; sXn = 98; sK2O = 100; FLO = RING + 3 * TILE
FLG = 0x2e00000; XCH = 0x2f00000
def S4(b): return f"s[{b}:{b+3}]"
def S2(b): return f"s[{b}:{b+1}]"
BG = 76
NOV = range(BG, BG + 9)
NPRE_V = 10; NPRE_K = 6
OSTRIDE = 24 * 120 * 1024

def lastuse_pv(f): return 8 * (f >> 1) + 6 + (f & 1)
def lastuse_qk(f): kt, s = divmod(f, 6); return 24 * kt + 18 + (5 - s)

def reads_v(n, base):
    out = []
    for f in range(24):
        t, kb = f >> 1, f & 1
        r = fq(n, f)
        for hf in range(2):
            off = base + (4 * kb + 2 * hf) * 3072 + (t >> 2) * 1024
            w = 1 if off >= VW[1] else 0
            it = I(f"ds_read_b64_tr_b16 a[{r+2*hf}:{r+2*hf+1}], v{vV[w][t & 3]} offset:{off-VW[w]}", dst=regs("a", r + 2 * hf, 2)); it.f = f
            out.append(it)
    return out
def reads_k(n, base):
    out = []
    for f in range(24):
        kt, s = divmod(f, 6); r = fq(n, f)
        off = base + kt * 6144 + (s >> 1) * 1024
        w = 1 if off >= KW[1] else 0
        it = I(f"ds_read_b128 {A4(r)}, v{vK[w][s & 1]} offset:{off-KW[w]}", dst=regs("a", r, 4)); it.f = f
        out.append(it)
    return out
def reads_x(n):
    return [I(f"ds_read_b128 {A4(Xf(n, kb, qt))}, v{vXr[n & 1][kb]} offset:{qt*2048}", dst=regs("a", Xf(n, kb, qt), 4)) for qt in range(4) for kb in range(2)]

def dma(srd, soff, base, nt):
    n = " nt" if nt else ""
    out = []
    for p in range(3):
        m = I(f"s_add_u32 m0, s{sWoff}, {base + 896*p}")
        a = I(f"buffer_load_dwordx4 v{vD[0]}, {S4(srd)}, s{soff} offen offset:{p*128}{n} lds", dst={f"L{base}"}, after=[m])
        b = I(f"buffer_load_dwordx4 v{vD[1]}, {S4(srd)}, s{soff} offen offset:{p*128+3072}{n} lds", dst={f"L{base}"})
        out += [m, a, b]
    return out
def dma_w(m): return Is(f"s_add_u32 s{sWk}, s{sWk}, s{sNs}\ns_cmp_eq_u32 s{sWk}, {10*WS}\ns_cselect_b32 s{sWk}, 0, s{sWk}") + dma(sDA, sWk, slot(m % 4), OPT["nt_w"])
def dma_k(i, base): return [I(f"s_mov_b32 s{sT2}, {i*TILE}")] + dma(sDA, sT2, base, OPT["nt_kv"])
def dma_v(i, base): return [I(f"s_mov_b32 s{sT2}, {i*TILE}")] + dma(sDB, sT2, base, OPT["nt_kv"])
dma_n = dma_w
def hd(d): return d[:-6]
def tl(d): return d[-6:]
def dma_x(n):
    out = Is(f"s_add_u32 s{sXk}, s{sXk}, s{sXst}\ns_cmp_eq_u32 s{sXk}, 1280\ns_cselect_b32 s{sXk}, 0, s{sXk}"); base = X1 if n & 1 else X0
    for j in range(8):
        if j % 4 == 0: out.append(I(f"s_add_u32 m0, s{sXoff}, {base + j*1024}"))
        out.append(I(f"s_add_u32 s{sT}, s{sXk}, {j*10240 - (j % 4)*1024}"))
        out.append(I(f"buffer_load_dwordx4 v{vDx}, {S4(sX)}, s{sT} offen offset:{(j % 4)*1024}" + (" nt" if OPT["nt_x"] else "") + " lds", dst={f"X{n&1}_{j>>1}"}))
    return out

def phase(name, n, typ, mf, own, nxt, nxt_typ, pub, early, dmas, extra=(), post=(), early_hi=None, bg=BG, dend=None, endx=frozenset()):
    lu = lastuse_pv if typ == "v" else lastuse_qk
    N = len(mf)
    rs = []
    if typ == "v":
        k0 = 48 - len(own)
        for j, it in enumerate(own):
            it.target = j * (bg - 6) / len(own)
            it.hi = min(8 * (it.f >> 1) - 6, bg - 5)
            if it.f >= 16: it.lo = lu(it.f - 16)
            it.hi = max(it.hi, it.lo)
    else:
        for j, it in enumerate(own):
            kt, s = divmod(it.f, 6)
            it.target = 24 * (kt - 1) + 1 + s * 2.5; it.hi = 24 * kt - 8
            if it.f >= 16: it.lo = lu(it.f - 16)
    rs += own
    bar = BAR(pub if isinstance(pub, set) else {f"L{pub}"}, lo=bg, hi=bg); rs.append(bar)
    for j, it in enumerate(nxt):
        it.lo = max(bg + 1, lu(it.f + 8)); it.after = [bar]
        it.target = bg + 1 + (j * 1.8 if nxt_typ == "v" else j * 1.5); it.hi = N - 1 if nxt_typ == "v" and j >= 4 else N - 8
    rs += nxt
    ws = []
    if typ == "v":
        for t in range(1, 12):
            if 8 * t - 1 >= bg: break
            ws.append(WAIT(lneed=regs("a", fq(n, 2 * t), 4) | regs("a", fq(n, 2 * t + 1), 4), lo=8 * t - 3, hi=8 * t - 1, target=8 * t - 2))
    else:
        for kt in range(1, 4):
            ws.append(WAIT(lneed=set().union(*[regs("a", fq(n, 6 * kt + s), 4) for s in range(6)]), lo=24 * kt - 3, hi=24 * kt - 1, target=24 * kt - 2))
    nf = 2 if nxt_typ == "v" else 6
    ws.append(WAIT(lneed=set().union(*[regs("a", fq(n + 1, f), 4) for f in range(nf)]) | endx, lo=N - 2, hi=N - 1, target=N - 1.5))
    ms = list(early)
    spread(ms, 1, early_hi or bg - 6)
    nv = sum(1 for it in dmas if it.kind == "vmem"); k = 0
    for it in dmas:
        it.lo = bg + 1 if it.kind == "vmem" else bg - 4
        it.target = bg + 2 + k * min(12.0, ((dend or N) - bg - 3) / max(nv, 1)) - (0 if it.kind == "vmem" else 2.5)
        if it.kind == "vmem": it.after = it.after + [bar]; k += 1
    ms += dmas
    for it in post: it.lo = bg + 1; it.target = N - 6
    ms += list(post)
    return schedule(mf, [ws, rs, ms] + list(extra), novalu=range(bg, bg + 9), name=name)

def softmax(groups, lo, hi, sub=None, skip=NOV):
    E = []; D = []; P = []
    for (par, kb, qt, l0, l1, h, sb_) in groups:
        x, z = XY(par, kb, qt), Z(kb, qt)
        src = [x, x + 1, x + 2, x + 3, z, z + 1, z + 2, z + 3]
        for pr in range(4):
            es = []
            for e in range(2):
                r = src[2 * pr + e]
                ex = I(f"v_exp_f32 v{r}, v{r}", lo=(l0, l1)[pr >> 1])
                if sb_:
                    sb = I(f"v_add_f32 v{r}, v{r}, v{negm(qt)}", after=[sub[qt]] if sub else [], lo=(l0, l1)[pr >> 1]); sb.ex = ex; P.append(sb); ex.after = [sb]
                E.append(ex); es.append(ex)
            D.append(I(f"v_cvt_pk_bf16_f32 v{x+pr}, v{src[2*pr]}, v{src[2*pr+1]}", after=es, hi=h))
    spread(E, lo, hi, skip)
    for e in E: e.hi = 10**9
    for d in D:
        d.target = max(a.target for a in d.after) + 1
        for a in d.after: a.hi = d.hi - 1
    for p in P: p.target = p.ex.target - 3; p.hi = p.ex.hi - 1
    return [P, E, D]
def g_old(par, kb, qts, N, inqk):
    return [(par, kb, qt, 0, 0, (48 * kb + 24 + 6 * qt - 1) if inqk else N - 1, False) for qt in qts]
def g_new(par, qts):
    return [(par, 0, qt, 6 * qt + 13, 24 + 6 * qt + 13, 95, False) for qt in qts]

def mf_w(n):
    out = []
    for t in range(12):
        for qt in range(4):
            d = Qf(qt, t >> 1) if t % 2 == 0 else Qb(qt, t >> 1)
            for kb in range(2):
                out.append(mfma(V4(d), A4(fq(n, 2 * t + kb)), A4(Xf(n, kb, qt)), "0" if (n == 0 and kb == 0) else V4(d)))
    return out
def mf_qk(n, par, first=False):
    out = []
    for kt in range(4):
        for qt in range(4):
            d = XY(par, kt >> 1, qt) if kt % 2 == 0 else Z(kt >> 1, qt)
            order = range(6) if qt % 2 == 0 else range(5, -1, -1)
            for j, s in enumerate(order):
                c = V4(d) if j else ("0" if (first and kt < 2) else V4(negm(qt)))
                out.append(mfma(V4(d), A4(fq(n, 6 * kt + s)), V4(Qf(qt, s)), c))
    return out
def mf_l(par, first=False):
    return [mfma(V4(vL[0]), V4(32 + 4 * qt), V4(XY(par, kb, qt)), "0" if (first and qt + kb == 0) else V4(vL[0])) for kb in range(2) for qt in range(4)]
def mf_pv(n, par, first=False):
    out = []
    for t in range(12):
        for qt in range(4):
            for kb in range(2):
                out.append(mfma(A4(Oacc(t, qt)), A4(fq(n, 2 * t + kb)), V4(XY(par, kb, qt)), "0" if (first and kb == 0) else A4(Oacc(t, qt))))
    return out

ETMP = [32, 40, 56]
def epi_unit(u, packed, k2=False):
    s, qt = divmod(u, 4)
    tb = ETMP[u % 3] if OPT["stamps"] in (0, 6, 7, 8, 9) else [24, 32, 56][u % 3] if k2 else [32, 56][u % 2]
    out = []
    rc = RCP + 2 * qt
    for h in range(2):
        for j in range(4): out.append(I(f"v_accvgpr_read_b32 v{tb+4*h+j}, a{Oacc(2*s+h, qt)+j}"))
        if packed:
            for j in range(2): out.append(I(f"v_pk_mul_f32 v[{tb+4*h+2*j}:{tb+4*h+2*j+1}], v[{tb+4*h+2*j}:{tb+4*h+2*j+1}], v[{rc}:{rc+1}]"))
        else:
            for j in range(4): out.append(I(f"v_mul_f32 v{tb+4*h+j}, v{tb+4*h+j}, v{rc}"))
        for j in range(2): out.append(I(f"v_cvt_pk_bf16_f32 v{tb+2*h+j}, v{tb+4*h+2*j}, v{tb+4*h+2*j+1}"))
    out.append(I(f"buffer_store_dwordx4 {V4(tb)}, v{vO3 if qt == 3 else vO}, {S4(sO)}, s{sOs[s]} offen offset:{qt*1024}" + ["", " nt", " sc1", " sc0 sc1"][OPT["nt_o"]], dst={"OST"}))
    return out
def cvt_unit(s, qt, packed):
    a, b = Qf(qt, s), Qb(qt, s)
    out = []
    if packed:
        for r in (a, a + 2, b, b + 2): out.append(I(f"v_pk_mul_f32 v[{r}:{r+1}], v[{r}:{r+1}], {S2(sC)}"))
    else:
        for r in (a, a + 1, a + 2, a + 3, b, b + 1, b + 2, b + 3): out.append(I(f"v_mul_f32 v{r}, s{sC}, v{r}"))
    out += Is(f"""v_cvt_pk_bf16_f32 v{a}, v{a}, v{a+1}
v_cvt_pk_bf16_f32 v{a+1}, v{a+2}, v{a+3}
v_cvt_pk_bf16_f32 v{a+2}, v{b}, v{b+1}
v_cvt_pk_bf16_f32 v{a+3}, v{b+2}, v{b+3}""")
    sw = Is(f"v_permlane16_swap_b32 v{a}, v{a+2}\nv_permlane16_swap_b32 v{a+1}, v{a+3}")
    return out, sw

def pf():
    return [I(f"v_add_u32 v{vPf}, s{sPfo}, v{vO}")] + [I(f"buffer_load_dwordx4 {V4(252)}, v{vPf}, {S4(sP1)}, " + ("0" if j < 4 else f"s{sT3}") + f" offen offset:{(j % 4)*1024}", dst=regs("v", 252, 4)) for j in range(6)]

def atomic(v, so, srd=None):
    it = Ins(f"s_mov_b64 exec, 1\nbuffer_atomic_add v{v}, off, {S4(srd or sDb)}, s{so}\ns_mov_b64 exec, -1", kind="vmem"); it.cost = 8
    return it
def codepf():
    return [I("global_load_dword v30, v[28:29], off", dst={"v30"})] if OPT["cpl"] else []

def jobid(d, t):
    if not OPT["rmp"]: return f"s_mov_b32 s{d}, s{sWg}"
    return f"""s_lshr_b32 s{t}, s{sWg}, 4
s_xor_b32 s{t}, s{t}, s{sWg}
s_and_b32 s{t}, s{t}, 1
s_mul_i32 s{t}, s{t}, 17
s_cmp_ge_u32 s{sWg}, 224
s_cselect_b32 s{t}, s{t}, 0
s_xor_b32 s{d}, s{sWg}, s{t}"""

def lin(items):
    out = []
    for k, it in enumerate(items):
        out.append(it)
        if it.text.startswith("s_add_u32 m0") and items[k + 1].kind == "vmem": out.append(I("s_nop 0"))
    return out

def stamp(idx, k2=False):
    if not OPT["stamps"]: return []
    if OPT["stamps"] == 9:
        if idx not in (48, 54): return []
        return Is(f"s_memrealtime s[94:95]\ns_waitcnt lgkmcnt(0)\nv_writelane_b32 v{31 if idx == 48 else 22}, s94, {idx}")
    va, vb = (22, 23) if idx >= 51 else (31, 31) if OPT['stamps'] >= 6 else (46, 47)
    if idx == -2: sel = "s_add_u32 s92, s39, 31"
    elif idx < 0: sel = f"s_mul_i32 s92, s{sItem}, 24\ns_add_u32 s92, s92, s{sI}\ns_add_u32 s92, s92, 8"
    else: sel = f"s_mov_b32 s92, {idx}" if (k2 or idx >= 48) else f"s_mul_i32 s92, s{sItem}, 24\ns_add_u32 s92, s92, {idx}"
    return Is(f"""s_memtime s[90:91]
s_memrealtime s[94:95]
s_waitcnt lgkmcnt(0)
s_cselect_b32 s96, 1, 0
{sel}
s_mov_b32 s93, m0
s_mov_b32 m0, s92
v_writelane_b32 v{vb}, s94, m0
v_writelane_b32 v{va}, s90, m0
s_mov_b32 m0, s93
s_cmp_lg_u32 s96, 0""")
def stamp_out(karg, wg, wave, tmp, base, k2=False):
    if not OPT["stamps"]: return []
    va = 22
    return Is(f"""s_load_dwordx2 s[80:81], {karg}, 96
s_waitcnt lgkmcnt(0)
s_add_u32 s80, s80, {base}
s_addc_u32 s81, s81, 0
s_mov_b32 s82, 0x100000
s_mov_b32 s83, 0x20000
s_lshl_b32 s84, s{wg}, 2
s_add_u32 s84, s84, s{wave}
s_lshl_b32 s84, s84, 9
v_lshlrev_b32 v{tmp}, 3, v0
buffer_store_dwordx2 v[{va}:{va+1}], v{tmp}, s[80:83], s84 offen""")


def pst(idx):
    if OPT["stamps"] != 8: return []
    return Is(f"s_memtime s[28:29]\ns_waitcnt lgkmcnt(0)\nv_writelane_b32 v31, s28, {idx}") if idx < 18 else stamp(idx, True)
def kernel1():
    B = {}
    c = math.log2(math.e) / math.sqrt(192.0)
    import struct
    cbits = struct.unpack("<I", struct.pack("<f", c))[0]
    selinit = f"s_mov_b32 s{sSel}, {OPT['me']}" if OPT['me'] == OPT['mo'] else f"s_getreg_b32 s{sSel}, hwreg(HW_REG_XCC_ID, 0, 1)\ns_cmp_eq_u32 s{sSel}, 0\ns_cselect_b32 s{sSel}, {OPT['me']}, {OPT['mo']}"
    wshare = f"""s_lshr_b32 s86, s88, 1
s_and_b32 s87, s86, 32
s_add_u32 s86, s86, s87
s_and_b32 s87, s88, 1
s_lshl_b32 s87, s87, 5
s_add_u32 s86, s86, s87
s_mul_i32 s86, s86, 61440""" if OPT["wsh"] == 1 else """s_lshr_b32 s86, s88, 1
s_and_b32 s87, s88, 1
s_lshl_b32 s87, s87, 6
s_add_u32 s86, s86, s87
s_mul_i32 s86, s86, 30720""" if OPT["wsh"] == 2 else "s_mul_i32 s86, s88, 61440"
    kload = lambda b: Is(f"s_load_dwordx16 s[4:19], {b}, 0\ns_load_dwordx8 s[20:27], {b}, 64\ns_load_dwordx2 {S2(sWsP)}, {b}, 96")
    B["kre"] = kload(S2(sKA)) + Is("s_branch K1_PRO")
    B["entry"] = Is("s_cmp_ge_u32 s2, 256\ns_cbranch_scc1 K1_END") + kload("s[0:1]") + Is(f"""
v_lshrrev_b32 v{vT}, 6, v0
v_and_b32 v0, 63, v0
s_mov_b32 s{sWg}, s2
v_readfirstlane_b32 s{sWave}, v{vT}
s_mov_b64 {S2(sKA)}, s[0:1]
s_mov_b32 s{sMode}, 0
s_mov_b32 s{sSig}, 0""") + stamp(48)
    cpa = Is(f"""
s_getpc_b64 s[90:91]
K1_PC:
s_lshr_b32 s86, s{sWg}, 3
s_lshl2_add_u32 s86, s86, s{sWave}
s_lshl_b32 s86, s86, 10
v_lshl_add_u32 v28, v0, 4, s86
v_min_u32 v28, (K_CODE_END-K1_PC-32)&0xfffffff0, v28
s_and_b32 s90, s90, 0xfffffff0
v_mov_b32 v29, s91
v_add_co_u32 v28, vcc, s90, v28
s_mov_b32 s{sSp}, 0
s_nop 0
v_addc_co_u32 v29, vcc, 0, v29, vcc""") + codepf()
    t0, t1, t2, t3 = vT, vT + 1, vT + 2, vT + 3
    P = Is(f"""K1_PRO:
s_lshr_b32 s82, s{sWg}, 6
s_and_b32 s83, s{sWg}, 2
s_lshl1_add_u32 s81, s83, s82
s_mul_i32 s82, s81, 307200
s_lshl_b32 s{sXoff}, s{sWave}, 13
s_lshl_b32 s86, s{sWave}, 6
v_lshrrev_b32 v{t0}, 3, v0
v_and_b32 v{t1}, 7, v0
v_and_b32 v{t2}, 6, v{t0}
v_xor_b32 v{t1}, v{t1}, v{t2}
v_add_u32 v{t2}, s86, v{t0}
v_mul_u32_u24 v{vDx}, 1280, v{t2}
v_lshl_add_u32 v{vDx}, v{t1}, 4, v{vDx}
s_bfe_u32 s{sT3}, s{sWg}, 0x10002
s_waitcnt lgkmcnt(0)
s_cselect_b64 s[92:93], s[16:17], s[6:7]
s_cselect_b64 s[4:5], s[14:15], s[4:5]
s_add_u32 s{sX}, s4, s82
s_addc_u32 s{sX+1}, s5, 0
s_mov_b32 s{sX+2}, 307200
s_mov_b32 s{sX+3}, 0x20000
s_mov_b32 s{sXk}, 0""") + pst(16) + (cpa if OPT['cpfirst'] else []) + dma_x(0)[3:] + ([] if OPT['cpfirst'] else cpa) + Is(f"""
s_cmp_eq_u32 s{sT3}, 0
s_cselect_b64 s[94:95], s[8:9], s[18:19]
s_cselect_b64 s[96:97], s[10:11], s[20:21]
s_cselect_b64 {S2(sWoP)}, s[12:13], s[22:23]
s_mov_b64 {S2(sOutP)}, s[24:25]
s_mov_b64 {S2(sDb)}, s[26:27]
s_lshr_b32 s{sT2}, s{sWg}, 3
s_and_b32 s88, s{sWg}, 1
s_and_b32 s89, s{sT2}, 7
s_lshl3_add_u32 s80, s88, s89
s_mul_i32 s84, s80, 384
s_mul_i32 s{sWoff}, s{sWave}, 6144
v_mul_u32_u24 v{vDkv}, 384, v{t0}
v_lshl_add_u32 v{vDkv}, v{t1}, 4, v{vDkv}
v_add_u32 v{vDkv}, s{sWoff}, v{vDkv}
v_and_b32 v{t2}, 4, v{t1}
v_and_b32 v{t3}, 1, v{t1}
v_lshl_or_b32 v{t2}, v{t3}, 1, v{t2}
v_bfe_u32 v{t3}, v{t1}, 1, 1
v_or_b32 v{t1}, v{t2}, v{t3}
v_and_b32 v{t2}, 3, v{t0}
v_lshrrev_b32 v{t3}, 2, v{t0}
v_lshl_add_u32 v{t2}, v{t3}, 3, v{t2}
s_lshr_b32 s86, s{sWave}, 1
s_lshl_b32 s86, s86, 5
s_and_b32 s87, s{sWave}, 1
s_lshl2_add_u32 s86, s87, s86
v_add_u32 v{t2}, s86, v{t2}
v_mul_u32_u24 v{vDw}, 12288, v{t2}
v_lshl_add_u32 v{vDw}, v{t1}, 4, v{vDw}
v_mov_b32 v{vD[0]}, v{vDw}
v_add_u32 v{vD[1]}, {196608-3072}, v{vDw}
s_add_u32 s{sDA}, s96, s84
s_addc_u32 s{sDA+1}, s97, 0
s_sub_u32 s{sDA+2}, 7864320, s84
s_mov_b32 s{sDA+3}, 0x20000
s_mov_b32 s{sNs}, {WS}
s_mov_b32 s{sWk}, 0
s_mov_b32 s{sXst}, 128
""")
    P0 = P
    P = Is(f"""
s_lshl_b32 s83, s81, 5
s_add_u32 s83, s83, s80
s_mul_i32 s83, s83, 393216
s_lshl_b32 s85, s{sT3}, 5
s_lshl_b32 s86, s88, 4
s_add_u32 s85, s85, s86
s_add_u32 s85, s85, s89
s_and_b32 s86, s89, 4
s_add_u32 s85, s85, s86
s_mul_i32 s85, s85, 720
s_mul_i32 s86, s81, 15
s_add_u32 s85, s85, s86
s_lshl_b32 s85, s85, 10
s_and_b32 s88, s{sWg}, 3
s_lshl_b32 s89, s{sT2}, 2
s_add_u32 s88, s88, s89
s_add_u32 s{sK}, s92, s83
s_addc_u32 s{sK+1}, s93, 0
s_add_u32 s{sV}, s94, s83
s_addc_u32 s{sV+1}, s95, 0
s_mov_b32 s{sDb+2}, 256
s_mov_b32 s{sDb+3}, 0x20000
s_bfe_u32 s{sCo}, s{sWg}, 0x20001
s_lshl_b32 s{sCo}, s{sCo}, 6
s_mov_b32 s{sPfo}, s{sXoff}
s_cmp_eq_u32 s{sSig}, 0
s_cselect_b32 s{sOn}, {5*122880+15*1024}, 0
s_add_u32 s{sNb}, s{sDA}, 6144
s_addc_u32 s{sNb+1}, s{sDA+1}, 0
s_sub_u32 s{sNnum}, s{sDA+2}, 6144
s_mov_b32 s{sNd}, {196608-3072}
s_mov_b64 {S2(sMask)}, 0
s_mov_b32 s{sXnum}, 307200
{wshare}
s_add_u32 s{sN2}, s{sWoP}, s86
s_addc_u32 s{sN2+1}, s{sWoP+1}, 0
s_mul_i32 s86, s88, {4*12288}
s_add_u32 s86, s86, {128*12288+6144}
s_add_u32 s{sP1}, s96, s86
s_addc_u32 s{sP1+1}, s97, 0
s_mov_b32 s{sP1+2}, {(3*12288+6144) * OPT['wpf']}
s_mov_b32 s{sP1+3}, 0x20000
s_mov_b32 s{sT3}, 4096
s_add_u32 s{sO}, s{sWsP}, s85
s_addc_u32 s{sO+1}, s{sWsP+1}, 0
s_sub_u32 s{sO}, s{sO}, {OSTRIDE}
s_subb_u32 s{sO+1}, s{sO+1}, 0
s_mov_b32 s{sO+2}, 0
s_mov_b32 s{sO+3}, 0x20000
s_lshl_b32 s86, s{sWg}, 7
s_add_u32 s86, s86, {FLG}
s_add_u32 s{sDB}, s{sWsP}, s86
s_addc_u32 s{sDB+1}, s{sWsP+1}, 0
s_cmp_eq_u32 s{sMode}, 0
s_cselect_b32 s{sDB+2}, 128, 0
s_mov_b32 s{sDB+3}, 0x20000
s_mov_b32 s{sItem}, 0
s_mov_b32 s{sFlag}, 0
s_mov_b32 s{sCp}, 0x1000
{selinit}
s_mov_b32 s{sBk}, 0
s_mov_b64 {S2(sXn)}, {S2(sX)}
s_lshr_b32 s80, s{sWg}, 4
s_mul_i32 s84, s80, 52
s_lshr_b32 s84, s84, 8
s_mul_i32 s85, s84, 5
s_sub_u32 s85, s80, s85
s_and_b32 s81, s{sWg}, 1
s_bfe_u32 s89, s{sWg}, 0x10003
s_lshl1_add_u32 s89, s81, s89
s_and_b32 s82, s{sWave}, 1
s_lshr_b32 s83, s{sWave}, 1
s_xor_b32 s86, s81, s82
s_xor_b32 s86, s86, 1
s_lshl_b32 s86, s86, 7
s_lshl_b32 s87, s85, 8
s_add_u32 s86, s86, s87
s_mul_i32 s87, s83, {64*1280}
s_add_u32 s86, s86, s87
s_mul_i32 s87, s89, {768*1280}
s_add_u32 s86, s86, s87
s_add_u32 s{sWoP}, s{sWoP}, s86
s_addc_u32 s{sWoP+1}, s{sWoP+1}, 0
s_sub_u32 s{sK2n}, 7864320, s86
s_cmp_lt_u32 s80, 15
s_cselect_b32 s{sK2n}, s{sK2n}, 0
s_bfe_u32 s86, s{sWg}, 0x10001
s_mul_i32 s86, s86, 60
s_mul_i32 s87, s84, 20
s_add_u32 s86, s86, s87
s_mul_i32 s87, s{sWave}, 5
s_add_u32 s86, s86, s87
s_bfe_u32 s87, s{sWg}, 0x10002
s_lshl2_add_u32 s88, s87, s89
s_mul_i32 s88, s88, {48*120}
s_add_u32 s88, s88, s86
s_lshl_b32 s88, s88, 10
s_add_u32 s{sK2O}, s{sWsP}, s88
s_addc_u32 s{sK2O+1}, s{sWsP+1}, 0
s_mul_i32 s88, s86, {16*2560}
s_mul_i32 s87, s87, 1280
s_add_u32 s88, s88, s87
s_lshl_b32 s87, s85, 8
s_add_u32 s88, s88, s87
s_lshl_b32 s87, s89, 6
s_add_u32 s88, s88, s87
s_add_u32 s{sOutP}, s{sOutP}, s88
s_addc_u32 s{sOutP+1}, s{sOutP+1}, 0
s_mov_b32 s{sC}, {cbits:#x}
s_mov_b32 s{sC+1}, {cbits:#x}
s_mov_b32 s{sThr}, 0x5d800000
""") + [I(f"s_mov_b32 s{sOs[s]}, {s*122880}") for s in range(6)]
    kb0, vb0 = vK[0][0], vV[0][0]
    P += Is(f"""
v_and_b32 v{t0}, 15, v0
v_lshrrev_b32 v{t1}, 4, v0
v_and_b32 v{t2}, 6, v{t0}
v_xor_b32 v{t3}, v{t2}, v{t1}
v_lshlrev_b32 v{t3}, 4, v{t3}
v_lshl_add_u32 v{vXr[0][0]}, v{t0}, 7, v{t3}
v_add_u32 v{vXr[0][0]}, s{sXoff}, v{vXr[0][0]}
v_xor_b32 v{vXr[0][1]}, 64, v{vXr[0][0]}
v_add_u32 v{vXr[1][0]}, {X1}, v{vXr[0][0]}
v_add_u32 v{vXr[1][1]}, {X1}, v{vXr[0][1]}
v_lshrrev_b32 v{t2}, 3, v{t0}
v_mul_u32_u24 v{kb0}, 3072, v{t2}
v_and_b32 v{t2}, 7, v{t0}
v_lshl_add_u32 v{kb0}, v{t2}, 7, v{kb0}
v_add_u32 v{kb0}, v{kb0}, v{t3}
v_xor_b32 v{vK[0][1]}, 64, v{kb0}
v_add_u32 v{vK[1][0]}, {KW[1]}, v{kb0}
v_add_u32 v{vK[1][1]}, {KW[1]}, v{vK[0][1]}
v_lshrrev_b32 v{t2}, 5, v0
v_mul_u32_u24 v{vb0}, 3072, v{t2}
v_bfe_u32 v{t2}, v0, 2, 3
v_lshl_add_u32 v{vb0}, v{t2}, 7, v{vb0}
v_and_b32 v{t2}, 6, v{t2}
v_bfe_u32 v{t3}, v0, 1, 1
v_xor_b32 v{t2}, v{t2}, v{t3}
v_lshl_add_u32 v{vb0}, v{t2}, 4, v{vb0}
v_and_b32 v{t2}, 1, v0
v_lshl_add_u32 v{vb0}, v{t2}, 3, v{vb0}
v_add_u32 v{vb0}, {VW[0]}, v{vb0}
v_xor_b32 v{vV[0][1]}, 32, v{vb0}
v_xor_b32 v{vV[0][2]}, 64, v{vb0}
v_xor_b32 v{vV[0][3]}, 96, v{vb0}
""") + [I(f"v_add_u32 v{vV[1][i]}, {VW[1]-VW[0]}, v{vV[0][i]}") for i in range(4)] + Is(f"""
s_lshl_b32 s86, s{sWave}, 12
v_lshlrev_b32 v{vO}, 4, v0
v_add_u32 v{vO}, s86, v{vO}
s_cmp_eq_u32 s{sWave}, 3
s_cselect_b32 s86, 0x80000000, 0
v_add_u32 v{vO3}, s86, v{vO}
""")
    P += [I(f"v_mov_b32 v{vL[q]}, 0") for q in range(4)]
    ld = lin(dma_w(0)[3:]) + lin(dma_w(1)) + dma_x(1) + lin(hd(dma_w(2)))
    rest = P; P = P0; nv = 0
    for x in ld:
        P.append(x)
        if x.kind == "vmem":
            nv += 1; c_ = 0
            while rest and nv > OPT["pskip"] and (c_ < 9 or rest[0].text.split()[0] in ("s_addc_u32", "s_subb_u32", "s_cselect_b32", "s_cselect_b64")):
                P.append(rest.pop(0)); c_ += 1
    P += rest + pst(19)
    P += [I(f"buffer_store_dwordx4 {V4(vL[0])}, v{vO}, {S4(sDB)}, 0 offen sc1", dst={"OST"})]
    XALL = lambda n: {f"X{n&1}_{q}" for q in range(4)}
    P += [WAIT(vneed=XALL(0) | {f"L{slot(0)}"})] + reads_x(0) + Is("s_barrier")
    B["pro"] = P + pst(20) + reads_v(0, slot(0))[:NPRE_V] + Is("s_branch K1_ITEM")
    B["item"] = Is("K1_ITEM:") + stamp(0) + [WAIT(lzero=True)]
    NE0 = OPT["ne0"]
    EW = {0: list(range(NE0, 8))}
    rest = list(range(8, 24)); per = [3, 3, 2, 2, 2, 2, 2]
    for n in range(1, 8): EW[n] = rest[:per[n - 1]]; rest = rest[per[n - 1]:]
    NC9 = OPT["nc9"]
    cunits = [(s, qt) for s in range(6) for qt in range(4)]
    cold = dma_k(0, X0) + dma_k(1, slot(2)) + dma_v(0, slot(3)); C8 = 2 if OPT["la1"] else OPT["cw8"]
    cut = lambda p: 10 * (p // 3) + (0, 4, 7)[p % 3]
    pairs = lambda a, b: cold[cut(a):cut(b)]
    for n in range(10):
        own = reads_v(n, slot(n % 4))[NPRE_V:]
        early = []; extra = []; post = []; endx = set()
        if n < 9: nxt = reads_v(n + 1, slot((n + 1) % 4))[:NPRE_V]; nt_ = "v"; pub = slot((n + 1) % 4)
        else: nxt = reads_k(10, X0)[:NPRE_K]; nt_ = "k"; pub = X0
        if n < 8: early += tl(dma_w(n + 2))
        if n == 8: early += pairs(1, 1 + C8)
        if n == 9: early += pairs(2 + C8, 6 if OPT["la1"] else 8)
        if n == 7:
            early += Is(f"""s_mov_b64 {S2(sDA)}, {S2(sK)}
s_mov_b32 s{sDA+2}, 393216
s_mov_b64 {S2(sDB)}, {S2(sV)}
s_mov_b32 s{sDB+2}, 393216
v_mov_b32 v{vD[0]}, v{vDkv}
v_mov_b32 v{vD[1]}, v{vDkv}""")
        if n < 8: early += dma_x(n + 2)
        if (OPT['cpw'] >> n) & 1: early += codepf()
        if n == 8 and OPT["nfl"]:
            fill = Is(f"s_lshl2_add_u32 s88, s{sWg}, s{sWave}\ns_mul_i32 s88, s88, 10240\ns_add_u32 s88, s88, {XCH}")
            fill += [Ins(f"s_add_u32 s80, s{sWsP}, s88\ns_addc_u32 s81, s{sWsP+1}, 0", kind="bar"), Ins(f"s_or_b32 s88, s{sItem}, s{sMode}\ns_cselect_b32 s82, 0, 10240", kind="bar")]
            fill += Is("s_mov_b32 s83, 0x20000\ns_mov_b32 s88, 8192\nv_lshlrev_b32 v36, 4, v0") + [I(f"v_mov_b32 v{32+j}, -1") for j in range(4)]
            st = [I(f"buffer_store_dwordx4 v[32:35], v36, s[80:83], {['0', f's{sT3}', 's88'][q // 4]} offen offset:{(q % 4)*1024} sc1") for q in range(10)]
            extra.append(spread(fill, 4, 34) + spread(st, 36, 95, [BG]))
        if n == 8: post = Is(f"""s_mov_b32 s87, 0xff800000
s_cmp_eq_u32 s{sWave}, 3
s_cselect_b32 s86, 0x71000000, s87
v_mov_b32 v{vMi[0]}, s87
v_mov_b32 v{vMi[1]}, s87
v_mov_b32 v{vMi[2]}, s87
v_mov_b32 v{vMi[3]}, s86""")
        es = []; sts = []; us = EW.get(n, [])
        for u in us:
            e = epi_unit(u, False)
            if OPT["hold"] and u >= us[-1] - 2:
                x = e.pop(); x.after = [e[-1], early[-1]]; sts.append(x)
            es += e
        late0 = n == 0 and NE0 < 6
        if es: extra.append(spread(es, 0, (BG + 14 if late0 else 70) if n == 0 else 90, NOV))
        if sts: extra.append(spread(sts, 72, 96, [BG]))
        if n < 9:
            xr = reads_x(n + 1); st = []
            for q in range(4):
                if q % 2 == 0: st.append(WAIT(vneed={f"X{(n+1)&1}_{q}", f"X{(n+1)&1}_{q+1}"}))
                st += xr[2 * q:2 * q + 2]
            spread(st, 46, BG - 5)
            if n == 0:
                for q in range(4):
                    la = [x for x in es if x.text.endswith(f" a{Oacc(3, q) + 3}")]
                    for it in xr[2 * q:2 * q + 2]:
                        it.after = la
                        if q == 3 and late0: it.lo = BG + 1; it.hi = 88; it.target = BG + 4
                    if la: la[0].hi = BG - 1 if q == 3 and late0 else BG - 8
                endx = regs("a", Xf(1, 0, 0), 32)
            extra.append(st)
        if n == 9:
            pub = {f"L{X0}", "OST"}
        if OPT["kvn"] and n < OPT["kvph"]:
            seq = [(k, i) for i in range(2, 15) for (k, i) in ((0, i + 1), (1, i))] + [(1, 15)]
            tot = OPT["kvn"] * OPT["kvph"]; n1 = min(tot, len(seq)); n2 = tot - n1
            lst = [(1,) + seq[j * len(seq) // n1] for j in range(n1)] + [(0,) + seq[j * len(seq) // n2] for j in range(n2)]
            lst.sort(key=lambda e: seq.index(e[1:]))
            st = []
            if n == 0: st += Is(f"""s_mov_b64 s[84:85], {S2(sK)}
s_mov_b32 s86, {9*393216}
s_mov_b32 s87, 0x20000
s_mov_b64 {S2(sDB)}, {S2(sV)}
s_mov_b32 s{sDB+2}, {9*393216}""")
            body = "\n".join(f"s_mov_b32 s88, {i*TILE + o*8*393216}\nbuffer_load_dword v49, v{vDkv}, {S4(sDB if k else 84)}, s88 offen offset:3328" for (o, k, i) in lst[n * OPT["kvn"]:(n + 1) * OPT["kvn"]])
            st.append(Ins(f"s_cmp_eq_u32 s{sKvn}, 0\ns_cbranch_scc1 K1_KV{n}\n{body}\nK1_KV{n}:", kind="bar"))
            early += st
        if n == 9 and NC9:
            cs = []; sw = []
            for (s, qt) in cunits[:NC9]:
                a, b = cvt_unit(s, qt, False)
                a[0].lo = 16 * s + 8 + 2 * qt + 1 + 8
                for x in b: x.after = [a[-1]]; x.dly = 1
                cs += a; sw += b
            spread(cs, 17, 92, NOV)
            for x in sw: x.target = x.after[0].target + 2
            extra += [cs, sw]
        d = hd(dma_w(n + 3)) if n < 7 else pairs(0, 1) if n == 7 else pairs(1 + C8, 2 + C8) if n == 8 else pairs(6, 7) if OPT['la1'] else pairs(8, 9)
        B[f"w{n}"] = (stamp(8 + n) if OPT["stamps"] == 7 else []) + phase(f"w{n}", n, "v", mf_w(n), own, nxt, nt_, pub, early, d, extra, early_hi=70, post=post, endx=endx)
    C = stamp(1); pend = []
    for k, (s, qt) in enumerate(cunits[NC9:]):
        a, b = cvt_unit(s, qt, True)
        C += a[:4] + pend + a[4:]; pend = b
    C += Is(f"s_cmp_lg_u32 s{sMode}, 0\ns_nop 0") + pend + Is("s_cbranch_scc1 K1_MAXPASS\nK1_MAXRET:\ns_nop 0") + stamp(2)
    B["cvt"] = C
    M = []; last = []
    for qt in range(4):
        x = XY(0, 0, qt); m = vT + 2 * qt; t = m + 1
        a = I(f"v_max3_f32 v{m}, v{x}, v{x+1}, v{x+2}", lo=6 * qt + 13)
        b = I(f"v_max3_f32 v{m}, v{m}, v{x+3}, v{vMi[qt]}")
        c_ = I(f"v_mov_b32 v{t}, v{m}")
        d = I(f"v_permlane16_swap_b32 v{m}, v{t}", after=[c_], dly=1)
        e = I(f"v_max_f32 v{m}, v{m}, v{t}")
        f = I(f"v_mov_b32 v{t}, v{m}")
        g = I(f"v_permlane32_swap_b32 v{m}, v{t}", after=[f], dly=1)
        h = I(f"v_max_f32 v{m}, v{m}, v{t}")
        ns = [I(f"v_sub_f32 v{negm(qt)+i}, 0, v{m}", hi=48 + 6 * qt - 3) for i in range(4)]
        st = [a, b, c_, d, e, f, g, h] + ns
        for j, it in enumerate(st): it.target = 6 * qt + 13 + j * 0.5
        M.append(st); last.append(ns[0])
    NA0 = OPT['na0']
    sm = softmax([(0, 0, qt, 0, 24 + 6 * qt + 13, 95, True) for qt in range(NA0)], 28, 93, sub=last)
    early = Is(f"""s_mov_b32 s{sA}, {3*TILE}
s_mov_b32 s{sB}, {TILE if OPT["la1"] else 2*TILE}
s_mov_b32 s{sI}, 0
s_add_u32 s{sO}, s{sO}, {OSTRIDE}
s_addc_u32 s{sO+1}, s{sO+1}, 0
s_mov_b32 s{sO+2}, s{sOn}
s_mov_b32 s{sOn}, {5*122880+15*1024}""") + (pairs(7, 9) if OPT["la1"] else dma_k(2, slot(0)))
    hand = Is(f"""v_mov_b32 v30, 1
s_and_b32 s80, s{sWg}, 1
s_lshl_b32 s80, s80, 2
s_add_u32 s80, s80, s{sCo}
s_cmp_eq_u32 s{sAll}, 0
s_cselect_b32 s81, s{sItem}, 0
s_cmp_lt_u32 s{sSig}, s81
s_cselect_b32 s80, s80, 0x1000
s_cselect_b32 s{sSig}, 1, s{sSig}
s_cmp_eq_u32 s{sWave}, 0
s_cselect_b32 s80, s80, 0x1000""") + [atomic(30, 80)]
    B["qk0"] = phase("qk0", 10, "k", mf_qk(10, 0, True), reads_k(10, X0)[NPRE_K:], reads_k(11, slot(2))[:NPRE_K], "k", slot(2), early,
                     hd(dma_k(2, slot(0)) if OPT['la1'] else dma_v(1, slot(1))), M + sm, early_hi=70) + stamp(3)
    def half(nm, par, mode, xq=0, xp=0):
        ks, vs, kn, vp = slot(2 * par), slot(2 * par + 1), slot(2 - 2 * par), slot(3 - 2 * par)
        kd = lambda: dma(sDA, sA, ks, OPT["nt_kv"])
        vd = lambda b: dma(sDB, sB, b, OPT["nt_kv"])
        last = mode == "last"; first = mode == "first"
        if first: early = tl(dma_v(1, slot(1)))
        elif last and par: early = tl(dma_n(0)) + dma_x(0)
        else: early = (codepf() if par == 0 and not last else []) + tl(vd(vp)) + Is(f"s_add_u32 s{sB}, s{sB}, {TILE}")
        if OPT["la1"]:
            if first: early = tl(dma_k(2, slot(0)))
            elif not (last and par): early = (codepf() if par == 0 and not last else []) + tl(dma(sDA, sA, kn, OPT["nt_kv"])) + Is(f"s_add_u32 s{sA}, s{sA}, {TILE}")
            if last and par == 0: early += dma_v(14, vp)[:7]
        if last and par == 0:
            early += Is(f"""s_mov_b64 {S2(sX)}, {S2(sXn)}
s_mov_b32 s{sX+2}, s{sXnum}
s_cmp_eq_u32 s{sItem}, 1
s_cselect_b32 s{sXk}, {(-128*1280) & 0xffffffff}, s{sXk}
s_cselect_b32 s{sXst}, {128*1280}, s{sXst}
s_movk_i32 s80, 0x70
v_lshrrev_b32 v30, 3, v0
v_mul_u32_u24 v30, 1280, v30
v_and_or_b32 v30, v{vDw}, s80, v30
v_cndmask_b32 v{vDx}, v{vDx}, v30, {S2(sMask)}""") + codepf()
        mp = mf_pv(12, 1 - par, first) + mf_l(1 - par, first) + (mf_l(1) if last and par else [])
        NP_ = len(mp)
        gq = g_old(1 - par, 1, range(4), 96, True); gp = g_old(par, 0, range(4), NP_, False); hq = BG - 2
        if first: gq = [g[:6] + (True,) for g in g_old(0, 0, range(NA0, 4), 96, True)] + gq; hq = 88
        if last and par == 0:
            gq = gq + g_new(0, [0]); hq = 93
            gp = g_old(0, 0, [1, 2, 3], NP_, False) + g_old(0, 1, [0, 1], NP_, False)
        if last and par:
            gq = g_old(0, 1, [2, 3], 96, True) + g_new(1, [0, 1, 2]); hq = 93
            gp = [(1, 0, 3, 0, 0, 101, False)] + [(1, 1, qt, 4, 6, 105 + qt, False) for qt in range(4)]
        def burst(gs):
            if not gs: return []
            P_, E, D = softmax(gs, 0, 90); out = list(P_)
            for j in range(0, len(E), 2):
                out += E[j:j + 2] + (D[j // 2 - 1:j // 2] if j else [])
            return out + Is("s_nop 0") + D[-1:]
        bq = burst(gq[:xq]); gq = gq[xq:]; bp = burst(gp[:xp]); gp = gp[xp:]
        qtile = (lambda: dma_n(1) if par else dma_v(15, X1)) if last else kd
        wo = lambda: [I(f"buffer_load_dword v30, v{vO}, {S4(sX)}, s{sT2} offen", dst={"v30"}), I(f"s_add_u32 s{sT2}, s{sT2}, 1024")] if mode == "loop" and (OPT["woa"] == 2 or (OPT["woa"] == 1 and (xq or xp))) else []
        early = early + wo()
        tq = hd(qtile())
        if OPT["la1"] and not (last and par): tq = dma_v(14, vp)[7:] if last else hd(vd(vp))
        q = bq + phase("qk" + nm, 11, "k", mf_qk(11, par), reads_k(11, ks)[NPRE_K:], reads_v(12, vs)[:NPRE_V], "v", vs, early, tq,
                  softmax(gq, 0, hq), early_hi=72)
        post = []
        if par and mode == "loop": post += Is(f"s_add_u32 s{sI}, s{sI}, 1\ns_or_b32 s80, s{sSel}, 0x40\ns_bitcmp0_b32 s80, s{sI}")
        early = tl(qtile()) + ([] if last else Is(f"s_add_u32 s{sA}, s{sA}, {TILE}"))
        if OPT["la1"] and not (last and par): early = dma_v(15, X1) if last else tl(vd(vp)) + Is(f"s_add_u32 s{sB}, s{sB}, {TILE}")
        if par == 0: early = early + wo()
        if OPT["adp"] and mode == "loop" and (xq or xp):
            early = early + Is(f"s_getreg_b32 s80, hwreg(HW_REG_IB_STS, 0, 4)\ns_cmp_ge_u32 s80, {OPT['adp']}\ns_addc_u32 s{sBk}, s{sBk}, 0")
        sel = []
        if first:
            early = hand + early
            if OPT["woa"]: early = early + Is(f"""s_mul_i32 s80, s{sWave}, {15360-4096}
s_add_u32 s{sX}, s{sN2}, s80
s_addc_u32 s{sX+1}, s{sN2+1}, 0
s_lshl_b32 s80, s{sWave}, 12
s_add_u32 s80, s80, 15360
s_cmp_eq_u32 s{sItem}, {OPT["woa"] - 1}
s_cselect_b32 s{sX+2}, s80, 0
s_mov_b32 s{sT2}, 0""")
            if OPT["tw"] & 2: early = early + Is(f"v_mul_u32_u24 v30, 122880, v0") + [I(f"buffer_load_dword v30, v30, {S4(sO)}, 0 offen sc1", dst={"v30"})]
            sel = Is("v_and_b32 v47, 3, v0\nv_mov_b32 v46, 0x3f803f80")
            for qt in range(4):
                c_ = I(f"v_cmp_eq_u32 s[86:87], {qt}, v47")
                sel += [c_, I(f"v_cndmask_b32 v{32+4*qt}, 0, v46, s[86:87]", after=[c_], dly=1)] + [I(f"v_mov_b32 v{32+4*qt+j}, v{32+4*qt}") for j in range(1, 4)]
            sel = [spread(sel, 2, 92, NOV)]
        if last and par == 0:
            early += Is(f"""s_mov_b64 {S2(sDA)}, {S2(sNb)}
s_mov_b32 s{sDA+2}, s{sNnum}
s_cmp_eq_u32 s{sItem}, 1
s_cselect_b32 s{sWk}, {(-TILE) & 0xffffffff}, s{sWk}
s_cselect_b32 s{sNs}, {TILE}, s{sNs}
v_cndmask_b32 v{vD[0]}, v{vDw}, v{vDkv}, {S2(sMask)}
v_add_u32 v{vD[1]}, s{sNd}, v{vD[0]}""")
        d = hd(dma_n(2 * par) if last else kd() if OPT['la1'] else vd(vs))
        if last and par:
            nxt, nty, pub = reads_v(41, X1)[:NPRE_V], "v", X1
            x = pf(); early += x[:4]; d += x[4:] + [I(f"buffer_load_dwordx2 v[{vPoll}:{vPoll+1}], off, {S4(sDb)}, s{sCp} sc1", dst=regs("v", vPoll, 4))]
        else: nxt, nty, pub = reads_k(11, kn)[:NPRE_K], "k", kn
        p = bp + phase("pv" + nm, 12, "v", mp, reads_v(12, vs)[NPRE_V:], nxt, nty, pub, early, d,
                  softmax(gp, 0, NP_ - (7 if last and par else 3)) + sel, post=post, early_hi=72)
        pad = lambda: Is("\n".join(["s_nop 3"] * OPT["padn"]))
        if OPT["padi"]: return q + Is(f"s_cmp_lg_u32 s{sItem}, {OPT['padi']-1}\ns_cbranch_scc1 K1_KVP{nm}") + pad() + pad() + Is(f"K1_KVP{nm}:") + p
        return q + pad() + p + pad()
    two = OPT["xq"] or OPT["xp"]
    B["peel"] = half("1", 1, "first", OPT["pq"], OPT["pp"]) + (Is(f"s_bitcmp1_b32 s{sSel}, 0\ns_cbranch_scc1 K1_LA") if two else [])
    st = lambda: stamp(-1) if OPT["stamps"] in (4, 6) else []
    B["loop"] = Is(".p2align 6\nK1_L:") + st() + half("e", 0, "loop") + half("o", 1, "loop") + Is("s_cbranch_scc1 K1_L")
    B["loope"] = Is(f"s_cmp_lg_u32 s{sI}, 6\ns_cbranch_scc1 K1_LA\nK1_LX:") if two else []
    B["loopa"] = Is(".p2align 6\nK1_LA:") + st() + half("ea", 0, "loop", OPT["xq"], OPT["xp"]) + half("oa", 1, "loop", OPT["xq"], OPT["xp"]) + Is("s_cbranch_scc1 K1_L") if two else []
    B["loopx"] = Is(f"s_cmp_lg_u32 s{sI}, 6\ns_cbranch_scc1 K1_LA\ns_branch K1_LX") if two else []
    B["last"] = (stamp(-1) if OPT["stamps"] in (4, 6) else []) + half("14", 0, "last", OPT["lq"], OPT["lp"]) + half("15", 1, "last")
    B["tail"] = stamp(4)
    B15 = OPT["bg15"]
    R = [I(f"v_rcp_f32 v{RCP+2*q}, v{vL[q]}", lo=7) for q in range(4)] + [I(f"v_cmp_ngt_f32 {S2(80+2*q)}, s{sThr}, v{vL[q]}") for q in range(4)]
    spread(R, 7, 17)
    for it in R: it.hi = 95
    es = []; sts = []; dx1 = dma_x(1)
    for u in range(NE0):
        e = epi_unit(u, False); e[0].lo = 16 * (u // 4) + 2 * (u % 4) + 1 + 8; e[10].lo = e[0].lo + 8
        if OPT["hold"] and u >= NE0 - 3:
            x = e.pop(); x.after = [e[-1], dx1[-1]]; x.target = 92; sts.append(x)
        es += e
    spread(es, 15, 94, range(B15, B15 + 9))
    fl = Is(f"""s_or_b64 s[80:81], s[80:81], s[82:83]
s_or_b64 s[84:85], s[84:85], s[86:87]
s_or_b64 s[80:81], s[80:81], s[84:85]
s_or_b32 s80, s80, s81
s_or_b32 s{sFlag}, s{sFlag}, s80
s_lshl_b32 s80, s{sWave}, 2
s_add_u32 s80, s80, {FLO}
v_mov_b32 v160, s80
v_mov_b32 v161, s{sFlag}
v_mov_b32 v162, {FLO}""") + [Ins("ds_write_b32 v160, v161")]
    fl[-1].cost = 8
    fl[0].after = [x for x in R if x.text.startswith("v_cmp")][-1:]; fl[0].dly = 2
    early = fl
    f1 = I(f"ds_read_b128 {V4(164)}, v162", dst=regs("v", 164, 4), lo=B15 + 1, target=B15 + 3)
    f2 = WAIT(lneed=regs("v", 164, 4), lo=88, target=88)
    f3 = Is("v_or_b32 v164, v164, v165\nv_or3_b32 v164, v164, v166, v167")
    f4 = I(f"v_readfirstlane_b32 s{sAll}, v164", after=[f3[1]])
    for x in f3 + [f4]: x.target = 89
    B["pv15"] = phase("pv15", 41, "v", mf_pv(41, 1), reads_v(41, X1)[NPRE_V:], reads_v(0, slot(0))[:NPRE_V], "v", {f"L{slot(0)}", f"L{slot(2)}"} | XALL(0),
                      early, dx1, [R + es, [f1, f2] + f3 + [f4], sts], bg=B15, dend=90 if OPT['hold'] else None) + stamp(5)
    B["br"] = stamp(6) + Is(f"s_cmp_lg_u32 s{sMode}, 0\ns_cselect_b32 s{sAll}, 0, s{sAll}\ns_cmp_eq_u32 s{sItem}, 0\ns_cbranch_scc1 K1_MID")
    B["mid"] = Is("K1_MID:") + reads_x(0) + Is(f"""s_mov_b32 s{sItem}, 1
s_mov_b32 s{sCp}, s{sCo}
s_cmp_ge_u32 s{sBk}, {OPT['adn']}
s_cselect_b32 s{sSel}, 63, {OPT['m1']}
s_mov_b64 {S2(sXn)}, {S2(sWoP)}
s_mov_b32 s{sXnum}, s{sK2n}
s_mov_b64 {S2(sNb)}, {S2(sN2)}
s_mov_b32 s{sNnum}, {(TILE if OPT['wsh'] == 2 else 2*TILE)*OPT['wop']}
s_mov_b32 s{sNd}, 0
s_mov_b64 {S2(sMask)}, -1
s_add_u32 s{sP1}, s{sN2}, {TILE if OPT['wsh'] == 2 else 2*TILE}
s_addc_u32 s{sP1+1}, s{sN2+1}, 0
s_mov_b32 s{sP1+2}, {(6144 if OPT['wsh'] == 2 else 12288)*OPT['wop']}
s_lshl_b32 s{sPfo}, s{sWave}, 11
s_add_u32 s{sK}, s{sK}, {16*393216}
s_addc_u32 s{sK+1}, s{sK+1}, 0
s_add_u32 s{sV}, s{sV}, {16*393216}
s_addc_u32 s{sV+1}, s{sV+1}, 0""")
    k2tr, k2lay = oproj(B, NE0); k2trace = k2tr[0]; k2idle = ["k2pro", "k2idle"]
    X = Is(f"""K1_MAXPASS:
v_and_b32 v{vT}, 15, v0
v_lshrrev_b32 v{vT+1}, 4, v0
v_mul_u32_u24 v{vT}, 384, v{vT}
v_lshl_add_u32 v{vT}, v{vT+1}, 4, v{vT}
s_mov_b32 s{sT}, 0""") + [I(f"v_mov_b32 v{vMi[q]}, 0xff800000") for q in range(4)] + Is("K1_MAXL:")
    for s in range(6): X.append(I(f"buffer_load_dwordx4 {V4(SP+4*s)}, v{vT}, {S4(sDA)}, s{sT} offen offset:{s*64}"))
    X.append(I("s_waitcnt vmcnt(0)"))
    for qt in range(4):
        for s in range(6): X.append(mfma(V4(SP + 32 + 4 * qt), V4(SP + 4 * s), V4(Qf(qt, s)), V4(SP + 32 + 4 * qt) if s else "0"))
    X.append(I("s_nop 7"))
    for qt in range(4):
        d = SP + 32 + 4 * qt
        X += Is(f"v_max3_f32 v{vMi[qt]}, v{vMi[qt]}, v{d}, v{d+1}\nv_max3_f32 v{vMi[qt]}, v{vMi[qt]}, v{d+2}, v{d+3}")
    X += Is(f"s_add_u32 s{sT}, s{sT}, 6144\ns_cmp_lt_u32 s{sT}, 393216\ns_cbranch_scc1 K1_MAXL\ns_branch K1_MAXRET")
    B["maxpass"] = X
    item = ["item"] + [f"w{n}" for n in range(10)] + ["cvt", "qk0", "peel"] + ["loop"] * 6 + ["last", "tail", "pv15", "br"]
    k_ = item.index("loop")
    item0 = item[:k_] + ["loopa", "loopa", "loop", "loopa", "loop", "loopa"] + item[k_ + 6:] if two else item
    if not two: assert OPT["me"] == 0 and OPT["mo"] == 0
    trace = ["entry", "pro"] + item0 + ["mid"] + item + k2trace
    layout = ["entry", "pro", "mid", "item"] + [f"w{n}" for n in range(10)] + ["cvt", "qk0", "peel", "loop", "loope", "last", "tail", "pv15", "br", *k2lay, "loopa", "loopx", "k2side", "k2idle", "maxpass"]
    for t_ in k2tr: resolve_waits(B, trace[:-5] + t_)
    for it in B["loop"] + B["peel"]:
        if it.text == "WAITBAR": it.vcnt = min(it.vcnt, OPT["vmx"])
    txt = {k: "\n".join(emit(v)).split("\n") for k, v in B.items()}
    errs = verify([l for b in trace for l in txt[b]])
    tr2 = ["entry", "pro"] + item[:12] + ["maxpass", "maxpass"] + item[12:]
    errs += verify([l for b in tr2 for l in txt[b]])
    errs += verify([l for b in ["entry", "pro"] + item + ["mid"] + item + k2idle for l in txt[b]])
    for t_ in k2tr:
        errs += verify([l for b in item[-4:] + t_ for l in txt[b]])
        errs += verify([l.replace("K1_KVX", "K2_X") for b in t_ for l in txt[b]])
        errs += verify([l for b in t_[:4] + ["k2wx" + t_[-1][-1], t_[-1]] for l in txt[b]])
    for e in errs: sys.stderr.write("K1 HAZARD " + e + "\n")
    note = {
        "entry": "entry / set-up of descriptors and per-lane addresses; first loads",
        "mid": "between the two heads of this workgroup",
        "w0": "Q projection: ten k phases of 64; Wq tiles and x rows arrive by LDS-DMA; the previous head's O is normalised and stored underneath",
        "cvt": "scale Q by log2(e)/sqrt(192), round to bf16, arrange as MFMA operand",
        "qk0": "first key tile: row max of its first 16 keys (or the exact max in the redo pass) becomes the softmax shift",
        "peel": "key tile 1 / value tile 0",
        "loop": "attention main loop, two 64-key tiles per trip: S^T = K Q^T - m, P = exp2(S), O^T += V^T P^T, l += 1^T P^T; softmax fully under the MFMAs",
        "last": "last key tiles; next head's (or the projection's) first tiles are fetched",
        "pv15": "last value tile; 1/l, overflow check of the shift, first O fragments leave",
        "k2pro": "output projection: tile 320x128 per workgroup, K split over four workgroups",
        "k2bodyo": "projection, odd K halves (22 steps)", "k2bodye": "projection, even K halves (26 steps)",
        "k2epio": "collect the partners' quarters", "k2epie": "collect the partners' quarters",
        "loopa": "same loop for the first head with part of the softmax issued back to back: lower peak draw while the supply settles",
        "k2side": "rare paths: redo with the exact row max, waits on hand-offs",
        "k2idle": "workgroups without a projection tile",
        "maxpass": "exact row max over all keys (redo pass only)"}
    return [l for b in layout for l in ([f"; ---- {note[b]}"] if b in note else []) + txt[b] if l], errs

def oproj1(B, NE0, X, N):
    vR = [[1, 2, 3, 4], [5, 6, 7, 8]]; vOf = 9; vSt = 10; vFl = 11; vRd = 12; t0, t1, t2, t3 = 13, 14, 15, 16; vP2 = 17; vLp = 18; vOne = 19
    KS = [X0, X1, RING]; EX = 65536; SEL = 32
    uq = lambda u: [("a", Oacc(2 * (u // 4) + h, u % 4)) for h in range(2)]
    OF = {}
    def Of(d, kb, qt): return OF[d, kb, qt]
    M = OPT["mrg"] - (N & 1); DM = N - M; MD = list(range(DM, N)); U = (N - 1) >> 1
    src = lambda d: (d, 0) if d < 24 else (d - (N - 24), 1)
    NT = OPT["k2n"]; u0 = max(NE0 + OPT["k2e"], 11); left = list(range(u0, 24))
    frs = [(d, kb, qt) for d in range(N) for kb in range(2) for qt in range(5)]
    A0 = OPT["adv0"]; rate = (10 * N - 15 - 10 * A0) / (DM - 1 - A0 + OPT["advf"] / 100.0)
    cum = lambda d: 15 + 10 * (d + 1) if d < A0 else min(10 * N, int(round(15 + 10 * A0 + rate * (d + 1 - A0))))
    OS = {d: frs[(cum(d - 1) if d >= 0 else 0):cum(d)] for d in range(-1, DM)}
    pool = [("v", 224 + 4 * i) for i in range(8)] + [q for u in range(u0) for q in uq(u)]
    for d in range(-1, DM):
        for f in OS[d]: OF[f] = pool.pop(0)
        if d >= 0: pool += [OF[d, kb, qt] for kb in range(2) for qt in range(5)] + [q for u in left[d * NT:(d + 1) * NT] for q in uq(u)]
    RDQ = pool
    CK = {min(d for d in OS if any(f[0] >= m for f in OS[d])): m for m in (12, 24) if m < N}
    R4 = lambda r: f"{r[0]}[{r[1]}:{r[1]+3}]"
    Oset = lambda d, kbs=(0, 1): set().union(*[regs(*Of(d, kb, qt), 4) for kb in kbs for qt in range(5)])
    def acc(t, qt): return 64 + 4 * (t * 5 + qt)
    def wq(f): return 192 + 4 * (f % 16)
    sW_ = sX; sOo = 8; sOut = 12; sXs = 20; sFl = 28
    sTt = 46; sC1 = 51; sC1w = 50; sXo = [32, 33, 34, 35]; sTs = 39; sXr = 24; sGx = 40; sGs = 54; sFo = 55
    def wdma(u, h):
        d_, fo = src(2 * u)
        off = (d_ * 64 + (3072 - 768 if d_ >= 12 else 0) + fo * 1536) * 1280
        out = [I(f"s_add_u32 m0, s{sXoff}, {KS[u % 3] + h*4096}")]
        for j in range(4 * h, 4 * h + 4):
            out += [I(f"s_mov_b32 s{sTt}, {off + j*10240 - (j % 4)*1024}"),
                    I(f"buffer_load_dwordx4 v{vDx}, {S4(sW_)}, s{sTt} offen offset:{(j % 4)*1024} lds", dst={f"X{u%3}_{j>>1}"})]
        return out
    Wt = lambda u: {f"X{u%3}_{q}" for q in range(4)}
    def oload(fs):
        out = []; cur = None
        for (d, kb, qt) in fs:
            off = (2 * src(d)[0] + kb + 96 * src(d)[1]) * 122880 + (qt // 4) * 4096
            if off != cur: out.append(I(f"s_mov_b32 s{sTt}, {off}")); cur = off
            out.append(I(f"buffer_load_dwordx4 {R4(Of(d, kb, qt))}, v{vOf}, {S4(sOo)}, s{sTt} offen offset:{(qt % 4)*1024} sc1", dst=regs(*Of(d, kb, qt), 4)))
        return out
    def wreads(ds):
        out = []; f = 0
        for t in range(8):
            for d in ds:
                base = KS[(d >> 1) % 3]; w = 1 if base == X1 else 0
                for kb in range(2):
                    r = wq(f)
                    for hf in range(2):
                        it = I(f"ds_read_b64_tr_b16 a[{r+2*hf}:{r+2*hf+1}], v{vR[w][t & 3]} offset:{base - w*X1 + (d & 1)*16384 + (t >> 2)*8192 + (4*kb+2*hf)*1024}", dst=regs("a", r + 2 * hf, 2)); it.f = f
                        out.append(it)
                    f += 1
        return out
    NP = 8; G = 60
    P = [WAIT(vneed=regs("v", vPoll, 4))] + Is(f"""
v_min_u32 v{t0}, v{vPoll}, v{vPoll+1}
s_cmp_lg_u32 s{sAll}, 0
v_readfirstlane_b32 s89, v{t0}
s_cbranch_scc1 K1_REDO
v_lshlrev_b32 v{vOf}, 4, v0
s_mov_b64 {S2(sOo)}, {S2(sK2O)}
s_mov_b32 s{sOo+2}, {143*122880+5*1024}
s_mov_b32 s{sOo+3}, 0x20000
s_cmp_lt_u32 s89, 32
s_cbranch_scc1 K2_SPIN0
K2_RET0:
s_cmp_ge_u32 s{sWg}, 240
s_cbranch_scc1 K2_IDLE""")
    B["k2pro"] = P
    common = lambda: Is(f"""
s_and_b32 s{sC1}, s{sWg}, 7
s_lshl_b32 s{sC1}, s{sC1}, 7
s_add_u32 s{sC1}, s{sC1}, 64
s_cmp_eq_u32 s{sWave}, 0
s_cselect_b32 s{sC1w}, s{sC1}, 0x10000
s_add_u32 s{sFl}, s{sWsP}, {FLG}
s_addc_u32 s{sFl+1}, s{sWsP+1}, 0
s_mov_b32 s{sFl+2}, {256*128}
s_mov_b32 s{sFl+3}, 0x20000
v_mov_b32 v{vOne}, 1
v_mov_b32 v{RCP+1}, v{RCP}
v_mov_b32 v{RCP+3}, v{RCP+2}
v_mov_b32 v{RCP+5}, v{RCP+4}
v_mov_b32 v{RCP+7}, v{RCP+6}""")
    r0 = vR[0][0]
    assert NE0 >= 4
    ld = oload(OS[-1])
    H = Is(f"""
v_lshrrev_b32 v{t2}, 5, v0
v_lshlrev_b32 v{r0}, 10, v{t2}
v_bfe_u32 v{t2}, v0, 2, 3
v_lshl_add_u32 v{r0}, v{t2}, 7, v{r0}
v_and_b32 v{t2}, 6, v{t2}
v_bfe_u32 v{t3}, v0, 1, 1
v_xor_b32 v{t2}, v{t2}, v{t3}
v_lshl_add_u32 v{r0}, v{t2}, 4, v{r0}
v_and_b32 v{t2}, 1, v0
v_lshl_add_u32 v{r0}, v{t2}, 3, v{r0}
s_andn2_b32 s88, 8, s{sWg}
s_lshl_b32 s88, s88, 3
v_xor_b32 v{r0}, s88, v{r0}
v_xor_b32 v{vR[0][1]}, 32, v{r0}
v_xor_b32 v{vR[0][2]}, 64, v{r0}
v_xor_b32 v{vR[0][3]}, 96, v{r0}""") + wreads([0])[:NP] + [I(f"v_add_u32 v{vR[1][i]}, {X1}, v{vR[0][i]}") for i in range(4)] + common()
    pair = lambda a, b: Ins(a + "\n" + b, kind="bar")
    late = Is(f"""
s_mov_b64 {S2(sOut)}, {S2(sOutP)}
s_mov_b32 s{sOut+2}, {79*2560+64}
s_mov_b32 s{sOut+3}, 0x20000""") + [pair(f"s_add_u32 s{sXs}, s{sWsP}, {XCH}", f"s_addc_u32 s{sXs+1}, s{sWsP+1}, 0")] + Is(f"""
s_mov_b32 s{sXs+2}, {960*15360}
s_mov_b32 s{sXs+3}, 0x20000
s_lshl2_add_u32 s88, s{sWg}, s{sWave}
s_mul_i32 s{sXo[0]}, s88, 15360
s_xor_b32 s89, s88, 32
s_mul_i32 s{sXo[1]}, s89, 15360
s_xor_b32 s89, s88, 4
s_mul_i32 s{sXo[2]}, s89, 15360
s_xor_b32 s89, s88, 36
s_mul_i32 s{sXo[3]}, s89, 15360
s_mul_i32 s88, s{sWave}, 5120
s_add_u32 s88, s88, {EX}
v_add_u32 v{vRd}, s88, v{vOf}
v_and_b32 v{t0}, 15, v0
v_lshrrev_b32 v{t1}, 4, v0
v_lshl_add_u32 v{t2}, v{t0}, 2, v{t1}
v_lshlrev_b32 v{t2}, 4, v{t2}
v_add_u32 v{vLp}, s88, v{t2}
v_lshlrev_b32 v{t1}, 2, v{t1}
v_sub_u32 v{t0}, v{t0}, v{t1}
v_and_b32 v{t1}, 1, v{t0}
v_lshlrev_b32 v{t1}, 4, v{t1}
v_mov_b32 v{t2}, 0x3f80
v_lshlrev_b32 v{t1}, v{t1}, v{t2}
v_lshrrev_b32 v{t0}, 1, v{t0}""")
    c0 = I(f"v_cmp_eq_u32 s[84:85], 0, v{t0}"); c1 = I(f"v_cmp_eq_u32 s[86:87], 1, v{t0}")
    late += [c0, c1, I(f"v_mov_b32 v{SEL+2}, 0"), I(f"v_mov_b32 v{SEL+3}, 0"), I(f"v_cndmask_b32 v{SEL}, 0, v{t1}, s[84:85]"), I(f"v_cndmask_b32 v{SEL+1}, 0, v{t1}, s[86:87]")]
    late += Is(f"""v_mov_b32 v{SEL+4}, 0
v_mov_b32 v{SEL+5}, 0
v_mov_b32 v{SEL+6}, v{SEL}
v_mov_b32 v{SEL+7}, v{SEL+1}
v_lshrrev_b32 v{t0}, 2, v0
v_and_b32 v{t1}, 3, v0
v_mul_u32_u24 v{vSt}, 2560, v{t0}
v_lshl_add_u32 v{vSt}, v{t1}, 4, v{vSt}
v_min_u32 v{t1}, 2, v0
v_add_u32 v{t1}, 1, v{t1}
v_and_b32 v{t0}, 1, v{t1}
v_lshrrev_b32 v{t1}, 1, v{t1}
v_lshl_or_b32 v{t0}, v{t0}, 3, v{t1}
v_xor_b32 v{t0}, s{sWg}, v{t0}
v_lshlrev_b32 v{vFl}, 7, v{t0}
v_min_u32 v{t1}, 2, v0
v_lshl_add_u32 v{vFl}, v{t1}, 2, v{vFl}
s_add_u32 s{sXo[2]}, s{sXo[2]}, 5120
s_add_u32 s{sXo[3]}, s{sXo[3]}, 10240
s_mov_b32 s{sGx}, 0
s_lshl_b32 s{sFo}, s{sWg}, 7""") + [pair(f"s_cmp_eq_u32 s{sWave}, 0", f"s_cselect_b32 s{sFo}, s{sFo}, 0x10000")] + Is("""""") + (Is("v_mov_b32 v22, v31\nv_mov_b32 v23, v31") if OPT["stamps"] else [])
    held = {0: []}
    for u in range(NE0, u0):
        e = epi_unit(u, True, True)
        if u >= u0 - NT: held[0].append(e.pop())
        H += e
    H0 = H; H = []; gap = OPT["hgap"]
    for k, x in enumerate(H0):
        if k % gap == 0:
            while ld:
                y = ld.pop(0); H.append(y)
                if y.kind == "vmem": break
        H.append(x)
    H += ld + [WAIT(lneed=regs("a", wq(0), 8), vneed=Oset(0))] + stamp(49)
    body = {}
    for d in range(N):
        body[d] = []; held[d + 1] = []
        for u in left[d * NT:(d + 1) * NT]:
            e = epi_unit(u, False, True); held[d + 1].append(e.pop()); body[d] += e
    SG = (max(d for d in held if held[d]) + 1) | (0 if OPT['sge'] else 1)
    assert SG <= 7
    poll = f"buffer_load_dword v{t2}, v{vFl}, {S4(sFl)}, 0 offen sc1"
    RD = lambda rho, qt: RDQ[qt * 3 + rho - 1]
    def rload(rho, so):
        out = []
        for qt in range(5):
            if qt == 4: out.append(I(f"s_add_u32 s{sTt}, s{so}, 4096"))
            out.append(I(f"buffer_load_dwordx4 {R4(RD(rho, qt))}, v{vOf}, {S4(sXs)}, s{sTt if qt == 4 else so} offen offset:{(qt % 4)*1024} sc1", dst=regs(*RD(rho, qt), 4)))
        return out
    radd = lambda rhos, qt: [mfma(V4(acc(6 + h, qt)), V4(SEL + 4 * h), R4(RD(rho, qt)), V4(acc(6 + h, qt))) for h in range(2) for rho in rhos]
    flag = lambda off: Ins(f"s_mov_b64 exec, 1\nbuffer_store_dword v{vOne}, off, {S4(sFl)}, s{sFo} offset:{off} sc1\ns_mov_b64 exec, -1", kind="vmem")
    def mfs(ds):
        mf = []; n = 2 * len(ds)
        for t in range(8):
            for qt in range(5):
                ks = [(i, d, kb) for i, (d, kb) in enumerate((d, kb) for d in ds for kb in range(2))]
                if qt & 1 and len(ds) > 1: ks.reverse()
                for (i, d, kb) in ks:
                    a = acc(t, qt)
                    mf.append(mfma(V4(a), A4(wq(n * t + i)), R4(Of(d, kb, qt)), "0" if (d == 0 and kb == 0) else V4(a)))
        return mf
    def step(d):
        own = wreads([d])[NP:]; pre = d == DM - 1
        nx = MD if pre else [d + 1]
        nxt = wreads(nx)[:max(NP, 4 * len(nx))]
        hasb = (d & 1) or pre or d == SG
        ws = [WAIT(lneed=regs("a", wq(2 * t), 8), lo=10 * t - 3, hi=10 * t - 1, target=10 * t - 2) for t in range(1, 7 if hasb else 8)]
        ws.append(WAIT(lneed=regs("a", wq(0), 8 * len(nx)), vneed=set().union(*[Oset(x) for x in nx]), lo=78, hi=79, target=78.5))
        g = G - 6 if pre and M > 2 else G
        spread(own, 0, g - 6)
        for it in own: it.hi = min(it.hi, 10 * (it.f >> 1) - 7); it.target = min(it.target, it.hi - 1)
        rs = own; nov = ()
        if hasb:
            bar = BAR(Wt(U if pre else (d + 1) >> 1) | ({"OST"} if d == SG else set()), lo=g, hi=g); rs = rs + [bar]; nov = range(g, g + 9)
            for it in nxt: it.after = [bar]
        spread(nxt, g + 1, 73 if pre else 76)
        vm = []
        cadr = lambda m: f"s{sC1}" + (" offset:128" if m == 24 else "")
        if d in CK: vm += [I(f"buffer_load_dword v{vP2}, off, {S4(sFl)}, {cadr(CK[d])} sc1", dst={f"v{vP2}"})]
        if d % 4 == 3 or pre: vm += codepf()
        fs = OS[d]; k2_ = len([f for f in fs if f[0] < CK.get(d, 99)]); k = min(5, k2_)
        vm += oload(fs[:k]) + held[d]
        for x in WS.get(d, []): vm += wdma(*x)
        if d in CK:
            vm += oload(fs[k:k2_]); k = k2_
            rf = I(f"v_readfirstlane_b32 s88, v{vP2}")
            ck = [WAIT(vneed={f"v{vP2}"}), rf, Ins(f"s_cmp_lt_u32 s88, 32\ns_cbranch_scc1 K2_SPIN{CK[d]}{X}\nK2_RET{CK[d]}{X}:", kind="bar", after=[rf], dly=2)]
            n1 = len(vm); vm += ck
        vm += oload(fs[k:])
        if d == SG:
            at = atomic(vOne, sC1w, sFl); at.after = [bar]; vm.append(at)
        if d in CK:
            n_a = sum(x.kind == "vmem" for x in vm[:n1]); n_b = sum(x.kind == "vmem" for x in vm[n1:])
            c_ = max(OPT["ckg"], int(76 * n_a / (n_a + n_b)) - 4)
            if hasb and g - 5 < c_ < g + 9: c_ = g + 9 if n_b <= 3 else g - 5
            even(vm[:n1], 0, c_, [g]); even(vm[n1 + 3:], c_ + 5, 80, [g])
            for x in ck: x.lo = c_; x.target = c_; x.hi = c_ + 4
        else: even(vm, 0, int(0.8 * OPT["advf"]) if pre else 80, [g])
        es = body[d]
        if es:
            for k in range(len(es) // 20): es[20 * k].after = [held[d][k]] if NT == 3 else held[d][-1:]; es[20 * k].dly = 1
            spread(es, held[d][0].lo + 2, 79, nov)
        if d == 14: es = spread(late, 0, 79); assert d not in CK
        return schedule(mfs([d]), [ws, rs + nxt, vm, es], novalu=nov, name=f"k2s{d}{X}") + (stamp(50) if d == 5 else stamp(47, True) if d == 13 else stamp(56) if pre else [])
    WS = {d: [((d >> 1) + 2, d & 1)] for d in range(2 * (U - 1))}
    if 2 * U - 3 >= DM - 1: WS[2 * U - 4] += WS.pop(2 * U - 3)
    assert max(WS) < DM - 1
    def final():
        n = 2 * M; T = 5 * n
        own = wreads(MD)[max(NP, 2 * n):]
        for it in own:
            t, i = divmod(it.f, n)
            it.target = T * (t - 1) + i * (T - 9) / n; it.hi = T * t - 7
            if it.f >= 16: it.lo = T * ((it.f - 16) // n) + 4 * n + (it.f - 16) % n
        ws = [WAIT(lneed=set().union(*[regs("a", wq(n * t + i), 4) for i in range(n)]), lo=T * t - 3, hi=T * t - 1, target=T * t - 2) for t in range(1, 8)]
        sn = []
        for jl in range(3):
            for qt in range(5):
                a, b = acc(2 * jl, qt), acc(2 * jl + 1, qt)
                c = Is(f"""v_cvt_pk_bf16_f32 v{a}, v{a}, v{a+1}
v_cvt_pk_bf16_f32 v{a+1}, v{a+2}, v{a+3}
v_cvt_pk_bf16_f32 v{a+2}, v{b}, v{b+1}
v_cvt_pk_bf16_f32 v{a+3}, v{b+2}, v{b+3}""")
                if qt in (0, 4): c.append(I(f"s_add_u32 s{sTs}, s{sXo[0]}, {(2 - jl)*5120 + (qt // 4)*4096}"))
                c.append(I(f"buffer_store_dwordx4 {V4(a)}, v{vOf}, {S4(sXs)}, s{sTs} offen offset:{(qt % 4)*1024} sc1", dst={f"SN{jl}"}))
                lo = T * (2 * jl + 1) + n * (qt + 1) - 1 + 8
                for k, x in enumerate(c): x.lo = lo if k >= 2 else lo - 8; x.target = lo + k * 0.5 - 1
                sn += c
        ev = []; nov = []
        for jl in range(3):
            F = min(2 * T * (jl + 1) + 12 + OPT["fag"], 8 * T - OPT["fbg"])
            b_ = Ins("WAITBAR", kind="bar", vneed={f"SN{jl}"}, lo=F, hi=F); f_ = flag(4 * (2 - jl)); f_.after = [b_]; f_.target = F + 1; f_.hi = F + 3
            for x in sn[jl * len(sn) // 3:(jl + 1) * len(sn) // 3]: x.hi = F - 1
            ev += [b_, f_]; nov += range(F, F + 9)
        P1 = 8 * T - OPT["p1g"]; NS = OPT["nsp"]
        c = I(f"v_cmp_eq_u32 s[84:85], 1, v{t2}")
        sp = [I(poll, dst={f"v{t2}"}, lo=P1), WAIT(vneed={f"v{t2}"}, lo=P1 + 56), c, I(f"s_and_b32 s{sGx}, s84, {(0, 4, 6, 7)[NS]}", after=[c], dly=2)] if NS else []
        for x in sp[2:]: x.target = P1 + 57
        ld = []
        for rho in (3, 2, 1)[:NS]: ld += [pair(f"s_bitcmp1_b32 s{sGx}, {rho-1}", f"s_cselect_b32 s{sGs}, s{sXo[rho]}, 0x80000000")] + rload(rho, sGs)
        spread(ld, P1 + 62, min(8 * T - 2, P1 + 62 + 20 * NS))
        PL = 8 * T - OPT["plg"]
        ld.insert(len([x for x in ld if x.target < PL]), I(poll, dst={f"v{t2}"}, lo=PL))
        return schedule(mfs(MD), [ws, own, sn, ev, sp + ld], novalu=nov, name="k2fin")
    if "k2head" not in B: B["k2head"] = H + [x for d in range(A0) for x in step(d)] + (Is(f"s_bitcmp0_b32 s{sWg}, 0\ns_cbranch_scc1 K2_BODYe") if OPT["asy"] else [])
    assert SG < A0 and min(CK) >= A0
    B["k2body" + X] = Is(f"K2_BODY{X}:") + [x for d in range(A0, DM) for x in step(d)] + final()
    sys.stderr.write(f"[k2] SG {SG} CK {CK} loads/step {[len(OS[d]) for d in sorted(OS)]} spare quads {len(RDQ)}\n")
    E = stamp(51) + (Is(f"v_writelane_b32 v22, s{sSp}, 61\ns_getreg_b32 s87, hwreg(HW_REG_XCC_ID)\nv_writelane_b32 v22, s87, 62\nv_writelane_b32 v22, s{sBk}, 59\ns_memrealtime s[90:91]\ns_waitcnt lgkmcnt(0)\nv_writelane_b32 v22, s90, 63") if OPT["stamps"] in (6, 7, 8) else [])
    def rel(L):
        for x in L: x.text = re.sub(r"\b(K2_WX|K2_W1|K2_W2|K2_W3|K2_GO|K2_PS)\b", r"\1" + X, x.text)
        return L
    xadd = lambda: [x for qt in range(5) for x in radd((2, 3), qt)]
    E += stamp(52) + Is(f"s_cmp_eq_u32 s{sGx}, 7\ns_cbranch_scc1 K2_GO") + [WAIT(vneed={f"v{t2}"})] + Is(f"""K2_PS:
v_cmp_eq_u32 s[84:85], 1, v{t2}
s_add_u32 s{sSp}, s{sSp}, 1
s_cmp_gt_u32 s{sSp}, 0x40000
s_nop 0
s_cselect_b32 s84, 7, s84
s_andn2_b32 s85, s84, s{sGx}
s_or_b32 s{sGx}, s{sGx}, s84
s_and_b32 s{sGx}, s{sGx}, 7""")
    for rho in (3, 2, 1): E += Is(f"s_bitcmp0_b32 s85, {rho-1}\ns_cbranch_scc1 K2_W{rho}") + rload(rho, sXo[rho]) + Is(f"K2_W{rho}:")
    E += Is(f"s_cmp_lg_u32 s{sGx}, 7\ns_cbranch_scc1 K2_WX")
    B["k2epi" + X] = rel(E)
    B["k2wx" + X] = rel(Is(f"K2_WX:\n{poll}\ns_waitcnt vmcnt(0)\ns_branch K2_PS"))
    E = Is("K2_GO:") + stamp(53)
    def fin(qt):
        a, b = acc(6, qt), acc(7, qt)
        return Is(f"""v_cvt_pk_bf16_f32 v{a}, v{a}, v{a+1}
v_cvt_pk_bf16_f32 v{a+1}, v{a+2}, v{a+3}
v_cvt_pk_bf16_f32 v{a+2}, v{b}, v{b+1}
v_cvt_pk_bf16_f32 v{a+3}, v{b+2}, v{b+3}
s_nop 1
v_permlane16_swap_b32 v{a}, v{a+2}
v_permlane16_swap_b32 v{a+1}, v{a+3}
ds_write_b128 v{vLp}, {V4(a)} offset:{qt*1024}""") + [I(f"ds_read_b128 {V4(144+4*qt)}, v{vRd} offset:{qt*1024}", dst=regs("v", 144 + 4 * qt, 4))]
    out = lambda qt: [I(f"s_mov_b32 s87, {qt*16*2560}"), WAIT(lneed=regs("v", 144 + 4 * qt, 4)), I(f"buffer_store_dwordx4 {V4(144+4*qt)}, v{vSt}, {S4(sOut)}, s87 offen")]
    for qt in range(5):
        E += Is(f"s_waitcnt vmcnt({4 - qt})") + radd((3, 2, 1), qt)
        if qt >= 1: E += fin(qt - 1)
    E += out(0) + out(1) + out(2) + fin(4) + out(3) + out(4)
    E += stamp(54) + (Is(f"v_writelane_b32 v22, s{sSp}, 60\nv_writelane_b32 v23, s87, 60") if OPT["stamps"] else [])
    B["k2fin" + X] = rel(E) + (Is("s_branch K1_DONE") if OPT["stamps"] else Is("s_endpgm"))
    B["k2end"] = Is("K1_DONE:") + stamp_out(S2(sKA), sWg, sWave, t0, 0x4000000) + Is("K1_END:\ns_endpgm")
    spin = lambda nm, ret, ld, rd: Is(f"""{nm}:
s_add_u32 s{sSp}, s{sSp}, 1
s_cmp_gt_u32 s{sSp}, 0x40000
s_cbranch_scc1 {ret}
s_sleep 4
{ld}
s_waitcnt vmcnt(0)
{rd}
s_nop 3
s_cmp_lt_u32 s88, 32
s_cbranch_scc1 {nm}
s_branch {ret}""")
    B["k2side"] = Is(f"""K1_REDO:
s_mov_b32 s{sMode}, 1
s_waitcnt vmcnt(0) lgkmcnt(0)
s_barrier""") + B["kre"] + spin("K2_SPIN0", "K2_RET0", f"buffer_load_dwordx2 v[{vPoll}:{vPoll+1}], off, {S4(sDb)}, s{sCo} sc1", f"v_min_u32 v{t0}, v{vPoll}, v{vPoll+1}\ns_nop 0\nv_readfirstlane_b32 s88, v{t0}")
    B["k2sp" + X] = [x for m in CK.values() for x in spin(f"K2_SPIN{m}{X}", f"K2_RET{m}{X}", f"buffer_load_dword v{vP2}, off, {S4(sFl)}, s{sC1}" + (" offset:128" if m == 24 else "") + " sc1", f"v_readfirstlane_b32 s88, v{vP2}")]
    D = Is("K2_IDLE:") + common()
    for u in range(NE0, 24): D += epi_unit(u, True)
    D += Is("s_waitcnt vmcnt(0)\ns_barrier") + [atomic(vOne, sC1w, sFl)]
    if OPT["wsh"] == 2:
        D += Is(f"""s_bfe_u32 s80, s{sWg}, 0x10001
s_bfe_u32 s81, s{sWg}, 0x10003
s_lshl1_add_u32 s80, s81, s80
s_add_u32 s81, s80, 60
s_mul_i32 s81, s81, 30720
s_sub_u32 s81, {3072*1280}, s81
s_add_u32 s{sOo}, s{sNb}, s81
s_addc_u32 s{sOo+1}, s{sNb+1}, 0
s_mov_b32 s{sOo+2}, {1536*1280}
s_lshl_b32 s80, s80, 14
K2_PFL:""")
        for h in range(2): D += Is(f"s_add_u32 s81, s80, {h*768*1280}") + [I(f"buffer_load_dword v{64+j}, v{vO}, {S4(sOo)}, s81 offen offset:{j*1024}", dst={f"v{64+j}"}) for j in range(4)]
        D += Is(f"""s_add_u32 s80, s80, 65536
s_waitcnt vmcnt(24)
s_cmp_lt_u32 s80, {768*1280}
s_cbranch_scc1 K2_PFL""")
    D += (Is("v_mov_b32 v22, v31\nv_mov_b32 v23, v31") if OPT["stamps"] else []) + (stamp(54) if OPT["stamps"] == 9 else []) + Is("s_branch K1_DONE")
    B["k2idle"] = D
    return ["k2pro", "k2head", "k2body" + X, "k2epi" + X, "k2fin" + X]

def oproj(B, NE0):
    a = OPT["asy"]
    tr = [oproj1(B, NE0, "o", 24 - a)] + ([oproj1(B, NE0, "e", 24 + a)] if a else [])
    lay = ["k2pro", "k2head"] + [b + x for x in ("oe" if a else "o") for b in ("k2body", "k2epi", "k2fin", "k2wx", "k2sp")] + ["k2end"]
    return tr, lay

def desc(name, vg=512, acc=256):
    return f""".p2align 6
.amdhsa_kernel {name}
  .amdhsa_next_free_vgpr {vg}
  .amdhsa_next_free_sgpr 102
  .amdhsa_accum_offset {acc}
  .amdhsa_group_segment_fixed_size 0
  .amdhsa_kernarg_size 104
  .amdhsa_user_sgpr_count 2
  .amdhsa_user_sgpr_kernarg_segment_ptr 1
  .amdhsa_system_sgpr_workgroup_id_x 1
  .amdhsa_float_denorm_mode_32 3
.end_amdhsa_kernel"""

def main():
    k1, e1 = kernel1()
    ref = open("cdna_kernels/" + NAME + ".s.ref").read().split("\n")
    head = [l for l in ref if l.startswith(";") and "@launch" not in l]
    nm = NAME + "_kernel"
    out = head + [f"; @launch grid=(256,1,1) block=(256,1,1) lds=163840"] + """;
; One persistent workgroup per CU (4 waves, 64 query rows each, 512 registers, 16x16x32 bf16 MFMA).
;   per workgroup: two heads of one (branch, batch): Q projection -> flash attention -> O (bf16, fragment order) to d_ws
;   then the output projection in the same launch, behind counters (d_debug, d_ws) that order the hand-offs.
; Softmax shift = true max of the first keys of each row; the row sums are checked at the end and, if the shift was
; too small for any row (sum >= 2^60 or not finite), the workgroup redoes its heads with the exact row max.
; Written by a generator script (static instruction placement between the MFMAs, counted waits).""".split("\n") + ['.amdgcn_target "amdgcn-amd-amdhsa--gfx950"', ".text"]
    out += [f".globl {nm}", ".p2align 8", f".type {nm},@function", f"{nm}:"] + k1
    out += ["K_CODE_END:", "s_endpgm", '.section .rodata,"a"', desc(nm)]
    open(sys.argv[1], "w").write("\n".join(out) + "\n")
    if e1: sys.exit(1)
main()
```

```python
import sys, math, re
from asmlib import *
from verify import verify

OPT = dict(nt_kv=1, nt_w=0, nt_x=0, nt_o=2, k2_nt_o=2, k2_nt_w=0, stamps=0, ovl=1, ne0=6, nc9=7, pf=1, cpf=1, k2e=9, sigs=4, pfs=0, cpl=1, k2fix=0, osc=1, ev=1, lmf=1, padn=0, padm=0, enc=0, kvn=0, kv0=10, kvpos=70, kvph=7, encb=30000, outp=0, na0=2, bg15=60, hgap=8, rot=0, wpf=1, hold=1, padi=0, cpw=0x88, vmx=63, xq=3, xp=2, me=0x3f, mo=0x3f, cw8=4, pq=2, pp=0, lq=0, lp=0, la1=0, pskip=2, cpfirst=0, m1=0, adp=9, adn=2, nfl=0, tw=0, rmp=0, k2n=3, cpk=0x88888, fag=62, wop=1, mrg=4, adv0=8, advf=55, asy=2, fbg=12, plg=45, p1g=120, sge=1, ckg=52, nsp=0, woa=0, wsh=2, adb=0)
for a in sys.argv[2:]:
    k, v = a.split("="); assert k in OPT, k; OPT[k] = int(v, 0)
NAME = "concat_heads__gqa_block_cached__gqa_block_cached__near_ridge"
MF = "v_mfma_f32_16x16x32_bf16"
def I(t, **kw): return Ins(t, **kw)
def Is(txt): return [Ins(t.strip()) for t in txt.strip().split("\n") if t.strip()]
def mfma(d, a, b, c): return Ins(f"{MF} {d}, {a}, {b}, {c}")
def V4(b): return f"v[{b}:{b+3}]"
def A4(b): return f"a[{b}:{b+3}]"

TILE = 24576; WS = 64 * 12288
X0 = 0; RING = 32768; X1 = 131072
def slot(i): return RING + i * TILE
vK = [[1, 2], [3, 4]]; KW = [0, 65536]
vV = [[5, 6, 7, 8], [9, 10, 11, 12]]; VW = [32768, 98304]
vXr = [[13, 14], [15, 16]]
vD = [17, 18]; vDkv = 19; vDw = 20; vDx = 21; vO = 22; vO3 = 23
vL = [24, 25, 26, 27]; vMi = [40, 41, 42, 43]; vT = 32
NEGM = 48; SP = 64; QF = 160
RCP = 48
def negm(qt): return NEGM + 4 * qt
def XY(par, kb, qt): return SP + 4 * ((par * 2 + kb) * 4 + qt)
def Z(kb, qt): return SP + 64 + 4 * (kb * 4 + qt)
def Qf(qt, s): return QF + 4 * (qt * 6 + s)
def Qb(qt, s):
    return SP + 4 * (qt * 6 + s)
def Oacc(t, qt): return 4 * (t * 4 + qt)
def Xf(n, kb, qt): return 32 * (n & 1) + 4 * (kb * 4 + qt)
FR = 192
def fq(n, f): return FR + 4 * ((f + 8 * (n & 1)) % 16)
sX = 4; sDA = 8; sDB = 12; sO = 16
sK = 20; sV = 22; sNb = 24; sNnum = 26; sNs = 27; sNd = 28; sXnum = 29; sN2 = 30; sMask = 32
sA = 34; sB = 35; sI = 39; sWoff = 40; sXoff = 41
sOs = [42, 43, 44, 45, 37, 38]; sT = 46; sItem = 47; sMode = 48; sFlag = 49; sC = 50
sWave = 52; sWg = 53; sT2 = 54; sT3 = 55; sThr = 56; sKA = 58
sLd = 4
sP1 = 60; vPf = 248; vPoll = 228
sWoP = 64; sOutP = 66; sWsP = 68; sSig = 70; sPfo = 71; sDb = 72; sCo = 76; sOn = 77; sSp = 78
sCp = 97; sBk = 3; sK2n = 79; sXk = 57; sXst = 2; sWk = 0; sSel = 1; sAll = 36; sXn = 98; sK2O = 100; FLO = RING + 3 * TILE
FLG = 0x2e00000; XCH = 0x2f00000
def S4(b): return f"s[{b}:{b+3}]"
def S2(b): return f"s[{b}:{b+1}]"
BG = 76
NOV = range(BG, BG + 9)
NPRE_V = 10; NPRE_K = 6
OSTRIDE = 24 * 120 * 1024

def lastuse_pv(f): return 8 * (f >> 1) + 6 + (f & 1)
def lastuse_qk(f): kt, s = divmod(f, 6); return 24 * kt + 18 + (5 - s)

def reads_v(n, base):
    out = []
    for f in range(24):
        t, kb = f >> 1, f & 1
        r = fq(n, f)
        for hf in range(2):
            off = base + (4 * kb + 2 * hf) * 3072 + (t >> 2) * 1024
            w = 1 if off >= VW[1] else 0
            it = I(f"ds_read_b64_tr_b16 a[{r+2*hf}:{r+2*hf+1}], v{vV[w][t & 3]} offset:{off-VW[w]}", dst=regs("a", r + 2 * hf, 2)); it.f = f
            out.append(it)
    return out
def reads_k(n, base):
    out = []
    for f in range(24):
        kt, s = divmod(f, 6); r = fq(n, f)
        off = base + kt * 6144 + (s >> 1) * 1024
        w = 1 if off >= KW[1] else 0
        it = I(f"ds_read_b128 {A4(r)}, v{vK[w][s & 1]} offset:{off-KW[w]}", dst=regs("a", r, 4)); it.f = f
        out.append(it)
    return out
def reads_x(n):
    return [I(f"ds_read_b128 {A4(Xf(n, kb, qt))}, v{vXr[n & 1][kb]} offset:{qt*2048}", dst=regs("a", Xf(n, kb, qt), 4)) for qt in range(4) for kb in range(2)]

def dma(srd, soff, base, nt):
    n = " nt" if nt else ""
    out = []
    for p in range(3):
        m = I(f"s_add_u32 m0, s{sWoff}, {base + 896*p}")
        a = I(f"buffer_load_dwordx4 v{vD[0]}, {S4(srd)}, s{soff} offen offset:{p*128}{n} lds", dst={f"L{base}"}, after=[m])
        b = I(f"buffer_load_dwordx4 v{vD[1]}, {S4(srd)}, s{soff} offen offset:{p*128+3072}{n} lds", dst={f"L{base}"})
        out += [m, a, b]
    return out
def dma_w(m): return Is(f"s_add_u32 s{sWk}, s{sWk}, s{sNs}\ns_cmp_eq_u32 s{sWk}, {10*WS}\ns_cselect_b32 s{sWk}, 0, s{sWk}") + dma(sDA, sWk, slot(m % 4), OPT["nt_w"])
def dma_k(i, base): return [I(f"s_mov_b32 s{sT2}, {i*TILE}")] + dma(sDA, sT2, base, OPT["nt_kv"])
def dma_v(i, base): return [I(f"s_mov_b32 s{sT2}, {i*TILE}")] + dma(sDB, sT2, base, OPT["nt_kv"])
dma_n = dma_w
def hd(d): return d[:-6]
def tl(d): return d[-6:]
def dma_x(n):
    out = Is(f"s_add_u32 s{sXk}, s{sXk}, s{sXst}\ns_cmp_eq_u32 s{sXk}, 1280\ns_cselect_b32 s{sXk}, 0, s{sXk}"); base = X1 if n & 1 else X0
    for j in range(8):
        if j % 4 == 0: out.append(I(f"s_add_u32 m0, s{sXoff}, {base + j*1024}"))
        out.append(I(f"s_add_u32 s{sT}, s{sXk}, {j*10240 - (j % 4)*1024}"))
        out.append(I(f"buffer_load_dwordx4 v{vDx}, {S4(sX)}, s{sT} offen offset:{(j % 4)*1024}" + (" nt" if OPT["nt_x"] else "") + " lds", dst={f"X{n&1}_{j>>1}"}))
    return out

def phase(name, n, typ, mf, own, nxt, nxt_typ, pub, early, dmas, extra=(), post=(), early_hi=None, bg=BG, dend=None, endx=frozenset()):
    lu = lastuse_pv if typ == "v" else lastuse_qk
    N = len(mf)
    rs = []
    if typ == "v":
        k0 = 48 - len(own)
        for j, it in enumerate(own):
            it.target = j * (bg - 6) / len(own)
            it.hi = min(8 * (it.f >> 1) - 6, bg - 5)
            if it.f >= 16: it.lo = lu(it.f - 16)
            it.hi = max(it.hi, it.lo)
    else:
        for j, it in enumerate(own):
            kt, s = divmod(it.f, 6)
            it.target = 24 * (kt - 1) + 1 + s * 2.5; it.hi = 24 * kt - 8
            if it.f >= 16: it.lo = lu(it.f - 16)
    rs += own
    bar = BAR(pub if isinstance(pub, set) else {f"L{pub}"}, lo=bg, hi=bg); rs.append(bar)
    for j, it in enumerate(nxt):
        it.lo = max(bg + 1, lu(it.f + 8)); it.after = [bar]
        it.target = bg + 1 + (j * 1.8 if nxt_typ == "v" else j * 1.5); it.hi = N - 1 if nxt_typ == "v" and j >= 4 else N - 8
    rs += nxt
    ws = []
    if typ == "v":
        for t in range(1, 12):
            if 8 * t - 1 >= bg: break
            ws.append(WAIT(lneed=regs("a", fq(n, 2 * t), 4) | regs("a", fq(n, 2 * t + 1), 4), lo=8 * t - 3, hi=8 * t - 1, target=8 * t - 2))
    else:
        for kt in range(1, 4):
            ws.append(WAIT(lneed=set().union(*[regs("a", fq(n, 6 * kt + s), 4) for s in range(6)]), lo=24 * kt - 3, hi=24 * kt - 1, target=24 * kt - 2))
    nf = 2 if nxt_typ == "v" else 6
    ws.append(WAIT(lneed=set().union(*[regs("a", fq(n + 1, f), 4) for f in range(nf)]) | endx, lo=N - 2, hi=N - 1, target=N - 1.5))
    ms = list(early)
    spread(ms, 1, early_hi or bg - 6)
    nv = sum(1 for it in dmas if it.kind == "vmem"); k = 0
    for it in dmas:
        it.lo = bg + 1 if it.kind == "vmem" else bg - 4
        it.target = bg + 2 + k * min(12.0, ((dend or N) - bg - 3) / max(nv, 1)) - (0 if it.kind == "vmem" else 2.5)
        if it.kind == "vmem": it.after = it.after + [bar]; k += 1
    ms += dmas
    for it in post: it.lo = bg + 1; it.target = N - 6
    ms += list(post)
    return schedule(mf, [ws, rs, ms] + list(extra), novalu=range(bg, bg + 9), name=name)

def softmax(groups, lo, hi, sub=None, skip=NOV):
    E = []; D = []; P = []
    for (par, kb, qt, l0, l1, h, sb_) in groups:
        x, z = XY(par, kb, qt), Z(kb, qt)
        src = [x, x + 1, x + 2, x + 3, z, z + 1, z + 2, z + 3]
        for pr in range(4):
            es = []
            for e in range(2):
                r = src[2 * pr + e]
                ex = I(f"v_exp_f32 v{r}, v{r}", lo=(l0, l1)[pr >> 1])
                if sb_:
                    sb = I(f"v_add_f32 v{r}, v{r}, v{negm(qt)}", after=[sub[qt]] if sub else [], lo=(l0, l1)[pr >> 1]); sb.ex = ex; P.append(sb); ex.after = [sb]
                E.append(ex); es.append(ex)
            D.append(I(f"v_cvt_pk_bf16_f32 v{x+pr}, v{src[2*pr]}, v{src[2*pr+1]}", after=es, hi=h))
    spread(E, lo, hi, skip)
    for e in E: e.hi = 10**9
    for d in D:
        d.target = max(a.target for a in d.after) + 1
        for a in d.after: a.hi = d.hi - 1
    for p in P: p.target = p.ex.target - 3; p.hi = p.ex.hi - 1
    return [P, E, D]
def g_old(par, kb, qts, N, inqk):
    return [(par, kb, qt, 0, 0, (48 * kb + 24 + 6 * qt - 1) if inqk else N - 1, False) for qt in qts]
def g_new(par, qts):
    return [(par, 0, qt, 6 * qt + 13, 24 + 6 * qt + 13, 95, False) for qt in qts]

def mf_w(n):
    out = []
    for t in range(12):
        for qt in range(4):
            d = Qf(qt, t >> 1) if t % 2 == 0 else Qb(qt, t >> 1)
            for kb in range(2):
                out.append(mfma(V4(d), A4(fq(n, 2 * t + kb)), A4(Xf(n, kb, qt)), "0" if (n == 0 and kb == 0) else V4(d)))
    return out
def mf_qk(n, par, first=False):
    out = []
    for kt in range(4):
        for qt in range(4):
            d = XY(par, kt >> 1, qt) if kt % 2 == 0 else Z(kt >> 1, qt)
            order = range(6) if qt % 2 == 0 else range(5, -1, -1)
            for j, s in enumerate(order):
                c = V4(d) if j else ("0" if (first and kt < 2) else V4(negm(qt)))
                out.append(mfma(V4(d), A4(fq(n, 6 * kt + s)), V4(Qf(qt, s)), c))
    return out
def mf_l(par, first=False):
    return [mfma(V4(vL[0]), V4(32 + 4 * qt), V4(XY(par, kb, qt)), "0" if (first and qt + kb == 0) else V4(vL[0])) for kb in range(2) for qt in range(4)]
def mf_pv(n, par, first=False):
    out = []
    for t in range(12):
        for qt in range(4):
            for kb in range(2):
                out.append(mfma(A4(Oacc(t, qt)), A4(fq(n, 2 * t + kb)), V4(XY(par, kb, qt)), "0" if (first and kb == 0) else A4(Oacc(t, qt))))
    return out

ETMP = [32, 40, 56]
def epi_unit(u, packed, k2=False):
    s, qt = divmod(u, 4)
    tb = ETMP[u % 3] if OPT["stamps"] in (0, 6, 7, 8, 9) else [24, 32, 56][u % 3] if k2 else [32, 56][u % 2]
    out = []
    rc = RCP + 2 * qt
    for h in range(2):
        for j in range(4): out.append(I(f"v_accvgpr_read_b32 v{tb+4*h+j}, a{Oacc(2*s+h, qt)+j}"))
        if packed:
            for j in range(2): out.append(I(f"v_pk_mul_f32 v[{tb+4*h+2*j}:{tb+4*h+2*j+1}], v[{tb+4*h+2*j}:{tb+4*h+2*j+1}], v[{rc}:{rc+1}]"))
        else:
            for j in range(4): out.append(I(f"v_mul_f32 v{tb+4*h+j}, v{tb+4*h+j}, v{rc}"))
        for j in range(2): out.append(I(f"v_cvt_pk_bf16_f32 v{tb+2*h+j}, v{tb+4*h+2*j}, v{tb+4*h+2*j+1}"))
    out.append(I(f"buffer_store_dwordx4 {V4(tb)}, v{vO3 if qt == 3 else vO}, {S4(sO)}, s{sOs[s]} offen offset:{qt*1024}" + ["", " nt", " sc1", " sc0 sc1"][OPT["nt_o"]], dst={"OST"}))
    return out
def cvt_unit(s, qt, packed):
    a, b = Qf(qt, s), Qb(qt, s)
    out = []
    if packed:
        for r in (a, a + 2, b, b + 2): out.append(I(f"v_pk_mul_f32 v[{r}:{r+1}], v[{r}:{r+1}], {S2(sC)}"))
    else:
        for r in (a, a + 1, a + 2, a + 3, b, b + 1, b + 2, b + 3): out.append(I(f"v_mul_f32 v{r}, s{sC}, v{r}"))
    out += Is(f"""v_cvt_pk_bf16_f32 v{a}, v{a}, v{a+1}
v_cvt_pk_bf16_f32 v{a+1}, v{a+2}, v{a+3}
v_cvt_pk_bf16_f32 v{a+2}, v{b}, v{b+1}
v_cvt_pk_bf16_f32 v{a+3}, v{b+2}, v{b+3}""")
    sw = Is(f"v_permlane16_swap_b32 v{a}, v{a+2}\nv_permlane16_swap_b32 v{a+1}, v{a+3}")
    return out, sw

def pf():
    return [I(f"v_add_u32 v{vPf}, s{sPfo}, v{vO}")] + [I(f"buffer_load_dwordx4 {V4(252)}, v{vPf}, {S4(sP1)}, " + ("0" if j < 4 else f"s{sT3}") + f" offen offset:{(j % 4)*1024}", dst=regs("v", 252, 4)) for j in range(6)]

def atomic(v, so, srd=None):
    it = Ins(f"s_mov_b64 exec, 1\nbuffer_atomic_add v{v}, off, {S4(srd or sDb)}, s{so}\ns_mov_b64 exec, -1", kind="vmem"); it.cost = 8
    return it
def codepf():
    return [I("global_load_dword v30, v[28:29], off", dst={"v30"})] if OPT["cpl"] else []

def jobid(d, t):
    if not OPT["rmp"]: return f"s_mov_b32 s{d}, s{sWg}"
    return f"""s_lshr_b32 s{t}, s{sWg}, 4
s_xor_b32 s{t}, s{t}, s{sWg}
s_and_b32 s{t}, s{t}, 1
s_mul_i32 s{t}, s{t}, 17
s_cmp_ge_u32 s{sWg}, 224
s_cselect_b32 s{t}, s{t}, 0
s_xor_b32 s{d}, s{sWg}, s{t}"""

def lin(items):
    out = []
    for k, it in enumerate(items):
        out.append(it)
        if it.text.startswith("s_add_u32 m0") and items[k + 1].kind == "vmem": out.append(I("s_nop 0"))
    return out

def stamp(idx, k2=False):
    if not OPT["stamps"]: return []
    if OPT["stamps"] == 9:
        if idx not in (48, 54): return []
        return Is(f"s_memrealtime s[94:95]\ns_waitcnt lgkmcnt(0)\nv_writelane_b32 v{31 if idx == 48 else 22}, s94, {idx}")
    va, vb = (22, 23) if idx >= 51 else (31, 31) if OPT['stamps'] >= 6 else (46, 47)
    if idx == -2: sel = "s_add_u32 s92, s39, 31"
    elif idx < 0: sel = f"s_mul_i32 s92, s{sItem}, 24\ns_add_u32 s92, s92, s{sI}\ns_add_u32 s92, s92, 8"
    else: sel = f"s_mov_b32 s92, {idx}" if (k2 or idx >= 48) else f"s_mul_i32 s92, s{sItem}, 24\ns_add_u32 s92, s92, {idx}"
    return Is(f"""s_memtime s[90:91]
s_memrealtime s[94:95]
s_waitcnt lgkmcnt(0)
s_cselect_b32 s96, 1, 0
{sel}
s_mov_b32 s93, m0
s_mov_b32 m0, s92
v_writelane_b32 v{vb}, s94, m0
v_writelane_b32 v{va}, s90, m0
s_mov_b32 m0, s93
s_cmp_lg_u32 s96, 0""")
def stamp_out(karg, wg, wave, tmp, base, k2=False):
    if not OPT["stamps"]: return []
    va = 22
    return Is(f"""s_load_dwordx2 s[80:81], {karg}, 96
s_waitcnt lgkmcnt(0)
s_add_u32 s80, s80, {base}
s_addc_u32 s81, s81, 0
s_mov_b32 s82, 0x100000
s_mov_b32 s83, 0x20000
s_lshl_b32 s84, s{wg}, 2
s_add_u32 s84, s84, s{wave}
s_lshl_b32 s84, s84, 9
v_lshlrev_b32 v{tmp}, 3, v0
buffer_store_dwordx2 v[{va}:{va+1}], v{tmp}, s[80:83], s84 offen""")


def pst(idx):
    if OPT["stamps"] != 8: return []
    return Is(f"s_memtime s[28:29]\ns_waitcnt lgkmcnt(0)\nv_writelane_b32 v31, s28, {idx}") if idx < 18 else stamp(idx, True)
def kernel1():
    B = {}
    c = math.log2(math.e) / math.sqrt(192.0)
    import struct
    cbits = struct.unpack("<I", struct.pack("<f", c))[0]
    selinit = f"s_mov_b32 s{sSel}, {OPT['me']}" if OPT['me'] == OPT['mo'] else f"s_getreg_b32 s{sSel}, hwreg(HW_REG_XCC_ID, 0, 1)\ns_cmp_eq_u32 s{sSel}, 0\ns_cselect_b32 s{sSel}, {OPT['me']}, {OPT['mo']}"
    wshare = f"""s_lshr_b32 s86, s88, 1
s_and_b32 s87, s86, 32
s_add_u32 s86, s86, s87
s_and_b32 s87, s88, 1
s_lshl_b32 s87, s87, 5
s_add_u32 s86, s86, s87
s_mul_i32 s86, s86, 61440""" if OPT["wsh"] == 1 else """s_lshr_b32 s86, s88, 1
s_and_b32 s87, s88, 1
s_lshl_b32 s87, s87, 6
s_add_u32 s86, s86, s87
s_mul_i32 s86, s86, 30720""" if OPT["wsh"] == 2 else "s_mul_i32 s86, s88, 61440"
    kload = lambda b: Is(f"s_load_dwordx16 s[4:19], {b}, 0\ns_load_dwordx8 s[20:27], {b}, 64\ns_load_dwordx2 {S2(sWsP)}, {b}, 96")
    B["kre"] = kload(S2(sKA)) + Is("s_branch K1_PRO")
    B["entry"] = Is("s_cmp_ge_u32 s2, 256\ns_cbranch_scc1 K1_END") + kload("s[0:1]") + Is(f"""
v_lshrrev_b32 v{vT}, 6, v0
v_and_b32 v0, 63, v0
s_mov_b32 s{sWg}, s2
v_readfirstlane_b32 s{sWave}, v{vT}
s_mov_b64 {S2(sKA)}, s[0:1]
s_mov_b32 s{sMode}, 0
s_mov_b32 s{sSig}, 0""") + stamp(48)
    cpa = Is(f"""
s_getpc_b64 s[90:91]
K1_PC:
s_lshr_b32 s86, s{sWg}, 3
s_lshl2_add_u32 s86, s86, s{sWave}
s_lshl_b32 s86, s86, 10
v_lshl_add_u32 v28, v0, 4, s86
v_min_u32 v28, (K_CODE_END-K1_PC-32)&0xfffffff0, v28
s_and_b32 s90, s90, 0xfffffff0
v_mov_b32 v29, s91
v_add_co_u32 v28, vcc, s90, v28
s_mov_b32 s{sSp}, 0
s_nop 0
v_addc_co_u32 v29, vcc, 0, v29, vcc""") + codepf()
    t0, t1, t2, t3 = vT, vT + 1, vT + 2, vT + 3
    P = Is(f"""K1_PRO:
s_lshr_b32 s82, s{sWg}, 6
s_and_b32 s83, s{sWg}, 2
s_lshl1_add_u32 s81, s83, s82
s_mul_i32 s82, s81, 307200
s_lshl_b32 s{sXoff}, s{sWave}, 13
s_lshl_b32 s86, s{sWave}, 6
v_lshrrev_b32 v{t0}, 3, v0
v_and_b32 v{t1}, 7, v0
v_and_b32 v{t2}, 6, v{t0}
v_xor_b32 v{t1}, v{t1}, v{t2}
v_add_u32 v{t2}, s86, v{t0}
v_mul_u32_u24 v{vDx}, 1280, v{t2}
v_lshl_add_u32 v{vDx}, v{t1}, 4, v{vDx}
s_bfe_u32 s{sT3}, s{sWg}, 0x10002
s_waitcnt lgkmcnt(0)
s_cselect_b64 s[92:93], s[16:17], s[6:7]
s_cselect_b64 s[4:5], s[14:15], s[4:5]
s_add_u32 s{sX}, s4, s82
s_addc_u32 s{sX+1}, s5, 0
s_mov_b32 s{sX+2}, 307200
s_mov_b32 s{sX+3}, 0x20000
s_mov_b32 s{sXk}, 0""") + pst(16) + (cpa if OPT['cpfirst'] else []) + dma_x(0)[3:] + ([] if OPT['cpfirst'] else cpa) + Is(f"""
s_cmp_eq_u32 s{sT3}, 0
s_cselect_b64 s[94:95], s[8:9], s[18:19]
s_cselect_b64 s[96:97], s[10:11], s[20:21]
s_cselect_b64 {S2(sWoP)}, s[12:13], s[22:23]
s_mov_b64 {S2(sOutP)}, s[24:25]
s_mov_b64 {S2(sDb)}, s[26:27]
s_lshr_b32 s{sT2}, s{sWg}, 3
s_and_b32 s88, s{sWg}, 1
s_and_b32 s89, s{sT2}, 7
s_lshl3_add_u32 s80, s88, s89
s_mul_i32 s84, s80, 384
s_mul_i32 s{sWoff}, s{sWave}, 6144
v_mul_u32_u24 v{vDkv}, 384, v{t0}
v_lshl_add_u32 v{vDkv}, v{t1}, 4, v{vDkv}
v_add_u32 v{vDkv}, s{sWoff}, v{vDkv}
v_and_b32 v{t2}, 4, v{t1}
v_and_b32 v{t3}, 1, v{t1}
v_lshl_or_b32 v{t2}, v{t3}, 1, v{t2}
v_bfe_u32 v{t3}, v{t1}, 1, 1
v_or_b32 v{t1}, v{t2}, v{t3}
v_and_b32 v{t2}, 3, v{t0}
v_lshrrev_b32 v{t3}, 2, v{t0}
v_lshl_add_u32 v{t2}, v{t3}, 3, v{t2}
s_lshr_b32 s86, s{sWave}, 1
s_lshl_b32 s86, s86, 5
s_and_b32 s87, s{sWave}, 1
s_lshl2_add_u32 s86, s87, s86
v_add_u32 v{t2}, s86, v{t2}
v_mul_u32_u24 v{vDw}, 12288, v{t2}
v_lshl_add_u32 v{vDw}, v{t1}, 4, v{vDw}
v_mov_b32 v{vD[0]}, v{vDw}
v_add_u32 v{vD[1]}, {196608-3072}, v{vDw}
s_add_u32 s{sDA}, s96, s84
s_addc_u32 s{sDA+1}, s97, 0
s_sub_u32 s{sDA+2}, 7864320, s84
s_mov_b32 s{sDA+3}, 0x20000
s_mov_b32 s{sNs}, {WS}
s_mov_b32 s{sWk}, 0
s_mov_b32 s{sXst}, 128
""")
    P0 = P
    P = Is(f"""
s_lshl_b32 s83, s81, 5
s_add_u32 s83, s83, s80
s_mul_i32 s83, s83, 393216
s_lshl_b32 s85, s{sT3}, 5
s_lshl_b32 s86, s88, 4
s_add_u32 s85, s85, s86
s_add_u32 s85, s85, s89
s_and_b32 s86, s89, 4
s_add_u32 s85, s85, s86
s_mul_i32 s85, s85, 720
s_mul_i32 s86, s81, 15
s_add_u32 s85, s85, s86
s_lshl_b32 s85, s85, 10
s_and_b32 s88, s{sWg}, 3
s_lshl_b32 s89, s{sT2}, 2
s_add_u32 s88, s88, s89
s_add_u32 s{sK}, s92, s83
s_addc_u32 s{sK+1}, s93, 0
s_add_u32 s{sV}, s94, s83
s_addc_u32 s{sV+1}, s95, 0
s_mov_b32 s{sDb+2}, 256
s_mov_b32 s{sDb+3}, 0x20000
s_bfe_u32 s{sCo}, s{sWg}, 0x20001
s_lshl_b32 s{sCo}, s{sCo}, 6
s_mov_b32 s{sPfo}, s{sXoff}
s_cmp_eq_u32 s{sSig}, 0
s_cselect_b32 s{sOn}, {5*122880+15*1024}, 0
s_add_u32 s{sNb}, s{sDA}, 6144
s_addc_u32 s{sNb+1}, s{sDA+1}, 0
s_sub_u32 s{sNnum}, s{sDA+2}, 6144
s_mov_b32 s{sNd}, {196608-3072}
s_mov_b64 {S2(sMask)}, 0
s_mov_b32 s{sXnum}, 307200
{wshare}
s_add_u32 s{sN2}, s{sWoP}, s86
s_addc_u32 s{sN2+1}, s{sWoP+1}, 0
s_mul_i32 s86, s88, {4*12288}
s_add_u32 s86, s86, {128*12288+6144}
s_add_u32 s{sP1}, s96, s86
s_addc_u32 s{sP1+1}, s97, 0
s_mov_b32 s{sP1+2}, {(3*12288+6144) * OPT['wpf']}
s_mov_b32 s{sP1+3}, 0x20000
s_mov_b32 s{sT3}, 4096
s_add_u32 s{sO}, s{sWsP}, s85
s_addc_u32 s{sO+1}, s{sWsP+1}, 0
s_sub_u32 s{sO}, s{sO}, {OSTRIDE}
s_subb_u32 s{sO+1}, s{sO+1}, 0
s_mov_b32 s{sO+2}, 0
s_mov_b32 s{sO+3}, 0x20000
s_lshl_b32 s86, s{sWg}, 7
s_add_u32 s86, s86, {FLG}
s_add_u32 s{sDB}, s{sWsP}, s86
s_addc_u32 s{sDB+1}, s{sWsP+1}, 0
s_cmp_eq_u32 s{sMode}, 0
s_cselect_b32 s{sDB+2}, 128, 0
s_mov_b32 s{sDB+3}, 0x20000
s_mov_b32 s{sItem}, 0
s_mov_b32 s{sFlag}, 0
s_mov_b32 s{sCp}, 0x1000
{selinit}
s_mov_b32 s{sBk}, 0
s_mov_b64 {S2(sXn)}, {S2(sX)}
s_lshr_b32 s80, s{sWg}, 4
s_mul_i32 s84, s80, 52
s_lshr_b32 s84, s84, 8
s_mul_i32 s85, s84, 5
s_sub_u32 s85, s80, s85
s_and_b32 s81, s{sWg}, 1
s_bfe_u32 s89, s{sWg}, 0x10003
s_lshl1_add_u32 s89, s81, s89
s_and_b32 s82, s{sWave}, 1
s_lshr_b32 s83, s{sWave}, 1
s_xor_b32 s86, s81, s82
s_xor_b32 s86, s86, 1
s_lshl_b32 s86, s86, 7
s_lshl_b32 s87, s85, 8
s_add_u32 s86, s86, s87
s_mul_i32 s87, s83, {64*1280}
s_add_u32 s86, s86, s87
s_mul_i32 s87, s89, {768*1280}
s_add_u32 s86, s86, s87
s_add_u32 s{sWoP}, s{sWoP}, s86
s_addc_u32 s{sWoP+1}, s{sWoP+1}, 0
s_sub_u32 s{sK2n}, 7864320, s86
s_cmp_lt_u32 s80, 15
s_cselect_b32 s{sK2n}, s{sK2n}, 0
s_bfe_u32 s86, s{sWg}, 0x10001
s_mul_i32 s86, s86, 60
s_mul_i32 s87, s84, 20
s_add_u32 s86, s86, s87
s_mul_i32 s87, s{sWave}, 5
s_add_u32 s86, s86, s87
s_bfe_u32 s87, s{sWg}, 0x10002
s_lshl2_add_u32 s88, s87, s89
s_mul_i32 s88, s88, {48*120}
s_add_u32 s88, s88, s86
s_lshl_b32 s88, s88, 10
s_add_u32 s{sK2O}, s{sWsP}, s88
s_addc_u32 s{sK2O+1}, s{sWsP+1}, 0
s_mul_i32 s88, s86, {16*2560}
s_mul_i32 s87, s87, 1280
s_add_u32 s88, s88, s87
s_lshl_b32 s87, s85, 8
s_add_u32 s88, s88, s87
s_lshl_b32 s87, s89, 6
s_add_u32 s88, s88, s87
s_add_u32 s{sOutP}, s{sOutP}, s88
s_addc_u32 s{sOutP+1}, s{sOutP+1}, 0
s_mov_b32 s{sC}, {cbits:#x}
s_mov_b32 s{sC+1}, {cbits:#x}
s_mov_b32 s{sThr}, 0x5d800000
""") + [I(f"s_mov_b32 s{sOs[s]}, {s*122880}") for s in range(6)]
    kb0, vb0 = vK[0][0], vV[0][0]
    P += Is(f"""
v_and_b32 v{t0}, 15, v0
v_lshrrev_b32 v{t1}, 4, v0
v_and_b32 v{t2}, 6, v{t0}
v_xor_b32 v{t3}, v{t2}, v{t1}
v_lshlrev_b32 v{t3}, 4, v{t3}
v_lshl_add_u32 v{vXr[0][0]}, v{t0}, 7, v{t3}
v_add_u32 v{vXr[0][0]}, s{sXoff}, v{vXr[0][0]}
v_xor_b32 v{vXr[0][1]}, 64, v{vXr[0][0]}
v_add_u32 v{vXr[1][0]}, {X1}, v{vXr[0][0]}
v_add_u32 v{vXr[1][1]}, {X1}, v{vXr[0][1]}
v_lshrrev_b32 v{t2}, 3, v{t0}
v_mul_u32_u24 v{kb0}, 3072, v{t2}
v_and_b32 v{t2}, 7, v{t0}
v_lshl_add_u32 v{kb0}, v{t2}, 7, v{kb0}
v_add_u32 v{kb0}, v{kb0}, v{t3}
v_xor_b32 v{vK[0][1]}, 64, v{kb0}
v_add_u32 v{vK[1][0]}, {KW[1]}, v{kb0}
v_add_u32 v{vK[1][1]}, {KW[1]}, v{vK[0][1]}
v_lshrrev_b32 v{t2}, 5, v0
v_mul_u32_u24 v{vb0}, 3072, v{t2}
v_bfe_u32 v{t2}, v0, 2, 3
v_lshl_add_u32 v{vb0}, v{t2}, 7, v{vb0}
v_and_b32 v{t2}, 6, v{t2}
v_bfe_u32 v{t3}, v0, 1, 1
v_xor_b32 v{t2}, v{t2}, v{t3}
v_lshl_add_u32 v{vb0}, v{t2}, 4, v{vb0}
v_and_b32 v{t2}, 1, v0
v_lshl_add_u32 v{vb0}, v{t2}, 3, v{vb0}
v_add_u32 v{vb0}, {VW[0]}, v{vb0}
v_xor_b32 v{vV[0][1]}, 32, v{vb0}
v_xor_b32 v{vV[0][2]}, 64, v{vb0}
v_xor_b32 v{vV[0][3]}, 96, v{vb0}
""") + [I(f"v_add_u32 v{vV[1][i]}, {VW[1]-VW[0]}, v{vV[0][i]}") for i in range(4)] + Is(f"""
s_lshl_b32 s86, s{sWave}, 12
v_lshlrev_b32 v{vO}, 4, v0
v_add_u32 v{vO}, s86, v{vO}
s_cmp_eq_u32 s{sWave}, 3
s_cselect_b32 s86, 0x80000000, 0
v_add_u32 v{vO3}, s86, v{vO}
""")
    P += [I(f"v_mov_b32 v{vL[q]}, 0") for q in range(4)]
    ld = lin(dma_w(0)[3:]) + lin(dma_w(1)) + dma_x(1) + lin(hd(dma_w(2)))
    rest = P; P = P0; nv = 0
    for x in ld:
        P.append(x)
        if x.kind == "vmem":
            nv += 1; c_ = 0
            while rest and nv > OPT["pskip"] and (c_ < 9 or rest[0].text.split()[0] in ("s_addc_u32", "s_subb_u32", "s_cselect_b32", "s_cselect_b64")):
                P.append(rest.pop(0)); c_ += 1
    P += rest + pst(19)
    P += [I(f"buffer_store_dwordx4 {V4(vL[0])}, v{vO}, {S4(sDB)}, 0 offen sc1", dst={"OST"})]
    XALL = lambda n: {f"X{n&1}_{q}" for q in range(4)}
    P += [WAIT(vneed=XALL(0) | {f"L{slot(0)}"})] + reads_x(0) + Is("s_barrier")
    B["pro"] = P + pst(20) + reads_v(0, slot(0))[:NPRE_V] + Is("s_branch K1_ITEM")
    B["item"] = Is("K1_ITEM:") + stamp(0) + [WAIT(lzero=True)]
    NE0 = OPT["ne0"]
    EW = {0: list(range(NE0, 8))}
    rest = list(range(8, 24)); per = [3, 3, 2, 2, 2, 2, 2]
    for n in range(1, 8): EW[n] = rest[:per[n - 1]]; rest = rest[per[n - 1]:]
    NC9 = OPT["nc9"]
    cunits = [(s, qt) for s in range(6) for qt in range(4)]
    cold = dma_k(0, X0) + dma_k(1, slot(2)) + dma_v(0, slot(3)); C8 = 2 if OPT["la1"] else OPT["cw8"]
    cut = lambda p: 10 * (p // 3) + (0, 4, 7)[p % 3]
    pairs = lambda a, b: cold[cut(a):cut(b)]
    for n in range(10):
        own = reads_v(n, slot(n % 4))[NPRE_V:]
        early = []; extra = []; post = []; endx = set()
        if n < 9: nxt = reads_v(n + 1, slot((n + 1) % 4))[:NPRE_V]; nt_ = "v"; pub = slot((n + 1) % 4)
        else: nxt = reads_k(10, X0)[:NPRE_K]; nt_ = "k"; pub = X0
        if n < 8: early += tl(dma_w(n + 2))
        if n == 8: early += pairs(1, 1 + C8)
        if n == 9: early += pairs(2 + C8, 6 if OPT["la1"] else 8)
        if n == 7:
            early += Is(f"""s_mov_b64 {S2(sDA)}, {S2(sK)}
s_mov_b32 s{sDA+2}, 393216
s_mov_b64 {S2(sDB)}, {S2(sV)}
s_mov_b32 s{sDB+2}, 393216
v_mov_b32 v{vD[0]}, v{vDkv}
v_mov_b32 v{vD[1]}, v{vDkv}""")
        if n < 8: early += dma_x(n + 2)
        if (OPT['cpw'] >> n) & 1: early += codepf()
        if n == 8 and OPT["nfl"]:
            fill = Is(f"s_lshl2_add_u32 s88, s{sWg}, s{sWave}\ns_mul_i32 s88, s88, 10240\ns_add_u32 s88, s88, {XCH}")
            fill += [Ins(f"s_add_u32 s80, s{sWsP}, s88\ns_addc_u32 s81, s{sWsP+1}, 0", kind="bar"), Ins(f"s_or_b32 s88, s{sItem}, s{sMode}\ns_cselect_b32 s82, 0, 10240", kind="bar")]
            fill += Is("s_mov_b32 s83, 0x20000\ns_mov_b32 s88, 8192\nv_lshlrev_b32 v36, 4, v0") + [I(f"v_mov_b32 v{32+j}, -1") for j in range(4)]
            st = [I(f"buffer_store_dwordx4 v[32:35], v36, s[80:83], {['0', f's{sT3}', 's88'][q // 4]} offen offset:{(q % 4)*1024} sc1") for q in range(10)]
            extra.append(spread(fill, 4, 34) + spread(st, 36, 95, [BG]))
        if n == 8: post = Is(f"""s_mov_b32 s87, 0xff800000
s_cmp_eq_u32 s{sWave}, 3
s_cselect_b32 s86, 0x71000000, s87
v_mov_b32 v{vMi[0]}, s87
v_mov_b32 v{vMi[1]}, s87
v_mov_b32 v{vMi[2]}, s87
v_mov_b32 v{vMi[3]}, s86""")
        es = []; sts = []; us = EW.get(n, [])
        for u in us:
            e = epi_unit(u, False)
            if OPT["hold"] and u >= us[-1] - 2:
                x = e.pop(); x.after = [e[-1], early[-1]]; sts.append(x)
            es += e
        late0 = n == 0 and NE0 < 6
        if es: extra.append(spread(es, 0, (BG + 14 if late0 else 70) if n == 0 else 90, NOV))
        if sts: extra.append(spread(sts, 72, 96, [BG]))
        if n < 9:
            xr = reads_x(n + 1); st = []
            for q in range(4):
                if q % 2 == 0: st.append(WAIT(vneed={f"X{(n+1)&1}_{q}", f"X{(n+1)&1}_{q+1}"}))
                st += xr[2 * q:2 * q + 2]
            spread(st, 46, BG - 5)
            if n == 0:
                for q in range(4):
                    la = [x for x in es if x.text.endswith(f" a{Oacc(3, q) + 3}")]
                    for it in xr[2 * q:2 * q + 2]:
                        it.after = la
                        if q == 3 and late0: it.lo = BG + 1; it.hi = 88; it.target = BG + 4
                    if la: la[0].hi = BG - 1 if q == 3 and late0 else BG - 8
                endx = regs("a", Xf(1, 0, 0), 32)
            extra.append(st)
        if n == 9:
            pub = {f"L{X0}", "OST"}
        if OPT["kvn"] and n < OPT["kvph"]:
            seq = [(k, i) for i in range(2, 15) for (k, i) in ((0, i + 1), (1, i))] + [(1, 15)]
            tot = OPT["kvn"] * OPT["kvph"]; n1 = min(tot, len(seq)); n2 = tot - n1
            lst = [(1,) + seq[j * len(seq) // n1] for j in range(n1)] + [(0,) + seq[j * len(seq) // n2] for j in range(n2)]
            lst.sort(key=lambda e: seq.index(e[1:]))
            st = []
            if n == 0: st += Is(f"""s_mov_b64 s[84:85], {S2(sK)}
s_mov_b32 s86, {9*393216}
s_mov_b32 s87, 0x20000
s_mov_b64 {S2(sDB)}, {S2(sV)}
s_mov_b32 s{sDB+2}, {9*393216}""")
            body = "\n".join(f"s_mov_b32 s88, {i*TILE + o*8*393216}\nbuffer_load_dword v49, v{vDkv}, {S4(sDB if k else 84)}, s88 offen offset:3328" for (o, k, i) in lst[n * OPT["kvn"]:(n + 1) * OPT["kvn"]])
            st.append(Ins(f"s_cmp_eq_u32 s{sKvn}, 0\ns_cbranch_scc1 K1_KV{n}\n{body}\nK1_KV{n}:", kind="bar"))
            early += st
        if n == 9 and NC9:
            cs = []; sw = []
            for (s, qt) in cunits[:NC9]:
                a, b = cvt_unit(s, qt, False)
                a[0].lo = 16 * s + 8 + 2 * qt + 1 + 8
                for x in b: x.after = [a[-1]]; x.dly = 1
                cs += a; sw += b
            spread(cs, 17, 92, NOV)
            for x in sw: x.target = x.after[0].target + 2
            extra += [cs, sw]
        d = hd(dma_w(n + 3)) if n < 7 else pairs(0, 1) if n == 7 else pairs(1 + C8, 2 + C8) if n == 8 else pairs(6, 7) if OPT['la1'] else pairs(8, 9)
        B[f"w{n}"] = (stamp(8 + n) if OPT["stamps"] == 7 else []) + phase(f"w{n}", n, "v", mf_w(n), own, nxt, nt_, pub, early, d, extra, early_hi=70, post=post, endx=endx)
    C = stamp(1); pend = []
    for k, (s, qt) in enumerate(cunits[NC9:]):
        a, b = cvt_unit(s, qt, True)
        C += a[:4] + pend + a[4:]; pend = b
    C += Is(f"s_cmp_lg_u32 s{sMode}, 0\ns_nop 0") + pend + Is("s_cbranch_scc1 K1_MAXPASS\nK1_MAXRET:\ns_nop 0") + stamp(2)
    B["cvt"] = C
    M = []; last = []
    for qt in range(4):
        x = XY(0, 0, qt); m = vT + 2 * qt; t = m + 1
        a = I(f"v_max3_f32 v{m}, v{x}, v{x+1}, v{x+2}", lo=6 * qt + 13)
        b = I(f"v_max3_f32 v{m}, v{m}, v{x+3}, v{vMi[qt]}")
        c_ = I(f"v_mov_b32 v{t}, v{m}")
        d = I(f"v_permlane16_swap_b32 v{m}, v{t}", after=[c_], dly=1)
        e = I(f"v_max_f32 v{m}, v{m}, v{t}")
        f = I(f"v_mov_b32 v{t}, v{m}")
        g = I(f"v_permlane32_swap_b32 v{m}, v{t}", after=[f], dly=1)
        h = I(f"v_max_f32 v{m}, v{m}, v{t}")
        ns = [I(f"v_sub_f32 v{negm(qt)+i}, 0, v{m}", hi=48 + 6 * qt - 3) for i in range(4)]
        st = [a, b, c_, d, e, f, g, h] + ns
        for j, it in enumerate(st): it.target = 6 * qt + 13 + j * 0.5
        M.append(st); last.append(ns[0])
    NA0 = OPT['na0']
    sm = softmax([(0, 0, qt, 0, 24 + 6 * qt + 13, 95, True) for qt in range(NA0)], 28, 93, sub=last)
    early = Is(f"""s_mov_b32 s{sA}, {3*TILE}
s_mov_b32 s{sB}, {TILE if OPT["la1"] else 2*TILE}
s_mov_b32 s{sI}, 0
s_add_u32 s{sO}, s{sO}, {OSTRIDE}
s_addc_u32 s{sO+1}, s{sO+1}, 0
s_mov_b32 s{sO+2}, s{sOn}
s_mov_b32 s{sOn}, {5*122880+15*1024}""") + (pairs(7, 9) if OPT["la1"] else dma_k(2, slot(0)))
    hand = Is(f"""v_mov_b32 v30, 1
s_and_b32 s80, s{sWg}, 1
s_lshl_b32 s80, s80, 2
s_add_u32 s80, s80, s{sCo}
s_cmp_eq_u32 s{sAll}, 0
s_cselect_b32 s81, s{sItem}, 0
s_cmp_lt_u32 s{sSig}, s81
s_cselect_b32 s80, s80, 0x1000
s_cselect_b32 s{sSig}, 1, s{sSig}
s_cmp_eq_u32 s{sWave}, 0
s_cselect_b32 s80, s80, 0x1000""") + [atomic(30, 80)]
    B["qk0"] = phase("qk0", 10, "k", mf_qk(10, 0, True), reads_k(10, X0)[NPRE_K:], reads_k(11, slot(2))[:NPRE_K], "k", slot(2), early,
                     hd(dma_k(2, slot(0)) if OPT['la1'] else dma_v(1, slot(1))), M + sm, early_hi=70) + stamp(3)
    def half(nm, par, mode, xq=0, xp=0):
        ks, vs, kn, vp = slot(2 * par), slot(2 * par + 1), slot(2 - 2 * par), slot(3 - 2 * par)
        kd = lambda: dma(sDA, sA, ks, OPT["nt_kv"])
        vd = lambda b: dma(sDB, sB, b, OPT["nt_kv"])
        last = mode == "last"; first = mode == "first"
        if first: early = tl(dma_v(1, slot(1)))
        elif last and par: early = tl(dma_n(0)) + dma_x(0)
        else: early = (codepf() if par == 0 and not last else []) + tl(vd(vp)) + Is(f"s_add_u32 s{sB}, s{sB}, {TILE}")
        if OPT["la1"]:
            if first: early = tl(dma_k(2, slot(0)))
            elif not (last and par): early = (codepf() if par == 0 and not last else []) + tl(dma(sDA, sA, kn, OPT["nt_kv"])) + Is(f"s_add_u32 s{sA}, s{sA}, {TILE}")
            if last and par == 0: early += dma_v(14, vp)[:7]
        if last and par == 0:
            early += Is(f"""s_mov_b64 {S2(sX)}, {S2(sXn)}
s_mov_b32 s{sX+2}, s{sXnum}
s_cmp_eq_u32 s{sItem}, 1
s_cselect_b32 s{sXk}, {(-128*1280) & 0xffffffff}, s{sXk}
s_cselect_b32 s{sXst}, {128*1280}, s{sXst}
s_movk_i32 s80, 0x70
v_lshrrev_b32 v30, 3, v0
v_mul_u32_u24 v30, 1280, v30
v_and_or_b32 v30, v{vDw}, s80, v30
v_cndmask_b32 v{vDx}, v{vDx}, v30, {S2(sMask)}""") + codepf()
        mp = mf_pv(12, 1 - par, first) + mf_l(1 - par, first) + (mf_l(1) if last and par else [])
        NP_ = len(mp)
        gq = g_old(1 - par, 1, range(4), 96, True); gp = g_old(par, 0, range(4), NP_, False); hq = BG - 2
        if first: gq = [g[:6] + (True,) for g in g_old(0, 0, range(NA0, 4), 96, True)] + gq; hq = 88
        if last and par == 0:
            gq = gq + g_new(0, [0]); hq = 93
            gp = g_old(0, 0, [1, 2, 3], NP_, False) + g_old(0, 1, [0, 1], NP_, False)
        if last and par:
            gq = g_old(0, 1, [2, 3], 96, True) + g_new(1, [0, 1, 2]); hq = 93
            gp = [(1, 0, 3, 0, 0, 101, False)] + [(1, 1, qt, 4, 6, 105 + qt, False) for qt in range(4)]
        def burst(gs):
            if not gs: return []
            P_, E, D = softmax(gs, 0, 90); out = list(P_)
            for j in range(0, len(E), 2):
                out += E[j:j + 2] + (D[j // 2 - 1:j // 2] if j else [])
            return out + Is("s_nop 0") + D[-1:]
        bq = burst(gq[:xq]); gq = gq[xq:]; bp = burst(gp[:xp]); gp = gp[xp:]
        qtile = (lambda: dma_n(1) if par else dma_v(15, X1)) if last else kd
        wo = lambda: [I(f"buffer_load_dword v30, v{vO}, {S4(sX)}, s{sT2} offen", dst={"v30"}), I(f"s_add_u32 s{sT2}, s{sT2}, 1024")] if mode == "loop" and (OPT["woa"] == 2 or (OPT["woa"] == 1 and (xq or xp))) else []
        early = early + wo()
        tq = hd(qtile())
        if OPT["la1"] and not (last and par): tq = dma_v(14, vp)[7:] if last else hd(vd(vp))
        q = bq + phase("qk" + nm, 11, "k", mf_qk(11, par), reads_k(11, ks)[NPRE_K:], reads_v(12, vs)[:NPRE_V], "v", vs, early, tq,
                  softmax(gq, 0, hq), early_hi=72)
        post = []
        if par and mode == "loop": post += Is(f"s_add_u32 s{sI}, s{sI}, 1\ns_or_b32 s80, s{sSel}, 0x40\ns_bitcmp0_b32 s80, s{sI}")
        early = tl(qtile()) + ([] if last else Is(f"s_add_u32 s{sA}, s{sA}, {TILE}"))
        if OPT["la1"] and not (last and par): early = dma_v(15, X1) if last else tl(vd(vp)) + Is(f"s_add_u32 s{sB}, s{sB}, {TILE}")
        if par == 0: early = early + wo()
        if OPT["adb"] and mode == "loop" and not (xq or xp):
            early = early + Is(f"s_getreg_b32 s80, hwreg(HW_REG_IB_STS, 0, 4)\ns_lshr_b32 s80, s80, s{sItem}\ns_cmp_ge_u32 s80, {OPT['adb']}\ns_addc_u32 s{sBk}, s{sBk}, 0\ns_cmp_ge_u32 s{sBk}, {OPT['adn']}\ns_cselect_b32 s{sSel}, 63, s{sSel}")
        if OPT["adp"] and mode == "loop" and (xq or xp):
            early = early + Is(f"s_getreg_b32 s80, hwreg(HW_REG_IB_STS, 0, 4)\ns_cmp_ge_u32 s80, {OPT['adp']}\ns_addc_u32 s{sBk}, s{sBk}, 0")
        sel = []
        if first:
            early = hand + early
            if OPT["woa"]: early = early + Is(f"""s_mul_i32 s80, s{sWave}, {15360-4096}
s_add_u32 s{sX}, s{sN2}, s80
s_addc_u32 s{sX+1}, s{sN2+1}, 0
s_lshl_b32 s80, s{sWave}, 12
s_add_u32 s80, s80, 15360
s_cmp_eq_u32 s{sItem}, {OPT["woa"] - 1}
s_cselect_b32 s{sX+2}, s80, 0
s_mov_b32 s{sT2}, 0""")
            if OPT["tw"] & 2: early = early + Is(f"v_mul_u32_u24 v30, 122880, v0") + [I(f"buffer_load_dword v30, v30, {S4(sO)}, 0 offen sc1", dst={"v30"})]
            sel = Is("v_and_b32 v47, 3, v0\nv_mov_b32 v46, 0x3f803f80")
            for qt in range(4):
                c_ = I(f"v_cmp_eq_u32 s[86:87], {qt}, v47")
                sel += [c_, I(f"v_cndmask_b32 v{32+4*qt}, 0, v46, s[86:87]", after=[c_], dly=1)] + [I(f"v_mov_b32 v{32+4*qt+j}, v{32+4*qt}") for j in range(1, 4)]
            sel = [spread(sel, 2, 92, NOV)]
        if last and par == 0:
            early += Is(f"""s_mov_b64 {S2(sDA)}, {S2(sNb)}
s_mov_b32 s{sDA+2}, s{sNnum}
s_cmp_eq_u32 s{sItem}, 1
s_cselect_b32 s{sWk}, {(-TILE) & 0xffffffff}, s{sWk}
s_cselect_b32 s{sNs}, {TILE}, s{sNs}
v_cndmask_b32 v{vD[0]}, v{vDw}, v{vDkv}, {S2(sMask)}
v_add_u32 v{vD[1]}, s{sNd}, v{vD[0]}""")
        d = hd(dma_n(2 * par) if last else kd() if OPT['la1'] else vd(vs))
        if last and par:
            nxt, nty, pub = reads_v(41, X1)[:NPRE_V], "v", X1
            x = pf(); early += x[:4]; d += x[4:] + [I(f"buffer_load_dwordx2 v[{vPoll}:{vPoll+1}], off, {S4(sDb)}, s{sCp} sc1", dst=regs("v", vPoll, 4))]
        else: nxt, nty, pub = reads_k(11, kn)[:NPRE_K], "k", kn
        p = bp + phase("pv" + nm, 12, "v", mp, reads_v(12, vs)[NPRE_V:], nxt, nty, pub, early, d,
                  softmax(gp, 0, NP_ - (7 if last and par else 3)) + sel, post=post, early_hi=72)
        pad = lambda: Is("\n".join(["s_nop 3"] * OPT["padn"]))
        if OPT["padi"]: return q + Is(f"s_cmp_lg_u32 s{sItem}, {OPT['padi']-1}\ns_cbranch_scc1 K1_KVP{nm}") + pad() + pad() + Is(f"K1_KVP{nm}:") + p
        return q + pad() + p + pad()
    two = OPT["xq"] or OPT["xp"]
    B["peel"] = half("1", 1, "first", OPT["pq"], OPT["pp"]) + (Is(f"s_bitcmp1_b32 s{sSel}, 0\ns_cbranch_scc1 K1_LA") if two else [])
    st = lambda: stamp(-1) if OPT["stamps"] in (4, 6) else []
    B["loop"] = Is(".p2align 6\nK1_L:") + st() + half("e", 0, "loop") + half("o", 1, "loop") + Is("s_cbranch_scc1 K1_L")
    B["loope"] = Is(f"s_cmp_lg_u32 s{sI}, 6\ns_cbranch_scc1 K1_LA\nK1_LX:") if two else []
    B["loopa"] = Is(".p2align 6\nK1_LA:") + st() + half("ea", 0, "loop", OPT["xq"], OPT["xp"]) + half("oa", 1, "loop", OPT["xq"], OPT["xp"]) + Is("s_cbranch_scc1 K1_L") if two else []
    B["loopx"] = Is(f"s_cmp_lg_u32 s{sI}, 6\ns_cbranch_scc1 K1_LA\ns_branch K1_LX") if two else []
    B["last"] = (stamp(-1) if OPT["stamps"] in (4, 6) else []) + half("14", 0, "last", OPT["lq"], OPT["lp"]) + half("15", 1, "last")
    B["tail"] = stamp(4)
    B15 = OPT["bg15"]
    R = [I(f"v_rcp_f32 v{RCP+2*q}, v{vL[q]}", lo=7) for q in range(4)] + [I(f"v_cmp_ngt_f32 {S2(80+2*q)}, s{sThr}, v{vL[q]}") for q in range(4)]
    spread(R, 7, 17)
    for it in R: it.hi = 95
    es = []; sts = []; dx1 = dma_x(1)
    for u in range(NE0):
        e = epi_unit(u, False); e[0].lo = 16 * (u // 4) + 2 * (u % 4) + 1 + 8; e[10].lo = e[0].lo + 8
        if OPT["hold"] and u >= NE0 - 3:
            x = e.pop(); x.after = [e[-1], dx1[-1]]; x.target = 92; sts.append(x)
        es += e
    spread(es, 15, 94, range(B15, B15 + 9))
    fl = Is(f"""s_or_b64 s[80:81], s[80:81], s[82:83]
s_or_b64 s[84:85], s[84:85], s[86:87]
s_or_b64 s[80:81], s[80:81], s[84:85]
s_or_b32 s80, s80, s81
s_or_b32 s{sFlag}, s{sFlag}, s80
s_lshl_b32 s80, s{sWave}, 2
s_add_u32 s80, s80, {FLO}
v_mov_b32 v160, s80
v_mov_b32 v161, s{sFlag}
v_mov_b32 v162, {FLO}""") + [Ins("ds_write_b32 v160, v161")]
    fl[-1].cost = 8
    fl[0].after = [x for x in R if x.text.startswith("v_cmp")][-1:]; fl[0].dly = 2
    early = fl
    f1 = I(f"ds_read_b128 {V4(164)}, v162", dst=regs("v", 164, 4), lo=B15 + 1, target=B15 + 3)
    f2 = WAIT(lneed=regs("v", 164, 4), lo=88, target=88)
    f3 = Is("v_or_b32 v164, v164, v165\nv_or3_b32 v164, v164, v166, v167")
    f4 = I(f"v_readfirstlane_b32 s{sAll}, v164", after=[f3[1]])
    for x in f3 + [f4]: x.target = 89
    B["pv15"] = phase("pv15", 41, "v", mf_pv(41, 1), reads_v(41, X1)[NPRE_V:], reads_v(0, slot(0))[:NPRE_V], "v", {f"L{slot(0)}", f"L{slot(2)}"} | XALL(0),
                      early, dx1, [R + es, [f1, f2] + f3 + [f4], sts], bg=B15, dend=90 if OPT['hold'] else None) + stamp(5)
    B["br"] = stamp(6) + Is(f"s_cmp_lg_u32 s{sMode}, 0\ns_cselect_b32 s{sAll}, 0, s{sAll}\ns_cmp_eq_u32 s{sItem}, 0\ns_cbranch_scc1 K1_MID")
    B["mid"] = Is("K1_MID:") + reads_x(0) + Is(f"""s_mov_b32 s{sItem}, 1
s_mov_b32 s{sCp}, s{sCo}
s_cmp_ge_u32 s{sBk}, {OPT['adn']}
s_cselect_b32 s{sSel}, 63, {OPT['m1']}
s_mov_b64 {S2(sXn)}, {S2(sWoP)}
s_mov_b32 s{sXnum}, s{sK2n}
s_mov_b64 {S2(sNb)}, {S2(sN2)}
s_mov_b32 s{sNnum}, {(TILE if OPT['wsh'] == 2 else 2*TILE)*OPT['wop']}
s_mov_b32 s{sNd}, 0
s_mov_b64 {S2(sMask)}, -1
s_add_u32 s{sP1}, s{sN2}, {TILE if OPT['wsh'] == 2 else 2*TILE}
s_addc_u32 s{sP1+1}, s{sN2+1}, 0
s_mov_b32 s{sP1+2}, {(6144 if OPT['wsh'] == 2 else 12288)*OPT['wop']}
s_lshl_b32 s{sPfo}, s{sWave}, 11
s_add_u32 s{sK}, s{sK}, {16*393216}
s_addc_u32 s{sK+1}, s{sK+1}, 0
s_add_u32 s{sV}, s{sV}, {16*393216}
s_addc_u32 s{sV+1}, s{sV+1}, 0""")
    k2tr, k2lay = oproj(B, NE0); k2trace = k2tr[0]; k2idle = ["k2pro", "k2idle"]
    X = Is(f"""K1_MAXPASS:
v_and_b32 v{vT}, 15, v0
v_lshrrev_b32 v{vT+1}, 4, v0
v_mul_u32_u24 v{vT}, 384, v{vT}
v_lshl_add_u32 v{vT}, v{vT+1}, 4, v{vT}
s_mov_b32 s{sT}, 0""") + [I(f"v_mov_b32 v{vMi[q]}, 0xff800000") for q in range(4)] + Is("K1_MAXL:")
    for s in range(6): X.append(I(f"buffer_load_dwordx4 {V4(SP+4*s)}, v{vT}, {S4(sDA)}, s{sT} offen offset:{s*64}"))
    X.append(I("s_waitcnt vmcnt(0)"))
    for qt in range(4):
        for s in range(6): X.append(mfma(V4(SP + 32 + 4 * qt), V4(SP + 4 * s), V4(Qf(qt, s)), V4(SP + 32 + 4 * qt) if s else "0"))
    X.append(I("s_nop 7"))
    for qt in range(4):
        d = SP + 32 + 4 * qt
        X += Is(f"v_max3_f32 v{vMi[qt]}, v{vMi[qt]}, v{d}, v{d+1}\nv_max3_f32 v{vMi[qt]}, v{vMi[qt]}, v{d+2}, v{d+3}")
    X += Is(f"s_add_u32 s{sT}, s{sT}, 6144\ns_cmp_lt_u32 s{sT}, 393216\ns_cbranch_scc1 K1_MAXL\ns_branch K1_MAXRET")
    B["maxpass"] = X
    item = ["item"] + [f"w{n}" for n in range(10)] + ["cvt", "qk0", "peel"] + ["loop"] * 6 + ["last", "tail", "pv15", "br"]
    k_ = item.index("loop")
    item0 = item[:k_] + ["loopa", "loopa", "loop", "loopa", "loop", "loopa"] + item[k_ + 6:] if two else item
    if not two: assert OPT["me"] == 0 and OPT["mo"] == 0
    trace = ["entry", "pro"] + item0 + ["mid"] + item + k2trace
    layout = ["entry", "pro", "mid", "item"] + [f"w{n}" for n in range(10)] + ["cvt", "qk0", "peel", "loop", "loope", "last", "tail", "pv15", "br", *k2lay, "loopa", "loopx", "k2side", "k2idle", "maxpass"]
    for t_ in k2tr: resolve_waits(B, trace[:-5] + t_)
    for it in B["loop"] + B["peel"]:
        if it.text == "WAITBAR": it.vcnt = min(it.vcnt, OPT["vmx"])
    txt = {k: "\n".join(emit(v)).split("\n") for k, v in B.items()}
    errs = verify([l for b in trace for l in txt[b]])
    tr2 = ["entry", "pro"] + item[:12] + ["maxpass", "maxpass"] + item[12:]
    errs += verify([l for b in tr2 for l in txt[b]])
    errs += verify([l for b in ["entry", "pro"] + item + ["mid"] + item + k2idle for l in txt[b]])
    for t_ in k2tr:
        errs += verify([l for b in item[-4:] + t_ for l in txt[b]])
        errs += verify([l.replace("K1_KVX", "K2_X") for b in t_ for l in txt[b]])
        errs += verify([l for b in t_[:4] + ["k2wx" + t_[-1][-1], t_[-1]] for l in txt[b]])
    for e in errs: sys.stderr.write("K1 HAZARD " + e + "\n")
    note = {
        "entry": "entry / set-up of descriptors and per-lane addresses; first loads",
        "mid": "between the two heads of this workgroup",
        "w0": "Q projection: ten k phases of 64; Wq tiles and x rows arrive by LDS-DMA; the previous head's O is normalised and stored underneath",
        "cvt": "scale Q by log2(e)/sqrt(192), round to bf16, arrange as MFMA operand",
        "qk0": "first key tile: row max of its first 16 keys (or the exact max in the redo pass) becomes the softmax shift",
        "peel": "key tile 1 / value tile 0",
        "loop": "attention main loop, two 64-key tiles per trip: S^T = K Q^T - m, P = exp2(S), O^T += V^T P^T, l += 1^T P^T; softmax fully under the MFMAs",
        "last": "last key tiles; next head's (or the projection's) first tiles are fetched",
        "pv15": "last value tile; 1/l, overflow check of the shift, first O fragments leave",
        "k2pro": "output projection: tile 320x128 per workgroup, K split over four workgroups",
        "k2bodyo": "projection, odd K halves (22 steps)", "k2bodye": "projection, even K halves (26 steps)",
        "k2epio": "collect the partners' quarters", "k2epie": "collect the partners' quarters",
        "loopa": "same loop for the first head with part of the softmax issued back to back: lower peak draw while the supply settles",
        "k2side": "rare paths: redo with the exact row max, waits on hand-offs",
        "k2idle": "workgroups without a projection tile",
        "maxpass": "exact row max over all keys (redo pass only)"}
    return [l for b in layout for l in ([f"; ---- {note[b]}"] if b in note else []) + txt[b] if l], errs

def oproj1(B, NE0, X, N):
    vR = [[1, 2, 3, 4], [5, 6, 7, 8]]; vOf = 9; vSt = 10; vFl = 11; vRd = 12; t0, t1, t2, t3 = 13, 14, 15, 16; vP2 = 17; vLp = 18; vOne = 19
    KS = [X0, X1, RING]; EX = 65536; SEL = 32
    uq = lambda u: [("a", Oacc(2 * (u // 4) + h, u % 4)) for h in range(2)]
    OF = {}
    def Of(d, kb, qt): return OF[d, kb, qt]
    M = OPT["mrg"] - (N & 1); DM = N - M; MD = list(range(DM, N)); U = (N - 1) >> 1
    src = lambda d: (d, 0) if d < 24 else (d - (N - 24), 1)
    NT = OPT["k2n"]; u0 = max(NE0 + OPT["k2e"], 11); left = list(range(u0, 24))
    frs = [(d, kb, qt) for d in range(N) for kb in range(2) for qt in range(5)]
    A0 = OPT["adv0"]; rate = (10 * N - 15 - 10 * A0) / (DM - 1 - A0 + OPT["advf"] / 100.0)
    cum = lambda d: 15 + 10 * (d + 1) if d < A0 else min(10 * N, int(round(15 + 10 * A0 + rate * (d + 1 - A0))))
    OS = {d: frs[(cum(d - 1) if d >= 0 else 0):cum(d)] for d in range(-1, DM)}
    pool = [("v", 224 + 4 * i) for i in range(8)] + [q for u in range(u0) for q in uq(u)]
    for d in range(-1, DM):
        for f in OS[d]: OF[f] = pool.pop(0)
        if d >= 0: pool += [OF[d, kb, qt] for kb in range(2) for qt in range(5)] + [q for u in left[d * NT:(d + 1) * NT] for q in uq(u)]
    RDQ = pool
    CK = {min(d for d in OS if any(f[0] >= m for f in OS[d])): m for m in (12, 24) if m < N}
    R4 = lambda r: f"{r[0]}[{r[1]}:{r[1]+3}]"
    Oset = lambda d, kbs=(0, 1): set().union(*[regs(*Of(d, kb, qt), 4) for kb in kbs for qt in range(5)])
    def acc(t, qt): return 64 + 4 * (t * 5 + qt)
    def wq(f): return 192 + 4 * (f % 16)
    sW_ = sX; sOo = 8; sOut = 12; sXs = 20; sFl = 28
    sTt = 46; sC1 = 51; sC1w = 50; sXo = [32, 33, 34, 35]; sTs = 39; sXr = 24; sGx = 40; sGs = 54; sFo = 55
    def wdma(u, h):
        d_, fo = src(2 * u)
        off = (d_ * 64 + (3072 - 768 if d_ >= 12 else 0) + fo * 1536) * 1280
        out = [I(f"s_add_u32 m0, s{sXoff}, {KS[u % 3] + h*4096}")]
        for j in range(4 * h, 4 * h + 4):
            out += [I(f"s_mov_b32 s{sTt}, {off + j*10240 - (j % 4)*1024}"),
                    I(f"buffer_load_dwordx4 v{vDx}, {S4(sW_)}, s{sTt} offen offset:{(j % 4)*1024} lds", dst={f"X{u%3}_{j>>1}"})]
        return out
    Wt = lambda u: {f"X{u%3}_{q}" for q in range(4)}
    def oload(fs):
        out = []; cur = None
        for (d, kb, qt) in fs:
            off = (2 * src(d)[0] + kb + 96 * src(d)[1]) * 122880 + (qt // 4) * 4096
            if off != cur: out.append(I(f"s_mov_b32 s{sTt}, {off}")); cur = off
            out.append(I(f"buffer_load_dwordx4 {R4(Of(d, kb, qt))}, v{vOf}, {S4(sOo)}, s{sTt} offen offset:{(qt % 4)*1024} sc1", dst=regs(*Of(d, kb, qt), 4)))
        return out
    def wreads(ds):
        out = []; f = 0
        for t in range(8):
            for d in ds:
                base = KS[(d >> 1) % 3]; w = 1 if base == X1 else 0
                for kb in range(2):
                    r = wq(f)
                    for hf in range(2):
                        it = I(f"ds_read_b64_tr_b16 a[{r+2*hf}:{r+2*hf+1}], v{vR[w][t & 3]} offset:{base - w*X1 + (d & 1)*16384 + (t >> 2)*8192 + (4*kb+2*hf)*1024}", dst=regs("a", r + 2 * hf, 2)); it.f = f
                        out.append(it)
                    f += 1
        return out
    NP = 8; G = 60
    P = [WAIT(vneed=regs("v", vPoll, 4))] + Is(f"""
v_min_u32 v{t0}, v{vPoll}, v{vPoll+1}
s_cmp_lg_u32 s{sAll}, 0
v_readfirstlane_b32 s89, v{t0}
s_cbranch_scc1 K1_REDO
v_lshlrev_b32 v{vOf}, 4, v0
s_mov_b64 {S2(sOo)}, {S2(sK2O)}
s_mov_b32 s{sOo+2}, {143*122880+5*1024}
s_mov_b32 s{sOo+3}, 0x20000
s_cmp_lt_u32 s89, 32
s_cbranch_scc1 K2_SPIN0
K2_RET0:
s_cmp_ge_u32 s{sWg}, 240
s_cbranch_scc1 K2_IDLE""")
    B["k2pro"] = P
    common = lambda: Is(f"""
s_and_b32 s{sC1}, s{sWg}, 7
s_lshl_b32 s{sC1}, s{sC1}, 7
s_add_u32 s{sC1}, s{sC1}, 64
s_cmp_eq_u32 s{sWave}, 0
s_cselect_b32 s{sC1w}, s{sC1}, 0x10000
s_add_u32 s{sFl}, s{sWsP}, {FLG}
s_addc_u32 s{sFl+1}, s{sWsP+1}, 0
s_mov_b32 s{sFl+2}, {256*128}
s_mov_b32 s{sFl+3}, 0x20000
v_mov_b32 v{vOne}, 1
v_mov_b32 v{RCP+1}, v{RCP}
v_mov_b32 v{RCP+3}, v{RCP+2}
v_mov_b32 v{RCP+5}, v{RCP+4}
v_mov_b32 v{RCP+7}, v{RCP+6}""")
    r0 = vR[0][0]
    assert NE0 >= 4
    ld = oload(OS[-1])
    H = Is(f"""
v_lshrrev_b32 v{t2}, 5, v0
v_lshlrev_b32 v{r0}, 10, v{t2}
v_bfe_u32 v{t2}, v0, 2, 3
v_lshl_add_u32 v{r0}, v{t2}, 7, v{r0}
v_and_b32 v{t2}, 6, v{t2}
v_bfe_u32 v{t3}, v0, 1, 1
v_xor_b32 v{t2}, v{t2}, v{t3}
v_lshl_add_u32 v{r0}, v{t2}, 4, v{r0}
v_and_b32 v{t2}, 1, v0
v_lshl_add_u32 v{r0}, v{t2}, 3, v{r0}
s_andn2_b32 s88, 8, s{sWg}
s_lshl_b32 s88, s88, 3
v_xor_b32 v{r0}, s88, v{r0}
v_xor_b32 v{vR[0][1]}, 32, v{r0}
v_xor_b32 v{vR[0][2]}, 64, v{r0}
v_xor_b32 v{vR[0][3]}, 96, v{r0}""") + wreads([0])[:NP] + [I(f"v_add_u32 v{vR[1][i]}, {X1}, v{vR[0][i]}") for i in range(4)] + common()
    pair = lambda a, b: Ins(a + "\n" + b, kind="bar")
    late = Is(f"""
s_mov_b64 {S2(sOut)}, {S2(sOutP)}
s_mov_b32 s{sOut+2}, {79*2560+64}
s_mov_b32 s{sOut+3}, 0x20000""") + [pair(f"s_add_u32 s{sXs}, s{sWsP}, {XCH}", f"s_addc_u32 s{sXs+1}, s{sWsP+1}, 0")] + Is(f"""
s_mov_b32 s{sXs+2}, {960*15360}
s_mov_b32 s{sXs+3}, 0x20000
s_lshl2_add_u32 s88, s{sWg}, s{sWave}
s_mul_i32 s{sXo[0]}, s88, 15360
s_xor_b32 s89, s88, 32
s_mul_i32 s{sXo[1]}, s89, 15360
s_xor_b32 s89, s88, 4
s_mul_i32 s{sXo[2]}, s89, 15360
s_xor_b32 s89, s88, 36
s_mul_i32 s{sXo[3]}, s89, 15360
s_mul_i32 s88, s{sWave}, 5120
s_add_u32 s88, s88, {EX}
v_add_u32 v{vRd}, s88, v{vOf}
v_and_b32 v{t0}, 15, v0
v_lshrrev_b32 v{t1}, 4, v0
v_lshl_add_u32 v{t2}, v{t0}, 2, v{t1}
v_lshlrev_b32 v{t2}, 4, v{t2}
v_add_u32 v{vLp}, s88, v{t2}
v_lshlrev_b32 v{t1}, 2, v{t1}
v_sub_u32 v{t0}, v{t0}, v{t1}
v_and_b32 v{t1}, 1, v{t0}
v_lshlrev_b32 v{t1}, 4, v{t1}
v_mov_b32 v{t2}, 0x3f80
v_lshlrev_b32 v{t1}, v{t1}, v{t2}
v_lshrrev_b32 v{t0}, 1, v{t0}""")
    c0 = I(f"v_cmp_eq_u32 s[84:85], 0, v{t0}"); c1 = I(f"v_cmp_eq_u32 s[86:87], 1, v{t0}")
    late += [c0, c1, I(f"v_mov_b32 v{SEL+2}, 0"), I(f"v_mov_b32 v{SEL+3}, 0"), I(f"v_cndmask_b32 v{SEL}, 0, v{t1}, s[84:85]"), I(f"v_cndmask_b32 v{SEL+1}, 0, v{t1}, s[86:87]")]
    late += Is(f"""v_mov_b32 v{SEL+4}, 0
v_mov_b32 v{SEL+5}, 0
v_mov_b32 v{SEL+6}, v{SEL}
v_mov_b32 v{SEL+7}, v{SEL+1}
v_lshrrev_b32 v{t0}, 2, v0
v_and_b32 v{t1}, 3, v0
v_mul_u32_u24 v{vSt}, 2560, v{t0}
v_lshl_add_u32 v{vSt}, v{t1}, 4, v{vSt}
v_min_u32 v{t1}, 2, v0
v_add_u32 v{t1}, 1, v{t1}
v_and_b32 v{t0}, 1, v{t1}
v_lshrrev_b32 v{t1}, 1, v{t1}
v_lshl_or_b32 v{t0}, v{t0}, 3, v{t1}
v_xor_b32 v{t0}, s{sWg}, v{t0}
v_lshlrev_b32 v{vFl}, 7, v{t0}
v_min_u32 v{t1}, 2, v0
v_lshl_add_u32 v{vFl}, v{t1}, 2, v{vFl}
s_add_u32 s{sXo[2]}, s{sXo[2]}, 5120
s_add_u32 s{sXo[3]}, s{sXo[3]}, 10240
s_mov_b32 s{sGx}, 0
s_lshl_b32 s{sFo}, s{sWg}, 7""") + [pair(f"s_cmp_eq_u32 s{sWave}, 0", f"s_cselect_b32 s{sFo}, s{sFo}, 0x10000")] + Is("""""") + (Is("v_mov_b32 v22, v31\nv_mov_b32 v23, v31") if OPT["stamps"] else [])
    held = {0: []}
    for u in range(NE0, u0):
        e = epi_unit(u, True, True)
        if u >= u0 - NT: held[0].append(e.pop())
        H += e
    H0 = H; H = []; gap = OPT["hgap"]
    for k, x in enumerate(H0):
        if k % gap == 0:
            while ld:
                y = ld.pop(0); H.append(y)
                if y.kind == "vmem": break
        H.append(x)
    H += ld + [WAIT(lneed=regs("a", wq(0), 8), vneed=Oset(0))] + stamp(49)
    body = {}
    for d in range(N):
        body[d] = []; held[d + 1] = []
        for u in left[d * NT:(d + 1) * NT]:
            e = epi_unit(u, False, True); held[d + 1].append(e.pop()); body[d] += e
    SG = (max(d for d in held if held[d]) + 1) | (0 if OPT['sge'] else 1)
    assert SG <= 7
    poll = f"buffer_load_dword v{t2}, v{vFl}, {S4(sFl)}, 0 offen sc1"
    RD = lambda rho, qt: RDQ[qt * 3 + rho - 1]
    def rload(rho, so):
        out = []
        for qt in range(5):
            if qt == 4: out.append(I(f"s_add_u32 s{sTt}, s{so}, 4096"))
            out.append(I(f"buffer_load_dwordx4 {R4(RD(rho, qt))}, v{vOf}, {S4(sXs)}, s{sTt if qt == 4 else so} offen offset:{(qt % 4)*1024} sc1", dst=regs(*RD(rho, qt), 4)))
        return out
    radd = lambda rhos, qt: [mfma(V4(acc(6 + h, qt)), V4(SEL + 4 * h), R4(RD(rho, qt)), V4(acc(6 + h, qt))) for h in range(2) for rho in rhos]
    flag = lambda off: Ins(f"s_mov_b64 exec, 1\nbuffer_store_dword v{vOne}, off, {S4(sFl)}, s{sFo} offset:{off} sc1\ns_mov_b64 exec, -1", kind="vmem")
    def mfs(ds):
        mf = []; n = 2 * len(ds)
        for t in range(8):
            for qt in range(5):
                ks = [(i, d, kb) for i, (d, kb) in enumerate((d, kb) for d in ds for kb in range(2))]
                if qt & 1 and len(ds) > 1: ks.reverse()
                for (i, d, kb) in ks:
                    a = acc(t, qt)
                    mf.append(mfma(V4(a), A4(wq(n * t + i)), R4(Of(d, kb, qt)), "0" if (d == 0 and kb == 0) else V4(a)))
        return mf
    def step(d):
        own = wreads([d])[NP:]; pre = d == DM - 1
        nx = MD if pre else [d + 1]
        nxt = wreads(nx)[:max(NP, 4 * len(nx))]
        hasb = (d & 1) or pre or d == SG
        ws = [WAIT(lneed=regs("a", wq(2 * t), 8), lo=10 * t - 3, hi=10 * t - 1, target=10 * t - 2) for t in range(1, 7 if hasb else 8)]
        ws.append(WAIT(lneed=regs("a", wq(0), 8 * len(nx)), vneed=set().union(*[Oset(x) for x in nx]), lo=78, hi=79, target=78.5))
        g = G - 6 if pre and M > 2 else G
        spread(own, 0, g - 6)
        for it in own: it.hi = min(it.hi, 10 * (it.f >> 1) - 7); it.target = min(it.target, it.hi - 1)
        rs = own; nov = ()
        if hasb:
            bar = BAR(Wt(U if pre else (d + 1) >> 1) | ({"OST"} if d == SG else set()), lo=g, hi=g); rs = rs + [bar]; nov = range(g, g + 9)
            for it in nxt: it.after = [bar]
        spread(nxt, g + 1, 73 if pre else 76)
        vm = []
        cadr = lambda m: f"s{sC1}" + (" offset:128" if m == 24 else "")
        if d in CK: vm += [I(f"buffer_load_dword v{vP2}, off, {S4(sFl)}, {cadr(CK[d])} sc1", dst={f"v{vP2}"})]
        if d % 4 == 3 or pre: vm += codepf()
        fs = OS[d]; k2_ = len([f for f in fs if f[0] < CK.get(d, 99)]); k = min(5, k2_)
        vm += oload(fs[:k]) + held[d]
        for x in WS.get(d, []): vm += wdma(*x)
        if d in CK:
            vm += oload(fs[k:k2_]); k = k2_
            rf = I(f"v_readfirstlane_b32 s88, v{vP2}")
            ck = [WAIT(vneed={f"v{vP2}"}), rf, Ins(f"s_cmp_lt_u32 s88, 32\ns_cbranch_scc1 K2_SPIN{CK[d]}{X}\nK2_RET{CK[d]}{X}:", kind="bar", after=[rf], dly=2)]
            n1 = len(vm); vm += ck
        vm += oload(fs[k:])
        if d == SG:
            at = atomic(vOne, sC1w, sFl); at.after = [bar]; vm.append(at)
        if d in CK:
            n_a = sum(x.kind == "vmem" for x in vm[:n1]); n_b = sum(x.kind == "vmem" for x in vm[n1:])
            c_ = max(OPT["ckg"], int(76 * n_a / (n_a + n_b)) - 4)
            if hasb and g - 5 < c_ < g + 9: c_ = g + 9 if n_b <= 3 else g - 5
            even(vm[:n1], 0, c_, [g]); even(vm[n1 + 3:], c_ + 5, 80, [g])
            for x in ck: x.lo = c_; x.target = c_; x.hi = c_ + 4
        else: even(vm, 0, int(0.8 * OPT["advf"]) if pre else 80, [g])
        es = body[d]
        if es:
            for k in range(len(es) // 20): es[20 * k].after = [held[d][k]] if NT == 3 else held[d][-1:]; es[20 * k].dly = 1
            spread(es, held[d][0].lo + 2, 79, nov)
        if d == 14: es = spread(late, 0, 79); assert d not in CK
        return schedule(mfs([d]), [ws, rs + nxt, vm, es], novalu=nov, name=f"k2s{d}{X}") + (stamp(50) if d == 5 else stamp(47, True) if d == 13 else stamp(56) if pre else [])
    WS = {d: [((d >> 1) + 2, d & 1)] for d in range(2 * (U - 1))}
    if 2 * U - 3 >= DM - 1: WS[2 * U - 4] += WS.pop(2 * U - 3)
    assert max(WS) < DM - 1
    def final():
        n = 2 * M; T = 5 * n
        own = wreads(MD)[max(NP, 2 * n):]
        for it in own:
            t, i = divmod(it.f, n)
            it.target = T * (t - 1) + i * (T - 9) / n; it.hi = T * t - 7
            if it.f >= 16: it.lo = T * ((it.f - 16) // n) + 4 * n + (it.f - 16) % n
        ws = [WAIT(lneed=set().union(*[regs("a", wq(n * t + i), 4) for i in range(n)]), lo=T * t - 3, hi=T * t - 1, target=T * t - 2) for t in range(1, 8)]
        sn = []
        for jl in range(3):
            for qt in range(5):
                a, b = acc(2 * jl, qt), acc(2 * jl + 1, qt)
                c = Is(f"""v_cvt_pk_bf16_f32 v{a}, v{a}, v{a+1}
v_cvt_pk_bf16_f32 v{a+1}, v{a+2}, v{a+3}
v_cvt_pk_bf16_f32 v{a+2}, v{b}, v{b+1}
v_cvt_pk_bf16_f32 v{a+3}, v{b+2}, v{b+3}""")
                if qt in (0, 4): c.append(I(f"s_add_u32 s{sTs}, s{sXo[0]}, {(2 - jl)*5120 + (qt // 4)*4096}"))
                c.append(I(f"buffer_store_dwordx4 {V4(a)}, v{vOf}, {S4(sXs)}, s{sTs} offen offset:{(qt % 4)*1024} sc1", dst={f"SN{jl}"}))
                lo = T * (2 * jl + 1) + n * (qt + 1) - 1 + 8
                for k, x in enumerate(c): x.lo = lo if k >= 2 else lo - 8; x.target = lo + k * 0.5 - 1
                sn += c
        ev = []; nov = []
        for jl in range(3):
            F = min(2 * T * (jl + 1) + 12 + OPT["fag"], 8 * T - OPT["fbg"])
            b_ = Ins("WAITBAR", kind="bar", vneed={f"SN{jl}"}, lo=F, hi=F); f_ = flag(4 * (2 - jl)); f_.after = [b_]; f_.target = F + 1; f_.hi = F + 3
            for x in sn[jl * len(sn) // 3:(jl + 1) * len(sn) // 3]: x.hi = F - 1
            ev += [b_, f_]; nov += range(F, F + 9)
        P1 = 8 * T - OPT["p1g"]; NS = OPT["nsp"]
        c = I(f"v_cmp_eq_u32 s[84:85], 1, v{t2}")
        sp = [I(poll, dst={f"v{t2}"}, lo=P1), WAIT(vneed={f"v{t2}"}, lo=P1 + 56), c, I(f"s_and_b32 s{sGx}, s84, {(0, 4, 6, 7)[NS]}", after=[c], dly=2)] if NS else []
        for x in sp[2:]: x.target = P1 + 57
        ld = []
        for rho in (3, 2, 1)[:NS]: ld += [pair(f"s_bitcmp1_b32 s{sGx}, {rho-1}", f"s_cselect_b32 s{sGs}, s{sXo[rho]}, 0x80000000")] + rload(rho, sGs)
        spread(ld, P1 + 62, min(8 * T - 2, P1 + 62 + 20 * NS))
        PL = 8 * T - OPT["plg"]
        ld.insert(len([x for x in ld if x.target < PL]), I(poll, dst={f"v{t2}"}, lo=PL))
        return schedule(mfs(MD), [ws, own, sn, ev, sp + ld], novalu=nov, name="k2fin")
    if "k2head" not in B: B["k2head"] = H + [x for d in range(A0) for x in step(d)] + (Is(f"s_bitcmp0_b32 s{sWg}, 0\ns_cbranch_scc1 K2_BODYe") if OPT["asy"] else [])
    assert SG < A0 and min(CK) >= A0
    B["k2body" + X] = Is(f"K2_BODY{X}:") + [x for d in range(A0, DM) for x in step(d)] + final()
    sys.stderr.write(f"[k2] SG {SG} CK {CK} loads/step {[len(OS[d]) for d in sorted(OS)]} spare quads {len(RDQ)}\n")
    E = stamp(51) + (Is(f"v_writelane_b32 v22, s{sSp}, 61\ns_getreg_b32 s87, hwreg(HW_REG_XCC_ID)\nv_writelane_b32 v22, s87, 62\nv_writelane_b32 v22, s{sBk}, 59\ns_memrealtime s[90:91]\ns_waitcnt lgkmcnt(0)\nv_writelane_b32 v22, s90, 63") if OPT["stamps"] in (6, 7, 8) else [])
    def rel(L):
        for x in L: x.text = re.sub(r"\b(K2_WX|K2_W1|K2_W2|K2_W3|K2_GO|K2_PS)\b", r"\1" + X, x.text)
        return L
    xadd = lambda: [x for qt in range(5) for x in radd((2, 3), qt)]
    E += stamp(52) + Is(f"s_cmp_eq_u32 s{sGx}, 7\ns_cbranch_scc1 K2_GO") + [WAIT(vneed={f"v{t2}"})] + Is(f"""K2_PS:
v_cmp_eq_u32 s[84:85], 1, v{t2}
s_add_u32 s{sSp}, s{sSp}, 1
s_cmp_gt_u32 s{sSp}, 0x40000
s_nop 0
s_cselect_b32 s84, 7, s84
s_andn2_b32 s85, s84, s{sGx}
s_or_b32 s{sGx}, s{sGx}, s84
s_and_b32 s{sGx}, s{sGx}, 7""")
    for rho in (3, 2, 1): E += Is(f"s_bitcmp0_b32 s85, {rho-1}\ns_cbranch_scc1 K2_W{rho}") + rload(rho, sXo[rho]) + Is(f"K2_W{rho}:")
    E += Is(f"s_cmp_lg_u32 s{sGx}, 7\ns_cbranch_scc1 K2_WX")
    B["k2epi" + X] = rel(E)
    B["k2wx" + X] = rel(Is(f"K2_WX:\n{poll}\ns_waitcnt vmcnt(0)\ns_branch K2_PS"))
    E = Is("K2_GO:") + stamp(53)
    def fin(qt):
        a, b = acc(6, qt), acc(7, qt)
        return Is(f"""v_cvt_pk_bf16_f32 v{a}, v{a}, v{a+1}
v_cvt_pk_bf16_f32 v{a+1}, v{a+2}, v{a+3}
v_cvt_pk_bf16_f32 v{a+2}, v{b}, v{b+1}
v_cvt_pk_bf16_f32 v{a+3}, v{b+2}, v{b+3}
s_nop 1
v_permlane16_swap_b32 v{a}, v{a+2}
v_permlane16_swap_b32 v{a+1}, v{a+3}
ds_write_b128 v{vLp}, {V4(a)} offset:{qt*1024}""") + [I(f"ds_read_b128 {V4(144+4*qt)}, v{vRd} offset:{qt*1024}", dst=regs("v", 144 + 4 * qt, 4))]
    out = lambda qt: [I(f"s_mov_b32 s87, {qt*16*2560}"), WAIT(lneed=regs("v", 144 + 4 * qt, 4)), I(f"buffer_store_dwordx4 {V4(144+4*qt)}, v{vSt}, {S4(sOut)}, s87 offen")]
    for qt in range(5):
        E += Is(f"s_waitcnt vmcnt({4 - qt})") + radd((3, 2, 1), qt)
        if qt >= 1: E += fin(qt - 1)
    E += out(0) + out(1) + out(2) + fin(4) + out(3) + out(4)
    E += stamp(54) + (Is(f"v_writelane_b32 v22, s{sSp}, 60\nv_writelane_b32 v23, s87, 60") if OPT["stamps"] else [])
    B["k2fin" + X] = rel(E) + (Is("s_branch K1_DONE") if OPT["stamps"] else Is("s_endpgm"))
    B["k2end"] = Is("K1_DONE:") + stamp_out(S2(sKA), sWg, sWave, t0, 0x4000000) + (Is(f"""s_cmp_lg_u32 s{sWg}, 17
s_cbranch_scc1 K1_END
s_cmp_lg_u32 s{sWave}, 0
s_cbranch_scc1 K1_END
v_readlane_b32 s84, v22, {OPT["enc"] >> 8}
v_readlane_b32 s85, v22, {OPT["enc"] & 255}
s_memrealtime s[86:87]
s_waitcnt lgkmcnt(0)
s_sub_u32 s85, s85, s84
s_lshr_b32 s85, s85, 1
s_min_u32 s85, s85, 150000
s_add_u32 s85, s85, 1000
K1_ENC:
s_memrealtime s[90:91]
s_waitcnt lgkmcnt(0)
s_sub_u32 s90, s90, s86
s_cmp_lt_u32 s90, s85
s_cbranch_scc1 K1_ENC""") if OPT["enc"] else []) + Is("K1_END:\ns_endpgm")
    spin = lambda nm, ret, ld, rd: Is(f"""{nm}:
s_add_u32 s{sSp}, s{sSp}, 1
s_cmp_gt_u32 s{sSp}, 0x40000
s_cbranch_scc1 {ret}
s_sleep 4
{ld}
s_waitcnt vmcnt(0)
{rd}
s_nop 3
s_cmp_lt_u32 s88, 32
s_cbranch_scc1 {nm}
s_branch {ret}""")
    B["k2side"] = Is(f"""K1_REDO:
s_mov_b32 s{sMode}, 1
s_waitcnt vmcnt(0) lgkmcnt(0)
s_barrier""") + B["kre"] + spin("K2_SPIN0", "K2_RET0", f"buffer_load_dwordx2 v[{vPoll}:{vPoll+1}], off, {S4(sDb)}, s{sCo} sc1", f"v_min_u32 v{t0}, v{vPoll}, v{vPoll+1}\ns_nop 0\nv_readfirstlane_b32 s88, v{t0}")
    B["k2sp" + X] = [x for m in CK.values() for x in spin(f"K2_SPIN{m}{X}", f"K2_RET{m}{X}", f"buffer_load_dword v{vP2}, off, {S4(sFl)}, s{sC1}" + (" offset:128" if m == 24 else "") + " sc1", f"v_readfirstlane_b32 s88, v{vP2}")]
    D = Is("K2_IDLE:") + common()
    for u in range(NE0, 24): D += epi_unit(u, True)
    D += Is("s_waitcnt vmcnt(0)\ns_barrier") + [atomic(vOne, sC1w, sFl)]
    if OPT["wsh"] == 2:
        D += Is(f"""s_bfe_u32 s80, s{sWg}, 0x10001
s_bfe_u32 s81, s{sWg}, 0x10003
s_lshl1_add_u32 s80, s81, s80
s_add_u32 s81, s80, 60
s_mul_i32 s81, s81, 30720
s_sub_u32 s81, {3072*1280}, s81
s_add_u32 s{sOo}, s{sNb}, s81
s_addc_u32 s{sOo+1}, s{sNb+1}, 0
s_mov_b32 s{sOo+2}, {1536*1280}
s_lshl_b32 s80, s80, 14
K2_PFL:""")
        for h in range(2): D += Is(f"s_add_u32 s81, s80, {h*768*1280}") + [I(f"buffer_load_dword v{64+j}, v{vO}, {S4(sOo)}, s81 offen offset:{j*1024}", dst={f"v{64+j}"}) for j in range(4)]
        D += Is(f"""s_add_u32 s80, s80, 65536
s_waitcnt vmcnt(24)
s_cmp_lt_u32 s80, {768*1280}
s_cbranch_scc1 K2_PFL""")
    D += (Is("v_mov_b32 v22, v31\nv_mov_b32 v23, v31") if OPT["stamps"] else []) + (stamp(54) if OPT["stamps"] == 9 else []) + Is("s_branch K1_DONE")
    B["k2idle"] = D
    return ["k2pro", "k2head", "k2body" + X, "k2epi" + X, "k2fin" + X]

def oproj(B, NE0):
    a = OPT["asy"]
    tr = [oproj1(B, NE0, "o", 24 - a)] + ([oproj1(B, NE0, "e", 24 + a)] if a else [])
    lay = ["k2pro", "k2head"] + [b + x for x in ("oe" if a else "o") for b in ("k2body", "k2epi", "k2fin", "k2wx", "k2sp")] + ["k2end"]
    return tr, lay

def desc(name, vg=512, acc=256):
    return f""".p2align 6
.amdhsa_kernel {name}
  .amdhsa_next_free_vgpr {vg}
  .amdhsa_next_free_sgpr 102
  .amdhsa_accum_offset {acc}
  .amdhsa_group_segment_fixed_size 0
  .amdhsa_kernarg_size 104
  .amdhsa_user_sgpr_count 2
  .amdhsa_user_sgpr_kernarg_segment_ptr 1
  .amdhsa_system_sgpr_workgroup_id_x 1
  .amdhsa_float_denorm_mode_32 3
.end_amdhsa_kernel"""

def main():
    k1, e1 = kernel1()
    ref = open("cdna_kernels/" + NAME + ".s.ref").read().split("\n")
    head = [l for l in ref if l.startswith(";") and "@launch" not in l]
    nm = NAME + "_kernel"
    out = head + [f"; @launch grid=(256,1,1) block=(256,1,1) lds=163840"] + """;
; One persistent workgroup per CU (4 waves, 64 query rows each, 512 registers, 16x16x32 bf16 MFMA).
;   per workgroup: two heads of one (branch, batch): Q projection -> flash attention -> O (bf16, fragment order) to d_ws
;   then the output projection in the same launch, behind counters (d_debug, d_ws) that order the hand-offs.
; Softmax shift = true max of the first keys of each row; the row sums are checked at the end and, if the shift was
; too small for any row (sum >= 2^60 or not finite), the workgroup redoes its heads with the exact row max.
; Written by a generator script (static instruction placement between the MFMAs, counted waits).""".split("\n") + ['.amdgcn_target "amdgcn-amd-amdhsa--gfx950"', ".text"]
    out += [f".globl {nm}", ".p2align 8", f".type {nm},@function", f"{nm}:"] + k1
    out += ["K_CODE_END:", "s_endpgm", '.section .rodata,"a"', desc(nm)]
    open(sys.argv[1], "w").write("\n".join(out) + "\n")
    if e1: sys.exit(1)
main()
```

```python
import sys, math, re
from asmlib import *
from verify import verify

OPT = dict(nt_kv=1, nt_w=0, nt_x=0, nt_o=2, k2_nt_o=2, k2_nt_w=0, stamps=0, ovl=1, ne0=6, nc9=7, pf=1, cpf=1, k2e=9, sigs=4, pfs=0, cpl=1, k2fix=0, osc=1, ev=1, lmf=1, padn=0, padm=0, enc=0, kvn=0, kv0=10, kvpos=70, kvph=7, encb=30000, outp=0, na0=2, bg15=60, hgap=8, rot=0, wpf=1, hold=1, padi=0, cpw=0x88, vmx=63, xq=3, xp=2, me=0x3f, mo=0x3f, cw8=4, pq=0, pp=0, lq=0, lp=0, la1=0, pskip=2, cpfirst=0, m1=0, adp=9, adn=2, nfl=0, tw=0, rmp=0, k2n=3, cpk=0x88888, fag=62, wop=1, mrg=4, adv0=8, advf=55, asy=2, fbg=12, plg=45, p1g=120, sge=1, ckg=52, nsp=0, woa=0, wsh=2, adb=0, smf=1)
for a in sys.argv[2:]:
    k, v = a.split("="); assert k in OPT, k; OPT[k] = int(v, 0)
NAME = "concat_heads__gqa_block_cached__gqa_block_cached__near_ridge"
MF = "v_mfma_f32_16x16x32_bf16"
def I(t, **kw): return Ins(t, **kw)
def Is(txt): return [Ins(t.strip()) for t in txt.strip().split("\n") if t.strip()]
def mfma(d, a, b, c): return Ins(f"{MF} {d}, {a}, {b}, {c}")
def V4(b): return f"v[{b}:{b+3}]"
def A4(b): return f"a[{b}:{b+3}]"

TILE = 24576; WS = 64 * 12288
X0 = 0; RING = 32768; X1 = 131072
def slot(i): return RING + i * TILE
vK = [[1, 2], [3, 4]]; KW = [0, 65536]
vV = [[5, 6, 7, 8], [9, 10, 11, 12]]; VW = [32768, 98304]
vXr = [[13, 14], [15, 16]]
vIx = 17; vDw1 = 18; vDkv = 19; vDw = 20; vDx = 21; vO = 22; vO3 = 23
vL = [24, 25, 26, 27]; vMi = [40, 41, 42, 43]; vT = 32
NEGM = 48; SP = 64; QF = 160
RCP = 48
def negm(qt): return NEGM + 4 * qt
def XY(par, kb, qt): return SP + 4 * (par * 8 + qt * 2 + kb)
def Z(kb, qt): return SP + 64 + 4 * (kb * 4 + qt)
def Qf(qt, s): return QF + 4 * (qt * 6 + s)
def Qb(qt, s):
    return SP + 4 * (qt * 6 + s)
def Oacc(t, qt): return 4 * (t * 4 + qt)
def Xf(n, kb, qt): return 32 * (n & 1) + 4 * (kb * 4 + qt)
FR = 192
def fq(n, f): return FR + 4 * ((f + 8 * (n & 1)) % 16)
sX = 4; sDA = 8; sDB = 12; sO = 16
sK = 20; sV = 22; sNb = 24; sNnum = 26; sNs = 27; sNd = 28; sXnum = 29; sN2 = 30; sMask = 32
sA = 34; sB = 35; sI = 39; sWoff = 40; sXoff = 41
sOs = [42, 43, 44, 45, 37, 38]; sT = 46; sItem = 47; sMode = 48; sFlag = 49; sC = 50
sWave = 52; sWg = 53; sT2 = 54; sT3 = 55; sThr = 56; sKA = 58
sLd = 4
sP1 = 60; vPf = 248; vPoll = 228
sWoP = 64; sOutP = 66; sWsP = 68; sSig = 70; sPfo = 71; sDb = 72; sCo = 76; sOn = 77; sSp = 78
sCp = 97; sBk = 3; sK2n = 79; sXk = 57; sXst = 2; sWk = 0; sSel = 1; sAll = 36; sXn = 98; sK2O = 100; FLO = RING + 3 * TILE
FLG = 0x2e00000; XCH = 0x2f00000
def S4(b): return f"s[{b}:{b+3}]"
def S2(b): return f"s[{b}:{b+1}]"
BG = 76
NOV = range(BG, BG + 9)
NPRE_V = 10; NPRE_K = 6
OSTRIDE = 24 * 120 * 1024

def lastuse_pv(f): return 8 * (f >> 1) + 6 + (f & 1)
def lastuse_qk(f): kt, s = divmod(f, 6); return 24 * kt + 18 + (5 - s)

def reads_v(n, base):
    out = []
    for f in range(24):
        t, kb = f >> 1, f & 1
        r = fq(n, f)
        for hf in range(2):
            off = base + (4 * kb + 2 * hf) * 3072 + (t >> 2) * 1024
            w = 1 if off >= VW[1] else 0
            it = I(f"ds_read_b64_tr_b16 a[{r+2*hf}:{r+2*hf+1}], v{vV[w][t & 3]} offset:{off-VW[w]}", dst=regs("a", r + 2 * hf, 2)); it.f = f
            out.append(it)
    return out
def reads_k(n, base):
    out = []
    for f in range(24):
        kt, s = divmod(f, 6); r = fq(n, f)
        off = base + kt * 6144 + (s >> 1) * 1024
        w = 1 if off >= KW[1] else 0
        it = I(f"ds_read_b128 {A4(r)}, v{vK[w][s & 1]} offset:{off-KW[w]}", dst=regs("a", r, 4)); it.f = f
        out.append(it)
    return out
def reads_x(n):
    return [I(f"ds_read_b128 {A4(Xf(n, kb, qt))}, v{vXr[n & 1][kb]} offset:{qt*2048}", dst=regs("a", Xf(n, kb, qt), 4)) for qt in range(4) for kb in range(2)]

def dma(srd, soff, base, nt, w=False):
    n = " nt" if nt else ""; vD = [vDw, vDw1] if w else [vDkv, vDkv]
    out = []
    for p in range(3):
        m = I(f"s_add_u32 m0, s{sWoff}, {base + 896*p}")
        a = I(f"buffer_load_dwordx4 v{vD[0]}, {S4(srd)}, s{soff} offen offset:{p*128}{n} lds", dst={f"L{base}"}, after=[m])
        b = I(f"buffer_load_dwordx4 v{vD[1]}, {S4(srd)}, s{soff} offen offset:{p*128+3072}{n} lds", dst={f"L{base}"})
        out += [m, a, b]
    return out
def dma_w(m): return Is(f"s_add_u32 s{sWk}, s{sWk}, s{sNs}\ns_cmp_eq_u32 s{sWk}, {10*WS}\ns_cselect_b32 s{sWk}, 0, s{sWk}") + dma(sDA, sWk, slot(m % 4), OPT["nt_w"], True)
def dma_k(i, base): return [I(f"s_mov_b32 s{sT2}, {i*TILE}")] + dma(sDA, sT2, base, OPT["nt_kv"])
def dma_v(i, base): return [I(f"s_mov_b32 s{sT2}, {i*TILE}")] + dma(sDB, sT2, base, OPT["nt_kv"])
dma_n = dma_w
def hd(d): return d[:-6]
def tl(d): return d[-6:]
def dma_x(n):
    out = Is(f"s_add_u32 s{sXk}, s{sXk}, s{sXst}\ns_cmp_eq_u32 s{sXk}, 1280\ns_cselect_b32 s{sXk}, 0, s{sXk}"); base = X1 if n & 1 else X0
    for j in range(8):
        if j % 4 == 0: out.append(I(f"s_add_u32 m0, s{sXoff}, {base + j*1024}"))
        out.append(I(f"s_add_u32 s{sT}, s{sXk}, {j*10240 - (j % 4)*1024}"))
        out.append(I(f"buffer_load_dwordx4 v{vDx}, {S4(sX)}, s{sT} offen offset:{(j % 4)*1024}" + (" nt" if OPT["nt_x"] else "") + " lds", dst={f"X{n&1}_{j>>1}"}))
    return out

def phase(name, n, typ, mf, own, nxt, nxt_typ, pub, early, dmas, extra=(), post=(), early_hi=None, bg=BG, dend=None, endx=frozenset()):
    lu = lastuse_pv if typ == "v" else lastuse_qk
    N = len(mf)
    rs = []
    if typ == "v":
        k0 = 48 - len(own)
        for j, it in enumerate(own):
            it.target = j * (bg - 6) / len(own)
            it.hi = min(8 * (it.f >> 1) - 6, bg - 5)
            if it.f >= 16: it.lo = lu(it.f - 16)
            it.hi = max(it.hi, it.lo)
    else:
        for j, it in enumerate(own):
            kt, s = divmod(it.f, 6)
            it.target = 24 * (kt - 1) + 1 + s * 2.5; it.hi = 24 * kt - 8
            if it.f >= 16: it.lo = lu(it.f - 16)
    rs += own
    bar = BAR(pub if isinstance(pub, set) else {f"L{pub}"}, lo=bg, hi=bg); rs.append(bar)
    for j, it in enumerate(nxt):
        it.lo = max(bg + 1, lu(it.f + 8)); it.after = [bar]
        it.target = bg + 1 + (j * 1.8 if nxt_typ == "v" else j * 1.5); it.hi = N - 1 if nxt_typ == "v" and j >= 4 else N - 8
    rs += nxt
    ws = []
    if typ == "v":
        for t in range(1, 12):
            if 8 * t - 1 >= bg: break
            ws.append(WAIT(lneed=regs("a", fq(n, 2 * t), 4) | regs("a", fq(n, 2 * t + 1), 4), lo=8 * t - 3, hi=8 * t - 1, target=8 * t - 2))
    else:
        for kt in range(1, 4):
            ws.append(WAIT(lneed=set().union(*[regs("a", fq(n, 6 * kt + s), 4) for s in range(6)]), lo=24 * kt - 3, hi=24 * kt - 1, target=24 * kt - 2))
    nf = 2 if nxt_typ == "v" else 6
    ws.append(WAIT(lneed=set().union(*[regs("a", fq(n + 1, f), 4) for f in range(nf)]) | endx, lo=N - 2, hi=N - 1, target=N - 1.5))
    ms = list(early)
    spread(ms, 1, early_hi or bg - 6)
    nv = sum(1 for it in dmas if it.kind == "vmem"); k = 0
    for it in dmas:
        it.lo = bg + 1 if it.kind == "vmem" else bg - 4
        it.target = bg + 2 + k * min(12.0, ((dend or N) - bg - 3) / max(nv, 1)) - (0 if it.kind == "vmem" else 2.5)
        if it.kind == "vmem": it.after = it.after + [bar]; k += 1
    ms += dmas
    for it in post: it.lo = bg + 1; it.target = N - 6
    ms += list(post)
    return schedule(mf, [ws, rs, ms] + list(extra), novalu=range(bg, bg + 9), name=name)

def softmax(groups, lo, hi, sub=None, skip=NOV):
    E = []; D = []; P = []
    for (par, kb, qt, l0, l1, h, sb_) in groups:
        x, z = XY(par, kb, qt), Z(kb, qt)
        src = [x, x + 1, x + 2, x + 3, z, z + 1, z + 2, z + 3]
        for pr in range(4):
            es = []
            for e in range(2):
                r = src[2 * pr + e]
                ex = I(f"v_exp_f32 v{r}, v{r}", lo=(l0, l1)[pr >> 1])
                if sb_:
                    sb = I(f"v_add_f32 v{r}, v{r}, v{negm(qt)}", after=[sub[qt]] if sub else [], lo=(l0, l1)[pr >> 1]); sb.ex = ex; P.append(sb); ex.after = [sb]
                E.append(ex); es.append(ex)
            D.append(I(f"v_cvt_pk_bf16_f32 v{x+pr}, v{src[2*pr]}, v{src[2*pr+1]}", after=es, hi=h))
    spread(E, lo, hi, skip)
    for e in E: e.hi = 10**9
    for d in D:
        d.target = max(a.target for a in d.after) + 1
        for a in d.after: a.hi = d.hi - 1
    for p in P: p.target = p.ex.target - 3; p.hi = p.ex.hi - 1
    return [P, E, D]
def g_old(par, kb, qts, N, inqk):
    return [(par, kb, qt, 0, 0, (48 * kb + 24 + 6 * qt - 1) if inqk else N - 1, False) for qt in qts]
def g_new(par, qts):
    return [(par, 0, qt, 6 * qt + 13, 24 + 6 * qt + 13, 95, False) for qt in qts]

def mf_w(n):
    out = []
    for t in range(12):
        for qt in range(4):
            d = Qf(qt, t >> 1) if t % 2 == 0 else Qb(qt, t >> 1)
            for kb in range(2):
                out.append(mfma(V4(d), A4(fq(n, 2 * t + kb)), A4(Xf(n, kb, qt)), "0" if (n == 0 and kb == 0) else V4(d)))
    return out
def mf_qk(n, par, first=False):
    out = []
    for kt in range(4):
        for qt in range(4):
            d = XY(par, kt >> 1, qt) if kt % 2 == 0 else Z(kt >> 1, qt)
            order = range(6) if qt % 2 == 0 else range(5, -1, -1)
            for j, s in enumerate(order):
                c = V4(d) if j else ("0" if (first and kt < 2) else V4(negm(qt)))
                out.append(mfma(V4(d), A4(fq(n, 6 * kt + s)), V4(Qf(qt, s)), c))
    return out
def mf_l(par, first=False):
    if not OPT["smf"]: return [mfma(V4(vL[0]), V4(32 + 4 * qt), V4(XY(par, kb, qt)), V4(vL[0])) for kb in range(2) for qt in range(4)]
    return [Ins(f"v_smfmac_f32_16x16x64_bf16 {V4(vL[0])}, {V4(32 + 4*qt)}, v[{XY(par, 0, qt)}:{XY(par, 0, qt)+7}], v{vIx}", kind="mfma") for qt in range(4)]
def mf_pv(n, par, first=False):
    out = []
    for t in range(12):
        for qt in range(4):
            for kb in range(2):
                out.append(mfma(A4(Oacc(t, qt)), A4(fq(n, 2 * t + kb)), V4(XY(par, kb, qt)), "0" if (first and kb == 0) else A4(Oacc(t, qt))))
    return out

ETMP = [32, 40, 56]
def epi_unit(u, packed, k2=False):
    s, qt = divmod(u, 4)
    tb = ETMP[u % 3] if OPT["stamps"] in (0, 6, 7, 8, 9) else [24, 32, 56][u % 3] if k2 else [32, 56][u % 2]
    out = []
    rc = RCP + 2 * qt
    for h in range(2):
        for j in range(4): out.append(I(f"v_accvgpr_read_b32 v{tb+4*h+j}, a{Oacc(2*s+h, qt)+j}"))
        if packed:
            for j in range(2): out.append(I(f"v_pk_mul_f32 v[{tb+4*h+2*j}:{tb+4*h+2*j+1}], v[{tb+4*h+2*j}:{tb+4*h+2*j+1}], v[{rc}:{rc+1}]"))
        else:
            for j in range(4): out.append(I(f"v_mul_f32 v{tb+4*h+j}, v{tb+4*h+j}, v{rc}"))
        for j in range(2): out.append(I(f"v_cvt_pk_bf16_f32 v{tb+2*h+j}, v{tb+4*h+2*j}, v{tb+4*h+2*j+1}"))
    out.append(I(f"buffer_store_dwordx4 {V4(tb)}, v{vO3 if qt == 3 else vO}, {S4(sO)}, s{sOs[s]} offen offset:{qt*1024}" + ["", " nt", " sc1", " sc0 sc1"][OPT["nt_o"]], dst={"OST"}))
    return out
def cvt_unit(s, qt, packed):
    a, b = Qf(qt, s), Qb(qt, s)
    out = []
    if packed:
        for r in (a, a + 2, b, b + 2): out.append(I(f"v_pk_mul_f32 v[{r}:{r+1}], v[{r}:{r+1}], {S2(sC)}"))
    else:
        for r in (a, a + 1, a + 2, a + 3, b, b + 1, b + 2, b + 3): out.append(I(f"v_mul_f32 v{r}, s{sC}, v{r}"))
    out += Is(f"""v_cvt_pk_bf16_f32 v{a}, v{a}, v{a+1}
v_cvt_pk_bf16_f32 v{a+1}, v{a+2}, v{a+3}
v_cvt_pk_bf16_f32 v{a+2}, v{b}, v{b+1}
v_cvt_pk_bf16_f32 v{a+3}, v{b+2}, v{b+3}""")
    sw = Is(f"v_permlane16_swap_b32 v{a}, v{a+2}\nv_permlane16_swap_b32 v{a+1}, v{a+3}")
    return out, sw

def pf():
    return [I(f"v_add_u32 v{vPf}, s{sPfo}, v{vO}")] + [I(f"buffer_load_dwordx4 {V4(252)}, v{vPf}, {S4(sP1)}, " + ("0" if j < 4 else f"s{sT3}") + f" offen offset:{(j % 4)*1024}", dst=regs("v", 252, 4)) for j in range(6)]

def atomic(v, so, srd=None):
    it = Ins(f"s_mov_b64 exec, 1\nbuffer_atomic_add v{v}, off, {S4(srd or sDb)}, s{so}\ns_mov_b64 exec, -1", kind="vmem"); it.cost = 8
    return it
def codepf():
    return [I("global_load_dword v30, v[28:29], off", dst={"v30"})] if OPT["cpl"] else []

def jobid(d, t):
    if not OPT["rmp"]: return f"s_mov_b32 s{d}, s{sWg}"
    return f"""s_lshr_b32 s{t}, s{sWg}, 4
s_xor_b32 s{t}, s{t}, s{sWg}
s_and_b32 s{t}, s{t}, 1
s_mul_i32 s{t}, s{t}, 17
s_cmp_ge_u32 s{sWg}, 224
s_cselect_b32 s{t}, s{t}, 0
s_xor_b32 s{d}, s{sWg}, s{t}"""

def lin(items):
    out = []
    for k, it in enumerate(items):
        out.append(it)
        if it.text.startswith("s_add_u32 m0") and items[k + 1].kind == "vmem": out.append(I("s_nop 0"))
    return out

def stamp(idx, k2=False):
    if not OPT["stamps"]: return []
    if OPT["stamps"] == 9:
        if idx not in (48, 54): return []
        return Is(f"s_memrealtime s[94:95]\ns_waitcnt lgkmcnt(0)\nv_writelane_b32 v{31 if idx == 48 else 22}, s94, {idx}")
    va, vb = (22, 23) if idx >= 51 else (31, 31) if OPT['stamps'] >= 6 else (46, 47)
    if idx == -2: sel = "s_add_u32 s92, s39, 31"
    elif idx < 0: sel = f"s_mul_i32 s92, s{sItem}, 24\ns_add_u32 s92, s92, s{sI}\ns_add_u32 s92, s92, 8"
    else: sel = f"s_mov_b32 s92, {idx}" if (k2 or idx >= 48) else f"s_mul_i32 s92, s{sItem}, 24\ns_add_u32 s92, s92, {idx}"
    return Is(f"""s_memtime s[90:91]
s_memrealtime s[94:95]
s_waitcnt lgkmcnt(0)
s_cselect_b32 s96, 1, 0
{sel}
s_mov_b32 s93, m0
s_mov_b32 m0, s92
v_writelane_b32 v{vb}, s94, m0
v_writelane_b32 v{va}, s90, m0
s_mov_b32 m0, s93
s_cmp_lg_u32 s96, 0""")
def stamp_out(karg, wg, wave, tmp, base, k2=False):
    if not OPT["stamps"]: return []
    va = 22
    return Is(f"""s_load_dwordx2 s[80:81], {karg}, 96
s_waitcnt lgkmcnt(0)
s_add_u32 s80, s80, {base}
s_addc_u32 s81, s81, 0
s_mov_b32 s82, 0x100000
s_mov_b32 s83, 0x20000
s_lshl_b32 s84, s{wg}, 2
s_add_u32 s84, s84, s{wave}
s_lshl_b32 s84, s84, 9
v_lshlrev_b32 v{tmp}, 3, v0
buffer_store_dwordx2 v[{va}:{va+1}], v{tmp}, s[80:83], s84 offen""")


def pst(idx):
    if OPT["stamps"] != 8: return []
    return Is(f"s_memtime s[28:29]\ns_waitcnt lgkmcnt(0)\nv_writelane_b32 v31, s28, {idx}") if idx < 18 else stamp(idx, True)
def kernel1():
    B = {}
    c = math.log2(math.e) / math.sqrt(192.0)
    import struct
    cbits = struct.unpack("<I", struct.pack("<f", c))[0]
    selinit = f"s_mov_b32 s{sSel}, {OPT['me']}" if OPT['me'] == OPT['mo'] else f"s_getreg_b32 s{sSel}, hwreg(HW_REG_XCC_ID, 0, 1)\ns_cmp_eq_u32 s{sSel}, 0\ns_cselect_b32 s{sSel}, {OPT['me']}, {OPT['mo']}"
    wshare = f"""s_lshr_b32 s86, s88, 1
s_and_b32 s87, s86, 32
s_add_u32 s86, s86, s87
s_and_b32 s87, s88, 1
s_lshl_b32 s87, s87, 5
s_add_u32 s86, s86, s87
s_mul_i32 s86, s86, 61440""" if OPT["wsh"] == 1 else """s_lshr_b32 s86, s88, 1
s_and_b32 s87, s88, 1
s_lshl_b32 s87, s87, 6
s_add_u32 s86, s86, s87
s_mul_i32 s86, s86, 30720""" if OPT["wsh"] == 2 else "s_mul_i32 s86, s88, 61440"
    kload = lambda b: Is(f"s_load_dwordx16 s[4:19], {b}, 0\ns_load_dwordx8 s[20:27], {b}, 64\ns_load_dwordx2 {S2(sWsP)}, {b}, 96")
    B["kre"] = kload(S2(sKA)) + Is("s_branch K1_PRO")
    B["entry"] = Is("s_cmp_ge_u32 s2, 256\ns_cbranch_scc1 K1_END") + kload("s[0:1]") + Is(f"""
v_lshrrev_b32 v{vT}, 6, v0
v_and_b32 v0, 63, v0
s_mov_b32 s{sWg}, s2
v_readfirstlane_b32 s{sWave}, v{vT}
s_mov_b64 {S2(sKA)}, s[0:1]
s_mov_b32 s{sMode}, 0
s_mov_b32 s{sSig}, 0""") + stamp(48)
    cpa = Is(f"""
s_getpc_b64 s[90:91]
K1_PC:
s_lshr_b32 s86, s{sWg}, 3
s_lshl2_add_u32 s86, s86, s{sWave}
s_lshl_b32 s86, s86, 10
v_lshl_add_u32 v28, v0, 4, s86
v_min_u32 v28, (K_CODE_END-K1_PC-32)&0xfffffff0, v28
s_and_b32 s90, s90, 0xfffffff0
v_mov_b32 v29, s91
v_add_co_u32 v28, vcc, s90, v28
s_mov_b32 s{sSp}, 0
s_nop 0
v_addc_co_u32 v29, vcc, 0, v29, vcc""") + codepf()
    t0, t1, t2, t3 = vT, vT + 1, vT + 2, vT + 3
    P = Is(f"""K1_PRO:
s_lshr_b32 s82, s{sWg}, 6
s_and_b32 s83, s{sWg}, 2
s_lshl1_add_u32 s81, s83, s82
s_mul_i32 s82, s81, 307200
s_lshl_b32 s{sXoff}, s{sWave}, 13
s_lshl_b32 s86, s{sWave}, 6
v_lshrrev_b32 v{t0}, 3, v0
v_and_b32 v{t1}, 7, v0
v_and_b32 v{t2}, 6, v{t0}
v_xor_b32 v{t1}, v{t1}, v{t2}
v_add_u32 v{t2}, s86, v{t0}
v_mul_u32_u24 v{vDx}, 1280, v{t2}
v_lshl_add_u32 v{vDx}, v{t1}, 4, v{vDx}
s_bfe_u32 s{sT3}, s{sWg}, 0x10002
s_waitcnt lgkmcnt(0)
s_cselect_b64 s[92:93], s[16:17], s[6:7]
s_cselect_b64 s[4:5], s[14:15], s[4:5]
s_add_u32 s{sX}, s4, s82
s_addc_u32 s{sX+1}, s5, 0
s_mov_b32 s{sX+2}, 307200
s_mov_b32 s{sX+3}, 0x20000
s_mov_b32 s{sXk}, 0""") + pst(16) + (cpa if OPT['cpfirst'] else []) + dma_x(0)[3:] + ([] if OPT['cpfirst'] else cpa) + Is(f"""
s_cmp_eq_u32 s{sT3}, 0
s_cselect_b64 s[94:95], s[8:9], s[18:19]
s_cselect_b64 s[96:97], s[10:11], s[20:21]
s_cselect_b64 {S2(sWoP)}, s[12:13], s[22:23]
s_mov_b64 {S2(sOutP)}, s[24:25]
s_mov_b64 {S2(sDb)}, s[26:27]
s_lshr_b32 s{sT2}, s{sWg}, 3
s_and_b32 s88, s{sWg}, 1
s_and_b32 s89, s{sT2}, 7
s_lshl3_add_u32 s80, s88, s89
s_mul_i32 s84, s80, 384
s_mul_i32 s{sWoff}, s{sWave}, 6144
v_mul_u32_u24 v{vDkv}, 384, v{t0}
v_lshl_add_u32 v{vDkv}, v{t1}, 4, v{vDkv}
v_add_u32 v{vDkv}, s{sWoff}, v{vDkv}
v_and_b32 v{t2}, 4, v{t1}
v_and_b32 v{t3}, 1, v{t1}
v_lshl_or_b32 v{t2}, v{t3}, 1, v{t2}
v_bfe_u32 v{t3}, v{t1}, 1, 1
v_or_b32 v{t1}, v{t2}, v{t3}
v_and_b32 v{t2}, 3, v{t0}
v_lshrrev_b32 v{t3}, 2, v{t0}
v_lshl_add_u32 v{t2}, v{t3}, 3, v{t2}
s_lshr_b32 s86, s{sWave}, 1
s_lshl_b32 s86, s86, 5
s_and_b32 s87, s{sWave}, 1
s_lshl2_add_u32 s86, s87, s86
v_add_u32 v{t2}, s86, v{t2}
v_mul_u32_u24 v{vDw}, 12288, v{t2}
v_lshl_add_u32 v{vDw}, v{t1}, 4, v{vDw}
v_add_u32 v{vDw1}, {196608-3072}, v{vDw}
s_add_u32 s{sDA}, s96, s84
s_addc_u32 s{sDA+1}, s97, 0
s_sub_u32 s{sDA+2}, 7864320, s84
s_mov_b32 s{sDA+3}, 0x20000
s_mov_b32 s{sNs}, {WS}
s_mov_b32 s{sWk}, 0
s_mov_b32 s{sXst}, 128
""")
    P0 = P
    P = Is(f"""
s_lshl_b32 s83, s81, 5
s_add_u32 s83, s83, s80
s_mul_i32 s83, s83, 393216
s_lshl_b32 s85, s{sT3}, 5
s_lshl_b32 s86, s88, 4
s_add_u32 s85, s85, s86
s_add_u32 s85, s85, s89
s_and_b32 s86, s89, 4
s_add_u32 s85, s85, s86
s_mul_i32 s85, s85, 720
s_mul_i32 s86, s81, 15
s_add_u32 s85, s85, s86
s_lshl_b32 s85, s85, 10
s_and_b32 s88, s{sWg}, 3
s_lshl_b32 s89, s{sT2}, 2
s_add_u32 s88, s88, s89
s_add_u32 s{sK}, s92, s83
s_addc_u32 s{sK+1}, s93, 0
s_add_u32 s{sV}, s94, s83
s_addc_u32 s{sV+1}, s95, 0
s_mov_b32 s{sDb+2}, 256
s_mov_b32 s{sDb+3}, 0x20000
s_bfe_u32 s{sCo}, s{sWg}, 0x20001
s_lshl_b32 s{sCo}, s{sCo}, 6
s_mov_b32 s{sPfo}, s{sXoff}
s_cmp_eq_u32 s{sSig}, 0
s_cselect_b32 s{sOn}, {5*122880+15*1024}, 0
s_add_u32 s{sNb}, s{sDA}, 6144
s_addc_u32 s{sNb+1}, s{sDA+1}, 0
s_sub_u32 s{sNnum}, s{sDA+2}, 6144
s_mov_b64 {S2(sMask)}, 0
s_mov_b32 s{sXnum}, 307200
{wshare}
s_add_u32 s{sN2}, s{sWoP}, s86
s_addc_u32 s{sN2+1}, s{sWoP+1}, 0
s_mul_i32 s86, s88, {4*12288}
s_add_u32 s86, s86, {128*12288+6144}
s_add_u32 s{sP1}, s96, s86
s_addc_u32 s{sP1+1}, s97, 0
s_mov_b32 s{sP1+2}, {(3*12288+6144) * OPT['wpf']}
s_mov_b32 s{sP1+3}, 0x20000
s_mov_b32 s{sT3}, 4096
s_add_u32 s{sO}, s{sWsP}, s85
s_addc_u32 s{sO+1}, s{sWsP+1}, 0
s_sub_u32 s{sO}, s{sO}, {OSTRIDE}
s_subb_u32 s{sO+1}, s{sO+1}, 0
s_mov_b32 s{sO+2}, 0
s_mov_b32 s{sO+3}, 0x20000
s_lshl_b32 s86, s{sWg}, 7
s_add_u32 s86, s86, {FLG}
s_add_u32 s{sDB}, s{sWsP}, s86
s_addc_u32 s{sDB+1}, s{sWsP+1}, 0
s_cmp_eq_u32 s{sMode}, 0
s_cselect_b32 s{sDB+2}, 128, 0
s_mov_b32 s{sDB+3}, 0x20000
s_mov_b32 s{sItem}, 0
s_mov_b32 s{sFlag}, 0
s_mov_b32 s{sCp}, 0x1000
{selinit}
s_mov_b32 s{sBk}, 0
s_mov_b64 {S2(sXn)}, {S2(sX)}
s_lshr_b32 s80, s{sWg}, 4
s_mul_i32 s84, s80, 52
s_lshr_b32 s84, s84, 8
s_mul_i32 s85, s84, 5
s_sub_u32 s85, s80, s85
s_and_b32 s81, s{sWg}, 1
s_bfe_u32 s89, s{sWg}, 0x10003
s_lshl1_add_u32 s89, s81, s89
s_and_b32 s82, s{sWave}, 1
s_lshr_b32 s83, s{sWave}, 1
s_xor_b32 s86, s81, s82
s_xor_b32 s86, s86, 1
s_lshl_b32 s86, s86, 7
s_lshl_b32 s87, s85, 8
s_add_u32 s86, s86, s87
s_mul_i32 s87, s83, {64*1280}
s_add_u32 s86, s86, s87
s_mul_i32 s87, s89, {768*1280}
s_add_u32 s86, s86, s87
s_add_u32 s{sWoP}, s{sWoP}, s86
s_addc_u32 s{sWoP+1}, s{sWoP+1}, 0
s_sub_u32 s{sK2n}, 7864320, s86
s_cmp_lt_u32 s80, 15
s_cselect_b32 s{sK2n}, s{sK2n}, 0
s_bfe_u32 s86, s{sWg}, 0x10001
s_mul_i32 s86, s86, 60
s_mul_i32 s87, s84, 20
s_add_u32 s86, s86, s87
s_mul_i32 s87, s{sWave}, 5
s_add_u32 s86, s86, s87
s_bfe_u32 s87, s{sWg}, 0x10002
s_lshl2_add_u32 s88, s87, s89
s_mul_i32 s88, s88, {48*120}
s_add_u32 s88, s88, s86
s_lshl_b32 s88, s88, 10
s_add_u32 s{sK2O}, s{sWsP}, s88
s_addc_u32 s{sK2O+1}, s{sWsP+1}, 0
s_mul_i32 s88, s86, {16*2560}
s_mul_i32 s87, s87, 1280
s_add_u32 s88, s88, s87
s_lshl_b32 s87, s85, 8
s_add_u32 s88, s88, s87
s_lshl_b32 s87, s89, 6
s_add_u32 s88, s88, s87
s_add_u32 s{sOutP}, s{sOutP}, s88
s_addc_u32 s{sOutP+1}, s{sOutP+1}, 0
s_mov_b32 s{sC}, {cbits:#x}
s_mov_b32 s{sC+1}, {cbits:#x}
s_mov_b32 s{sThr}, 0x5d800000
""") + [I(f"s_mov_b32 s{sOs[s]}, {s*122880}") for s in range(6)]
    kb0, vb0 = vK[0][0], vV[0][0]
    P += Is(f"""
v_and_b32 v{t0}, 15, v0
v_lshrrev_b32 v{t1}, 4, v0
v_and_b32 v{t2}, 6, v{t0}
v_xor_b32 v{t3}, v{t2}, v{t1}
v_lshlrev_b32 v{t3}, 4, v{t3}
v_lshl_add_u32 v{vXr[0][0]}, v{t0}, 7, v{t3}
v_add_u32 v{vXr[0][0]}, s{sXoff}, v{vXr[0][0]}
v_xor_b32 v{vXr[0][1]}, 64, v{vXr[0][0]}
v_add_u32 v{vXr[1][0]}, {X1}, v{vXr[0][0]}
v_add_u32 v{vXr[1][1]}, {X1}, v{vXr[0][1]}
v_lshrrev_b32 v{t2}, 3, v{t0}
v_mul_u32_u24 v{kb0}, 3072, v{t2}
v_and_b32 v{t2}, 7, v{t0}
v_lshl_add_u32 v{kb0}, v{t2}, 7, v{kb0}
v_add_u32 v{kb0}, v{kb0}, v{t3}
v_xor_b32 v{vK[0][1]}, 64, v{kb0}
v_add_u32 v{vK[1][0]}, {KW[1]}, v{kb0}
v_add_u32 v{vK[1][1]}, {KW[1]}, v{vK[0][1]}
v_lshrrev_b32 v{t2}, 5, v0
v_mul_u32_u24 v{vb0}, 3072, v{t2}
v_bfe_u32 v{t2}, v0, 2, 3
v_lshl_add_u32 v{vb0}, v{t2}, 7, v{vb0}
v_and_b32 v{t2}, 6, v{t2}
v_bfe_u32 v{t3}, v0, 1, 1
v_xor_b32 v{t2}, v{t2}, v{t3}
v_lshl_add_u32 v{vb0}, v{t2}, 4, v{vb0}
v_and_b32 v{t2}, 1, v0
v_lshl_add_u32 v{vb0}, v{t2}, 3, v{vb0}
v_add_u32 v{vb0}, {VW[0]}, v{vb0}
v_xor_b32 v{vV[0][1]}, 32, v{vb0}
v_xor_b32 v{vV[0][2]}, 64, v{vb0}
v_xor_b32 v{vV[0][3]}, 96, v{vb0}
""") + [I(f"v_add_u32 v{vV[1][i]}, {VW[1]-VW[0]}, v{vV[0][i]}") for i in range(4)] + Is(f"""
v_bfe_i32 v{t2}, v0, 2, 1
v_and_b32 v{t2}, 0xaaaaaaaa, v{t2}
v_or_b32 v{vIx}, 0x44444444, v{t2}
s_lshl_b32 s86, s{sWave}, 12
v_lshlrev_b32 v{vO}, 4, v0
v_add_u32 v{vO}, s86, v{vO}
s_cmp_eq_u32 s{sWave}, 3
s_cselect_b32 s86, 0x80000000, 0
v_add_u32 v{vO3}, s86, v{vO}
""")
    P += [I(f"v_mov_b32 v{vL[q]}, 0") for q in range(4)]
    ld = lin(dma_w(0)[3:]) + lin(dma_w(1)) + dma_x(1) + lin(hd(dma_w(2)))
    rest = P; P = P0; nv = 0
    for x in ld:
        P.append(x)
        if x.kind == "vmem":
            nv += 1; c_ = 0
            while rest and nv > OPT["pskip"] and (c_ < 9 or rest[0].text.split()[0] in ("s_addc_u32", "s_subb_u32", "s_cselect_b32", "s_cselect_b64")):
                P.append(rest.pop(0)); c_ += 1
    P += rest + pst(19)
    P += [I(f"buffer_store_dwordx4 {V4(vL[0])}, v{vO}, {S4(sDB)}, 0 offen sc1", dst={"OST"})]
    XALL = lambda n: {f"X{n&1}_{q}" for q in range(4)}
    P += [WAIT(vneed=XALL(0) | {f"L{slot(0)}"})] + reads_x(0) + Is("s_barrier")
    B["pro"] = P + pst(20) + reads_v(0, slot(0))[:NPRE_V] + Is("s_branch K1_ITEM")
    B["item"] = Is("K1_ITEM:") + stamp(0) + [WAIT(lzero=True)]
    NE0 = OPT["ne0"]
    EW = {0: list(range(NE0, 8))}
    rest = list(range(8, 24)); per = [3, 3, 2, 2, 2, 2, 2]
    for n in range(1, 8): EW[n] = rest[:per[n - 1]]; rest = rest[per[n - 1]:]
    NC9 = OPT["nc9"]
    cunits = [(s, qt) for s in range(6) for qt in range(4)]
    cold = dma_k(0, X0) + dma_k(1, slot(2)) + dma_v(0, slot(3)); C8 = 2 if OPT["la1"] else OPT["cw8"]
    cut = lambda p: 10 * (p // 3) + (0, 4, 7)[p % 3]
    pairs = lambda a, b: cold[cut(a):cut(b)]
    for n in range(10):
        own = reads_v(n, slot(n % 4))[NPRE_V:]
        early = []; extra = []; post = []; endx = set()
        if n < 9: nxt = reads_v(n + 1, slot((n + 1) % 4))[:NPRE_V]; nt_ = "v"; pub = slot((n + 1) % 4)
        else: nxt = reads_k(10, X0)[:NPRE_K]; nt_ = "k"; pub = X0
        if n < 8: early += tl(dma_w(n + 2))
        if n == 8: early += pairs(1, 1 + C8)
        if n == 9: early += pairs(2 + C8, 6 if OPT["la1"] else 8)
        if n == 7:
            early += Is(f"""s_mov_b64 {S2(sDA)}, {S2(sK)}
s_mov_b32 s{sDA+2}, 393216
s_mov_b64 {S2(sDB)}, {S2(sV)}
s_mov_b32 s{sDB+2}, 393216""")
        if n < 8: early += dma_x(n + 2)
        if (OPT['cpw'] >> n) & 1: early += codepf()
        if n == 8 and OPT["nfl"]:
            fill = Is(f"s_lshl2_add_u32 s88, s{sWg}, s{sWave}\ns_mul_i32 s88, s88, 10240\ns_add_u32 s88, s88, {XCH}")
            fill += [Ins(f"s_add_u32 s80, s{sWsP}, s88\ns_addc_u32 s81, s{sWsP+1}, 0", kind="bar"), Ins(f"s_or_b32 s88, s{sItem}, s{sMode}\ns_cselect_b32 s82, 0, 10240", kind="bar")]
            fill += Is("s_mov_b32 s83, 0x20000\ns_mov_b32 s88, 8192\nv_lshlrev_b32 v36, 4, v0") + [I(f"v_mov_b32 v{32+j}, -1") for j in range(4)]
            st = [I(f"buffer_store_dwordx4 v[32:35], v36, s[80:83], {['0', f's{sT3}', 's88'][q // 4]} offen offset:{(q % 4)*1024} sc1") for q in range(10)]
            extra.append(spread(fill, 4, 34) + spread(st, 36, 95, [BG]))
        if n == 8: post = Is(f"""s_mov_b32 s87, 0xff800000
s_cmp_eq_u32 s{sWave}, 3
s_cselect_b32 s86, 0x71000000, s87
v_mov_b32 v{vMi[0]}, s87
v_mov_b32 v{vMi[1]}, s87
v_mov_b32 v{vMi[2]}, s87
v_mov_b32 v{vMi[3]}, s86""")
        es = []; sts = []; us = EW.get(n, [])
        for u in us:
            e = epi_unit(u, False)
            if OPT["hold"] and u >= us[-1] - 2:
                x = e.pop(); x.after = [e[-1], early[-1]]; sts.append(x)
            es += e
        late0 = n == 0 and NE0 < 6
        if es: extra.append(spread(es, 0, (BG + 14 if late0 else 70) if n == 0 else 90, NOV))
        if sts: extra.append(spread(sts, 72, 96, [BG]))
        if n < 9:
            xr = reads_x(n + 1); st = []
            for q in range(4):
                if q % 2 == 0: st.append(WAIT(vneed={f"X{(n+1)&1}_{q}", f"X{(n+1)&1}_{q+1}"}))
                st += xr[2 * q:2 * q + 2]
            spread(st, 46, BG - 5)
            if n == 0:
                for q in range(4):
                    la = [x for x in es if x.text.endswith(f" a{Oacc(3, q) + 3}")]
                    for it in xr[2 * q:2 * q + 2]:
                        it.after = la
                        if q == 3 and late0: it.lo = BG + 1; it.hi = 88; it.target = BG + 4
                    if la: la[0].hi = BG - 1 if q == 3 and late0 else BG - 8
                endx = regs("a", Xf(1, 0, 0), 32)
            extra.append(st)
        if n == 9:
            pub = {f"L{X0}", "OST"}
        if OPT["kvn"] and n < OPT["kvph"]:
            seq = [(k, i) for i in range(2, 15) for (k, i) in ((0, i + 1), (1, i))] + [(1, 15)]
            tot = OPT["kvn"] * OPT["kvph"]; n1 = min(tot, len(seq)); n2 = tot - n1
            lst = [(1,) + seq[j * len(seq) // n1] for j in range(n1)] + [(0,) + seq[j * len(seq) // n2] for j in range(n2)]
            lst.sort(key=lambda e: seq.index(e[1:]))
            st = []
            if n == 0: st += Is(f"""s_mov_b64 s[84:85], {S2(sK)}
s_mov_b32 s86, {9*393216}
s_mov_b32 s87, 0x20000
s_mov_b64 {S2(sDB)}, {S2(sV)}
s_mov_b32 s{sDB+2}, {9*393216}""")
            body = "\n".join(f"s_mov_b32 s88, {i*TILE + o*8*393216}\nbuffer_load_dword v49, v{vDkv}, {S4(sDB if k else 84)}, s88 offen offset:3328" for (o, k, i) in lst[n * OPT["kvn"]:(n + 1) * OPT["kvn"]])
            st.append(Ins(f"s_cmp_eq_u32 s{sKvn}, 0\ns_cbranch_scc1 K1_KV{n}\n{body}\nK1_KV{n}:", kind="bar"))
            early += st
        if n == 9 and NC9:
            cs = []; sw = []
            for (s, qt) in cunits[:NC9]:
                a, b = cvt_unit(s, qt, False)
                a[0].lo = 16 * s + 8 + 2 * qt + 1 + 8
                for x in b: x.after = [a[-1]]; x.dly = 1
                cs += a; sw += b
            spread(cs, 17, 92, NOV)
            for x in sw: x.target = x.after[0].target + 2
            extra += [cs, sw]
        d = hd(dma_w(n + 3)) if n < 7 else pairs(0, 1) if n == 7 else pairs(1 + C8, 2 + C8) if n == 8 else pairs(6, 7) if OPT['la1'] else pairs(8, 9)
        B[f"w{n}"] = (stamp(8 + n) if OPT["stamps"] == 7 else []) + phase(f"w{n}", n, "v", mf_w(n), own, nxt, nt_, pub, early, d, extra, early_hi=70, post=post, endx=endx)
    C = stamp(1); pend = []
    for k, (s, qt) in enumerate(cunits[NC9:]):
        a, b = cvt_unit(s, qt, True)
        C += a[:4] + pend + a[4:]; pend = b
    C += Is(f"s_cmp_lg_u32 s{sMode}, 0\ns_nop 0") + pend + Is("s_cbranch_scc1 K1_MAXPASS\nK1_MAXRET:\ns_nop 0") + stamp(2)
    B["cvt"] = C
    M = []; last = []
    for qt in range(4):
        x = XY(0, 0, qt); m = vT + 2 * qt; t = m + 1
        a = I(f"v_max3_f32 v{m}, v{x}, v{x+1}, v{x+2}", lo=6 * qt + 13)
        b = I(f"v_max3_f32 v{m}, v{m}, v{x+3}, v{vMi[qt]}")
        c_ = I(f"v_mov_b32 v{t}, v{m}")
        d = I(f"v_permlane16_swap_b32 v{m}, v{t}", after=[c_], dly=1)
        e = I(f"v_max_f32 v{m}, v{m}, v{t}")
        f = I(f"v_mov_b32 v{t}, v{m}")
        g = I(f"v_permlane32_swap_b32 v{m}, v{t}", after=[f], dly=1)
        h = I(f"v_max_f32 v{m}, v{m}, v{t}")
        ns = [I(f"v_sub_f32 v{negm(qt)+i}, 0, v{m}", hi=48 + 6 * qt - 3) for i in range(4)]
        st = [a, b, c_, d, e, f, g, h] + ns
        for j, it in enumerate(st): it.target = 6 * qt + 13 + j * 0.5
        M.append(st); last.append(ns[0])
    NA0 = OPT['na0']
    sm = softmax([(0, 0, qt, 0, 24 + 6 * qt + 13, 95, True) for qt in range(NA0)], 28, 93, sub=last)
    early = Is(f"""s_mov_b32 s{sA}, {3*TILE}
s_mov_b32 s{sB}, {TILE if OPT["la1"] else 2*TILE}
s_mov_b32 s{sI}, 0
s_add_u32 s{sO}, s{sO}, {OSTRIDE}
s_addc_u32 s{sO+1}, s{sO+1}, 0
s_mov_b32 s{sO+2}, s{sOn}
s_mov_b32 s{sOn}, {5*122880+15*1024}""") + (pairs(7, 9) if OPT["la1"] else dma_k(2, slot(0)))
    hand = Is(f"""v_mov_b32 v30, 1
s_and_b32 s80, s{sWg}, 1
s_lshl_b32 s80, s80, 2
s_add_u32 s80, s80, s{sCo}
s_cmp_eq_u32 s{sAll}, 0
s_cselect_b32 s81, s{sItem}, 0
s_cmp_lt_u32 s{sSig}, s81
s_cselect_b32 s80, s80, 0x1000
s_cselect_b32 s{sSig}, 1, s{sSig}
s_cmp_eq_u32 s{sWave}, 0
s_cselect_b32 s80, s80, 0x1000""") + [atomic(30, 80)]
    B["qk0"] = phase("qk0", 10, "k", mf_qk(10, 0, True), reads_k(10, X0)[NPRE_K:], reads_k(11, slot(2))[:NPRE_K], "k", slot(2), early,
                     hd(dma_k(2, slot(0)) if OPT['la1'] else dma_v(1, slot(1))), M + sm, early_hi=70) + stamp(3)
    def half(nm, par, mode, xq=0, xp=0):
        ks, vs, kn, vp = slot(2 * par), slot(2 * par + 1), slot(2 - 2 * par), slot(3 - 2 * par)
        kd = lambda: dma(sDA, sA, ks, OPT["nt_kv"])
        vd = lambda b: dma(sDB, sB, b, OPT["nt_kv"])
        last = mode == "last"; first = mode == "first"
        if first: early = tl(dma_v(1, slot(1)))
        elif last and par: early = tl(dma_n(0)) + dma_x(0)
        else: early = (codepf() if par == 0 and not last else []) + tl(vd(vp)) + Is(f"s_add_u32 s{sB}, s{sB}, {TILE}")
        if OPT["la1"]:
            if first: early = tl(dma_k(2, slot(0)))
            elif not (last and par): early = (codepf() if par == 0 and not last else []) + tl(dma(sDA, sA, kn, OPT["nt_kv"])) + Is(f"s_add_u32 s{sA}, s{sA}, {TILE}")
            if last and par == 0: early += dma_v(14, vp)[:7]
        if last and par == 0:
            early += Is(f"""s_mov_b64 {S2(sX)}, {S2(sXn)}
s_mov_b32 s{sX+2}, s{sXnum}
s_cmp_eq_u32 s{sItem}, 1
s_cselect_b32 s{sXk}, {(-128*1280) & 0xffffffff}, s{sXk}
s_cselect_b32 s{sXst}, {128*1280}, s{sXst}
s_movk_i32 s80, 0x70
v_lshrrev_b32 v30, 3, v0
v_mul_u32_u24 v30, 1280, v30
v_and_or_b32 v30, v{vDw}, s80, v30
v_cndmask_b32 v{vDx}, v{vDx}, v30, {S2(sMask)}""") + codepf()
        mp = mf_pv(12, 1 - par, first) + mf_l(1 - par, first) + (mf_l(1) if last and par else [])
        NP_ = len(mp)
        gq = g_old(1 - par, 1, range(4), 96, True); gp = g_old(par, 0, range(4), NP_, False); hq = BG - 2
        if first: gq = [g[:6] + (True,) for g in g_old(0, 0, range(NA0, 4), 96, True)] + gq; hq = 88
        if last and par == 0:
            gq = gq + g_new(0, [0]); hq = 93
            gp = g_old(0, 0, [1, 2, 3], NP_, False) + g_old(0, 1, [0, 1], NP_, False)
        if last and par:
            gq = g_old(0, 1, [2, 3], 96, True) + g_new(1, [0, 1, 2]); hq = 93
            gp = [(1, 0, 3, 0, 0, 97, False)] + [(1, 1, qt, 4, 6, NP_ - 7 + qt, False) for qt in range(4)]
        def burst(gs):
            if not gs: return []
            P_, E, D = softmax(gs, 0, 90); out = list(P_)
            for j in range(0, len(E), 2):
                out += E[j:j + 2] + (D[j // 2 - 1:j // 2] if j else [])
            return out + Is("s_nop 0") + D[-1:]
        bq = burst(gq[:xq]); gq = gq[xq:]; bp = burst(gp[:xp]); gp = gp[xp:]
        qtile = (lambda: dma_n(1) if par else dma_v(15, X1)) if last else kd
        wo = lambda: [I(f"buffer_load_dword v30, v{vO}, {S4(sX)}, s{sT2} offen", dst={"v30"}), I(f"s_add_u32 s{sT2}, s{sT2}, 1024")] if mode == "loop" and (OPT["woa"] == 2 or (OPT["woa"] == 1 and (xq or xp))) else []
        early = early + wo()
        tq = hd(qtile())
        if OPT["la1"] and not (last and par): tq = dma_v(14, vp)[7:] if last else hd(vd(vp))
        q = bq + phase("qk" + nm, 11, "k", mf_qk(11, par), reads_k(11, ks)[NPRE_K:], reads_v(12, vs)[:NPRE_V], "v", vs, early, tq,
                  softmax(gq, 0, hq), early_hi=72)
        post = []
        if par and mode == "loop": post += Is(f"s_add_u32 s{sI}, s{sI}, 1\ns_or_b32 s80, s{sSel}, 0x40\ns_bitcmp0_b32 s80, s{sI}")
        early = tl(qtile()) + ([] if last else Is(f"s_add_u32 s{sA}, s{sA}, {TILE}"))
        if OPT["la1"] and not (last and par): early = dma_v(15, X1) if last else tl(vd(vp)) + Is(f"s_add_u32 s{sB}, s{sB}, {TILE}")
        if par == 0: early = early + wo()
        if OPT["adb"] and mode == "loop" and not (xq or xp):
            early = early + Is(f"s_getreg_b32 s80, hwreg(HW_REG_IB_STS, 0, 4)\ns_lshr_b32 s80, s80, s{sItem}\ns_cmp_ge_u32 s80, {OPT['adb']}\ns_addc_u32 s{sBk}, s{sBk}, 0\ns_cmp_ge_u32 s{sBk}, {OPT['adn']}\ns_cselect_b32 s{sSel}, 63, s{sSel}")
        if OPT["adp"] and mode == "loop" and (xq or xp):
            early = early + Is(f"s_getreg_b32 s80, hwreg(HW_REG_IB_STS, 0, 4)\ns_cmp_ge_u32 s80, {OPT['adp']}\ns_addc_u32 s{sBk}, s{sBk}, 0")
        sel = []
        if first:
            early = hand + early
            if OPT["woa"]: early = early + Is(f"""s_mul_i32 s80, s{sWave}, {15360-4096}
s_add_u32 s{sX}, s{sN2}, s80
s_addc_u32 s{sX+1}, s{sN2+1}, 0
s_lshl_b32 s80, s{sWave}, 12
s_add_u32 s80, s80, 15360
s_cmp_eq_u32 s{sItem}, {OPT["woa"] - 1}
s_cselect_b32 s{sX+2}, s80, 0
s_mov_b32 s{sT2}, 0""")
            if OPT["tw"] & 2: early = early + Is(f"v_mul_u32_u24 v30, 122880, v0") + [I(f"buffer_load_dword v30, v30, {S4(sO)}, 0 offen sc1", dst={"v30"})]
            sel = Is("v_and_b32 v47, 3, v0\nv_mov_b32 v46, 0x3f803f80")
            for qt in range(4):
                c_ = I(f"v_cmp_eq_u32 s[86:87], {qt}, v47")
                sel += [c_, I(f"v_cndmask_b32 v{32+4*qt}, 0, v46, s[86:87]", after=[c_], dly=1)] + [I(f"v_mov_b32 v{32+4*qt+j}, v{32+4*qt}") for j in range(1, 4)]
            sel += [I(f"v_mov_b32 v{vL[q]}, 0") for q in range(4)]
            sel = [spread(sel, 2, 92, NOV)]
        if last and par == 0:
            early += Is(f"""s_mov_b64 {S2(sDA)}, {S2(sNb)}
s_mov_b32 s{sDA+2}, s{sNnum}
s_cmp_eq_u32 s{sItem}, 1
s_cselect_b32 s{sWk}, {(-TILE) & 0xffffffff}, s{sWk}
s_cselect_b32 s{sNs}, {TILE}, s{sNs}
v_cndmask_b32 v{vDw}, v{vDw}, v{vDkv}, {S2(sMask)}
v_cndmask_b32 v{vDw1}, v{vDw1}, v{vDkv}, {S2(sMask)}""")
        d = hd(dma_n(2 * par) if last else kd() if OPT['la1'] else vd(vs))
        if last and par:
            nxt, nty, pub = reads_v(41, X1)[:NPRE_V], "v", X1
            x = pf(); early += x[:4]; d += x[4:] + [I(f"buffer_load_dwordx2 v[{vPoll}:{vPoll+1}], off, {S4(sDb)}, s{sCp} sc1", dst=regs("v", vPoll, 4))]
        else: nxt, nty, pub = reads_k(11, kn)[:NPRE_K], "k", kn
        p = bp + phase("pv" + nm, 12, "v", mp, reads_v(12, vs)[NPRE_V:], nxt, nty, pub, early, d,
                  softmax(gp, 0, NP_ - (7 if last and par else 3)) + sel, post=post, early_hi=72)
        pad = lambda: Is("\n".join(["s_nop 3"] * OPT["padn"]))
        if OPT["padi"]: return q + Is(f"s_cmp_lg_u32 s{sItem}, {OPT['padi']-1}\ns_cbranch_scc1 K1_KVP{nm}") + pad() + pad() + Is(f"K1_KVP{nm}:") + p
        return q + pad() + p + pad()
    two = OPT["xq"] or OPT["xp"]
    B["peel"] = half("1", 1, "first", OPT["pq"], OPT["pp"]) + (Is(f"s_bitcmp1_b32 s{sSel}, 0\ns_cbranch_scc1 K1_LA") if two else [])
    st = lambda: stamp(-1) if OPT["stamps"] in (4, 6) else []
    B["loop"] = Is(".p2align 6\nK1_L:") + st() + half("e", 0, "loop") + half("o", 1, "loop") + Is("s_cbranch_scc1 K1_L")
    B["loope"] = Is(f"s_cmp_lg_u32 s{sI}, 6\ns_cbranch_scc1 K1_LA\nK1_LX:") if two else []
    B["loopa"] = Is(".p2align 6\nK1_LA:") + st() + half("ea", 0, "loop", OPT["xq"], OPT["xp"]) + half("oa", 1, "loop", OPT["xq"], OPT["xp"]) + Is("s_cbranch_scc1 K1_L") if two else []
    B["loopx"] = Is(f"s_cmp_lg_u32 s{sI}, 6\ns_cbranch_scc1 K1_LA\ns_branch K1_LX") if two else []
    B["last"] = (stamp(-1) if OPT["stamps"] in (4, 6) else []) + half("14", 0, "last", OPT["lq"], OPT["lp"]) + half("15", 1, "last")
    B["tail"] = stamp(4)
    B15 = OPT["bg15"]
    R = []
    if OPT["smf"]:
        c2 = [I(f"v_mov_b32 v{168+q}, v{vL[q]}", lo=8) for q in range(4)]
        R = c2 + [I(f"v_permlane16_swap_b32 v{vL[q]}, v{168+q}", after=[c2[q]], dly=1) for q in range(4)] + [I(f"v_add_f32 v{vL[q]}, v{vL[q]}, v{168+q}") for q in range(4)]
    R += [I(f"v_rcp_f32 v{RCP+2*q}, v{vL[q]}", lo=7) for q in range(4)] + [I(f"v_cmp_ngt_f32 {S2(80+2*q)}, s{sThr}, v{vL[q]}") for q in range(4)]
    spread(R, 7, 24 if OPT["smf"] else 17)
    for it in R: it.hi = 95
    es = []; sts = []; dx1 = dma_x(1)
    for u in range(NE0):
        e = epi_unit(u, False); e[0].lo = 16 * (u // 4) + 2 * (u % 4) + 1 + 8; e[10].lo = e[0].lo + 8
        if OPT["hold"] and u >= NE0 - 3:
            x = e.pop(); x.after = [e[-1], dx1[-1]]; x.target = 92; sts.append(x)
        es += e
    spread(es, 22 if OPT['smf'] else 15, 94, range(B15, B15 + 9))
    fl = Is(f"""s_or_b64 s[80:81], s[80:81], s[82:83]
s_or_b64 s[84:85], s[84:85], s[86:87]
s_or_b64 s[80:81], s[80:81], s[84:85]
s_or_b32 s80, s80, s81
s_or_b32 s{sFlag}, s{sFlag}, s80
s_lshl_b32 s80, s{sWave}, 2
s_add_u32 s80, s80, {FLO}
v_mov_b32 v160, s80
v_mov_b32 v161, s{sFlag}
v_mov_b32 v162, {FLO}""") + [Ins("ds_write_b32 v160, v161")]
    fl[-1].cost = 8
    fl[0].after = [x for x in R if x.text.startswith("v_cmp")][-1:]; fl[0].dly = 2
    early = fl
    f1 = I(f"ds_read_b128 {V4(164)}, v162", dst=regs("v", 164, 4), lo=B15 + 1, target=B15 + 3)
    f2 = WAIT(lneed=regs("v", 164, 4), lo=88, target=88)
    f3 = Is("v_or_b32 v164, v164, v165\nv_or3_b32 v164, v164, v166, v167")
    f4 = I(f"v_readfirstlane_b32 s{sAll}, v164", after=[f3[1]])
    for x in f3 + [f4]: x.target = 89
    B["pv15"] = phase("pv15", 41, "v", mf_pv(41, 1), reads_v(41, X1)[NPRE_V:], reads_v(0, slot(0))[:NPRE_V], "v", {f"L{slot(0)}", f"L{slot(2)}"} | XALL(0),
                      early, dx1, [R + es, [f1, f2] + f3 + [f4], sts], bg=B15, dend=90 if OPT['hold'] else None) + stamp(5)
    B["br"] = stamp(6) + Is(f"s_cmp_lg_u32 s{sMode}, 0\ns_cselect_b32 s{sAll}, 0, s{sAll}\ns_cmp_eq_u32 s{sItem}, 0\ns_cbranch_scc1 K1_MID")
    B["mid"] = Is("K1_MID:") + reads_x(0) + Is(f"""s_mov_b32 s{sItem}, 1
s_mov_b32 s{sCp}, s{sCo}
s_cmp_ge_u32 s{sBk}, {OPT['adn']}
s_cselect_b32 s{sSel}, 63, {OPT['m1']}
s_mov_b64 {S2(sXn)}, {S2(sWoP)}
s_mov_b32 s{sXnum}, s{sK2n}
s_mov_b64 {S2(sNb)}, {S2(sN2)}
s_mov_b32 s{sNnum}, {(TILE if OPT['wsh'] == 2 else 2*TILE)*OPT['wop']}
s_mov_b64 {S2(sMask)}, -1
s_add_u32 s{sP1}, s{sN2}, {TILE if OPT['wsh'] == 2 else 2*TILE}
s_addc_u32 s{sP1+1}, s{sN2+1}, 0
s_mov_b32 s{sP1+2}, {(6144 if OPT['wsh'] == 2 else 12288)*OPT['wop']}
s_lshl_b32 s{sPfo}, s{sWave}, 11
s_add_u32 s{sK}, s{sK}, {16*393216}
s_addc_u32 s{sK+1}, s{sK+1}, 0
s_add_u32 s{sV}, s{sV}, {16*393216}
s_addc_u32 s{sV+1}, s{sV+1}, 0""")
    k2tr, k2lay = oproj(B, NE0); k2trace = k2tr[0]; k2idle = ["k2pro", "k2idle"]
    X = Is(f"""K1_MAXPASS:
v_and_b32 v{vT}, 15, v0
v_lshrrev_b32 v{vT+1}, 4, v0
v_mul_u32_u24 v{vT}, 384, v{vT}
v_lshl_add_u32 v{vT}, v{vT+1}, 4, v{vT}
s_mov_b32 s{sT}, 0""") + [I(f"v_mov_b32 v{vMi[q]}, 0xff800000") for q in range(4)] + Is("K1_MAXL:")
    for s in range(6): X.append(I(f"buffer_load_dwordx4 {V4(SP+4*s)}, v{vT}, {S4(sDA)}, s{sT} offen offset:{s*64}"))
    X.append(I("s_waitcnt vmcnt(0)"))
    for qt in range(4):
        for s in range(6): X.append(mfma(V4(SP + 32 + 4 * qt), V4(SP + 4 * s), V4(Qf(qt, s)), V4(SP + 32 + 4 * qt) if s else "0"))
    X.append(I("s_nop 7"))
    for qt in range(4):
        d = SP + 32 + 4 * qt
        X += Is(f"v_max3_f32 v{vMi[qt]}, v{vMi[qt]}, v{d}, v{d+1}\nv_max3_f32 v{vMi[qt]}, v{vMi[qt]}, v{d+2}, v{d+3}")
    X += Is(f"s_add_u32 s{sT}, s{sT}, 6144\ns_cmp_lt_u32 s{sT}, 393216\ns_cbranch_scc1 K1_MAXL\ns_branch K1_MAXRET")
    B["maxpass"] = X
    item = ["item"] + [f"w{n}" for n in range(10)] + ["cvt", "qk0", "peel"] + ["loop"] * 6 + ["last", "tail", "pv15", "br"]
    k_ = item.index("loop")
    item0 = item[:k_] + ["loopa", "loopa", "loop", "loopa", "loop", "loopa"] + item[k_ + 6:] if two else item
    if not two: assert OPT["me"] == 0 and OPT["mo"] == 0
    trace = ["entry", "pro"] + item0 + ["mid"] + item + k2trace
    layout = ["entry", "pro", "mid", "item"] + [f"w{n}" for n in range(10)] + ["cvt", "qk0", "peel", "loop", "loope", "last", "tail", "pv15", "br", *k2lay, "loopa", "loopx", "k2side", "k2idle", "maxpass"]
    for t_ in k2tr: resolve_waits(B, trace[:-5] + t_)
    for it in B["loop"] + B["peel"]:
        if it.text == "WAITBAR": it.vcnt = min(it.vcnt, OPT["vmx"])
    txt = {k: "\n".join(emit(v)).split("\n") for k, v in B.items()}
    errs = verify([l for b in trace for l in txt[b]])
    tr2 = ["entry", "pro"] + item[:12] + ["maxpass", "maxpass"] + item[12:]
    errs += verify([l for b in tr2 for l in txt[b]])
    errs += verify([l for b in ["entry", "pro"] + item + ["mid"] + item + k2idle for l in txt[b]])
    for t_ in k2tr:
        errs += verify([l for b in item[-4:] + t_ for l in txt[b]])
        errs += verify([l.replace("K1_KVX", "K2_X") for b in t_ for l in txt[b]])
        errs += verify([l for b in t_[:4] + ["k2wx" + t_[-1][-1], t_[-1]] for l in txt[b]])
    for e in errs: sys.stderr.write("K1 HAZARD " + e + "\n")
    note = {
        "entry": "entry / set-up of descriptors and per-lane addresses; first loads",
        "mid": "between the two heads of this workgroup",
        "w0": "Q projection: ten k phases of 64; Wq tiles and x rows arrive by LDS-DMA; the previous head's O is normalised and stored underneath",
        "cvt": "scale Q by log2(e)/sqrt(192), round to bf16, arrange as MFMA operand",
        "qk0": "first key tile: row max of its first 16 keys (or the exact max in the redo pass) becomes the softmax shift",
        "peel": "key tile 1 / value tile 0",
        "loop": "attention main loop, two 64-key tiles per trip: S^T = K Q^T - m, P = exp2(S), O^T += V^T P^T, l += 1^T P^T; softmax fully under the MFMAs",
        "last": "last key tiles; next head's (or the projection's) first tiles are fetched",
        "pv15": "last value tile; 1/l, overflow check of the shift, first O fragments leave",
        "k2pro": "output projection: tile 320x128 per workgroup, K split over four workgroups",
        "k2bodyo": "projection, odd K halves (22 steps)", "k2bodye": "projection, even K halves (26 steps)",
        "k2epio": "collect the partners' quarters", "k2epie": "collect the partners' quarters",
        "loopa": "same loop for the first head with part of the softmax issued back to back: lower peak draw while the supply settles",
        "k2side": "rare paths: redo with the exact row max, waits on hand-offs",
        "k2idle": "workgroups without a projection tile",
        "maxpass": "exact row max over all keys (redo pass only)"}
    return [l for b in layout for l in ([f"; ---- {note[b]}"] if b in note else []) + txt[b] if l], errs

def oproj1(B, NE0, X, N):
    vR = [[1, 2, 3, 4], [5, 6, 7, 8]]; vOf = 9; vSt = 10; vFl = 11; vRd = 12; t0, t1, t2, t3 = 13, 14, 15, 16; vP2 = 17; vLp = 18; vOne = 19
    KS = [X0, X1, RING]; EX = 65536; SEL = 32
    uq = lambda u: [("a", Oacc(2 * (u // 4) + h, u % 4)) for h in range(2)]
    OF = {}
    def Of(d, kb, qt): return OF[d, kb, qt]
    M = OPT["mrg"] - (N & 1); DM = N - M; MD = list(range(DM, N)); U = (N - 1) >> 1
    src = lambda d: (d, 0) if d < 24 else (d - (N - 24), 1)
    NT = OPT["k2n"]; u0 = max(NE0 + OPT["k2e"], 11); left = list(range(u0, 24))
    frs = [(d, kb, qt) for d in range(N) for kb in range(2) for qt in range(5)]
    A0 = OPT["adv0"]; rate = (10 * N - 15 - 10 * A0) / (DM - 1 - A0 + OPT["advf"] / 100.0)
    cum = lambda d: 15 + 10 * (d + 1) if d < A0 else min(10 * N, int(round(15 + 10 * A0 + rate * (d + 1 - A0))))
    OS = {d: frs[(cum(d - 1) if d >= 0 else 0):cum(d)] for d in range(-1, DM)}
    pool = [("v", 224 + 4 * i) for i in range(8)] + [q for u in range(u0) for q in uq(u)]
    for d in range(-1, DM):
        for f in OS[d]: OF[f] = pool.pop(0)
        if d >= 0: pool += [OF[d, kb, qt] for kb in range(2) for qt in range(5)] + [q for u in left[d * NT:(d + 1) * NT] for q in uq(u)]
    RDQ = pool
    CK = {min(d for d in OS if any(f[0] >= m for f in OS[d])): m for m in (12, 24) if m < N}
    R4 = lambda r: f"{r[0]}[{r[1]}:{r[1]+3}]"
    Oset = lambda d, kbs=(0, 1): set().union(*[regs(*Of(d, kb, qt), 4) for kb in kbs for qt in range(5)])
    def acc(t, qt): return 64 + 4 * (t * 5 + qt)
    def wq(f): return 192 + 4 * (f % 16)
    sW_ = sX; sOo = 8; sOut = 12; sXs = 20; sFl = 28
    sTt = 46; sC1 = 51; sC1w = 50; sXo = [32, 33, 34, 35]; sTs = 39; sXr = 24; sGx = 40; sGs = 54; sFo = 55
    def wdma(u, h):
        d_, fo = src(2 * u)
        off = (d_ * 64 + (3072 - 768 if d_ >= 12 else 0) + fo * 1536) * 1280
        out = [I(f"s_add_u32 m0, s{sXoff}, {KS[u % 3] + h*4096}")]
        for j in range(4 * h, 4 * h + 4):
            out += [I(f"s_mov_b32 s{sTt}, {off + j*10240 - (j % 4)*1024}"),
                    I(f"buffer_load_dwordx4 v{vDx}, {S4(sW_)}, s{sTt} offen offset:{(j % 4)*1024} lds", dst={f"X{u%3}_{j>>1}"})]
        return out
    Wt = lambda u: {f"X{u%3}_{q}" for q in range(4)}
    def oload(fs):
        out = []; cur = None
        for (d, kb, qt) in fs:
            off = (2 * src(d)[0] + kb + 96 * src(d)[1]) * 122880 + (qt // 4) * 4096
            if off != cur: out.append(I(f"s_mov_b32 s{sTt}, {off}")); cur = off
            out.append(I(f"buffer_load_dwordx4 {R4(Of(d, kb, qt))}, v{vOf}, {S4(sOo)}, s{sTt} offen offset:{(qt % 4)*1024} sc1", dst=regs(*Of(d, kb, qt), 4)))
        return out
    def wreads(ds):
        out = []; f = 0
        for t in range(8):
            for d in ds:
                base = KS[(d >> 1) % 3]; w = 1 if base == X1 else 0
                for kb in range(2):
                    r = wq(f)
                    for hf in range(2):
                        it = I(f"ds_read_b64_tr_b16 a[{r+2*hf}:{r+2*hf+1}], v{vR[w][t & 3]} offset:{base - w*X1 + (d & 1)*16384 + (t >> 2)*8192 + (4*kb+2*hf)*1024}", dst=regs("a", r + 2 * hf, 2)); it.f = f
                        out.append(it)
                    f += 1
        return out
    NP = 8; G = 60
    P = [WAIT(vneed=regs("v", vPoll, 4))] + Is(f"""
v_min_u32 v{t0}, v{vPoll}, v{vPoll+1}
s_cmp_lg_u32 s{sAll}, 0
v_readfirstlane_b32 s89, v{t0}
s_cbranch_scc1 K1_REDO
v_lshlrev_b32 v{vOf}, 4, v0
s_mov_b64 {S2(sOo)}, {S2(sK2O)}
s_mov_b32 s{sOo+2}, {143*122880+5*1024}
s_mov_b32 s{sOo+3}, 0x20000
s_cmp_lt_u32 s89, 32
s_cbranch_scc1 K2_SPIN0
K2_RET0:
s_cmp_ge_u32 s{sWg}, 240
s_cbranch_scc1 K2_IDLE""")
    B["k2pro"] = P
    common = lambda: Is(f"""
s_and_b32 s{sC1}, s{sWg}, 7
s_lshl_b32 s{sC1}, s{sC1}, 7
s_add_u32 s{sC1}, s{sC1}, 64
s_cmp_eq_u32 s{sWave}, 0
s_cselect_b32 s{sC1w}, s{sC1}, 0x10000
s_add_u32 s{sFl}, s{sWsP}, {FLG}
s_addc_u32 s{sFl+1}, s{sWsP+1}, 0
s_mov_b32 s{sFl+2}, {256*128}
s_mov_b32 s{sFl+3}, 0x20000
v_mov_b32 v{vOne}, 1
v_mov_b32 v{RCP+1}, v{RCP}
v_mov_b32 v{RCP+3}, v{RCP+2}
v_mov_b32 v{RCP+5}, v{RCP+4}
v_mov_b32 v{RCP+7}, v{RCP+6}""")
    r0 = vR[0][0]
    assert NE0 >= 4
    ld = oload(OS[-1])
    H = Is(f"""
v_lshrrev_b32 v{t2}, 5, v0
v_lshlrev_b32 v{r0}, 10, v{t2}
v_bfe_u32 v{t2}, v0, 2, 3
v_lshl_add_u32 v{r0}, v{t2}, 7, v{r0}
v_and_b32 v{t2}, 6, v{t2}
v_bfe_u32 v{t3}, v0, 1, 1
v_xor_b32 v{t2}, v{t2}, v{t3}
v_lshl_add_u32 v{r0}, v{t2}, 4, v{r0}
v_and_b32 v{t2}, 1, v0
v_lshl_add_u32 v{r0}, v{t2}, 3, v{r0}
s_andn2_b32 s88, 8, s{sWg}
s_lshl_b32 s88, s88, 3
v_xor_b32 v{r0}, s88, v{r0}
v_xor_b32 v{vR[0][1]}, 32, v{r0}
v_xor_b32 v{vR[0][2]}, 64, v{r0}
v_xor_b32 v{vR[0][3]}, 96, v{r0}""") + wreads([0])[:NP] + [I(f"v_add_u32 v{vR[1][i]}, {X1}, v{vR[0][i]}") for i in range(4)] + common()
    pair = lambda a, b: Ins(a + "\n" + b, kind="bar")
    late = Is(f"""
s_mov_b64 {S2(sOut)}, {S2(sOutP)}
s_mov_b32 s{sOut+2}, {79*2560+64}
s_mov_b32 s{sOut+3}, 0x20000""") + [pair(f"s_add_u32 s{sXs}, s{sWsP}, {XCH}", f"s_addc_u32 s{sXs+1}, s{sWsP+1}, 0")] + Is(f"""
s_mov_b32 s{sXs+2}, {960*15360}
s_mov_b32 s{sXs+3}, 0x20000
s_lshl2_add_u32 s88, s{sWg}, s{sWave}
s_mul_i32 s{sXo[0]}, s88, 15360
s_xor_b32 s89, s88, 32
s_mul_i32 s{sXo[1]}, s89, 15360
s_xor_b32 s89, s88, 4
s_mul_i32 s{sXo[2]}, s89, 15360
s_xor_b32 s89, s88, 36
s_mul_i32 s{sXo[3]}, s89, 15360
s_mul_i32 s88, s{sWave}, 5120
s_add_u32 s88, s88, {EX}
v_add_u32 v{vRd}, s88, v{vOf}
v_and_b32 v{t0}, 15, v0
v_lshrrev_b32 v{t1}, 4, v0
v_lshl_add_u32 v{t2}, v{t0}, 2, v{t1}
v_lshlrev_b32 v{t2}, 4, v{t2}
v_add_u32 v{vLp}, s88, v{t2}
v_lshlrev_b32 v{t1}, 2, v{t1}
v_sub_u32 v{t0}, v{t0}, v{t1}
v_and_b32 v{t1}, 1, v{t0}
v_lshlrev_b32 v{t1}, 4, v{t1}
v_mov_b32 v{t2}, 0x3f80
v_lshlrev_b32 v{t1}, v{t1}, v{t2}
v_lshrrev_b32 v{t0}, 1, v{t0}""")
    c0 = I(f"v_cmp_eq_u32 s[84:85], 0, v{t0}"); c1 = I(f"v_cmp_eq_u32 s[86:87], 1, v{t0}")
    late += [c0, c1, I(f"v_mov_b32 v{SEL+2}, 0"), I(f"v_mov_b32 v{SEL+3}, 0"), I(f"v_cndmask_b32 v{SEL}, 0, v{t1}, s[84:85]"), I(f"v_cndmask_b32 v{SEL+1}, 0, v{t1}, s[86:87]")]
    late += Is(f"""v_mov_b32 v{SEL+4}, 0
v_mov_b32 v{SEL+5}, 0
v_mov_b32 v{SEL+6}, v{SEL}
v_mov_b32 v{SEL+7}, v{SEL+1}
v_lshrrev_b32 v{t0}, 2, v0
v_and_b32 v{t1}, 3, v0
v_mul_u32_u24 v{vSt}, 2560, v{t0}
v_lshl_add_u32 v{vSt}, v{t1}, 4, v{vSt}
v_min_u32 v{t1}, 2, v0
v_add_u32 v{t1}, 1, v{t1}
v_and_b32 v{t0}, 1, v{t1}
v_lshrrev_b32 v{t1}, 1, v{t1}
v_lshl_or_b32 v{t0}, v{t0}, 3, v{t1}
v_xor_b32 v{t0}, s{sWg}, v{t0}
v_lshlrev_b32 v{vFl}, 7, v{t0}
v_min_u32 v{t1}, 2, v0
v_lshl_add_u32 v{vFl}, v{t1}, 2, v{vFl}
s_add_u32 s{sXo[2]}, s{sXo[2]}, 5120
s_add_u32 s{sXo[3]}, s{sXo[3]}, 10240
s_mov_b32 s{sGx}, 0
s_lshl_b32 s{sFo}, s{sWg}, 7""") + [pair(f"s_cmp_eq_u32 s{sWave}, 0", f"s_cselect_b32 s{sFo}, s{sFo}, 0x10000")] + Is("""""") + (Is("v_mov_b32 v22, v31\nv_mov_b32 v23, v31") if OPT["stamps"] else [])
    held = {0: []}
    for u in range(NE0, u0):
        e = epi_unit(u, True, True)
        if u >= u0 - NT: held[0].append(e.pop())
        H += e
    H0 = H; H = []; gap = OPT["hgap"]
    for k, x in enumerate(H0):
        if k % gap == 0:
            while ld:
                y = ld.pop(0); H.append(y)
                if y.kind == "vmem": break
        H.append(x)
    H += ld + [WAIT(lneed=regs("a", wq(0), 8), vneed=Oset(0))] + stamp(49)
    body = {}
    for d in range(N):
        body[d] = []; held[d + 1] = []
        for u in left[d * NT:(d + 1) * NT]:
            e = epi_unit(u, False, True); held[d + 1].append(e.pop()); body[d] += e
    SG = (max(d for d in held if held[d]) + 1) | (0 if OPT['sge'] else 1)
    assert SG <= 7
    poll = f"buffer_load_dword v{t2}, v{vFl}, {S4(sFl)}, 0 offen sc1"
    RD = lambda rho, qt: RDQ[qt * 3 + rho - 1]
    def rload(rho, so):
        out = []
        for qt in range(5):
            if qt == 4: out.append(I(f"s_add_u32 s{sTt}, s{so}, 4096"))
            out.append(I(f"buffer_load_dwordx4 {R4(RD(rho, qt))}, v{vOf}, {S4(sXs)}, s{sTt if qt == 4 else so} offen offset:{(qt % 4)*1024} sc1", dst=regs(*RD(rho, qt), 4)))
        return out
    radd = lambda rhos, qt: [mfma(V4(acc(6 + h, qt)), V4(SEL + 4 * h), R4(RD(rho, qt)), V4(acc(6 + h, qt))) for h in range(2) for rho in rhos]
    flag = lambda off: Ins(f"s_mov_b64 exec, 1\nbuffer_store_dword v{vOne}, off, {S4(sFl)}, s{sFo} offset:{off} sc1\ns_mov_b64 exec, -1", kind="vmem")
    def mfs(ds):
        mf = []; n = 2 * len(ds)
        for t in range(8):
            for qt in range(5):
                ks = [(i, d, kb) for i, (d, kb) in enumerate((d, kb) for d in ds for kb in range(2))]
                if qt & 1 and len(ds) > 1: ks.reverse()
                for (i, d, kb) in ks:
                    a = acc(t, qt)
                    mf.append(mfma(V4(a), A4(wq(n * t + i)), R4(Of(d, kb, qt)), "0" if (d == 0 and kb == 0) else V4(a)))
        return mf
    def step(d):
        own = wreads([d])[NP:]; pre = d == DM - 1
        nx = MD if pre else [d + 1]
        nxt = wreads(nx)[:max(NP, 4 * len(nx))]
        hasb = (d & 1) or pre or d == SG
        ws = [WAIT(lneed=regs("a", wq(2 * t), 8), lo=10 * t - 3, hi=10 * t - 1, target=10 * t - 2) for t in range(1, 7 if hasb else 8)]
        ws.append(WAIT(lneed=regs("a", wq(0), 8 * len(nx)), vneed=set().union(*[Oset(x) for x in nx]), lo=78, hi=79, target=78.5))
        g = G - 6 if pre and M > 2 else G
        spread(own, 0, g - 6)
        for it in own: it.hi = min(it.hi, 10 * (it.f >> 1) - 7); it.target = min(it.target, it.hi - 1)
        rs = own; nov = ()
        if hasb:
            bar = BAR(Wt(U if pre else (d + 1) >> 1) | ({"OST"} if d == SG else set()), lo=g, hi=g); rs = rs + [bar]; nov = range(g, g + 9)
            for it in nxt: it.after = [bar]
        spread(nxt, g + 1, 73 if pre else 76)
        vm = []
        cadr = lambda m: f"s{sC1}" + (" offset:128" if m == 24 else "")
        if d in CK: vm += [I(f"buffer_load_dword v{vP2}, off, {S4(sFl)}, {cadr(CK[d])} sc1", dst={f"v{vP2}"})]
        if d % 4 == 3 or pre: vm += codepf()
        fs = OS[d]; k2_ = len([f for f in fs if f[0] < CK.get(d, 99)]); k = min(5, k2_)
        vm += oload(fs[:k]) + held[d]
        for x in WS.get(d, []): vm += wdma(*x)
        if d in CK:
            vm += oload(fs[k:k2_]); k = k2_
            rf = I(f"v_readfirstlane_b32 s88, v{vP2}")
            ck = [WAIT(vneed={f"v{vP2}"}), rf, Ins(f"s_cmp_lt_u32 s88, 32\ns_cbranch_scc1 K2_SPIN{CK[d]}{X}\nK2_RET{CK[d]}{X}:", kind="bar", after=[rf], dly=2)]
            n1 = len(vm); vm += ck
        vm += oload(fs[k:])
        if d == SG:
            at = atomic(vOne, sC1w, sFl); at.after = [bar]; vm.append(at)
        if d in CK:
            n_a = sum(x.kind == "vmem" for x in vm[:n1]); n_b = sum(x.kind == "vmem" for x in vm[n1:])
            c_ = max(OPT["ckg"], int(76 * n_a / (n_a + n_b)) - 4)
            if hasb and g - 5 < c_ < g + 9: c_ = g + 9 if n_b <= 3 else g - 5
            even(vm[:n1], 0, c_, [g]); even(vm[n1 + 3:], c_ + 5, 80, [g])
            for x in ck: x.lo = c_; x.target = c_; x.hi = c_ + 4
        else: even(vm, 0, int(0.8 * OPT["advf"]) if pre else 80, [g])
        es = body[d]
        if es:
            for k in range(len(es) // 20): es[20 * k].after = [held[d][k]] if NT == 3 else held[d][-1:]; es[20 * k].dly = 1
            spread(es, held[d][0].lo + 2, 79, nov)
        if d == 14: es = spread(late, 0, 79); assert d not in CK
        return schedule(mfs([d]), [ws, rs + nxt, vm, es], novalu=nov, name=f"k2s{d}{X}") + (stamp(50) if d == 5 else stamp(47, True) if d == 13 else stamp(56) if pre else [])
    WS = {d: [((d >> 1) + 2, d & 1)] for d in range(2 * (U - 1))}
    if 2 * U - 3 >= DM - 1: WS[2 * U - 4] += WS.pop(2 * U - 3)
    assert max(WS) < DM - 1
    def final():
        n = 2 * M; T = 5 * n
        own = wreads(MD)[max(NP, 2 * n):]
        for it in own:
            t, i = divmod(it.f, n)
            it.target = T * (t - 1) + i * (T - 9) / n; it.hi = T * t - 7
            if it.f >= 16: it.lo = T * ((it.f - 16) // n) + 4 * n + (it.f - 16) % n
        ws = [WAIT(lneed=set().union(*[regs("a", wq(n * t + i), 4) for i in range(n)]), lo=T * t - 3, hi=T * t - 1, target=T * t - 2) for t in range(1, 8)]
        sn = []
        for jl in range(3):
            for qt in range(5):
                a, b = acc(2 * jl, qt), acc(2 * jl + 1, qt)
                c = Is(f"""v_cvt_pk_bf16_f32 v{a}, v{a}, v{a+1}
v_cvt_pk_bf16_f32 v{a+1}, v{a+2}, v{a+3}
v_cvt_pk_bf16_f32 v{a+2}, v{b}, v{b+1}
v_cvt_pk_bf16_f32 v{a+3}, v{b+2}, v{b+3}""")
                if qt in (0, 4): c.append(I(f"s_add_u32 s{sTs}, s{sXo[0]}, {(2 - jl)*5120 + (qt // 4)*4096}"))
                c.append(I(f"buffer_store_dwordx4 {V4(a)}, v{vOf}, {S4(sXs)}, s{sTs} offen offset:{(qt % 4)*1024} sc1", dst={f"SN{jl}"}))
                lo = T * (2 * jl + 1) + n * (qt + 1) - 1 + 8
                for k, x in enumerate(c): x.lo = lo if k >= 2 else lo - 8; x.target = lo + k * 0.5 - 1
                sn += c
        ev = []; nov = []
        for jl in range(3):
            F = min(2 * T * (jl + 1) + 12 + OPT["fag"], 8 * T - OPT["fbg"])
            b_ = Ins("WAITBAR", kind="bar", vneed={f"SN{jl}"}, lo=F, hi=F); f_ = flag(4 * (2 - jl)); f_.after = [b_]; f_.target = F + 1; f_.hi = F + 3
            for x in sn[jl * len(sn) // 3:(jl + 1) * len(sn) // 3]: x.hi = F - 1
            ev += [b_, f_]; nov += range(F, F + 9)
        P1 = 8 * T - OPT["p1g"]; NS = OPT["nsp"]
        c = I(f"v_cmp_eq_u32 s[84:85], 1, v{t2}")
        sp = [I(poll, dst={f"v{t2}"}, lo=P1), WAIT(vneed={f"v{t2}"}, lo=P1 + 56), c, I(f"s_and_b32 s{sGx}, s84, {(0, 4, 6, 7)[NS]}", after=[c], dly=2)] if NS else []
        for x in sp[2:]: x.target = P1 + 57
        ld = []
        for rho in (3, 2, 1)[:NS]: ld += [pair(f"s_bitcmp1_b32 s{sGx}, {rho-1}", f"s_cselect_b32 s{sGs}, s{sXo[rho]}, 0x80000000")] + rload(rho, sGs)
        spread(ld, P1 + 62, min(8 * T - 2, P1 + 62 + 20 * NS))
        PL = 8 * T - OPT["plg"]
        ld.insert(len([x for x in ld if x.target < PL]), I(poll, dst={f"v{t2}"}, lo=PL))
        return schedule(mfs(MD), [ws, own, sn, ev, sp + ld], novalu=nov, name="k2fin")
    if "k2head" not in B: B["k2head"] = H + [x for d in range(A0) for x in step(d)] + (Is(f"s_bitcmp0_b32 s{sWg}, 0\ns_cbranch_scc1 K2_BODYe") if OPT["asy"] else [])
    assert SG < A0 and min(CK) >= A0
    B["k2body" + X] = Is(f"K2_BODY{X}:") + [x for d in range(A0, DM) for x in step(d)] + final()
    sys.stderr.write(f"[k2] SG {SG} CK {CK} loads/step {[len(OS[d]) for d in sorted(OS)]} spare quads {len(RDQ)}\n")
    E = stamp(51) + (Is(f"v_writelane_b32 v22, s{sSp}, 61\ns_getreg_b32 s87, hwreg(HW_REG_XCC_ID)\nv_writelane_b32 v22, s87, 62\nv_writelane_b32 v22, s{sBk}, 59\ns_memrealtime s[90:91]\ns_waitcnt lgkmcnt(0)\nv_writelane_b32 v22, s90, 63") if OPT["stamps"] in (6, 7, 8) else [])
    def rel(L):
        for x in L: x.text = re.sub(r"\b(K2_WX|K2_W1|K2_W2|K2_W3|K2_GO|K2_PS)\b", r"\1" + X, x.text)
        return L
    xadd = lambda: [x for qt in range(5) for x in radd((2, 3), qt)]
    E += stamp(52) + Is(f"s_cmp_eq_u32 s{sGx}, 7\ns_cbranch_scc1 K2_GO") + [WAIT(vneed={f"v{t2}"})] + Is(f"""K2_PS:
v_cmp_eq_u32 s[84:85], 1, v{t2}
s_add_u32 s{sSp}, s{sSp}, 1
s_cmp_gt_u32 s{sSp}, 0x40000
s_nop 0
s_cselect_b32 s84, 7, s84
s_andn2_b32 s85, s84, s{sGx}
s_or_b32 s{sGx}, s{sGx}, s84
s_and_b32 s{sGx}, s{sGx}, 7""")
    for rho in (3, 2, 1): E += Is(f"s_bitcmp0_b32 s85, {rho-1}\ns_cbranch_scc1 K2_W{rho}") + rload(rho, sXo[rho]) + Is(f"K2_W{rho}:")
    E += Is(f"s_cmp_lg_u32 s{sGx}, 7\ns_cbranch_scc1 K2_WX")
    B["k2epi" + X] = rel(E)
    B["k2wx" + X] = rel(Is(f"K2_WX:\n{poll}\ns_waitcnt vmcnt(0)\ns_branch K2_PS"))
    E = Is("K2_GO:") + stamp(53)
    def fin(qt):
        a, b = acc(6, qt), acc(7, qt)
        return Is(f"""v_cvt_pk_bf16_f32 v{a}, v{a}, v{a+1}
v_cvt_pk_bf16_f32 v{a+1}, v{a+2}, v{a+3}
v_cvt_pk_bf16_f32 v{a+2}, v{b}, v{b+1}
v_cvt_pk_bf16_f32 v{a+3}, v{b+2}, v{b+3}
s_nop 1
v_permlane16_swap_b32 v{a}, v{a+2}
v_permlane16_swap_b32 v{a+1}, v{a+3}
ds_write_b128 v{vLp}, {V4(a)} offset:{qt*1024}""") + [I(f"ds_read_b128 {V4(144+4*qt)}, v{vRd} offset:{qt*1024}", dst=regs("v", 144 + 4 * qt, 4))]
    out = lambda qt: [I(f"s_mov_b32 s87, {qt*16*2560}"), WAIT(lneed=regs("v", 144 + 4 * qt, 4)), I(f"buffer_store_dwordx4 {V4(144+4*qt)}, v{vSt}, {S4(sOut)}, s87 offen")]
    for qt in range(5):
        E += Is(f"s_waitcnt vmcnt({4 - qt})") + radd((3, 2, 1), qt)
        if qt >= 1: E += fin(qt - 1)
    E += out(0) + out(1) + out(2) + fin(4) + out(3) + out(4)
    E += stamp(54) + (Is(f"v_writelane_b32 v22, s{sSp}, 60\nv_writelane_b32 v23, s87, 60") if OPT["stamps"] else [])
    B["k2fin" + X] = rel(E) + (Is("s_branch K1_DONE") if OPT["stamps"] else Is("s_endpgm"))
    B["k2end"] = Is("K1_DONE:") + stamp_out(S2(sKA), sWg, sWave, t0, 0x4000000) + (Is(f"""s_cmp_lg_u32 s{sWg}, 17
s_cbranch_scc1 K1_END
s_cmp_lg_u32 s{sWave}, 0
s_cbranch_scc1 K1_END
v_readlane_b32 s84, v22, {OPT["enc"] >> 8}
v_readlane_b32 s85, v22, {OPT["enc"] & 255}
s_memrealtime s[86:87]
s_waitcnt lgkmcnt(0)
s_sub_u32 s85, s85, s84
s_lshr_b32 s85, s85, 1
s_min_u32 s85, s85, 150000
s_add_u32 s85, s85, 1000
K1_ENC:
s_memrealtime s[90:91]
s_waitcnt lgkmcnt(0)
s_sub_u32 s90, s90, s86
s_cmp_lt_u32 s90, s85
s_cbranch_scc1 K1_ENC""") if OPT["enc"] else []) + Is("K1_END:\ns_endpgm")
    spin = lambda nm, ret, ld, rd: Is(f"""{nm}:
s_add_u32 s{sSp}, s{sSp}, 1
s_cmp_gt_u32 s{sSp}, 0x40000
s_cbranch_scc1 {ret}
s_sleep 4
{ld}
s_waitcnt vmcnt(0)
{rd}
s_nop 3
s_cmp_lt_u32 s88, 32
s_cbranch_scc1 {nm}
s_branch {ret}""")
    B["k2side"] = Is(f"""K1_REDO:
s_mov_b32 s{sMode}, 1
s_waitcnt vmcnt(0) lgkmcnt(0)
s_barrier""") + B["kre"] + spin("K2_SPIN0", "K2_RET0", f"buffer_load_dwordx2 v[{vPoll}:{vPoll+1}], off, {S4(sDb)}, s{sCo} sc1", f"v_min_u32 v{t0}, v{vPoll}, v{vPoll+1}\ns_nop 0\nv_readfirstlane_b32 s88, v{t0}")
    B["k2sp" + X] = [x for m in CK.values() for x in spin(f"K2_SPIN{m}{X}", f"K2_RET{m}{X}", f"buffer_load_dword v{vP2}, off, {S4(sFl)}, s{sC1}" + (" offset:128" if m == 24 else "") + " sc1", f"v_readfirstlane_b32 s88, v{vP2}")]
    D = Is("K2_IDLE:") + common()
    for u in range(NE0, 24): D += epi_unit(u, True)
    D += Is("s_waitcnt vmcnt(0)\ns_barrier") + [atomic(vOne, sC1w, sFl)]
    if OPT["wsh"] == 2:
        D += Is(f"""s_bfe_u32 s80, s{sWg}, 0x10001
s_bfe_u32 s81, s{sWg}, 0x10003
s_lshl1_add_u32 s80, s81, s80
s_add_u32 s81, s80, 60
s_mul_i32 s81, s81, 30720
s_sub_u32 s81, {3072*1280}, s81
s_add_u32 s{sOo}, s{sNb}, s81
s_addc_u32 s{sOo+1}, s{sNb+1}, 0
s_mov_b32 s{sOo+2}, {1536*1280}
s_lshl_b32 s80, s80, 14
K2_PFL:""")
        for h in range(2): D += Is(f"s_add_u32 s81, s80, {h*768*1280}") + [I(f"buffer_load_dword v{64+j}, v{vO}, {S4(sOo)}, s81 offen offset:{j*1024}", dst={f"v{64+j}"}) for j in range(4)]
        D += Is(f"""s_add_u32 s80, s80, 65536
s_waitcnt vmcnt(24)
s_cmp_lt_u32 s80, {768*1280}
s_cbranch_scc1 K2_PFL""")
    D += (Is("v_mov_b32 v22, v31\nv_mov_b32 v23, v31") if OPT["stamps"] else []) + (stamp(54) if OPT["stamps"] == 9 else []) + Is("s_branch K1_DONE")
    B["k2idle"] = D
    return ["k2pro", "k2head", "k2body" + X, "k2epi" + X, "k2fin" + X]

def oproj(B, NE0):
    a = OPT["asy"]
    tr = [oproj1(B, NE0, "o", 24 - a)] + ([oproj1(B, NE0, "e", 24 + a)] if a else [])
    lay = ["k2pro", "k2head"] + [b + x for x in ("oe" if a else "o") for b in ("k2body", "k2epi", "k2fin", "k2wx", "k2sp")] + ["k2end"]
    return tr, lay

def desc(name, vg=512, acc=256):
    return f""".p2align 6
.amdhsa_kernel {name}
  .amdhsa_next_free_vgpr {vg}
  .amdhsa_next_free_sgpr 102
  .amdhsa_accum_offset {acc}
  .amdhsa_group_segment_fixed_size 0
  .amdhsa_kernarg_size 104
  .amdhsa_user_sgpr_count 2
  .amdhsa_user_sgpr_kernarg_segment_ptr 1
  .amdhsa_system_sgpr_workgroup_id_x 1
  .amdhsa_float_denorm_mode_32 3
.end_amdhsa_kernel"""

def main():
    k1, e1 = kernel1()
    ref = open("cdna_kernels/" + NAME + ".s.ref").read().split("\n")
    head = [l for l in ref if l.startswith(";") and "@launch" not in l]
    nm = NAME + "_kernel"
    out = head + [f"; @launch grid=(256,1,1) block=(256,1,1) lds=163840"] + """;
; One persistent workgroup per CU (4 waves, 64 query rows each, 512 registers, 16x16x32 bf16 MFMA).
;   per workgroup: two heads of one (branch, batch): Q projection -> flash attention -> O (bf16, fragment order) to d_ws
;   then the output projection in the same launch, behind counters (d_debug, d_ws) that order the hand-offs.
; Softmax shift = true max of the first keys of each row; the row sums are checked at the end and, if the shift was
; too small for any row (sum >= 2^60 or not finite), the workgroup redoes its heads with the exact row max.
; Written by a generator script (static instruction placement between the MFMAs, counted waits).""".split("\n") + ['.amdgcn_target "amdgcn-amd-amdhsa--gfx950"', ".text"]
    out += [f".globl {nm}", ".p2align 8", f".type {nm},@function", f"{nm}:"] + k1
    out += ["K_CODE_END:", "s_endpgm", '.section .rodata,"a"', desc(nm)]
    open(sys.argv[1], "w").write("\n".join(out) + "\n")
    if e1: sys.exit(1)
main()
```

```python
import sys, math, re
from asmlib import *
from verify import verify

OPT = dict(nt_kv=1, nt_w=0, nt_x=0, nt_o=2, k2_nt_o=2, k2_nt_w=0, stamps=0, ovl=1, ne0=6, nc9=7, pf=1, cpf=1, k2e=9, sigs=4, pfs=0, cpl=1, k2fix=0, osc=1, ev=1, lmf=1, padn=0, padm=0, enc=0, kvn=0, kv0=10, kvpos=70, kvph=7, encb=30000, outp=0, na0=2, bg15=60, hgap=8, rot=0, wpf=1, hold=1, padi=0, cpw=0x88, vmx=63, xq=3, xp=2, me=0x3f, mo=0x3f, cw8=4, pq=0, pp=0, lq=0, lp=0, la1=0, pskip=2, cpfirst=0, m1=0, adp=9, adn=2, nfl=0, tw=0, rmp=0, k2n=3, cpk=0x88888, fag=62, wop=1, mrg=4, adv0=8, advf=55, asy=2, fbg=12, plg=45, p1g=120, sge=1, ckg=52, nsp=0, woa=0, wsh=2, adb=0, smf=1, yq=0, yp=0)
for a in sys.argv[2:]:
    k, v = a.split("="); assert k in OPT, k; OPT[k] = int(v, 0)
NAME = "concat_heads__gqa_block_cached__gqa_block_cached__near_ridge"
MF = "v_mfma_f32_16x16x32_bf16"
def I(t, **kw): return Ins(t, **kw)
def Is(txt): return [Ins(t.strip()) for t in txt.strip().split("\n") if t.strip()]
def mfma(d, a, b, c): return Ins(f"{MF} {d}, {a}, {b}, {c}")
def V4(b): return f"v[{b}:{b+3}]"
def A4(b): return f"a[{b}:{b+3}]"

TILE = 24576; WS = 64 * 12288
X0 = 0; RING = 32768; X1 = 131072
def slot(i): return RING + i * TILE
vK = [[1, 2], [3, 4]]; KW = [0, 65536]
vV = [[5, 6, 7, 8], [9, 10, 11, 12]]; VW = [32768, 98304]
vXr = [[13, 14], [15, 16]]
vIx = 17; vDw1 = 18; vDkv = 19; vDw = 20; vDx = 21; vO = 22; vO3 = 23
vL = [24, 25, 26, 27]; vMi = [40, 41, 42, 43]; vT = 32
NEGM = 48; SP = 64; QF = 160
RCP = 48
def negm(qt): return NEGM + 4 * qt
def XY(par, kb, qt): return SP + 4 * (par * 8 + qt * 2 + kb)
def Z(kb, qt): return SP + 64 + 4 * (kb * 4 + qt)
def Qf(qt, s): return QF + 4 * (qt * 6 + s)
def Qb(qt, s):
    return SP + 4 * (qt * 6 + s)
def Oacc(t, qt): return 4 * (t * 4 + qt)
def Xf(n, kb, qt): return 32 * (n & 1) + 4 * (kb * 4 + qt)
FR = 192
def fq(n, f): return FR + 4 * ((f + 8 * (n & 1)) % 16)
sX = 4; sDA = 8; sDB = 12; sO = 16
sK = 20; sV = 22; sNb = 24; sNnum = 26; sNs = 27; sNd = 28; sXnum = 29; sN2 = 30; sMask = 32
sA = 34; sB = 35; sI = 39; sWoff = 40; sXoff = 41
sOs = [42, 43, 44, 45, 37, 38]; sT = 46; sItem = 47; sMode = 48; sFlag = 49; sC = 50
sWave = 52; sWg = 53; sT2 = 54; sT3 = 55; sThr = 56; sKA = 58
sLd = 4
sP1 = 60; vPf = 248; vPoll = 228
sWoP = 64; sOutP = 66; sWsP = 68; sSig = 70; sPfo = 71; sDb = 72; sCo = 76; sOn = 77; sSp = 78
sCp = 97; sBk = 3; sK2n = 79; sXk = 57; sXst = 2; sWk = 0; sSel = 1; sAll = 36; sXn = 98; sK2O = 100; FLO = RING + 3 * TILE
FLG = 0x2e00000; XCH = 0x2f00000
def S4(b): return f"s[{b}:{b+3}]"
def S2(b): return f"s[{b}:{b+1}]"
BG = 76
NOV = range(BG, BG + 9)
NPRE_V = 10; NPRE_K = 6
OSTRIDE = 24 * 120 * 1024

def lastuse_pv(f): return 8 * (f >> 1) + 6 + (f & 1)
def lastuse_qk(f): kt, s = divmod(f, 6); return 24 * kt + 18 + (5 - s)

def reads_v(n, base):
    out = []
    for f in range(24):
        t, kb = f >> 1, f & 1
        r = fq(n, f)
        for hf in range(2):
            off = base + (4 * kb + 2 * hf) * 3072 + (t >> 2) * 1024
            w = 1 if off >= VW[1] else 0
            it = I(f"ds_read_b64_tr_b16 a[{r+2*hf}:{r+2*hf+1}], v{vV[w][t & 3]} offset:{off-VW[w]}", dst=regs("a", r + 2 * hf, 2)); it.f = f
            out.append(it)
    return out
def reads_k(n, base):
    out = []
    for f in range(24):
        kt, s = divmod(f, 6); r = fq(n, f)
        off = base + kt * 6144 + (s >> 1) * 1024
        w = 1 if off >= KW[1] else 0
        it = I(f"ds_read_b128 {A4(r)}, v{vK[w][s & 1]} offset:{off-KW[w]}", dst=regs("a", r, 4)); it.f = f
        out.append(it)
    return out
def reads_x(n):
    return [I(f"ds_read_b128 {A4(Xf(n, kb, qt))}, v{vXr[n & 1][kb]} offset:{qt*2048}", dst=regs("a", Xf(n, kb, qt), 4)) for qt in range(4) for kb in range(2)]

def dma(srd, soff, base, nt, w=False):
    n = " nt" if nt else ""; vD = [vDw, vDw1] if w else [vDkv, vDkv]
    out = []
    for p in range(3):
        m = I(f"s_add_u32 m0, s{sWoff}, {base + 896*p}")
        a = I(f"buffer_load_dwordx4 v{vD[0]}, {S4(srd)}, s{soff} offen offset:{p*128}{n} lds", dst={f"L{base}"}, after=[m])
        b = I(f"buffer_load_dwordx4 v{vD[1]}, {S4(srd)}, s{soff} offen offset:{p*128+3072}{n} lds", dst={f"L{base}"})
        out += [m, a, b]
    return out
def dma_w(m): return Is(f"s_add_u32 s{sWk}, s{sWk}, s{sNs}\ns_cmp_eq_u32 s{sWk}, {10*WS}\ns_cselect_b32 s{sWk}, 0, s{sWk}") + dma(sDA, sWk, slot(m % 4), OPT["nt_w"], True)
def dma_k(i, base): return [I(f"s_mov_b32 s{sT2}, {i*TILE}")] + dma(sDA, sT2, base, OPT["nt_kv"])
def dma_v(i, base): return [I(f"s_mov_b32 s{sT2}, {i*TILE}")] + dma(sDB, sT2, base, OPT["nt_kv"])
dma_n = dma_w
def hd(d): return d[:-6]
def tl(d): return d[-6:]
def dma_x(n):
    out = Is(f"s_add_u32 s{sXk}, s{sXk}, s{sXst}\ns_cmp_eq_u32 s{sXk}, 1280\ns_cselect_b32 s{sXk}, 0, s{sXk}"); base = X1 if n & 1 else X0
    for j in range(8):
        if j % 4 == 0: out.append(I(f"s_add_u32 m0, s{sXoff}, {base + j*1024}"))
        out.append(I(f"s_add_u32 s{sT}, s{sXk}, {j*10240 - (j % 4)*1024}"))
        out.append(I(f"buffer_load_dwordx4 v{vDx}, {S4(sX)}, s{sT} offen offset:{(j % 4)*1024}" + (" nt" if OPT["nt_x"] else "") + " lds", dst={f"X{n&1}_{j>>1}"}))
    return out

def phase(name, n, typ, mf, own, nxt, nxt_typ, pub, early, dmas, extra=(), post=(), early_hi=None, bg=BG, dend=None, endx=frozenset()):
    lu = lastuse_pv if typ == "v" else lastuse_qk
    N = len(mf)
    rs = []
    if typ == "v":
        k0 = 48 - len(own)
        for j, it in enumerate(own):
            it.target = j * (bg - 6) / len(own)
            it.hi = min(8 * (it.f >> 1) - 6, bg - 5)
            if it.f >= 16: it.lo = lu(it.f - 16)
            it.hi = max(it.hi, it.lo)
    else:
        for j, it in enumerate(own):
            kt, s = divmod(it.f, 6)
            it.target = 24 * (kt - 1) + 1 + s * 2.5; it.hi = 24 * kt - 8
            if it.f >= 16: it.lo = lu(it.f - 16)
    rs += own
    bar = BAR(pub if isinstance(pub, set) else {f"L{pub}"}, lo=bg, hi=bg); rs.append(bar)
    for j, it in enumerate(nxt):
        it.lo = max(bg + 1, lu(it.f + 8)); it.after = [bar]
        it.target = bg + 1 + (j * 1.8 if nxt_typ == "v" else j * 1.5); it.hi = N - 1 if nxt_typ == "v" and j >= 4 else N - 8
    rs += nxt
    ws = []
    if typ == "v":
        for t in range(1, 12):
            if 8 * t - 1 >= bg: break
            ws.append(WAIT(lneed=regs("a", fq(n, 2 * t), 4) | regs("a", fq(n, 2 * t + 1), 4), lo=8 * t - 3, hi=8 * t - 1, target=8 * t - 2))
    else:
        for kt in range(1, 4):
            ws.append(WAIT(lneed=set().union(*[regs("a", fq(n, 6 * kt + s), 4) for s in range(6)]), lo=24 * kt - 3, hi=24 * kt - 1, target=24 * kt - 2))
    nf = 2 if nxt_typ == "v" else 6
    ws.append(WAIT(lneed=set().union(*[regs("a", fq(n + 1, f), 4) for f in range(nf)]) | endx, lo=N - 2, hi=N - 1, target=N - 1.5))
    ms = list(early)
    spread(ms, 1, early_hi or bg - 6)
    nv = sum(1 for it in dmas if it.kind == "vmem"); k = 0
    for it in dmas:
        it.lo = bg + 1 if it.kind == "vmem" else bg - 4
        it.target = bg + 2 + k * min(12.0, ((dend or N) - bg - 3) / max(nv, 1)) - (0 if it.kind == "vmem" else 2.5)
        if it.kind == "vmem": it.after = it.after + [bar]; k += 1
    ms += dmas
    for it in post: it.lo = bg + 1; it.target = N - 6
    ms += list(post)
    return schedule(mf, [ws, rs, ms] + list(extra), novalu=range(bg, bg + 9), name=name)

def softmax(groups, lo, hi, sub=None, skip=NOV):
    E = []; D = []; P = []
    for (par, kb, qt, l0, l1, h, sb_) in groups:
        x, z = XY(par, kb, qt), Z(kb, qt)
        src = [x, x + 1, x + 2, x + 3, z, z + 1, z + 2, z + 3]
        for pr in range(4):
            es = []
            for e in range(2):
                r = src[2 * pr + e]
                ex = I(f"v_exp_f32 v{r}, v{r}", lo=(l0, l1)[pr >> 1])
                if sb_:
                    sb = I(f"v_add_f32 v{r}, v{r}, v{negm(qt)}", after=[sub[qt]] if sub else [], lo=(l0, l1)[pr >> 1]); sb.ex = ex; P.append(sb); ex.after = [sb]
                E.append(ex); es.append(ex)
            D.append(I(f"v_cvt_pk_bf16_f32 v{x+pr}, v{src[2*pr]}, v{src[2*pr+1]}", after=es, hi=h))
    spread(E, lo, hi, skip)
    for e in E: e.hi = 10**9
    for d in D:
        d.target = max(a.target for a in d.after) + 1
        for a in d.after: a.hi = d.hi - 1
    for p in P: p.target = p.ex.target - 3; p.hi = p.ex.hi - 1
    return [P, E, D]
def g_old(par, kb, qts, N, inqk):
    return [(par, kb, qt, 0, 0, (48 * kb + 24 + 6 * qt - 1) if inqk else N - 1, False) for qt in qts]
def g_new(par, qts):
    return [(par, 0, qt, 6 * qt + 13, 24 + 6 * qt + 13, 95, False) for qt in qts]

def mf_w(n):
    out = []
    for t in range(12):
        for qt in range(4):
            d = Qf(qt, t >> 1) if t % 2 == 0 else Qb(qt, t >> 1)
            for kb in range(2):
                out.append(mfma(V4(d), A4(fq(n, 2 * t + kb)), A4(Xf(n, kb, qt)), "0" if (n == 0 and kb == 0) else V4(d)))
    return out
def mf_qk(n, par, first=False):
    out = []
    for kt in range(4):
        for qt in range(4):
            d = XY(par, kt >> 1, qt) if kt % 2 == 0 else Z(kt >> 1, qt)
            order = range(6) if qt % 2 == 0 else range(5, -1, -1)
            for j, s in enumerate(order):
                c = V4(d) if j else ("0" if (first and kt < 2) else V4(negm(qt)))
                out.append(mfma(V4(d), A4(fq(n, 6 * kt + s)), V4(Qf(qt, s)), c))
    return out
def mf_l(par, first=False):
    if not OPT["smf"]: return [mfma(V4(vL[0]), V4(32 + 4 * qt), V4(XY(par, kb, qt)), V4(vL[0])) for kb in range(2) for qt in range(4)]
    return [Ins(f"v_smfmac_f32_16x16x64_bf16 {V4(vL[0])}, {V4(32 + 4*qt)}, v[{XY(par, 0, qt)}:{XY(par, 0, qt)+7}], v{vIx}", kind="mfma") for qt in range(4)]
def mf_pv(n, par, first=False):
    out = []
    for t in range(12):
        for qt in range(4):
            for kb in range(2):
                out.append(mfma(A4(Oacc(t, qt)), A4(fq(n, 2 * t + kb)), V4(XY(par, kb, qt)), "0" if (first and kb == 0) else A4(Oacc(t, qt))))
    return out

ETMP = [32, 40, 56]
def epi_unit(u, packed, k2=False):
    s, qt = divmod(u, 4)
    tb = ETMP[u % 3] if OPT["stamps"] in (0, 6, 7, 8, 9) else [24, 32, 56][u % 3] if k2 else [32, 56][u % 2]
    out = []
    rc = RCP + 2 * qt
    for h in range(2):
        for j in range(4): out.append(I(f"v_accvgpr_read_b32 v{tb+4*h+j}, a{Oacc(2*s+h, qt)+j}"))
        if packed:
            for j in range(2): out.append(I(f"v_pk_mul_f32 v[{tb+4*h+2*j}:{tb+4*h+2*j+1}], v[{tb+4*h+2*j}:{tb+4*h+2*j+1}], v[{rc}:{rc+1}]"))
        else:
            for j in range(4): out.append(I(f"v_mul_f32 v{tb+4*h+j}, v{tb+4*h+j}, v{rc}"))
        for j in range(2): out.append(I(f"v_cvt_pk_bf16_f32 v{tb+2*h+j}, v{tb+4*h+2*j}, v{tb+4*h+2*j+1}"))
    out.append(I(f"buffer_store_dwordx4 {V4(tb)}, v{vO3 if qt == 3 else vO}, {S4(sO)}, s{sOs[s]} offen offset:{qt*1024}" + ["", " nt", " sc1", " sc0 sc1"][OPT["nt_o"]], dst={"OST"}))
    return out
def cvt_unit(s, qt, packed):
    a, b = Qf(qt, s), Qb(qt, s)
    out = []
    if packed:
        for r in (a, a + 2, b, b + 2): out.append(I(f"v_pk_mul_f32 v[{r}:{r+1}], v[{r}:{r+1}], {S2(sC)}"))
    else:
        for r in (a, a + 1, a + 2, a + 3, b, b + 1, b + 2, b + 3): out.append(I(f"v_mul_f32 v{r}, s{sC}, v{r}"))
    out += Is(f"""v_cvt_pk_bf16_f32 v{a}, v{a}, v{a+1}
v_cvt_pk_bf16_f32 v{a+1}, v{a+2}, v{a+3}
v_cvt_pk_bf16_f32 v{a+2}, v{b}, v{b+1}
v_cvt_pk_bf16_f32 v{a+3}, v{b+2}, v{b+3}""")
    sw = Is(f"v_permlane16_swap_b32 v{a}, v{a+2}\nv_permlane16_swap_b32 v{a+1}, v{a+3}")
    return out, sw

def pf():
    return [I(f"v_add_u32 v{vPf}, s{sPfo}, v{vO}")] + [I(f"buffer_load_dwordx4 {V4(252)}, v{vPf}, {S4(sP1)}, " + ("0" if j < 4 else f"s{sT3}") + f" offen offset:{(j % 4)*1024}", dst=regs("v", 252, 4)) for j in range(6)]

def atomic(v, so, srd=None):
    it = Ins(f"s_mov_b64 exec, 1\nbuffer_atomic_add v{v}, off, {S4(srd or sDb)}, s{so}\ns_mov_b64 exec, -1", kind="vmem"); it.cost = 8
    return it
def codepf():
    return [I("global_load_dword v30, v[28:29], off", dst={"v30"})] if OPT["cpl"] else []

def jobid(d, t):
    if not OPT["rmp"]: return f"s_mov_b32 s{d}, s{sWg}"
    return f"""s_lshr_b32 s{t}, s{sWg}, 4
s_xor_b32 s{t}, s{t}, s{sWg}
s_and_b32 s{t}, s{t}, 1
s_mul_i32 s{t}, s{t}, 17
s_cmp_ge_u32 s{sWg}, 224
s_cselect_b32 s{t}, s{t}, 0
s_xor_b32 s{d}, s{sWg}, s{t}"""

def lin(items):
    out = []
    for k, it in enumerate(items):
        out.append(it)
        if it.text.startswith("s_add_u32 m0") and items[k + 1].kind == "vmem": out.append(I("s_nop 0"))
    return out

def stamp(idx, k2=False):
    if not OPT["stamps"]: return []
    if OPT["stamps"] == 9:
        if idx not in (48, 54): return []
        return Is(f"s_memrealtime s[94:95]\ns_waitcnt lgkmcnt(0)\nv_writelane_b32 v{31 if idx == 48 else 22}, s94, {idx}")
    va, vb = (22, 23) if idx >= 51 else (31, 31) if OPT['stamps'] >= 6 else (46, 47)
    if idx == -2: sel = "s_add_u32 s92, s39, 31"
    elif idx < 0: sel = f"s_mul_i32 s92, s{sItem}, 24\ns_add_u32 s92, s92, s{sI}\ns_add_u32 s92, s92, 8"
    else: sel = f"s_mov_b32 s92, {idx}" if (k2 or idx >= 48) else f"s_mul_i32 s92, s{sItem}, 24\ns_add_u32 s92, s92, {idx}"
    return Is(f"""s_memtime s[90:91]
s_memrealtime s[94:95]
s_waitcnt lgkmcnt(0)
s_cselect_b32 s96, 1, 0
{sel}
s_mov_b32 s93, m0
s_mov_b32 m0, s92
v_writelane_b32 v{vb}, s94, m0
v_writelane_b32 v{va}, s90, m0
s_mov_b32 m0, s93
s_cmp_lg_u32 s96, 0""")
def stamp_out(karg, wg, wave, tmp, base, k2=False):
    if not OPT["stamps"]: return []
    va = 22
    return Is(f"""s_load_dwordx2 s[80:81], {karg}, 96
s_waitcnt lgkmcnt(0)
s_add_u32 s80, s80, {base}
s_addc_u32 s81, s81, 0
s_mov_b32 s82, 0x100000
s_mov_b32 s83, 0x20000
s_lshl_b32 s84, s{wg}, 2
s_add_u32 s84, s84, s{wave}
s_lshl_b32 s84, s84, 9
v_lshlrev_b32 v{tmp}, 3, v0
buffer_store_dwordx2 v[{va}:{va+1}], v{tmp}, s[80:83], s84 offen""")


def pst(idx):
    if OPT["stamps"] != 8: return []
    return Is(f"s_memtime s[28:29]\ns_waitcnt lgkmcnt(0)\nv_writelane_b32 v31, s28, {idx}") if idx < 18 else stamp(idx, True)
def kernel1():
    B = {}
    c = math.log2(math.e) / math.sqrt(192.0)
    import struct
    cbits = struct.unpack("<I", struct.pack("<f", c))[0]
    selinit = f"s_mov_b32 s{sSel}, {OPT['me']}" if OPT['me'] == OPT['mo'] else f"s_getreg_b32 s{sSel}, hwreg(HW_REG_XCC_ID, 0, 1)\ns_cmp_eq_u32 s{sSel}, 0\ns_cselect_b32 s{sSel}, {OPT['me']}, {OPT['mo']}"
    wshare = f"""s_lshr_b32 s86, s88, 1
s_and_b32 s87, s86, 32
s_add_u32 s86, s86, s87
s_and_b32 s87, s88, 1
s_lshl_b32 s87, s87, 5
s_add_u32 s86, s86, s87
s_mul_i32 s86, s86, 61440""" if OPT["wsh"] == 1 else """s_lshr_b32 s86, s88, 1
s_and_b32 s87, s88, 1
s_lshl_b32 s87, s87, 6
s_add_u32 s86, s86, s87
s_mul_i32 s86, s86, 30720""" if OPT["wsh"] == 2 else "s_mul_i32 s86, s88, 61440"
    kload = lambda b: Is(f"s_load_dwordx16 s[4:19], {b}, 0\ns_load_dwordx8 s[20:27], {b}, 64\ns_load_dwordx2 {S2(sWsP)}, {b}, 96")
    B["kre"] = kload(S2(sKA)) + Is("s_branch K1_PRO")
    B["entry"] = Is("s_cmp_ge_u32 s2, 256\ns_cbranch_scc1 K1_END") + kload("s[0:1]") + Is(f"""
v_lshrrev_b32 v{vT}, 6, v0
v_and_b32 v0, 63, v0
s_mov_b32 s{sWg}, s2
v_readfirstlane_b32 s{sWave}, v{vT}
s_mov_b64 {S2(sKA)}, s[0:1]
s_mov_b32 s{sMode}, 0
s_mov_b32 s{sSig}, 0""") + stamp(48)
    cpa = Is(f"""
s_getpc_b64 s[90:91]
K1_PC:
s_lshr_b32 s86, s{sWg}, 3
s_lshl2_add_u32 s86, s86, s{sWave}
s_lshl_b32 s86, s86, 10
v_lshl_add_u32 v28, v0, 4, s86
v_min_u32 v28, (K_CODE_END-K1_PC-32)&0xfffffff0, v28
s_and_b32 s90, s90, 0xfffffff0
v_mov_b32 v29, s91
v_add_co_u32 v28, vcc, s90, v28
s_mov_b32 s{sSp}, 0
s_nop 0
v_addc_co_u32 v29, vcc, 0, v29, vcc""") + codepf()
    t0, t1, t2, t3 = vT, vT + 1, vT + 2, vT + 3
    P = Is(f"""K1_PRO:
s_lshr_b32 s82, s{sWg}, 6
s_and_b32 s83, s{sWg}, 2
s_lshl1_add_u32 s81, s83, s82
s_mul_i32 s82, s81, 307200
s_lshl_b32 s{sXoff}, s{sWave}, 13
s_lshl_b32 s86, s{sWave}, 6
v_lshrrev_b32 v{t0}, 3, v0
v_and_b32 v{t1}, 7, v0
v_and_b32 v{t2}, 6, v{t0}
v_xor_b32 v{t1}, v{t1}, v{t2}
v_add_u32 v{t2}, s86, v{t0}
v_mul_u32_u24 v{vDx}, 1280, v{t2}
v_lshl_add_u32 v{vDx}, v{t1}, 4, v{vDx}
s_bfe_u32 s{sT3}, s{sWg}, 0x10002
s_waitcnt lgkmcnt(0)
s_cselect_b64 s[92:93], s[16:17], s[6:7]
s_cselect_b64 s[4:5], s[14:15], s[4:5]
s_add_u32 s{sX}, s4, s82
s_addc_u32 s{sX+1}, s5, 0
s_mov_b32 s{sX+2}, 307200
s_mov_b32 s{sX+3}, 0x20000
s_mov_b32 s{sXk}, 0""") + pst(16) + (cpa if OPT['cpfirst'] else []) + dma_x(0)[3:] + ([] if OPT['cpfirst'] else cpa) + Is(f"""
s_cmp_eq_u32 s{sT3}, 0
s_cselect_b64 s[94:95], s[8:9], s[18:19]
s_cselect_b64 s[96:97], s[10:11], s[20:21]
s_cselect_b64 {S2(sWoP)}, s[12:13], s[22:23]
s_mov_b64 {S2(sOutP)}, s[24:25]
s_mov_b64 {S2(sDb)}, s[26:27]
s_lshr_b32 s{sT2}, s{sWg}, 3
s_and_b32 s88, s{sWg}, 1
s_and_b32 s89, s{sT2}, 7
s_lshl3_add_u32 s80, s88, s89
s_mul_i32 s84, s80, 384
s_mul_i32 s{sWoff}, s{sWave}, 6144
v_mul_u32_u24 v{vDkv}, 384, v{t0}
v_lshl_add_u32 v{vDkv}, v{t1}, 4, v{vDkv}
v_add_u32 v{vDkv}, s{sWoff}, v{vDkv}
v_and_b32 v{t2}, 4, v{t1}
v_and_b32 v{t3}, 1, v{t1}
v_lshl_or_b32 v{t2}, v{t3}, 1, v{t2}
v_bfe_u32 v{t3}, v{t1}, 1, 1
v_or_b32 v{t1}, v{t2}, v{t3}
v_and_b32 v{t2}, 3, v{t0}
v_lshrrev_b32 v{t3}, 2, v{t0}
v_lshl_add_u32 v{t2}, v{t3}, 3, v{t2}
s_lshr_b32 s86, s{sWave}, 1
s_lshl_b32 s86, s86, 5
s_and_b32 s87, s{sWave}, 1
s_lshl2_add_u32 s86, s87, s86
v_add_u32 v{t2}, s86, v{t2}
v_mul_u32_u24 v{vDw}, 12288, v{t2}
v_lshl_add_u32 v{vDw}, v{t1}, 4, v{vDw}
v_add_u32 v{vDw1}, {196608-3072}, v{vDw}
s_add_u32 s{sDA}, s96, s84
s_addc_u32 s{sDA+1}, s97, 0
s_sub_u32 s{sDA+2}, 7864320, s84
s_mov_b32 s{sDA+3}, 0x20000
s_mov_b32 s{sNs}, {WS}
s_mov_b32 s{sWk}, 0
s_mov_b32 s{sXst}, 128
""")
    P0 = P
    P = Is(f"""
s_lshl_b32 s83, s81, 5
s_add_u32 s83, s83, s80
s_mul_i32 s83, s83, 393216
s_lshl_b32 s85, s{sT3}, 5
s_lshl_b32 s86, s88, 4
s_add_u32 s85, s85, s86
s_add_u32 s85, s85, s89
s_and_b32 s86, s89, 4
s_add_u32 s85, s85, s86
s_mul_i32 s85, s85, 720
s_mul_i32 s86, s81, 15
s_add_u32 s85, s85, s86
s_lshl_b32 s85, s85, 10
s_and_b32 s88, s{sWg}, 3
s_lshl_b32 s89, s{sT2}, 2
s_add_u32 s88, s88, s89
s_add_u32 s{sK}, s92, s83
s_addc_u32 s{sK+1}, s93, 0
s_add_u32 s{sV}, s94, s83
s_addc_u32 s{sV+1}, s95, 0
s_mov_b32 s{sDb+2}, 256
s_mov_b32 s{sDb+3}, 0x20000
s_bfe_u32 s{sCo}, s{sWg}, 0x20001
s_lshl_b32 s{sCo}, s{sCo}, 6
s_mov_b32 s{sPfo}, s{sXoff}
s_cmp_eq_u32 s{sSig}, 0
s_cselect_b32 s{sOn}, {5*122880+15*1024}, 0
s_add_u32 s{sNb}, s{sDA}, 6144
s_addc_u32 s{sNb+1}, s{sDA+1}, 0
s_sub_u32 s{sNnum}, s{sDA+2}, 6144
s_mov_b64 {S2(sMask)}, 0
s_mov_b32 s{sXnum}, 307200
{wshare}
s_add_u32 s{sN2}, s{sWoP}, s86
s_addc_u32 s{sN2+1}, s{sWoP+1}, 0
s_mul_i32 s86, s88, {4*12288}
s_add_u32 s86, s86, {128*12288+6144}
s_add_u32 s{sP1}, s96, s86
s_addc_u32 s{sP1+1}, s97, 0
s_mov_b32 s{sP1+2}, {(3*12288+6144) * OPT['wpf']}
s_mov_b32 s{sP1+3}, 0x20000
s_mov_b32 s{sT3}, 4096
s_add_u32 s{sO}, s{sWsP}, s85
s_addc_u32 s{sO+1}, s{sWsP+1}, 0
s_sub_u32 s{sO}, s{sO}, {OSTRIDE}
s_subb_u32 s{sO+1}, s{sO+1}, 0
s_mov_b32 s{sO+2}, 0
s_mov_b32 s{sO+3}, 0x20000
s_lshl_b32 s86, s{sWg}, 7
s_add_u32 s86, s86, {FLG}
s_add_u32 s{sDB}, s{sWsP}, s86
s_addc_u32 s{sDB+1}, s{sWsP+1}, 0
s_cmp_eq_u32 s{sMode}, 0
s_cselect_b32 s{sDB+2}, 128, 0
s_mov_b32 s{sDB+3}, 0x20000
s_mov_b32 s{sItem}, 0
s_mov_b32 s{sFlag}, 0
s_mov_b32 s{sCp}, 0x1000
{selinit}
s_mov_b32 s{sBk}, 0
s_mov_b64 {S2(sXn)}, {S2(sX)}
s_lshr_b32 s80, s{sWg}, 4
s_mul_i32 s84, s80, 52
s_lshr_b32 s84, s84, 8
s_mul_i32 s85, s84, 5
s_sub_u32 s85, s80, s85
s_and_b32 s81, s{sWg}, 1
s_bfe_u32 s89, s{sWg}, 0x10003
s_lshl1_add_u32 s89, s81, s89
s_and_b32 s82, s{sWave}, 1
s_lshr_b32 s83, s{sWave}, 1
s_xor_b32 s86, s81, s82
s_xor_b32 s86, s86, 1
s_lshl_b32 s86, s86, 7
s_lshl_b32 s87, s85, 8
s_add_u32 s86, s86, s87
s_mul_i32 s87, s83, {64*1280}
s_add_u32 s86, s86, s87
s_mul_i32 s87, s89, {768*1280}
s_add_u32 s86, s86, s87
s_add_u32 s{sWoP}, s{sWoP}, s86
s_addc_u32 s{sWoP+1}, s{sWoP+1}, 0
s_sub_u32 s{sK2n}, 7864320, s86
s_cmp_lt_u32 s80, 15
s_cselect_b32 s{sK2n}, s{sK2n}, 0
s_bfe_u32 s86, s{sWg}, 0x10001
s_mul_i32 s86, s86, 60
s_mul_i32 s87, s84, 20
s_add_u32 s86, s86, s87
s_mul_i32 s87, s{sWave}, 5
s_add_u32 s86, s86, s87
s_bfe_u32 s87, s{sWg}, 0x10002
s_lshl2_add_u32 s88, s87, s89
s_mul_i32 s88, s88, {48*120}
s_add_u32 s88, s88, s86
s_lshl_b32 s88, s88, 10
s_add_u32 s{sK2O}, s{sWsP}, s88
s_addc_u32 s{sK2O+1}, s{sWsP+1}, 0
s_mul_i32 s88, s86, {16*2560}
s_mul_i32 s87, s87, 1280
s_add_u32 s88, s88, s87
s_lshl_b32 s87, s85, 8
s_add_u32 s88, s88, s87
s_lshl_b32 s87, s89, 6
s_add_u32 s88, s88, s87
s_add_u32 s{sOutP}, s{sOutP}, s88
s_addc_u32 s{sOutP+1}, s{sOutP+1}, 0
s_mov_b32 s{sC}, {cbits:#x}
s_mov_b32 s{sC+1}, {cbits:#x}
s_mov_b32 s{sThr}, 0x5d800000
""") + [I(f"s_mov_b32 s{sOs[s]}, {s*122880}") for s in range(6)]
    kb0, vb0 = vK[0][0], vV[0][0]
    P += Is(f"""
v_and_b32 v{t0}, 15, v0
v_lshrrev_b32 v{t1}, 4, v0
v_and_b32 v{t2}, 6, v{t0}
v_xor_b32 v{t3}, v{t2}, v{t1}
v_lshlrev_b32 v{t3}, 4, v{t3}
v_lshl_add_u32 v{vXr[0][0]}, v{t0}, 7, v{t3}
v_add_u32 v{vXr[0][0]}, s{sXoff}, v{vXr[0][0]}
v_xor_b32 v{vXr[0][1]}, 64, v{vXr[0][0]}
v_add_u32 v{vXr[1][0]}, {X1}, v{vXr[0][0]}
v_add_u32 v{vXr[1][1]}, {X1}, v{vXr[0][1]}
v_lshrrev_b32 v{t2}, 3, v{t0}
v_mul_u32_u24 v{kb0}, 3072, v{t2}
v_and_b32 v{t2}, 7, v{t0}
v_lshl_add_u32 v{kb0}, v{t2}, 7, v{kb0}
v_add_u32 v{kb0}, v{kb0}, v{t3}
v_xor_b32 v{vK[0][1]}, 64, v{kb0}
v_add_u32 v{vK[1][0]}, {KW[1]}, v{kb0}
v_add_u32 v{vK[1][1]}, {KW[1]}, v{vK[0][1]}
v_lshrrev_b32 v{t2}, 5, v0
v_mul_u32_u24 v{vb0}, 3072, v{t2}
v_bfe_u32 v{t2}, v0, 2, 3
v_lshl_add_u32 v{vb0}, v{t2}, 7, v{vb0}
v_and_b32 v{t2}, 6, v{t2}
v_bfe_u32 v{t3}, v0, 1, 1
v_xor_b32 v{t2}, v{t2}, v{t3}
v_lshl_add_u32 v{vb0}, v{t2}, 4, v{vb0}
v_and_b32 v{t2}, 1, v0
v_lshl_add_u32 v{vb0}, v{t2}, 3, v{vb0}
v_add_u32 v{vb0}, {VW[0]}, v{vb0}
v_xor_b32 v{vV[0][1]}, 32, v{vb0}
v_xor_b32 v{vV[0][2]}, 64, v{vb0}
v_xor_b32 v{vV[0][3]}, 96, v{vb0}
""") + [I(f"v_add_u32 v{vV[1][i]}, {VW[1]-VW[0]}, v{vV[0][i]}") for i in range(4)] + Is(f"""
v_bfe_i32 v{t2}, v0, 2, 1
v_and_b32 v{t2}, 0xaaaaaaaa, v{t2}
v_or_b32 v{vIx}, 0x44444444, v{t2}
s_lshl_b32 s86, s{sWave}, 12
v_lshlrev_b32 v{vO}, 4, v0
v_add_u32 v{vO}, s86, v{vO}
s_cmp_eq_u32 s{sWave}, 3
s_cselect_b32 s86, 0x80000000, 0
v_add_u32 v{vO3}, s86, v{vO}
""")
    P += [I(f"v_mov_b32 v{vL[q]}, 0") for q in range(4)]
    ld = lin(dma_w(0)[3:]) + lin(dma_w(1)) + dma_x(1) + lin(hd(dma_w(2)))
    rest = P; P = P0; nv = 0
    for x in ld:
        P.append(x)
        if x.kind == "vmem":
            nv += 1; c_ = 0
            while rest and nv > OPT["pskip"] and (c_ < 9 or rest[0].text.split()[0] in ("s_addc_u32", "s_subb_u32", "s_cselect_b32", "s_cselect_b64")):
                P.append(rest.pop(0)); c_ += 1
    P += rest + pst(19)
    P += [I(f"buffer_store_dwordx4 {V4(vL[0])}, v{vO}, {S4(sDB)}, 0 offen sc1", dst={"OST"})]
    XALL = lambda n: {f"X{n&1}_{q}" for q in range(4)}
    P += [WAIT(vneed=XALL(0) | {f"L{slot(0)}"})] + reads_x(0) + Is("s_barrier")
    B["pro"] = P + pst(20) + reads_v(0, slot(0))[:NPRE_V] + Is("s_branch K1_ITEM")
    B["item"] = Is("K1_ITEM:") + stamp(0) + [WAIT(lzero=True)]
    NE0 = OPT["ne0"]
    EW = {0: list(range(NE0, 8))}
    rest = list(range(8, 24)); per = [3, 3, 2, 2, 2, 2, 2]
    for n in range(1, 8): EW[n] = rest[:per[n - 1]]; rest = rest[per[n - 1]:]
    NC9 = OPT["nc9"]
    cunits = [(s, qt) for s in range(6) for qt in range(4)]
    cold = dma_k(0, X0) + dma_k(1, slot(2)) + dma_v(0, slot(3)); C8 = 2 if OPT["la1"] else OPT["cw8"]
    cut = lambda p: 10 * (p // 3) + (0, 4, 7)[p % 3]
    pairs = lambda a, b: cold[cut(a):cut(b)]
    for n in range(10):
        own = reads_v(n, slot(n % 4))[NPRE_V:]
        early = []; extra = []; post = []; endx = set()
        if n < 9: nxt = reads_v(n + 1, slot((n + 1) % 4))[:NPRE_V]; nt_ = "v"; pub = slot((n + 1) % 4)
        else: nxt = reads_k(10, X0)[:NPRE_K]; nt_ = "k"; pub = X0
        if n < 8: early += tl(dma_w(n + 2))
        if n == 8: early += pairs(1, 1 + C8)
        if n == 9: early += pairs(2 + C8, 6 if OPT["la1"] else 8)
        if n == 7:
            early += Is(f"""s_mov_b64 {S2(sDA)}, {S2(sK)}
s_mov_b32 s{sDA+2}, 393216
s_mov_b64 {S2(sDB)}, {S2(sV)}
s_mov_b32 s{sDB+2}, 393216""")
        if n < 8: early += dma_x(n + 2)
        if (OPT['cpw'] >> n) & 1: early += codepf()
        if n == 8 and OPT["nfl"]:
            fill = Is(f"s_lshl2_add_u32 s88, s{sWg}, s{sWave}\ns_mul_i32 s88, s88, 10240\ns_add_u32 s88, s88, {XCH}")
            fill += [Ins(f"s_add_u32 s80, s{sWsP}, s88\ns_addc_u32 s81, s{sWsP+1}, 0", kind="bar"), Ins(f"s_or_b32 s88, s{sItem}, s{sMode}\ns_cselect_b32 s82, 0, 10240", kind="bar")]
            fill += Is("s_mov_b32 s83, 0x20000\ns_mov_b32 s88, 8192\nv_lshlrev_b32 v36, 4, v0") + [I(f"v_mov_b32 v{32+j}, -1") for j in range(4)]
            st = [I(f"buffer_store_dwordx4 v[32:35], v36, s[80:83], {['0', f's{sT3}', 's88'][q // 4]} offen offset:{(q % 4)*1024} sc1") for q in range(10)]
            extra.append(spread(fill, 4, 34) + spread(st, 36, 95, [BG]))
        if n == 8: post = Is(f"""s_mov_b32 s87, 0xff800000
s_cmp_eq_u32 s{sWave}, 3
s_cselect_b32 s86, 0x71000000, s87
v_mov_b32 v{vMi[0]}, s87
v_mov_b32 v{vMi[1]}, s87
v_mov_b32 v{vMi[2]}, s87
v_mov_b32 v{vMi[3]}, s86""")
        es = []; sts = []; us = EW.get(n, [])
        for u in us:
            e = epi_unit(u, False)
            if OPT["hold"] and u >= us[-1] - 2:
                x = e.pop(); x.after = [e[-1], early[-1]]; sts.append(x)
            es += e
        late0 = n == 0 and NE0 < 6
        if es: extra.append(spread(es, 0, (BG + 14 if late0 else 70) if n == 0 else 90, NOV))
        if sts: extra.append(spread(sts, 72, 96, [BG]))
        if n < 9:
            xr = reads_x(n + 1); st = []
            for q in range(4):
                if q % 2 == 0: st.append(WAIT(vneed={f"X{(n+1)&1}_{q}", f"X{(n+1)&1}_{q+1}"}))
                st += xr[2 * q:2 * q + 2]
            spread(st, 46, BG - 5)
            if n == 0:
                for q in range(4):
                    la = [x for x in es if x.text.endswith(f" a{Oacc(3, q) + 3}")]
                    for it in xr[2 * q:2 * q + 2]:
                        it.after = la
                        if q == 3 and late0: it.lo = BG + 1; it.hi = 88; it.target = BG + 4
                    if la: la[0].hi = BG - 1 if q == 3 and late0 else BG - 8
                endx = regs("a", Xf(1, 0, 0), 32)
            extra.append(st)
        if n == 9:
            pub = {f"L{X0}", "OST"}
        if OPT["kvn"] and n < OPT["kvph"]:
            seq = [(k, i) for i in range(2, 15) for (k, i) in ((0, i + 1), (1, i))] + [(1, 15)]
            tot = OPT["kvn"] * OPT["kvph"]; n1 = min(tot, len(seq)); n2 = tot - n1
            lst = [(1,) + seq[j * len(seq) // n1] for j in range(n1)] + [(0,) + seq[j * len(seq) // n2] for j in range(n2)]
            lst.sort(key=lambda e: seq.index(e[1:]))
            st = []
            if n == 0: st += Is(f"""s_mov_b64 s[84:85], {S2(sK)}
s_mov_b32 s86, {9*393216}
s_mov_b32 s87, 0x20000
s_mov_b64 {S2(sDB)}, {S2(sV)}
s_mov_b32 s{sDB+2}, {9*393216}""")
            body = "\n".join(f"s_mov_b32 s88, {i*TILE + o*8*393216}\nbuffer_load_dword v49, v{vDkv}, {S4(sDB if k else 84)}, s88 offen offset:3328" for (o, k, i) in lst[n * OPT["kvn"]:(n + 1) * OPT["kvn"]])
            st.append(Ins(f"s_cmp_eq_u32 s{sKvn}, 0\ns_cbranch_scc1 K1_KV{n}\n{body}\nK1_KV{n}:", kind="bar"))
            early += st
        if n == 9 and NC9:
            cs = []; sw = []
            for (s, qt) in cunits[:NC9]:
                a, b = cvt_unit(s, qt, False)
                a[0].lo = 16 * s + 8 + 2 * qt + 1 + 8
                for x in b: x.after = [a[-1]]; x.dly = 1
                cs += a; sw += b
            spread(cs, 17, 92, NOV)
            for x in sw: x.target = x.after[0].target + 2
            extra += [cs, sw]
        d = hd(dma_w(n + 3)) if n < 7 else pairs(0, 1) if n == 7 else pairs(1 + C8, 2 + C8) if n == 8 else pairs(6, 7) if OPT['la1'] else pairs(8, 9)
        B[f"w{n}"] = (stamp(8 + n) if OPT["stamps"] == 7 else []) + phase(f"w{n}", n, "v", mf_w(n), own, nxt, nt_, pub, early, d, extra, early_hi=70, post=post, endx=endx)
    C = stamp(1); pend = []
    for k, (s, qt) in enumerate(cunits[NC9:]):
        a, b = cvt_unit(s, qt, True)
        C += a[:4] + pend + a[4:]; pend = b
    C += Is(f"s_cmp_lg_u32 s{sMode}, 0\ns_nop 0") + pend + Is("s_cbranch_scc1 K1_MAXPASS\nK1_MAXRET:\ns_nop 0") + stamp(2)
    B["cvt"] = C
    M = []; last = []
    for qt in range(4):
        x = XY(0, 0, qt); m = vT + 2 * qt; t = m + 1
        a = I(f"v_max3_f32 v{m}, v{x}, v{x+1}, v{x+2}", lo=6 * qt + 13)
        b = I(f"v_max3_f32 v{m}, v{m}, v{x+3}, v{vMi[qt]}")
        c_ = I(f"v_mov_b32 v{t}, v{m}")
        d = I(f"v_permlane16_swap_b32 v{m}, v{t}", after=[c_], dly=1)
        e = I(f"v_max_f32 v{m}, v{m}, v{t}")
        f = I(f"v_mov_b32 v{t}, v{m}")
        g = I(f"v_permlane32_swap_b32 v{m}, v{t}", after=[f], dly=1)
        h = I(f"v_max_f32 v{m}, v{m}, v{t}")
        ns = [I(f"v_sub_f32 v{negm(qt)+i}, 0, v{m}", hi=48 + 6 * qt - 3) for i in range(4)]
        st = [a, b, c_, d, e, f, g, h] + ns
        for j, it in enumerate(st): it.target = 6 * qt + 13 + j * 0.5
        M.append(st); last.append(ns[0])
    NA0 = OPT['na0']
    sm = softmax([(0, 0, qt, 0, 24 + 6 * qt + 13, 95, True) for qt in range(NA0)], 28, 93, sub=last)
    early = Is(f"""s_mov_b32 s{sA}, {3*TILE}
s_mov_b32 s{sB}, {TILE if OPT["la1"] else 2*TILE}
s_mov_b32 s{sI}, 0
s_add_u32 s{sO}, s{sO}, {OSTRIDE}
s_addc_u32 s{sO+1}, s{sO+1}, 0
s_mov_b32 s{sO+2}, s{sOn}
s_mov_b32 s{sOn}, {5*122880+15*1024}""") + (pairs(7, 9) if OPT["la1"] else dma_k(2, slot(0)))
    hand = Is(f"""v_mov_b32 v30, 1
s_and_b32 s80, s{sWg}, 1
s_lshl_b32 s80, s80, 2
s_add_u32 s80, s80, s{sCo}
s_cmp_eq_u32 s{sAll}, 0
s_cselect_b32 s81, s{sItem}, 0
s_cmp_lt_u32 s{sSig}, s81
s_cselect_b32 s80, s80, 0x1000
s_cselect_b32 s{sSig}, 1, s{sSig}
s_cmp_eq_u32 s{sWave}, 0
s_cselect_b32 s80, s80, 0x1000""") + [atomic(30, 80)]
    B["qk0"] = phase("qk0", 10, "k", mf_qk(10, 0, True), reads_k(10, X0)[NPRE_K:], reads_k(11, slot(2))[:NPRE_K], "k", slot(2), early,
                     hd(dma_k(2, slot(0)) if OPT['la1'] else dma_v(1, slot(1))), M + sm, early_hi=70) + stamp(3)
    def half(nm, par, mode, xq=0, xp=0, isa=True):
        ks, vs, kn, vp = slot(2 * par), slot(2 * par + 1), slot(2 - 2 * par), slot(3 - 2 * par)
        kd = lambda: dma(sDA, sA, ks, OPT["nt_kv"])
        vd = lambda b: dma(sDB, sB, b, OPT["nt_kv"])
        last = mode == "last"; first = mode == "first"
        if first: early = tl(dma_v(1, slot(1)))
        elif last and par: early = tl(dma_n(0)) + dma_x(0)
        else: early = (codepf() if par == 0 and not last else []) + tl(vd(vp)) + Is(f"s_add_u32 s{sB}, s{sB}, {TILE}")
        if OPT["la1"]:
            if first: early = tl(dma_k(2, slot(0)))
            elif not (last and par): early = (codepf() if par == 0 and not last else []) + tl(dma(sDA, sA, kn, OPT["nt_kv"])) + Is(f"s_add_u32 s{sA}, s{sA}, {TILE}")
            if last and par == 0: early += dma_v(14, vp)[:7]
        if last and par == 0:
            early += Is(f"""s_mov_b64 {S2(sX)}, {S2(sXn)}
s_mov_b32 s{sX+2}, s{sXnum}
s_cmp_eq_u32 s{sItem}, 1
s_cselect_b32 s{sXk}, {(-128*1280) & 0xffffffff}, s{sXk}
s_cselect_b32 s{sXst}, {128*1280}, s{sXst}
s_movk_i32 s80, 0x70
v_lshrrev_b32 v30, 3, v0
v_mul_u32_u24 v30, 1280, v30
v_and_or_b32 v30, v{vDw}, s80, v30
v_cndmask_b32 v{vDx}, v{vDx}, v30, {S2(sMask)}""") + codepf()
        mp = mf_pv(12, 1 - par, first) + mf_l(1 - par, first) + (mf_l(1) if last and par else [])
        NP_ = len(mp)
        gq = g_old(1 - par, 1, range(4), 96, True); gp = g_old(par, 0, range(4), NP_, False); hq = BG - 2
        if first: gq = [g[:6] + (True,) for g in g_old(0, 0, range(NA0, 4), 96, True)] + gq; hq = 88
        if last and par == 0:
            gq = gq + g_new(0, [0]); hq = 93
            gp = g_old(0, 0, [1, 2, 3], NP_, False) + g_old(0, 1, [0, 1], NP_, False)
        if last and par:
            gq = g_old(0, 1, [2, 3], 96, True) + g_new(1, [0, 1, 2]); hq = 93
            gp = [(1, 0, 3, 0, 0, 97, False)] + [(1, 1, qt, 4, 6, NP_ - 7 + qt, False) for qt in range(4)]
        def burst(gs):
            if not gs: return []
            P_, E, D = softmax(gs, 0, 90); out = list(P_)
            for j in range(0, len(E), 2):
                out += E[j:j + 2] + (D[j // 2 - 1:j // 2] if j else [])
            return out + Is("s_nop 0") + D[-1:]
        bq = burst(gq[:xq]); gq = gq[xq:]; bp = burst(gp[:xp]); gp = gp[xp:]
        qtile = (lambda: dma_n(1) if par else dma_v(15, X1)) if last else kd
        wo = lambda: [I(f"buffer_load_dword v30, v{vO}, {S4(sX)}, s{sT2} offen", dst={"v30"}), I(f"s_add_u32 s{sT2}, s{sT2}, 1024")] if mode == "loop" and (OPT["woa"] == 2 or (OPT["woa"] == 1 and (xq or xp))) else []
        early = early + wo()
        tq = hd(qtile())
        if OPT["la1"] and not (last and par): tq = dma_v(14, vp)[7:] if last else hd(vd(vp))
        q = bq + phase("qk" + nm, 11, "k", mf_qk(11, par), reads_k(11, ks)[NPRE_K:], reads_v(12, vs)[:NPRE_V], "v", vs, early, tq,
                  softmax(gq, 0, hq), early_hi=72)
        post = []
        if par and mode == "loop": post += Is(f"s_add_u32 s{sI}, s{sI}, 1\ns_or_b32 s80, s{sSel}, 0x40\ns_bitcmp0_b32 s80, s{sI}")
        early = tl(qtile()) + ([] if last else Is(f"s_add_u32 s{sA}, s{sA}, {TILE}"))
        if OPT["la1"] and not (last and par): early = dma_v(15, X1) if last else tl(vd(vp)) + Is(f"s_add_u32 s{sB}, s{sB}, {TILE}")
        if par == 0: early = early + wo()
        if OPT["adb"] and mode == "loop" and not isa:
            early = early + Is(f"s_getreg_b32 s80, hwreg(HW_REG_IB_STS, 0, 4)\ns_cmp_ge_u32 s80, {OPT['adb']}\ns_addc_u32 s{sBk}, s{sBk}, 0\ns_cmp_ge_u32 s{sBk}, {OPT['adn']}\ns_cselect_b32 s{sSel}, 63, s{sSel}")
        if OPT["adp"] and mode == "loop" and isa:
            early = early + Is(f"s_getreg_b32 s80, hwreg(HW_REG_IB_STS, 0, 4)\ns_cmp_ge_u32 s80, {OPT['adp']}\ns_addc_u32 s{sBk}, s{sBk}, 0")
        sel = []
        if first:
            early = hand + early
            if OPT["woa"]: early = early + Is(f"""s_mul_i32 s80, s{sWave}, {15360-4096}
s_add_u32 s{sX}, s{sN2}, s80
s_addc_u32 s{sX+1}, s{sN2+1}, 0
s_lshl_b32 s80, s{sWave}, 12
s_add_u32 s80, s80, 15360
s_cmp_eq_u32 s{sItem}, {OPT["woa"] - 1}
s_cselect_b32 s{sX+2}, s80, 0
s_mov_b32 s{sT2}, 0""")
            if OPT["tw"] & 2: early = early + Is(f"v_mul_u32_u24 v30, 122880, v0") + [I(f"buffer_load_dword v30, v30, {S4(sO)}, 0 offen sc1", dst={"v30"})]
            sel = Is("v_and_b32 v47, 3, v0\nv_mov_b32 v46, 0x3f803f80")
            for qt in range(4):
                c_ = I(f"v_cmp_eq_u32 s[86:87], {qt}, v47")
                sel += [c_, I(f"v_cndmask_b32 v{32+4*qt}, 0, v46, s[86:87]", after=[c_], dly=1)] + [I(f"v_mov_b32 v{32+4*qt+j}, v{32+4*qt}") for j in range(1, 4)]
            sel += [I(f"v_mov_b32 v{vL[q]}, 0") for q in range(4)]
            sel = [spread(sel, 2, 92, NOV)]
        if last and par == 0:
            early += Is(f"""s_mov_b64 {S2(sDA)}, {S2(sNb)}
s_mov_b32 s{sDA+2}, s{sNnum}
s_cmp_eq_u32 s{sItem}, 1
s_cselect_b32 s{sWk}, {(-TILE) & 0xffffffff}, s{sWk}
s_cselect_b32 s{sNs}, {TILE}, s{sNs}
v_cndmask_b32 v{vDw}, v{vDw}, v{vDkv}, {S2(sMask)}
v_cndmask_b32 v{vDw1}, v{vDw1}, v{vDkv}, {S2(sMask)}""")
        d = hd(dma_n(2 * par) if last else kd() if OPT['la1'] else vd(vs))
        if last and par:
            nxt, nty, pub = reads_v(41, X1)[:NPRE_V], "v", X1
            x = pf(); early += x[:4]; d += x[4:] + [I(f"buffer_load_dwordx2 v[{vPoll}:{vPoll+1}], off, {S4(sDb)}, s{sCp} sc1", dst=regs("v", vPoll, 4))]
        else: nxt, nty, pub = reads_k(11, kn)[:NPRE_K], "k", kn
        p = bp + phase("pv" + nm, 12, "v", mp, reads_v(12, vs)[NPRE_V:], nxt, nty, pub, early, d,
                  softmax(gp, 0, NP_ - (7 if last and par else 3)) + sel, post=post, early_hi=72)
        pad = lambda: Is("\n".join(["s_nop 3"] * OPT["padn"]))
        if OPT["padi"]: return q + Is(f"s_cmp_lg_u32 s{sItem}, {OPT['padi']-1}\ns_cbranch_scc1 K1_KVP{nm}") + pad() + pad() + Is(f"K1_KVP{nm}:") + p
        return q + pad() + p + pad()
    two = OPT["xq"] or OPT["xp"]
    B["peel"] = half("1", 1, "first", OPT["pq"], OPT["pp"]) + (Is(f"s_bitcmp1_b32 s{sSel}, 0\ns_cbranch_scc1 K1_LA") if two else [])
    st = lambda: stamp(-1) if OPT["stamps"] in (4, 6) else []
    B["loop"] = Is(".p2align 6\nK1_L:") + st() + half("e", 0, "loop", OPT["yq"], OPT["yp"], False) + half("o", 1, "loop", OPT["yq"], OPT["yp"], False) + Is("s_cbranch_scc1 K1_L")
    B["loope"] = Is(f"s_cmp_lg_u32 s{sI}, 6\ns_cbranch_scc1 K1_LA\nK1_LX:") if two else []
    B["loopa"] = Is(".p2align 6\nK1_LA:") + st() + half("ea", 0, "loop", OPT["xq"], OPT["xp"]) + half("oa", 1, "loop", OPT["xq"], OPT["xp"]) + Is("s_cbranch_scc1 K1_L") if two else []
    B["loopx"] = Is(f"s_cmp_lg_u32 s{sI}, 6\ns_cbranch_scc1 K1_LA\ns_branch K1_LX") if two else []
    B["last"] = (stamp(-1) if OPT["stamps"] in (4, 6) else []) + half("14", 0, "last", OPT["lq"], OPT["lp"]) + half("15", 1, "last")
    B["tail"] = stamp(4)
    B15 = OPT["bg15"]
    R = []
    if OPT["smf"]:
        c2 = [I(f"v_mov_b32 v{168+q}, v{vL[q]}", lo=8) for q in range(4)]
        R = c2 + [I(f"v_permlane16_swap_b32 v{vL[q]}, v{168+q}", after=[c2[q]], dly=1) for q in range(4)] + [I(f"v_add_f32 v{vL[q]}, v{vL[q]}, v{168+q}") for q in range(4)]
    R += [I(f"v_rcp_f32 v{RCP+2*q}, v{vL[q]}", lo=7) for q in range(4)] + [I(f"v_cmp_ngt_f32 {S2(80+2*q)}, s{sThr}, v{vL[q]}") for q in range(4)]
    spread(R, 7, 24 if OPT["smf"] else 17)
    for it in R: it.hi = 95
    es = []; sts = []; dx1 = dma_x(1)
    for u in range(NE0):
        e = epi_unit(u, False); e[0].lo = 16 * (u // 4) + 2 * (u % 4) + 1 + 8; e[10].lo = e[0].lo + 8
        if OPT["hold"] and u >= NE0 - 3:
            x = e.pop(); x.after = [e[-1], dx1[-1]]; x.target = 92; sts.append(x)
        es += e
    spread(es, 22 if OPT['smf'] else 15, 94, range(B15, B15 + 9))
    fl = Is(f"""s_or_b64 s[80:81], s[80:81], s[82:83]
s_or_b64 s[84:85], s[84:85], s[86:87]
s_or_b64 s[80:81], s[80:81], s[84:85]
s_or_b32 s80, s80, s81
s_or_b32 s{sFlag}, s{sFlag}, s80
s_lshl_b32 s80, s{sWave}, 2
s_add_u32 s80, s80, {FLO}
v_mov_b32 v160, s80
v_mov_b32 v161, s{sFlag}
v_mov_b32 v162, {FLO}""") + [Ins("ds_write_b32 v160, v161")]
    fl[-1].cost = 8
    fl[0].after = [x for x in R if x.text.startswith("v_cmp")][-1:]; fl[0].dly = 2
    early = fl
    f1 = I(f"ds_read_b128 {V4(164)}, v162", dst=regs("v", 164, 4), lo=B15 + 1, target=B15 + 3)
    f2 = WAIT(lneed=regs("v", 164, 4), lo=88, target=88)
    f3 = Is("v_or_b32 v164, v164, v165\nv_or3_b32 v164, v164, v166, v167")
    f4 = I(f"v_readfirstlane_b32 s{sAll}, v164", after=[f3[1]])
    for x in f3 + [f4]: x.target = 89
    B["pv15"] = phase("pv15", 41, "v", mf_pv(41, 1), reads_v(41, X1)[NPRE_V:], reads_v(0, slot(0))[:NPRE_V], "v", {f"L{slot(0)}", f"L{slot(2)}"} | XALL(0),
                      early, dx1, [R + es, [f1, f2] + f3 + [f4], sts], bg=B15, dend=90 if OPT['hold'] else None) + stamp(5)
    B["br"] = stamp(6) + Is(f"s_cmp_lg_u32 s{sMode}, 0\ns_cselect_b32 s{sAll}, 0, s{sAll}\ns_cmp_eq_u32 s{sItem}, 0\ns_cbranch_scc1 K1_MID")
    B["mid"] = Is("K1_MID:") + reads_x(0) + Is(f"""s_mov_b32 s{sItem}, 1
s_mov_b32 s{sCp}, s{sCo}
s_cmp_ge_u32 s{sBk}, {OPT['adn']}
s_cselect_b32 s{sSel}, 63, {OPT['m1']}
s_mov_b64 {S2(sXn)}, {S2(sWoP)}
s_mov_b32 s{sXnum}, s{sK2n}
s_mov_b64 {S2(sNb)}, {S2(sN2)}
s_mov_b32 s{sNnum}, {(TILE if OPT['wsh'] == 2 else 2*TILE)*OPT['wop']}
s_mov_b64 {S2(sMask)}, -1
s_add_u32 s{sP1}, s{sN2}, {TILE if OPT['wsh'] == 2 else 2*TILE}
s_addc_u32 s{sP1+1}, s{sN2+1}, 0
s_mov_b32 s{sP1+2}, {(6144 if OPT['wsh'] == 2 else 12288)*OPT['wop']}
s_lshl_b32 s{sPfo}, s{sWave}, 11
s_add_u32 s{sK}, s{sK}, {16*393216}
s_addc_u32 s{sK+1}, s{sK+1}, 0
s_add_u32 s{sV}, s{sV}, {16*393216}
s_addc_u32 s{sV+1}, s{sV+1}, 0""")
    k2tr, k2lay = oproj(B, NE0); k2trace = k2tr[0]; k2idle = ["k2pro", "k2idle"]
    X = Is(f"""K1_MAXPASS:
v_and_b32 v{vT}, 15, v0
v_lshrrev_b32 v{vT+1}, 4, v0
v_mul_u32_u24 v{vT}, 384, v{vT}
v_lshl_add_u32 v{vT}, v{vT+1}, 4, v{vT}
s_mov_b32 s{sT}, 0""") + [I(f"v_mov_b32 v{vMi[q]}, 0xff800000") for q in range(4)] + Is("K1_MAXL:")
    for s in range(6): X.append(I(f"buffer_load_dwordx4 {V4(SP+4*s)}, v{vT}, {S4(sDA)}, s{sT} offen offset:{s*64}"))
    X.append(I("s_waitcnt vmcnt(0)"))
    for qt in range(4):
        for s in range(6): X.append(mfma(V4(SP + 32 + 4 * qt), V4(SP + 4 * s), V4(Qf(qt, s)), V4(SP + 32 + 4 * qt) if s else "0"))
    X.append(I("s_nop 7"))
    for qt in range(4):
        d = SP + 32 + 4 * qt
        X += Is(f"v_max3_f32 v{vMi[qt]}, v{vMi[qt]}, v{d}, v{d+1}\nv_max3_f32 v{vMi[qt]}, v{vMi[qt]}, v{d+2}, v{d+3}")
    X += Is(f"s_add_u32 s{sT}, s{sT}, 6144\ns_cmp_lt_u32 s{sT}, 393216\ns_cbranch_scc1 K1_MAXL\ns_branch K1_MAXRET")
    B["maxpass"] = X
    item = ["item"] + [f"w{n}" for n in range(10)] + ["cvt", "qk0", "peel"] + ["loop"] * 6 + ["last", "tail", "pv15", "br"]
    k_ = item.index("loop")
    item0 = item[:k_] + ["loopa", "loopa", "loop", "loopa", "loop", "loopa"] + item[k_ + 6:] if two else item
    if not two: assert OPT["me"] == 0 and OPT["mo"] == 0
    trace = ["entry", "pro"] + item0 + ["mid"] + item + k2trace
    layout = ["entry", "pro", "mid", "item"] + [f"w{n}" for n in range(10)] + ["cvt", "qk0", "peel", "loop", "loope", "last", "tail", "pv15", "br", *k2lay, "loopa", "loopx", "k2side", "k2idle", "maxpass"]
    for t_ in k2tr: resolve_waits(B, trace[:-5] + t_)
    for it in B["loop"] + B["peel"]:
        if it.text == "WAITBAR": it.vcnt = min(it.vcnt, OPT["vmx"])
    txt = {k: "\n".join(emit(v)).split("\n") for k, v in B.items()}
    errs = verify([l for b in trace for l in txt[b]])
    tr2 = ["entry", "pro"] + item[:12] + ["maxpass", "maxpass"] + item[12:]
    errs += verify([l for b in tr2 for l in txt[b]])
    errs += verify([l for b in ["entry", "pro"] + item + ["mid"] + item + k2idle for l in txt[b]])
    for t_ in k2tr:
        errs += verify([l for b in item[-4:] + t_ for l in txt[b]])
        errs += verify([l.replace("K1_KVX", "K2_X") for b in t_ for l in txt[b]])
        errs += verify([l for b in t_[:4] + ["k2wx" + t_[-1][-1], t_[-1]] for l in txt[b]])
    for e in errs: sys.stderr.write("K1 HAZARD " + e + "\n")
    note = {
        "entry": "entry / set-up of descriptors and per-lane addresses; first loads",
        "mid": "between the two heads of this workgroup",
        "w0": "Q projection: ten k phases of 64; Wq tiles and x rows arrive by LDS-DMA; the previous head's O is normalised and stored underneath",
        "cvt": "scale Q by log2(e)/sqrt(192), round to bf16, arrange as MFMA operand",
        "qk0": "first key tile: row max of its first 16 keys (or the exact max in the redo pass) becomes the softmax shift",
        "peel": "key tile 1 / value tile 0",
        "loop": "attention main loop, two 64-key tiles per trip: S^T = K Q^T - m, P = exp2(S), O^T += V^T P^T, l += 1^T P^T; softmax fully under the MFMAs",
        "last": "last key tiles; next head's (or the projection's) first tiles are fetched",
        "pv15": "last value tile; 1/l, overflow check of the shift, first O fragments leave",
        "k2pro": "output projection: tile 320x128 per workgroup, K split over four workgroups",
        "k2bodyo": "projection, odd K halves (22 steps)", "k2bodye": "projection, even K halves (26 steps)",
        "k2epio": "collect the partners' quarters", "k2epie": "collect the partners' quarters",
        "loopa": "same loop for the first head with part of the softmax issued back to back: lower peak draw while the supply settles",
        "k2side": "rare paths: redo with the exact row max, waits on hand-offs",
        "k2idle": "workgroups without a projection tile",
        "maxpass": "exact row max over all keys (redo pass only)"}
    return [l for b in layout for l in ([f"; ---- {note[b]}"] if b in note else []) + txt[b] if l], errs

def oproj1(B, NE0, X, N):
    vR = [[1, 2, 3, 4], [5, 6, 7, 8]]; vOf = 9; vSt = 10; vFl = 11; vRd = 12; t0, t1, t2, t3 = 13, 14, 15, 16; vP2 = 17; vLp = 18; vOne = 19
    KS = [X0, X1, RING]; EX = 65536; SEL = 32
    uq = lambda u: [("a", Oacc(2 * (u // 4) + h, u % 4)) for h in range(2)]
    OF = {}
    def Of(d, kb, qt): return OF[d, kb, qt]
    M = OPT["mrg"] - (N & 1); DM = N - M; MD = list(range(DM, N)); U = (N - 1) >> 1
    src = lambda d: (d, 0) if d < 24 else (d - (N - 24), 1)
    NT = OPT["k2n"]; u0 = max(NE0 + OPT["k2e"], 11); left = list(range(u0, 24))
    frs = [(d, kb, qt) for d in range(N) for kb in range(2) for qt in range(5)]
    A0 = OPT["adv0"]; rate = (10 * N - 15 - 10 * A0) / (DM - 1 - A0 + OPT["advf"] / 100.0)
    cum = lambda d: 15 + 10 * (d + 1) if d < A0 else min(10 * N, int(round(15 + 10 * A0 + rate * (d + 1 - A0))))
    OS = {d: frs[(cum(d - 1) if d >= 0 else 0):cum(d)] for d in range(-1, DM)}
    pool = [("v", 224 + 4 * i) for i in range(8)] + [q for u in range(u0) for q in uq(u)]
    for d in range(-1, DM):
        for f in OS[d]: OF[f] = pool.pop(0)
        if d >= 0: pool += [OF[d, kb, qt] for kb in range(2) for qt in range(5)] + [q for u in left[d * NT:(d + 1) * NT] for q in uq(u)]
    RDQ = pool
    CK = {min(d for d in OS if any(f[0] >= m for f in OS[d])): m for m in (12, 24) if m < N}
    R4 = lambda r: f"{r[0]}[{r[1]}:{r[1]+3}]"
    Oset = lambda d, kbs=(0, 1): set().union(*[regs(*Of(d, kb, qt), 4) for kb in kbs for qt in range(5)])
    def acc(t, qt): return 64 + 4 * (t * 5 + qt)
    def wq(f): return 192 + 4 * (f % 16)
    sW_ = sX; sOo = 8; sOut = 12; sXs = 20; sFl = 28
    sTt = 46; sC1 = 51; sC1w = 50; sXo = [32, 33, 34, 35]; sTs = 39; sXr = 24; sGx = 40; sGs = 54; sFo = 55
    def wdma(u, h):
        d_, fo = src(2 * u)
        off = (d_ * 64 + (3072 - 768 if d_ >= 12 else 0) + fo * 1536) * 1280
        out = [I(f"s_add_u32 m0, s{sXoff}, {KS[u % 3] + h*4096}")]
        for j in range(4 * h, 4 * h + 4):
            out += [I(f"s_mov_b32 s{sTt}, {off + j*10240 - (j % 4)*1024}"),
                    I(f"buffer_load_dwordx4 v{vDx}, {S4(sW_)}, s{sTt} offen offset:{(j % 4)*1024} lds", dst={f"X{u%3}_{j>>1}"})]
        return out
    Wt = lambda u: {f"X{u%3}_{q}" for q in range(4)}
    def oload(fs):
        out = []; cur = None
        for (d, kb, qt) in fs:
            off = (2 * src(d)[0] + kb + 96 * src(d)[1]) * 122880 + (qt // 4) * 4096
            if off != cur: out.append(I(f"s_mov_b32 s{sTt}, {off}")); cur = off
            out.append(I(f"buffer_load_dwordx4 {R4(Of(d, kb, qt))}, v{vOf}, {S4(sOo)}, s{sTt} offen offset:{(qt % 4)*1024} sc1", dst=regs(*Of(d, kb, qt), 4)))
        return out
    def wreads(ds):
        out = []; f = 0
        for t in range(8):
            for d in ds:
                base = KS[(d >> 1) % 3]; w = 1 if base == X1 else 0
                for kb in range(2):
                    r = wq(f)
                    for hf in range(2):
                        it = I(f"ds_read_b64_tr_b16 a[{r+2*hf}:{r+2*hf+1}], v{vR[w][t & 3]} offset:{base - w*X1 + (d & 1)*16384 + (t >> 2)*8192 + (4*kb+2*hf)*1024}", dst=regs("a", r + 2 * hf, 2)); it.f = f
                        out.append(it)
                    f += 1
        return out
    NP = 8; G = 60
    P = [WAIT(vneed=regs("v", vPoll, 4))] + Is(f"""
v_min_u32 v{t0}, v{vPoll}, v{vPoll+1}
s_cmp_lg_u32 s{sAll}, 0
v_readfirstlane_b32 s89, v{t0}
s_cbranch_scc1 K1_REDO
v_lshlrev_b32 v{vOf}, 4, v0
s_mov_b64 {S2(sOo)}, {S2(sK2O)}
s_mov_b32 s{sOo+2}, {143*122880+5*1024}
s_mov_b32 s{sOo+3}, 0x20000
s_cmp_lt_u32 s89, 32
s_cbranch_scc1 K2_SPIN0
K2_RET0:
s_cmp_ge_u32 s{sWg}, 240
s_cbranch_scc1 K2_IDLE""")
    B["k2pro"] = P
    common = lambda: Is(f"""
s_and_b32 s{sC1}, s{sWg}, 7
s_lshl_b32 s{sC1}, s{sC1}, 7
s_add_u32 s{sC1}, s{sC1}, 64
s_cmp_eq_u32 s{sWave}, 0
s_cselect_b32 s{sC1w}, s{sC1}, 0x10000
s_add_u32 s{sFl}, s{sWsP}, {FLG}
s_addc_u32 s{sFl+1}, s{sWsP+1}, 0
s_mov_b32 s{sFl+2}, {256*128}
s_mov_b32 s{sFl+3}, 0x20000
v_mov_b32 v{vOne}, 1
v_mov_b32 v{RCP+1}, v{RCP}
v_mov_b32 v{RCP+3}, v{RCP+2}
v_mov_b32 v{RCP+5}, v{RCP+4}
v_mov_b32 v{RCP+7}, v{RCP+6}""")
    r0 = vR[0][0]
    assert NE0 >= 4
    ld = oload(OS[-1])
    H = Is(f"""
v_lshrrev_b32 v{t2}, 5, v0
v_lshlrev_b32 v{r0}, 10, v{t2}
v_bfe_u32 v{t2}, v0, 2, 3
v_lshl_add_u32 v{r0}, v{t2}, 7, v{r0}
v_and_b32 v{t2}, 6, v{t2}
v_bfe_u32 v{t3}, v0, 1, 1
v_xor_b32 v{t2}, v{t2}, v{t3}
v_lshl_add_u32 v{r0}, v{t2}, 4, v{r0}
v_and_b32 v{t2}, 1, v0
v_lshl_add_u32 v{r0}, v{t2}, 3, v{r0}
s_andn2_b32 s88, 8, s{sWg}
s_lshl_b32 s88, s88, 3
v_xor_b32 v{r0}, s88, v{r0}
v_xor_b32 v{vR[0][1]}, 32, v{r0}
v_xor_b32 v{vR[0][2]}, 64, v{r0}
v_xor_b32 v{vR[0][3]}, 96, v{r0}""") + wreads([0])[:NP] + [I(f"v_add_u32 v{vR[1][i]}, {X1}, v{vR[0][i]}") for i in range(4)] + common()
    pair = lambda a, b: Ins(a + "\n" + b, kind="bar")
    late = Is(f"""
s_mov_b64 {S2(sOut)}, {S2(sOutP)}
s_mov_b32 s{sOut+2}, {79*2560+64}
s_mov_b32 s{sOut+3}, 0x20000""") + [pair(f"s_add_u32 s{sXs}, s{sWsP}, {XCH}", f"s_addc_u32 s{sXs+1}, s{sWsP+1}, 0")] + Is(f"""
s_mov_b32 s{sXs+2}, {960*15360}
s_mov_b32 s{sXs+3}, 0x20000
s_lshl2_add_u32 s88, s{sWg}, s{sWave}
s_mul_i32 s{sXo[0]}, s88, 15360
s_xor_b32 s89, s88, 32
s_mul_i32 s{sXo[1]}, s89, 15360
s_xor_b32 s89, s88, 4
s_mul_i32 s{sXo[2]}, s89, 15360
s_xor_b32 s89, s88, 36
s_mul_i32 s{sXo[3]}, s89, 15360
s_mul_i32 s88, s{sWave}, 5120
s_add_u32 s88, s88, {EX}
v_add_u32 v{vRd}, s88, v{vOf}
v_and_b32 v{t0}, 15, v0
v_lshrrev_b32 v{t1}, 4, v0
v_lshl_add_u32 v{t2}, v{t0}, 2, v{t1}
v_lshlrev_b32 v{t2}, 4, v{t2}
v_add_u32 v{vLp}, s88, v{t2}
v_lshlrev_b32 v{t1}, 2, v{t1}
v_sub_u32 v{t0}, v{t0}, v{t1}
v_and_b32 v{t1}, 1, v{t0}
v_lshlrev_b32 v{t1}, 4, v{t1}
v_mov_b32 v{t2}, 0x3f80
v_lshlrev_b32 v{t1}, v{t1}, v{t2}
v_lshrrev_b32 v{t0}, 1, v{t0}""")
    c0 = I(f"v_cmp_eq_u32 s[84:85], 0, v{t0}"); c1 = I(f"v_cmp_eq_u32 s[86:87], 1, v{t0}")
    late += [c0, c1, I(f"v_mov_b32 v{SEL+2}, 0"), I(f"v_mov_b32 v{SEL+3}, 0"), I(f"v_cndmask_b32 v{SEL}, 0, v{t1}, s[84:85]"), I(f"v_cndmask_b32 v{SEL+1}, 0, v{t1}, s[86:87]")]
    late += Is(f"""v_mov_b32 v{SEL+4}, 0
v_mov_b32 v{SEL+5}, 0
v_mov_b32 v{SEL+6}, v{SEL}
v_mov_b32 v{SEL+7}, v{SEL+1}
v_lshrrev_b32 v{t0}, 2, v0
v_and_b32 v{t1}, 3, v0
v_mul_u32_u24 v{vSt}, 2560, v{t0}
v_lshl_add_u32 v{vSt}, v{t1}, 4, v{vSt}
v_min_u32 v{t1}, 2, v0
v_add_u32 v{t1}, 1, v{t1}
v_and_b32 v{t0}, 1, v{t1}
v_lshrrev_b32 v{t1}, 1, v{t1}
v_lshl_or_b32 v{t0}, v{t0}, 3, v{t1}
v_xor_b32 v{t0}, s{sWg}, v{t0}
v_lshlrev_b32 v{vFl}, 7, v{t0}
v_min_u32 v{t1}, 2, v0
v_lshl_add_u32 v{vFl}, v{t1}, 2, v{vFl}
s_add_u32 s{sXo[2]}, s{sXo[2]}, 5120
s_add_u32 s{sXo[3]}, s{sXo[3]}, 10240
s_mov_b32 s{sGx}, 0
s_lshl_b32 s{sFo}, s{sWg}, 7""") + [pair(f"s_cmp_eq_u32 s{sWave}, 0", f"s_cselect_b32 s{sFo}, s{sFo}, 0x10000")] + Is("""""") + (Is("v_mov_b32 v22, v31\nv_mov_b32 v23, v31") if OPT["stamps"] else [])
    held = {0: []}
    for u in range(NE0, u0):
        e = epi_unit(u, True, True)
        if u >= u0 - NT: held[0].append(e.pop())
        H += e
    H0 = H; H = []; gap = OPT["hgap"]
    for k, x in enumerate(H0):
        if k % gap == 0:
            while ld:
                y = ld.pop(0); H.append(y)
                if y.kind == "vmem": break
        H.append(x)
    H += ld + [WAIT(lneed=regs("a", wq(0), 8), vneed=Oset(0))] + stamp(49)
    body = {}
    for d in range(N):
        body[d] = []; held[d + 1] = []
        for u in left[d * NT:(d + 1) * NT]:
            e = epi_unit(u, False, True); held[d + 1].append(e.pop()); body[d] += e
    SG = (max(d for d in held if held[d]) + 1) | (0 if OPT['sge'] else 1)
    assert SG <= 7
    poll = f"buffer_load_dword v{t2}, v{vFl}, {S4(sFl)}, 0 offen sc1"
    RD = lambda rho, qt: RDQ[qt * 3 + rho - 1]
    def rload(rho, so):
        out = []
        for qt in range(5):
            if qt == 4: out.append(I(f"s_add_u32 s{sTt}, s{so}, 4096"))
            out.append(I(f"buffer_load_dwordx4 {R4(RD(rho, qt))}, v{vOf}, {S4(sXs)}, s{sTt if qt == 4 else so} offen offset:{(qt % 4)*1024} sc1", dst=regs(*RD(rho, qt), 4)))
        return out
    radd = lambda rhos, qt: [mfma(V4(acc(6 + h, qt)), V4(SEL + 4 * h), R4(RD(rho, qt)), V4(acc(6 + h, qt))) for h in range(2) for rho in rhos]
    flag = lambda off: Ins(f"s_mov_b64 exec, 1\nbuffer_store_dword v{vOne}, off, {S4(sFl)}, s{sFo} offset:{off} sc1\ns_mov_b64 exec, -1", kind="vmem")
    def mfs(ds):
        mf = []; n = 2 * len(ds)
        for t in range(8):
            for qt in range(5):
                ks = [(i, d, kb) for i, (d, kb) in enumerate((d, kb) for d in ds for kb in range(2))]
                if qt & 1 and len(ds) > 1: ks.reverse()
                for (i, d, kb) in ks:
                    a = acc(t, qt)
                    mf.append(mfma(V4(a), A4(wq(n * t + i)), R4(Of(d, kb, qt)), "0" if (d == 0 and kb == 0) else V4(a)))
        return mf
    def step(d):
        own = wreads([d])[NP:]; pre = d == DM - 1
        nx = MD if pre else [d + 1]
        nxt = wreads(nx)[:max(NP, 4 * len(nx))]
        hasb = (d & 1) or pre or d == SG
        ws = [WAIT(lneed=regs("a", wq(2 * t), 8), lo=10 * t - 3, hi=10 * t - 1, target=10 * t - 2) for t in range(1, 7 if hasb else 8)]
        ws.append(WAIT(lneed=regs("a", wq(0), 8 * len(nx)), vneed=set().union(*[Oset(x) for x in nx]), lo=78, hi=79, target=78.5))
        g = G - 6 if pre and M > 2 else G
        spread(own, 0, g - 6)
        for it in own: it.hi = min(it.hi, 10 * (it.f >> 1) - 7); it.target = min(it.target, it.hi - 1)
        rs = own; nov = ()
        if hasb:
            bar = BAR(Wt(U if pre else (d + 1) >> 1) | ({"OST"} if d == SG else set()), lo=g, hi=g); rs = rs + [bar]; nov = range(g, g + 9)
            for it in nxt: it.after = [bar]
        spread(nxt, g + 1, 73 if pre else 76)
        vm = []
        cadr = lambda m: f"s{sC1}" + (" offset:128" if m == 24 else "")
        if d in CK: vm += [I(f"buffer_load_dword v{vP2}, off, {S4(sFl)}, {cadr(CK[d])} sc1", dst={f"v{vP2}"})]
        if d % 4 == 3 or pre: vm += codepf()
        fs = OS[d]; k2_ = len([f for f in fs if f[0] < CK.get(d, 99)]); k = min(5, k2_)
        vm += oload(fs[:k]) + held[d]
        for x in WS.get(d, []): vm += wdma(*x)
        if d in CK:
            vm += oload(fs[k:k2_]); k = k2_
            rf = I(f"v_readfirstlane_b32 s88, v{vP2}")
            ck = [WAIT(vneed={f"v{vP2}"}), rf, Ins(f"s_cmp_lt_u32 s88, 32\ns_cbranch_scc1 K2_SPIN{CK[d]}{X}\nK2_RET{CK[d]}{X}:", kind="bar", after=[rf], dly=2)]
            n1 = len(vm); vm += ck
        vm += oload(fs[k:])
        if d == SG:
            at = atomic(vOne, sC1w, sFl); at.after = [bar]; vm.append(at)
        if d in CK:
            n_a = sum(x.kind == "vmem" for x in vm[:n1]); n_b = sum(x.kind == "vmem" for x in vm[n1:])
            c_ = max(OPT["ckg"], int(76 * n_a / (n_a + n_b)) - 4)
            if hasb and g - 5 < c_ < g + 9: c_ = g + 9 if n_b <= 3 else g - 5
            even(vm[:n1], 0, c_, [g]); even(vm[n1 + 3:], c_ + 5, 80, [g])
            for x in ck: x.lo = c_; x.target = c_; x.hi = c_ + 4
        else: even(vm, 0, int(0.8 * OPT["advf"]) if pre else 80, [g])
        es = body[d]
        if es:
            for k in range(len(es) // 20): es[20 * k].after = [held[d][k]] if NT == 3 else held[d][-1:]; es[20 * k].dly = 1
            spread(es, held[d][0].lo + 2, 79, nov)
        if d == 14: es = spread(late, 0, 79); assert d not in CK
        return schedule(mfs([d]), [ws, rs + nxt, vm, es], novalu=nov, name=f"k2s{d}{X}") + (stamp(50) if d == 5 else stamp(47, True) if d == 13 else stamp(56) if pre else [])
    WS = {d: [((d >> 1) + 2, d & 1)] for d in range(2 * (U - 1))}
    if 2 * U - 3 >= DM - 1: WS[2 * U - 4] += WS.pop(2 * U - 3)
    assert max(WS) < DM - 1
    def final():
        n = 2 * M; T = 5 * n
        own = wreads(MD)[max(NP, 2 * n):]
        for it in own:
            t, i = divmod(it.f, n)
            it.target = T * (t - 1) + i * (T - 9) / n; it.hi = T * t - 7
            if it.f >= 16: it.lo = T * ((it.f - 16) // n) + 4 * n + (it.f - 16) % n
        ws = [WAIT(lneed=set().union(*[regs("a", wq(n * t + i), 4) for i in range(n)]), lo=T * t - 3, hi=T * t - 1, target=T * t - 2) for t in range(1, 8)]
        sn = []
        for jl in range(3):
            for qt in range(5):
                a, b = acc(2 * jl, qt), acc(2 * jl + 1, qt)
                c = Is(f"""v_cvt_pk_bf16_f32 v{a}, v{a}, v{a+1}
v_cvt_pk_bf16_f32 v{a+1}, v{a+2}, v{a+3}
v_cvt_pk_bf16_f32 v{a+2}, v{b}, v{b+1}
v_cvt_pk_bf16_f32 v{a+3}, v{b+2}, v{b+3}""")
                if qt in (0, 4): c.append(I(f"s_add_u32 s{sTs}, s{sXo[0]}, {(2 - jl)*5120 + (qt // 4)*4096}"))
                c.append(I(f"buffer_store_dwordx4 {V4(a)}, v{vOf}, {S4(sXs)}, s{sTs} offen offset:{(qt % 4)*1024} sc1", dst={f"SN{jl}"}))
                lo = T * (2 * jl + 1) + n * (qt + 1) - 1 + 8
                for k, x in enumerate(c): x.lo = lo if k >= 2 else lo - 8; x.target = lo + k * 0.5 - 1
                sn += c
        ev = []; nov = []
        for jl in range(3):
            F = min(2 * T * (jl + 1) + 12 + OPT["fag"], 8 * T - OPT["fbg"])
            b_ = Ins("WAITBAR", kind="bar", vneed={f"SN{jl}"}, lo=F, hi=F); f_ = flag(4 * (2 - jl)); f_.after = [b_]; f_.target = F + 1; f_.hi = F + 3
            for x in sn[jl * len(sn) // 3:(jl + 1) * len(sn) // 3]: x.hi = F - 1
            ev += [b_, f_]; nov += range(F, F + 9)
        P1 = 8 * T - OPT["p1g"]; NS = OPT["nsp"]
        c = I(f"v_cmp_eq_u32 s[84:85], 1, v{t2}")
        sp = [I(poll, dst={f"v{t2}"}, lo=P1), WAIT(vneed={f"v{t2}"}, lo=P1 + 56), c, I(f"s_and_b32 s{sGx}, s84, {(0, 4, 6, 7)[NS]}", after=[c], dly=2)] if NS else []
        for x in sp[2:]: x.target = P1 + 57
        ld = []
        for rho in (3, 2, 1)[:NS]: ld += [pair(f"s_bitcmp1_b32 s{sGx}, {rho-1}", f"s_cselect_b32 s{sGs}, s{sXo[rho]}, 0x80000000")] + rload(rho, sGs)
        spread(ld, P1 + 62, min(8 * T - 2, P1 + 62 + 20 * NS))
        PL = 8 * T - OPT["plg"]
        ld.insert(len([x for x in ld if x.target < PL]), I(poll, dst={f"v{t2}"}, lo=PL))
        return schedule(mfs(MD), [ws, own, sn, ev, sp + ld], novalu=nov, name="k2fin")
    if "k2head" not in B: B["k2head"] = H + [x for d in range(A0) for x in step(d)] + (Is(f"s_bitcmp0_b32 s{sWg}, 0\ns_cbranch_scc1 K2_BODYe") if OPT["asy"] else [])
    assert SG < A0 and min(CK) >= A0
    B["k2body" + X] = Is(f"K2_BODY{X}:") + [x for d in range(A0, DM) for x in step(d)] + final()
    sys.stderr.write(f"[k2] SG {SG} CK {CK} loads/step {[len(OS[d]) for d in sorted(OS)]} spare quads {len(RDQ)}\n")
    E = stamp(51) + (Is(f"v_writelane_b32 v22, s{sSp}, 61\ns_getreg_b32 s87, hwreg(HW_REG_XCC_ID)\nv_writelane_b32 v22, s87, 62\nv_writelane_b32 v22, s{sBk}, 59\ns_memrealtime s[90:91]\ns_waitcnt lgkmcnt(0)\nv_writelane_b32 v22, s90, 63") if OPT["stamps"] in (6, 7, 8) else [])
    def rel(L):
        for x in L: x.text = re.sub(r"\b(K2_WX|K2_W1|K2_W2|K2_W3|K2_GO|K2_PS)\b", r"\1" + X, x.text)
        return L
    xadd = lambda: [x for qt in range(5) for x in radd((2, 3), qt)]
    E += stamp(52) + Is(f"s_cmp_eq_u32 s{sGx}, 7\ns_cbranch_scc1 K2_GO") + [WAIT(vneed={f"v{t2}"})] + Is(f"""K2_PS:
v_cmp_eq_u32 s[84:85], 1, v{t2}
s_add_u32 s{sSp}, s{sSp}, 1
s_cmp_gt_u32 s{sSp}, 0x40000
s_nop 0
s_cselect_b32 s84, 7, s84
s_andn2_b32 s85, s84, s{sGx}
s_or_b32 s{sGx}, s{sGx}, s84
s_and_b32 s{sGx}, s{sGx}, 7""")
    for rho in (3, 2, 1): E += Is(f"s_bitcmp0_b32 s85, {rho-1}\ns_cbranch_scc1 K2_W{rho}") + rload(rho, sXo[rho]) + Is(f"K2_W{rho}:")
    E += Is(f"s_cmp_lg_u32 s{sGx}, 7\ns_cbranch_scc1 K2_WX")
    B["k2epi" + X] = rel(E)
    B["k2wx" + X] = rel(Is(f"K2_WX:\n{poll}\ns_waitcnt vmcnt(0)\ns_branch K2_PS"))
    E = Is("K2_GO:") + stamp(53)
    def fin(qt):
        a, b = acc(6, qt), acc(7, qt)
        return Is(f"""v_cvt_pk_bf16_f32 v{a}, v{a}, v{a+1}
v_cvt_pk_bf16_f32 v{a+1}, v{a+2}, v{a+3}
v_cvt_pk_bf16_f32 v{a+2}, v{b}, v{b+1}
v_cvt_pk_bf16_f32 v{a+3}, v{b+2}, v{b+3}
s_nop 1
v_permlane16_swap_b32 v{a}, v{a+2}
v_permlane16_swap_b32 v{a+1}, v{a+3}
ds_write_b128 v{vLp}, {V4(a)} offset:{qt*1024}""") + [I(f"ds_read_b128 {V4(144+4*qt)}, v{vRd} offset:{qt*1024}", dst=regs("v", 144 + 4 * qt, 4))]
    out = lambda qt: [I(f"s_mov_b32 s87, {qt*16*2560}"), WAIT(lneed=regs("v", 144 + 4 * qt, 4)), I(f"buffer_store_dwordx4 {V4(144+4*qt)}, v{vSt}, {S4(sOut)}, s87 offen")]
    for qt in range(5):
        E += Is(f"s_waitcnt vmcnt({4 - qt})") + radd((3, 2, 1), qt)
        if qt >= 1: E += fin(qt - 1)
    E += out(0) + out(1) + out(2) + fin(4) + out(3) + out(4)
    E += stamp(54) + (Is(f"v_writelane_b32 v22, s{sSp}, 60\nv_writelane_b32 v23, s87, 60") if OPT["stamps"] else [])
    B["k2fin" + X] = rel(E) + (Is("s_branch K1_DONE") if OPT["stamps"] else Is("s_endpgm"))
    B["k2end"] = Is("K1_DONE:") + stamp_out(S2(sKA), sWg, sWave, t0, 0x4000000) + (Is(f"""s_cmp_lg_u32 s{sWg}, 17
s_cbranch_scc1 K1_END
s_cmp_lg_u32 s{sWave}, 0
s_cbranch_scc1 K1_END
v_readlane_b32 s84, v22, {OPT["enc"] >> 8}
v_readlane_b32 s85, v22, {OPT["enc"] & 255}
s_memrealtime s[86:87]
s_waitcnt lgkmcnt(0)
s_sub_u32 s85, s85, s84
{'s_mul_i32 s85, s85, 2000' if OPT['enc'] == 0x3d3e else 's_lshr_b32 s85, s85, 1'}
s_min_u32 s85, s85, 150000
s_add_u32 s85, s85, 1000
K1_ENC:
s_memrealtime s[90:91]
s_waitcnt lgkmcnt(0)
s_sub_u32 s90, s90, s86
s_cmp_lt_u32 s90, s85
s_cbranch_scc1 K1_ENC""") if OPT["enc"] else []) + Is("K1_END:\ns_endpgm")
    spin = lambda nm, ret, ld, rd: Is(f"""{nm}:
s_add_u32 s{sSp}, s{sSp}, 1
s_cmp_gt_u32 s{sSp}, 0x40000
s_cbranch_scc1 {ret}
s_sleep 4
{ld}
s_waitcnt vmcnt(0)
{rd}
s_nop 3
s_cmp_lt_u32 s88, 32
s_cbranch_scc1 {nm}
s_branch {ret}""")
    B["k2side"] = Is(f"""K1_REDO:
s_mov_b32 s{sMode}, 1
s_waitcnt vmcnt(0) lgkmcnt(0)
s_barrier""") + B["kre"] + spin("K2_SPIN0", "K2_RET0", f"buffer_load_dwordx2 v[{vPoll}:{vPoll+1}], off, {S4(sDb)}, s{sCo} sc1", f"v_min_u32 v{t0}, v{vPoll}, v{vPoll+1}\ns_nop 0\nv_readfirstlane_b32 s88, v{t0}")
    B["k2sp" + X] = [x for m in CK.values() for x in spin(f"K2_SPIN{m}{X}", f"K2_RET{m}{X}", f"buffer_load_dword v{vP2}, off, {S4(sFl)}, s{sC1}" + (" offset:128" if m == 24 else "") + " sc1", f"v_readfirstlane_b32 s88, v{vP2}")]
    D = Is("K2_IDLE:") + common()
    for u in range(NE0, 24): D += epi_unit(u, True)
    D += Is("s_waitcnt vmcnt(0)\ns_barrier") + [atomic(vOne, sC1w, sFl)]
    if OPT["wsh"] == 2:
        D += Is(f"""s_bfe_u32 s80, s{sWg}, 0x10001
s_bfe_u32 s81, s{sWg}, 0x10003
s_lshl1_add_u32 s80, s81, s80
s_add_u32 s81, s80, 60
s_mul_i32 s81, s81, 30720
s_sub_u32 s81, {3072*1280}, s81
s_add_u32 s{sOo}, s{sNb}, s81
s_addc_u32 s{sOo+1}, s{sNb+1}, 0
s_mov_b32 s{sOo+2}, {1536*1280}
s_lshl_b32 s80, s80, 14
K2_PFL:""")
        for h in range(2): D += Is(f"s_add_u32 s81, s80, {h*768*1280}") + [I(f"buffer_load_dword v{64+j}, v{vO}, {S4(sOo)}, s81 offen offset:{j*1024}", dst={f"v{64+j}"}) for j in range(4)]
        D += Is(f"""s_add_u32 s80, s80, 65536
s_waitcnt vmcnt(24)
s_cmp_lt_u32 s80, {768*1280}
s_cbranch_scc1 K2_PFL""")
    D += (Is("v_mov_b32 v22, v31\nv_mov_b32 v23, v31") if OPT["stamps"] else []) + (stamp(54) if OPT["stamps"] == 9 else []) + Is("s_branch K1_DONE")
    B["k2idle"] = D
    return ["k2pro", "k2head", "k2body" + X, "k2epi" + X, "k2fin" + X]

def oproj(B, NE0):
    a = OPT["asy"]
    tr = [oproj1(B, NE0, "o", 24 - a)] + ([oproj1(B, NE0, "e", 24 + a)] if a else [])
    lay = ["k2pro", "k2head"] + [b + x for x in ("oe" if a else "o") for b in ("k2body", "k2epi", "k2fin", "k2wx", "k2sp")] + ["k2end"]
    return tr, lay

def desc(name, vg=512, acc=256):
    return f""".p2align 6
.amdhsa_kernel {name}
  .amdhsa_next_free_vgpr {vg}
  .amdhsa_next_free_sgpr 102
  .amdhsa_accum_offset {acc}
  .amdhsa_group_segment_fixed_size 0
  .amdhsa_kernarg_size 104
  .amdhsa_user_sgpr_count 2
  .amdhsa_user_sgpr_kernarg_segment_ptr 1
  .amdhsa_system_sgpr_workgroup_id_x 1
  .amdhsa_float_denorm_mode_32 3
.end_amdhsa_kernel"""

def main():
    k1, e1 = kernel1()
    ref = open("cdna_kernels/" + NAME + ".s.ref").read().split("\n")
    head = [l for l in ref if l.startswith(";") and "@launch" not in l]
    nm = NAME + "_kernel"
    out = head + [f"; @launch grid=(256,1,1) block=(256,1,1) lds=163840"] + """;
; One persistent workgroup per CU (4 waves, 64 query rows each, 512 registers, 16x16x32 bf16 MFMA).
;   per workgroup: two heads of one (branch, batch): Q projection -> flash attention -> O (bf16, fragment order) to d_ws
;   then the output projection in the same launch, behind counters (d_debug, d_ws) that order the hand-offs.
; Softmax shift = true max of the first keys of each row; the row sums are checked at the end and, if the shift was
; too small for any row (sum >= 2^60 or not finite), the workgroup redoes its heads with the exact row max.
; Written by a generator script (static instruction placement between the MFMAs, counted waits).""".split("\n") + ['.amdgcn_target "amdgcn-amd-amdhsa--gfx950"', ".text"]
    out += [f".globl {nm}", ".p2align 8", f".type {nm},@function", f"{nm}:"] + k1
    out += ["K_CODE_END:", "s_endpgm", '.section .rodata,"a"', desc(nm)]
    open(sys.argv[1], "w").write("\n".join(out) + "\n")
    if e1: sys.exit(1)
main()
```

```python
import sys, math, re
from asmlib import *
from verify import verify

OPT = dict(stamps=0, enc=0, ne0=6, ne1=15, xpf=0, vpf=0, vp9=4, nc9=7, na0=2, bg15=60, cw8=4, cpw=0x88, pskip=2,
           xq=3, xp=2, yq=0, yp=0, pq=0, pp=0, me=0x3f, m1=0, adp=9, adn=2,
           k2n=3, mrg=4, adv0=8, advf=55, asy=2, fag=62, fbg=12, plg=45, ckg=52,
           c0=6, c1=2, c2=8, c3=2, c4=11, c5=3, c6=12, c7=4)
for a in sys.argv[2:]:
    k, v = a.split("="); assert k in OPT, k; OPT[k] = int(v, 0)
NAME = "concat_heads__gqa_block_cached__gqa_block_cached__near_ridge"
MF = "v_mfma_f32_16x16x32_bf16"
def I(t, **kw): return Ins(t, **kw)
def Is(txt): return [Ins(t.strip()) for t in txt.strip().split("\n") if t.strip()]
def mfma(d, a, b, c): return Ins(f"{MF} {d}, {a}, {b}, {c}")
def V4(b): return f"v[{b}:{b+3}]"
def A4(b): return f"a[{b}:{b+3}]"

TILE = 24576; WS = 64 * 12288
X0 = 0; RING = 32768; X1 = 131072
def slot(i): return RING + i * TILE
vK = [[1, 2], [3, 4]]; KW = [0, 65536]
vV = [[5, 6, 7, 8], [9, 10, 11, 12]]; VW = [32768, 98304]
vXr = [[13, 14], [15, 16]]
vIx = 17; vDw1 = 18; vDkv = 19; vDw = 20; vDx = 21; vO = 22; vO3 = 23
vL = [24, 25, 26, 27]; vMi = [40, 41, 42, 43]; vT = 32
NEGM = 48; SP = 64; QF = 160
RCP = 48
def negm(qt): return NEGM + 4 * qt
def XY(par, kb, qt): return SP + 4 * (par * 8 + qt * 2 + kb)
def Z(kb, qt): return SP + 64 + 4 * (kb * 4 + qt)
def Qf(qt, s): return QF + 4 * (qt * 6 + s)
def Qb(qt, s):
    return SP + 4 * (qt * 6 + s)
def Oacc(t, qt): return 4 * (t * 4 + qt)
def Xf(n, kb, qt): return 32 * (n & 1) + 4 * (kb * 4 + qt)
FR = 192
def fq(n, f): return FR + 4 * ((f + 8 * (n & 1)) % 16)
sSel = 1; sBk = 3
sX = 4; sDA = 8; sDB = 12; sO = 16
sK = 20; sV = 22; sNb = 24; sNnum = 26
sA = 34; sB = 35; sAll = 36; sI = 39; sWoff = 40; sXoff = 41
sOs = [42, 43, 44, 45, 37, 38]; sT = 46; sItem = 47; sMode = 48; sFlag = 49; sC = 50
sWave = 52; sWg = 53; sT2 = 54; sT3 = 55; sThr = 56; sKA = 58
sP1 = 60; sWoP = 64; sOutP = 66; sWsP = 68; sSig = 70; sDb = 72; sCo = 76; sOn = 77; sSp = 78; sK2n = 79
sN2 = 98; sK2O = 100
vPf = 248; FLO = RING + 3 * TILE
FLG = 0x2e00000; XCH = 0x2f00000
def S4(b): return f"s[{b}:{b+3}]"
def S2(b): return f"s[{b}:{b+1}]"
BG = 76
NOV = range(BG, BG + 9)
NPRE_V = 10; NPRE_K = 6
OSTRIDE = 24 * 120 * 1024

def lastuse_pv(f): return 8 * (f >> 1) + 6 + (f & 1)
def lastuse_qk(f): kt, s = divmod(f, 6); return 24 * kt + 18 + (5 - s)

def reads_v(n, base):
    out = []
    for f in range(24):
        t, kb = f >> 1, f & 1
        r = fq(n, f)
        for hf in range(2):
            off = base + (4 * kb + 2 * hf) * 3072 + (t >> 2) * 1024
            w = 1 if off >= VW[1] else 0
            it = I(f"ds_read_b64_tr_b16 a[{r+2*hf}:{r+2*hf+1}], v{vV[w][t & 3]} offset:{off-VW[w]}", dst=regs("a", r + 2 * hf, 2)); it.f = f
            out.append(it)
    return out
def reads_k(n, base):
    out = []
    for f in range(24):
        kt, s = divmod(f, 6); r = fq(n, f)
        off = base + kt * 6144 + (s >> 1) * 1024
        w = 1 if off >= KW[1] else 0
        it = I(f"ds_read_b128 {A4(r)}, v{vK[w][s & 1]} offset:{off-KW[w]}", dst=regs("a", r, 4)); it.f = f
        out.append(it)
    return out
def reads_x(n):
    return [I(f"ds_read_b128 {A4(Xf(n, kb, qt))}, v{vXr[n & 1][kb]} offset:{qt*2048}", dst=regs("a", Xf(n, kb, qt), 4)) for qt in range(4) for kb in range(2)]

def dma(srd, soff, base, w=False):
    n = "" if w else " nt"; vD = [vDw, vDw1] if w else [vDkv, vDkv]
    out = []
    for p in range(3):
        m = I(f"s_add_u32 m0, s{sWoff}, {base + 896*p}")
        a = I(f"buffer_load_dwordx4 v{vD[0]}, {S4(srd)}, s{soff} offen offset:{p*128}{n} lds", dst={f"L{base}"}, after=[m])
        b = I(f"buffer_load_dwordx4 v{vD[1]}, {S4(srd)}, s{soff} offen offset:{p*128+3072}{n} lds", dst={f"L{base}"})
        out += [m, a, b]
    return out
def dma_w(m): return [I(f"s_mov_b32 s{sT2}, {m*WS}")] + dma(sDA, sT2, slot(m % 4), True)
def dma_k(i, base): return [I(f"s_mov_b32 s{sT2}, {i*TILE}")] + dma(sDA, sT2, base)
def dma_v(i, base): return [I(f"s_mov_b32 s{sT2}, {i*TILE}")] + dma(sDB, sT2, base)
def hd(d): return d[:-6]
def tl(d): return d[-6:]
def dma_x(n):
    out = []; base = X1 if n & 1 else X0
    for j in range(8):
        if j % 4 == 0: out.append(I(f"s_add_u32 m0, s{sXoff}, {base + j*1024}"))
        out.append(I(f"s_mov_b32 s{sT}, {j*10240 - (j % 4)*1024 + n*128}"))
        out.append(I(f"buffer_load_dwordx4 v{vDx}, {S4(sX)}, s{sT} offen offset:{(j % 4)*1024} lds", dst={f"X{n&1}_{j>>1}"}))
    return out
def take(L, n):
    out = []
    while L and n:
        x = L.pop(0); out.append(x); n -= x.kind == "vmem"
        x.after = [y for y in x.after if y in out]
    return out

def phase(name, n, typ, mf, own, nxt, nxt_typ, pub, early, dmas, extra=(), post=(), early_hi=None, bg=BG, dend=None, endx=frozenset(), endv=None):
    lu = lastuse_pv if typ == "v" else lastuse_qk
    N = len(mf)
    rs = []
    if typ == "v":
        k0 = 48 - len(own)
        for j, it in enumerate(own):
            it.target = j * (bg - 6) / len(own)
            it.hi = min(8 * (it.f >> 1) - 6, bg - 5)
            if it.f >= 16: it.lo = lu(it.f - 16)
            it.hi = max(it.hi, it.lo)
    else:
        for j, it in enumerate(own):
            kt, s = divmod(it.f, 6)
            it.target = 24 * (kt - 1) + 1 + s * 2.5; it.hi = 24 * kt - 8
            if it.f >= 16: it.lo = lu(it.f - 16)
    rs += own
    bar = BAR(pub if isinstance(pub, set) else {f"L{pub}"}, lo=bg, hi=bg); rs.append(bar)
    for j, it in enumerate(nxt):
        it.lo = max(bg + 1, lu(it.f + 8)); it.after = [bar]
        it.target = bg + 1 + (j * 1.8 if nxt_typ == "v" else j * 1.5); it.hi = N - 1 if nxt_typ == "v" and j >= 4 else N - 8
    rs += nxt
    ws = []
    if typ == "v":
        for t in range(1, 12):
            if 8 * t - 1 >= bg: break
            ws.append(WAIT(lneed=regs("a", fq(n, 2 * t), 4) | regs("a", fq(n, 2 * t + 1), 4), lo=8 * t - 3, hi=8 * t - 1, target=8 * t - 2))
    else:
        for kt in range(1, 4):
            ws.append(WAIT(lneed=set().union(*[regs("a", fq(n, 6 * kt + s), 4) for s in range(6)]), lo=24 * kt - 3, hi=24 * kt - 1, target=24 * kt - 2))
    nf = 2 if nxt_typ == "v" else 6
    ws.append(WAIT(lneed=set().union(*[regs("a", fq(n + 1, f), 4) for f in range(nf)]) | endx, vneed=endv, lo=N - 2, hi=N - 1, target=N - 1.5))
    ms = list(early)
    spread(ms, 1, early_hi or bg - 6)
    nv = sum(1 for it in dmas if it.kind == "vmem"); k = 0
    for it in dmas:
        it.lo = bg + 1 if it.kind == "vmem" else bg - 4
        it.target = bg + 2 + k * min(12.0, ((dend or N) - bg - 3) / max(nv, 1)) - (0 if it.kind == "vmem" else 2.5)
        if it.kind == "vmem": it.after = it.after + [bar]; k += 1
    ms += dmas
    for it in post: it.lo = bg + 1; it.target = N - 6
    ms += list(post)
    return schedule(mf, [ws, rs, ms] + list(extra), novalu=range(bg, bg + 9), name=name)

def softmax(groups, lo, hi, sub=None, skip=NOV):
    E = []; D = []; P = []
    for (par, kb, qt, l0, l1, h, sb_) in groups:
        x, z = XY(par, kb, qt), Z(kb, qt)
        src = [x, x + 1, x + 2, x + 3, z, z + 1, z + 2, z + 3]
        for pr in range(4):
            es = []
            for e in range(2):
                r = src[2 * pr + e]
                ex = I(f"v_exp_f32 v{r}, v{r}", lo=(l0, l1)[pr >> 1])
                if sb_:
                    sb = I(f"v_add_f32 v{r}, v{r}, v{negm(qt)}", after=[sub[qt]] if sub else [], lo=(l0, l1)[pr >> 1]); sb.ex = ex; P.append(sb); ex.after = [sb]
                E.append(ex); es.append(ex)
            D.append(I(f"v_cvt_pk_bf16_f32 v{x+pr}, v{src[2*pr]}, v{src[2*pr+1]}", after=es, hi=h))
    spread(E, lo, hi, skip)
    for e in E: e.hi = 10**9
    for d in D:
        d.target = max(a.target for a in d.after) + 1
        for a in d.after: a.hi = d.hi - 1
    for p in P: p.target = p.ex.target - 3; p.hi = p.ex.hi - 1
    return [P, E, D]
def g_old(par, kb, qts, N, inqk):
    return [(par, kb, qt, 0, 0, (48 * kb + 24 + 6 * qt - 1) if inqk else N - 1, False) for qt in qts]
def g_new(par, qts):
    return [(par, 0, qt, 6 * qt + 13, 24 + 6 * qt + 13, 95, False) for qt in qts]

def mf_w(n):
    out = []
    for t in range(12):
        for qt in range(4):
            d = Qf(qt, t >> 1) if t % 2 == 0 else Qb(qt, t >> 1)
            for kb in range(2):
                out.append(mfma(V4(d), A4(fq(n, 2 * t + kb)), A4(Xf(n, kb, qt)), "0" if (n == 0 and kb == 0) else V4(d)))
    return out
def mf_qk(n, par, first=False):
    out = []
    for kt in range(4):
        for qt in range(4):
            d = XY(par, kt >> 1, qt) if kt % 2 == 0 else Z(kt >> 1, qt)
            order = range(6) if qt % 2 == 0 else range(5, -1, -1)
            for j, s in enumerate(order):
                c = V4(d) if j else ("0" if (first and kt < 2) else V4(negm(qt)))
                out.append(mfma(V4(d), A4(fq(n, 6 * kt + s)), V4(Qf(qt, s)), c))
    return out
def mf_l(par, first=False):
    return [Ins(f"v_smfmac_f32_16x16x64_bf16 {V4(vL[0])}, {V4(32 + 4*qt)}, v[{XY(par, 0, qt)}:{XY(par, 0, qt)+7}], v{vIx}", kind="mfma") for qt in range(4)]
def mf_pv(n, par, first=False):
    out = []
    for t in range(12):
        for qt in range(4):
            for kb in range(2):
                out.append(mfma(A4(Oacc(t, qt)), A4(fq(n, 2 * t + kb)), V4(XY(par, kb, qt)), "0" if (first and kb == 0) else A4(Oacc(t, qt))))
    return out

ETMP = [32, 40, 56]
def epi_unit(u, packed, k2=False):
    s, qt = divmod(u, 4)
    tb = ETMP[u % 3]
    out = []
    rc = RCP + 2 * qt
    for h in range(2):
        for j in range(4): out.append(I(f"v_accvgpr_read_b32 v{tb+4*h+j}, a{Oacc(2*s+h, qt)+j}"))
        if packed:
            for j in range(2): out.append(I(f"v_pk_mul_f32 v[{tb+4*h+2*j}:{tb+4*h+2*j+1}], v[{tb+4*h+2*j}:{tb+4*h+2*j+1}], v[{rc}:{rc+1}]"))
        else:
            for j in range(4): out.append(I(f"v_mul_f32 v{tb+4*h+j}, v{tb+4*h+j}, v{rc}"))
        for j in range(2): out.append(I(f"v_cvt_pk_bf16_f32 v{tb+2*h+j}, v{tb+4*h+2*j}, v{tb+4*h+2*j+1}"))
    out.append(I(f"buffer_store_dwordx4 {V4(tb)}, v{vO3 if qt == 3 else vO}, {S4(sO)}, s{sOs[s]} offen offset:{qt*1024}" + " sc1", dst={"OST"}))
    return out
def cvt_unit(s, qt, packed):
    a, b = Qf(qt, s), Qb(qt, s)
    out = []
    if packed:
        for r in (a, a + 2, b, b + 2): out.append(I(f"v_pk_mul_f32 v[{r}:{r+1}], v[{r}:{r+1}], {S2(sC)}"))
    else:
        for r in (a, a + 1, a + 2, a + 3, b, b + 1, b + 2, b + 3): out.append(I(f"v_mul_f32 v{r}, s{sC}, v{r}"))
    out += Is(f"""v_cvt_pk_bf16_f32 v{a}, v{a}, v{a+1}
v_cvt_pk_bf16_f32 v{a+1}, v{a+2}, v{a+3}
v_cvt_pk_bf16_f32 v{a+2}, v{b}, v{b+1}
v_cvt_pk_bf16_f32 v{a+3}, v{b+2}, v{b+3}""")
    sw = Is(f"v_permlane16_swap_b32 v{a}, v{a+2}\nv_permlane16_swap_b32 v{a+1}, v{a+3}")
    return out, sw

def pf():
    return [I(f"v_add_u32 v{vPf}, s{sXoff}, v{vO}")] + [I(f"buffer_load_dwordx4 {V4(252)}, v{vPf}, {S4(sP1)}, " + ("0" if j < 4 else f"s{sT3}") + f" offen offset:{(j % 4)*1024}", dst=regs("v", 252, 4)) for j in range(6)]

def atomic(v, so, srd=None):
    it = Ins(f"s_mov_b64 exec, 1\nbuffer_atomic_add v{v}, off, {S4(srd or sDb)}, s{so}\ns_mov_b64 exec, -1", kind="vmem"); it.cost = 8
    return it
def codepf():
    return [I("global_load_dword v30, v[28:29], off", dst={"v30"})]

def lin(items):
    out = []
    for k, it in enumerate(items):
        out.append(it)
        if it.text.startswith("s_add_u32 m0") and items[k + 1].kind == "vmem": out.append(I("s_nop 0"))
    return out

def stamp(idx, k2=False):
    if not OPT["stamps"]: return []
    if OPT["stamps"] == 9:
        if idx not in (48, 54): return []
        return Is(f"s_memrealtime s[94:95]\ns_waitcnt lgkmcnt(0)\nv_writelane_b32 v{31 if idx == 48 else 22}, s94, {idx}")
    va, vb = (22, 23) if idx >= 51 else (31, 31) if OPT['stamps'] >= 6 else (46, 47)
    if idx == -2: sel = "s_add_u32 s92, s39, 31"
    elif idx < 0: sel = f"s_mul_i32 s92, s{sItem}, 24\ns_add_u32 s92, s92, s{sI}\ns_add_u32 s92, s92, 8"
    else: sel = f"s_mov_b32 s92, {idx}" if (k2 or idx >= 48) else f"s_mul_i32 s92, s{sItem}, 24\ns_add_u32 s92, s92, {idx}"
    return Is(f"""s_memtime s[90:91]
s_memrealtime s[94:95]
s_waitcnt lgkmcnt(0)
s_cselect_b32 s96, 1, 0
{sel}
s_mov_b32 s93, m0
s_mov_b32 m0, s92
v_writelane_b32 v{vb}, s94, m0
v_writelane_b32 v{va}, s90, m0
s_mov_b32 m0, s93
s_cmp_lg_u32 s96, 0""")
def stamp_out(karg, wg, wave, tmp, base, k2=False):
    if not OPT["stamps"]: return []
    va = 22
    return Is(f"""s_load_dwordx2 s[80:81], {karg}, 96
s_waitcnt lgkmcnt(0)
s_add_u32 s80, s80, {base}
s_addc_u32 s81, s81, 0
s_mov_b32 s82, 0x100000
s_mov_b32 s83, 0x20000
s_lshl_b32 s84, s{wg}, 2
s_add_u32 s84, s84, s{wave}
s_lshl_b32 s84, s84, 9
v_lshlrev_b32 v{tmp}, 3, v0
buffer_store_dwordx2 v[{va}:{va+1}], v{tmp}, s[80:83], s84 offen""")


def pst(idx):
    if OPT["stamps"] != 8: return []
    return Is(f"s_memtime s[28:29]\ns_waitcnt lgkmcnt(0)\nv_writelane_b32 v31, s28, {idx}") if idx < 18 else stamp(idx, True)
def kernel1():
    B = {}
    c = math.log2(math.e) / math.sqrt(192.0)
    import struct
    cbits = struct.unpack("<I", struct.pack("<f", c))[0]
    kload = lambda b: Is(f"s_load_dwordx16 s[4:19], {b}, 0\ns_load_dwordx8 s[20:27], {b}, 64\ns_load_dwordx2 {S2(sWsP)}, {b}, 96")
    B["kre"] = kload(S2(sKA)) + Is("s_branch K1_PRO")
    B["entry"] = Is("s_cmp_ge_u32 s2, 256\ns_cbranch_scc1 K1_END") + kload("s[0:1]") + Is(f"""
v_lshrrev_b32 v{vT}, 6, v0
v_and_b32 v0, 63, v0
s_mov_b32 s{sWg}, s2
v_readfirstlane_b32 s{sWave}, v{vT}
s_mov_b64 {S2(sKA)}, s[0:1]
s_mov_b32 s{sMode}, 0
s_mov_b32 s{sSig}, 0""") + stamp(48)
    cpa = Is(f"""
s_getpc_b64 s[90:91]
K1_PC:
s_lshr_b32 s86, s{sWg}, 3
s_lshl2_add_u32 s86, s86, s{sWave}
s_lshl_b32 s86, s86, 10
v_lshl_add_u32 v28, v0, 4, s86
v_min_u32 v28, (K_CODE_END-K1_PC-32)&0xfffffff0, v28
s_and_b32 s90, s90, 0xfffffff0
v_mov_b32 v29, s91
v_add_co_u32 v28, vcc, s90, v28
s_mov_b32 s{sSp}, 0
s_nop 0
v_addc_co_u32 v29, vcc, 0, v29, vcc""") + codepf()
    t0, t1, t2, t3 = vT, vT + 1, vT + 2, vT + 3
    P = Is(f"""K1_PRO:
s_lshr_b32 s82, s{sWg}, 6
s_and_b32 s83, s{sWg}, 2
s_lshl1_add_u32 s81, s83, s82
s_mul_i32 s82, s81, 307200
s_lshl_b32 s{sXoff}, s{sWave}, 13
s_lshl_b32 s86, s{sWave}, 6
v_lshrrev_b32 v{t0}, 3, v0
v_and_b32 v{t1}, 7, v0
v_and_b32 v{t2}, 6, v{t0}
v_xor_b32 v{t1}, v{t1}, v{t2}
v_add_u32 v{t2}, s86, v{t0}
v_mul_u32_u24 v{vDx}, 1280, v{t2}
v_lshl_add_u32 v{vDx}, v{t1}, 4, v{vDx}
s_bfe_u32 s{sT3}, s{sWg}, 0x10002
s_waitcnt lgkmcnt(0)
s_cselect_b64 s[92:93], s[16:17], s[6:7]
s_cselect_b64 s[4:5], s[14:15], s[4:5]
s_add_u32 s{sX}, s4, s82
s_addc_u32 s{sX+1}, s5, 0
s_mov_b32 s{sX+2}, 307200
s_mov_b32 s{sX+3}, 0x20000""") + pst(16) + dma_x(0) + cpa + Is(f"""
s_cmp_eq_u32 s{sT3}, 0
s_cselect_b64 s[94:95], s[8:9], s[18:19]
s_cselect_b64 s[96:97], s[10:11], s[20:21]
s_cselect_b64 {S2(sWoP)}, s[12:13], s[22:23]
s_mov_b64 {S2(sOutP)}, s[24:25]
s_mov_b64 {S2(sDb)}, s[26:27]
s_lshr_b32 s91, s{sWg}, 3
s_and_b32 s88, s{sWg}, 1
s_and_b32 s89, s91, 7
s_lshl3_add_u32 s80, s88, s89
s_mul_i32 s84, s80, 384
s_mul_i32 s{sWoff}, s{sWave}, 6144
v_mul_u32_u24 v{vDkv}, 384, v{t0}
v_lshl_add_u32 v{vDkv}, v{t1}, 4, v{vDkv}
v_add_u32 v{vDkv}, s{sWoff}, v{vDkv}
v_and_b32 v{t2}, 4, v{t1}
v_and_b32 v{t3}, 1, v{t1}
v_lshl_or_b32 v{t2}, v{t3}, 1, v{t2}
v_bfe_u32 v{t3}, v{t1}, 1, 1
v_or_b32 v{t1}, v{t2}, v{t3}
v_and_b32 v{t2}, 3, v{t0}
v_lshrrev_b32 v{t3}, 2, v{t0}
v_lshl_add_u32 v{t2}, v{t3}, 3, v{t2}
s_lshr_b32 s86, s{sWave}, 1
s_lshl_b32 s86, s86, 5
s_and_b32 s87, s{sWave}, 1
s_lshl2_add_u32 s86, s87, s86
v_add_u32 v{t2}, s86, v{t2}
v_mul_u32_u24 v{vDw}, 12288, v{t2}
v_lshl_add_u32 v{vDw}, v{t1}, 4, v{vDw}
v_add_u32 v{vDw1}, {196608-3072}, v{vDw}
s_add_u32 s{sDA}, s96, s84
s_addc_u32 s{sDA+1}, s97, 0
s_sub_u32 s{sDA+2}, 7864320, s84
s_mov_b32 s{sDA+3}, 0x20000
""")
    P0 = P
    P = Is(f"""
s_lshl_b32 s83, s81, 5
s_add_u32 s83, s83, s80
s_mul_i32 s83, s83, 393216
s_lshl_b32 s85, s{sT3}, 5
s_lshl_b32 s86, s88, 4
s_add_u32 s85, s85, s86
s_add_u32 s85, s85, s89
s_and_b32 s86, s89, 4
s_add_u32 s85, s85, s86
s_mul_i32 s85, s85, 720
s_mul_i32 s86, s81, 15
s_add_u32 s85, s85, s86
s_lshl_b32 s85, s85, 10
s_and_b32 s88, s{sWg}, 3
s_lshl_b32 s89, s91, 2
s_add_u32 s88, s88, s89
s_add_u32 s{sK}, s92, s83
s_addc_u32 s{sK+1}, s93, 0
s_add_u32 s{sV}, s94, s83
s_addc_u32 s{sV+1}, s95, 0
s_mov_b32 s{sDb+2}, 256
s_mov_b32 s{sDb+3}, 0x20000
s_bfe_u32 s{sCo}, s{sWg}, 0x20001
s_lshl_b32 s{sCo}, s{sCo}, 6
s_cmp_eq_u32 s{sSig}, 0
s_cselect_b32 s{sOn}, {5*122880+15*1024}, 0
s_add_u32 s{sNb}, s{sDA}, 6144
s_addc_u32 s{sNb+1}, s{sDA+1}, 0
s_sub_u32 s{sNnum}, s{sDA+2}, 6144
s_lshr_b32 s86, s88, 1
s_and_b32 s87, s88, 1
s_lshl_b32 s87, s87, 6
s_add_u32 s86, s86, s87
s_mul_i32 s86, s86, 30720
s_add_u32 s{sN2}, s{sWoP}, s86
s_addc_u32 s{sN2+1}, s{sWoP+1}, 0
s_mul_i32 s86, s88, {4*12288}
s_add_u32 s86, s86, {128*12288+6144}
s_add_u32 s{sP1}, s96, s86
s_addc_u32 s{sP1+1}, s97, 0
s_mov_b32 s{sP1+2}, {3*12288+6144}
s_mov_b32 s{sP1+3}, 0x20000
s_mov_b32 s{sT3}, 4096
s_add_u32 s{sO}, s{sWsP}, s85
s_addc_u32 s{sO+1}, s{sWsP+1}, 0
s_sub_u32 s{sO}, s{sO}, {OSTRIDE}
s_subb_u32 s{sO+1}, s{sO+1}, 0
s_mov_b32 s{sO+2}, 0
s_mov_b32 s{sO+3}, 0x20000
s_lshl_b32 s86, s{sWg}, 7
s_add_u32 s86, s86, {FLG}
s_add_u32 s{sDB}, s{sWsP}, s86
s_addc_u32 s{sDB+1}, s{sWsP+1}, 0
s_cmp_eq_u32 s{sMode}, 0
s_cselect_b32 s{sDB+2}, 128, 0
s_mov_b32 s{sDB+3}, 0x20000
s_mov_b32 s{sItem}, 0
s_mov_b32 s{sFlag}, 0
s_mov_b32 s{sSel}, {OPT['me']}
s_mov_b32 s{sBk}, 0
s_lshr_b32 s80, s{sWg}, 4
s_mul_i32 s84, s80, 52
s_lshr_b32 s84, s84, 8
s_mul_i32 s85, s84, 5
s_sub_u32 s85, s80, s85
s_and_b32 s81, s{sWg}, 1
s_bfe_u32 s89, s{sWg}, 0x10003
s_lshl1_add_u32 s89, s81, s89
s_and_b32 s82, s{sWave}, 1
s_lshr_b32 s83, s{sWave}, 1
s_xor_b32 s86, s81, s82
s_xor_b32 s86, s86, 1
s_lshl_b32 s86, s86, 7
s_lshl_b32 s87, s85, 8
s_add_u32 s86, s86, s87
s_mul_i32 s87, s83, {64*1280}
s_add_u32 s86, s86, s87
s_mul_i32 s87, s89, {768*1280}
s_add_u32 s86, s86, s87
s_add_u32 s{sWoP}, s{sWoP}, s86
s_addc_u32 s{sWoP+1}, s{sWoP+1}, 0
s_sub_u32 s{sK2n}, 7864320, s86
s_cmp_lt_u32 s80, 15
s_cselect_b32 s{sK2n}, s{sK2n}, 0
s_bfe_u32 s86, s{sWg}, 0x10001
s_mul_i32 s86, s86, 60
s_mul_i32 s87, s84, 20
s_add_u32 s86, s86, s87
s_mul_i32 s87, s{sWave}, 5
s_add_u32 s86, s86, s87
s_bfe_u32 s87, s{sWg}, 0x10002
s_lshl2_add_u32 s88, s87, s89
s_mul_i32 s88, s88, {48*120}
s_add_u32 s88, s88, s86
s_lshl_b32 s88, s88, 10
s_add_u32 s{sK2O}, s{sWsP}, s88
s_addc_u32 s{sK2O+1}, s{sWsP+1}, 0
s_mul_i32 s88, s86, {16*2560}
s_mul_i32 s87, s87, 1280
s_add_u32 s88, s88, s87
s_lshl_b32 s87, s85, 8
s_add_u32 s88, s88, s87
s_lshl_b32 s87, s89, 6
s_add_u32 s88, s88, s87
s_add_u32 s{sOutP}, s{sOutP}, s88
s_addc_u32 s{sOutP+1}, s{sOutP+1}, 0
s_mov_b32 s{sC}, {cbits:#x}
s_mov_b32 s{sC+1}, {cbits:#x}
s_mov_b32 s{sThr}, 0x5d800000
""") + [I(f"s_mov_b32 s{sOs[s]}, {s*122880}") for s in range(6)]
    kb0, vb0 = vK[0][0], vV[0][0]
    P += Is(f"""
v_and_b32 v{t0}, 15, v0
v_lshrrev_b32 v{t1}, 4, v0
v_and_b32 v{t2}, 6, v{t0}
v_xor_b32 v{t3}, v{t2}, v{t1}
v_lshlrev_b32 v{t3}, 4, v{t3}
v_lshl_add_u32 v{vXr[0][0]}, v{t0}, 7, v{t3}
v_add_u32 v{vXr[0][0]}, s{sXoff}, v{vXr[0][0]}
v_xor_b32 v{vXr[0][1]}, 64, v{vXr[0][0]}
v_add_u32 v{vXr[1][0]}, {X1}, v{vXr[0][0]}
v_add_u32 v{vXr[1][1]}, {X1}, v{vXr[0][1]}
v_lshrrev_b32 v{t2}, 3, v{t0}
v_mul_u32_u24 v{kb0}, 3072, v{t2}
v_and_b32 v{t2}, 7, v{t0}
v_lshl_add_u32 v{kb0}, v{t2}, 7, v{kb0}
v_add_u32 v{kb0}, v{kb0}, v{t3}
v_xor_b32 v{vK[0][1]}, 64, v{kb0}
v_add_u32 v{vK[1][0]}, {KW[1]}, v{kb0}
v_add_u32 v{vK[1][1]}, {KW[1]}, v{vK[0][1]}
v_lshrrev_b32 v{t2}, 5, v0
v_mul_u32_u24 v{vb0}, 3072, v{t2}
v_bfe_u32 v{t2}, v0, 2, 3
v_lshl_add_u32 v{vb0}, v{t2}, 7, v{vb0}
v_and_b32 v{t2}, 6, v{t2}
v_bfe_u32 v{t3}, v0, 1, 1
v_xor_b32 v{t2}, v{t2}, v{t3}
v_lshl_add_u32 v{vb0}, v{t2}, 4, v{vb0}
v_and_b32 v{t2}, 1, v0
v_lshl_add_u32 v{vb0}, v{t2}, 3, v{vb0}
v_add_u32 v{vb0}, {VW[0]}, v{vb0}
v_xor_b32 v{vV[0][1]}, 32, v{vb0}
v_xor_b32 v{vV[0][2]}, 64, v{vb0}
v_xor_b32 v{vV[0][3]}, 96, v{vb0}
""") + [I(f"v_add_u32 v{vV[1][i]}, {VW[1]-VW[0]}, v{vV[0][i]}") for i in range(4)] + Is(f"""
v_bfe_i32 v{t2}, v0, 2, 1
v_and_b32 v{t2}, 0xaaaaaaaa, v{t2}
v_or_b32 v{vIx}, 0x44444444, v{t2}
s_lshl_b32 s86, s{sWave}, 12
v_lshlrev_b32 v{vO}, 4, v0
v_add_u32 v{vO}, s86, v{vO}
s_cmp_eq_u32 s{sWave}, 3
s_cselect_b32 s86, 0x80000000, 0
v_add_u32 v{vO3}, s86, v{vO}
""")
    P += [I(f"v_mov_b32 v{vL[q]}, 0") for q in range(4)]
    ld = lin(dma_w(0)) + lin(dma_w(1)) + dma_x(1) + lin(hd(dma_w(2)))
    rest = P; P = P0; nv = 0
    for x in ld:
        P.append(x)
        if x.kind == "vmem":
            nv += 1; c_ = 0
            while rest and nv > OPT["pskip"] and (c_ < 9 or rest[0].text.split()[0] in ("s_addc_u32", "s_subb_u32", "s_cselect_b32", "s_cselect_b64")):
                P.append(rest.pop(0)); c_ += 1
    P += rest + pst(19)
    P += [I(f"buffer_store_dwordx4 {V4(vL[0])}, v{vO}, {S4(sDB)}, 0 offen sc1", dst={"OST"})]
    XALL = lambda n: {f"X{n&1}_{q}" for q in range(4)}
    P += [WAIT(vneed=XALL(0) | {f"L{slot(0)}"})] + reads_x(0) + Is("s_barrier")
    B["pro"] = P + pst(20) + reads_v(0, slot(0))[:NPRE_V]
    B["item"] = Is("K1_ITEM:") + stamp(0) + [WAIT(lzero=True)]
    NE0 = OPT["ne0"]
    EW = {0: list(range(NE0, 8))}
    rest = list(range(8, 24)); per = [3, 3, 2, 2, 2, 2, 2]
    for n in range(1, 8): EW[n] = rest[:per[n - 1]]; rest = rest[per[n - 1]:]
    NC9 = OPT["nc9"]
    cunits = [(s, qt) for s in range(6) for qt in range(4)]
    wpf = [I(f"buffer_load_dword v30, v{vO}, s[84:87], " + ("0" if j < 4 else "s88") + f" offen offset:{(j % 4)*1024}", dst={"v30"}) for j in range(8)] if OPT["vpf"] else []
    cold = dma_k(0, X0) + dma_k(1, slot(2)) + dma_v(0, slot(3)); C8 = OPT["cw8"]
    cut = lambda p: 10 * (p // 3) + (0, 4, 7)[p % 3]
    pairs = lambda a, b: cold[cut(a):cut(b)]
    for n in range(10):
        own = reads_v(n, slot(n % 4))[NPRE_V:]
        early = []; extra = []; post = []; endx = set()
        if n < 9: nxt = reads_v(n + 1, slot((n + 1) % 4))[:NPRE_V]; nt_ = "v"; pub = slot((n + 1) % 4)
        else: nxt = reads_k(10, X0)[:NPRE_K]; nt_ = "k"; pub = X0
        if n < 8: early += tl(dma_w(n + 2))
        if n == 8: early += pairs(1, 1 + C8)
        if n == 9: early += pairs(2 + C8, 8)
        if n == 7:
            early += Is(f"""s_mov_b64 {S2(sDA)}, {S2(sK)}
s_mov_b32 s{sDA+2}, 393216
s_mov_b64 {S2(sDB)}, {S2(sV)}
s_mov_b32 s{sDB+2}, 393216""")
        if n < 8: early += dma_x(n + 2)
        if (OPT['cpw'] >> n) & 1: early += codepf()
        if n == 8: post = Is(f"""s_mov_b32 s83, 0xff800000
s_cmp_eq_u32 s{sWave}, 3
s_cselect_b32 s82, 0x71000000, s83
v_mov_b32 v{vMi[0]}, s83
v_mov_b32 v{vMi[1]}, s83
v_mov_b32 v{vMi[2]}, s83
v_mov_b32 v{vMi[3]}, s82""")
        if n == 8 and OPT["vpf"]: early += Is(f"""s_cmp_eq_u32 s{sItem}, 0
s_cselect_b32 s84, {3072*1280}, 0
s_cselect_b32 s86, {OPT["vpf"] & 1}, {OPT["vpf"] >> 1}
s_mul_i32 s86, s86, 30720
s_add_u32 s84, s{sN2}, s84
s_addc_u32 s85, s{sN2+1}, 0
s_mov_b32 s87, 0x20000
s_mov_b32 s88, 16384""")
        if n == 9 and OPT["vpf"]: extra.append(spread(wpf[:OPT["vp9"]], 50, 96, [BG]))
        es = []; sts = []; us = EW.get(n, [])
        for u in us:
            e = epi_unit(u, False)
            if u >= us[-1] - 2:
                x = e.pop(); x.after = [e[-1], early[-1]]; sts.append(x)
            es += e
        late0 = n == 0 and NE0 < 6
        if es: extra.append(spread(es, 0, (BG + 14 if late0 else 70) if n == 0 else 90, NOV))
        if sts: extra.append(spread(sts, 72, 96, [BG]))
        if n < 9:
            xr = reads_x(n + 1); st = []
            for q in range(4):
                if q % 2 == 0: st.append(WAIT(vneed={f"X{(n+1)&1}_{q}", f"X{(n+1)&1}_{q+1}"}))
                st += xr[2 * q:2 * q + 2]
            spread(st, 46, BG - 5)
            if n == 0:
                for q in range(4):
                    la = [x for x in es if x.text.endswith(f" a{Oacc(3, q) + 3}")]
                    for it in xr[2 * q:2 * q + 2]:
                        it.after = la
                        if q == 3 and late0: it.lo = BG + 1; it.hi = 88; it.target = BG + 4
                    if la: la[0].hi = BG - 1 if q == 3 and late0 else BG - 8
                endx = regs("a", Xf(1, 0, 0), 32)
            extra.append(st)
        if n == 9:
            pub = {f"L{X0}", "OST"}
        if n == 9 and NC9:
            cs = []; sw = []
            for (s, qt) in cunits[:NC9]:
                a, b = cvt_unit(s, qt, False)
                a[0].lo = 16 * s + 8 + 2 * qt + 1 + 8
                for x in b: x.after = [a[-1]]; x.dly = 1
                cs += a; sw += b
            spread(cs, 17, 92, NOV)
            for x in sw: x.target = x.after[0].target + 2
            extra += [cs, sw]
        d = hd(dma_w(n + 3)) if n < 7 else pairs(0, 1) if n == 7 else pairs(1 + C8, 2 + C8) if n == 8 else pairs(8, 9)
        B[f"w{n}"] = (stamp(8 + n) if OPT["stamps"] == 7 else []) + phase(f"w{n}", n, "v", mf_w(n), own, nxt, nt_, pub, early, d, extra, early_hi=70, post=post, endx=endx)
    C = stamp(1) + wpf[OPT['vp9']:]; pend = []
    for k, (s, qt) in enumerate(cunits[NC9:]):
        a, b = cvt_unit(s, qt, True)
        C += a[:4] + pend + a[4:]; pend = b
    C += Is(f"s_cmp_lg_u32 s{sMode}, 0\ns_nop 0") + pend + Is("s_cbranch_scc1 K1_MAXPASS\nK1_MAXRET:\ns_nop 0") + stamp(2)
    B["cvt"] = C
    M = []; last = []
    for qt in range(4):
        x = XY(0, 0, qt); m = vT + 2 * qt; t = m + 1
        a = I(f"v_max3_f32 v{m}, v{x}, v{x+1}, v{x+2}", lo=6 * qt + 13)
        b = I(f"v_max3_f32 v{m}, v{m}, v{x+3}, v{vMi[qt]}")
        c_ = I(f"v_mov_b32 v{t}, v{m}")
        d = I(f"v_permlane16_swap_b32 v{m}, v{t}", after=[c_], dly=1)
        e = I(f"v_max_f32 v{m}, v{m}, v{t}")
        f = I(f"v_mov_b32 v{t}, v{m}")
        g = I(f"v_permlane32_swap_b32 v{m}, v{t}", after=[f], dly=1)
        h = I(f"v_max_f32 v{m}, v{m}, v{t}")
        ns = [I(f"v_sub_f32 v{negm(qt)+i}, 0, v{m}", hi=48 + 6 * qt - 3) for i in range(4)]
        st = [a, b, c_, d, e, f, g, h] + ns
        for j, it in enumerate(st): it.target = 6 * qt + 13 + j * 0.5
        M.append(st); last.append(ns[0])
    NA0 = OPT['na0']
    sm = softmax([(0, 0, qt, 0, 24 + 6 * qt + 13, 95, True) for qt in range(NA0)], 28, 93, sub=last)
    early = Is(f"""s_mov_b32 s{sA}, {3*TILE}
s_mov_b32 s{sB}, {2*TILE}
s_mov_b32 s{sI}, 0
s_add_u32 s{sO}, s{sO}, {OSTRIDE}
s_addc_u32 s{sO+1}, s{sO+1}, 0
s_mov_b32 s{sO+2}, s{sOn}
s_mov_b32 s{sOn}, {5*122880+15*1024}""") + dma_k(2, slot(0))
    hand = [WAIT(vneed={"v30"})] + Is(f"""v_mov_b32 v30, 1
s_and_b32 s80, s{sWg}, 1
s_lshl_b32 s80, s80, 2
s_add_u32 s80, s80, s{sCo}
s_cmp_eq_u32 s{sAll}, 0
s_cselect_b32 s81, s{sItem}, 0
s_cmp_lt_u32 s{sSig}, s81
s_cselect_b32 s80, s80, 0x1000
s_cselect_b32 s{sSig}, 1, s{sSig}
s_cmp_eq_u32 s{sWave}, 0
s_cselect_b32 s80, s80, 0x1000""") + [atomic(30, 80)]
    B["qk0"] = phase("qk0", 10, "k", mf_qk(10, 0, True), reads_k(10, X0)[NPRE_K:], reads_k(11, slot(2))[:NPRE_K], "k", slot(2), early,
                     hd(dma_v(1, slot(1))), M + sm, early_hi=70) + stamp(3)
    def half(nm, par, mode, xq=0, xp=0, probe=False, io=None):
        ks, vs, kn, vp = slot(2 * par), slot(2 * par + 1), slot(2 - 2 * par), slot(3 - 2 * par)
        last = mode == "last"; first = mode == "first"
        mp = mf_pv(12, 1 - par, first) + mf_l(1 - par) + (mf_l(1) if last and par else [])
        NP_ = len(mp)
        gq = g_old(1 - par, 1, range(4), 96, True); gp = g_old(par, 0, range(4), NP_, False); hq = BG - 2
        if first: gq = [g[:6] + (True,) for g in g_old(0, 0, range(NA0, 4), 96, True)] + gq; hq = 88
        if last and par == 0:
            gq = gq + g_new(0, [0]); hq = 93
            gp = g_old(0, 0, [1, 2, 3], NP_, False) + g_old(0, 1, [0, 1], NP_, False)
        if last and par:
            gq = g_old(0, 1, [2, 3], 96, True) + g_new(1, [0, 1, 2]); hq = 93
            gp = [(1, 0, 3, 0, 0, 97, False)] + [(1, 1, qt, 4, 6, NP_ - 7 + qt, False) for qt in range(4)]
        def burst(gs):
            if not gs: return []
            P_, E, D = softmax(gs, 0, 90); out = list(P_)
            for j in range(0, len(E), 2):
                out += E[j:j + 2] + (D[j // 2 - 1:j // 2] if j else [])
            return out + Is("s_nop 0") + D[-1:]
        bq = burst(gq[:xq]); gq = gq[xq:]; bp = burst(gp[:xp]); gp = gp[xp:]
        post = []
        if last: qe, qt_, pe, pt, qx, px = io
        else:
            qe = tl(dma_v(1, slot(1))) if first else (codepf() if par == 0 else []) + tl(dma(sDB, sB, vp)) + Is(f"s_add_u32 s{sB}, s{sB}, {TILE}")
            qt_ = hd(dma(sDA, sA, ks)); pe = tl(dma(sDA, sA, ks)) + Is(f"s_add_u32 s{sA}, s{sA}, {TILE}"); pt = hd(dma(sDB, sB, vs)); qx = []; px = []
            if par and not first: post = Is(f"s_add_u32 s{sI}, s{sI}, 1\ns_or_b32 s80, s{sSel}, 0x40\ns_bitcmp0_b32 s80, s{sI}")
        if probe:
            pe = pe + Is(f"s_getreg_b32 s80, hwreg(HW_REG_IB_STS, 0, 4)\ns_cmp_ge_u32 s80, {OPT['adp']}\ns_addc_u32 s{sBk}, s{sBk}, 0")
        if first:
            pe = hand + pe
            sel = Is("v_and_b32 v47, 3, v0\nv_mov_b32 v46, 0x3f803f80")
            for qt in range(4):
                c_ = I(f"v_cmp_eq_u32 s[86:87], {qt}, v47")
                sel += [c_, I(f"v_cndmask_b32 v{32+4*qt}, 0, v46, s[86:87]", after=[c_], dly=1)] + [I(f"v_mov_b32 v{32+4*qt+j}, v{32+4*qt}") for j in range(1, 4)]
            sel += [I(f"v_mov_b32 v{vL[q]}, 0") for q in range(4)]
            px = [spread(sel, 2, 92, NOV)]
        q = bq + phase("qk" + nm, 11, "k", mf_qk(11, par), reads_k(11, ks)[NPRE_K:], reads_v(12, vs)[:NPRE_V], "v", vs, qe, qt_,
                       softmax(gq, 0, hq) + qx, early_hi=72)
        if last and par: nxt, nty, pub = reads_v(41, X1)[:NPRE_V], "v", X1
        else: nxt, nty, pub = reads_k(11, kn)[:NPRE_K], "k", kn
        p = bp + phase("pv" + nm, 12, "v", mp, reads_v(12, vs)[NPRE_V:], nxt, nty, pub, pe, pt,
                       softmax(gp, 0, NP_ - (7 if last and par else 3)) + px, post=post, early_hi=72)
        return q + p
    st = lambda: stamp(-1) if OPT["stamps"] == 6 else []
    B["peel"] = half("1", 1, "first", OPT["pq"], OPT["pp"]) + Is(f"s_bitcmp1_b32 s{sSel}, 0\ns_cbranch_scc1 K1_LA")
    B["loop"] = Is(".p2align 6\nK1_L:") + st() + half("e", 0, "loop", OPT["yq"], OPT["yp"]) + half("o", 1, "loop", OPT["yq"], OPT["yp"]) + Is("s_cbranch_scc1 K1_L")
    B["loope"] = Is(f"s_cmp_lg_u32 s{sI}, 6\ns_cbranch_scc1 K1_LA\ns_cmp_eq_u32 s{sItem}, 0\ns_cbranch_scc1 K1_LASTA")
    B["loopa"] = Is(".p2align 6\nK1_LA:") + st() + half("ea", 0, "loop", OPT["xq"], OPT["xp"], OPT["adp"]) + half("oa", 1, "loop", OPT["xq"], OPT["xp"], OPT["adp"]) + Is("s_cbranch_scc1 K1_L")
    B["loopx"] = Is(f"s_cmp_lg_u32 s{sI}, 6\ns_cbranch_scc1 K1_LA\ns_cmp_lg_u32 s{sItem}, 0\ns_cbranch_scc1 K1_LASTB")
    def pv15(nm, ne, nxt, pub, tail, extra=(), endv=None, **kw):
        B15 = OPT["bg15"]
        c2 = [I(f"v_mov_b32 v{168+q}, v{vL[q]}", lo=8) for q in range(4)]
        R = c2 + [I(f"v_permlane16_swap_b32 v{vL[q]}, v{168+q}", after=[c2[q]], dly=1) for q in range(4)] + [I(f"v_add_f32 v{vL[q]}, v{vL[q]}, v{168+q}") for q in range(4)]
        R += [I(f"v_rcp_f32 v{RCP+2*q}, v{vL[q]}") for q in range(4)] + [I(f"v_cmp_ngt_f32 {S2(80+2*q)}, s{sThr}, v{vL[q]}") for q in range(4)]
        spread(R, 7, 24)
        for it in R: it.hi = 95
        es = []; sts = []
        for u in range(ne):
            e = epi_unit(u, False); e[0].lo = 16 * (u // 4) + 2 * (u % 4) + 1 + 8; e[10].lo = e[0].lo + 8
            if u >= ne - 3: x = e.pop(); x.after = [e[-1]]; sts.append(x)
            es += e
        spread(es, 22, 94, range(B15, B15 + 9))
        fl = Is(f"""s_or_b64 s[80:81], s[80:81], s[82:83]
s_or_b64 s[84:85], s[84:85], s[86:87]
s_or_b64 s[80:81], s[80:81], s[84:85]
s_or_b32 s80, s80, s81
s_or_b32 s{sFlag}, s{sFlag}, s80
s_lshl_b32 s80, s{sWave}, 2
s_add_u32 s80, s80, {FLO}
v_mov_b32 v160, s80
v_mov_b32 v161, s{sFlag}
v_mov_b32 v162, {FLO}""") + [Ins("ds_write_b32 v160, v161")]
        fl[-1].cost = 8
        fl[0].after = R[-1:]; fl[0].dly = 2
        f1 = I(f"ds_read_b128 {V4(164)}, v162", dst=regs("v", 164, 4), lo=B15 + 1, target=B15 + 3)
        f2 = WAIT(lneed=regs("v", 164, 4), lo=80, target=80)
        f3 = Is("v_or_b32 v164, v164, v165\nv_or3_b32 v164, v164, v166, v167")
        f4 = I(f"v_readfirstlane_b32 s{sAll}, v164", after=[f3[1]], hi=91)
        for x in f3 + [f4]: x.target = 81
        ex = list(extra(es, sts)) if extra else []
        out = stamp(4) + phase(nm, 41, "v", mf_pv(41, 1), reads_v(41, X1)[NPRE_V:], nxt, "v", pub, fl, tail, [R + es, [f1, f2] + f3 + [f4]] + ex, bg=B15, endv=endv, **kw)
        return out + stamp(5) + stamp(6) + Is(f"s_cmp_lg_u32 s{sMode}, 0\ns_cselect_b32 s{sAll}, 0, s{sAll}"), sts
    x = pf()
    A_ = half("14a", 0, "last", io=[tl(dma(sDB, sB, slot(3))) + codepf(), hd(dma_v(15, X1)),
                                    tl(dma_v(15, X1)) + Is(f"s_mov_b64 {S2(sDA)}, {S2(sNb)}\ns_mov_b32 s{sDA+2}, s{sNnum}"), hd(dma_w(0)), [], []])
    A_ += half("15a", 1, "last", io=[tl(dma_w(0)) + dma_x(0), hd(dma_w(1)), tl(dma_w(1)) + x[:4], hd(dma_w(2)) + x[4:], [], []])
    dx1 = dma_x(1)
    def exa(es, sts):
        for y in sts: y.after = y.after + [dx1[-1]]; y.target = 92
        return [sts]
    B["lasta"] = Is("K1_LASTA:") + st() + A_ + pv15("pv15a", NE0, reads_v(0, slot(0))[:NPRE_V], {f"L{slot(0)}"} | XALL(0), dx1, exa, dend=90)[0]
    B["mid"] = reads_x(0) + Is(f"""s_mov_b32 s{sItem}, 1
s_cmp_ge_u32 s{sBk}, {OPT['adn']}
s_cselect_b32 s{sSel}, 63, {OPT['m1']}
s_add_u32 s{sK}, s{sK}, {16*393216}
s_addc_u32 s{sK+1}, s{sK+1}, 0
s_add_u32 s{sV}, s{sV}, {16*393216}
s_addc_u32 s{sV+1}, s{sV+1}, 0
s_branch K1_ITEM""")
    k2tr, k2lay = oproj(B, half, pv15, st)
    X = Is(f"""K1_MAXPASS:
v_and_b32 v{vT}, 15, v0
v_lshrrev_b32 v{vT+1}, 4, v0
v_mul_u32_u24 v{vT}, 384, v{vT}
v_lshl_add_u32 v{vT}, v{vT+1}, 4, v{vT}
s_mov_b32 s{sT}, 0""") + [I(f"v_mov_b32 v{vMi[q]}, 0xff800000") for q in range(4)] + Is("K1_MAXL:")
    for s in range(6): X.append(I(f"buffer_load_dwordx4 {V4(SP+4*s)}, v{vT}, {S4(sDA)}, s{sT} offen offset:{s*64}"))
    X.append(I("s_waitcnt vmcnt(0)"))
    for qt in range(4):
        for s in range(6): X.append(mfma(V4(SP + 32 + 4 * qt), V4(SP + 4 * s), V4(Qf(qt, s)), V4(SP + 32 + 4 * qt) if s else "0"))
    X.append(I("s_nop 7"))
    for qt in range(4):
        d = SP + 32 + 4 * qt
        X += Is(f"v_max3_f32 v{vMi[qt]}, v{vMi[qt]}, v{d}, v{d+1}\nv_max3_f32 v{vMi[qt]}, v{vMi[qt]}, v{d+2}, v{d+3}")
    X += Is(f"s_add_u32 s{sT}, s{sT}, 6144\ns_cmp_lt_u32 s{sT}, 393216\ns_cbranch_scc1 K1_MAXL\ns_branch K1_MAXRET")
    B["maxpass"] = X
    front = ["item"] + [f"w{n}" for n in range(10)] + ["cvt", "qk0", "peel"]
    mixes = [["loopa"] * 6, ["loop"] * 6, ["loopa", "loopa", "loop", "loopa", "loop", "loop"]]
    traces = [["entry", "pro"] + front + mixes[i] + ["lasta", "mid"] + front + mixes[j] + t_ for (i, j) in ((0, 1), (2, 0)) for t_ in k2tr]
    layout = ["entry", "pro"] + front + ["loop", "loope"] + k2lay + ["loopa", "loopx", "lasta", "mid", "k2side", "k2idle", "maxpass"]
    for t_ in traces: resolve_waits(B, t_)
    txt = {k: "\n".join(emit(v)).split("\n") for k, v in B.items()}
    errs = []
    for t_ in traces: errs += verify([l for b in t_ for l in txt[b]])
    errs += verify([l for b in ["entry", "pro"] + front[:12] + ["maxpass", "maxpass"] + front[12:] for l in txt[b]])
    errs += verify([l for b in ["loop", "lastb", "k2idle"] for l in txt[b]])
    for t_ in k2tr: errs += verify([l for b in t_[:4] + ["k2wx" + t_[-1][-1]] + t_[3:] for l in txt[b]])
    for e in sorted(set(errs))[:8]: sys.stderr.write("K1 HAZARD " + e + "\n")
    note = {
        "entry": "entry / set-up of descriptors and per-lane addresses; first loads",
        "mid": "between the two heads of this workgroup",
        "w0": "Q projection: ten k phases of 64; Wq tiles and x rows arrive by LDS-DMA; the previous head's O is normalised and stored underneath",
        "cvt": "scale Q by log2(e)/sqrt(192), round to bf16, arrange as MFMA operand",
        "qk0": "first key tile: row max of its first 16 keys (or the exact max in the redo pass) becomes the softmax shift",
        "peel": "key tile 1 / value tile 0",
        "loop": "attention main loop, two 64-key tiles per trip: S^T = K Q^T - m, P = exp2(S), O^T += V^T P^T, l += 1^T P^T; softmax fully under the MFMAs",
        "lasta": "first head, last tiles: 1/l, overflow check of the shift, first O fragments leave; the second head's first tiles come in",
        "lastb": "second head, last tiles; the output projection's first operands come in",
        "k2head": "output projection: tile 320x128 per workgroup, K split over four workgroups",
        "k2bodyo": "projection, odd K halves (22 steps)", "k2bodye": "projection, even K halves (26 steps)",
        "k2epio": "collect the partners' quarters", "k2epie": "collect the partners' quarters",
        "loopa": "same loop for the first head with part of the softmax issued back to back: lower peak draw while the supply settles",
        "k2side": "rare paths: redo with the exact row max, waits on hand-offs",
        "k2idle": "workgroups without a projection tile",
        "maxpass": "exact row max over all keys (redo pass only)"}
    return [l for b in layout for l in ([f"; ---- {note[b]}"] if b in note else []) + txt[b] if l], errs

def oproj1(B, half, pv15, st, X, N):
    vR = [[1, 2, 3, 4], [13, 14, 15, 16]]; vOf = 18; vSt = 10; vFl = 11; vRd = 12; t0, t1, t2, t3 = 5, 6, 7, 8; vP2 = 9; vLp = 17; vOne = 20
    KS = [0, 32768, 65536]; EX = X1; SEL = 32
    uq = lambda u: [("a", Oacc(2 * (u // 4) + h, u % 4)) for h in range(2)]
    OF = {}
    def Of(d, kb, qt): return OF[d, kb, qt]
    M = OPT["mrg"] - (N & 1); DM = N - M; MD = list(range(DM, N)); U = (N - 1) >> 1
    src = lambda d: (d, 0) if d < 24 else (d - (N - 24), 1)
    NT = OPT["k2n"]; u0 = OPT["ne1"]; left = list(range(u0, 24))
    frs = [(d, kb, qt) for d in range(N) for kb in range(2) for qt in range(5)]
    A0 = OPT["adv0"]; rate = (10 * N - 15 - 10 * A0) / (DM - 1 - A0 + OPT["advf"] / 100.0)
    cum = lambda d: 15 + 10 * (d + 1) if d < A0 else min(10 * N, int(round(15 + 10 * A0 + rate * (d + 1 - A0))))
    OS = {d: frs[(cum(d - 1) if d >= 0 else 0):cum(d)] for d in range(-1, DM)}
    pool = [("v", 224 + 4 * i) for i in range(8)] + [q for u in range(u0) for q in uq(u)]
    for d in range(-1, DM):
        for f in OS[d]: OF[f] = pool.pop(0)
        if d >= 0: pool += [OF[d, kb, qt] for kb in range(2) for qt in range(5)] + [q for u in left[d * NT:(d + 1) * NT] for q in uq(u)]
    RDQ = pool
    CK = {min(d for d in OS if any(f[0] >= m for f in OS[d])): m for m in (12, 24) if m < N}
    R4 = lambda r: f"{r[0]}[{r[1]}:{r[1]+3}]"
    Oset = lambda d, kbs=(0, 1): set().union(*[regs(*Of(d, kb, qt), 4) for kb in kbs for qt in range(5)])
    def acc(t, qt): return 64 + 4 * (t * 5 + qt)
    def wq(f): return 192 + 4 * (f % 16)
    sW_ = sX; sOo = 8; sOut = 12; sXs = 20; sFl = 28
    sTt = 46; sC1 = 51; sC1w = 50; sXo = [32, 33, 34, 35]; sTs = 39; sXr = 24; sGx = 40; sGs = 54; sFo = 55
    def wdma(u, h):
        d_, fo = src(2 * u)
        off = (d_ * 64 + (3072 - 768 if d_ >= 12 else 0) + fo * 1536) * 1280
        out = [I(f"s_add_u32 m0, s{sXoff}, {KS[u % 3] + h*4096}")]
        for j in range(4 * h, 4 * h + 4):
            out += [I(f"s_mov_b32 s{sTt}, {off + j*10240 - (j % 4)*1024}"),
                    I(f"buffer_load_dwordx4 v{vDx}, {S4(sW_)}, s{sTt} offen offset:{(j % 4)*1024} lds", dst={f"S{u%3}"})]
        return out
    Wt = lambda u: {f"S{u%3}"}
    def oload(fs):
        out = []; cur = None
        for (d, kb, qt) in fs:
            off = (2 * src(d)[0] + kb + 96 * src(d)[1]) * 122880 + (qt // 4) * 4096
            if off != cur: out.append(I(f"s_mov_b32 s{sTt}, {off}")); cur = off
            out.append(I(f"buffer_load_dwordx4 {R4(Of(d, kb, qt))}, v{vOf}, {S4(sOo)}, s{sTt} offen offset:{(qt % 4)*1024} sc1", dst=regs(*Of(d, kb, qt), 4)))
        return out
    def wreads(ds):
        out = []; f = 0
        for t in range(8):
            for d in ds:
                base = KS[(d >> 1) % 3]; w = base >> 16
                for kb in range(2):
                    r = wq(f)
                    for hf in range(2):
                        it = I(f"ds_read_b64_tr_b16 a[{r+2*hf}:{r+2*hf+1}], v{vR[w][t & 3]} offset:{base - w*65536 + (d & 1)*16384 + (t >> 2)*8192 + (4*kb+2*hf)*1024}", dst=regs("a", r + 2 * hf, 2)); it.f = f
                        out.append(it)
                    f += 1
        return out
    NP = 8; G = 60
    pair = lambda a, b: Ins(a + "\n" + b, kind="bar")
    late = Is(f"""
s_mov_b64 {S2(sOut)}, {S2(sOutP)}
s_mov_b32 s{sOut+2}, {79*2560+64}
s_mov_b32 s{sOut+3}, 0x20000""") + [pair(f"s_add_u32 s{sXs}, s{sWsP}, {XCH}", f"s_addc_u32 s{sXs+1}, s{sWsP+1}, 0")] + Is(f"""
s_mov_b32 s{sXs+2}, {960*15360}
s_mov_b32 s{sXs+3}, 0x20000
s_lshl2_add_u32 s88, s{sWg}, s{sWave}
s_mul_i32 s{sXo[0]}, s88, 15360
s_xor_b32 s89, s88, 32
s_mul_i32 s{sXo[1]}, s89, 15360
s_xor_b32 s89, s88, 4
s_mul_i32 s{sXo[2]}, s89, 15360
s_xor_b32 s89, s88, 36
s_mul_i32 s{sXo[3]}, s89, 15360
s_mul_i32 s88, s{sWave}, 5120
s_add_u32 s88, s88, {EX}
v_add_u32 v{vRd}, s88, v{vOf}
v_and_b32 v{t0}, 15, v0
v_lshrrev_b32 v{t1}, 4, v0
v_lshl_add_u32 v{t2}, v{t0}, 2, v{t1}
v_lshlrev_b32 v{t2}, 4, v{t2}
v_add_u32 v{vLp}, s88, v{t2}
v_lshlrev_b32 v{t1}, 2, v{t1}
v_sub_u32 v{t0}, v{t0}, v{t1}
v_and_b32 v{t1}, 1, v{t0}
v_lshlrev_b32 v{t1}, 4, v{t1}
v_mov_b32 v{t2}, 0x3f80
v_lshlrev_b32 v{t1}, v{t1}, v{t2}
v_lshrrev_b32 v{t0}, 1, v{t0}""")
    c0 = I(f"v_cmp_eq_u32 s[84:85], 0, v{t0}"); c1 = I(f"v_cmp_eq_u32 s[86:87], 1, v{t0}")
    late += [c0, c1, I(f"v_mov_b32 v{SEL+2}, 0"), I(f"v_mov_b32 v{SEL+3}, 0"), I(f"v_cndmask_b32 v{SEL}, 0, v{t1}, s[84:85]"), I(f"v_cndmask_b32 v{SEL+1}, 0, v{t1}, s[86:87]")]
    late += Is(f"""v_mov_b32 v{SEL+4}, 0
v_mov_b32 v{SEL+5}, 0
v_mov_b32 v{SEL+6}, v{SEL}
v_mov_b32 v{SEL+7}, v{SEL+1}
v_lshrrev_b32 v{t0}, 2, v0
v_and_b32 v{t1}, 3, v0
v_mul_u32_u24 v{vSt}, 2560, v{t0}
v_lshl_add_u32 v{vSt}, v{t1}, 4, v{vSt}
v_min_u32 v{t1}, 2, v0
v_add_u32 v{t1}, 1, v{t1}
v_and_b32 v{t0}, 1, v{t1}
v_lshrrev_b32 v{t1}, 1, v{t1}
v_lshl_or_b32 v{t0}, v{t0}, 3, v{t1}
v_xor_b32 v{t0}, s{sWg}, v{t0}
v_lshlrev_b32 v{vFl}, 7, v{t0}
v_min_u32 v{t1}, 2, v0
v_lshl_add_u32 v{vFl}, v{t1}, 2, v{vFl}
s_add_u32 s{sXo[2]}, s{sXo[2]}, 5120
s_add_u32 s{sXo[3]}, s{sXo[3]}, 10240
s_mov_b32 s{sGx}, 0
s_lshl_b32 s{sFo}, s{sWg}, 7""") + [pair(f"s_cmp_eq_u32 s{sWave}, 0", f"s_cselect_b32 s{sFo}, s{sFo}, 0x10000")] + Is("""""") + (Is("v_mov_b32 v22, v31\nv_mov_b32 v23, v31") if OPT["stamps"] else [])
    sPf = 24; sPi = 57
    def pfit():
        out = []
        for h in range(2): out += Is(f"s_add_u32 s81, s{sPi}, {h*768*1280}") + [I(f"buffer_load_dword v30, v{vO}, {S4(sPf)}, s81 offen offset:{j*1024}", dst={"v30"}) for j in range(4)]
        return out + Is(f"s_add_u32 s{sPi}, s{sPi}, 65536")
    if "lastb" not in B:
        r1 = vR[1][0]; c = [OPT[f"c{i}"] for i in range(8)]
        L = tl(dma(sDB, sB, slot(3))) + dma_v(15, X1)
        L += [I(f"buffer_load_dword v30, v{vO}, {S4(sP1)}, " + ("0" if j < 4 else f"s{sT3}") + f" offen offset:{(j % 4)*1024}", dst={"v30"}) for j in range(0 if OPT["vpf"] & 2 else 8)]
        L += [y for u in range(3) for h in range(2) for y in wdma(u, h)] + oload(OS[-1])
        o_ = 8 if OPT['vpf'] & 2 else 0
        assert sum(c[:3]) <= 26 - o_ and sum(c[:5]) <= 34 - o_ and sum(c[:6]) <= 42 - o_ and sum(c) <= 50 - o_
        s0 = [I(f"buffer_load_dwordx2 v[14:15], off, {S4(sDb)}, s{sCo} sc1", dst=regs("v", 14, 2))] + codepf() + Is(f"""
s_mov_b64 {S2(sP1)}, {S2(sN2)}
s_mov_b32 s{sP1+2}, 30720
s_mov_b32 s{sT3}, 16384
s_mov_b64 {S2(sW_)}, {S2(sWoP)}
s_mov_b32 s{sW_+2}, s{sK2n}
s_movk_i32 s80, 0x70
v_lshrrev_b32 v{vDx}, 3, v0
v_mul_u32_u24 v{vDx}, 1280, v{vDx}
v_and_or_b32 v{vDx}, v{vDw}, s80, v{vDx}""")
        s1 = Is(f"""
s_mov_b64 {S2(sOo)}, {S2(sK2O)}
s_cmp_lt_u32 s{sWg}, 240
s_cselect_b32 s{sOo+2}, {143*122880+5*1024}, 0
s_and_b32 s{sC1}, s{sWg}, 7
s_lshl_b32 s{sC1}, s{sC1}, 7
s_add_u32 s{sC1}, s{sC1}, 64
s_cmp_eq_u32 s{sWave}, 0
s_cselect_b32 s{sC1w}, s{sC1}, 0x10000
s_add_u32 s{sFl}, s{sWsP}, {FLG}
s_addc_u32 s{sFl+1}, s{sWsP+1}, 0
s_mov_b32 s{sFl+2}, {256*128}
s_mov_b32 s{sFl+3}, 0x20000
s_andn2_b32 s89, 8, s{sWg}
s_lshl_b32 s89, s89, 3
s_add_u32 s89, s89, 65536""")
        s2 = Is(f"""s_bfe_u32 s80, s{sWg}, 0x10001
s_lshr_b32 s81, s{sWg}, 3
s_lshl1_add_u32 s80, s81, s80
s_and_b32 s{sPi}, s80, 3
s_lshl_b32 s{sPi}, s{sPi}, 14
s_mul_i32 s81, s80, 30720
s_sub_u32 s81, {3072*1280}, s81
s_add_u32 s{sPf}, s{sN2}, s81
s_addc_u32 s{sPf+1}, s{sN2+1}, 0
s_mov_b32 s{sPf+2}, {1536*1280}
s_mov_b32 s{sPf+3}, 0x20000""")
        if OPT["xpf"]:
            s2 += Is(f"""s_lshr_b32 s81, s80, 2
s_lshl_b32 s81, s81, 14
s_and_b32 s82, s80, 1
s_lshl_b32 s82, s82, 11
s_add_u32 s81, s81, s82
s_bfe_u32 s82, s80, 0x10001
s_mul_i32 s82, s82, {768*1280}
s_add_u32 s81, s81, s82
s_add_u32 s81, s81, {768*1280 - 262144}""") + [I(f"buffer_load_dword v30, v{vO}, {S4(sPf)}, s81 offen offset:{j*1024}", dst={"v30"}) for j in range(2)]
        m_ = I("v_min_u32 v14, v14, v15"); rf = I("v_readfirstlane_b32 s88, v14", after=[m_])
        ck = [WAIT(vneed={"v14"}), m_, rf, Ins("s_cmp_lt_u32 s88, 32\ns_cbranch_scc1 K2_SPIN0\nK2_RET0:", kind="bar", after=[rf], dly=2)]
        v1 = Is(f"""
v_lshrrev_b32 v14, 5, v0
v_lshlrev_b32 v{r1}, 10, v14
v_bfe_u32 v14, v0, 2, 3
v_lshl_add_u32 v{r1}, v14, 7, v{r1}
v_and_b32 v14, 6, v14
v_bfe_u32 v15, v0, 1, 1
v_xor_b32 v14, v14, v15
v_lshl_add_u32 v{r1}, v14, 4, v{r1}
v_and_b32 v14, 1, v0
v_lshl_add_u32 v{r1}, v14, 3, v{r1}
v_xor_b32 v{r1}, s89, v{r1}
v_xor_b32 v14, 32, v{r1}
v_xor_b32 v15, 64, v{r1}
v_xor_b32 v16, 96, v{r1}
v_lshlrev_b32 v{vOf}, 4, v0
v_mov_b32 v{vOne}, 1""")
        v1[0].after = [ck[-1]]
        v0_ = [I(f"v_xor_b32 v{vR[0][i]}, 0x10000, v{vR[1][i]}") for i in range(4)]
        Z_ = Is(f"K1_LASTB:\ns_cmp_eq_u32 s{sSig}, 0\ns_cbranch_scc1 K1_REDO") + st()
        Z_ += half("14b", 0, "last", io=[s0 + take(L, c[0]) + s1, take(L, c[1]), ck + take(L, c[2]), take(L, c[3]), [], [spread(v1, 14, 95, NOV)]])
        Z_ += half("15b", 1, "last", io=[([] if OPT['vpf'] & 1 else s2) + take(L, c[4]), take(L, c[5]), take(L, c[6]), take(L, c[7]), [], [spread(v0_, 2, 60)]])
        L = take(L, 99)
        def exb(es, sts):
            for y in L:
                if y.kind == "vmem": y.after = y.after + [x for x in es if x.text.split()[-1] in y.dst][-1:]
            spread(L, 2, 80)
            for y in L: y.hi = 94
            return [L]
        p_, sts = pv15("pv15b", u0, wreads([0])[:NP], Wt(0), [], exb, endv=Oset(0))
        B["lastb"] = Z_ + p_ + Is(f"s_cmp_lg_u32 s{sAll}, 0\ns_cbranch_scc1 K1_REDO\ns_cmp_ge_u32 s{sWg}, 240\ns_cbranch_scc1 K2_IDLE") + stamp(49)
    held = {0: [epi_unit(u, False)[-1] for u in range(u0 - 3, u0)]}
    body = {}
    for d in range(N):
        body[d] = []; held[d + 1] = []
        for u in left[d * NT:(d + 1) * NT]:
            e = epi_unit(u, False); held[d + 1].append(e.pop()); body[d] += e
    SG = max(d for d in held if held[d]) + 1
    assert SG <= 7
    poll = f"buffer_load_dword v{t2}, v{vFl}, {S4(sFl)}, 0 offen sc1"
    RD = lambda rho, qt: RDQ[qt * 3 + rho - 1]
    def rload(rho, so):
        out = []
        for qt in range(5):
            if qt == 4: out.append(I(f"s_add_u32 s{sTt}, s{so}, 4096"))
            out.append(I(f"buffer_load_dwordx4 {R4(RD(rho, qt))}, v{vOf}, {S4(sXs)}, s{sTt if qt == 4 else so} offen offset:{(qt % 4)*1024} sc1", dst=regs(*RD(rho, qt), 4)))
        return out
    radd = lambda rhos, qt: [mfma(V4(acc(6 + h, qt)), V4(SEL + 4 * h), R4(RD(rho, qt)), V4(acc(6 + h, qt))) for h in range(2) for rho in rhos]
    flag = lambda off: Ins(f"s_mov_b64 exec, 1\nbuffer_store_dword v{vOne}, off, {S4(sFl)}, s{sFo} offset:{off} sc1\ns_mov_b64 exec, -1", kind="vmem")
    def mfs(ds):
        mf = []; n = 2 * len(ds)
        for t in range(8):
            for qt in range(5):
                ks = [(i, d, kb) for i, (d, kb) in enumerate((d, kb) for d in ds for kb in range(2))]
                if qt & 1 and len(ds) > 1: ks.reverse()
                for (i, d, kb) in ks:
                    a = acc(t, qt)
                    mf.append(mfma(V4(a), A4(wq(n * t + i)), R4(Of(d, kb, qt)), "0" if (d == 0 and kb == 0) else V4(a)))
        return mf
    def step(d):
        own = wreads([d])[NP:]; pre = d == DM - 1
        nx = MD if pre else [d + 1]
        nxt = wreads(nx)[:max(NP, 4 * len(nx))]
        hasb = (d & 1) or pre or d == SG
        ws = [WAIT(lneed=regs("a", wq(2 * t), 8), lo=10 * t - 3, hi=10 * t - 1, target=10 * t - 2) for t in range(1, 7 if hasb else 8)]
        ws.append(WAIT(lneed=regs("a", wq(0), 8 * len(nx)), vneed=set().union(*[Oset(x) for x in nx]), lo=78, hi=79, target=78.5))
        g = G - 6 if pre and M > 2 else G
        spread(own, 0, g - 6)
        for it in own: it.hi = min(it.hi, 10 * (it.f >> 1) - 7); it.target = min(it.target, it.hi - 1)
        rs = own; nov = ()
        if hasb:
            bar = BAR(Wt(U if pre else (d + 1) >> 1) | ({"OST"} if d == SG else set()), lo=g, hi=g); rs = rs + [bar]; nov = range(g, g + 9)
            for it in nxt: it.after = [bar]
        spread(nxt, g + 1, 73 if pre else 76)
        vm = []
        cadr = lambda m: f"s{sC1}" + (" offset:128" if m == 24 else "")
        if d in CK: vm += [I(f"buffer_load_dword v{vP2}, off, {S4(sFl)}, {cadr(CK[d])} sc1", dst={f"v{vP2}"})]
        if d % 4 == 3 or pre: vm += codepf()
        fs = OS[d]; k2_ = len([f for f in fs if f[0] < CK.get(d, 99)]); k = min(5, k2_)
        vm += oload(fs[:k]) + held[d]
        for x in WS.get(d, []): vm += wdma(*x)
        if d in CK:
            vm += oload(fs[k:k2_]); k = k2_
            rf = I(f"v_readfirstlane_b32 s88, v{vP2}")
            ck = [WAIT(vneed={f"v{vP2}"}), rf, Ins(f"s_cmp_lt_u32 s88, 32\ns_cbranch_scc1 K2_SPIN{CK[d]}{X}\nK2_RET{CK[d]}{X}:", kind="bar", after=[rf], dly=2)]
            n1 = len(vm); vm += ck
        vm += oload(fs[k:])
        if d == SG:
            at = atomic(vOne, sC1w, sFl); at.after = [bar]; vm.append(at)
        if d in CK:
            n_a = sum(x.kind == "vmem" for x in vm[:n1]); n_b = sum(x.kind == "vmem" for x in vm[n1:])
            c_ = max(OPT["ckg"], int(76 * n_a / (n_a + n_b)) - 4)
            if hasb and g - 5 < c_ < g + 9: c_ = g + 9 if n_b <= 3 else g - 5
            even(vm[:n1], 0, c_, [g]); even(vm[n1 + 3:], c_ + 5, 80, [g])
            for x in ck: x.lo = c_; x.target = c_; x.hi = c_ + 4
        else: even(vm, 0, int(0.8 * OPT["advf"]) if pre else 80, [g])
        es = body[d]
        if es:
            for k in range(len(es) // 20): es[20 * k].after = [held[d][k]] if NT == 3 else held[d][-1:]; es[20 * k].dly = 1
            spread(es, held[d][0].lo + 2, 79, nov)
        if d == 14: es = spread(late, 0, 79); assert d not in CK
        return schedule(mfs([d]), [ws, rs + nxt, vm, es], novalu=nov, name=f"k2s{d}{X}") + (stamp(50) if d == 5 else stamp(47, True) if d == 13 else stamp(56) if pre else [])
    WS = {d: [((d >> 1) + 2, d & 1)] for d in range(2, 2 * (U - 1))}
    if 2 * U - 3 >= DM - 1: WS[2 * U - 4] += WS.pop(2 * U - 3)
    assert max(WS) < DM - 1
    def final():
        n = 2 * M; T = 5 * n
        own = wreads(MD)[max(NP, 2 * n):]
        for it in own:
            t, i = divmod(it.f, n)
            it.target = T * (t - 1) + i * (T - 9) / n; it.hi = T * t - 7
            if it.f >= 16: it.lo = T * ((it.f - 16) // n) + 4 * n + (it.f - 16) % n
        ws = [WAIT(lneed=set().union(*[regs("a", wq(n * t + i), 4) for i in range(n)]), lo=T * t - 3, hi=T * t - 1, target=T * t - 2) for t in range(1, 8)]
        sn = []
        for jl in range(3):
            for qt in range(5):
                a, b = acc(2 * jl, qt), acc(2 * jl + 1, qt)
                c = Is(f"""v_cvt_pk_bf16_f32 v{a}, v{a}, v{a+1}
v_cvt_pk_bf16_f32 v{a+1}, v{a+2}, v{a+3}
v_cvt_pk_bf16_f32 v{a+2}, v{b}, v{b+1}
v_cvt_pk_bf16_f32 v{a+3}, v{b+2}, v{b+3}""")
                if qt in (0, 4): c.append(I(f"s_add_u32 s{sTs}, s{sXo[0]}, {(2 - jl)*5120 + (qt // 4)*4096}"))
                c.append(I(f"buffer_store_dwordx4 {V4(a)}, v{vOf}, {S4(sXs)}, s{sTs} offen offset:{(qt % 4)*1024} sc1", dst={f"SN{jl}"}))
                lo = T * (2 * jl + 1) + n * (qt + 1) - 1 + 8
                for k, x in enumerate(c): x.lo = lo if k >= 2 else lo - 8; x.target = lo + k * 0.5 - 1
                sn += c
        ev = []; nov = []
        for jl in range(3):
            F = min(2 * T * (jl + 1) + 12 + OPT["fag"], 8 * T - OPT["fbg"])
            b_ = Ins("WAITBAR", kind="bar", vneed={f"SN{jl}"}, lo=F, hi=F); f_ = flag(4 * (2 - jl)); f_.after = [b_]; f_.target = F + 1; f_.hi = F + 3
            for x in sn[jl * len(sn) // 3:(jl + 1) * len(sn) // 3]: x.hi = F - 1
            ev += [b_, f_]; nov += range(F, F + 9)
        return schedule(mfs(MD), [ws, own, sn, ev, [I(poll, dst={f"v{t2}"}, lo=8 * T - OPT["plg"])]], novalu=nov, name="k2fin")
    if "k2head" not in B: B["k2head"] = [x for d in range(A0) for x in step(d)] + (Is(f"s_bitcmp0_b32 s{sWg}, 0\ns_cbranch_scc1 K2_BODYe") if OPT["asy"] else [])
    assert SG < A0 and min(CK) >= A0
    B["k2body" + X] = Is(f"K2_BODY{X}:") + [x for d in range(A0, DM) for x in step(d)] + final()
    sys.stderr.write(f"[k2] SG {SG} CK {CK} loads/step {[len(OS[d]) for d in sorted(OS)]} spare quads {len(RDQ)}\n")
    E = stamp(51) + (Is(f"v_writelane_b32 v22, s{sSp}, 61\ns_getreg_b32 s87, hwreg(HW_REG_XCC_ID)\nv_writelane_b32 v22, s87, 62\nv_writelane_b32 v22, s{sBk}, 59\ns_memrealtime s[90:91]\ns_waitcnt lgkmcnt(0)\nv_writelane_b32 v22, s90, 63") if OPT["stamps"] in (6, 7, 8) else [])
    def rel(L):
        for x in L: x.text = re.sub(r"\b(K2_WX|K2_W1|K2_W2|K2_W3|K2_GO|K2_PS)\b", r"\1" + X, x.text)
        return L
    xadd = lambda: [x for qt in range(5) for x in radd((2, 3), qt)]
    E += stamp(52) + [WAIT(vneed={f"v{t2}"})] + Is(f"""K2_PS:
v_cmp_eq_u32 s[84:85], 1, v{t2}
s_add_u32 s{sSp}, s{sSp}, 1
s_cmp_gt_u32 s{sSp}, 0x40000
s_nop 0
s_cselect_b32 s84, 7, s84
s_andn2_b32 s85, s84, s{sGx}
s_or_b32 s{sGx}, s{sGx}, s84
s_and_b32 s{sGx}, s{sGx}, 7""")
    for rho in (3, 2, 1): E += Is(f"s_bitcmp0_b32 s85, {rho-1}\ns_cbranch_scc1 K2_W{rho}") + rload(rho, sXo[rho]) + Is(f"K2_W{rho}:")
    E += Is(f"s_cmp_lg_u32 s{sGx}, 7\ns_cbranch_scc1 K2_WX")
    B["k2epi" + X] = rel(E)
    B["k2wx" + X] = rel(Is(f"K2_WX:\n{poll}\ns_waitcnt vmcnt(0)\ns_branch K2_PS"))
    E = Is("K2_GO:") + stamp(53)
    def fin(qt):
        a, b = acc(6, qt), acc(7, qt)
        return Is(f"""v_cvt_pk_bf16_f32 v{a}, v{a}, v{a+1}
v_cvt_pk_bf16_f32 v{a+1}, v{a+2}, v{a+3}
v_cvt_pk_bf16_f32 v{a+2}, v{b}, v{b+1}
v_cvt_pk_bf16_f32 v{a+3}, v{b+2}, v{b+3}
s_nop 1
v_permlane16_swap_b32 v{a}, v{a+2}
v_permlane16_swap_b32 v{a+1}, v{a+3}
ds_write_b128 v{vLp}, {V4(a)} offset:{qt*1024}""") + [I(f"ds_read_b128 {V4(144+4*qt)}, v{vRd} offset:{qt*1024}", dst=regs("v", 144 + 4 * qt, 4))]
    out = lambda qt: [I(f"s_mov_b32 s87, {qt*16*2560}"), WAIT(lneed=regs("v", 144 + 4 * qt, 4)), I(f"buffer_store_dwordx4 {V4(144+4*qt)}, v{vSt}, {S4(sOut)}, s87 offen" + " sc1")]
    for qt in range(5):
        E += Is(f"s_waitcnt vmcnt({4 - qt})") + radd((3, 2, 1), qt)
        if qt >= 1: E += fin(qt - 1)
    E += out(0) + out(1) + out(2) + fin(4) + out(3) + out(4)
    E += stamp(54) + (Is(f"v_writelane_b32 v22, s{sSp}, 60\nv_writelane_b32 v23, s87, 60") if OPT["stamps"] else [])
    B["k2fin" + X] = rel(E) + (Is("s_branch K1_DONE") if OPT["stamps"] else Is("s_endpgm"))
    B["k2end"] = Is("K1_DONE:") + stamp_out(S2(sKA), sWg, sWave, t0, 0x4000000) + (Is(f"""s_cmp_lg_u32 s{sWg}, 17
s_cbranch_scc1 K1_END
s_cmp_lg_u32 s{sWave}, 0
s_cbranch_scc1 K1_END
v_readlane_b32 s84, v22, {OPT["enc"] >> 8}
v_readlane_b32 s85, v22, {OPT["enc"] & 255}
s_memrealtime s[86:87]
s_waitcnt lgkmcnt(0)
s_sub_u32 s85, s85, s84
{'s_mul_i32 s85, s85, 2000' if OPT['enc'] == 0x3d3e else 's_lshr_b32 s85, s85, 1'}
s_min_u32 s85, s85, 150000
s_add_u32 s85, s85, 1000
K1_ENC:
s_memrealtime s[90:91]
s_waitcnt lgkmcnt(0)
s_sub_u32 s90, s90, s86
s_cmp_lt_u32 s90, s85
s_cbranch_scc1 K1_ENC""") if OPT["enc"] else []) + Is("K1_END:\ns_endpgm")
    spin = lambda nm, ret, ld, rd: Is(f"""{nm}:
s_add_u32 s{sSp}, s{sSp}, 1
s_cmp_gt_u32 s{sSp}, 0x40000
s_cbranch_scc1 {ret}
s_sleep 4
{ld}
s_waitcnt vmcnt(0)
{rd}
s_nop 3
s_cmp_lt_u32 s88, 32
s_cbranch_scc1 {nm}
s_branch {ret}""")
    B["k2side"] = Is(f"""K1_REDO:
s_mov_b32 s{sMode}, 1
s_waitcnt vmcnt(0) lgkmcnt(0)
s_barrier""") + B["kre"] + spin("K2_SPIN0", "K2_RET0", f"buffer_load_dwordx2 v[14:15], off, {S4(sDb)}, s{sCo} sc1", "v_min_u32 v14, v14, v15\ns_nop 0\nv_readfirstlane_b32 s88, v14")
    B["k2sp" + X] = [x for m in CK.values() for x in spin(f"K2_SPIN{m}{X}", f"K2_RET{m}{X}", f"buffer_load_dword v{vP2}, off, {S4(sFl)}, s{sC1}" + (" offset:128" if m == 24 else "") + " sc1", f"v_readfirstlane_b32 s88, v{vP2}")]
    D = Is("K2_IDLE:") + [epi_unit(u, False)[-1] for u in range(u0 - 3, u0)] + [I(f"v_mov_b32 v{RCP+2*q+1}, v{RCP+2*q}") for q in range(4)]
    for u in range(u0, 24): D += epi_unit(u, True)
    if OPT["vpf"] & 1: D += Is("s_waitcnt vmcnt(0)\ns_barrier") + [atomic(vOne, sC1w, sFl)]
    else: D += pfit() + pfit() + Is("s_waitcnt vmcnt(16)\ns_barrier") + [atomic(vOne, sC1w, sFl)] + Is("K2_PFL:") + pfit() + Is(f"s_waitcnt vmcnt(24)\ns_cmp_lt_u32 s{sPi}, {768*1280 - 262144*OPT['xpf']}\ns_cbranch_scc1 K2_PFL")
    D += (Is("v_mov_b32 v22, v31\nv_mov_b32 v23, v31") if OPT["stamps"] else []) + (stamp(54) if OPT["stamps"] == 9 else []) + Is("s_branch K1_DONE")
    B["k2idle"] = D
    return ["lastb", "k2head", "k2body" + X, "k2epi" + X, "k2fin" + X]

def oproj(B, *k):
    a = OPT["asy"]
    tr = [oproj1(B, *k, "o", 24 - a)] + ([oproj1(B, *k, "e", 24 + a)] if a else [])
    lay = ["lastb", "k2head"] + [b + x for x in ("oe" if a else "o") for b in ("k2body", "k2epi", "k2fin", "k2wx", "k2sp")] + ["k2end"]
    return tr, lay

def desc(name, vg=512, acc=256):
    return f""".p2align 6
.amdhsa_kernel {name}
  .amdhsa_next_free_vgpr {vg}
  .amdhsa_next_free_sgpr 102
  .amdhsa_accum_offset {acc}
  .amdhsa_group_segment_fixed_size 0
  .amdhsa_kernarg_size 104
  .amdhsa_user_sgpr_count 2
  .amdhsa_user_sgpr_kernarg_segment_ptr 1
  .amdhsa_system_sgpr_workgroup_id_x 1
  .amdhsa_float_denorm_mode_32 3
.end_amdhsa_kernel"""

def main():
    k1, e1 = kernel1()
    ref = open("cdna_kernels/" + NAME + ".s.ref").read().split("\n")
    head = [l for l in ref if l.startswith(";") and "@launch" not in l]
    nm = NAME + "_kernel"
    out = head + [f"; @launch grid=(256,1,1) block=(256,1,1) lds=163840"] + """;
; One persistent workgroup per CU (4 waves, 64 query rows each, 512 registers, 16x16x32 bf16 MFMA).
;   per workgroup: two heads of one (branch, batch): Q projection -> flash attention -> O (bf16, fragment order) to d_ws
;   then the output projection in the same launch, behind counters (d_debug, d_ws) that order the hand-offs.
; Softmax shift = true max of the first keys of each row; the row sums are checked at the end and, if the shift was
; too small for any row (sum >= 2^60 or not finite), the workgroup redoes its heads with the exact row max.
; Written by a generator script (static instruction placement between the MFMAs, counted waits).""".split("\n") + ['.amdgcn_target "amdgcn-amd-amdhsa--gfx950"', ".text"]
    out += [f".globl {nm}", ".p2align 8", f".type {nm},@function", f"{nm}:"] + k1
    out += ["K_CODE_END:", "s_endpgm", '.section .rodata,"a"', desc(nm)]
    if e1:
        open(sys.argv[1], "w").write("hazard\n"); sys.exit(1)
    open(sys.argv[1], "w").write("\n".join(out) + "\n")
main()
```

```python
import sys, math, re
from asmlib import *
from verify import verify

OPT = dict(stamps=0, enc=0, ne0=6, ne1=15, xpf=0, p0=16, xin=1, aln=0, p1w=1, rot=0, nc9=7, na0=2, bg15=60, cw8=4, cpw=0x88, pskip=2,
           xq=3, xp=2, yq=0, yp=0, pq=0, pp=0, me=0x3f, m1=0, adp=9, adn=2,
           k2n=3, mrg=4, adv0=8, advf=55, asy=2, fag=62, fbg=12, plg=45, ckg=52,
           c0=6, c1=2, c2=8, c3=2, c4=11, c5=3, c6=12, c7=4)
for a in sys.argv[2:]:
    k, v = a.split("="); assert k in OPT, k; OPT[k] = int(v, 0)
NAME = "concat_heads__gqa_block_cached__gqa_block_cached__near_ridge"
MF = "v_mfma_f32_16x16x32_bf16"
def I(t, **kw): return Ins(t, **kw)
def Is(txt): return [Ins(t.strip()) for t in txt.strip().split("\n") if t.strip()]
def mfma(d, a, b, c): return Ins(f"{MF} {d}, {a}, {b}, {c}")
def V4(b): return f"v[{b}:{b+3}]"
def A4(b): return f"a[{b}:{b+3}]"

TILE = 24576; WS = 64 * 12288
X0 = 0; RING = 32768; X1 = 131072
def slot(i): return RING + i * TILE
vK = [[1, 2], [3, 4]]; KW = [0, 65536]
vV = [[5, 6, 7, 8], [9, 10, 11, 12]]; VW = [32768, 98304]
vXr = [[13, 14], [15, 16]]
vIx = 17; vDw1 = 18; vDkv = 19; vDw = 20; vDx = 21; vO = 22; vO3 = 23
vL = [24, 25, 26, 27]; vMi = [40, 41, 42, 43]; vT = 32
NEGM = 48; SP = 64; QF = 160
RCP = 48
def negm(qt): return NEGM + 4 * qt
def XY(par, kb, qt): return SP + 4 * (par * 8 + qt * 2 + kb)
def Z(kb, qt): return SP + 64 + 4 * (kb * 4 + qt)
def Qf(qt, s): return QF + 4 * (qt * 6 + s)
def Qb(qt, s):
    return SP + 4 * (qt * 6 + s)
def Oacc(t, qt): return 4 * (t * 4 + qt)
def Xf(n, kb, qt): return 32 * (n & 1) + 4 * (kb * 4 + qt)
FR = 192
def fq(n, f): return FR + 4 * ((f + 8 * (n & 1)) % 16)
sSel = 1; sBk = 3
sX = 4; sDA = 8; sDB = 12; sO = 16
sK = 20; sV = 22; sNb = 24; sNnum = 26
sA = 34; sB = 35; sAll = 36; sI = 39; sWoff = 40; sXoff = 41
sOs = [42, 43, 44, 45, 37, 38]; sT = 46; sItem = 47; sMode = 48; sFlag = 49; sC = 50
sWave = 52; sWg = 53; sT2 = 54; sT3 = 55; sThr = 56; sKA = 58
sP1 = 60; sWoP = 64; sOutP = 66; sWsP = 68; sSig = 70; sDb = 72; sCo = 76; sOn = 77; sSp = 78; sK2n = 79
sN2 = 98; sK2O = 100; sRo = [0, 2, 32, 33, 71, 97]
vPf = 248; FLO = RING + 3 * TILE
FLG = 0x2e00000; XCH = 0x2f00000
def S4(b): return f"s[{b}:{b+3}]"
def S2(b): return f"s[{b}:{b+1}]"
BG = 76
NOV = range(BG, BG + 9)
NPRE_V = 10; NPRE_K = 6
OSTRIDE = 24 * 120 * 1024

def lastuse_pv(f): return 8 * (f >> 1) + 6 + (f & 1)
def lastuse_qk(f): kt, s = divmod(f, 6); return 24 * kt + 18 + (5 - s)

def reads_v(n, base):
    out = []
    for f in range(24):
        t, kb = f >> 1, f & 1
        r = fq(n, f)
        for hf in range(2):
            off = base + (4 * kb + 2 * hf) * 3072 + (t >> 2) * 1024
            w = 1 if off >= VW[1] else 0
            it = I(f"ds_read_b64_tr_b16 a[{r+2*hf}:{r+2*hf+1}], v{vV[w][t & 3]} offset:{off-VW[w]}", dst=regs("a", r + 2 * hf, 2)); it.f = f
            out.append(it)
    return out
def reads_k(n, base):
    out = []
    for f in range(24):
        kt, s = divmod(f, 6); r = fq(n, f)
        off = base + kt * 6144 + (s >> 1) * 1024
        w = 1 if off >= KW[1] else 0
        it = I(f"ds_read_b128 {A4(r)}, v{vK[w][s & 1]} offset:{off-KW[w]}", dst=regs("a", r, 4)); it.f = f
        out.append(it)
    return out
def reads_x(n):
    return [I(f"ds_read_b128 {A4(Xf(n, kb, qt))}, v{vXr[n & 1][kb]} offset:{qt*2048}", dst=regs("a", Xf(n, kb, qt), 4)) for qt in range(4) for kb in range(2)]

def dma(srd, soff, base, w=False):
    n = "" if w else " nt"; vD = [vDw, vDw1] if w else [vDkv, vDkv]
    out = []
    for p in range(3):
        m = I(f"s_add_u32 m0, s{sWoff}, {base + 896*p}")
        a = I(f"buffer_load_dwordx4 v{vD[0]}, {S4(srd)}, s{soff} offen offset:{p*128}{n} lds", dst={f"L{base}"}, after=[m])
        b = I(f"buffer_load_dwordx4 v{vD[1]}, {S4(srd)}, s{soff} offen offset:{p*128+3072}{n} lds", dst={f"L{base}"})
        out += [m, a, b]
    return out
def dma_w(m): return [I(f"s_mov_b32 s{sT2}, {m*WS}")] + dma(sDA, sT2, slot(m % 4), True)
def dma_k(i, base): return [I(f"s_mov_b32 s{sT2}, {i*TILE}")] + dma(sDA, sT2, base)
def dma_v(i, base): return [I(f"s_mov_b32 s{sT2}, {i*TILE}")] + dma(sDB, sT2, base)
def hd(d): return d[:-6]
def tl(d): return d[-6:]
def dma_x(n):
    out = []; base = X1 if n & 1 else X0
    for j in range(8):
        if j % 4 == 0: out.append(I(f"s_add_u32 m0, s{sXoff}, {base + j*1024}"))
        out.append(I(f"s_mov_b32 s{sT}, {j*10240 - (j % 4)*1024 + n*128}"))
        out.append(I(f"buffer_load_dwordx4 v{vDx}, {S4(sX)}, s{sT} offen offset:{(j % 4)*1024} lds", dst={f"X{n&1}_{j>>1}"}))
    return out
def take(L, n):
    out = []
    while L and n:
        x = L.pop(0); out.append(x); n -= x.kind == "vmem"
        x.after = [y for y in x.after if y in out]
    return out

def phase(name, n, typ, mf, own, nxt, nxt_typ, pub, early, dmas, extra=(), post=(), early_hi=None, bg=BG, dend=None, endx=frozenset(), endv=None):
    lu = lastuse_pv if typ == "v" else lastuse_qk
    N = len(mf)
    rs = []
    if typ == "v":
        k0 = 48 - len(own)
        for j, it in enumerate(own):
            it.target = j * (bg - 6) / len(own)
            it.hi = min(8 * (it.f >> 1) - 6, bg - 5)
            if it.f >= 16: it.lo = lu(it.f - 16)
            it.hi = max(it.hi, it.lo)
    else:
        for j, it in enumerate(own):
            kt, s = divmod(it.f, 6)
            it.target = 24 * (kt - 1) + 1 + s * 2.5; it.hi = 24 * kt - 8
            if it.f >= 16: it.lo = lu(it.f - 16)
    rs += own
    bar = BAR(pub if isinstance(pub, set) else {f"L{pub}"}, lo=bg, hi=bg); rs.append(bar)
    for j, it in enumerate(nxt):
        it.lo = max(bg + 1, lu(it.f + 8)); it.after = [bar]
        it.target = bg + 1 + (j * 1.8 if nxt_typ == "v" else j * 1.5); it.hi = N - 1 if nxt_typ == "v" and j >= 4 else N - 8
    rs += nxt
    ws = []
    if typ == "v":
        for t in range(1, 12):
            if 8 * t - 1 >= bg: break
            ws.append(WAIT(lneed=regs("a", fq(n, 2 * t), 4) | regs("a", fq(n, 2 * t + 1), 4), lo=8 * t - 3, hi=8 * t - 1, target=8 * t - 2))
    else:
        for kt in range(1, 4):
            ws.append(WAIT(lneed=set().union(*[regs("a", fq(n, 6 * kt + s), 4) for s in range(6)]), lo=24 * kt - 3, hi=24 * kt - 1, target=24 * kt - 2))
    nf = 2 if nxt_typ == "v" else 6
    ws.append(WAIT(lneed=set().union(*[regs("a", fq(n + 1, f), 4) for f in range(nf)]) | endx, vneed=endv, lo=N - 2, hi=N - 1, target=N - 1.5))
    ms = list(early)
    spread(ms, 1, early_hi or bg - 6)
    nv = sum(1 for it in dmas if it.kind == "vmem"); k = 0
    for it in dmas:
        it.lo = bg + 1 if it.kind == "vmem" else bg - 4
        it.target = bg + 2 + k * min(12.0, ((dend or N) - bg - 3) / max(nv, 1)) - (0 if it.kind == "vmem" else 2.5)
        if it.kind == "vmem": it.after = it.after + [bar]; k += 1
    ms += dmas
    for it in post: it.lo = bg + 1; it.target = N - 6
    ms += list(post)
    return schedule(mf, [ws, rs, ms] + list(extra), novalu=range(bg, bg + 9), name=name)

def softmax(groups, lo, hi, sub=None, skip=NOV):
    E = []; D = []; P = []
    for (par, kb, qt, l0, l1, h, sb_) in groups:
        x, z = XY(par, kb, qt), Z(kb, qt)
        src = [x, x + 1, x + 2, x + 3, z, z + 1, z + 2, z + 3]
        for pr in range(4):
            es = []
            for e in range(2):
                r = src[2 * pr + e]
                ex = I(f"v_exp_f32 v{r}, v{r}", lo=(l0, l1)[pr >> 1])
                if sb_:
                    sb = I(f"v_add_f32 v{r}, v{r}, v{negm(qt)}", after=[sub[qt]] if sub else [], lo=(l0, l1)[pr >> 1]); sb.ex = ex; P.append(sb); ex.after = [sb]
                E.append(ex); es.append(ex)
            D.append(I(f"v_cvt_pk_bf16_f32 v{x+pr}, v{src[2*pr]}, v{src[2*pr+1]}", after=es, hi=h))
    spread(E, lo, hi, skip)
    for e in E: e.hi = 10**9
    for d in D:
        d.target = max(a.target for a in d.after) + 1
        for a in d.after: a.hi = d.hi - 1
    for p in P: p.target = p.ex.target - 3; p.hi = p.ex.hi - 1
    return [P, E, D]
def g_old(par, kb, qts, N, inqk):
    return [(par, kb, qt, 0, 0, (48 * kb + 24 + 6 * qt - 1) if inqk else N - 1, False) for qt in qts]
def g_new(par, qts):
    return [(par, 0, qt, 6 * qt + 13, 24 + 6 * qt + 13, 95, False) for qt in qts]

def mf_w(n):
    out = []
    for t in range(12):
        for qt in range(4):
            d = Qf(qt, t >> 1) if t % 2 == 0 else Qb(qt, t >> 1)
            for kb in range(2):
                out.append(mfma(V4(d), A4(fq(n, 2 * t + kb)), A4(Xf(n, kb, qt)), "0" if (n == 0 and kb == 0) else V4(d)))
    return out
def mf_qk(n, par, first=False):
    out = []
    for kt in range(4):
        for qt in range(4):
            d = XY(par, kt >> 1, qt) if kt % 2 == 0 else Z(kt >> 1, qt)
            order = range(6) if qt % 2 == 0 else range(5, -1, -1)
            for j, s in enumerate(order):
                c = V4(d) if j else ("0" if (first and kt < 2) else V4(negm(qt)))
                out.append(mfma(V4(d), A4(fq(n, 6 * kt + s)), V4(Qf(qt, s)), c))
    return out
def mf_l(par, first=False):
    return [Ins(f"v_smfmac_f32_16x16x64_bf16 {V4(vL[0])}, {V4(32 + 4*qt)}, v[{XY(par, 0, qt)}:{XY(par, 0, qt)+7}], v{vIx}", kind="mfma") for qt in range(4)]
def mf_pv(n, par, first=False):
    out = []
    for t in range(12):
        for qt in range(4):
            for kb in range(2):
                out.append(mfma(A4(Oacc(t, qt)), A4(fq(n, 2 * t + kb)), V4(XY(par, kb, qt)), "0" if (first and kb == 0) else A4(Oacc(t, qt))))
    return out

ETMP = [32, 40, 56]
def epi_unit(u, packed, k2=False):
    s, qt = divmod(u, 4)
    tb = ETMP[u % 3]
    out = []
    rc = RCP + 2 * qt
    for h in range(2):
        for j in range(4): out.append(I(f"v_accvgpr_read_b32 v{tb+4*h+j}, a{Oacc(2*s+h, qt)+j}"))
        if packed:
            for j in range(2): out.append(I(f"v_pk_mul_f32 v[{tb+4*h+2*j}:{tb+4*h+2*j+1}], v[{tb+4*h+2*j}:{tb+4*h+2*j+1}], v[{rc}:{rc+1}]"))
        else:
            for j in range(4): out.append(I(f"v_mul_f32 v{tb+4*h+j}, v{tb+4*h+j}, v{rc}"))
        for j in range(2): out.append(I(f"v_cvt_pk_bf16_f32 v{tb+2*h+j}, v{tb+4*h+2*j}, v{tb+4*h+2*j+1}"))
    out.append(I(f"buffer_store_dwordx4 {V4(tb)}, v{vO3 if qt == 3 else vO}, {S4(sO)}, s{sOs[s]} offen offset:{qt*1024}" + " sc1", dst={"OST"}))
    return out
def cvt_unit(s, qt, packed):
    a, b = Qf(qt, s), Qb(qt, s)
    out = []
    if packed:
        for r in (a, a + 2, b, b + 2): out.append(I(f"v_pk_mul_f32 v[{r}:{r+1}], v[{r}:{r+1}], {S2(sC)}"))
    else:
        for r in (a, a + 1, a + 2, a + 3, b, b + 1, b + 2, b + 3): out.append(I(f"v_mul_f32 v{r}, s{sC}, v{r}"))
    out += Is(f"""v_cvt_pk_bf16_f32 v{a}, v{a}, v{a+1}
v_cvt_pk_bf16_f32 v{a+1}, v{a+2}, v{a+3}
v_cvt_pk_bf16_f32 v{a+2}, v{b}, v{b+1}
v_cvt_pk_bf16_f32 v{a+3}, v{b+2}, v{b+3}""")
    sw = Is(f"v_permlane16_swap_b32 v{a}, v{a+2}\nv_permlane16_swap_b32 v{a+1}, v{a+3}")
    return out, sw

def pf():
    return [I(f"v_add_u32 v{vPf}, s{sXoff}, v{vO}")] + [I(f"buffer_load_dwordx4 {V4(252)}, v{vPf}, {S4(sP1)}, " + ("0" if j < 4 else f"s{sT3}") + f" offen offset:{(j % 4)*1024}", dst=regs("v", 252, 4)) for j in range(6)]

def atomic(v, so, srd=None):
    it = Ins(f"s_mov_b64 exec, 1\nbuffer_atomic_add v{v}, off, {S4(srd or sDb)}, s{so}\ns_mov_b64 exec, -1", kind="vmem"); it.cost = 8
    return it
def codepf():
    return [I("global_load_dword v30, v[28:29], off", dst={"v30"})]

def lin(items):
    out = []
    for k, it in enumerate(items):
        out.append(it)
        if it.text.startswith("s_add_u32 m0") and items[k + 1].kind == "vmem": out.append(I("s_nop 0"))
    return out

def stamp(idx, k2=False):
    if not OPT["stamps"]: return []
    if OPT["stamps"] == 9:
        if idx not in (48, 54): return []
        return Is(f"s_memrealtime s[94:95]\ns_waitcnt lgkmcnt(0)\nv_writelane_b32 v{31 if idx == 48 else 22}, s94, {idx}")
    va, vb = (22, 23) if idx >= 51 else (31, 31) if OPT['stamps'] >= 6 else (46, 47)
    if idx == -2: sel = "s_add_u32 s92, s39, 31"
    elif idx < 0: sel = f"s_mul_i32 s92, s{sItem}, 24\ns_add_u32 s92, s92, s{sI}\ns_add_u32 s92, s92, 8"
    else: sel = f"s_mov_b32 s92, {idx}" if (k2 or idx >= 48) else f"s_mul_i32 s92, s{sItem}, 24\ns_add_u32 s92, s92, {idx}"
    return Is(f"""s_memtime s[90:91]
s_memrealtime s[94:95]
s_waitcnt lgkmcnt(0)
s_cselect_b32 s96, 1, 0
{sel}
s_mov_b32 s93, m0
s_mov_b32 m0, s92
v_writelane_b32 v{vb}, s94, m0
v_writelane_b32 v{va}, s90, m0
s_mov_b32 m0, s93
s_cmp_lg_u32 s96, 0""")
def stamp_out(karg, wg, wave, tmp, base, k2=False):
    if not OPT["stamps"]: return []
    va = 22
    return Is(f"""s_load_dwordx2 s[80:81], {karg}, 96
s_waitcnt lgkmcnt(0)
s_add_u32 s80, s80, {base}
s_addc_u32 s81, s81, 0
s_mov_b32 s82, 0x100000
s_mov_b32 s83, 0x20000
s_lshl_b32 s84, s{wg}, 2
s_add_u32 s84, s84, s{wave}
s_lshl_b32 s84, s84, 9
v_lshlrev_b32 v{tmp}, 3, v0
buffer_store_dwordx2 v[{va}:{va+1}], v{tmp}, s[80:83], s84 offen""")


def pst(idx):
    if OPT["stamps"] != 8: return []
    return Is(f"s_memtime s[28:29]\ns_waitcnt lgkmcnt(0)\nv_writelane_b32 v31, s28, {idx}") if idx < 18 else stamp(idx, True)
def kernel1():
    B = {}
    c = math.log2(math.e) / math.sqrt(192.0)
    import struct
    cbits = struct.unpack("<I", struct.pack("<f", c))[0]
    kload = lambda b: Is(f"s_load_dwordx16 s[4:19], {b}, 0\ns_load_dwordx8 s[20:27], {b}, 64\ns_load_dwordx2 {S2(sWsP)}, {b}, 96")
    B["kre"] = kload(S2(sKA)) + Is("s_branch K1_PRO")
    B["entry"] = Is("s_cmp_ge_u32 s2, 256\ns_cbranch_scc1 K1_END") + kload("s[0:1]") + Is(f"""
v_lshrrev_b32 v{vT}, 6, v0
v_and_b32 v0, 63, v0
s_mov_b32 s{sWg}, s2
v_readfirstlane_b32 s{sWave}, v{vT}
s_mov_b64 {S2(sKA)}, s[0:1]
s_mov_b32 s{sMode}, 0
s_mov_b32 s{sSig}, 0""") + stamp(48)
    cpa = Is(f"""
s_getpc_b64 s[90:91]
K1_PC:
s_lshr_b32 s86, s{sWg}, 3
s_lshl2_add_u32 s86, s86, s{sWave}
s_lshl_b32 s86, s86, 10
v_lshl_add_u32 v28, v0, 4, s86
v_min_u32 v28, (K_CODE_END-K1_PC-32)&0xfffffff0, v28
s_and_b32 s90, s90, 0xfffffff0
v_mov_b32 v29, s91
v_add_co_u32 v28, vcc, s90, v28
s_mov_b32 s{sSp}, 0
s_nop 0
v_addc_co_u32 v29, vcc, 0, v29, vcc""") + codepf()
    t0, t1, t2, t3 = vT, vT + 1, vT + 2, vT + 3
    P = Is(f"""K1_PRO:
s_lshr_b32 s82, s{sWg}, 6
s_and_b32 s83, s{sWg}, 2
s_lshl1_add_u32 s81, s83, s82
s_mul_i32 s82, s81, 307200
s_lshl_b32 s{sXoff}, s{sWave}, 13
s_lshl_b32 s86, s{sWave}, 6
v_lshrrev_b32 v{t0}, 3, v0
v_and_b32 v{t1}, 7, v0
v_and_b32 v{t2}, 6, v{t0}
v_xor_b32 v{t1}, v{t1}, v{t2}
v_add_u32 v{t2}, s86, v{t0}
v_mul_u32_u24 v{vDx}, 1280, v{t2}
v_lshl_add_u32 v{vDx}, v{t1}, 4, v{vDx}
s_bfe_u32 s{sT3}, s{sWg}, 0x10002
s_waitcnt lgkmcnt(0)
s_cselect_b64 s[92:93], s[16:17], s[6:7]
s_cselect_b64 s[4:5], s[14:15], s[4:5]
s_add_u32 s{sX}, s4, s82
s_addc_u32 s{sX+1}, s5, 0
s_mov_b32 s{sX+2}, 307200
s_mov_b32 s{sX+3}, 0x20000""") + pst(16) + dma_x(0) + cpa + Is(f"""
s_cmp_eq_u32 s{sT3}, 0
s_cselect_b64 s[94:95], s[8:9], s[18:19]
s_cselect_b64 s[96:97], s[10:11], s[20:21]
s_cselect_b64 {S2(sWoP)}, s[12:13], s[22:23]
s_mov_b64 {S2(sOutP)}, s[24:25]
s_mov_b64 {S2(sDb)}, s[26:27]
s_lshr_b32 s91, s{sWg}, 3
s_and_b32 s88, s{sWg}, 1
s_and_b32 s89, s91, 7
s_lshl3_add_u32 s80, s88, s89
s_mul_i32 s84, s80, 384
s_mul_i32 s{sWoff}, s{sWave}, 6144
v_mul_u32_u24 v{vDkv}, 384, v{t0}
v_lshl_add_u32 v{vDkv}, v{t1}, 4, v{vDkv}
v_add_u32 v{vDkv}, s{sWoff}, v{vDkv}
v_and_b32 v{t2}, 4, v{t1}
v_and_b32 v{t3}, 1, v{t1}
v_lshl_or_b32 v{t2}, v{t3}, 1, v{t2}
v_bfe_u32 v{t3}, v{t1}, 1, 1
v_or_b32 v{t1}, v{t2}, v{t3}
v_and_b32 v{t2}, 3, v{t0}
v_lshrrev_b32 v{t3}, 2, v{t0}
v_lshl_add_u32 v{t2}, v{t3}, 3, v{t2}
s_lshr_b32 s86, s{sWave}, 1
s_lshl_b32 s86, s86, 5
s_and_b32 s87, s{sWave}, 1
s_lshl2_add_u32 s86, s87, s86
v_add_u32 v{t2}, s86, v{t2}
v_mul_u32_u24 v{vDw}, 12288, v{t2}
v_lshl_add_u32 v{vDw}, v{t1}, 4, v{vDw}
v_add_u32 v{vDw1}, {196608-3072}, v{vDw}
s_add_u32 s{sDA}, s96, s84
s_addc_u32 s{sDA+1}, s97, 0
s_sub_u32 s{sDA+2}, 7864320, s84
s_mov_b32 s{sDA+3}, 0x20000
""")
    P0 = P
    P = Is(f"""
s_lshl_b32 s83, s81, 5
s_add_u32 s83, s83, s80
s_mul_i32 s83, s83, 393216
s_lshl_b32 s85, s{sT3}, 5
s_lshl_b32 s86, s88, 4
s_add_u32 s85, s85, s86
s_add_u32 s85, s85, s89
s_and_b32 s86, s89, 4
s_add_u32 s85, s85, s86
s_mul_i32 s85, s85, 720
s_mul_i32 s86, s81, 15
s_add_u32 s85, s85, s86
s_lshl_b32 s85, s85, 10
s_and_b32 s88, s{sWg}, 3
s_lshl_b32 s89, s91, 2
s_add_u32 s88, s88, s89
s_add_u32 s{sK}, s92, s83
s_addc_u32 s{sK+1}, s93, 0
s_add_u32 s{sV}, s94, s83
s_addc_u32 s{sV+1}, s95, 0
s_mov_b32 s{sDb+2}, 256
s_mov_b32 s{sDb+3}, 0x20000
s_bfe_u32 s{sCo}, s{sWg}, 0x20001
s_lshl_b32 s{sCo}, s{sCo}, 6
s_cmp_eq_u32 s{sSig}, 0
s_cselect_b32 s{sOn}, {5*122880+15*1024}, 0
s_add_u32 s{sNb}, s{sDA}, 6144
s_addc_u32 s{sNb+1}, s{sDA+1}, 0
s_sub_u32 s{sNnum}, s{sDA+2}, 6144
s_lshr_b32 s86, s88, 1
s_and_b32 s87, s88, 1
s_lshl_b32 s87, s87, 6
s_add_u32 s86, s86, s87
s_mul_i32 s86, s86, 30720
s_add_u32 s{sN2}, s{sWoP}, s86
s_addc_u32 s{sN2+1}, s{sWoP+1}, 0
s_mul_i32 s86, s88, {4*12288}
s_add_u32 s86, s86, {128*12288+6144}
s_add_u32 s{sP1}, s96, s86
s_addc_u32 s{sP1+1}, s97, 0
s_mov_b32 s{sP1+2}, {3*12288+6144}
s_mov_b32 s{sP1+3}, 0x20000
s_mov_b32 s{sT3}, 4096
s_add_u32 s{sO}, s{sWsP}, s85
s_addc_u32 s{sO+1}, s{sWsP+1}, 0
s_sub_u32 s{sO}, s{sO}, {OSTRIDE}
s_subb_u32 s{sO+1}, s{sO+1}, 0
s_mov_b32 s{sO+2}, 0
s_mov_b32 s{sO+3}, 0x20000
s_lshl_b32 s86, s{sWg}, 7
s_add_u32 s86, s86, {FLG}
s_add_u32 s{sDB}, s{sWsP}, s86
s_addc_u32 s{sDB+1}, s{sWsP+1}, 0
s_cmp_eq_u32 s{sMode}, 0
s_cselect_b32 s{sDB+2}, 128, 0
s_mov_b32 s{sDB+3}, 0x20000
s_mov_b32 s{sItem}, 0
s_mov_b32 s{sFlag}, 0
s_mov_b32 s{sSel}, {OPT['me']}
s_mov_b32 s{sBk}, 0
s_lshr_b32 s80, s{sWg}, 4
s_mul_i32 s84, s80, 52
s_lshr_b32 s84, s84, 8
s_mul_i32 s85, s84, 5
s_sub_u32 s85, s80, s85
s_and_b32 s81, s{sWg}, 1
s_bfe_u32 s89, s{sWg}, 0x10003
s_lshl1_add_u32 s89, s81, s89
s_and_b32 s82, s{sWave}, 1
s_lshr_b32 s83, s{sWave}, 1
s_xor_b32 s86, s81, s82
s_xor_b32 s86, s86, 1
s_lshl_b32 s86, s86, 7
s_lshl_b32 s87, s85, 8
s_add_u32 s86, s86, s87
s_mul_i32 s87, s83, {64*1280}
s_add_u32 s86, s86, s87
s_mul_i32 s87, s89, {768*1280}
s_add_u32 s86, s86, s87
s_add_u32 s{sWoP}, s{sWoP}, s86
s_addc_u32 s{sWoP+1}, s{sWoP+1}, 0
s_sub_u32 s{sK2n}, 7864320, s86
s_cmp_lt_u32 s80, 15
s_cselect_b32 s{sK2n}, s{sK2n}, 0
s_bfe_u32 s86, s{sWg}, 0x10001
s_mul_i32 s86, s86, 60
s_mul_i32 s87, s84, 20
s_add_u32 s86, s86, s87
s_mul_i32 s87, s{sWave}, 5
s_add_u32 s86, s86, s87
s_bfe_u32 s87, s{sWg}, 0x10002
s_lshl2_add_u32 s88, s87, s89
s_mul_i32 s88, s88, {48*120}
s_add_u32 s88, s88, s86
s_lshl_b32 s88, s88, 10
s_add_u32 s{sK2O}, s{sWsP}, s88
s_addc_u32 s{sK2O+1}, s{sWsP+1}, 0
s_mul_i32 s88, s86, {16*2560}
s_mul_i32 s87, s87, 1280
s_add_u32 s88, s88, s87
s_lshl_b32 s87, s85, 8
s_add_u32 s88, s88, s87
s_lshl_b32 s87, s89, 6
s_add_u32 s88, s88, s87
s_add_u32 s{sOutP}, s{sOutP}, s88
s_addc_u32 s{sOutP+1}, s{sOutP+1}, 0
s_mov_b32 s{sC}, {cbits:#x}
s_mov_b32 s{sC+1}, {cbits:#x}
s_mov_b32 s{sThr}, 0x5d800000
""") + [I(f"s_mov_b32 s{sOs[s]}, {s*122880}") for s in range(6)]
    kb0, vb0 = vK[0][0], vV[0][0]
    P += Is(f"""
v_and_b32 v{t0}, 15, v0
v_lshrrev_b32 v{t1}, 4, v0
v_and_b32 v{t2}, 6, v{t0}
v_xor_b32 v{t3}, v{t2}, v{t1}
v_lshlrev_b32 v{t3}, 4, v{t3}
v_lshl_add_u32 v{vXr[0][0]}, v{t0}, 7, v{t3}
v_add_u32 v{vXr[0][0]}, s{sXoff}, v{vXr[0][0]}
v_xor_b32 v{vXr[0][1]}, 64, v{vXr[0][0]}
v_add_u32 v{vXr[1][0]}, {X1}, v{vXr[0][0]}
v_add_u32 v{vXr[1][1]}, {X1}, v{vXr[0][1]}
v_lshrrev_b32 v{t2}, 3, v{t0}
v_mul_u32_u24 v{kb0}, 3072, v{t2}
v_and_b32 v{t2}, 7, v{t0}
v_lshl_add_u32 v{kb0}, v{t2}, 7, v{kb0}
v_add_u32 v{kb0}, v{kb0}, v{t3}
v_xor_b32 v{vK[0][1]}, 64, v{kb0}
v_add_u32 v{vK[1][0]}, {KW[1]}, v{kb0}
v_add_u32 v{vK[1][1]}, {KW[1]}, v{vK[0][1]}
v_lshrrev_b32 v{t2}, 5, v0
v_mul_u32_u24 v{vb0}, 3072, v{t2}
v_bfe_u32 v{t2}, v0, 2, 3
v_lshl_add_u32 v{vb0}, v{t2}, 7, v{vb0}
v_and_b32 v{t2}, 6, v{t2}
v_bfe_u32 v{t3}, v0, 1, 1
v_xor_b32 v{t2}, v{t2}, v{t3}
v_lshl_add_u32 v{vb0}, v{t2}, 4, v{vb0}
v_and_b32 v{t2}, 1, v0
v_lshl_add_u32 v{vb0}, v{t2}, 3, v{vb0}
v_add_u32 v{vb0}, {VW[0]}, v{vb0}
v_xor_b32 v{vV[0][1]}, 32, v{vb0}
v_xor_b32 v{vV[0][2]}, 64, v{vb0}
v_xor_b32 v{vV[0][3]}, 96, v{vb0}
""") + [I(f"v_add_u32 v{vV[1][i]}, {VW[1]-VW[0]}, v{vV[0][i]}") for i in range(4)] + Is(f"""
v_bfe_i32 v{t2}, v0, 2, 1
v_and_b32 v{t2}, 0xaaaaaaaa, v{t2}
v_or_b32 v{vIx}, 0x44444444, v{t2}
s_lshl_b32 s86, s{sWave}, 12
v_lshlrev_b32 v{vO}, 4, v0
v_add_u32 v{vO}, s86, v{vO}
s_cmp_eq_u32 s{sWave}, 3
s_cselect_b32 s86, 0x80000000, 0
v_add_u32 v{vO3}, s86, v{vO}
""")
    P += [I(f"v_mov_b32 v{vL[q]}, 0") for q in range(4)]
    L0 = dma_w(0) + dma_w(1) + dma_x(1) + hd(dma_w(2))
    ld = lin(take(L0, OPT['p0'])); L0 = take(L0, 99)
    rest = P; P = P0; nv = 0
    for x in ld:
        P.append(x)
        if x.kind == "vmem":
            nv += 1; c_ = 0
            while rest and nv > OPT["pskip"] and (c_ < 12 or rest[0].text.split()[0] in ("s_addc_u32", "s_subb_u32", "s_cselect_b32", "s_cselect_b64")):
                P.append(rest.pop(0)); c_ += 1
    P += rest + pst(19)
    clr = I(f"buffer_store_dwordx4 {V4(vL[0])}, v{vO}, {S4(sDB)}, 0 offen sc1", dst={"OST"})
    XALL = lambda n: {f"X{n&1}_{q}" for q in range(4)}
    P += [WAIT(vneed=XALL(0) | {f"L{slot(0)}"})] + reads_x(0) + Is("s_barrier")
    B["pro"] = P + pst(20) + reads_v(0, slot(0))[:NPRE_V] + stamp(0) + [WAIT(lneed=regs("a", fq(0, 0), 8))]
    xr = reads_x(1); st_ = []
    for q in range(4): st_ += [WAIT(vneed={f"X1_{q}"})] + xr[2 * q:2 * q + 2]
    spread(st_[:6], 56, BG - 5); spread(st_[6:], BG + 1, 90)
    B["w0a"] = phase("w0a", 0, "v", mf_w(0), reads_v(0, slot(0))[NPRE_V:], reads_v(1, slot(1))[:NPRE_V], "v", slot(1), L0 + tl(dma_w(2)) + dma_x(2),
                     hd(dma_w(3)) + [clr], [st_], early_hi=74, endx=regs("a", Xf(1, 0, 0), 32)) + Is("K1_W1:")
    NE0 = OPT["ne0"]
    EW = {0: list(range(NE0, 8))}
    rest = list(range(8, 24)); per = [3, 3, 2, 2, 2, 2, 2]
    for n in range(1, 8): EW[n] = rest[:per[n - 1]]; rest = rest[per[n - 1]:]
    NC9 = OPT["nc9"]
    cunits = [(s, qt) for s in range(6) for qt in range(4)]
    cold = dma_k(0, X0) + dma_k(1, slot(2)) + dma_v(0, slot(3)); C8 = OPT["cw8"]
    cut = lambda p: 10 * (p // 3) + (0, 4, 7)[p % 3]
    pairs = lambda a, b: cold[cut(a):cut(b)]
    for n in range(10):
        own = reads_v(n, slot(n % 4))[NPRE_V:]
        early = []; extra = []; post = []; endx = set()
        if n < 9: nxt = reads_v(n + 1, slot((n + 1) % 4))[:NPRE_V]; nt_ = "v"; pub = slot((n + 1) % 4)
        else: nxt = reads_k(10, X0)[:NPRE_K]; nt_ = "k"; pub = X0
        if n < 8: early += tl(dma_w(n + 2))
        if n == 8: early += pairs(1, 1 + C8)
        if n == 9: early += pairs(2 + C8, 8)
        if n == 7:
            early += Is(f"""s_mov_b64 {S2(sDA)}, {S2(sK)}
s_mov_b32 s{sDA+2}, 393216
s_mov_b64 {S2(sDB)}, {S2(sV)}
s_mov_b32 s{sDB+2}, 393216""")
        if n < 8: early += dma_x(n + 2)
        if (OPT['cpw'] >> n) & 1: early += codepf()
        if n == 8: post = Is(f"""s_mov_b32 s83, 0xff800000
s_cmp_eq_u32 s{sWave}, 3
s_cselect_b32 s82, 0x71000000, s83
v_mov_b32 v{vMi[0]}, s83
v_mov_b32 v{vMi[1]}, s83
v_mov_b32 v{vMi[2]}, s83
v_mov_b32 v{vMi[3]}, s82""")
        es = []; sts = []; us = EW.get(n, [])
        for u in us:
            e = epi_unit(u, False)
            if u >= us[-1] - 2:
                x = e.pop(); x.after = [e[-1], early[-1]]; sts.append(x)
            es += e
        late0 = n == 0 and NE0 < 6
        if es: extra.append(spread(es, 0, (BG + 14 if late0 else 70) if n == 0 else 90, NOV))
        if sts: extra.append(spread(sts, 72, 96, [BG]))
        if n < 9:
            xr = reads_x(n + 1); st = []
            for q in range(4):
                if q % 2 == 0: st.append(WAIT(vneed={f"X{(n+1)&1}_{q}", f"X{(n+1)&1}_{q+1}"}))
                st += xr[2 * q:2 * q + 2]
            spread(st, 46, BG - 5)
            if n == 0:
                for q in range(4):
                    la = [x for x in es if x.text.endswith(f" a{Oacc(3, q) + 3}")]
                    for it in xr[2 * q:2 * q + 2]:
                        it.after = la
                        if q == 3 and late0: it.lo = BG + 1; it.hi = 88; it.target = BG + 4
                    if la: la[0].hi = BG - 1 if q == 3 and late0 else BG - 8
                endx = regs("a", Xf(1, 0, 0), 32)
            extra.append(st)
        if n == 9:
            pub = {f"L{X0}", "OST"}
        if n == 9 and NC9:
            cs = []; sw = []
            for (s, qt) in cunits[:NC9]:
                a, b = cvt_unit(s, qt, False)
                a[0].lo = 16 * s + 8 + 2 * qt + 1 + 8
                for x in b: x.after = [a[-1]]; x.dly = 1
                cs += a; sw += b
            spread(cs, 17, 92, NOV)
            for x in sw: x.target = x.after[0].target + 2
            extra += [cs, sw]
        d = hd(dma_w(n + 3)) if n < 7 else pairs(0, 1) if n == 7 else pairs(1 + C8, 2 + C8) if n == 8 else pairs(8, 9)
        B[f"w{n}"] = (stamp(8 + n) if OPT["stamps"] == 7 else []) + phase(f"w{n}", n, "v", mf_w(n), own, nxt, nt_, pub, early, d, extra, early_hi=70, post=post, endx=endx)
    C = stamp(1) + Is('.p2align 3'); pend = []
    for k, (s, qt) in enumerate(cunits[NC9:]):
        a, b = cvt_unit(s, qt, True)
        C += a[:4] + pend + a[4:]; pend = b
    C += Is(f"s_cmp_lg_u32 s{sMode}, 0\ns_nop 0") + pend + Is("s_cbranch_scc1 K1_MAXPASS\nK1_MAXRET:\ns_nop 0") + stamp(2)
    B["cvt"] = C
    M = []; last = []
    for qt in range(4):
        x = XY(0, 0, qt); m = vT + 2 * qt; t = m + 1
        a = I(f"v_max3_f32 v{m}, v{x}, v{x+1}, v{x+2}", lo=6 * qt + 13)
        b = I(f"v_max3_f32 v{m}, v{m}, v{x+3}, v{vMi[qt]}")
        c_ = I(f"v_mov_b32 v{t}, v{m}")
        d = I(f"v_permlane16_swap_b32 v{m}, v{t}", after=[c_], dly=1)
        e = I(f"v_max_f32 v{m}, v{m}, v{t}")
        f = I(f"v_mov_b32 v{t}, v{m}")
        g = I(f"v_permlane32_swap_b32 v{m}, v{t}", after=[f], dly=1)
        h = I(f"v_max_f32 v{m}, v{m}, v{t}")
        ns = [I(f"v_sub_f32 v{negm(qt)+i}, 0, v{m}", hi=48 + 6 * qt - 3) for i in range(4)]
        st = [a, b, c_, d, e, f, g, h] + ns
        for j, it in enumerate(st): it.target = 6 * qt + 13 + j * 0.5
        M.append(st); last.append(ns[0])
    NA0 = OPT['na0']
    sm = softmax([(0, 0, qt, 0, 24 + 6 * qt + 13, 95, True) for qt in range(NA0)], 28, 93, sub=last)
    early = Is(f"""s_mov_b32 s{sA}, {3*TILE}
s_mov_b32 s{sB}, {2*TILE}
s_mov_b32 s{sI}, 0
s_add_u32 s{sO}, s{sO}, {OSTRIDE}
s_addc_u32 s{sO+1}, s{sO+1}, 0
s_mov_b32 s{sO+2}, s{sOn}
s_mov_b32 s{sOn}, {5*122880+15*1024}""") + dma_k(2, slot(0))
    hand = [WAIT(vneed={"v30"})] + Is(f"""v_mov_b32 v30, 1
s_and_b32 s80, s{sWg}, 1
s_lshl_b32 s80, s80, 2
s_add_u32 s80, s80, s{sCo}
s_cmp_eq_u32 s{sAll}, 0
s_cselect_b32 s81, s{sItem}, 0
s_cmp_lt_u32 s{sSig}, s81
s_cselect_b32 s80, s80, 0x1000
s_cselect_b32 s{sSig}, 1, s{sSig}
s_cmp_eq_u32 s{sWave}, 0
s_cselect_b32 s80, s80, 0x1000""") + [atomic(30, 80)]
    B["qk0"] = phase("qk0", 10, "k", mf_qk(10, 0, True), reads_k(10, X0)[NPRE_K:], reads_k(11, slot(2))[:NPRE_K], "k", slot(2), early,
                     hd(dma_v(1, slot(1))), M + sm, early_hi=70) + stamp(3)
    def half(nm, par, mode, xq=0, xp=0, probe=False, io=None):
        ks, vs, kn, vp = slot(2 * par), slot(2 * par + 1), slot(2 - 2 * par), slot(3 - 2 * par)
        last = mode == "last"; first = mode == "first"
        mp = mf_pv(12, 1 - par, first) + mf_l(1 - par) + (mf_l(1) if last and par else [])
        NP_ = len(mp)
        gq = g_old(1 - par, 1, range(4), 96, True); gp = g_old(par, 0, range(4), NP_, False); hq = BG - 2
        if first: gq = [g[:6] + (True,) for g in g_old(0, 0, range(NA0, 4), 96, True)] + gq; hq = 88
        if last and par == 0:
            gq = gq + g_new(0, [0]); hq = 93
            gp = g_old(0, 0, [1, 2, 3], NP_, False) + g_old(0, 1, [0, 1], NP_, False)
        if last and par:
            gq = g_old(0, 1, [2, 3], 96, True) + g_new(1, [0, 1, 2]); hq = 93
            gp = [(1, 0, 3, 0, 0, 97, False)] + [(1, 1, qt, 4, 6, NP_ - 7 + qt, False) for qt in range(4)]
        def burst(gs):
            if not gs: return []
            P_, E, D = softmax(gs, 0, 90); out = list(P_)
            for j in range(0, len(E), 2):
                out += E[j:j + 2] + (D[j // 2 - 1:j // 2] if j else [])
            return out + Is("s_nop 0") + D[-1:]
        bq = burst(gq[:xq]); gq = gq[xq:]; bp = burst(gp[:xp]); gp = gp[xp:]
        post = []
        if last: qe, qt_, pe, pt, qx, px = io
        else:
            qe = tl(dma_v(1, slot(1))) if first else (codepf() if par == 0 else []) + tl(dma(sDB, sB, vp)) + Is(f"s_add_u32 s{sB}, s{sB}, {TILE}")
            qt_ = hd(dma(sDA, sA, ks)); pe = tl(dma(sDA, sA, ks)) + Is(f"s_add_u32 s{sA}, s{sA}, {TILE}"); pt = hd(dma(sDB, sB, vs)); qx = []; px = []
            if par and not first: post = Is(f"s_add_u32 s{sI}, s{sI}, 1\ns_or_b32 s80, s{sSel}, 0x40\ns_bitcmp0_b32 s80, s{sI}")
        if probe:
            pe = pe + Is(f"s_getreg_b32 s80, hwreg(HW_REG_IB_STS, 0, 4)\ns_cmp_ge_u32 s80, {OPT['adp']}\ns_addc_u32 s{sBk}, s{sBk}, 0")
        if first:
            pe = hand + pe
            sel = Is("v_and_b32 v47, 3, v0\nv_mov_b32 v46, 0x3f803f80")
            for qt in range(4):
                c_ = I(f"v_cmp_eq_u32 s[86:87], {qt}, v47")
                sel += [c_, I(f"v_cndmask_b32 v{32+4*qt}, 0, v46, s[86:87]", after=[c_], dly=1)] + [I(f"v_mov_b32 v{32+4*qt+j}, v{32+4*qt}") for j in range(1, 4)]
            sel += [I(f"v_mov_b32 v{vL[q]}, 0") for q in range(4)]
            px = [spread(sel, 2, 92, NOV)]
        q = bq + phase("qk" + nm, 11, "k", mf_qk(11, par), reads_k(11, ks)[NPRE_K:], reads_v(12, vs)[:NPRE_V], "v", vs, qe, qt_,
                       softmax(gq, 0, hq) + qx, early_hi=72)
        if last and par: nxt, nty, pub = reads_v(41, X1)[:NPRE_V], "v", X1
        else: nxt, nty, pub = reads_k(11, kn)[:NPRE_K], "k", kn
        p = bp + phase("pv" + nm, 12, "v", mp, reads_v(12, vs)[NPRE_V:], nxt, nty, pub, pe, pt,
                       softmax(gp, 0, NP_ - (7 if last and par else 3)) + px, post=post, early_hi=72)
        return q + p
    st = lambda: stamp(-1) if OPT["stamps"] == 6 else []
    B["peel"] = half("1", 1, "first", OPT["pq"], OPT["pp"]) + Is(f"s_bitcmp1_b32 s{sSel}, 0\ns_cbranch_scc1 K1_LA")
    B["loop"] = Is(".p2align 6\nK1_L:") + st() + half("e", 0, "loop", OPT["yq"], OPT["yp"]) + half("o", 1, "loop", OPT["yq"], OPT["yp"]) + Is("s_cbranch_scc1 K1_L")
    B["loope"] = Is(f"s_cmp_lg_u32 s{sI}, 6\ns_cbranch_scc1 K1_LA\ns_cmp_eq_u32 s{sItem}, 0\ns_cbranch_scc1 K1_LASTA")
    B["loopa"] = Is(".p2align 6\nK1_LA:") + st() + half("ea", 0, "loop", OPT["xq"], OPT["xp"], OPT["adp"]) + half("oa", 1, "loop", OPT["xq"], OPT["xp"], OPT["adp"]) + Is("s_cbranch_scc1 K1_L")
    B["loopx"] = Is(f"s_cmp_lg_u32 s{sI}, 6\ns_cbranch_scc1 K1_LA\ns_cmp_lg_u32 s{sItem}, 0\ns_cbranch_scc1 K1_LASTB")
    def pv15(nm, ne, nxt, pub, tail, extra=(), endv=None, **kw):
        B15 = OPT["bg15"]
        c2 = [I(f"v_mov_b32 v{168+q}, v{vL[q]}", lo=8) for q in range(4)]
        R = c2 + [I(f"v_permlane16_swap_b32 v{vL[q]}, v{168+q}", after=[c2[q]], dly=1) for q in range(4)] + [I(f"v_add_f32 v{vL[q]}, v{vL[q]}, v{168+q}") for q in range(4)]
        R += [I(f"v_rcp_f32 v{RCP+2*q}, v{vL[q]}") for q in range(4)] + [I(f"v_cmp_ngt_f32 {S2(80+2*q)}, s{sThr}, v{vL[q]}") for q in range(4)]
        spread(R, 7, 24)
        for it in R: it.hi = 95
        es = []; sts = []
        for u in range(ne):
            e = epi_unit(u, False); e[0].lo = 16 * (u // 4) + 2 * (u % 4) + 1 + 8; e[10].lo = e[0].lo + 8
            if u >= ne - 3: x = e.pop(); x.after = [e[-1]]; sts.append(x)
            es += e
        spread(es, 22, 94, range(B15, B15 + 9))
        fl = Is(f"""s_or_b64 s[80:81], s[80:81], s[82:83]
s_or_b64 s[84:85], s[84:85], s[86:87]
s_or_b64 s[80:81], s[80:81], s[84:85]
s_or_b32 s80, s80, s81
s_or_b32 s{sFlag}, s{sFlag}, s80
s_lshl_b32 s80, s{sWave}, 2
s_add_u32 s80, s80, {FLO}
v_mov_b32 v160, s80
v_mov_b32 v161, s{sFlag}
v_mov_b32 v162, {FLO}""") + [Ins("ds_write_b32 v160, v161")]
        fl[-1].cost = 8
        fl[0].after = R[-1:]; fl[0].dly = 2
        f1 = I(f"ds_read_b128 {V4(164)}, v162", dst=regs("v", 164, 4), lo=B15 + 1, target=B15 + 3)
        f2 = WAIT(lneed=regs("v", 164, 4), lo=80, target=80)
        f3 = Is("v_or_b32 v164, v164, v165\nv_or3_b32 v164, v164, v166, v167")
        f4 = I(f"v_readfirstlane_b32 s{sAll}, v164", after=[f3[1]], hi=91)
        for x in f3 + [f4]: x.target = 81
        ex = list(extra(es, sts)) if extra else []
        out = stamp(4) + phase(nm, 41, "v", mf_pv(41, 1), reads_v(41, X1)[NPRE_V:], nxt, "v", pub, fl, tail, [R + es, [f1, f2] + f3 + [f4]] + ex, bg=B15, endv=endv, **kw)
        return out + stamp(5) + stamp(6) + Is(f"s_cmp_lg_u32 s{sMode}, 0\ns_cselect_b32 s{sAll}, 0, s{sAll}"), sts
    x = pf()
    A_ = lambda book: half("14a", 0, "last", io=[tl(dma(sDB, sB, slot(3))) + codepf() + book, hd(dma_v(15, X1)),
                                    tl(dma_v(15, X1)) + Is(f"s_mov_b64 {S2(sDA)}, {S2(sNb)}\ns_mov_b32 s{sDA+2}, s{sNnum}"), hd(dma_w(0)), [], []]) \
        + half("15a", 1, "last", io=[tl(dma_w(0)) + dma_x(0), hd(dma_w(1)), tl(dma_w(1)) + x[:4], hd(dma_w(2)) + x[4:], [], []])
    dx1 = dma_x(1)
    x0r = reads_x(0)
    def exa(es, sts):
        for y in sts: y.after = y.after + [dx1[-1]]; y.target = 92
        if not OPT["xin"]: return [sts]
        for q in range(4):
            for y in x0r[2 * q:2 * q + 2]: y.after = [x for x in es if x.text.endswith(f" a{Oacc(1, q) + 3}")]
        return [sts, spread(x0r, OPT["bg15"] + 2, 88)]
    book = Is(f"""s_cmp_ge_u32 s{sBk}, {OPT['adn']}
s_cselect_b32 s{sSel}, 63, {OPT['m1']}
s_add_u32 s{sK}, s{sK}, {16*393216}
s_addc_u32 s{sK+1}, s{sK+1}, 0
s_add_u32 s{sV}, s{sV}, {16*393216}
s_addc_u32 s{sV+1}, s{sV+1}, 0""")
    if OPT["rot"]:
        book += Is(f"""s_lshr_b32 s80, s{sWg}, 4
s_mul_i32 s80, s80, 52
s_lshr_b32 s80, s80, 8
s_min_u32 s80, s80, 2
s_bfe_u32 s81, s{sWg}, 0x10001
s_lshl1_add_u32 s80, s80, s81
s_mul_i32 s{sRo[0]}, s80, {128*1280}""")
        for u in range(1, 6): book += Is(f"s_add_u32 s{sRo[u]}, s{sRo[u-1]}, {128*1280}\ns_cmp_eq_u32 s{sRo[u]}, {768*1280}\ns_cselect_b32 s{sRo[u]}, 0, s{sRo[u]}")
    B["lasta"] = Is("K1_LASTA:") + st() + A_(book) + pv15("pv15a", NE0, reads_v(0, slot(0))[:NPRE_V], {f"L{slot(0)}"} | XALL(0), dx1, exa, dend=90,
                                                   endx=regs("a", 0, 32) if OPT["xin"] else frozenset())[0]
    B["mid"] = Is(f"s_mov_b32 s{sItem}, 1") + ([] if OPT["xin"] else x0r + [WAIT(lzero=True)]) + stamp(0)
    B["w0"] += Is("s_branch K1_W1")
    k2tr, k2lay = oproj(B, half, pv15, st)
    X = Is(f"""K1_MAXPASS:
v_and_b32 v{vT}, 15, v0
v_lshrrev_b32 v{vT+1}, 4, v0
v_mul_u32_u24 v{vT}, 384, v{vT}
v_lshl_add_u32 v{vT}, v{vT+1}, 4, v{vT}
s_mov_b32 s{sT}, 0""") + [I(f"v_mov_b32 v{vMi[q]}, 0xff800000") for q in range(4)] + Is("K1_MAXL:")
    for s in range(6): X.append(I(f"buffer_load_dwordx4 {V4(SP+4*s)}, v{vT}, {S4(sDA)}, s{sT} offen offset:{s*64}"))
    X.append(I("s_waitcnt vmcnt(0)"))
    for qt in range(4):
        for s in range(6): X.append(mfma(V4(SP + 32 + 4 * qt), V4(SP + 4 * s), V4(Qf(qt, s)), V4(SP + 32 + 4 * qt) if s else "0"))
    X.append(I("s_nop 7"))
    for qt in range(4):
        d = SP + 32 + 4 * qt
        X += Is(f"v_max3_f32 v{vMi[qt]}, v{vMi[qt]}, v{d}, v{d+1}\nv_max3_f32 v{vMi[qt]}, v{vMi[qt]}, v{d+2}, v{d+3}")
    X += Is(f"s_add_u32 s{sT}, s{sT}, 6144\ns_cmp_lt_u32 s{sT}, 393216\ns_cbranch_scc1 K1_MAXL\ns_branch K1_MAXRET")
    B["maxpass"] = X
    front = [f"w{n}" for n in range(1, 10)] + ["cvt", "qk0", "peel"]
    mixes = [["loopa"] * 6, ["loop"] * 6, ["loopa", "loopa", "loop", "loopa", "loop", "loop"]]
    traces = [["entry", "pro", "w0a"] + front + mixes[i] + ["lasta", "mid", "w0"] + front + mixes[j] + t_ for (i, j) in ((0, 1), (2, 0)) for t_ in k2tr]
    layout = ["entry", "pro", "w0a"] + front + ["loop", "loope"] + k2lay + ["loopa", "loopx", "lasta", "mid", "w0", "k2side", "k2idle", "maxpass"]
    for t_ in traces: resolve_waits(B, t_)
    txt = {k: "\n".join(emit(v)).split("\n") for k, v in B.items()}
    errs = []
    for t_ in traces: errs += verify([l for b in t_ for l in txt[b]])
    errs += verify([l for b in ["entry", "pro", "w0a"] + front[:10] + ["maxpass", "maxpass"] + front[10:] for l in txt[b]])
    errs += verify([l for b in ["loop", "lastb", "k2idle"] for l in txt[b]])
    for t_ in k2tr: errs += verify([l for b in t_[:4] + ["k2wx" + t_[-1][-1]] + t_[3:] for l in txt[b]])
    for e in sorted(set(errs))[:8]: sys.stderr.write("K1 HAZARD " + e + "\n")
    note = {
        "entry": "entry / set-up of descriptors and per-lane addresses; first loads",
        "mid": "between the two heads of this workgroup",
        "w0": "second head, first k phase of its Q projection",
        "w0a": "Q projection: ten k phases of 64; Wq tiles and x rows arrive by LDS-DMA; the previous head's O is normalised and stored underneath",
        "cvt": "scale Q by log2(e)/sqrt(192), round to bf16, arrange as MFMA operand",
        "qk0": "first key tile: row max of its first 16 keys (or the exact max in the redo pass) becomes the softmax shift",
        "peel": "key tile 1 / value tile 0",
        "loop": "attention main loop, two 64-key tiles per trip: S^T = K Q^T - m, P = exp2(S), O^T += V^T P^T, l += 1^T P^T; softmax fully under the MFMAs",
        "lasta": "first head, last tiles: 1/l, overflow check of the shift, first O fragments leave; the second head's first tiles come in",
        "lastb": "second head, last tiles; the output projection's first operands come in",
        "k2head": "output projection: tile 320x128 per workgroup, K split over four workgroups",
        "k2bodyo": "projection, odd K halves (22 steps)", "k2bodye": "projection, even K halves (26 steps)",
        "k2epio": "collect the partners' quarters", "k2epie": "collect the partners' quarters",
        "loopa": "same loop for the first head with part of the softmax issued back to back: lower peak draw while the supply settles",
        "k2side": "rare paths: redo with the exact row max, waits on hand-offs",
        "k2idle": "workgroups without a projection tile",
        "maxpass": "exact row max over all keys (redo pass only)"}
    return [l for b in layout for l in ([f"; ---- {note[b]}"] if b in note else []) + txt[b] if l], errs

def oproj1(B, half, pv15, st, X, N):
    vR = [[1, 2, 3, 4], [13, 14, 15, 16]]; vOf = 18; vSt = 10; vFl = 11; vRd = 12; t0, t1, t2, t3 = 5, 6, 7, 8; vP2 = 9; vLp = 17; vOne = 20
    KS = [0, 32768, 65536]; EX = X1; SEL = 32
    uq = lambda u: [("a", Oacc(2 * (u // 4) + h, u % 4)) for h in range(2)]
    OF = {}
    def Of(d, kb, qt): return OF[d, kb, qt]
    M = OPT["mrg"] - (N & 1); DM = N - M; MD = list(range(DM, N)); U = (N - 1) >> 1
    src = lambda d: (d, 0) if d < 24 else (d - (N - 24), 1)
    NT = OPT["k2n"]; u0 = OPT["ne1"]; left = list(range(u0, 24))
    frs = [(d, kb, qt) for d in range(N) for kb in range(2) for qt in range(5)]
    A0 = OPT["adv0"]; rate = (10 * N - 15 - 10 * A0) / (DM - 1 - A0 + OPT["advf"] / 100.0)
    cum = lambda d: 15 + 10 * (d + 1) if d < A0 else min(10 * N, int(round(15 + 10 * A0 + rate * (d + 1 - A0))))
    OS = {d: frs[(cum(d - 1) if d >= 0 else 0):cum(d)] for d in range(-1, DM)}
    pool = [("v", 224 + 4 * i) for i in range(8)] + [q for u in range(u0) for q in uq(u)]
    for d in range(-1, DM):
        for f in OS[d]: OF[f] = pool.pop(0)
        if d >= 0: pool += [OF[d, kb, qt] for kb in range(2) for qt in range(5)] + [q for u in left[d * NT:(d + 1) * NT] for q in uq(u)]
    RDQ = pool
    CK = {min(d for d in OS if any(f[0] >= m for f in OS[d])): m for m in (12, 24) if m < N}
    R4 = lambda r: f"{r[0]}[{r[1]}:{r[1]+3}]"
    Oset = lambda d, kbs=(0, 1): set().union(*[regs(*Of(d, kb, qt), 4) for kb in kbs for qt in range(5)])
    def acc(t, qt): return 64 + 4 * (t * 5 + qt)
    def wq(f): return 192 + 4 * (f % 16)
    sW_ = sX; sOo = 8; sOut = 12; sXs = 20; sFl = 28
    sTt = 46; sC1 = 51; sC1w = 50; sXo = [32, 33, 34, 35]; sTs = 39; sXr = 24; sGx = 40; sOb = 54; sFo = 55
    def wdma(u, h):
        d_, fo = src(2 * u)
        off = (d_ * 64 + (3072 - 768 if d_ >= 12 else 0) + fo * 1536) * 1280
        out = [I(f"s_add_u32 m0, s{sXoff}, {KS[u % 3] + h*4096}")]
        for j in range(4 * h, 4 * h + 4):
            out += [I(f"s_add_u32 s{sTt}, s{sRo[u]}, {j*10240 - (j % 4)*1024}" if OPT["rot"] and u < 6 else f"s_mov_b32 s{sTt}, {off + j*10240 - (j % 4)*1024}"),
                    I(f"buffer_load_dwordx4 v{vDx}, {S4(sW_)}, s{sTt} offen offset:{(j % 4)*1024} lds", dst={f"S{u%3}"})]
        return out
    Wt = lambda u: {f"S{u%3}"}
    def oload(fs):
        out = []; cur = None
        for (d, kb, qt) in fs:
            off = (2 * src(d)[0] + kb + 96 * src(d)[1]) * 122880 + (qt // 4) * 4096
            if OPT["rot"] and d < 12:
                if (d & 1, kb, qt) == (0, 0, 0): out.append(I(f"s_mul_i32 s{sOb}, s{sRo[d >> 1]}, 3"))
                if off != cur: out.append(I(f"s_add_u32 s{sTt}, s{sOb}, {off - (d >> 1)*4*122880}")); cur = off
            elif off != cur: out.append(I(f"s_mov_b32 s{sTt}, {off}")); cur = off
            out.append(I(f"buffer_load_dwordx4 {R4(Of(d, kb, qt))}, v{vOf}, {S4(sOo)}, s{sTt} offen offset:{(qt % 4)*1024} sc1", dst=regs(*Of(d, kb, qt), 4)))
        return out
    def wreads(ds):
        out = []; f = 0
        for t in range(8):
            for d in ds:
                base = KS[(d >> 1) % 3]; w = base >> 16
                for kb in range(2):
                    r = wq(f)
                    for hf in range(2):
                        it = I(f"ds_read_b64_tr_b16 a[{r+2*hf}:{r+2*hf+1}], v{vR[w][t & 3]} offset:{base - w*65536 + (d & 1)*16384 + (t >> 2)*8192 + (4*kb+2*hf)*1024}", dst=regs("a", r + 2 * hf, 2)); it.f = f
                        out.append(it)
                    f += 1
        return out
    NP = 8; G = 60
    pair = lambda a, b: Ins(a + "\n" + b, kind="bar")
    late = Is(f"""
s_mov_b64 {S2(sOut)}, {S2(sOutP)}
s_mov_b32 s{sOut+2}, {79*2560+64}
s_mov_b32 s{sOut+3}, 0x20000""") + [pair(f"s_add_u32 s{sXs}, s{sWsP}, {XCH}", f"s_addc_u32 s{sXs+1}, s{sWsP+1}, 0")] + Is(f"""
s_mov_b32 s{sXs+2}, {960*15360}
s_mov_b32 s{sXs+3}, 0x20000
s_lshl2_add_u32 s88, s{sWg}, s{sWave}
s_mul_i32 s{sXo[0]}, s88, 15360
s_xor_b32 s89, s88, 32
s_mul_i32 s{sXo[1]}, s89, 15360
s_xor_b32 s89, s88, 4
s_mul_i32 s{sXo[2]}, s89, 15360
s_xor_b32 s89, s88, 36
s_mul_i32 s{sXo[3]}, s89, 15360
s_mul_i32 s88, s{sWave}, 5120
s_add_u32 s88, s88, {EX}
v_add_u32 v{vRd}, s88, v{vOf}
v_and_b32 v{t0}, 15, v0
v_lshrrev_b32 v{t1}, 4, v0
v_lshl_add_u32 v{t2}, v{t0}, 2, v{t1}
v_lshlrev_b32 v{t2}, 4, v{t2}
v_add_u32 v{vLp}, s88, v{t2}
v_lshlrev_b32 v{t1}, 2, v{t1}
v_sub_u32 v{t0}, v{t0}, v{t1}
v_and_b32 v{t1}, 1, v{t0}
v_lshlrev_b32 v{t1}, 4, v{t1}
v_mov_b32 v{t2}, 0x3f80
v_lshlrev_b32 v{t1}, v{t1}, v{t2}
v_lshrrev_b32 v{t0}, 1, v{t0}""")
    c0 = I(f"v_cmp_eq_u32 s[84:85], 0, v{t0}"); c1 = I(f"v_cmp_eq_u32 s[86:87], 1, v{t0}")
    late += [c0, c1, I(f"v_mov_b32 v{SEL+2}, 0"), I(f"v_mov_b32 v{SEL+3}, 0"), I(f"v_cndmask_b32 v{SEL}, 0, v{t1}, s[84:85]"), I(f"v_cndmask_b32 v{SEL+1}, 0, v{t1}, s[86:87]")]
    late += Is(f"""v_mov_b32 v{SEL+4}, 0
v_mov_b32 v{SEL+5}, 0
v_mov_b32 v{SEL+6}, v{SEL}
v_mov_b32 v{SEL+7}, v{SEL+1}
v_lshrrev_b32 v{t0}, 2, v0
v_and_b32 v{t1}, 3, v0
v_mul_u32_u24 v{vSt}, 2560, v{t0}
v_lshl_add_u32 v{vSt}, v{t1}, 4, v{vSt}
v_min_u32 v{t1}, 2, v0
v_add_u32 v{t1}, 1, v{t1}
v_and_b32 v{t0}, 1, v{t1}
v_lshrrev_b32 v{t1}, 1, v{t1}
v_lshl_or_b32 v{t0}, v{t0}, 3, v{t1}
v_xor_b32 v{t0}, s{sWg}, v{t0}
v_lshlrev_b32 v{vFl}, 7, v{t0}
v_min_u32 v{t1}, 2, v0
v_lshl_add_u32 v{vFl}, v{t1}, 2, v{vFl}
s_add_u32 s{sXo[2]}, s{sXo[2]}, 5120
s_add_u32 s{sXo[3]}, s{sXo[3]}, 10240
s_mov_b32 s{sGx}, 0
s_lshl_b32 s{sFo}, s{sWg}, 7""") + [pair(f"s_cmp_eq_u32 s{sWave}, 0", f"s_cselect_b32 s{sFo}, s{sFo}, 0x10000")] + Is("""""") + (Is("v_mov_b32 v22, v31\nv_mov_b32 v23, v31") if OPT["stamps"] else [])
    sPf = 24; sPi = 57
    def pfit():
        out = []
        for h in range(2): out += Is(f"s_add_u32 s81, s{sPi}, {h*768*1280}") + [I(f"buffer_load_dword v30, v{vO}, {S4(sPf)}, s81 offen offset:{j*1024}", dst={"v30"}) for j in range(4)]
        return out + Is(f"s_add_u32 s{sPi}, s{sPi}, 65536")
    if "lastb" not in B:
        r1 = vR[1][0]; c = [OPT[f"c{i}"] for i in range(8)]
        L = tl(dma(sDB, sB, slot(3))) + dma_v(15, X1)
        L += [I(f"buffer_load_dword v30, v{vO}, {S4(sP1)}, " + ("0" if j < 4 else f"s{sT3}") + f" offen offset:{(j % 4)*1024}", dst={"v30"}) for j in range(0 if OPT["rot"] else 8)]
        L += [y for u in range(3) for h in range(2) for y in wdma(u, h)] + oload(OS[-1])
        o_ = 8 if OPT['rot'] else 0
        assert sum(c[:3]) <= 26 - o_ and sum(c[:5]) <= 34 - o_ and sum(c[:6]) <= 42 - o_ and sum(c) <= 50 - o_
        s0 = Is(f"s_cmp_le_u32 s{sWave}, {0 if OPT['p1w'] else 3}\ns_cselect_b32 s86, s{sCo}, 0x1000\ns_cselect_b32 s87, 32, 0") + [I(f"buffer_load_dwordx2 v[14:15], off, {S4(sDb)}, s86 sc1", dst=regs("v", 14, 2))] + codepf() + Is(f"""
s_mov_b64 {S2(sP1)}, {S2(sN2)}
s_mov_b32 s{sP1+2}, 30720
s_mov_b32 s{sT3}, 16384
s_mov_b64 {S2(sW_)}, {S2(sWoP)}
s_mov_b32 s{sW_+2}, s{sK2n}
s_movk_i32 s80, 0x70
v_lshrrev_b32 v{vDx}, 3, v0
v_mul_u32_u24 v{vDx}, 1280, v{vDx}
v_and_or_b32 v{vDx}, v{vDw}, s80, v{vDx}""")
        s1 = Is(f"""
s_mov_b64 {S2(sOo)}, {S2(sK2O)}
s_cmp_lt_u32 s{sWg}, 240
s_cselect_b32 s{sOo+2}, {143*122880+5*1024}, 0
s_and_b32 s{sC1}, s{sWg}, 7
s_lshl_b32 s{sC1}, s{sC1}, 7
s_add_u32 s{sC1}, s{sC1}, 64
s_cmp_eq_u32 s{sWave}, 0
s_cselect_b32 s{sC1w}, s{sC1}, 0x10000
s_add_u32 s{sFl}, s{sWsP}, {FLG}
s_addc_u32 s{sFl+1}, s{sWsP+1}, 0
s_mov_b32 s{sFl+2}, {256*128}
s_mov_b32 s{sFl+3}, 0x20000
s_andn2_b32 s89, 8, s{sWg}
s_lshl_b32 s89, s89, 3
s_add_u32 s89, s89, 65536""")
        s2 = Is(f"""s_bfe_u32 s80, s{sWg}, 0x10001
s_lshr_b32 s81, s{sWg}, 3
s_lshl1_add_u32 s80, s81, s80
s_and_b32 s{sPi}, s80, 3
s_lshl_b32 s{sPi}, s{sPi}, 14
s_mul_i32 s81, s80, 30720
s_sub_u32 s81, {3072*1280}, s81
s_add_u32 s{sPf}, s{sN2}, s81
s_addc_u32 s{sPf+1}, s{sN2+1}, 0
s_mov_b32 s{sPf+2}, {1536*1280}
s_mov_b32 s{sPf+3}, 0x20000""")
        if OPT["xpf"]:
            k_ = OPT["xpf"]
            s2 += Is(f"""s_lshr_b32 s81, s80, {3 - k_}
s_lshl_b32 s81, s81, 14
s_and_b32 s82, s80, {2 * (2 - k_)}
s_lshl_b32 s82, s82, 10
s_add_u32 s81, s81, s82
s_and_b32 s82, s80, 1
s_mul_i32 s82, s82, {768*1280}
s_add_u32 s81, s81, s82
s_add_u32 s81, s81, {768*1280 - 262144*k_}""") + [I(f"buffer_load_dword v30, v{vO}, {S4(sPf)}, s81 offen offset:{j*1024}", dst={"v30"}) for j in range(2 * k_)]
        m_ = I("v_min_u32 v14, v14, v15"); rf = I("v_readfirstlane_b32 s88, v14", after=[m_])
        ck = [WAIT(vneed={"v14"}), m_, rf, Ins("s_cmp_lt_u32 s88, s87\ns_cbranch_scc1 K2_SPIN0\nK2_RET0:", kind="bar", after=[rf], dly=2)]
        v1 = Is(f"""
v_lshrrev_b32 v14, 5, v0
v_lshlrev_b32 v{r1}, 10, v14
v_bfe_u32 v14, v0, 2, 3
v_lshl_add_u32 v{r1}, v14, 7, v{r1}
v_and_b32 v14, 6, v14
v_bfe_u32 v15, v0, 1, 1
v_xor_b32 v14, v14, v15
v_lshl_add_u32 v{r1}, v14, 4, v{r1}
v_and_b32 v14, 1, v0
v_lshl_add_u32 v{r1}, v14, 3, v{r1}
v_xor_b32 v{r1}, s89, v{r1}
v_xor_b32 v14, 32, v{r1}
v_xor_b32 v15, 64, v{r1}
v_xor_b32 v16, 96, v{r1}
v_lshlrev_b32 v{vOf}, 4, v0
v_mov_b32 v{vOne}, 1""")
        v1[0].after = [ck[-1]]
        v0_ = [I(f"v_xor_b32 v{vR[0][i]}, 0x10000, v{vR[1][i]}") for i in range(4)]
        Z_ = Is(f"K1_LASTB:\ns_cmp_eq_u32 s{sSig}, 0\ns_cbranch_scc1 K1_REDO") + st()
        Z_ += half("14b", 0, "last", io=[s0 + take(L, c[0]) + s1, take(L, c[1]), ck + take(L, c[2]), take(L, c[3]), [], [spread(v1, 14, 95, NOV)]])
        Z_ += half("15b", 1, "last", io=[s2 + take(L, c[4]), take(L, c[5]), take(L, c[6]), take(L, c[7]), [], [spread(v0_, 2, 60)]])
        L = take(L, 99)
        def exb(es, sts):
            for y in L:
                if y.kind == "vmem": y.after = y.after + [x for x in es if x.text.split()[-1] in y.dst][-1:]
            spread(L, 2, 80)
            for y in L: y.hi = 94
            return [L]
        p_, sts = pv15("pv15b", u0, wreads([0])[:NP], Wt(0), [], exb, endv=Oset(0))
        B["lastb"] = Z_ + p_ + Is(f"s_cmp_lg_u32 s{sAll}, 0\ns_cbranch_scc1 K1_REDO\ns_cmp_ge_u32 s{sWg}, 240\ns_cbranch_scc1 K2_IDLE") + stamp(49)
    held = {0: [epi_unit(u, False)[-1] for u in range(u0 - 3, u0)]}
    body = {}
    for d in range(N):
        body[d] = []; held[d + 1] = []
        for u in left[d * NT:(d + 1) * NT]:
            e = epi_unit(u, False); held[d + 1].append(e.pop()); body[d] += e
    SG = max(d for d in held if held[d]) + 1
    assert SG <= 7
    poll = f"buffer_load_dword v{t2}, v{vFl}, {S4(sFl)}, 0 offen sc1"
    RD = lambda rho, qt: RDQ[qt * 3 + rho - 1]
    def rload(rho, so):
        out = []
        for qt in range(5):
            if qt == 4: out.append(I(f"s_add_u32 s{sTt}, s{so}, 4096"))
            out.append(I(f"buffer_load_dwordx4 {R4(RD(rho, qt))}, v{vOf}, {S4(sXs)}, s{sTt if qt == 4 else so} offen offset:{(qt % 4)*1024} sc1", dst=regs(*RD(rho, qt), 4)))
        return out
    radd = lambda rhos, qt: [mfma(V4(acc(6 + h, qt)), V4(SEL + 4 * h), R4(RD(rho, qt)), V4(acc(6 + h, qt))) for h in range(2) for rho in rhos]
    flag = lambda off: Ins(f"s_mov_b64 exec, 1\nbuffer_store_dword v{vOne}, off, {S4(sFl)}, s{sFo} offset:{off} sc1\ns_mov_b64 exec, -1", kind="vmem")
    def mfs(ds):
        mf = []; n = 2 * len(ds)
        for t in range(8):
            for qt in range(5):
                ks = [(i, d, kb) for i, (d, kb) in enumerate((d, kb) for d in ds for kb in range(2))]
                if qt & 1 and len(ds) > 1: ks.reverse()
                for (i, d, kb) in ks:
                    a = acc(t, qt)
                    mf.append(mfma(V4(a), A4(wq(n * t + i)), R4(Of(d, kb, qt)), "0" if (d == 0 and kb == 0) else V4(a)))
        return mf
    def step(d):
        own = wreads([d])[NP:]; pre = d == DM - 1
        nx = MD if pre else [d + 1]
        nxt = wreads(nx)[:max(NP, 4 * len(nx))]
        hasb = (d & 1) or pre or d == SG
        ws = [WAIT(lneed=regs("a", wq(2 * t), 8), lo=10 * t - 3, hi=10 * t - 1, target=10 * t - 2) for t in range(1, 7 if hasb else 8)]
        ws.append(WAIT(lneed=regs("a", wq(0), 8 * len(nx)), vneed=set().union(*[Oset(x) for x in nx]), lo=78, hi=79, target=78.5))
        g = G - 6 if pre and M > 2 else G
        spread(own, 0, g - 6)
        for it in own: it.hi = min(it.hi, 10 * (it.f >> 1) - 7); it.target = min(it.target, it.hi - 1)
        rs = own; nov = ()
        if hasb:
            bar = BAR(Wt(U if pre else (d + 1) >> 1) | ({"OST"} if d == SG else set()), lo=g, hi=g); rs = rs + [bar]; nov = range(g, g + 9)
            for it in nxt: it.after = [bar]
        spread(nxt, g + 1, 73 if pre else 76)
        vm = []
        cadr = lambda m: f"s{sC1}" + (" offset:128" if m == 24 else "")
        if d in CK: vm += [I(f"buffer_load_dword v{vP2}, off, {S4(sFl)}, {cadr(CK[d])} sc1", dst={f"v{vP2}"})]
        if d % 4 == 3 or pre: vm += codepf()
        fs = OS[d]; k2_ = len([f for f in fs if f[0] < CK.get(d, 99)]); k = min(5, k2_)
        vm += oload(fs[:k]) + held[d]
        for x in WS.get(d, []): vm += wdma(*x)
        if d in CK:
            vm += oload(fs[k:k2_]); k = k2_
            rf = I(f"v_readfirstlane_b32 s88, v{vP2}")
            ck = [WAIT(vneed={f"v{vP2}"}), rf, Ins(f"s_cmp_lt_u32 s88, 32\ns_cbranch_scc1 K2_SPIN{CK[d]}{X}\nK2_RET{CK[d]}{X}:", kind="bar", after=[rf], dly=2)]
            n1 = len(vm); vm += ck
        vm += oload(fs[k:])
        if d == SG:
            at = atomic(vOne, sC1w, sFl); at.after = [bar]; vm.append(at)
        if d in CK:
            n_a = sum(x.kind == "vmem" for x in vm[:n1]); n_b = sum(x.kind == "vmem" for x in vm[n1:])
            c_ = max(OPT["ckg"], int(76 * n_a / (n_a + n_b)) - 4)
            if hasb and g - 5 < c_ < g + 9: c_ = g + 9 if n_b <= 3 else g - 5
            even(vm[:n1], 0, c_, [g]); even(vm[n1 + 3:], c_ + 5, 80, [g])
            for x in ck: x.lo = c_; x.target = c_; x.hi = c_ + 4
        else: even(vm, 0, int(0.8 * OPT["advf"]) if pre else 80, [g])
        es = body[d]
        if es:
            for k in range(len(es) // 20): es[20 * k].after = [held[d][k]] if NT == 3 else held[d][-1:]; es[20 * k].dly = 1
            spread(es, held[d][0].lo + 2, 79, nov)
        if d == 14: es = spread(late, 0, 79); assert d not in CK
        return schedule(mfs([d]), [ws, rs + nxt, vm, es], novalu=nov, name=f"k2s{d}{X}") + (stamp(50) if d == 5 else stamp(47, True) if d == 13 else stamp(56) if pre else [])
    WS = {d: [((d >> 1) + 2, d & 1)] for d in range(2, 2 * (U - 1))}
    if 2 * U - 3 >= DM - 1: WS[2 * U - 4] += WS.pop(2 * U - 3)
    assert max(WS) < DM - 1
    def final():
        n = 2 * M; T = 5 * n
        own = wreads(MD)[max(NP, 2 * n):]
        for it in own:
            t, i = divmod(it.f, n)
            it.target = T * (t - 1) + i * (T - 9) / n; it.hi = T * t - 7
            if it.f >= 16: it.lo = T * ((it.f - 16) // n) + 4 * n + (it.f - 16) % n
        ws = [WAIT(lneed=set().union(*[regs("a", wq(n * t + i), 4) for i in range(n)]), lo=T * t - 3, hi=T * t - 1, target=T * t - 2) for t in range(1, 8)]
        sn = []
        for jl in range(3):
            for qt in range(5):
                a, b = acc(2 * jl, qt), acc(2 * jl + 1, qt)
                c = Is(f"""v_cvt_pk_bf16_f32 v{a}, v{a}, v{a+1}
v_cvt_pk_bf16_f32 v{a+1}, v{a+2}, v{a+3}
v_cvt_pk_bf16_f32 v{a+2}, v{b}, v{b+1}
v_cvt_pk_bf16_f32 v{a+3}, v{b+2}, v{b+3}""")
                if qt in (0, 4): c.append(I(f"s_add_u32 s{sTs}, s{sXo[0]}, {(2 - jl)*5120 + (qt // 4)*4096}"))
                c.append(I(f"buffer_store_dwordx4 {V4(a)}, v{vOf}, {S4(sXs)}, s{sTs} offen offset:{(qt % 4)*1024} sc1", dst={f"SN{jl}"}))
                lo = T * (2 * jl + 1) + n * (qt + 1) - 1 + 8
                for k, x in enumerate(c): x.lo = lo if k >= 2 else lo - 8; x.target = lo + k * 0.5 - 1
                sn += c
        ev = []; nov = []
        for jl in range(3):
            F = min(2 * T * (jl + 1) + 12 + OPT["fag"], 8 * T - OPT["fbg"])
            b_ = Ins("WAITBAR", kind="bar", vneed={f"SN{jl}"}, lo=F, hi=F); f_ = flag(4 * (2 - jl)); f_.after = [b_]; f_.target = F + 1; f_.hi = F + 3
            for x in sn[jl * len(sn) // 3:(jl + 1) * len(sn) // 3]: x.hi = F - 1
            ev += [b_, f_]; nov += range(F, F + 9)
        return schedule(mfs(MD), [ws, own, sn, ev, [I(poll, dst={f"v{t2}"}, lo=8 * T - OPT["plg"])]], novalu=nov, name="k2fin")
    if "k2head" not in B: B["k2head"] = [x for d in range(A0) for x in step(d)] + (Is(f"s_bitcmp0_b32 s{sWg}, 0\ns_cbranch_scc1 K2_BODYe") if OPT["asy"] else [])
    assert SG < A0 and min(CK) >= A0
    B["k2body" + X] = Is(f"K2_BODY{X}:") + [x for d in range(A0, DM) for x in step(d)] + final()
    sys.stderr.write(f"[k2] SG {SG} CK {CK} loads/step {[len(OS[d]) for d in sorted(OS)]} spare quads {len(RDQ)}\n")
    E = stamp(51) + (Is(f"v_writelane_b32 v22, s{sSp}, 61\ns_getreg_b32 s87, hwreg(HW_REG_XCC_ID)\nv_writelane_b32 v22, s87, 62\nv_writelane_b32 v22, s{sBk}, 59\ns_memrealtime s[90:91]\ns_waitcnt lgkmcnt(0)\nv_writelane_b32 v22, s90, 63") if OPT["stamps"] in (6, 7, 8) else [])
    def rel(L):
        for x in L: x.text = re.sub(r"\b(K2_WX|K2_W1|K2_W2|K2_W3|K2_GO|K2_PS)\b", r"\1" + X, x.text)
        return L
    xadd = lambda: [x for qt in range(5) for x in radd((2, 3), qt)]
    E += stamp(52) + [WAIT(vneed={f"v{t2}"})] + Is(f"""K2_PS:
v_cmp_eq_u32 s[84:85], 1, v{t2}
s_add_u32 s{sSp}, s{sSp}, 1
s_cmp_gt_u32 s{sSp}, 0x40000
s_nop 0
s_cselect_b32 s84, 7, s84
s_andn2_b32 s85, s84, s{sGx}
s_or_b32 s{sGx}, s{sGx}, s84
s_and_b32 s{sGx}, s{sGx}, 7""")
    for rho in (3, 2, 1): E += Is(f"s_bitcmp0_b32 s85, {rho-1}\ns_cbranch_scc1 K2_W{rho}") + rload(rho, sXo[rho]) + Is(f"K2_W{rho}:")
    E += Is(f"s_cmp_lg_u32 s{sGx}, 7\ns_cbranch_scc1 K2_WX")
    B["k2epi" + X] = rel(E)
    B["k2wx" + X] = rel(Is(f"K2_WX:\n{poll}\ns_waitcnt vmcnt(0)\ns_branch K2_PS"))
    E = Is("K2_GO:") + stamp(53)
    def fin(qt):
        a, b = acc(6, qt), acc(7, qt)
        return Is(f"""v_cvt_pk_bf16_f32 v{a}, v{a}, v{a+1}
v_cvt_pk_bf16_f32 v{a+1}, v{a+2}, v{a+3}
v_cvt_pk_bf16_f32 v{a+2}, v{b}, v{b+1}
v_cvt_pk_bf16_f32 v{a+3}, v{b+2}, v{b+3}
s_nop 1
v_permlane16_swap_b32 v{a}, v{a+2}
v_permlane16_swap_b32 v{a+1}, v{a+3}
ds_write_b128 v{vLp}, {V4(a)} offset:{qt*1024}""") + [I(f"ds_read_b128 {V4(144+4*qt)}, v{vRd} offset:{qt*1024}", dst=regs("v", 144 + 4 * qt, 4))]
    out = lambda qt: [I(f"s_mov_b32 s87, {qt*16*2560}"), WAIT(lneed=regs("v", 144 + 4 * qt, 4)), I(f"buffer_store_dwordx4 {V4(144+4*qt)}, v{vSt}, {S4(sOut)}, s87 offen" + " sc1")]
    for qt in range(5):
        E += Is(f"s_waitcnt vmcnt({4 - qt})") + radd((3, 2, 1), qt)
        if qt >= 1: E += fin(qt - 1)
    E += out(0) + out(1) + out(2) + fin(4) + out(3) + out(4)
    E += stamp(54) + (Is(f"v_writelane_b32 v22, s{sSp}, 60\nv_writelane_b32 v23, s87, 60") if OPT["stamps"] else [])
    B["k2fin" + X] = rel(E) + (Is("s_branch K1_DONE") if OPT["stamps"] else Is("s_endpgm"))
    B["k2end"] = Is("K1_DONE:") + stamp_out(S2(sKA), sWg, sWave, t0, 0x4000000) + (Is(f"""s_cmp_lg_u32 s{sWg}, 17
s_cbranch_scc1 K1_END
s_cmp_lg_u32 s{sWave}, 0
s_cbranch_scc1 K1_END
v_readlane_b32 s84, v22, {OPT["enc"] >> 8}
v_readlane_b32 s85, v22, {OPT["enc"] & 255}
s_memrealtime s[86:87]
s_waitcnt lgkmcnt(0)
s_sub_u32 s85, s85, s84
{'s_mul_i32 s85, s85, 2000' if OPT['enc'] == 0x3d3e else 's_lshr_b32 s85, s85, 1'}
s_min_u32 s85, s85, 150000
s_add_u32 s85, s85, 1000
K1_ENC:
s_memrealtime s[90:91]
s_waitcnt lgkmcnt(0)
s_sub_u32 s90, s90, s86
s_cmp_lt_u32 s90, s85
s_cbranch_scc1 K1_ENC""") if OPT["enc"] else []) + Is("K1_END:\ns_endpgm")
    spin = lambda nm, ret, ld, rd: Is(f"""{nm}:
s_add_u32 s{sSp}, s{sSp}, 1
s_cmp_gt_u32 s{sSp}, 0x40000
s_cbranch_scc1 {ret}
s_sleep 4
{ld}
s_waitcnt vmcnt(0)
{rd}
s_nop 3
s_cmp_lt_u32 s88, 32
s_cbranch_scc1 {nm}
s_branch {ret}""")
    B["k2side"] = Is(f"""K1_REDO:
s_mov_b32 s{sMode}, 1
s_waitcnt vmcnt(0) lgkmcnt(0)
s_barrier""") + B["kre"] + spin("K2_SPIN0", "K2_RET0", f"buffer_load_dwordx2 v[14:15], off, {S4(sDb)}, s{sCo} sc1", "v_min_u32 v14, v14, v15\ns_nop 0\nv_readfirstlane_b32 s88, v14")
    B["k2sp" + X] = [x for m in CK.values() for x in spin(f"K2_SPIN{m}{X}", f"K2_RET{m}{X}", f"buffer_load_dword v{vP2}, off, {S4(sFl)}, s{sC1}" + (" offset:128" if m == 24 else "") + " sc1", f"v_readfirstlane_b32 s88, v{vP2}")]
    D = Is("K2_IDLE:") + [epi_unit(u, False)[-1] for u in range(u0 - 3, u0)] + [I(f"v_mov_b32 v{RCP+2*q+1}, v{RCP+2*q}") for q in range(4)]
    for u in range(u0, 24): D += epi_unit(u, True)
    D += pfit() + pfit() + Is("s_waitcnt vmcnt(16)\ns_barrier") + [atomic(vOne, sC1w, sFl)] + Is("K2_PFL:") + pfit() + Is(f"s_waitcnt vmcnt(24)\ns_cmp_lt_u32 s{sPi}, {768*1280 - 262144*OPT['xpf']}\ns_cbranch_scc1 K2_PFL")
    D += (Is("v_mov_b32 v22, v31\nv_mov_b32 v23, v31") if OPT["stamps"] else []) + (stamp(54) if OPT["stamps"] == 9 else []) + Is("s_branch K1_DONE")
    B["k2idle"] = D
    return ["lastb", "k2head", "k2body" + X, "k2epi" + X, "k2fin" + X]

def oproj(B, *k):
    a = OPT["asy"]
    tr = [oproj1(B, *k, "o", 24 - a)] + ([oproj1(B, *k, "e", 24 + a)] if a else [])
    lay = ["lastb", "k2head"] + [b + x for x in ("oe" if a else "o") for b in ("k2body", "k2epi", "k2fin", "k2wx", "k2sp")] + ["k2end"]
    return tr, lay

def desc(name, vg=512, acc=256):
    return f""".p2align 6
.amdhsa_kernel {name}
  .amdhsa_next_free_vgpr {vg}
  .amdhsa_next_free_sgpr 102
  .amdhsa_accum_offset {acc}
  .amdhsa_group_segment_fixed_size 0
  .amdhsa_kernarg_size 104
  .amdhsa_user_sgpr_count 2
  .amdhsa_user_sgpr_kernarg_segment_ptr 1
  .amdhsa_system_sgpr_workgroup_id_x 1
  .amdhsa_float_denorm_mode_32 3
.end_amdhsa_kernel"""

def align8(lines, mode):
    import subprocess
    ins = [l for l in lines if not (l.startswith(";") or l.startswith(".") or l.endswith(":"))]
    uniq = sorted(set(l for l in ins if "K" not in l))
    r = subprocess.run(["llvm-mc", "-triple=amdgcn-amd-amdhsa", "-mcpu=gfx950", "-show-encoding"], input="\n".join(uniq), capture_output=True, text=True)
    enc = [x.count("0x") for x in (l.split("encoding:")[1] for l in r.stdout.split("\n") if "encoding:" in l)]
    assert len(enc) == len(uniq), r.stderr[:300]
    size = dict(zip(uniq, enc))
    ok = ("v_exp_f32", "v_mul_f32", "v_add_f32", "v_mov_b32", "v_rcp_f32", "v_sub_f32", "v_max_f32")
    out = []; off = 0; cand = None; nfix = nmiss = 0; gap = 0
    for l in lines:
        if l.startswith(".p2align"): off = 0; cand = None
        elif not (l.startswith(";") or l.endswith(":")):
            n = size.get(l, 8 if l.startswith("v_min") else 4)
            if n == 8 and off:
                if cand is not None:
                    op = out[cand].split()[0]; out[cand] = out[cand].replace(op, op + "_e64", 1); off = 0; nfix += 1
                elif mode > 1 and l.startswith("v_mfma") and gap <= 4: out.append("s_nop 0"); off = 0; nfix += 1
                else: nmiss += 1
                cand = None
            elif n == 8: cand = None
            gap = 0 if kind_of(l) == "mfma" else gap + COST[kind_of(l)]
            if n == 4:
                off ^= 4
                if l.split()[0] in ok: cand = len(out)
        out.append(l)
    sys.stderr.write(f"[align] promoted {nfix}, still misaligned {nmiss} of {len(ins)}\n")
    return out

def main():
    k1, e1 = kernel1()
    if OPT["aln"]: k1 = align8(k1, OPT["aln"])
    ref = open("cdna_kernels/" + NAME + ".s.ref").read().split("\n")
    head = [l for l in ref if l.startswith(";") and "@launch" not in l]
    nm = NAME + "_kernel"
    out = head + [f"; @launch grid=(256,1,1) block=(256,1,1) lds=163840"] + """;
; One persistent workgroup per CU (4 waves, 64 query rows each, 512 registers, 16x16x32 bf16 MFMA).
;   per workgroup: two heads of one (branch, batch): Q projection -> flash attention -> O (bf16, fragment order) to d_ws
;   then the output projection in the same launch, behind counters (d_debug, d_ws) that order the hand-offs.
; Softmax shift = true max of the first keys of each row; the row sums are checked at the end and, if the shift was
; too small for any row (sum >= 2^60 or not finite), the workgroup redoes its heads with the exact row max.
; Written by a generator script (static instruction placement between the MFMAs, counted waits).""".split("\n") + ['.amdgcn_target "amdgcn-amd-amdhsa--gfx950"', ".text"]
    out += [f".globl {nm}", ".p2align 8", f".type {nm},@function", f"{nm}:"] + k1
    out += ["K_CODE_END:", "s_endpgm", '.section .rodata,"a"', desc(nm)]
    if e1:
        open(sys.argv[1], "w").write("hazard\n"); sys.exit(1)
    open(sys.argv[1], "w").write("\n".join(out) + "\n")
main()
```

```python
import sys, math, re
from asmlib import *
from verify import verify

OPT = dict(stamps=0, enc=0, ne0=6, ne1=15, xpf=0, p0=16, xin=1, aln=0, p1w=1, rot=0, enx=0, nc9=7, na0=2, bg15=60, cw8=4, cpw=0x88, pskip=2,
           xq=3, xp=2, yq=0, yp=0, pq=0, pp=0, me=0x3f, m1=0, adp=9, adn=2,
           k2n=3, mrg=4, adv0=8, advf=55, asy=2, fag=62, fbg=12, plg=45, ckg=52,
           c0=6, c1=2, c2=8, c3=2, c4=11, c5=3, c6=12, c7=4)
for a in sys.argv[2:]:
    k, v = a.split("="); assert k in OPT, k; OPT[k] = int(v, 0)
NAME = "concat_heads__gqa_block_cached__gqa_block_cached__near_ridge"
MF = "v_mfma_f32_16x16x32_bf16"
def I(t, **kw): return Ins(t, **kw)
def Is(txt): return [Ins(t.strip()) for t in txt.strip().split("\n") if t.strip()]
def mfma(d, a, b, c): return Ins(f"{MF} {d}, {a}, {b}, {c}")
def V4(b): return f"v[{b}:{b+3}]"
def A4(b): return f"a[{b}:{b+3}]"

TILE = 24576; WS = 64 * 12288
X0 = 0; RING = 32768; X1 = 131072
def slot(i): return RING + i * TILE
vK = [[1, 2], [3, 4]]; KW = [0, 65536]
vV = [[5, 6, 7, 8], [9, 10, 11, 12]]; VW = [32768, 98304]
vXr = [[13, 14], [15, 16]]
vIx = 17; vDw1 = 18; vDkv = 19; vDw = 20; vDx = 21; vO = 22; vO3 = 23
vL = [24, 25, 26, 27]; vMi = [40, 41, 42, 43]; vT = 32
NEGM = 48; SP = 64; QF = 160
RCP = 48
def negm(qt): return NEGM + 4 * qt
def XY(par, kb, qt): return SP + 4 * (par * 8 + qt * 2 + kb)
def Z(kb, qt): return SP + 64 + 4 * (kb * 4 + qt)
def Qf(qt, s): return QF + 4 * (qt * 6 + s)
def Qb(qt, s):
    return SP + 4 * (qt * 6 + s)
def Oacc(t, qt): return 4 * (t * 4 + qt)
def Xf(n, kb, qt): return 32 * (n & 1) + 4 * (kb * 4 + qt)
FR = 192
def fq(n, f): return FR + 4 * ((f + 8 * (n & 1)) % 16)
sSel = 1; sBk = 3
sX = 4; sDA = 8; sDB = 12; sO = 16
sK = 20; sV = 22; sNb = 24; sNnum = 26
sA = 34; sB = 35; sAll = 36; sI = 39; sWoff = 40; sXoff = 41
sOs = [42, 43, 44, 45, 37, 38]; sT = 46; sItem = 47; sMode = 48; sFlag = 49; sC = 50
sWave = 52; sWg = 53; sT2 = 54; sT3 = 55; sThr = 56; sKA = 58
sP1 = 60; sWoP = 64; sOutP = 66; sWsP = 68; sSig = 70; sDb = 72; sCo = 76; sOn = 77; sSp = 78; sK2n = 79
sN2 = 98; sK2O = 100; sRo = [0, 2, 32, 33, 71, 97]
vPf = 248; FLO = RING + 3 * TILE
FLG = 0x2e00000; XCH = 0x2f00000
def S4(b): return f"s[{b}:{b+3}]"
def S2(b): return f"s[{b}:{b+1}]"
BG = 76
NOV = range(BG, BG + 9)
NPRE_V = 10; NPRE_K = 6
OSTRIDE = 24 * 120 * 1024

def lastuse_pv(f): return 8 * (f >> 1) + 6 + (f & 1)
def lastuse_qk(f): kt, s = divmod(f, 6); return 24 * kt + 18 + (5 - s)

def reads_v(n, base):
    out = []
    for f in range(24):
        t, kb = f >> 1, f & 1
        r = fq(n, f)
        for hf in range(2):
            off = base + (4 * kb + 2 * hf) * 3072 + (t >> 2) * 1024
            w = 1 if off >= VW[1] else 0
            it = I(f"ds_read_b64_tr_b16 a[{r+2*hf}:{r+2*hf+1}], v{vV[w][t & 3]} offset:{off-VW[w]}", dst=regs("a", r + 2 * hf, 2)); it.f = f
            out.append(it)
    return out
def reads_k(n, base):
    out = []
    for f in range(24):
        kt, s = divmod(f, 6); r = fq(n, f)
        off = base + kt * 6144 + (s >> 1) * 1024
        w = 1 if off >= KW[1] else 0
        it = I(f"ds_read_b128 {A4(r)}, v{vK[w][s & 1]} offset:{off-KW[w]}", dst=regs("a", r, 4)); it.f = f
        out.append(it)
    return out
def reads_x(n):
    return [I(f"ds_read_b128 {A4(Xf(n, kb, qt))}, v{vXr[n & 1][kb]} offset:{qt*2048}", dst=regs("a", Xf(n, kb, qt), 4)) for qt in range(4) for kb in range(2)]

def dma(srd, soff, base, w=False):
    n = "" if w else " nt"; vD = [vDw, vDw1] if w else [vDkv, vDkv]
    out = []
    for p in range(3):
        m = I(f"s_add_u32 m0, s{sWoff}, {base + 896*p}")
        a = I(f"buffer_load_dwordx4 v{vD[0]}, {S4(srd)}, s{soff} offen offset:{p*128}{n} lds", dst={f"L{base}"}, after=[m])
        b = I(f"buffer_load_dwordx4 v{vD[1]}, {S4(srd)}, s{soff} offen offset:{p*128+3072}{n} lds", dst={f"L{base}"})
        out += [m, a, b]
    return out
def dma_w(m): return [I(f"s_mov_b32 s{sT2}, {m*WS}")] + dma(sDA, sT2, slot(m % 4), True)
def dma_k(i, base): return [I(f"s_mov_b32 s{sT2}, {i*TILE}")] + dma(sDA, sT2, base)
def dma_v(i, base): return [I(f"s_mov_b32 s{sT2}, {i*TILE}")] + dma(sDB, sT2, base)
def hd(d): return d[:-6]
def tl(d): return d[-6:]
def dma_x(n):
    out = []; base = X1 if n & 1 else X0
    for j in range(8):
        if j % 4 == 0: out.append(I(f"s_add_u32 m0, s{sXoff}, {base + j*1024}"))
        out.append(I(f"s_mov_b32 s{sT}, {j*10240 - (j % 4)*1024 + n*128}"))
        out.append(I(f"buffer_load_dwordx4 v{vDx}, {S4(sX)}, s{sT} offen offset:{(j % 4)*1024} lds", dst={f"X{n&1}_{j>>1}"}))
    return out
def take(L, n):
    out = []
    while L and n:
        x = L.pop(0); out.append(x); n -= x.kind == "vmem"
        x.after = [y for y in x.after if y in out]
    return out

def phase(name, n, typ, mf, own, nxt, nxt_typ, pub, early, dmas, extra=(), post=(), early_hi=None, bg=BG, dend=None, endx=frozenset(), endv=None):
    lu = lastuse_pv if typ == "v" else lastuse_qk
    N = len(mf)
    rs = []
    if typ == "v":
        k0 = 48 - len(own)
        for j, it in enumerate(own):
            it.target = j * (bg - 6) / len(own)
            it.hi = min(8 * (it.f >> 1) - 6, bg - 5)
            if it.f >= 16: it.lo = lu(it.f - 16)
            it.hi = max(it.hi, it.lo)
    else:
        for j, it in enumerate(own):
            kt, s = divmod(it.f, 6)
            it.target = 24 * (kt - 1) + 1 + s * 2.5; it.hi = 24 * kt - 8
            if it.f >= 16: it.lo = lu(it.f - 16)
    rs += own
    bar = BAR(pub if isinstance(pub, set) else {f"L{pub}"}, lo=bg, hi=bg); rs.append(bar)
    for j, it in enumerate(nxt):
        it.lo = max(bg + 1, lu(it.f + 8)); it.after = [bar]
        it.target = bg + 1 + (j * 1.8 if nxt_typ == "v" else j * 1.5); it.hi = N - 1 if nxt_typ == "v" and j >= 4 else N - 8
    rs += nxt
    ws = []
    if typ == "v":
        for t in range(1, 12):
            if 8 * t - 1 >= bg: break
            ws.append(WAIT(lneed=regs("a", fq(n, 2 * t), 4) | regs("a", fq(n, 2 * t + 1), 4), lo=8 * t - 3, hi=8 * t - 1, target=8 * t - 2))
    else:
        for kt in range(1, 4):
            ws.append(WAIT(lneed=set().union(*[regs("a", fq(n, 6 * kt + s), 4) for s in range(6)]), lo=24 * kt - 3, hi=24 * kt - 1, target=24 * kt - 2))
    nf = 2 if nxt_typ == "v" else 6
    ws.append(WAIT(lneed=set().union(*[regs("a", fq(n + 1, f), 4) for f in range(nf)]) | endx, vneed=endv, lo=N - 2, hi=N - 1, target=N - 1.5))
    ms = list(early)
    spread(ms, 1, early_hi or bg - 6)
    nv = sum(1 for it in dmas if it.kind == "vmem"); k = 0
    for it in dmas:
        it.lo = bg + 1 if it.kind == "vmem" else bg - 4
        it.target = bg + 2 + k * min(12.0, ((dend or N) - bg - 3) / max(nv, 1)) - (0 if it.kind == "vmem" else 2.5)
        if it.kind == "vmem": it.after = it.after + [bar]; k += 1
    ms += dmas
    for it in post: it.lo = bg + 1; it.target = N - 6
    ms += list(post)
    return schedule(mf, [ws, rs, ms] + list(extra), novalu=range(bg, bg + 9), name=name)

def softmax(groups, lo, hi, sub=None, skip=NOV):
    E = []; D = []; P = []
    for (par, kb, qt, l0, l1, h, sb_) in groups:
        x, z = XY(par, kb, qt), Z(kb, qt)
        src = [x, x + 1, x + 2, x + 3, z, z + 1, z + 2, z + 3]
        for pr in range(4):
            es = []
            for e in range(2):
                r = src[2 * pr + e]
                ex = I(f"v_exp_f32 v{r}, v{r}", lo=(l0, l1)[pr >> 1])
                if sb_:
                    sb = I(f"v_add_f32 v{r}, v{r}, v{negm(qt)}", after=[sub[qt]] if sub else [], lo=(l0, l1)[pr >> 1]); sb.ex = ex; P.append(sb); ex.after = [sb]
                E.append(ex); es.append(ex)
            D.append(I(f"v_cvt_pk_bf16_f32 v{x+pr}, v{src[2*pr]}, v{src[2*pr+1]}", after=es, hi=h))
    spread(E, lo, hi, skip)
    for e in E: e.hi = 10**9
    for d in D:
        d.target = max(a.target for a in d.after) + 1
        for a in d.after: a.hi = d.hi - 1
    for p in P: p.target = p.ex.target - 3; p.hi = p.ex.hi - 1
    return [P, E, D]
def g_old(par, kb, qts, N, inqk):
    return [(par, kb, qt, 0, 0, (48 * kb + 24 + 6 * qt - 1) if inqk else N - 1, False) for qt in qts]
def g_new(par, qts):
    return [(par, 0, qt, 6 * qt + 13, 24 + 6 * qt + 13, 95, False) for qt in qts]

def mf_w(n):
    out = []
    for t in range(12):
        for qt in range(4):
            d = Qf(qt, t >> 1) if t % 2 == 0 else Qb(qt, t >> 1)
            for kb in range(2):
                out.append(mfma(V4(d), A4(fq(n, 2 * t + kb)), A4(Xf(n, kb, qt)), "0" if (n == 0 and kb == 0) else V4(d)))
    return out
def mf_qk(n, par, first=False):
    out = []
    for kt in range(4):
        for qt in range(4):
            d = XY(par, kt >> 1, qt) if kt % 2 == 0 else Z(kt >> 1, qt)
            order = range(6) if qt % 2 == 0 else range(5, -1, -1)
            for j, s in enumerate(order):
                c = V4(d) if j else ("0" if (first and kt < 2) else V4(negm(qt)))
                out.append(mfma(V4(d), A4(fq(n, 6 * kt + s)), V4(Qf(qt, s)), c))
    return out
def mf_l(par, first=False):
    return [Ins(f"v_smfmac_f32_16x16x64_bf16 {V4(vL[0])}, {V4(32 + 4*qt)}, v[{XY(par, 0, qt)}:{XY(par, 0, qt)+7}], v{vIx}", kind="mfma") for qt in range(4)]
def mf_pv(n, par, first=False):
    out = []
    for t in range(12):
        for qt in range(4):
            for kb in range(2):
                out.append(mfma(A4(Oacc(t, qt)), A4(fq(n, 2 * t + kb)), V4(XY(par, kb, qt)), "0" if (first and kb == 0) else A4(Oacc(t, qt))))
    return out

ETMP = [32, 40, 56]
def epi_unit(u, packed, k2=False):
    s, qt = divmod(u, 4)
    tb = ETMP[u % 3]
    out = []
    rc = RCP + 2 * qt
    for h in range(2):
        for j in range(4): out.append(I(f"v_accvgpr_read_b32 v{tb+4*h+j}, a{Oacc(2*s+h, qt)+j}"))
        if packed:
            for j in range(2): out.append(I(f"v_pk_mul_f32 v[{tb+4*h+2*j}:{tb+4*h+2*j+1}], v[{tb+4*h+2*j}:{tb+4*h+2*j+1}], v[{rc}:{rc+1}]"))
        else:
            for j in range(4): out.append(I(f"v_mul_f32 v{tb+4*h+j}, v{tb+4*h+j}, v{rc}"))
        for j in range(2): out.append(I(f"v_cvt_pk_bf16_f32 v{tb+2*h+j}, v{tb+4*h+2*j}, v{tb+4*h+2*j+1}"))
    out.append(I(f"buffer_store_dwordx4 {V4(tb)}, v{vO3 if qt == 3 else vO}, {S4(sO)}, s{sOs[s]} offen offset:{qt*1024}" + " sc1", dst={"OST"}))
    return out
def cvt_unit(s, qt, packed):
    a, b = Qf(qt, s), Qb(qt, s)
    out = []
    if packed:
        for r in (a, a + 2, b, b + 2): out.append(I(f"v_pk_mul_f32 v[{r}:{r+1}], v[{r}:{r+1}], {S2(sC)}"))
    else:
        for r in (a, a + 1, a + 2, a + 3, b, b + 1, b + 2, b + 3): out.append(I(f"v_mul_f32 v{r}, s{sC}, v{r}"))
    out += Is(f"""v_cvt_pk_bf16_f32 v{a}, v{a}, v{a+1}
v_cvt_pk_bf16_f32 v{a+1}, v{a+2}, v{a+3}
v_cvt_pk_bf16_f32 v{a+2}, v{b}, v{b+1}
v_cvt_pk_bf16_f32 v{a+3}, v{b+2}, v{b+3}""")
    sw = Is(f"v_permlane16_swap_b32 v{a}, v{a+2}\nv_permlane16_swap_b32 v{a+1}, v{a+3}")
    return out, sw

def pf():
    return [I(f"v_add_u32 v{vPf}, s{sXoff}, v{vO}")] + [I(f"buffer_load_dwordx4 {V4(252)}, v{vPf}, {S4(sP1)}, " + ("0" if j < 4 else f"s{sT3}") + f" offen offset:{(j % 4)*1024}", dst=regs("v", 252, 4)) for j in range(6)]

def atomic(v, so, srd=None):
    it = Ins(f"s_mov_b64 exec, 1\nbuffer_atomic_add v{v}, off, {S4(srd or sDb)}, s{so}\ns_mov_b64 exec, -1", kind="vmem"); it.cost = 8
    return it
def codepf():
    return [I("global_load_dword v30, v[28:29], off", dst={"v30"})]

def lin(items):
    out = []
    for k, it in enumerate(items):
        out.append(it)
        if it.text.startswith("s_add_u32 m0") and items[k + 1].kind == "vmem": out.append(I("s_nop 0"))
    return out

def stamp(idx, k2=False):
    if not OPT["stamps"]: return []
    if OPT["stamps"] == 9:
        if idx not in (48, 54): return []
        return Is(f"s_memrealtime s[94:95]\ns_waitcnt lgkmcnt(0)\nv_writelane_b32 v{31 if idx == 48 else 22}, s94, {idx}")
    va, vb = (22, 23) if idx >= 51 else (31, 31) if OPT['stamps'] >= 6 else (46, 47)
    if idx == -2: sel = "s_add_u32 s92, s39, 31"
    elif idx < 0: sel = f"s_mul_i32 s92, s{sItem}, 24\ns_add_u32 s92, s92, s{sI}\ns_add_u32 s92, s92, 8"
    else: sel = f"s_mov_b32 s92, {idx}" if (k2 or idx >= 48) else f"s_mul_i32 s92, s{sItem}, 24\ns_add_u32 s92, s92, {idx}"
    return Is(f"""s_memtime s[90:91]
s_memrealtime s[94:95]
s_waitcnt lgkmcnt(0)
s_cselect_b32 s96, 1, 0
{sel}
s_mov_b32 s93, m0
s_mov_b32 m0, s92
v_writelane_b32 v{vb}, s94, m0
v_writelane_b32 v{va}, s90, m0
s_mov_b32 m0, s93
s_cmp_lg_u32 s96, 0""")
def stamp_out(karg, wg, wave, tmp, base, k2=False):
    if not OPT["stamps"]: return []
    va = 22
    return Is(f"""s_load_dwordx2 s[80:81], {karg}, 96
s_waitcnt lgkmcnt(0)
s_add_u32 s80, s80, {base}
s_addc_u32 s81, s81, 0
s_mov_b32 s82, 0x100000
s_mov_b32 s83, 0x20000
s_lshl_b32 s84, s{wg}, 2
s_add_u32 s84, s84, s{wave}
s_lshl_b32 s84, s84, 9
v_lshlrev_b32 v{tmp}, 3, v0
buffer_store_dwordx2 v[{va}:{va+1}], v{tmp}, s[80:83], s84 offen sc1""")


def pst(idx):
    if OPT["stamps"] != 8: return []
    return Is(f"s_memtime s[28:29]\ns_waitcnt lgkmcnt(0)\nv_writelane_b32 v31, s28, {idx}") if idx < 18 else stamp(idx, True)
def kernel1():
    B = {}
    c = math.log2(math.e) / math.sqrt(192.0)
    import struct
    cbits = struct.unpack("<I", struct.pack("<f", c))[0]
    kload = lambda b: Is(f"s_load_dwordx16 s[4:19], {b}, 0\ns_load_dwordx8 s[20:27], {b}, 64\ns_load_dwordx2 {S2(sWsP)}, {b}, 96")
    B["kre"] = kload(S2(sKA)) + Is("s_branch K1_PRO")
    B["entry"] = Is("s_cmp_ge_u32 s2, 256\ns_cbranch_scc1 K1_END") + kload("s[0:1]") + Is(f"""
v_lshrrev_b32 v{vT}, 6, v0
v_and_b32 v0, 63, v0
s_mov_b32 s{sWg}, s2
v_readfirstlane_b32 s{sWave}, v{vT}
s_mov_b64 {S2(sKA)}, s[0:1]
s_mov_b32 s{sMode}, 0
s_mov_b32 s{sSig}, 0""") + stamp(48) + (Is("v_writelane_b32 v31, s94, 58") if OPT["stamps"] == 6 else [])
    cpa = Is(f"""
s_getpc_b64 s[90:91]
K1_PC:
s_lshr_b32 s86, s{sWg}, 3
s_lshl2_add_u32 s86, s86, s{sWave}
s_lshl_b32 s86, s86, 10
v_lshl_add_u32 v28, v0, 4, s86
v_min_u32 v28, (K_CODE_END-K1_PC-32)&0xfffffff0, v28
s_and_b32 s90, s90, 0xfffffff0
v_mov_b32 v29, s91
v_add_co_u32 v28, vcc, s90, v28
s_mov_b32 s{sSp}, 0
s_nop 0
v_addc_co_u32 v29, vcc, 0, v29, vcc""") + codepf()
    t0, t1, t2, t3 = vT, vT + 1, vT + 2, vT + 3
    P = Is(f"""K1_PRO:
s_lshr_b32 s82, s{sWg}, 6
s_and_b32 s83, s{sWg}, 2
s_lshl1_add_u32 s81, s83, s82
s_mul_i32 s82, s81, 307200
s_lshl_b32 s{sXoff}, s{sWave}, 13
s_lshl_b32 s86, s{sWave}, 6
v_lshrrev_b32 v{t0}, 3, v0
v_and_b32 v{t1}, 7, v0
v_and_b32 v{t2}, 6, v{t0}
v_xor_b32 v{t1}, v{t1}, v{t2}
v_add_u32 v{t2}, s86, v{t0}
v_mul_u32_u24 v{vDx}, 1280, v{t2}
v_lshl_add_u32 v{vDx}, v{t1}, 4, v{vDx}
s_bfe_u32 s{sT3}, s{sWg}, 0x10002
s_waitcnt lgkmcnt(0)
s_cselect_b64 s[92:93], s[16:17], s[6:7]
s_cselect_b64 s[4:5], s[14:15], s[4:5]
s_add_u32 s{sX}, s4, s82
s_addc_u32 s{sX+1}, s5, 0
s_mov_b32 s{sX+2}, 307200
s_mov_b32 s{sX+3}, 0x20000""") + pst(16) + dma_x(0) + cpa + Is(f"""
s_cmp_eq_u32 s{sT3}, 0
s_cselect_b64 s[94:95], s[8:9], s[18:19]
s_cselect_b64 s[96:97], s[10:11], s[20:21]
s_cselect_b64 {S2(sWoP)}, s[12:13], s[22:23]
s_mov_b64 {S2(sOutP)}, s[24:25]
s_mov_b64 {S2(sDb)}, s[26:27]
s_lshr_b32 s91, s{sWg}, 3
s_and_b32 s88, s{sWg}, 1
s_and_b32 s89, s91, 7
s_lshl3_add_u32 s80, s88, s89
s_mul_i32 s84, s80, 384
s_mul_i32 s{sWoff}, s{sWave}, 6144
v_mul_u32_u24 v{vDkv}, 384, v{t0}
v_lshl_add_u32 v{vDkv}, v{t1}, 4, v{vDkv}
v_add_u32 v{vDkv}, s{sWoff}, v{vDkv}
v_and_b32 v{t2}, 4, v{t1}
v_and_b32 v{t3}, 1, v{t1}
v_lshl_or_b32 v{t2}, v{t3}, 1, v{t2}
v_bfe_u32 v{t3}, v{t1}, 1, 1
v_or_b32 v{t1}, v{t2}, v{t3}
v_and_b32 v{t2}, 3, v{t0}
v_lshrrev_b32 v{t3}, 2, v{t0}
v_lshl_add_u32 v{t2}, v{t3}, 3, v{t2}
s_lshr_b32 s86, s{sWave}, 1
s_lshl_b32 s86, s86, 5
s_and_b32 s87, s{sWave}, 1
s_lshl2_add_u32 s86, s87, s86
v_add_u32 v{t2}, s86, v{t2}
v_mul_u32_u24 v{vDw}, 12288, v{t2}
v_lshl_add_u32 v{vDw}, v{t1}, 4, v{vDw}
v_add_u32 v{vDw1}, {196608-3072}, v{vDw}
s_add_u32 s{sDA}, s96, s84
s_addc_u32 s{sDA+1}, s97, 0
s_sub_u32 s{sDA+2}, 7864320, s84
s_mov_b32 s{sDA+3}, 0x20000
""")
    P0 = P
    P = Is(f"""
s_lshl_b32 s83, s81, 5
s_add_u32 s83, s83, s80
s_mul_i32 s83, s83, 393216
s_lshl_b32 s85, s{sT3}, 5
s_lshl_b32 s86, s88, 4
s_add_u32 s85, s85, s86
s_add_u32 s85, s85, s89
s_and_b32 s86, s89, 4
s_add_u32 s85, s85, s86
s_mul_i32 s85, s85, 720
s_mul_i32 s86, s81, 15
s_add_u32 s85, s85, s86
s_lshl_b32 s85, s85, 10
s_and_b32 s88, s{sWg}, 3
s_lshl_b32 s89, s91, 2
s_add_u32 s88, s88, s89
s_add_u32 s{sK}, s92, s83
s_addc_u32 s{sK+1}, s93, 0
s_add_u32 s{sV}, s94, s83
s_addc_u32 s{sV+1}, s95, 0
s_mov_b32 s{sDb+2}, 256
s_mov_b32 s{sDb+3}, 0x20000
s_bfe_u32 s{sCo}, s{sWg}, 0x20001
s_lshl_b32 s{sCo}, s{sCo}, 6
s_cmp_eq_u32 s{sSig}, 0
s_cselect_b32 s{sOn}, {5*122880+15*1024}, 0
s_add_u32 s{sNb}, s{sDA}, 6144
s_addc_u32 s{sNb+1}, s{sDA+1}, 0
s_sub_u32 s{sNnum}, s{sDA+2}, 6144
s_lshr_b32 s86, s88, 1
s_and_b32 s87, s88, 1
s_lshl_b32 s87, s87, 6
s_add_u32 s86, s86, s87
s_mul_i32 s86, s86, 30720
s_add_u32 s{sN2}, s{sWoP}, s86
s_addc_u32 s{sN2+1}, s{sWoP+1}, 0
s_mul_i32 s86, s88, {4*12288}
s_add_u32 s86, s86, {128*12288+6144}
s_add_u32 s{sP1}, s96, s86
s_addc_u32 s{sP1+1}, s97, 0
s_mov_b32 s{sP1+2}, {3*12288+6144}
s_mov_b32 s{sP1+3}, 0x20000
s_mov_b32 s{sT3}, 4096
s_add_u32 s{sO}, s{sWsP}, s85
s_addc_u32 s{sO+1}, s{sWsP+1}, 0
s_sub_u32 s{sO}, s{sO}, {OSTRIDE}
s_subb_u32 s{sO+1}, s{sO+1}, 0
s_mov_b32 s{sO+2}, 0
s_mov_b32 s{sO+3}, 0x20000
s_lshl_b32 s86, s{sWg}, 7
s_add_u32 s86, s86, {FLG}
s_add_u32 s{sDB}, s{sWsP}, s86
s_addc_u32 s{sDB+1}, s{sWsP+1}, 0
s_cmp_eq_u32 s{sMode}, 0
s_cselect_b32 s{sDB+2}, 128, 0
s_mov_b32 s{sDB+3}, 0x20000
s_mov_b32 s{sItem}, 0
s_mov_b32 s{sFlag}, 0
s_mov_b32 s{sSel}, {OPT['me']}
s_mov_b32 s{sBk}, 0
s_lshr_b32 s80, s{sWg}, 4
s_mul_i32 s84, s80, 52
s_lshr_b32 s84, s84, 8
s_mul_i32 s85, s84, 5
s_sub_u32 s85, s80, s85
s_and_b32 s81, s{sWg}, 1
s_bfe_u32 s89, s{sWg}, 0x10003
s_lshl1_add_u32 s89, s81, s89
s_and_b32 s82, s{sWave}, 1
s_lshr_b32 s83, s{sWave}, 1
s_xor_b32 s86, s81, s82
s_xor_b32 s86, s86, 1
s_lshl_b32 s86, s86, 7
s_lshl_b32 s87, s85, 8
s_add_u32 s86, s86, s87
s_mul_i32 s87, s83, {64*1280}
s_add_u32 s86, s86, s87
s_mul_i32 s87, s89, {768*1280}
s_add_u32 s86, s86, s87
s_add_u32 s{sWoP}, s{sWoP}, s86
s_addc_u32 s{sWoP+1}, s{sWoP+1}, 0
s_sub_u32 s{sK2n}, 7864320, s86
s_cmp_lt_u32 s80, 15
s_cselect_b32 s{sK2n}, s{sK2n}, 0
s_bfe_u32 s86, s{sWg}, 0x10001
s_mul_i32 s86, s86, 60
s_mul_i32 s87, s84, 20
s_add_u32 s86, s86, s87
s_mul_i32 s87, s{sWave}, 5
s_add_u32 s86, s86, s87
s_bfe_u32 s87, s{sWg}, 0x10002
s_lshl2_add_u32 s88, s87, s89
s_mul_i32 s88, s88, {48*120}
s_add_u32 s88, s88, s86
s_lshl_b32 s88, s88, 10
s_add_u32 s{sK2O}, s{sWsP}, s88
s_addc_u32 s{sK2O+1}, s{sWsP+1}, 0
s_mul_i32 s88, s86, {16*2560}
s_mul_i32 s87, s87, 1280
s_add_u32 s88, s88, s87
s_lshl_b32 s87, s85, 8
s_add_u32 s88, s88, s87
s_lshl_b32 s87, s89, 6
s_add_u32 s88, s88, s87
s_add_u32 s{sOutP}, s{sOutP}, s88
s_addc_u32 s{sOutP+1}, s{sOutP+1}, 0
s_mov_b32 s{sC}, {cbits:#x}
s_mov_b32 s{sC+1}, {cbits:#x}
s_mov_b32 s{sThr}, 0x5d800000
""") + [I(f"s_mov_b32 s{sOs[s]}, {s*122880}") for s in range(6)]
    kb0, vb0 = vK[0][0], vV[0][0]
    P += Is(f"""
v_and_b32 v{t0}, 15, v0
v_lshrrev_b32 v{t1}, 4, v0
v_and_b32 v{t2}, 6, v{t0}
v_xor_b32 v{t3}, v{t2}, v{t1}
v_lshlrev_b32 v{t3}, 4, v{t3}
v_lshl_add_u32 v{vXr[0][0]}, v{t0}, 7, v{t3}
v_add_u32 v{vXr[0][0]}, s{sXoff}, v{vXr[0][0]}
v_xor_b32 v{vXr[0][1]}, 64, v{vXr[0][0]}
v_add_u32 v{vXr[1][0]}, {X1}, v{vXr[0][0]}
v_add_u32 v{vXr[1][1]}, {X1}, v{vXr[0][1]}
v_lshrrev_b32 v{t2}, 3, v{t0}
v_mul_u32_u24 v{kb0}, 3072, v{t2}
v_and_b32 v{t2}, 7, v{t0}
v_lshl_add_u32 v{kb0}, v{t2}, 7, v{kb0}
v_add_u32 v{kb0}, v{kb0}, v{t3}
v_xor_b32 v{vK[0][1]}, 64, v{kb0}
v_add_u32 v{vK[1][0]}, {KW[1]}, v{kb0}
v_add_u32 v{vK[1][1]}, {KW[1]}, v{vK[0][1]}
v_lshrrev_b32 v{t2}, 5, v0
v_mul_u32_u24 v{vb0}, 3072, v{t2}
v_bfe_u32 v{t2}, v0, 2, 3
v_lshl_add_u32 v{vb0}, v{t2}, 7, v{vb0}
v_and_b32 v{t2}, 6, v{t2}
v_bfe_u32 v{t3}, v0, 1, 1
v_xor_b32 v{t2}, v{t2}, v{t3}
v_lshl_add_u32 v{vb0}, v{t2}, 4, v{vb0}
v_and_b32 v{t2}, 1, v0
v_lshl_add_u32 v{vb0}, v{t2}, 3, v{vb0}
v_add_u32 v{vb0}, {VW[0]}, v{vb0}
v_xor_b32 v{vV[0][1]}, 32, v{vb0}
v_xor_b32 v{vV[0][2]}, 64, v{vb0}
v_xor_b32 v{vV[0][3]}, 96, v{vb0}
""") + [I(f"v_add_u32 v{vV[1][i]}, {VW[1]-VW[0]}, v{vV[0][i]}") for i in range(4)] + Is(f"""
v_bfe_i32 v{t2}, v0, 2, 1
v_and_b32 v{t2}, 0xaaaaaaaa, v{t2}
v_or_b32 v{vIx}, 0x44444444, v{t2}
s_lshl_b32 s86, s{sWave}, 12
v_lshlrev_b32 v{vO}, 4, v0
v_add_u32 v{vO}, s86, v{vO}
s_cmp_eq_u32 s{sWave}, 3
s_cselect_b32 s86, 0x80000000, 0
v_add_u32 v{vO3}, s86, v{vO}
""")
    P += [I(f"v_mov_b32 v{vL[q]}, 0") for q in range(4)]
    L0 = dma_w(0) + dma_w(1) + dma_x(1) + hd(dma_w(2))
    ld = lin(take(L0, OPT['p0'])); L0 = take(L0, 99)
    rest = P; P = P0; nv = 0
    for x in ld:
        P.append(x)
        if x.kind == "vmem":
            nv += 1; c_ = 0
            while rest and nv > OPT["pskip"] and (c_ < 12 or rest[0].text.split()[0] in ("s_addc_u32", "s_subb_u32", "s_cselect_b32", "s_cselect_b64")):
                P.append(rest.pop(0)); c_ += 1
    P += rest + pst(19)
    clr = I(f"buffer_store_dwordx4 {V4(vL[0])}, v{vO}, {S4(sDB)}, 0 offen sc1", dst={"OST"})
    XALL = lambda n: {f"X{n&1}_{q}" for q in range(4)}
    P += [WAIT(vneed=XALL(0) | {f"L{slot(0)}"})] + reads_x(0) + Is("s_barrier")
    B["pro"] = P + pst(20) + reads_v(0, slot(0))[:NPRE_V] + stamp(0) + [WAIT(lneed=regs("a", fq(0, 0), 8))]
    xr = reads_x(1); st_ = []
    for q in range(4): st_ += [WAIT(vneed={f"X1_{q}"})] + xr[2 * q:2 * q + 2]
    spread(st_[:6], 56, BG - 5); spread(st_[6:], BG + 1, 90)
    B["w0a"] = phase("w0a", 0, "v", mf_w(0), reads_v(0, slot(0))[NPRE_V:], reads_v(1, slot(1))[:NPRE_V], "v", slot(1), L0 + tl(dma_w(2)) + dma_x(2),
                     hd(dma_w(3)) + [clr], [st_], early_hi=74, endx=regs("a", Xf(1, 0, 0), 32)) + Is("K1_W1:")
    NE0 = OPT["ne0"]
    EW = {0: list(range(NE0, 8))}
    rest = list(range(8, 24)); per = [3, 3, 2, 2, 2, 2, 2]
    for n in range(1, 8): EW[n] = rest[:per[n - 1]]; rest = rest[per[n - 1]:]
    NC9 = OPT["nc9"]
    cunits = [(s, qt) for s in range(6) for qt in range(4)]
    cold = dma_k(0, X0) + dma_k(1, slot(2)) + dma_v(0, slot(3)); C8 = OPT["cw8"]
    cut = lambda p: 10 * (p // 3) + (0, 4, 7)[p % 3]
    pairs = lambda a, b: cold[cut(a):cut(b)]
    for n in range(10):
        own = reads_v(n, slot(n % 4))[NPRE_V:]
        early = []; extra = []; post = []; endx = set()
        if n < 9: nxt = reads_v(n + 1, slot((n + 1) % 4))[:NPRE_V]; nt_ = "v"; pub = slot((n + 1) % 4)
        else: nxt = reads_k(10, X0)[:NPRE_K]; nt_ = "k"; pub = X0
        if n < 8: early += tl(dma_w(n + 2))
        if n == 8: early += pairs(1, 1 + C8)
        if n == 9: early += pairs(2 + C8, 8)
        if n == 7:
            early += Is(f"""s_mov_b64 {S2(sDA)}, {S2(sK)}
s_mov_b32 s{sDA+2}, 393216
s_mov_b64 {S2(sDB)}, {S2(sV)}
s_mov_b32 s{sDB+2}, 393216""")
        if n < 8: early += dma_x(n + 2)
        if (OPT['cpw'] >> n) & 1: early += codepf()
        if n == 8: post = Is(f"""s_mov_b32 s83, 0xff800000
s_cmp_eq_u32 s{sWave}, 3
s_cselect_b32 s82, 0x71000000, s83
v_mov_b32 v{vMi[0]}, s83
v_mov_b32 v{vMi[1]}, s83
v_mov_b32 v{vMi[2]}, s83
v_mov_b32 v{vMi[3]}, s82""")
        es = []; sts = []; us = EW.get(n, [])
        for u in us:
            e = epi_unit(u, False)
            if u >= us[-1] - 2:
                x = e.pop(); x.after = [e[-1], early[-1]]; sts.append(x)
            es += e
        late0 = n == 0 and NE0 < 6
        if es: extra.append(spread(es, 0, (BG + 14 if late0 else 70) if n == 0 else 90, NOV))
        if sts: extra.append(spread(sts, 72, 96, [BG]))
        if n < 9:
            xr = reads_x(n + 1); st = []
            for q in range(4):
                if q % 2 == 0: st.append(WAIT(vneed={f"X{(n+1)&1}_{q}", f"X{(n+1)&1}_{q+1}"}))
                st += xr[2 * q:2 * q + 2]
            spread(st, 46, BG - 5)
            if n == 0:
                for q in range(4):
                    la = [x for x in es if x.text.endswith(f" a{Oacc(3, q) + 3}")]
                    for it in xr[2 * q:2 * q + 2]:
                        it.after = la
                        if q == 3 and late0: it.lo = BG + 1; it.hi = 88; it.target = BG + 4
                    if la: la[0].hi = BG - 1 if q == 3 and late0 else BG - 8
                endx = regs("a", Xf(1, 0, 0), 32)
            extra.append(st)
        if n == 9:
            pub = {f"L{X0}", "OST"}
        if n == 9 and NC9:
            cs = []; sw = []
            for (s, qt) in cunits[:NC9]:
                a, b = cvt_unit(s, qt, False)
                a[0].lo = 16 * s + 8 + 2 * qt + 1 + 8
                for x in b: x.after = [a[-1]]; x.dly = 1
                cs += a; sw += b
            spread(cs, 17, 92, NOV)
            for x in sw: x.target = x.after[0].target + 2
            extra += [cs, sw]
        d = hd(dma_w(n + 3)) if n < 7 else pairs(0, 1) if n == 7 else pairs(1 + C8, 2 + C8) if n == 8 else pairs(8, 9)
        B[f"w{n}"] = (stamp(8 + n) if OPT["stamps"] == 7 else []) + phase(f"w{n}", n, "v", mf_w(n), own, nxt, nt_, pub, early, d, extra, early_hi=70, post=post, endx=endx)
    C = stamp(1) + Is('.p2align 3'); pend = []
    for k, (s, qt) in enumerate(cunits[NC9:]):
        a, b = cvt_unit(s, qt, True)
        C += a[:4] + pend + a[4:]; pend = b
    C += Is(f"s_cmp_lg_u32 s{sMode}, 0\ns_nop 0") + pend + Is("s_cbranch_scc1 K1_MAXPASS\nK1_MAXRET:\ns_nop 0") + stamp(2)
    B["cvt"] = C
    M = []; last = []
    for qt in range(4):
        x = XY(0, 0, qt); m = vT + 2 * qt; t = m + 1
        a = I(f"v_max3_f32 v{m}, v{x}, v{x+1}, v{x+2}", lo=6 * qt + 13)
        b = I(f"v_max3_f32 v{m}, v{m}, v{x+3}, v{vMi[qt]}")
        c_ = I(f"v_mov_b32 v{t}, v{m}")
        d = I(f"v_permlane16_swap_b32 v{m}, v{t}", after=[c_], dly=1)
        e = I(f"v_max_f32 v{m}, v{m}, v{t}")
        f = I(f"v_mov_b32 v{t}, v{m}")
        g = I(f"v_permlane32_swap_b32 v{m}, v{t}", after=[f], dly=1)
        h = I(f"v_max_f32 v{m}, v{m}, v{t}")
        ns = [I(f"v_sub_f32 v{negm(qt)+i}, 0, v{m}", hi=48 + 6 * qt - 3) for i in range(4)]
        st = [a, b, c_, d, e, f, g, h] + ns
        for j, it in enumerate(st): it.target = 6 * qt + 13 + j * 0.5
        M.append(st); last.append(ns[0])
    NA0 = OPT['na0']
    sm = softmax([(0, 0, qt, 0, 24 + 6 * qt + 13, 95, True) for qt in range(NA0)], 28, 93, sub=last)
    early = Is(f"""s_mov_b32 s{sA}, {3*TILE}
s_mov_b32 s{sB}, {2*TILE}
s_mov_b32 s{sI}, 0
s_add_u32 s{sO}, s{sO}, {OSTRIDE}
s_addc_u32 s{sO+1}, s{sO+1}, 0
s_mov_b32 s{sO+2}, s{sOn}
s_mov_b32 s{sOn}, {5*122880+15*1024}""") + dma_k(2, slot(0))
    hand = [WAIT(vneed={"v30"})] + Is(f"""v_mov_b32 v30, 1
s_and_b32 s80, s{sWg}, 1
s_lshl_b32 s80, s80, 2
s_add_u32 s80, s80, s{sCo}
s_cmp_eq_u32 s{sAll}, 0
s_cselect_b32 s81, s{sItem}, 0
s_cmp_lt_u32 s{sSig}, s81
s_cselect_b32 s80, s80, 0x1000
s_cselect_b32 s{sSig}, 1, s{sSig}
s_cmp_eq_u32 s{sWave}, 0
s_cselect_b32 s80, s80, 0x1000""") + [atomic(30, 80)]
    B["qk0"] = phase("qk0", 10, "k", mf_qk(10, 0, True), reads_k(10, X0)[NPRE_K:], reads_k(11, slot(2))[:NPRE_K], "k", slot(2), early,
                     hd(dma_v(1, slot(1))), M + sm, early_hi=70) + stamp(3)
    def half(nm, par, mode, xq=0, xp=0, probe=False, io=None):
        ks, vs, kn, vp = slot(2 * par), slot(2 * par + 1), slot(2 - 2 * par), slot(3 - 2 * par)
        last = mode == "last"; first = mode == "first"
        mp = mf_pv(12, 1 - par, first) + mf_l(1 - par) + (mf_l(1) if last and par else [])
        NP_ = len(mp)
        gq = g_old(1 - par, 1, range(4), 96, True); gp = g_old(par, 0, range(4), NP_, False); hq = BG - 2
        if first: gq = [g[:6] + (True,) for g in g_old(0, 0, range(NA0, 4), 96, True)] + gq; hq = 88
        if last and par == 0:
            gq = gq + g_new(0, [0]); hq = 93
            gp = g_old(0, 0, [1, 2, 3], NP_, False) + g_old(0, 1, [0, 1], NP_, False)
        if last and par:
            gq = g_old(0, 1, [2, 3], 96, True) + g_new(1, [0, 1, 2]); hq = 93
            gp = [(1, 0, 3, 0, 0, 97, False)] + [(1, 1, qt, 4, 6, NP_ - 7 + qt, False) for qt in range(4)]
        def burst(gs):
            if not gs: return []
            P_, E, D = softmax(gs, 0, 90); out = list(P_)
            for j in range(0, len(E), 2):
                out += E[j:j + 2] + (D[j // 2 - 1:j // 2] if j else [])
            return out + Is("s_nop 0") + D[-1:]
        bq = burst(gq[:xq]); gq = gq[xq:]; bp = burst(gp[:xp]); gp = gp[xp:]
        post = []
        if last: qe, qt_, pe, pt, qx, px = io
        else:
            qe = tl(dma_v(1, slot(1))) if first else (codepf() if par == 0 else []) + tl(dma(sDB, sB, vp)) + Is(f"s_add_u32 s{sB}, s{sB}, {TILE}")
            qt_ = hd(dma(sDA, sA, ks)); pe = tl(dma(sDA, sA, ks)) + Is(f"s_add_u32 s{sA}, s{sA}, {TILE}"); pt = hd(dma(sDB, sB, vs)); qx = []; px = []
            if par and not first: post = Is(f"s_add_u32 s{sI}, s{sI}, 1\ns_or_b32 s80, s{sSel}, 0x40\ns_bitcmp0_b32 s80, s{sI}")
        if probe:
            pe = pe + Is(f"s_getreg_b32 s80, hwreg(HW_REG_IB_STS, 0, 4)\ns_cmp_ge_u32 s80, {OPT['adp']}\ns_addc_u32 s{sBk}, s{sBk}, 0")
        if first:
            pe = hand + pe
            sel = Is("v_and_b32 v47, 3, v0\nv_mov_b32 v46, 0x3f803f80")
            for qt in range(4):
                c_ = I(f"v_cmp_eq_u32 s[86:87], {qt}, v47")
                sel += [c_, I(f"v_cndmask_b32 v{32+4*qt}, 0, v46, s[86:87]", after=[c_], dly=1)] + [I(f"v_mov_b32 v{32+4*qt+j}, v{32+4*qt}") for j in range(1, 4)]
            sel += [I(f"v_mov_b32 v{vL[q]}, 0") for q in range(4)]
            px = [spread(sel, 2, 92, NOV)]
        q = bq + phase("qk" + nm, 11, "k", mf_qk(11, par), reads_k(11, ks)[NPRE_K:], reads_v(12, vs)[:NPRE_V], "v", vs, qe, qt_,
                       softmax(gq, 0, hq) + qx, early_hi=72)
        if last and par: nxt, nty, pub = reads_v(41, X1)[:NPRE_V], "v", X1
        else: nxt, nty, pub = reads_k(11, kn)[:NPRE_K], "k", kn
        p = bp + phase("pv" + nm, 12, "v", mp, reads_v(12, vs)[NPRE_V:], nxt, nty, pub, pe, pt,
                       softmax(gp, 0, NP_ - (7 if last and par else 3)) + px, post=post, early_hi=72)
        return q + p
    st = lambda: stamp(-1) if OPT["stamps"] == 6 else []
    B["peel"] = half("1", 1, "first", OPT["pq"], OPT["pp"]) + Is(f"s_bitcmp1_b32 s{sSel}, 0\ns_cbranch_scc1 K1_LA")
    B["loop"] = Is(".p2align 6\nK1_L:") + st() + half("e", 0, "loop", OPT["yq"], OPT["yp"]) + half("o", 1, "loop", OPT["yq"], OPT["yp"]) + Is("s_cbranch_scc1 K1_L")
    B["loope"] = Is(f"s_cmp_lg_u32 s{sI}, 6\ns_cbranch_scc1 K1_LA\ns_cmp_eq_u32 s{sItem}, 0\ns_cbranch_scc1 K1_LASTA")
    B["loopa"] = Is(".p2align 6\nK1_LA:") + st() + half("ea", 0, "loop", OPT["xq"], OPT["xp"], OPT["adp"]) + half("oa", 1, "loop", OPT["xq"], OPT["xp"], OPT["adp"]) + Is("s_cbranch_scc1 K1_L")
    B["loopx"] = Is(f"s_cmp_lg_u32 s{sI}, 6\ns_cbranch_scc1 K1_LA\ns_cmp_lg_u32 s{sItem}, 0\ns_cbranch_scc1 K1_LASTB")
    def pv15(nm, ne, nxt, pub, tail, extra=(), endv=None, **kw):
        B15 = OPT["bg15"]
        c2 = [I(f"v_mov_b32 v{168+q}, v{vL[q]}", lo=8) for q in range(4)]
        R = c2 + [I(f"v_permlane16_swap_b32 v{vL[q]}, v{168+q}", after=[c2[q]], dly=1) for q in range(4)] + [I(f"v_add_f32 v{vL[q]}, v{vL[q]}, v{168+q}") for q in range(4)]
        R += [I(f"v_rcp_f32 v{RCP+2*q}, v{vL[q]}") for q in range(4)] + [I(f"v_cmp_ngt_f32 {S2(80+2*q)}, s{sThr}, v{vL[q]}") for q in range(4)]
        spread(R, 7, 24)
        for it in R: it.hi = 95
        es = []; sts = []
        for u in range(ne):
            e = epi_unit(u, False); e[0].lo = 16 * (u // 4) + 2 * (u % 4) + 1 + 8; e[10].lo = e[0].lo + 8
            if u >= ne - 3: x = e.pop(); x.after = [e[-1]]; sts.append(x)
            es += e
        spread(es, 22, 94, range(B15, B15 + 9))
        fl = Is(f"""s_or_b64 s[80:81], s[80:81], s[82:83]
s_or_b64 s[84:85], s[84:85], s[86:87]
s_or_b64 s[80:81], s[80:81], s[84:85]
s_or_b32 s80, s80, s81
s_or_b32 s{sFlag}, s{sFlag}, s80
s_lshl_b32 s80, s{sWave}, 2
s_add_u32 s80, s80, {FLO}
v_mov_b32 v160, s80
v_mov_b32 v161, s{sFlag}
v_mov_b32 v162, {FLO}""") + [Ins("ds_write_b32 v160, v161")]
        fl[-1].cost = 8
        fl[0].after = R[-1:]; fl[0].dly = 2
        f1 = I(f"ds_read_b128 {V4(164)}, v162", dst=regs("v", 164, 4), lo=B15 + 1, target=B15 + 3)
        f2 = WAIT(lneed=regs("v", 164, 4), lo=80, target=80)
        f3 = Is("v_or_b32 v164, v164, v165\nv_or3_b32 v164, v164, v166, v167")
        f4 = I(f"v_readfirstlane_b32 s{sAll}, v164", after=[f3[1]], hi=91)
        for x in f3 + [f4]: x.target = 81
        ex = list(extra(es, sts)) if extra else []
        out = stamp(4) + phase(nm, 41, "v", mf_pv(41, 1), reads_v(41, X1)[NPRE_V:], nxt, "v", pub, fl, tail, [R + es, [f1, f2] + f3 + [f4]] + ex, bg=B15, endv=endv, **kw)
        return out + stamp(5) + stamp(6) + Is(f"s_cmp_lg_u32 s{sMode}, 0\ns_cselect_b32 s{sAll}, 0, s{sAll}"), sts
    x = pf()
    A_ = lambda book: half("14a", 0, "last", io=[tl(dma(sDB, sB, slot(3))) + codepf() + book, hd(dma_v(15, X1)),
                                    tl(dma_v(15, X1)) + Is(f"s_mov_b64 {S2(sDA)}, {S2(sNb)}\ns_mov_b32 s{sDA+2}, s{sNnum}"), hd(dma_w(0)), [], []]) \
        + half("15a", 1, "last", io=[tl(dma_w(0)) + dma_x(0), hd(dma_w(1)), tl(dma_w(1)) + x[:4], hd(dma_w(2)) + x[4:], [], []])
    dx1 = dma_x(1)
    x0r = reads_x(0)
    def exa(es, sts):
        for y in sts: y.after = y.after + [dx1[-1]]; y.target = 92
        if not OPT["xin"]: return [sts]
        for q in range(4):
            for y in x0r[2 * q:2 * q + 2]: y.after = [x for x in es if x.text.endswith(f" a{Oacc(1, q) + 3}")]
        return [sts, spread(x0r, OPT["bg15"] + 2, 88)]
    book = Is(f"""s_cmp_ge_u32 s{sBk}, {OPT['adn']}
s_cselect_b32 s{sSel}, 63, {OPT['m1']}
s_add_u32 s{sK}, s{sK}, {16*393216}
s_addc_u32 s{sK+1}, s{sK+1}, 0
s_add_u32 s{sV}, s{sV}, {16*393216}
s_addc_u32 s{sV+1}, s{sV+1}, 0""")
    if OPT["rot"]:
        book += Is(f"""s_lshr_b32 s80, s{sWg}, 4
s_mul_i32 s80, s80, 52
s_lshr_b32 s80, s80, 8
s_min_u32 s80, s80, 2
s_bfe_u32 s81, s{sWg}, 0x10001
s_lshl1_add_u32 s80, s80, s81
s_mul_i32 s{sRo[0]}, s80, {128*1280}""")
        for u in range(1, 6): book += Is(f"s_add_u32 s{sRo[u]}, s{sRo[u-1]}, {128*1280}\ns_cmp_eq_u32 s{sRo[u]}, {768*1280}\ns_cselect_b32 s{sRo[u]}, 0, s{sRo[u]}")
    B["lasta"] = Is("K1_LASTA:") + st() + A_(book) + pv15("pv15a", NE0, reads_v(0, slot(0))[:NPRE_V], {f"L{slot(0)}"} | XALL(0), dx1, exa, dend=90,
                                                   endx=regs("a", 0, 32) if OPT["xin"] else frozenset())[0]
    B["mid"] = Is(f"s_mov_b32 s{sItem}, 1") + ([] if OPT["xin"] else x0r + [WAIT(lzero=True)]) + stamp(0)
    B["w0"] += Is("s_branch K1_W1")
    k2tr, k2lay = oproj(B, half, pv15, st)
    X = Is(f"""K1_MAXPASS:
v_and_b32 v{vT}, 15, v0
v_lshrrev_b32 v{vT+1}, 4, v0
v_mul_u32_u24 v{vT}, 384, v{vT}
v_lshl_add_u32 v{vT}, v{vT+1}, 4, v{vT}
s_mov_b32 s{sT}, 0""") + [I(f"v_mov_b32 v{vMi[q]}, 0xff800000") for q in range(4)] + Is("K1_MAXL:")
    for s in range(6): X.append(I(f"buffer_load_dwordx4 {V4(SP+4*s)}, v{vT}, {S4(sDA)}, s{sT} offen offset:{s*64}"))
    X.append(I("s_waitcnt vmcnt(0)"))
    for qt in range(4):
        for s in range(6): X.append(mfma(V4(SP + 32 + 4 * qt), V4(SP + 4 * s), V4(Qf(qt, s)), V4(SP + 32 + 4 * qt) if s else "0"))
    X.append(I("s_nop 7"))
    for qt in range(4):
        d = SP + 32 + 4 * qt
        X += Is(f"v_max3_f32 v{vMi[qt]}, v{vMi[qt]}, v{d}, v{d+1}\nv_max3_f32 v{vMi[qt]}, v{vMi[qt]}, v{d+2}, v{d+3}")
    X += Is(f"s_add_u32 s{sT}, s{sT}, 6144\ns_cmp_lt_u32 s{sT}, 393216\ns_cbranch_scc1 K1_MAXL\ns_branch K1_MAXRET")
    B["maxpass"] = X
    front = [f"w{n}" for n in range(1, 10)] + ["cvt", "qk0", "peel"]
    mixes = [["loopa"] * 6, ["loop"] * 6, ["loopa", "loopa", "loop", "loopa", "loop", "loop"]]
    traces = [["entry", "pro", "w0a"] + front + mixes[i] + ["lasta", "mid", "w0"] + front + mixes[j] + t_ for (i, j) in ((0, 1), (2, 0)) for t_ in k2tr]
    layout = ["entry", "pro", "w0a"] + front + ["loop", "loope"] + k2lay + ["loopa", "loopx", "lasta", "mid", "w0", "k2side", "k2idle", "maxpass"]
    for t_ in traces: resolve_waits(B, t_)
    txt = {k: "\n".join(emit(v)).split("\n") for k, v in B.items()}
    errs = []
    for t_ in traces: errs += verify([l for b in t_ for l in txt[b]])
    errs += verify([l for b in ["entry", "pro", "w0a"] + front[:10] + ["maxpass", "maxpass"] + front[10:] for l in txt[b]])
    errs += verify([l for b in ["loop", "lastb", "k2idle"] for l in txt[b]])
    for t_ in k2tr: errs += verify([l for b in t_[:4] + ["k2wx" + t_[-1][-1]] + t_[3:] for l in txt[b]])
    for e in sorted(set(errs))[:8]: sys.stderr.write("K1 HAZARD " + e + "\n")
    note = {
        "entry": "entry / set-up of descriptors and per-lane addresses; first loads",
        "mid": "between the two heads of this workgroup",
        "w0": "second head, first k phase of its Q projection",
        "w0a": "Q projection: ten k phases of 64; Wq tiles and x rows arrive by LDS-DMA; the previous head's O is normalised and stored underneath",
        "cvt": "scale Q by log2(e)/sqrt(192), round to bf16, arrange as MFMA operand",
        "qk0": "first key tile: row max of its first 16 keys (or the exact max in the redo pass) becomes the softmax shift",
        "peel": "key tile 1 / value tile 0",
        "loop": "attention main loop, two 64-key tiles per trip: S^T = K Q^T - m, P = exp2(S), O^T += V^T P^T, l += 1^T P^T; softmax fully under the MFMAs",
        "lasta": "first head, last tiles: 1/l, overflow check of the shift, first O fragments leave; the second head's first tiles come in",
        "lastb": "second head, last tiles; the output projection's first operands come in",
        "k2head": "output projection: tile 320x128 per workgroup, K split over four workgroups",
        "k2bodyo": "projection, odd K halves (22 steps)", "k2bodye": "projection, even K halves (26 steps)",
        "k2epio": "collect the partners' quarters", "k2epie": "collect the partners' quarters",
        "loopa": "same loop for the first head with part of the softmax issued back to back: lower peak draw while the supply settles",
        "k2side": "rare paths: redo with the exact row max, waits on hand-offs",
        "k2idle": "workgroups without a projection tile",
        "maxpass": "exact row max over all keys (redo pass only)"}
    return [l for b in layout for l in ([f"; ---- {note[b]}"] if b in note else []) + txt[b] if l], errs

def oproj1(B, half, pv15, st, X, N):
    vR = [[1, 2, 3, 4], [13, 14, 15, 16]]; vOf = 18; vSt = 10; vFl = 11; vRd = 12; t0, t1, t2, t3 = 5, 6, 7, 8; vP2 = 9; vLp = 17; vOne = 20
    KS = [0, 32768, 65536]; EX = X1; SEL = 32
    uq = lambda u: [("a", Oacc(2 * (u // 4) + h, u % 4)) for h in range(2)]
    OF = {}
    def Of(d, kb, qt): return OF[d, kb, qt]
    M = OPT["mrg"] - (N & 1); DM = N - M; MD = list(range(DM, N)); U = (N - 1) >> 1
    src = lambda d: (d, 0) if d < 24 else (d - (N - 24), 1)
    NT = OPT["k2n"]; u0 = OPT["ne1"]; left = list(range(u0, 24))
    frs = [(d, kb, qt) for d in range(N) for kb in range(2) for qt in range(5)]
    A0 = OPT["adv0"]; rate = (10 * N - 15 - 10 * A0) / (DM - 1 - A0 + OPT["advf"] / 100.0)
    cum = lambda d: 15 + 10 * (d + 1) if d < A0 else min(10 * N, int(round(15 + 10 * A0 + rate * (d + 1 - A0))))
    OS = {d: frs[(cum(d - 1) if d >= 0 else 0):cum(d)] for d in range(-1, DM)}
    pool = [("v", 224 + 4 * i) for i in range(8)] + [q for u in range(u0) for q in uq(u)]
    for d in range(-1, DM):
        for f in OS[d]: OF[f] = pool.pop(0)
        if d >= 0: pool += [OF[d, kb, qt] for kb in range(2) for qt in range(5)] + [q for u in left[d * NT:(d + 1) * NT] for q in uq(u)]
    RDQ = pool
    CK = {min(d for d in OS if any(f[0] >= m for f in OS[d])): m for m in (12, 24) if m < N}
    R4 = lambda r: f"{r[0]}[{r[1]}:{r[1]+3}]"
    Oset = lambda d, kbs=(0, 1): set().union(*[regs(*Of(d, kb, qt), 4) for kb in kbs for qt in range(5)])
    def acc(t, qt): return 64 + 4 * (t * 5 + qt)
    def wq(f): return 192 + 4 * (f % 16)
    sW_ = sX; sOo = 8; sOut = 12; sXs = 20; sFl = 28
    sTt = 46; sC1 = 51; sC1w = 50; sXo = [32, 33, 34, 35]; sTs = 39; sXr = 24; sGx = 40; sOb = 54; sFo = 55
    def wdma(u, h):
        d_, fo = src(2 * u)
        off = (d_ * 64 + (3072 - 768 if d_ >= 12 else 0) + fo * 1536) * 1280
        out = [I(f"s_add_u32 m0, s{sXoff}, {KS[u % 3] + h*4096}")]
        for j in range(4 * h, 4 * h + 4):
            out += [I(f"s_add_u32 s{sTt}, s{sRo[u]}, {j*10240 - (j % 4)*1024}" if OPT["rot"] and u < 6 else f"s_mov_b32 s{sTt}, {off + j*10240 - (j % 4)*1024}"),
                    I(f"buffer_load_dwordx4 v{vDx}, {S4(sW_)}, s{sTt} offen offset:{(j % 4)*1024} lds", dst={f"S{u%3}"})]
        return out
    Wt = lambda u: {f"S{u%3}"}
    def oload(fs):
        out = []; cur = None
        for (d, kb, qt) in fs:
            off = (2 * src(d)[0] + kb + 96 * src(d)[1]) * 122880 + (qt // 4) * 4096
            if OPT["rot"] and d < 12:
                if (d & 1, kb, qt) == (0, 0, 0): out.append(I(f"s_mul_i32 s{sOb}, s{sRo[d >> 1]}, 3"))
                if off != cur: out.append(I(f"s_add_u32 s{sTt}, s{sOb}, {off - (d >> 1)*4*122880}")); cur = off
            elif off != cur: out.append(I(f"s_mov_b32 s{sTt}, {off}")); cur = off
            out.append(I(f"buffer_load_dwordx4 {R4(Of(d, kb, qt))}, v{vOf}, {S4(sOo)}, s{sTt} offen offset:{(qt % 4)*1024} sc1", dst=regs(*Of(d, kb, qt), 4)))
        return out
    def wreads(ds):
        out = []; f = 0
        for t in range(8):
            for d in ds:
                base = KS[(d >> 1) % 3]; w = base >> 16
                for kb in range(2):
                    r = wq(f)
                    for hf in range(2):
                        it = I(f"ds_read_b64_tr_b16 a[{r+2*hf}:{r+2*hf+1}], v{vR[w][t & 3]} offset:{base - w*65536 + (d & 1)*16384 + (t >> 2)*8192 + (4*kb+2*hf)*1024}", dst=regs("a", r + 2 * hf, 2)); it.f = f
                        out.append(it)
                    f += 1
        return out
    NP = 8; G = 60
    pair = lambda a, b: Ins(a + "\n" + b, kind="bar")
    late = Is(f"""
s_mov_b64 {S2(sOut)}, {S2(sOutP)}
s_mov_b32 s{sOut+2}, {79*2560+64}
s_mov_b32 s{sOut+3}, 0x20000""") + [pair(f"s_add_u32 s{sXs}, s{sWsP}, {XCH}", f"s_addc_u32 s{sXs+1}, s{sWsP+1}, 0")] + Is(f"""
s_mov_b32 s{sXs+2}, {960*15360}
s_mov_b32 s{sXs+3}, 0x20000
s_lshl2_add_u32 s88, s{sWg}, s{sWave}
s_mul_i32 s{sXo[0]}, s88, 15360
s_xor_b32 s89, s88, 32
s_mul_i32 s{sXo[1]}, s89, 15360
s_xor_b32 s89, s88, 4
s_mul_i32 s{sXo[2]}, s89, 15360
s_xor_b32 s89, s88, 36
s_mul_i32 s{sXo[3]}, s89, 15360
s_mul_i32 s88, s{sWave}, 5120
s_add_u32 s88, s88, {EX}
v_add_u32 v{vRd}, s88, v{vOf}
v_and_b32 v{t0}, 15, v0
v_lshrrev_b32 v{t1}, 4, v0
v_lshl_add_u32 v{t2}, v{t0}, 2, v{t1}
v_lshlrev_b32 v{t2}, 4, v{t2}
v_add_u32 v{vLp}, s88, v{t2}
v_lshlrev_b32 v{t1}, 2, v{t1}
v_sub_u32 v{t0}, v{t0}, v{t1}
v_and_b32 v{t1}, 1, v{t0}
v_lshlrev_b32 v{t1}, 4, v{t1}
v_mov_b32 v{t2}, 0x3f80
v_lshlrev_b32 v{t1}, v{t1}, v{t2}
v_lshrrev_b32 v{t0}, 1, v{t0}""")
    c0 = I(f"v_cmp_eq_u32 s[84:85], 0, v{t0}"); c1 = I(f"v_cmp_eq_u32 s[86:87], 1, v{t0}")
    late += [c0, c1, I(f"v_mov_b32 v{SEL+2}, 0"), I(f"v_mov_b32 v{SEL+3}, 0"), I(f"v_cndmask_b32 v{SEL}, 0, v{t1}, s[84:85]"), I(f"v_cndmask_b32 v{SEL+1}, 0, v{t1}, s[86:87]")]
    late += Is(f"""v_mov_b32 v{SEL+4}, 0
v_mov_b32 v{SEL+5}, 0
v_mov_b32 v{SEL+6}, v{SEL}
v_mov_b32 v{SEL+7}, v{SEL+1}
v_lshrrev_b32 v{t0}, 2, v0
v_and_b32 v{t1}, 3, v0
v_mul_u32_u24 v{vSt}, 2560, v{t0}
v_lshl_add_u32 v{vSt}, v{t1}, 4, v{vSt}
v_min_u32 v{t1}, 2, v0
v_add_u32 v{t1}, 1, v{t1}
v_and_b32 v{t0}, 1, v{t1}
v_lshrrev_b32 v{t1}, 1, v{t1}
v_lshl_or_b32 v{t0}, v{t0}, 3, v{t1}
v_xor_b32 v{t0}, s{sWg}, v{t0}
v_lshlrev_b32 v{vFl}, 7, v{t0}
v_min_u32 v{t1}, 2, v0
v_lshl_add_u32 v{vFl}, v{t1}, 2, v{vFl}
s_add_u32 s{sXo[2]}, s{sXo[2]}, 5120
s_add_u32 s{sXo[3]}, s{sXo[3]}, 10240
s_mov_b32 s{sGx}, 0
s_lshl_b32 s{sFo}, s{sWg}, 7""") + [pair(f"s_cmp_eq_u32 s{sWave}, 0", f"s_cselect_b32 s{sFo}, s{sFo}, 0x10000")] + Is("""""") + (Is("v_mov_b32 v22, v31\nv_mov_b32 v23, v31") if OPT["stamps"] else [])
    sPf = 24; sPi = 57
    def pfit():
        out = []
        for h in range(2): out += Is(f"s_add_u32 s81, s{sPi}, {h*768*1280}") + [I(f"buffer_load_dword v30, v{vO}, {S4(sPf)}, s81 offen offset:{j*1024}", dst={"v30"}) for j in range(4)]
        return out + Is(f"s_add_u32 s{sPi}, s{sPi}, 65536")
    if "lastb" not in B:
        r1 = vR[1][0]; c = [OPT[f"c{i}"] for i in range(8)]
        L = tl(dma(sDB, sB, slot(3))) + dma_v(15, X1)
        L += [I(f"buffer_load_dword v30, v{vO}, {S4(sP1)}, " + ("0" if j < 4 else f"s{sT3}") + f" offen offset:{(j % 4)*1024}", dst={"v30"}) for j in range(0 if OPT["rot"] else 8)]
        L += [y for u in range(3) for h in range(2) for y in wdma(u, h)] + oload(OS[-1])
        o_ = 8 if OPT['rot'] else 0
        assert sum(c[:3]) <= 26 - o_ and sum(c[:5]) <= 34 - o_ and sum(c[:6]) <= 42 - o_ and sum(c) <= 50 - o_
        s0 = Is(f"s_cmp_le_u32 s{sWave}, {0 if OPT['p1w'] else 3}\ns_cselect_b32 s86, s{sCo}, 0x1000\ns_cselect_b32 s87, 32, 0") + [I(f"buffer_load_dwordx2 v[14:15], off, {S4(sDb)}, s86 sc1", dst=regs("v", 14, 2))] + codepf() + Is(f"""
s_mov_b64 {S2(sP1)}, {S2(sN2)}
s_mov_b32 s{sP1+2}, 30720
s_mov_b32 s{sT3}, 16384
s_mov_b64 {S2(sW_)}, {S2(sWoP)}
s_mov_b32 s{sW_+2}, s{sK2n}
s_movk_i32 s80, 0x70
v_lshrrev_b32 v{vDx}, 3, v0
v_mul_u32_u24 v{vDx}, 1280, v{vDx}
v_and_or_b32 v{vDx}, v{vDw}, s80, v{vDx}""")
        s1 = Is(f"""
s_mov_b64 {S2(sOo)}, {S2(sK2O)}
s_cmp_lt_u32 s{sWg}, 240
s_cselect_b32 s{sOo+2}, {143*122880+5*1024}, 0
s_and_b32 s{sC1}, s{sWg}, 7
s_lshl_b32 s{sC1}, s{sC1}, 7
s_add_u32 s{sC1}, s{sC1}, 64
s_cmp_eq_u32 s{sWave}, 0
s_cselect_b32 s{sC1w}, s{sC1}, 0x10000
s_add_u32 s{sFl}, s{sWsP}, {FLG}
s_addc_u32 s{sFl+1}, s{sWsP+1}, 0
s_mov_b32 s{sFl+2}, {256*128}
s_mov_b32 s{sFl+3}, 0x20000
s_andn2_b32 s89, 8, s{sWg}
s_lshl_b32 s89, s89, 3
s_add_u32 s89, s89, 65536""")
        s2 = Is(f"""s_bfe_u32 s80, s{sWg}, 0x10001
s_lshr_b32 s81, s{sWg}, 3
s_lshl1_add_u32 s80, s81, s80
s_and_b32 s{sPi}, s80, 3
s_lshl_b32 s{sPi}, s{sPi}, 14
s_mul_i32 s81, s80, 30720
s_sub_u32 s81, {3072*1280}, s81
s_add_u32 s{sPf}, s{sN2}, s81
s_addc_u32 s{sPf+1}, s{sN2+1}, 0
s_mov_b32 s{sPf+2}, {1536*1280}
s_mov_b32 s{sPf+3}, 0x20000""")
        if OPT["xpf"]:
            k_ = OPT["xpf"]
            s2 += Is(f"""s_lshr_b32 s81, s80, {3 - k_}
s_lshl_b32 s81, s81, 14
s_and_b32 s82, s80, {2 * (2 - k_)}
s_lshl_b32 s82, s82, 10
s_add_u32 s81, s81, s82
s_and_b32 s82, s80, 1
s_mul_i32 s82, s82, {768*1280}
s_add_u32 s81, s81, s82
s_add_u32 s81, s81, {768*1280 - 262144*k_}""") + [I(f"buffer_load_dword v30, v{vO}, {S4(sPf)}, s81 offen offset:{j*1024}", dst={"v30"}) for j in range(2 * k_)]
        m_ = I("v_min_u32 v14, v14, v15"); rf = I("v_readfirstlane_b32 s88, v14", after=[m_])
        ck = [WAIT(vneed={"v14"}), m_, rf, Ins("s_cmp_lt_u32 s88, s87\ns_cbranch_scc1 K2_SPIN0\nK2_RET0:", kind="bar", after=[rf], dly=2)]
        v1 = Is(f"""
v_lshrrev_b32 v14, 5, v0
v_lshlrev_b32 v{r1}, 10, v14
v_bfe_u32 v14, v0, 2, 3
v_lshl_add_u32 v{r1}, v14, 7, v{r1}
v_and_b32 v14, 6, v14
v_bfe_u32 v15, v0, 1, 1
v_xor_b32 v14, v14, v15
v_lshl_add_u32 v{r1}, v14, 4, v{r1}
v_and_b32 v14, 1, v0
v_lshl_add_u32 v{r1}, v14, 3, v{r1}
v_xor_b32 v{r1}, s89, v{r1}
v_xor_b32 v14, 32, v{r1}
v_xor_b32 v15, 64, v{r1}
v_xor_b32 v16, 96, v{r1}
v_lshlrev_b32 v{vOf}, 4, v0
v_mov_b32 v{vOne}, 1""")
        v1[0].after = [ck[-1]]
        v0_ = [I(f"v_xor_b32 v{vR[0][i]}, 0x10000, v{vR[1][i]}") for i in range(4)]
        Z_ = Is(f"K1_LASTB:\ns_cmp_eq_u32 s{sSig}, 0\ns_cbranch_scc1 K1_REDO") + st()
        Z_ += half("14b", 0, "last", io=[s0 + take(L, c[0]) + s1, take(L, c[1]), ck + take(L, c[2]), take(L, c[3]), [], [spread(v1, 14, 95, NOV)]])
        Z_ += half("15b", 1, "last", io=[s2 + take(L, c[4]), take(L, c[5]), take(L, c[6]), take(L, c[7]), [], [spread(v0_, 2, 60)]])
        L = take(L, 99)
        def exb(es, sts):
            for y in L:
                if y.kind == "vmem": y.after = y.after + [x for x in es if x.text.split()[-1] in y.dst][-1:]
            spread(L, 2, 80)
            for y in L: y.hi = 94
            return [L]
        p_, sts = pv15("pv15b", u0, wreads([0])[:NP], Wt(0), [], exb, endv=Oset(0))
        B["lastb"] = Z_ + p_ + Is(f"s_cmp_lg_u32 s{sAll}, 0\ns_cbranch_scc1 K1_REDO\ns_cmp_ge_u32 s{sWg}, 240\ns_cbranch_scc1 K2_IDLE") + stamp(49)
    held = {0: [epi_unit(u, False)[-1] for u in range(u0 - 3, u0)]}
    body = {}
    for d in range(N):
        body[d] = []; held[d + 1] = []
        for u in left[d * NT:(d + 1) * NT]:
            e = epi_unit(u, False); held[d + 1].append(e.pop()); body[d] += e
    SG = max(d for d in held if held[d]) + 1
    assert SG <= 7
    poll = f"buffer_load_dword v{t2}, v{vFl}, {S4(sFl)}, 0 offen sc1"
    RD = lambda rho, qt: RDQ[qt * 3 + rho - 1]
    def rload(rho, so):
        out = []
        for qt in range(5):
            if qt == 4: out.append(I(f"s_add_u32 s{sTt}, s{so}, 4096"))
            out.append(I(f"buffer_load_dwordx4 {R4(RD(rho, qt))}, v{vOf}, {S4(sXs)}, s{sTt if qt == 4 else so} offen offset:{(qt % 4)*1024} sc1", dst=regs(*RD(rho, qt), 4)))
        return out
    radd = lambda rhos, qt: [mfma(V4(acc(6 + h, qt)), V4(SEL + 4 * h), R4(RD(rho, qt)), V4(acc(6 + h, qt))) for h in range(2) for rho in rhos]
    flag = lambda off: Ins(f"s_mov_b64 exec, 1\nbuffer_store_dword v{vOne}, off, {S4(sFl)}, s{sFo} offset:{off} sc1\ns_mov_b64 exec, -1", kind="vmem")
    def mfs(ds):
        mf = []; n = 2 * len(ds)
        for t in range(8):
            for qt in range(5):
                ks = [(i, d, kb) for i, (d, kb) in enumerate((d, kb) for d in ds for kb in range(2))]
                if qt & 1 and len(ds) > 1: ks.reverse()
                for (i, d, kb) in ks:
                    a = acc(t, qt)
                    mf.append(mfma(V4(a), A4(wq(n * t + i)), R4(Of(d, kb, qt)), "0" if (d == 0 and kb == 0) else V4(a)))
        return mf
    def step(d):
        own = wreads([d])[NP:]; pre = d == DM - 1
        nx = MD if pre else [d + 1]
        nxt = wreads(nx)[:max(NP, 4 * len(nx))]
        hasb = (d & 1) or pre or d == SG
        ws = [WAIT(lneed=regs("a", wq(2 * t), 8), lo=10 * t - 3, hi=10 * t - 1, target=10 * t - 2) for t in range(1, 7 if hasb else 8)]
        ws.append(WAIT(lneed=regs("a", wq(0), 8 * len(nx)), vneed=set().union(*[Oset(x) for x in nx]), lo=78, hi=79, target=78.5))
        g = G - 6 if pre and M > 2 else G
        spread(own, 0, g - 6)
        for it in own: it.hi = min(it.hi, 10 * (it.f >> 1) - 7); it.target = min(it.target, it.hi - 1)
        rs = own; nov = ()
        if hasb:
            bar = BAR(Wt(U if pre else (d + 1) >> 1) | ({"OST"} if d == SG else set()), lo=g, hi=g); rs = rs + [bar]; nov = range(g, g + 9)
            for it in nxt: it.after = [bar]
        spread(nxt, g + 1, 73 if pre else 76)
        vm = []
        cadr = lambda m: f"s{sC1}" + (" offset:128" if m == 24 else "")
        if d in CK: vm += [I(f"buffer_load_dword v{vP2}, off, {S4(sFl)}, {cadr(CK[d])} sc1", dst={f"v{vP2}"})]
        if d % 4 == 3 or pre: vm += codepf()
        fs = OS[d]; k2_ = len([f for f in fs if f[0] < CK.get(d, 99)]); k = min(5, k2_)
        vm += oload(fs[:k]) + held[d]
        for x in WS.get(d, []): vm += wdma(*x)
        if d in CK:
            vm += oload(fs[k:k2_]); k = k2_
            rf = I(f"v_readfirstlane_b32 s88, v{vP2}")
            ck = [WAIT(vneed={f"v{vP2}"}), rf, Ins(f"s_cmp_lt_u32 s88, 32\ns_cbranch_scc1 K2_SPIN{CK[d]}{X}\nK2_RET{CK[d]}{X}:", kind="bar", after=[rf], dly=2)]
            n1 = len(vm); vm += ck
        vm += oload(fs[k:])
        if d == SG:
            at = atomic(vOne, sC1w, sFl); at.after = [bar]; vm.append(at)
        if d in CK:
            n_a = sum(x.kind == "vmem" for x in vm[:n1]); n_b = sum(x.kind == "vmem" for x in vm[n1:])
            c_ = max(OPT["ckg"], int(76 * n_a / (n_a + n_b)) - 4)
            if hasb and g - 5 < c_ < g + 9: c_ = g + 9 if n_b <= 3 else g - 5
            even(vm[:n1], 0, c_, [g]); even(vm[n1 + 3:], c_ + 5, 80, [g])
            for x in ck: x.lo = c_; x.target = c_; x.hi = c_ + 4
        else: even(vm, 0, int(0.8 * OPT["advf"]) if pre else 80, [g])
        es = body[d]
        if es:
            for k in range(len(es) // 20): es[20 * k].after = [held[d][k]] if NT == 3 else held[d][-1:]; es[20 * k].dly = 1
            spread(es, held[d][0].lo + 2, 79, nov)
        if d == 14: es = spread(late, 0, 79); assert d not in CK
        return schedule(mfs([d]), [ws, rs + nxt, vm, es], novalu=nov, name=f"k2s{d}{X}") + (stamp(50) if d == 5 else stamp(47, True) if d == 13 else stamp(56) if pre else [])
    WS = {d: [((d >> 1) + 2, d & 1)] for d in range(2, 2 * (U - 1))}
    if 2 * U - 3 >= DM - 1: WS[2 * U - 4] += WS.pop(2 * U - 3)
    assert max(WS) < DM - 1
    def final():
        n = 2 * M; T = 5 * n
        own = wreads(MD)[max(NP, 2 * n):]
        for it in own:
            t, i = divmod(it.f, n)
            it.target = T * (t - 1) + i * (T - 9) / n; it.hi = T * t - 7
            if it.f >= 16: it.lo = T * ((it.f - 16) // n) + 4 * n + (it.f - 16) % n
        ws = [WAIT(lneed=set().union(*[regs("a", wq(n * t + i), 4) for i in range(n)]), lo=T * t - 3, hi=T * t - 1, target=T * t - 2) for t in range(1, 8)]
        sn = []
        for jl in range(3):
            for qt in range(5):
                a, b = acc(2 * jl, qt), acc(2 * jl + 1, qt)
                c = Is(f"""v_cvt_pk_bf16_f32 v{a}, v{a}, v{a+1}
v_cvt_pk_bf16_f32 v{a+1}, v{a+2}, v{a+3}
v_cvt_pk_bf16_f32 v{a+2}, v{b}, v{b+1}
v_cvt_pk_bf16_f32 v{a+3}, v{b+2}, v{b+3}""")
                if qt in (0, 4): c.append(I(f"s_add_u32 s{sTs}, s{sXo[0]}, {(2 - jl)*5120 + (qt // 4)*4096}"))
                c.append(I(f"buffer_store_dwordx4 {V4(a)}, v{vOf}, {S4(sXs)}, s{sTs} offen offset:{(qt % 4)*1024} sc1", dst={f"SN{jl}"}))
                lo = T * (2 * jl + 1) + n * (qt + 1) - 1 + 8
                for k, x in enumerate(c): x.lo = lo if k >= 2 else lo - 8; x.target = lo + k * 0.5 - 1
                sn += c
        ev = []; nov = []
        for jl in range(3):
            F = min(2 * T * (jl + 1) + 12 + OPT["fag"], 8 * T - OPT["fbg"])
            b_ = Ins("WAITBAR", kind="bar", vneed={f"SN{jl}"}, lo=F, hi=F); f_ = flag(4 * (2 - jl)); f_.after = [b_]; f_.target = F + 1; f_.hi = F + 3
            for x in sn[jl * len(sn) // 3:(jl + 1) * len(sn) // 3]: x.hi = F - 1
            ev += [b_, f_]; nov += range(F, F + 9)
        return schedule(mfs(MD), [ws, own, sn, ev, [I(poll, dst={f"v{t2}"}, lo=8 * T - OPT["plg"])]], novalu=nov, name="k2fin")
    if "k2head" not in B: B["k2head"] = [x for d in range(A0) for x in step(d)] + (Is(f"s_bitcmp0_b32 s{sWg}, 0\ns_cbranch_scc1 K2_BODYe") if OPT["asy"] else [])
    assert SG < A0 and min(CK) >= A0
    B["k2body" + X] = Is(f"K2_BODY{X}:") + [x for d in range(A0, DM) for x in step(d)] + final()
    sys.stderr.write(f"[k2] SG {SG} CK {CK} loads/step {[len(OS[d]) for d in sorted(OS)]} spare quads {len(RDQ)}\n")
    E = stamp(51) + (Is(f"v_writelane_b32 v22, s{sSp}, 61\ns_getreg_b32 s87, hwreg(HW_REG_XCC_ID)\nv_writelane_b32 v22, s87, 62\nv_writelane_b32 v22, s{sBk}, 59\ns_memrealtime s[90:91]\ns_waitcnt lgkmcnt(0)\nv_writelane_b32 v22, s90, 63") if OPT["stamps"] in (6, 7, 8) else [])
    def rel(L):
        for x in L: x.text = re.sub(r"\b(K2_WX|K2_W1|K2_W2|K2_W3|K2_GO|K2_PS)\b", r"\1" + X, x.text)
        return L
    xadd = lambda: [x for qt in range(5) for x in radd((2, 3), qt)]
    E += stamp(52) + [WAIT(vneed={f"v{t2}"})] + Is(f"""K2_PS:
v_cmp_eq_u32 s[84:85], 1, v{t2}
s_add_u32 s{sSp}, s{sSp}, 1
s_cmp_gt_u32 s{sSp}, 0x40000
s_nop 0
s_cselect_b32 s84, 7, s84
s_andn2_b32 s85, s84, s{sGx}
s_or_b32 s{sGx}, s{sGx}, s84
s_and_b32 s{sGx}, s{sGx}, 7""")
    for rho in (3, 2, 1): E += Is(f"s_bitcmp0_b32 s85, {rho-1}\ns_cbranch_scc1 K2_W{rho}") + rload(rho, sXo[rho]) + Is(f"K2_W{rho}:")
    E += Is(f"s_cmp_lg_u32 s{sGx}, 7\ns_cbranch_scc1 K2_WX")
    B["k2epi" + X] = rel(E)
    B["k2wx" + X] = rel(Is(f"K2_WX:\n{poll}\ns_waitcnt vmcnt(0)\ns_branch K2_PS"))
    E = Is("K2_GO:") + stamp(53)
    def fin(qt):
        a, b = acc(6, qt), acc(7, qt)
        return Is(f"""v_cvt_pk_bf16_f32 v{a}, v{a}, v{a+1}
v_cvt_pk_bf16_f32 v{a+1}, v{a+2}, v{a+3}
v_cvt_pk_bf16_f32 v{a+2}, v{b}, v{b+1}
v_cvt_pk_bf16_f32 v{a+3}, v{b+2}, v{b+3}
s_nop 1
v_permlane16_swap_b32 v{a}, v{a+2}
v_permlane16_swap_b32 v{a+1}, v{a+3}
ds_write_b128 v{vLp}, {V4(a)} offset:{qt*1024}""") + [I(f"ds_read_b128 {V4(144+4*qt)}, v{vRd} offset:{qt*1024}", dst=regs("v", 144 + 4 * qt, 4))]
    out = lambda qt: [I(f"s_mov_b32 s87, {qt*16*2560}"), WAIT(lneed=regs("v", 144 + 4 * qt, 4)), I(f"buffer_store_dwordx4 {V4(144+4*qt)}, v{vSt}, {S4(sOut)}, s87 offen" + " sc1")]
    for qt in range(5):
        E += Is(f"s_waitcnt vmcnt({4 - qt})") + radd((3, 2, 1), qt)
        if qt >= 1: E += fin(qt - 1)
    E += out(0) + out(1) + out(2) + fin(4) + out(3) + out(4)
    E += stamp(54) + (Is(f"v_writelane_b32 v22, s{sSp}, 60\nv_writelane_b32 v23, s87, 60") if OPT["stamps"] else [])
    B["k2fin" + X] = rel(E) + (Is("s_branch K1_DONE") if OPT["stamps"] else Is("s_endpgm"))
    def enx():
        lane = 58 if OPT["enx"] & 16 else 63; m = OPT["enx"] & 15
        out = Is(f"""s_cmp_lg_u32 s{sWg}, 17
s_cbranch_scc1 K1_END
s_cmp_lg_u32 s{sWave}, 0
s_cbranch_scc1 K1_END
v_readlane_b32 s86, v22, 58
K1_EN1:
s_memrealtime s[90:91]
s_waitcnt lgkmcnt(0)
s_sub_u32 s90, s90, s86
s_cmp_lt_u32 s90, 19000
s_cbranch_scc1 K1_EN1
v_lshlrev_b32 v5, 11, v0
s_mov_b32 s84, {128*2048 + lane*8}
buffer_load_dword v6, v5, s[80:83], s84 offen sc1
s_waitcnt vmcnt(0)
v_subrev_u32 v6, s86, v6
v_add_u32 v6, 2000, v6
s_nop 1""") + [I(f"v_readlane_b32 s{4+k}, v6, {k}") for k in range(8)] + Is("s_nop 3")
        mx = lambda d, ks: Is(f"s_mov_b32 s{d}, s{4+ks[0]}") + [I(f"s_max_u32 s{d}, s{d}, s{4+k}") for k in ks[1:]]
        mn = lambda d, ks: Is(f"s_mov_b32 s{d}, s{4+ks[0]}") + [I(f"s_min_u32 s{d}, s{d}, s{4+k}") for k in ks[1:]]
        if m == 1: out += mx(20, range(8)) + mn(21, range(8))
        if m == 2: out += mx(20, [1, 3, 5, 7]) + mx(21, [0, 2, 4, 6])
        if m == 3: out += mx(20, [4, 5, 6, 7]) + mx(21, [0, 1, 2, 3])
        return out + Is("""s_sub_u32 s85, s20, s21
s_add_u32 s85, s85, 1000
s_min_u32 s85, s85, 4000
s_mul_i32 s85, s85, 20
s_add_u32 s85, s85, 20000
K1_EN2:
s_memrealtime s[90:91]
s_waitcnt lgkmcnt(0)
s_sub_u32 s90, s90, s86
s_cmp_lt_u32 s90, s85
s_cbranch_scc1 K1_EN2""")
    B["k2end"] = Is("K1_DONE:") + stamp_out(S2(sKA), sWg, sWave, t0, 0x4000000) + (Is(f"""s_cmp_lg_u32 s{sWg}, 17
s_cbranch_scc1 K1_END
s_cmp_lg_u32 s{sWave}, 0
s_cbranch_scc1 K1_END
v_readlane_b32 s84, v22, {OPT["enc"] >> 8}
v_readlane_b32 s85, v22, {OPT["enc"] & 255}
s_memrealtime s[86:87]
s_waitcnt lgkmcnt(0)
s_sub_u32 s85, s85, s84
{'s_mul_i32 s85, s85, 2000' if OPT['enc'] == 0x3d3e else 's_lshr_b32 s85, s85, 1'}
s_min_u32 s85, s85, 150000
s_add_u32 s85, s85, 1000
K1_ENC:
s_memrealtime s[90:91]
s_waitcnt lgkmcnt(0)
s_sub_u32 s90, s90, s86
s_cmp_lt_u32 s90, s85
s_cbranch_scc1 K1_ENC""") if OPT["enc"] else []) + (enx() if OPT["enx"] else []) + Is("K1_END:\ns_endpgm")
    spin = lambda nm, ret, ld, rd: Is(f"""{nm}:
s_add_u32 s{sSp}, s{sSp}, 1
s_cmp_gt_u32 s{sSp}, 0x40000
s_cbranch_scc1 {ret}
s_sleep 4
{ld}
s_waitcnt vmcnt(0)
{rd}
s_nop 3
s_cmp_lt_u32 s88, 32
s_cbranch_scc1 {nm}
s_branch {ret}""")
    B["k2side"] = Is(f"""K1_REDO:
s_mov_b32 s{sMode}, 1
s_waitcnt vmcnt(0) lgkmcnt(0)
s_barrier""") + B["kre"] + spin("K2_SPIN0", "K2_RET0", f"buffer_load_dwordx2 v[14:15], off, {S4(sDb)}, s{sCo} sc1", "v_min_u32 v14, v14, v15\ns_nop 0\nv_readfirstlane_b32 s88, v14")
    B["k2sp" + X] = [x for m in CK.values() for x in spin(f"K2_SPIN{m}{X}", f"K2_RET{m}{X}", f"buffer_load_dword v{vP2}, off, {S4(sFl)}, s{sC1}" + (" offset:128" if m == 24 else "") + " sc1", f"v_readfirstlane_b32 s88, v{vP2}")]
    D = Is("K2_IDLE:") + [epi_unit(u, False)[-1] for u in range(u0 - 3, u0)] + [I(f"v_mov_b32 v{RCP+2*q+1}, v{RCP+2*q}") for q in range(4)]
    for u in range(u0, 24): D += epi_unit(u, True)
    D += pfit() + pfit() + Is("s_waitcnt vmcnt(16)\ns_barrier") + [atomic(vOne, sC1w, sFl)] + Is("K2_PFL:") + pfit() + Is(f"s_waitcnt vmcnt(24)\ns_cmp_lt_u32 s{sPi}, {768*1280 - 262144*OPT['xpf']}\ns_cbranch_scc1 K2_PFL")
    D += (Is("v_mov_b32 v22, v31\nv_mov_b32 v23, v31") if OPT["stamps"] else []) + (stamp(54) if OPT["stamps"] == 9 else []) + Is("s_branch K1_DONE")
    B["k2idle"] = D
    return ["lastb", "k2head", "k2body" + X, "k2epi" + X, "k2fin" + X]

def oproj(B, *k):
    a = OPT["asy"]
    tr = [oproj1(B, *k, "o", 24 - a)] + ([oproj1(B, *k, "e", 24 + a)] if a else [])
    lay = ["lastb", "k2head"] + [b + x for x in ("oe" if a else "o") for b in ("k2body", "k2epi", "k2fin", "k2wx", "k2sp")] + ["k2end"]
    return tr, lay

def desc(name, vg=512, acc=256):
    return f""".p2align 6
.amdhsa_kernel {name}
  .amdhsa_next_free_vgpr {vg}
  .amdhsa_next_free_sgpr 102
  .amdhsa_accum_offset {acc}
  .amdhsa_group_segment_fixed_size 0
  .amdhsa_kernarg_size 104
  .amdhsa_user_sgpr_count 2
  .amdhsa_user_sgpr_kernarg_segment_ptr 1
  .amdhsa_system_sgpr_workgroup_id_x 1
  .amdhsa_float_denorm_mode_32 3
.end_amdhsa_kernel"""

def align8(lines, mode):
    import subprocess
    ins = [l for l in lines if not (l.startswith(";") or l.startswith(".") or l.endswith(":"))]
    uniq = sorted(set(l for l in ins if "K" not in l))
    r = subprocess.run(["llvm-mc", "-triple=amdgcn-amd-amdhsa", "-mcpu=gfx950", "-show-encoding"], input="\n".join(uniq), capture_output=True, text=True)
    enc = [x.count("0x") for x in (l.split("encoding:")[1] for l in r.stdout.split("\n") if "encoding:" in l)]
    assert len(enc) == len(uniq), r.stderr[:300]
    size = dict(zip(uniq, enc))
    ok = ("v_exp_f32", "v_mul_f32", "v_add_f32", "v_mov_b32", "v_rcp_f32", "v_sub_f32", "v_max_f32")
    out = []; off = 0; cand = None; nfix = nmiss = 0; gap = 0
    for l in lines:
        if l.startswith(".p2align"): off = 0; cand = None
        elif not (l.startswith(";") or l.endswith(":")):
            n = size.get(l, 8 if l.startswith("v_min") else 4)
            if n == 8 and off:
                if cand is not None:
                    op = out[cand].split()[0]; out[cand] = out[cand].replace(op, op + "_e64", 1); off = 0; nfix += 1
                elif mode > 1 and l.startswith("v_mfma") and gap <= 4: out.append("s_nop 0"); off = 0; nfix += 1
                else: nmiss += 1
                cand = None
            elif n == 8: cand = None
            gap = 0 if kind_of(l) == "mfma" else gap + COST[kind_of(l)]
            if n == 4:
                off ^= 4
                if l.split()[0] in ok: cand = len(out)
        out.append(l)
    sys.stderr.write(f"[align] promoted {nfix}, still misaligned {nmiss} of {len(ins)}\n")
    return out

def main():
    k1, e1 = kernel1()
    if OPT["aln"]: k1 = align8(k1, OPT["aln"])
    ref = open("cdna_kernels/" + NAME + ".s.ref").read().split("\n")
    head = [l for l in ref if l.startswith(";") and "@launch" not in l]
    nm = NAME + "_kernel"
    out = head + [f"; @launch grid=(256,1,1) block=(256,1,1) lds=163840"] + """;
; One persistent workgroup per CU (4 waves, 64 query rows each, 512 registers, 16x16x32 bf16 MFMA).
;   per workgroup: two heads of one (branch, batch): Q projection -> flash attention -> O (bf16, fragment order) to d_ws
;   then the output projection in the same launch, behind counters (d_debug, d_ws) that order the hand-offs.
; Softmax shift = true max of the first keys of each row; the row sums are checked at the end and, if the shift was
; too small for any row (sum >= 2^60 or not finite), the workgroup redoes its heads with the exact row max.
; Written by a generator script (static instruction placement between the MFMAs, counted waits).""".split("\n") + ['.amdgcn_target "amdgcn-amd-amdhsa--gfx950"', ".text"]
    out += [f".globl {nm}", ".p2align 8", f".type {nm},@function", f"{nm}:"] + k1
    out += ["K_CODE_END:", "s_endpgm", '.section .rodata,"a"', desc(nm)]
    if e1:
        open(sys.argv[1], "w").write("hazard\n"); sys.exit(1)
    open(sys.argv[1], "w").write("\n".join(out) + "\n")
main()
```

```python
import sys, math, re
from asmlib import *
from verify import verify

OPT = dict(stamps=0, enc=0, ne0=6, ne1=15, xpf=0, p0=16, xin=1, aln=0, p1w=1, rot=0, enx=0, lq=0, lp=0, nc9=7, na0=2, bg15=60, cw8=4, cpw=0x88, pskip=2,
           xq=3, xp=2, yq=0, yp=0, pq=0, pp=0, me=0x3f, m1=0, adp=9, adn=2,
           k2n=3, mrg=4, adv0=8, advf=55, asy=2, fag=62, fbg=12, plg=45, ckg=52,
           c0=6, c1=2, c2=8, c3=2, c4=11, c5=3, c6=12, c7=4)
for a in sys.argv[2:]:
    k, v = a.split("="); assert k in OPT, k; OPT[k] = int(v, 0)
NAME = "concat_heads__gqa_block_cached__gqa_block_cached__near_ridge"
MF = "v_mfma_f32_16x16x32_bf16"
def I(t, **kw): return Ins(t, **kw)
def Is(txt): return [Ins(t.strip()) for t in txt.strip().split("\n") if t.strip()]
def mfma(d, a, b, c): return Ins(f"{MF} {d}, {a}, {b}, {c}")
def V4(b): return f"v[{b}:{b+3}]"
def A4(b): return f"a[{b}:{b+3}]"

TILE = 24576; WS = 64 * 12288
X0 = 0; RING = 32768; X1 = 131072
def slot(i): return RING + i * TILE
vK = [[1, 2], [3, 4]]; KW = [0, 65536]
vV = [[5, 6, 7, 8], [9, 10, 11, 12]]; VW = [32768, 98304]
vXr = [[13, 14], [15, 16]]
vIx = 17; vDw1 = 18; vDkv = 19; vDw = 20; vDx = 21; vO = 22; vO3 = 23
vL = [24, 25, 26, 27]; vMi = [40, 41, 42, 43]; vT = 32
NEGM = 48; SP = 64; QF = 160
RCP = 48
def negm(qt): return NEGM + 4 * qt
def XY(par, kb, qt): return SP + 4 * (par * 8 + qt * 2 + kb)
def Z(kb, qt): return SP + 64 + 4 * (kb * 4 + qt)
def Qf(qt, s): return QF + 4 * (qt * 6 + s)
def Qb(qt, s):
    return SP + 4 * (qt * 6 + s)
def Oacc(t, qt): return 4 * (t * 4 + qt)
def Xf(n, kb, qt): return 32 * (n & 1) + 4 * (kb * 4 + qt)
FR = 192
def fq(n, f): return FR + 4 * ((f + 8 * (n & 1)) % 16)
sSel = 1; sBk = 3
sX = 4; sDA = 8; sDB = 12; sO = 16
sK = 20; sV = 22; sNb = 24; sNnum = 26
sA = 34; sB = 35; sAll = 36; sI = 39; sWoff = 40; sXoff = 41
sOs = [42, 43, 44, 45, 37, 38]; sT = 46; sItem = 47; sMode = 48; sFlag = 49; sC = 50
sWave = 52; sWg = 53; sT2 = 54; sT3 = 55; sThr = 56; sKA = 58
sP1 = 60; sWoP = 64; sOutP = 66; sWsP = 68; sSig = 70; sDb = 72; sCo = 76; sOn = 77; sSp = 78; sK2n = 79
sN2 = 98; sK2O = 100; sRo = [0, 2, 32, 33, 71, 97]
vPf = 248; FLO = RING + 3 * TILE
FLG = 0x2e00000; XCH = 0x2f00000
def S4(b): return f"s[{b}:{b+3}]"
def S2(b): return f"s[{b}:{b+1}]"
BG = 76
NOV = range(BG, BG + 9)
NPRE_V = 10; NPRE_K = 6
OSTRIDE = 24 * 120 * 1024

def lastuse_pv(f): return 8 * (f >> 1) + 6 + (f & 1)
def lastuse_qk(f): kt, s = divmod(f, 6); return 24 * kt + 18 + (5 - s)

def reads_v(n, base):
    out = []
    for f in range(24):
        t, kb = f >> 1, f & 1
        r = fq(n, f)
        for hf in range(2):
            off = base + (4 * kb + 2 * hf) * 3072 + (t >> 2) * 1024
            w = 1 if off >= VW[1] else 0
            it = I(f"ds_read_b64_tr_b16 a[{r+2*hf}:{r+2*hf+1}], v{vV[w][t & 3]} offset:{off-VW[w]}", dst=regs("a", r + 2 * hf, 2)); it.f = f
            out.append(it)
    return out
def reads_k(n, base):
    out = []
    for f in range(24):
        kt, s = divmod(f, 6); r = fq(n, f)
        off = base + kt * 6144 + (s >> 1) * 1024
        w = 1 if off >= KW[1] else 0
        it = I(f"ds_read_b128 {A4(r)}, v{vK[w][s & 1]} offset:{off-KW[w]}", dst=regs("a", r, 4)); it.f = f
        out.append(it)
    return out
def reads_x(n):
    return [I(f"ds_read_b128 {A4(Xf(n, kb, qt))}, v{vXr[n & 1][kb]} offset:{qt*2048}", dst=regs("a", Xf(n, kb, qt), 4)) for qt in range(4) for kb in range(2)]

def dma(srd, soff, base, w=False):
    n = "" if w else " nt"; vD = [vDw, vDw1] if w else [vDkv, vDkv]
    out = []
    for p in range(3):
        m = I(f"s_add_u32 m0, s{sWoff}, {base + 896*p}")
        a = I(f"buffer_load_dwordx4 v{vD[0]}, {S4(srd)}, s{soff} offen offset:{p*128}{n} lds", dst={f"L{base}"}, after=[m])
        b = I(f"buffer_load_dwordx4 v{vD[1]}, {S4(srd)}, s{soff} offen offset:{p*128+3072}{n} lds", dst={f"L{base}"})
        out += [m, a, b]
    return out
def dma_w(m): return [I(f"s_mov_b32 s{sT2}, {m*WS}")] + dma(sDA, sT2, slot(m % 4), True)
def dma_k(i, base): return [I(f"s_mov_b32 s{sT2}, {i*TILE}")] + dma(sDA, sT2, base)
def dma_v(i, base): return [I(f"s_mov_b32 s{sT2}, {i*TILE}")] + dma(sDB, sT2, base)
def hd(d): return d[:-6]
def tl(d): return d[-6:]
def dma_x(n):
    out = []; base = X1 if n & 1 else X0
    for j in range(8):
        if j % 4 == 0: out.append(I(f"s_add_u32 m0, s{sXoff}, {base + j*1024}"))
        out.append(I(f"s_mov_b32 s{sT}, {j*10240 - (j % 4)*1024 + n*128}"))
        out.append(I(f"buffer_load_dwordx4 v{vDx}, {S4(sX)}, s{sT} offen offset:{(j % 4)*1024} lds", dst={f"X{n&1}_{j>>1}"}))
    return out
def take(L, n):
    out = []
    while L and n:
        x = L.pop(0); out.append(x); n -= x.kind == "vmem"
        x.after = [y for y in x.after if y in out]
    return out

def phase(name, n, typ, mf, own, nxt, nxt_typ, pub, early, dmas, extra=(), post=(), early_hi=None, bg=BG, dend=None, endx=frozenset(), endv=None):
    lu = lastuse_pv if typ == "v" else lastuse_qk
    N = len(mf)
    rs = []
    if typ == "v":
        k0 = 48 - len(own)
        for j, it in enumerate(own):
            it.target = j * (bg - 6) / len(own)
            it.hi = min(8 * (it.f >> 1) - 6, bg - 5)
            if it.f >= 16: it.lo = lu(it.f - 16)
            it.hi = max(it.hi, it.lo)
    else:
        for j, it in enumerate(own):
            kt, s = divmod(it.f, 6)
            it.target = 24 * (kt - 1) + 1 + s * 2.5; it.hi = 24 * kt - 8
            if it.f >= 16: it.lo = lu(it.f - 16)
    rs += own
    bar = BAR(pub if isinstance(pub, set) else {f"L{pub}"}, lo=bg, hi=bg); rs.append(bar)
    for j, it in enumerate(nxt):
        it.lo = max(bg + 1, lu(it.f + 8)); it.after = [bar]
        it.target = bg + 1 + (j * 1.8 if nxt_typ == "v" else j * 1.5); it.hi = N - 1 if nxt_typ == "v" and j >= 4 else N - 8
    rs += nxt
    ws = []
    if typ == "v":
        for t in range(1, 12):
            if 8 * t - 1 >= bg: break
            ws.append(WAIT(lneed=regs("a", fq(n, 2 * t), 4) | regs("a", fq(n, 2 * t + 1), 4), lo=8 * t - 3, hi=8 * t - 1, target=8 * t - 2))
    else:
        for kt in range(1, 4):
            ws.append(WAIT(lneed=set().union(*[regs("a", fq(n, 6 * kt + s), 4) for s in range(6)]), lo=24 * kt - 3, hi=24 * kt - 1, target=24 * kt - 2))
    nf = 2 if nxt_typ == "v" else 6
    ws.append(WAIT(lneed=set().union(*[regs("a", fq(n + 1, f), 4) for f in range(nf)]) | endx, vneed=endv, lo=N - 2, hi=N - 1, target=N - 1.5))
    ms = list(early)
    spread(ms, 1, early_hi or bg - 6)
    nv = sum(1 for it in dmas if it.kind == "vmem"); k = 0
    for it in dmas:
        it.lo = bg + 1 if it.kind == "vmem" else bg - 4
        it.target = bg + 2 + k * min(12.0, ((dend or N) - bg - 3) / max(nv, 1)) - (0 if it.kind == "vmem" else 2.5)
        if it.kind == "vmem": it.after = it.after + [bar]; k += 1
    ms += dmas
    for it in post: it.lo = bg + 1; it.target = N - 6
    ms += list(post)
    return schedule(mf, [ws, rs, ms] + list(extra), novalu=range(bg, bg + 9), name=name)

def softmax(groups, lo, hi, sub=None, skip=NOV):
    E = []; D = []; P = []
    for (par, kb, qt, l0, l1, h, sb_) in groups:
        x, z = XY(par, kb, qt), Z(kb, qt)
        src = [x, x + 1, x + 2, x + 3, z, z + 1, z + 2, z + 3]
        for pr in range(4):
            es = []
            for e in range(2):
                r = src[2 * pr + e]
                ex = I(f"v_exp_f32 v{r}, v{r}", lo=(l0, l1)[pr >> 1])
                if sb_:
                    sb = I(f"v_add_f32 v{r}, v{r}, v{negm(qt)}", after=[sub[qt]] if sub else [], lo=(l0, l1)[pr >> 1]); sb.ex = ex; P.append(sb); ex.after = [sb]
                E.append(ex); es.append(ex)
            D.append(I(f"v_cvt_pk_bf16_f32 v{x+pr}, v{src[2*pr]}, v{src[2*pr+1]}", after=es, hi=h))
    spread(E, lo, hi, skip)
    for e in E: e.hi = 10**9
    for d in D:
        d.target = max(a.target for a in d.after) + 1
        for a in d.after: a.hi = d.hi - 1
    for p in P: p.target = p.ex.target - 3; p.hi = p.ex.hi - 1
    return [P, E, D]
def g_old(par, kb, qts, N, inqk):
    return [(par, kb, qt, 0, 0, (48 * kb + 24 + 6 * qt - 1) if inqk else N - 1, False) for qt in qts]
def g_new(par, qts):
    return [(par, 0, qt, 6 * qt + 13, 24 + 6 * qt + 13, 95, False) for qt in qts]

def mf_w(n):
    out = []
    for t in range(12):
        for qt in range(4):
            d = Qf(qt, t >> 1) if t % 2 == 0 else Qb(qt, t >> 1)
            for kb in range(2):
                out.append(mfma(V4(d), A4(fq(n, 2 * t + kb)), A4(Xf(n, kb, qt)), "0" if (n == 0 and kb == 0) else V4(d)))
    return out
def mf_qk(n, par, first=False):
    out = []
    for kt in range(4):
        for qt in range(4):
            d = XY(par, kt >> 1, qt) if kt % 2 == 0 else Z(kt >> 1, qt)
            order = range(6) if qt % 2 == 0 else range(5, -1, -1)
            for j, s in enumerate(order):
                c = V4(d) if j else ("0" if (first and kt < 2) else V4(negm(qt)))
                out.append(mfma(V4(d), A4(fq(n, 6 * kt + s)), V4(Qf(qt, s)), c))
    return out
def mf_l(par, first=False):
    return [Ins(f"v_smfmac_f32_16x16x64_bf16 {V4(vL[0])}, {V4(32 + 4*qt)}, v[{XY(par, 0, qt)}:{XY(par, 0, qt)+7}], v{vIx}", kind="mfma") for qt in range(4)]
def mf_pv(n, par, first=False):
    out = []
    for t in range(12):
        for qt in range(4):
            for kb in range(2):
                out.append(mfma(A4(Oacc(t, qt)), A4(fq(n, 2 * t + kb)), V4(XY(par, kb, qt)), "0" if (first and kb == 0) else A4(Oacc(t, qt))))
    return out

ETMP = [32, 40, 56]
def epi_unit(u, packed, k2=False):
    s, qt = divmod(u, 4)
    tb = ETMP[u % 3]
    out = []
    rc = RCP + 2 * qt
    for h in range(2):
        for j in range(4): out.append(I(f"v_accvgpr_read_b32 v{tb+4*h+j}, a{Oacc(2*s+h, qt)+j}"))
        if packed:
            for j in range(2): out.append(I(f"v_pk_mul_f32 v[{tb+4*h+2*j}:{tb+4*h+2*j+1}], v[{tb+4*h+2*j}:{tb+4*h+2*j+1}], v[{rc}:{rc+1}]"))
        else:
            for j in range(4): out.append(I(f"v_mul_f32 v{tb+4*h+j}, v{tb+4*h+j}, v{rc}"))
        for j in range(2): out.append(I(f"v_cvt_pk_bf16_f32 v{tb+2*h+j}, v{tb+4*h+2*j}, v{tb+4*h+2*j+1}"))
    out.append(I(f"buffer_store_dwordx4 {V4(tb)}, v{vO3 if qt == 3 else vO}, {S4(sO)}, s{sOs[s]} offen offset:{qt*1024}" + " sc1", dst={"OST"}))
    return out
def cvt_unit(s, qt, packed):
    a, b = Qf(qt, s), Qb(qt, s)
    out = []
    if packed:
        for r in (a, a + 2, b, b + 2): out.append(I(f"v_pk_mul_f32 v[{r}:{r+1}], v[{r}:{r+1}], {S2(sC)}"))
    else:
        for r in (a, a + 1, a + 2, a + 3, b, b + 1, b + 2, b + 3): out.append(I(f"v_mul_f32 v{r}, s{sC}, v{r}"))
    out += Is(f"""v_cvt_pk_bf16_f32 v{a}, v{a}, v{a+1}
v_cvt_pk_bf16_f32 v{a+1}, v{a+2}, v{a+3}
v_cvt_pk_bf16_f32 v{a+2}, v{b}, v{b+1}
v_cvt_pk_bf16_f32 v{a+3}, v{b+2}, v{b+3}""")
    sw = Is(f"v_permlane16_swap_b32 v{a}, v{a+2}\nv_permlane16_swap_b32 v{a+1}, v{a+3}")
    return out, sw

def pf():
    return [I(f"v_add_u32 v{vPf}, s{sXoff}, v{vO}")] + [I(f"buffer_load_dwordx4 {V4(252)}, v{vPf}, {S4(sP1)}, " + ("0" if j < 4 else f"s{sT3}") + f" offen offset:{(j % 4)*1024}", dst=regs("v", 252, 4)) for j in range(6)]

def atomic(v, so, srd=None):
    it = Ins(f"s_mov_b64 exec, 1\nbuffer_atomic_add v{v}, off, {S4(srd or sDb)}, s{so}\ns_mov_b64 exec, -1", kind="vmem"); it.cost = 8
    return it
def codepf():
    return [I("global_load_dword v30, v[28:29], off", dst={"v30"})]

def lin(items):
    out = []
    for k, it in enumerate(items):
        out.append(it)
        if it.text.startswith("s_add_u32 m0") and items[k + 1].kind == "vmem": out.append(I("s_nop 0"))
    return out

def stamp(idx, k2=False):
    if not OPT["stamps"]: return []
    if OPT["stamps"] == 9:
        if idx not in (48, 54): return []
        return Is(f"s_memrealtime s[94:95]\ns_waitcnt lgkmcnt(0)\nv_writelane_b32 v{31 if idx == 48 else 22}, s94, {idx}")
    va, vb = (22, 23) if idx >= 51 else (31, 31) if OPT['stamps'] >= 6 else (46, 47)
    if idx == -2: sel = "s_add_u32 s92, s39, 31"
    elif idx < 0: sel = f"s_mul_i32 s92, s{sItem}, 24\ns_add_u32 s92, s92, s{sI}\ns_add_u32 s92, s92, 8"
    else: sel = f"s_mov_b32 s92, {idx}" if (k2 or idx >= 48) else f"s_mul_i32 s92, s{sItem}, 24\ns_add_u32 s92, s92, {idx}"
    return Is(f"""s_memtime s[90:91]
s_memrealtime s[94:95]
s_waitcnt lgkmcnt(0)
s_cselect_b32 s96, 1, 0
{sel}
s_mov_b32 s93, m0
s_mov_b32 m0, s92
v_writelane_b32 v{vb}, s94, m0
v_writelane_b32 v{va}, s90, m0
s_mov_b32 m0, s93
s_cmp_lg_u32 s96, 0""")
def stamp_out(karg, wg, wave, tmp, base, k2=False):
    if not OPT["stamps"]: return []
    va = 22
    return Is(f"""s_load_dwordx2 s[80:81], {karg}, 96
s_waitcnt lgkmcnt(0)
s_add_u32 s80, s80, {base}
s_addc_u32 s81, s81, 0
s_mov_b32 s82, 0x100000
s_mov_b32 s83, 0x20000
s_lshl_b32 s84, s{wg}, 2
s_add_u32 s84, s84, s{wave}
s_lshl_b32 s84, s84, 9
v_lshlrev_b32 v{tmp}, 3, v0
buffer_store_dwordx2 v[{va}:{va+1}], v{tmp}, s[80:83], s84 offen sc1""")


def pst(idx):
    if OPT["stamps"] != 8: return []
    return Is(f"s_memtime s[28:29]\ns_waitcnt lgkmcnt(0)\nv_writelane_b32 v31, s28, {idx}") if idx < 18 else stamp(idx, True)
def kernel1():
    B = {}
    c = math.log2(math.e) / math.sqrt(192.0)
    import struct
    cbits = struct.unpack("<I", struct.pack("<f", c))[0]
    kload = lambda b: Is(f"s_load_dwordx16 s[4:19], {b}, 0\ns_load_dwordx8 s[20:27], {b}, 64\ns_load_dwordx2 {S2(sWsP)}, {b}, 96")
    B["kre"] = kload(S2(sKA)) + Is("s_branch K1_PRO")
    B["entry"] = Is("s_cmp_ge_u32 s2, 256\ns_cbranch_scc1 K1_END") + kload("s[0:1]") + Is(f"""
v_lshrrev_b32 v{vT}, 6, v0
v_and_b32 v0, 63, v0
s_mov_b32 s{sWg}, s2
v_readfirstlane_b32 s{sWave}, v{vT}
s_mov_b64 {S2(sKA)}, s[0:1]
s_mov_b32 s{sMode}, 0
s_mov_b32 s{sSig}, 0""") + stamp(48) + (Is("v_writelane_b32 v31, s94, 58") if OPT["stamps"] == 6 else [])
    cpa = Is(f"""
s_getpc_b64 s[90:91]
K1_PC:
s_lshr_b32 s86, s{sWg}, 3
s_lshl2_add_u32 s86, s86, s{sWave}
s_lshl_b32 s86, s86, 10
v_lshl_add_u32 v28, v0, 4, s86
v_min_u32 v28, (K_CODE_END-K1_PC-32)&0xfffffff0, v28
s_and_b32 s90, s90, 0xfffffff0
v_mov_b32 v29, s91
v_add_co_u32 v28, vcc, s90, v28
s_mov_b32 s{sSp}, 0
s_nop 0
v_addc_co_u32 v29, vcc, 0, v29, vcc""") + codepf()
    t0, t1, t2, t3 = vT, vT + 1, vT + 2, vT + 3
    P = Is(f"""K1_PRO:
s_lshr_b32 s82, s{sWg}, 6
s_and_b32 s83, s{sWg}, 2
s_lshl1_add_u32 s81, s83, s82
s_mul_i32 s82, s81, 307200
s_lshl_b32 s{sXoff}, s{sWave}, 13
s_lshl_b32 s86, s{sWave}, 6
v_lshrrev_b32 v{t0}, 3, v0
v_and_b32 v{t1}, 7, v0
v_and_b32 v{t2}, 6, v{t0}
v_xor_b32 v{t1}, v{t1}, v{t2}
v_add_u32 v{t2}, s86, v{t0}
v_mul_u32_u24 v{vDx}, 1280, v{t2}
v_lshl_add_u32 v{vDx}, v{t1}, 4, v{vDx}
s_bfe_u32 s{sT3}, s{sWg}, 0x10002
s_waitcnt lgkmcnt(0)
s_cselect_b64 s[92:93], s[16:17], s[6:7]
s_cselect_b64 s[4:5], s[14:15], s[4:5]
s_add_u32 s{sX}, s4, s82
s_addc_u32 s{sX+1}, s5, 0
s_mov_b32 s{sX+2}, 307200
s_mov_b32 s{sX+3}, 0x20000""") + pst(16) + dma_x(0) + cpa + Is(f"""
s_cmp_eq_u32 s{sT3}, 0
s_cselect_b64 s[94:95], s[8:9], s[18:19]
s_cselect_b64 s[96:97], s[10:11], s[20:21]
s_cselect_b64 {S2(sWoP)}, s[12:13], s[22:23]
s_mov_b64 {S2(sOutP)}, s[24:25]
s_mov_b64 {S2(sDb)}, s[26:27]
s_lshr_b32 s91, s{sWg}, 3
s_and_b32 s88, s{sWg}, 1
s_and_b32 s89, s91, 7
s_lshl3_add_u32 s80, s88, s89
s_mul_i32 s84, s80, 384
s_mul_i32 s{sWoff}, s{sWave}, 6144
v_mul_u32_u24 v{vDkv}, 384, v{t0}
v_lshl_add_u32 v{vDkv}, v{t1}, 4, v{vDkv}
v_add_u32 v{vDkv}, s{sWoff}, v{vDkv}
v_and_b32 v{t2}, 4, v{t1}
v_and_b32 v{t3}, 1, v{t1}
v_lshl_or_b32 v{t2}, v{t3}, 1, v{t2}
v_bfe_u32 v{t3}, v{t1}, 1, 1
v_or_b32 v{t1}, v{t2}, v{t3}
v_and_b32 v{t2}, 3, v{t0}
v_lshrrev_b32 v{t3}, 2, v{t0}
v_lshl_add_u32 v{t2}, v{t3}, 3, v{t2}
s_lshr_b32 s86, s{sWave}, 1
s_lshl_b32 s86, s86, 5
s_and_b32 s87, s{sWave}, 1
s_lshl2_add_u32 s86, s87, s86
v_add_u32 v{t2}, s86, v{t2}
v_mul_u32_u24 v{vDw}, 12288, v{t2}
v_lshl_add_u32 v{vDw}, v{t1}, 4, v{vDw}
v_add_u32 v{vDw1}, {196608-3072}, v{vDw}
s_add_u32 s{sDA}, s96, s84
s_addc_u32 s{sDA+1}, s97, 0
s_sub_u32 s{sDA+2}, 7864320, s84
s_mov_b32 s{sDA+3}, 0x20000
""")
    P0 = P
    P = Is(f"""
s_lshl_b32 s83, s81, 5
s_add_u32 s83, s83, s80
s_mul_i32 s83, s83, 393216
s_lshl_b32 s85, s{sT3}, 5
s_lshl_b32 s86, s88, 4
s_add_u32 s85, s85, s86
s_add_u32 s85, s85, s89
s_and_b32 s86, s89, 4
s_add_u32 s85, s85, s86
s_mul_i32 s85, s85, 720
s_mul_i32 s86, s81, 15
s_add_u32 s85, s85, s86
s_lshl_b32 s85, s85, 10
s_and_b32 s88, s{sWg}, 3
s_lshl_b32 s89, s91, 2
s_add_u32 s88, s88, s89
s_add_u32 s{sK}, s92, s83
s_addc_u32 s{sK+1}, s93, 0
s_add_u32 s{sV}, s94, s83
s_addc_u32 s{sV+1}, s95, 0
s_mov_b32 s{sDb+2}, 256
s_mov_b32 s{sDb+3}, 0x20000
s_bfe_u32 s{sCo}, s{sWg}, 0x20001
s_lshl_b32 s{sCo}, s{sCo}, 6
s_cmp_eq_u32 s{sSig}, 0
s_cselect_b32 s{sOn}, {5*122880+15*1024}, 0
s_add_u32 s{sNb}, s{sDA}, 6144
s_addc_u32 s{sNb+1}, s{sDA+1}, 0
s_sub_u32 s{sNnum}, s{sDA+2}, 6144
s_lshr_b32 s86, s88, 1
s_and_b32 s87, s88, 1
s_lshl_b32 s87, s87, 6
s_add_u32 s86, s86, s87
s_mul_i32 s86, s86, 30720
s_add_u32 s{sN2}, s{sWoP}, s86
s_addc_u32 s{sN2+1}, s{sWoP+1}, 0
s_mul_i32 s86, s88, {4*12288}
s_add_u32 s86, s86, {128*12288+6144}
s_add_u32 s{sP1}, s96, s86
s_addc_u32 s{sP1+1}, s97, 0
s_mov_b32 s{sP1+2}, {3*12288+6144}
s_mov_b32 s{sP1+3}, 0x20000
s_mov_b32 s{sT3}, 4096
s_add_u32 s{sO}, s{sWsP}, s85
s_addc_u32 s{sO+1}, s{sWsP+1}, 0
s_sub_u32 s{sO}, s{sO}, {OSTRIDE}
s_subb_u32 s{sO+1}, s{sO+1}, 0
s_mov_b32 s{sO+2}, 0
s_mov_b32 s{sO+3}, 0x20000
s_lshl_b32 s86, s{sWg}, 7
s_add_u32 s86, s86, {FLG}
s_add_u32 s{sDB}, s{sWsP}, s86
s_addc_u32 s{sDB+1}, s{sWsP+1}, 0
s_cmp_eq_u32 s{sMode}, 0
s_cselect_b32 s{sDB+2}, 128, 0
s_mov_b32 s{sDB+3}, 0x20000
s_mov_b32 s{sItem}, 0
s_mov_b32 s{sFlag}, 0
s_mov_b32 s{sSel}, {OPT['me']}
s_mov_b32 s{sBk}, 0
s_lshr_b32 s80, s{sWg}, 4
s_mul_i32 s84, s80, 52
s_lshr_b32 s84, s84, 8
s_mul_i32 s85, s84, 5
s_sub_u32 s85, s80, s85
s_and_b32 s81, s{sWg}, 1
s_bfe_u32 s89, s{sWg}, 0x10003
s_lshl1_add_u32 s89, s81, s89
s_and_b32 s82, s{sWave}, 1
s_lshr_b32 s83, s{sWave}, 1
s_xor_b32 s86, s81, s82
s_xor_b32 s86, s86, 1
s_lshl_b32 s86, s86, 7
s_lshl_b32 s87, s85, 8
s_add_u32 s86, s86, s87
s_mul_i32 s87, s83, {64*1280}
s_add_u32 s86, s86, s87
s_mul_i32 s87, s89, {768*1280}
s_add_u32 s86, s86, s87
s_add_u32 s{sWoP}, s{sWoP}, s86
s_addc_u32 s{sWoP+1}, s{sWoP+1}, 0
s_sub_u32 s{sK2n}, 7864320, s86
s_cmp_lt_u32 s80, 15
s_cselect_b32 s{sK2n}, s{sK2n}, 0
s_bfe_u32 s86, s{sWg}, 0x10001
s_mul_i32 s86, s86, 60
s_mul_i32 s87, s84, 20
s_add_u32 s86, s86, s87
s_mul_i32 s87, s{sWave}, 5
s_add_u32 s86, s86, s87
s_bfe_u32 s87, s{sWg}, 0x10002
s_lshl2_add_u32 s88, s87, s89
s_mul_i32 s88, s88, {48*120}
s_add_u32 s88, s88, s86
s_lshl_b32 s88, s88, 10
s_add_u32 s{sK2O}, s{sWsP}, s88
s_addc_u32 s{sK2O+1}, s{sWsP+1}, 0
s_mul_i32 s88, s86, {16*2560}
s_mul_i32 s87, s87, 1280
s_add_u32 s88, s88, s87
s_lshl_b32 s87, s85, 8
s_add_u32 s88, s88, s87
s_lshl_b32 s87, s89, 6
s_add_u32 s88, s88, s87
s_add_u32 s{sOutP}, s{sOutP}, s88
s_addc_u32 s{sOutP+1}, s{sOutP+1}, 0
s_mov_b32 s{sC}, {cbits:#x}
s_mov_b32 s{sC+1}, {cbits:#x}
s_mov_b32 s{sThr}, 0x5d800000
""") + [I(f"s_mov_b32 s{sOs[s]}, {s*122880}") for s in range(6)]
    kb0, vb0 = vK[0][0], vV[0][0]
    P += Is(f"""
v_and_b32 v{t0}, 15, v0
v_lshrrev_b32 v{t1}, 4, v0
v_and_b32 v{t2}, 6, v{t0}
v_xor_b32 v{t3}, v{t2}, v{t1}
v_lshlrev_b32 v{t3}, 4, v{t3}
v_lshl_add_u32 v{vXr[0][0]}, v{t0}, 7, v{t3}
v_add_u32 v{vXr[0][0]}, s{sXoff}, v{vXr[0][0]}
v_xor_b32 v{vXr[0][1]}, 64, v{vXr[0][0]}
v_add_u32 v{vXr[1][0]}, {X1}, v{vXr[0][0]}
v_add_u32 v{vXr[1][1]}, {X1}, v{vXr[0][1]}
v_lshrrev_b32 v{t2}, 3, v{t0}
v_mul_u32_u24 v{kb0}, 3072, v{t2}
v_and_b32 v{t2}, 7, v{t0}
v_lshl_add_u32 v{kb0}, v{t2}, 7, v{kb0}
v_add_u32 v{kb0}, v{kb0}, v{t3}
v_xor_b32 v{vK[0][1]}, 64, v{kb0}
v_add_u32 v{vK[1][0]}, {KW[1]}, v{kb0}
v_add_u32 v{vK[1][1]}, {KW[1]}, v{vK[0][1]}
v_lshrrev_b32 v{t2}, 5, v0
v_mul_u32_u24 v{vb0}, 3072, v{t2}
v_bfe_u32 v{t2}, v0, 2, 3
v_lshl_add_u32 v{vb0}, v{t2}, 7, v{vb0}
v_and_b32 v{t2}, 6, v{t2}
v_bfe_u32 v{t3}, v0, 1, 1
v_xor_b32 v{t2}, v{t2}, v{t3}
v_lshl_add_u32 v{vb0}, v{t2}, 4, v{vb0}
v_and_b32 v{t2}, 1, v0
v_lshl_add_u32 v{vb0}, v{t2}, 3, v{vb0}
v_add_u32 v{vb0}, {VW[0]}, v{vb0}
v_xor_b32 v{vV[0][1]}, 32, v{vb0}
v_xor_b32 v{vV[0][2]}, 64, v{vb0}
v_xor_b32 v{vV[0][3]}, 96, v{vb0}
""") + [I(f"v_add_u32 v{vV[1][i]}, {VW[1]-VW[0]}, v{vV[0][i]}") for i in range(4)] + Is(f"""
v_bfe_i32 v{t2}, v0, 2, 1
v_and_b32 v{t2}, 0xaaaaaaaa, v{t2}
v_or_b32 v{vIx}, 0x44444444, v{t2}
s_lshl_b32 s86, s{sWave}, 12
v_lshlrev_b32 v{vO}, 4, v0
v_add_u32 v{vO}, s86, v{vO}
s_cmp_eq_u32 s{sWave}, 3
s_cselect_b32 s86, 0x80000000, 0
v_add_u32 v{vO3}, s86, v{vO}
""")
    P += [I(f"v_mov_b32 v{vL[q]}, 0") for q in range(4)]
    L0 = dma_w(0) + dma_w(1) + dma_x(1) + hd(dma_w(2))
    ld = lin(take(L0, OPT['p0'])); L0 = take(L0, 99)
    rest = P; P = P0; nv = 0
    for x in ld:
        P.append(x)
        if x.kind == "vmem":
            nv += 1; c_ = 0
            while rest and nv > OPT["pskip"] and (c_ < 12 or rest[0].text.split()[0] in ("s_addc_u32", "s_subb_u32", "s_cselect_b32", "s_cselect_b64")):
                P.append(rest.pop(0)); c_ += 1
    P += rest + pst(19)
    clr = I(f"buffer_store_dwordx4 {V4(vL[0])}, v{vO}, {S4(sDB)}, 0 offen sc1", dst={"OST"})
    XALL = lambda n: {f"X{n&1}_{q}" for q in range(4)}
    P += [WAIT(vneed=XALL(0) | {f"L{slot(0)}"})] + reads_x(0) + Is("s_barrier")
    B["pro"] = P + pst(20) + reads_v(0, slot(0))[:NPRE_V] + stamp(0) + [WAIT(lneed=regs("a", fq(0, 0), 8))]
    xr = reads_x(1); st_ = []
    for q in range(4): st_ += [WAIT(vneed={f"X1_{q}"})] + xr[2 * q:2 * q + 2]
    spread(st_[:6], 56, BG - 5); spread(st_[6:], BG + 1, 90)
    B["w0a"] = phase("w0a", 0, "v", mf_w(0), reads_v(0, slot(0))[NPRE_V:], reads_v(1, slot(1))[:NPRE_V], "v", slot(1), L0 + tl(dma_w(2)) + dma_x(2),
                     hd(dma_w(3)) + [clr], [st_], early_hi=74, endx=regs("a", Xf(1, 0, 0), 32)) + Is("K1_W1:")
    NE0 = OPT["ne0"]
    EW = {0: list(range(NE0, 8))}
    rest = list(range(8, 24)); per = [3, 3, 2, 2, 2, 2, 2]
    for n in range(1, 8): EW[n] = rest[:per[n - 1]]; rest = rest[per[n - 1]:]
    NC9 = OPT["nc9"]
    cunits = [(s, qt) for s in range(6) for qt in range(4)]
    cold = dma_k(0, X0) + dma_k(1, slot(2)) + dma_v(0, slot(3)); C8 = OPT["cw8"]
    cut = lambda p: 10 * (p // 3) + (0, 4, 7)[p % 3]
    pairs = lambda a, b: cold[cut(a):cut(b)]
    for n in range(10):
        own = reads_v(n, slot(n % 4))[NPRE_V:]
        early = []; extra = []; post = []; endx = set()
        if n < 9: nxt = reads_v(n + 1, slot((n + 1) % 4))[:NPRE_V]; nt_ = "v"; pub = slot((n + 1) % 4)
        else: nxt = reads_k(10, X0)[:NPRE_K]; nt_ = "k"; pub = X0
        if n < 8: early += tl(dma_w(n + 2))
        if n == 8: early += pairs(1, 1 + C8)
        if n == 9: early += pairs(2 + C8, 8)
        if n == 7:
            early += Is(f"""s_mov_b64 {S2(sDA)}, {S2(sK)}
s_mov_b32 s{sDA+2}, 393216
s_mov_b64 {S2(sDB)}, {S2(sV)}
s_mov_b32 s{sDB+2}, 393216""")
        if n < 8: early += dma_x(n + 2)
        if (OPT['cpw'] >> n) & 1: early += codepf()
        if n == 8: post = Is(f"""s_mov_b32 s83, 0xff800000
s_cmp_eq_u32 s{sWave}, 3
s_cselect_b32 s82, 0x71000000, s83
v_mov_b32 v{vMi[0]}, s83
v_mov_b32 v{vMi[1]}, s83
v_mov_b32 v{vMi[2]}, s83
v_mov_b32 v{vMi[3]}, s82""")
        es = []; sts = []; us = EW.get(n, [])
        for u in us:
            e = epi_unit(u, False)
            if u >= us[-1] - 2:
                x = e.pop(); x.after = [e[-1], early[-1]]; sts.append(x)
            es += e
        late0 = n == 0 and NE0 < 6
        if es: extra.append(spread(es, 0, (BG + 14 if late0 else 70) if n == 0 else 90, NOV))
        if sts: extra.append(spread(sts, 72, 96, [BG]))
        if n < 9:
            xr = reads_x(n + 1); st = []
            for q in range(4):
                if q % 2 == 0: st.append(WAIT(vneed={f"X{(n+1)&1}_{q}", f"X{(n+1)&1}_{q+1}"}))
                st += xr[2 * q:2 * q + 2]
            spread(st, 46, BG - 5)
            if n == 0:
                for q in range(4):
                    la = [x for x in es if x.text.endswith(f" a{Oacc(3, q) + 3}")]
                    for it in xr[2 * q:2 * q + 2]:
                        it.after = la
                        if q == 3 and late0: it.lo = BG + 1; it.hi = 88; it.target = BG + 4
                    if la: la[0].hi = BG - 1 if q == 3 and late0 else BG - 8
                endx = regs("a", Xf(1, 0, 0), 32)
            extra.append(st)
        if n == 9:
            pub = {f"L{X0}", "OST"}
        if n == 9 and NC9:
            cs = []; sw = []
            for (s, qt) in cunits[:NC9]:
                a, b = cvt_unit(s, qt, False)
                a[0].lo = 16 * s + 8 + 2 * qt + 1 + 8
                for x in b: x.after = [a[-1]]; x.dly = 1
                cs += a; sw += b
            spread(cs, 17, 92, NOV)
            for x in sw: x.target = x.after[0].target + 2
            extra += [cs, sw]
        d = hd(dma_w(n + 3)) if n < 7 else pairs(0, 1) if n == 7 else pairs(1 + C8, 2 + C8) if n == 8 else pairs(8, 9)
        B[f"w{n}"] = (stamp(8 + n) if OPT["stamps"] == 7 else []) + phase(f"w{n}", n, "v", mf_w(n), own, nxt, nt_, pub, early, d, extra, early_hi=70, post=post, endx=endx)
    C = stamp(1) + Is('.p2align 3'); pend = []
    for k, (s, qt) in enumerate(cunits[NC9:]):
        a, b = cvt_unit(s, qt, True)
        C += a[:4] + pend + a[4:]; pend = b
    C += Is(f"s_cmp_lg_u32 s{sMode}, 0\ns_nop 0") + pend + Is("s_cbranch_scc1 K1_MAXPASS\nK1_MAXRET:\ns_nop 0") + stamp(2)
    B["cvt"] = C
    M = []; last = []
    for qt in range(4):
        x = XY(0, 0, qt); m = vT + 2 * qt; t = m + 1
        a = I(f"v_max3_f32 v{m}, v{x}, v{x+1}, v{x+2}", lo=6 * qt + 13)
        b = I(f"v_max3_f32 v{m}, v{m}, v{x+3}, v{vMi[qt]}")
        c_ = I(f"v_mov_b32 v{t}, v{m}")
        d = I(f"v_permlane16_swap_b32 v{m}, v{t}", after=[c_], dly=1)
        e = I(f"v_max_f32 v{m}, v{m}, v{t}")
        f = I(f"v_mov_b32 v{t}, v{m}")
        g = I(f"v_permlane32_swap_b32 v{m}, v{t}", after=[f], dly=1)
        h = I(f"v_max_f32 v{m}, v{m}, v{t}")
        ns = [I(f"v_sub_f32 v{negm(qt)+i}, 0, v{m}", hi=48 + 6 * qt - 3) for i in range(4)]
        st = [a, b, c_, d, e, f, g, h] + ns
        for j, it in enumerate(st): it.target = 6 * qt + 13 + j * 0.5
        M.append(st); last.append(ns[0])
    NA0 = OPT['na0']
    sm = softmax([(0, 0, qt, 0, 24 + 6 * qt + 13, 95, True) for qt in range(NA0)], 28, 93, sub=last)
    early = Is(f"""s_mov_b32 s{sA}, {3*TILE}
s_mov_b32 s{sB}, {2*TILE}
s_mov_b32 s{sI}, 0
s_add_u32 s{sO}, s{sO}, {OSTRIDE}
s_addc_u32 s{sO+1}, s{sO+1}, 0
s_mov_b32 s{sO+2}, s{sOn}
s_mov_b32 s{sOn}, {5*122880+15*1024}""") + dma_k(2, slot(0))
    hand = [WAIT(vneed={"v30"})] + Is(f"""v_mov_b32 v30, 1
s_and_b32 s80, s{sWg}, 1
s_lshl_b32 s80, s80, 2
s_add_u32 s80, s80, s{sCo}
s_cmp_eq_u32 s{sAll}, 0
s_cselect_b32 s81, s{sItem}, 0
s_cmp_lt_u32 s{sSig}, s81
s_cselect_b32 s80, s80, 0x1000
s_cselect_b32 s{sSig}, 1, s{sSig}
s_cmp_eq_u32 s{sWave}, 0
s_cselect_b32 s80, s80, 0x1000""") + [atomic(30, 80)]
    B["qk0"] = phase("qk0", 10, "k", mf_qk(10, 0, True), reads_k(10, X0)[NPRE_K:], reads_k(11, slot(2))[:NPRE_K], "k", slot(2), early,
                     hd(dma_v(1, slot(1))), M + sm, early_hi=70) + stamp(3)
    def half(nm, par, mode, xq=0, xp=0, probe=False, io=None):
        ks, vs, kn, vp = slot(2 * par), slot(2 * par + 1), slot(2 - 2 * par), slot(3 - 2 * par)
        last = mode == "last"; first = mode == "first"
        mp = mf_pv(12, 1 - par, first) + mf_l(1 - par) + (mf_l(1) if last and par else [])
        NP_ = len(mp)
        gq = g_old(1 - par, 1, range(4), 96, True); gp = g_old(par, 0, range(4), NP_, False); hq = BG - 2
        if first: gq = [g[:6] + (True,) for g in g_old(0, 0, range(NA0, 4), 96, True)] + gq; hq = 88
        if last and par == 0:
            gq = gq + g_new(0, [0]); hq = 93
            gp = g_old(0, 0, [1, 2, 3], NP_, False) + g_old(0, 1, [0, 1], NP_, False)
        if last and par:
            gq = g_old(0, 1, [2, 3], 96, True) + g_new(1, [0, 1, 2]); hq = 93
            gp = [(1, 0, 3, 0, 0, 97, False)] + [(1, 1, qt, 4, 6, NP_ - 7 + qt, False) for qt in range(4)]
        def burst(gs):
            if not gs: return []
            P_, E, D = softmax(gs, 0, 90); out = list(P_)
            for j in range(0, len(E), 2):
                out += E[j:j + 2] + (D[j // 2 - 1:j // 2] if j else [])
            return out + Is("s_nop 0") + D[-1:]
        bq = burst(gq[:xq]); gq = gq[xq:]; bp = burst(gp[:xp]); gp = gp[xp:]
        post = []
        if last: qe, qt_, pe, pt, qx, px = io
        else:
            qe = tl(dma_v(1, slot(1))) if first else (codepf() if par == 0 else []) + tl(dma(sDB, sB, vp)) + Is(f"s_add_u32 s{sB}, s{sB}, {TILE}")
            qt_ = hd(dma(sDA, sA, ks)); pe = tl(dma(sDA, sA, ks)) + Is(f"s_add_u32 s{sA}, s{sA}, {TILE}"); pt = hd(dma(sDB, sB, vs)); qx = []; px = []
            if par and not first: post = Is(f"s_add_u32 s{sI}, s{sI}, 1\ns_or_b32 s80, s{sSel}, 0x40\ns_bitcmp0_b32 s80, s{sI}")
        if probe:
            pe = pe + Is(f"s_getreg_b32 s80, hwreg(HW_REG_IB_STS, 0, 4)\ns_cmp_ge_u32 s80, {OPT['adp']}\ns_addc_u32 s{sBk}, s{sBk}, 0")
        if first:
            pe = hand + pe
            sel = Is("v_and_b32 v47, 3, v0\nv_mov_b32 v46, 0x3f803f80")
            for qt in range(4):
                c_ = I(f"v_cmp_eq_u32 s[86:87], {qt}, v47")
                sel += [c_, I(f"v_cndmask_b32 v{32+4*qt}, 0, v46, s[86:87]", after=[c_], dly=1)] + [I(f"v_mov_b32 v{32+4*qt+j}, v{32+4*qt}") for j in range(1, 4)]
            sel += [I(f"v_mov_b32 v{vL[q]}, 0") for q in range(4)]
            px = [spread(sel, 2, 92, NOV)]
        q = bq + phase("qk" + nm, 11, "k", mf_qk(11, par), reads_k(11, ks)[NPRE_K:], reads_v(12, vs)[:NPRE_V], "v", vs, qe, qt_,
                       softmax(gq, 0, hq) + qx, early_hi=72)
        if last and par: nxt, nty, pub = reads_v(41, X1)[:NPRE_V], "v", X1
        else: nxt, nty, pub = reads_k(11, kn)[:NPRE_K], "k", kn
        p = bp + phase("pv" + nm, 12, "v", mp, reads_v(12, vs)[NPRE_V:], nxt, nty, pub, pe, pt,
                       softmax(gp, 0, NP_ - (7 if last and par else 3)) + px, post=post, early_hi=72)
        return q + p
    st = lambda: stamp(-1) if OPT["stamps"] == 6 else []
    B["peel"] = half("1", 1, "first", OPT["pq"], OPT["pp"]) + Is(f"s_bitcmp1_b32 s{sSel}, 0\ns_cbranch_scc1 K1_LA")
    B["loop"] = Is(".p2align 6\nK1_L:") + st() + half("e", 0, "loop", OPT["yq"], OPT["yp"]) + half("o", 1, "loop", OPT["yq"], OPT["yp"]) + Is("s_cbranch_scc1 K1_L")
    B["loope"] = Is(f"s_cmp_lg_u32 s{sI}, 6\ns_cbranch_scc1 K1_LA\ns_cmp_eq_u32 s{sItem}, 0\ns_cbranch_scc1 K1_LASTA")
    B["loopa"] = Is(".p2align 6\nK1_LA:") + st() + half("ea", 0, "loop", OPT["xq"], OPT["xp"], OPT["adp"]) + half("oa", 1, "loop", OPT["xq"], OPT["xp"], OPT["adp"]) + Is("s_cbranch_scc1 K1_L")
    B["loopx"] = Is(f"s_cmp_lg_u32 s{sI}, 6\ns_cbranch_scc1 K1_LA\ns_cmp_lg_u32 s{sItem}, 0\ns_cbranch_scc1 K1_LASTB")
    def pv15(nm, ne, nxt, pub, tail, extra=(), endv=None, **kw):
        B15 = OPT["bg15"]
        c2 = [I(f"v_mov_b32 v{168+q}, v{vL[q]}", lo=8) for q in range(4)]
        R = c2 + [I(f"v_permlane16_swap_b32 v{vL[q]}, v{168+q}", after=[c2[q]], dly=1) for q in range(4)] + [I(f"v_add_f32 v{vL[q]}, v{vL[q]}, v{168+q}") for q in range(4)]
        R += [I(f"v_rcp_f32 v{RCP+2*q}, v{vL[q]}") for q in range(4)] + [I(f"v_cmp_ngt_f32 {S2(80+2*q)}, s{sThr}, v{vL[q]}") for q in range(4)]
        spread(R, 7, 24)
        for it in R: it.hi = 95
        es = []; sts = []
        for u in range(ne):
            e = epi_unit(u, False); e[0].lo = 16 * (u // 4) + 2 * (u % 4) + 1 + 8; e[10].lo = e[0].lo + 8
            if u >= ne - 3: x = e.pop(); x.after = [e[-1]]; sts.append(x)
            es += e
        spread(es, 22, 94, range(B15, B15 + 9))
        fl = Is(f"""s_or_b64 s[80:81], s[80:81], s[82:83]
s_or_b64 s[84:85], s[84:85], s[86:87]
s_or_b64 s[80:81], s[80:81], s[84:85]
s_or_b32 s80, s80, s81
s_or_b32 s{sFlag}, s{sFlag}, s80
s_lshl_b32 s80, s{sWave}, 2
s_add_u32 s80, s80, {FLO}
v_mov_b32 v160, s80
v_mov_b32 v161, s{sFlag}
v_mov_b32 v162, {FLO}""") + [Ins("ds_write_b32 v160, v161")]
        fl[-1].cost = 8
        fl[0].after = R[-1:]; fl[0].dly = 2
        f1 = I(f"ds_read_b128 {V4(164)}, v162", dst=regs("v", 164, 4), lo=B15 + 1, target=B15 + 3)
        f2 = WAIT(lneed=regs("v", 164, 4), lo=80, target=80)
        f3 = Is("v_or_b32 v164, v164, v165\nv_or3_b32 v164, v164, v166, v167")
        f4 = I(f"v_readfirstlane_b32 s{sAll}, v164", after=[f3[1]], hi=91)
        for x in f3 + [f4]: x.target = 81
        ex = list(extra(es, sts)) if extra else []
        out = stamp(4) + phase(nm, 41, "v", mf_pv(41, 1), reads_v(41, X1)[NPRE_V:], nxt, "v", pub, fl, tail, [R + es, [f1, f2] + f3 + [f4]] + ex, bg=B15, endv=endv, **kw)
        return out + stamp(5) + stamp(6) + Is(f"s_cmp_lg_u32 s{sMode}, 0\ns_cselect_b32 s{sAll}, 0, s{sAll}"), sts
    x = pf()
    A_ = lambda book: half("14a", 0, "last", OPT["lq"], OPT["lp"], io=[tl(dma(sDB, sB, slot(3))) + codepf() + book, hd(dma_v(15, X1)),
                                    tl(dma_v(15, X1)) + Is(f"s_mov_b64 {S2(sDA)}, {S2(sNb)}\ns_mov_b32 s{sDA+2}, s{sNnum}"), hd(dma_w(0)), [], []]) \
        + half("15a", 1, "last", io=[tl(dma_w(0)) + dma_x(0), hd(dma_w(1)), tl(dma_w(1)) + x[:4], hd(dma_w(2)) + x[4:], [], []])
    dx1 = dma_x(1)
    x0r = reads_x(0)
    def exa(es, sts):
        for y in sts: y.after = y.after + [dx1[-1]]; y.target = 92
        if not OPT["xin"]: return [sts]
        for q in range(4):
            for y in x0r[2 * q:2 * q + 2]: y.after = [x for x in es if x.text.endswith(f" a{Oacc(1, q) + 3}")]
        return [sts, spread(x0r, OPT["bg15"] + 2, 88)]
    book = Is(f"""s_cmp_ge_u32 s{sBk}, {OPT['adn']}
s_cselect_b32 s{sSel}, 63, {OPT['m1']}
s_add_u32 s{sK}, s{sK}, {16*393216}
s_addc_u32 s{sK+1}, s{sK+1}, 0
s_add_u32 s{sV}, s{sV}, {16*393216}
s_addc_u32 s{sV+1}, s{sV+1}, 0""")
    if OPT["rot"]:
        book += Is(f"""s_lshr_b32 s80, s{sWg}, 4
s_mul_i32 s80, s80, 52
s_lshr_b32 s80, s80, 8
s_min_u32 s80, s80, 2
s_bfe_u32 s81, s{sWg}, 0x10001
s_lshl1_add_u32 s80, s80, s81
s_mul_i32 s{sRo[0]}, s80, {128*1280}""")
        for u in range(1, 6): book += Is(f"s_add_u32 s{sRo[u]}, s{sRo[u-1]}, {128*1280}\ns_cmp_eq_u32 s{sRo[u]}, {768*1280}\ns_cselect_b32 s{sRo[u]}, 0, s{sRo[u]}")
    B["lasta"] = Is("K1_LASTA:") + st() + A_(book) + pv15("pv15a", NE0, reads_v(0, slot(0))[:NPRE_V], {f"L{slot(0)}"} | XALL(0), dx1, exa, dend=90,
                                                   endx=regs("a", 0, 32) if OPT["xin"] else frozenset())[0]
    B["mid"] = Is(f"s_mov_b32 s{sItem}, 1") + ([] if OPT["xin"] else x0r + [WAIT(lzero=True)]) + stamp(0)
    B["w0"] += Is("s_branch K1_W1")
    k2tr, k2lay = oproj(B, half, pv15, st)
    X = Is(f"""K1_MAXPASS:
v_and_b32 v{vT}, 15, v0
v_lshrrev_b32 v{vT+1}, 4, v0
v_mul_u32_u24 v{vT}, 384, v{vT}
v_lshl_add_u32 v{vT}, v{vT+1}, 4, v{vT}
s_mov_b32 s{sT}, 0""") + [I(f"v_mov_b32 v{vMi[q]}, 0xff800000") for q in range(4)] + Is("K1_MAXL:")
    for s in range(6): X.append(I(f"buffer_load_dwordx4 {V4(SP+4*s)}, v{vT}, {S4(sDA)}, s{sT} offen offset:{s*64}"))
    X.append(I("s_waitcnt vmcnt(0)"))
    for qt in range(4):
        for s in range(6): X.append(mfma(V4(SP + 32 + 4 * qt), V4(SP + 4 * s), V4(Qf(qt, s)), V4(SP + 32 + 4 * qt) if s else "0"))
    X.append(I("s_nop 7"))
    for qt in range(4):
        d = SP + 32 + 4 * qt
        X += Is(f"v_max3_f32 v{vMi[qt]}, v{vMi[qt]}, v{d}, v{d+1}\nv_max3_f32 v{vMi[qt]}, v{vMi[qt]}, v{d+2}, v{d+3}")
    X += Is(f"s_add_u32 s{sT}, s{sT}, 6144\ns_cmp_lt_u32 s{sT}, 393216\ns_cbranch_scc1 K1_MAXL\ns_branch K1_MAXRET")
    B["maxpass"] = X
    front = [f"w{n}" for n in range(1, 10)] + ["cvt", "qk0", "peel"]
    mixes = [["loopa"] * 6, ["loop"] * 6, ["loopa", "loopa", "loop", "loopa", "loop", "loop"]]
    traces = [["entry", "pro", "w0a"] + front + mixes[i] + ["lasta", "mid", "w0"] + front + mixes[j] + t_ for (i, j) in ((0, 1), (2, 0)) for t_ in k2tr]
    layout = ["entry", "pro", "w0a"] + front + ["loop", "loope"] + k2lay + ["loopa", "loopx", "lasta", "mid", "w0", "k2side", "k2idle", "maxpass"]
    for t_ in traces: resolve_waits(B, t_)
    txt = {k: "\n".join(emit(v)).split("\n") for k, v in B.items()}
    errs = []
    for t_ in traces: errs += verify([l for b in t_ for l in txt[b]])
    errs += verify([l for b in ["entry", "pro", "w0a"] + front[:10] + ["maxpass", "maxpass"] + front[10:] for l in txt[b]])
    errs += verify([l for b in ["loop", "lastb", "k2idle"] for l in txt[b]])
    for t_ in k2tr: errs += verify([l for b in t_[:4] + ["k2wx" + t_[-1][-1]] + t_[3:] for l in txt[b]])
    for e in sorted(set(errs))[:8]: sys.stderr.write("K1 HAZARD " + e + "\n")
    note = {
        "entry": "entry / set-up of descriptors and per-lane addresses; first loads",
        "mid": "between the two heads of this workgroup",
        "w0": "second head, first k phase of its Q projection",
        "w0a": "Q projection: ten k phases of 64; Wq tiles and x rows arrive by LDS-DMA; the previous head's O is normalised and stored underneath",
        "cvt": "scale Q by log2(e)/sqrt(192), round to bf16, arrange as MFMA operand",
        "qk0": "first key tile: row max of its first 16 keys (or the exact max in the redo pass) becomes the softmax shift",
        "peel": "key tile 1 / value tile 0",
        "loop": "attention main loop, two 64-key tiles per trip: S^T = K Q^T - m, P = exp2(S), O^T += V^T P^T, l += 1^T P^T; softmax fully under the MFMAs",
        "lasta": "first head, last tiles: 1/l, overflow check of the shift, first O fragments leave; the second head's first tiles come in",
        "lastb": "second head, last tiles; the output projection's first operands come in",
        "k2head": "output projection: tile 320x128 per workgroup, K split over four workgroups",
        "k2bodyo": "projection, odd K halves (22 steps)", "k2bodye": "projection, even K halves (26 steps)",
        "k2epio": "collect the partners' quarters", "k2epie": "collect the partners' quarters",
        "loopa": "same loop for the first head with part of the softmax issued back to back: lower peak draw while the supply settles",
        "k2side": "rare paths: redo with the exact row max, waits on hand-offs",
        "k2idle": "workgroups without a projection tile",
        "maxpass": "exact row max over all keys (redo pass only)"}
    return [l for b in layout for l in ([f"; ---- {note[b]}"] if b in note else []) + txt[b] if l], errs

def oproj1(B, half, pv15, st, X, N):
    vR = [[1, 2, 3, 4], [13, 14, 15, 16]]; vOf = 18; vSt = 10; vFl = 11; vRd = 12; t0, t1, t2, t3 = 5, 6, 7, 8; vP2 = 9; vLp = 17; vOne = 20
    KS = [0, 32768, 65536]; EX = X1; SEL = 32
    uq = lambda u: [("a", Oacc(2 * (u // 4) + h, u % 4)) for h in range(2)]
    OF = {}
    def Of(d, kb, qt): return OF[d, kb, qt]
    M = OPT["mrg"] - (N & 1); DM = N - M; MD = list(range(DM, N)); U = (N - 1) >> 1
    src = lambda d: (d, 0) if d < 24 else (d - (N - 24), 1)
    NT = OPT["k2n"]; u0 = OPT["ne1"]; left = list(range(u0, 24))
    frs = [(d, kb, qt) for d in range(N) for kb in range(2) for qt in range(5)]
    A0 = OPT["adv0"]; rate = (10 * N - 15 - 10 * A0) / (DM - 1 - A0 + OPT["advf"] / 100.0)
    cum = lambda d: 15 + 10 * (d + 1) if d < A0 else min(10 * N, int(round(15 + 10 * A0 + rate * (d + 1 - A0))))
    OS = {d: frs[(cum(d - 1) if d >= 0 else 0):cum(d)] for d in range(-1, DM)}
    pool = [("v", 224 + 4 * i) for i in range(8)] + [q for u in range(u0) for q in uq(u)]
    for d in range(-1, DM):
        for f in OS[d]: OF[f] = pool.pop(0)
        if d >= 0: pool += [OF[d, kb, qt] for kb in range(2) for qt in range(5)] + [q for u in left[d * NT:(d + 1) * NT] for q in uq(u)]
    RDQ = pool
    CK = {min(d for d in OS if any(f[0] >= m for f in OS[d])): m for m in (12, 24) if m < N}
    R4 = lambda r: f"{r[0]}[{r[1]}:{r[1]+3}]"
    Oset = lambda d, kbs=(0, 1): set().union(*[regs(*Of(d, kb, qt), 4) for kb in kbs for qt in range(5)])
    def acc(t, qt): return 64 + 4 * (t * 5 + qt)
    def wq(f): return 192 + 4 * (f % 16)
    sW_ = sX; sOo = 8; sOut = 12; sXs = 20; sFl = 28
    sTt = 46; sC1 = 51; sC1w = 50; sXo = [32, 33, 34, 35]; sTs = 39; sXr = 24; sGx = 40; sOb = 54; sFo = 55
    def wdma(u, h):
        d_, fo = src(2 * u)
        off = (d_ * 64 + (3072 - 768 if d_ >= 12 else 0) + fo * 1536) * 1280
        out = [I(f"s_add_u32 m0, s{sXoff}, {KS[u % 3] + h*4096}")]
        for j in range(4 * h, 4 * h + 4):
            out += [I(f"s_add_u32 s{sTt}, s{sRo[u]}, {j*10240 - (j % 4)*1024}" if OPT["rot"] and u < 6 else f"s_mov_b32 s{sTt}, {off + j*10240 - (j % 4)*1024}"),
                    I(f"buffer_load_dwordx4 v{vDx}, {S4(sW_)}, s{sTt} offen offset:{(j % 4)*1024} lds", dst={f"S{u%3}"})]
        return out
    Wt = lambda u: {f"S{u%3}"}
    def oload(fs):
        out = []; cur = None
        for (d, kb, qt) in fs:
            off = (2 * src(d)[0] + kb + 96 * src(d)[1]) * 122880 + (qt // 4) * 4096
            if OPT["rot"] and d < 12:
                if (d & 1, kb, qt) == (0, 0, 0): out.append(I(f"s_mul_i32 s{sOb}, s{sRo[d >> 1]}, 3"))
                if off != cur: out.append(I(f"s_add_u32 s{sTt}, s{sOb}, {off - (d >> 1)*4*122880}")); cur = off
            elif off != cur: out.append(I(f"s_mov_b32 s{sTt}, {off}")); cur = off
            out.append(I(f"buffer_load_dwordx4 {R4(Of(d, kb, qt))}, v{vOf}, {S4(sOo)}, s{sTt} offen offset:{(qt % 4)*1024} sc1", dst=regs(*Of(d, kb, qt), 4)))
        return out
    def wreads(ds):
        out = []; f = 0
        for t in range(8):
            for d in ds:
                base = KS[(d >> 1) % 3]; w = base >> 16
                for kb in range(2):
                    r = wq(f)
                    for hf in range(2):
                        it = I(f"ds_read_b64_tr_b16 a[{r+2*hf}:{r+2*hf+1}], v{vR[w][t & 3]} offset:{base - w*65536 + (d & 1)*16384 + (t >> 2)*8192 + (4*kb+2*hf)*1024}", dst=regs("a", r + 2 * hf, 2)); it.f = f
                        out.append(it)
                    f += 1
        return out
    NP = 8; G = 60
    pair = lambda a, b: Ins(a + "\n" + b, kind="bar")
    late = Is(f"""
s_mov_b64 {S2(sOut)}, {S2(sOutP)}
s_mov_b32 s{sOut+2}, {79*2560+64}
s_mov_b32 s{sOut+3}, 0x20000""") + [pair(f"s_add_u32 s{sXs}, s{sWsP}, {XCH}", f"s_addc_u32 s{sXs+1}, s{sWsP+1}, 0")] + Is(f"""
s_mov_b32 s{sXs+2}, {960*15360}
s_mov_b32 s{sXs+3}, 0x20000
s_lshl2_add_u32 s88, s{sWg}, s{sWave}
s_mul_i32 s{sXo[0]}, s88, 15360
s_xor_b32 s89, s88, 32
s_mul_i32 s{sXo[1]}, s89, 15360
s_xor_b32 s89, s88, 4
s_mul_i32 s{sXo[2]}, s89, 15360
s_xor_b32 s89, s88, 36
s_mul_i32 s{sXo[3]}, s89, 15360
s_mul_i32 s88, s{sWave}, 5120
s_add_u32 s88, s88, {EX}
v_add_u32 v{vRd}, s88, v{vOf}
v_and_b32 v{t0}, 15, v0
v_lshrrev_b32 v{t1}, 4, v0
v_lshl_add_u32 v{t2}, v{t0}, 2, v{t1}
v_lshlrev_b32 v{t2}, 4, v{t2}
v_add_u32 v{vLp}, s88, v{t2}
v_lshlrev_b32 v{t1}, 2, v{t1}
v_sub_u32 v{t0}, v{t0}, v{t1}
v_and_b32 v{t1}, 1, v{t0}
v_lshlrev_b32 v{t1}, 4, v{t1}
v_mov_b32 v{t2}, 0x3f80
v_lshlrev_b32 v{t1}, v{t1}, v{t2}
v_lshrrev_b32 v{t0}, 1, v{t0}""")
    c0 = I(f"v_cmp_eq_u32 s[84:85], 0, v{t0}"); c1 = I(f"v_cmp_eq_u32 s[86:87], 1, v{t0}")
    late += [c0, c1, I(f"v_mov_b32 v{SEL+2}, 0"), I(f"v_mov_b32 v{SEL+3}, 0"), I(f"v_cndmask_b32 v{SEL}, 0, v{t1}, s[84:85]"), I(f"v_cndmask_b32 v{SEL+1}, 0, v{t1}, s[86:87]")]
    late += Is(f"""v_mov_b32 v{SEL+4}, 0
v_mov_b32 v{SEL+5}, 0
v_mov_b32 v{SEL+6}, v{SEL}
v_mov_b32 v{SEL+7}, v{SEL+1}
v_lshrrev_b32 v{t0}, 2, v0
v_and_b32 v{t1}, 3, v0
v_mul_u32_u24 v{vSt}, 2560, v{t0}
v_lshl_add_u32 v{vSt}, v{t1}, 4, v{vSt}
v_min_u32 v{t1}, 2, v0
v_add_u32 v{t1}, 1, v{t1}
v_and_b32 v{t0}, 1, v{t1}
v_lshrrev_b32 v{t1}, 1, v{t1}
v_lshl_or_b32 v{t0}, v{t0}, 3, v{t1}
v_xor_b32 v{t0}, s{sWg}, v{t0}
v_lshlrev_b32 v{vFl}, 7, v{t0}
v_min_u32 v{t1}, 2, v0
v_lshl_add_u32 v{vFl}, v{t1}, 2, v{vFl}
s_add_u32 s{sXo[2]}, s{sXo[2]}, 5120
s_add_u32 s{sXo[3]}, s{sXo[3]}, 10240
s_mov_b32 s{sGx}, 0
s_lshl_b32 s{sFo}, s{sWg}, 7""") + [pair(f"s_cmp_eq_u32 s{sWave}, 0", f"s_cselect_b32 s{sFo}, s{sFo}, 0x10000")] + Is("""""") + (Is("v_mov_b32 v22, v31\nv_mov_b32 v23, v31") if OPT["stamps"] else [])
    sPf = 24; sPi = 57
    def pfit():
        out = []
        for h in range(2): out += Is(f"s_add_u32 s81, s{sPi}, {h*768*1280}") + [I(f"buffer_load_dword v30, v{vO}, {S4(sPf)}, s81 offen offset:{j*1024}", dst={"v30"}) for j in range(4)]
        return out + Is(f"s_add_u32 s{sPi}, s{sPi}, 65536")
    if "lastb" not in B:
        r1 = vR[1][0]; c = [OPT[f"c{i}"] for i in range(8)]
        L = tl(dma(sDB, sB, slot(3))) + dma_v(15, X1)
        L += [I(f"buffer_load_dword v30, v{vO}, {S4(sP1)}, " + ("0" if j < 4 else f"s{sT3}") + f" offen offset:{(j % 4)*1024}", dst={"v30"}) for j in range(0 if OPT["rot"] else 8)]
        L += [y for u in range(3) for h in range(2) for y in wdma(u, h)] + oload(OS[-1])
        o_ = 8 if OPT['rot'] else 0
        assert sum(c[:3]) <= 26 - o_ and sum(c[:5]) <= 34 - o_ and sum(c[:6]) <= 42 - o_ and sum(c) <= 50 - o_
        s0 = Is(f"s_cmp_le_u32 s{sWave}, {0 if OPT['p1w'] else 3}\ns_cselect_b32 s86, s{sCo}, 0x1000\ns_cselect_b32 s87, 32, 0") + [I(f"buffer_load_dwordx2 v[14:15], off, {S4(sDb)}, s86 sc1", dst=regs("v", 14, 2))] + codepf() + Is(f"""
s_mov_b64 {S2(sP1)}, {S2(sN2)}
s_mov_b32 s{sP1+2}, 30720
s_mov_b32 s{sT3}, 16384
s_mov_b64 {S2(sW_)}, {S2(sWoP)}
s_mov_b32 s{sW_+2}, s{sK2n}
s_movk_i32 s80, 0x70
v_lshrrev_b32 v{vDx}, 3, v0
v_mul_u32_u24 v{vDx}, 1280, v{vDx}
v_and_or_b32 v{vDx}, v{vDw}, s80, v{vDx}""")
        s1 = Is(f"""
s_mov_b64 {S2(sOo)}, {S2(sK2O)}
s_cmp_lt_u32 s{sWg}, 240
s_cselect_b32 s{sOo+2}, {143*122880+5*1024}, 0
s_and_b32 s{sC1}, s{sWg}, 7
s_lshl_b32 s{sC1}, s{sC1}, 7
s_add_u32 s{sC1}, s{sC1}, 64
s_cmp_eq_u32 s{sWave}, 0
s_cselect_b32 s{sC1w}, s{sC1}, 0x10000
s_add_u32 s{sFl}, s{sWsP}, {FLG}
s_addc_u32 s{sFl+1}, s{sWsP+1}, 0
s_mov_b32 s{sFl+2}, {256*128}
s_mov_b32 s{sFl+3}, 0x20000
s_andn2_b32 s89, 8, s{sWg}
s_lshl_b32 s89, s89, 3
s_add_u32 s89, s89, 65536""")
        s2 = Is(f"""s_bfe_u32 s80, s{sWg}, 0x10001
s_lshr_b32 s81, s{sWg}, 3
s_lshl1_add_u32 s80, s81, s80
s_and_b32 s{sPi}, s80, 3
s_lshl_b32 s{sPi}, s{sPi}, 14
s_mul_i32 s81, s80, 30720
s_sub_u32 s81, {3072*1280}, s81
s_add_u32 s{sPf}, s{sN2}, s81
s_addc_u32 s{sPf+1}, s{sN2+1}, 0
s_mov_b32 s{sPf+2}, {1536*1280}
s_mov_b32 s{sPf+3}, 0x20000""")
        if OPT["xpf"]:
            k_ = OPT["xpf"]
            s2 += Is(f"""s_lshr_b32 s81, s80, {3 - k_}
s_lshl_b32 s81, s81, 14
s_and_b32 s82, s80, {2 * (2 - k_)}
s_lshl_b32 s82, s82, 10
s_add_u32 s81, s81, s82
s_and_b32 s82, s80, 1
s_mul_i32 s82, s82, {768*1280}
s_add_u32 s81, s81, s82
s_add_u32 s81, s81, {768*1280 - 262144*k_}""") + [I(f"buffer_load_dword v30, v{vO}, {S4(sPf)}, s81 offen offset:{j*1024}", dst={"v30"}) for j in range(2 * k_)]
        m_ = I("v_min_u32 v14, v14, v15"); rf = I("v_readfirstlane_b32 s88, v14", after=[m_])
        ck = [WAIT(vneed={"v14"}), m_, rf, Ins("s_cmp_lt_u32 s88, s87\ns_cbranch_scc1 K2_SPIN0\nK2_RET0:", kind="bar", after=[rf], dly=2)]
        v1 = Is(f"""
v_lshrrev_b32 v14, 5, v0
v_lshlrev_b32 v{r1}, 10, v14
v_bfe_u32 v14, v0, 2, 3
v_lshl_add_u32 v{r1}, v14, 7, v{r1}
v_and_b32 v14, 6, v14
v_bfe_u32 v15, v0, 1, 1
v_xor_b32 v14, v14, v15
v_lshl_add_u32 v{r1}, v14, 4, v{r1}
v_and_b32 v14, 1, v0
v_lshl_add_u32 v{r1}, v14, 3, v{r1}
v_xor_b32 v{r1}, s89, v{r1}
v_xor_b32 v14, 32, v{r1}
v_xor_b32 v15, 64, v{r1}
v_xor_b32 v16, 96, v{r1}
v_lshlrev_b32 v{vOf}, 4, v0
v_mov_b32 v{vOne}, 1""")
        v1[0].after = [ck[-1]]
        v0_ = [I(f"v_xor_b32 v{vR[0][i]}, 0x10000, v{vR[1][i]}") for i in range(4)]
        Z_ = Is(f"K1_LASTB:\ns_cmp_eq_u32 s{sSig}, 0\ns_cbranch_scc1 K1_REDO") + st()
        Z_ += half("14b", 0, "last", io=[s0 + take(L, c[0]) + s1, take(L, c[1]), ck + take(L, c[2]), take(L, c[3]), [], [spread(v1, 14, 95, NOV)]])
        Z_ += half("15b", 1, "last", io=[s2 + take(L, c[4]), take(L, c[5]), take(L, c[6]), take(L, c[7]), [], [spread(v0_, 2, 60)]])
        L = take(L, 99)
        def exb(es, sts):
            for y in L:
                if y.kind == "vmem": y.after = y.after + [x for x in es if x.text.split()[-1] in y.dst][-1:]
            spread(L, 2, 80)
            for y in L: y.hi = 94
            return [L]
        p_, sts = pv15("pv15b", u0, wreads([0])[:NP], Wt(0), [], exb, endv=Oset(0))
        B["lastb"] = Z_ + p_ + Is(f"s_cmp_lg_u32 s{sAll}, 0\ns_cbranch_scc1 K1_REDO\ns_cmp_ge_u32 s{sWg}, 240\ns_cbranch_scc1 K2_IDLE") + stamp(49)
    held = {0: [epi_unit(u, False)[-1] for u in range(u0 - 3, u0)]}
    body = {}
    for d in range(N):
        body[d] = []; held[d + 1] = []
        for u in left[d * NT:(d + 1) * NT]:
            e = epi_unit(u, False); held[d + 1].append(e.pop()); body[d] += e
    SG = max(d for d in held if held[d]) + 1
    assert SG <= 7
    poll = f"buffer_load_dword v{t2}, v{vFl}, {S4(sFl)}, 0 offen sc1"
    RD = lambda rho, qt: RDQ[qt * 3 + rho - 1]
    def rload(rho, so):
        out = []
        for qt in range(5):
            if qt == 4: out.append(I(f"s_add_u32 s{sTt}, s{so}, 4096"))
            out.append(I(f"buffer_load_dwordx4 {R4(RD(rho, qt))}, v{vOf}, {S4(sXs)}, s{sTt if qt == 4 else so} offen offset:{(qt % 4)*1024} sc1", dst=regs(*RD(rho, qt), 4)))
        return out
    radd = lambda rhos, qt: [mfma(V4(acc(6 + h, qt)), V4(SEL + 4 * h), R4(RD(rho, qt)), V4(acc(6 + h, qt))) for h in range(2) for rho in rhos]
    flag = lambda off: Ins(f"s_mov_b64 exec, 1\nbuffer_store_dword v{vOne}, off, {S4(sFl)}, s{sFo} offset:{off} sc1\ns_mov_b64 exec, -1", kind="vmem")
    def mfs(ds):
        mf = []; n = 2 * len(ds)
        for t in range(8):
            for qt in range(5):
                ks = [(i, d, kb) for i, (d, kb) in enumerate((d, kb) for d in ds for kb in range(2))]
                if qt & 1 and len(ds) > 1: ks.reverse()
                for (i, d, kb) in ks:
                    a = acc(t, qt)
                    mf.append(mfma(V4(a), A4(wq(n * t + i)), R4(Of(d, kb, qt)), "0" if (d == 0 and kb == 0) else V4(a)))
        return mf
    def step(d):
        own = wreads([d])[NP:]; pre = d == DM - 1
        nx = MD if pre else [d + 1]
        nxt = wreads(nx)[:max(NP, 4 * len(nx))]
        hasb = (d & 1) or pre or d == SG
        ws = [WAIT(lneed=regs("a", wq(2 * t), 8), lo=10 * t - 3, hi=10 * t - 1, target=10 * t - 2) for t in range(1, 7 if hasb else 8)]
        ws.append(WAIT(lneed=regs("a", wq(0), 8 * len(nx)), vneed=set().union(*[Oset(x) for x in nx]), lo=78, hi=79, target=78.5))
        g = G - 6 if pre and M > 2 else G
        spread(own, 0, g - 6)
        for it in own: it.hi = min(it.hi, 10 * (it.f >> 1) - 7); it.target = min(it.target, it.hi - 1)
        rs = own; nov = ()
        if hasb:
            bar = BAR(Wt(U if pre else (d + 1) >> 1) | ({"OST"} if d == SG else set()), lo=g, hi=g); rs = rs + [bar]; nov = range(g, g + 9)
            for it in nxt: it.after = [bar]
        spread(nxt, g + 1, 73 if pre else 76)
        vm = []
        cadr = lambda m: f"s{sC1}" + (" offset:128" if m == 24 else "")
        if d in CK: vm += [I(f"buffer_load_dword v{vP2}, off, {S4(sFl)}, {cadr(CK[d])} sc1", dst={f"v{vP2}"})]
        if d % 4 == 3 or pre: vm += codepf()
        fs = OS[d]; k2_ = len([f for f in fs if f[0] < CK.get(d, 99)]); k = min(5, k2_)
        vm += oload(fs[:k]) + held[d]
        for x in WS.get(d, []): vm += wdma(*x)
        if d in CK:
            vm += oload(fs[k:k2_]); k = k2_
            rf = I(f"v_readfirstlane_b32 s88, v{vP2}")
            ck = [WAIT(vneed={f"v{vP2}"}), rf, Ins(f"s_cmp_lt_u32 s88, 32\ns_cbranch_scc1 K2_SPIN{CK[d]}{X}\nK2_RET{CK[d]}{X}:", kind="bar", after=[rf], dly=2)]
            n1 = len(vm); vm += ck
        vm += oload(fs[k:])
        if d == SG:
            at = atomic(vOne, sC1w, sFl); at.after = [bar]; vm.append(at)
        if d in CK:
            n_a = sum(x.kind == "vmem" for x in vm[:n1]); n_b = sum(x.kind == "vmem" for x in vm[n1:])
            c_ = max(OPT["ckg"], int(76 * n_a / (n_a + n_b)) - 4)
            if hasb and g - 5 < c_ < g + 9: c_ = g + 9 if n_b <= 3 else g - 5
            even(vm[:n1], 0, c_, [g]); even(vm[n1 + 3:], c_ + 5, 80, [g])
            for x in ck: x.lo = c_; x.target = c_; x.hi = c_ + 4
        else: even(vm, 0, int(0.8 * OPT["advf"]) if pre else 80, [g])
        es = body[d]
        if es:
            for k in range(len(es) // 20): es[20 * k].after = [held[d][k]] if NT == 3 else held[d][-1:]; es[20 * k].dly = 1
            spread(es, held[d][0].lo + 2, 79, nov)
        if d == 14: es = spread(late, 0, 79); assert d not in CK
        return schedule(mfs([d]), [ws, rs + nxt, vm, es], novalu=nov, name=f"k2s{d}{X}") + (stamp(50) if d == 5 else stamp(47, True) if d == 13 else stamp(56) if pre else [])
    WS = {d: [((d >> 1) + 2, d & 1)] for d in range(2, 2 * (U - 1))}
    if 2 * U - 3 >= DM - 1: WS[2 * U - 4] += WS.pop(2 * U - 3)
    assert max(WS) < DM - 1
    def final():
        n = 2 * M; T = 5 * n
        own = wreads(MD)[max(NP, 2 * n):]
        for it in own:
            t, i = divmod(it.f, n)
            it.target = T * (t - 1) + i * (T - 9) / n; it.hi = T * t - 7
            if it.f >= 16: it.lo = T * ((it.f - 16) // n) + 4 * n + (it.f - 16) % n
        ws = [WAIT(lneed=set().union(*[regs("a", wq(n * t + i), 4) for i in range(n)]), lo=T * t - 3, hi=T * t - 1, target=T * t - 2) for t in range(1, 8)]
        sn = []
        for jl in range(3):
            for qt in range(5):
                a, b = acc(2 * jl, qt), acc(2 * jl + 1, qt)
                c = Is(f"""v_cvt_pk_bf16_f32 v{a}, v{a}, v{a+1}
v_cvt_pk_bf16_f32 v{a+1}, v{a+2}, v{a+3}
v_cvt_pk_bf16_f32 v{a+2}, v{b}, v{b+1}
v_cvt_pk_bf16_f32 v{a+3}, v{b+2}, v{b+3}""")
                if qt in (0, 4): c.append(I(f"s_add_u32 s{sTs}, s{sXo[0]}, {(2 - jl)*5120 + (qt // 4)*4096}"))
                c.append(I(f"buffer_store_dwordx4 {V4(a)}, v{vOf}, {S4(sXs)}, s{sTs} offen offset:{(qt % 4)*1024} sc1", dst={f"SN{jl}"}))
                lo = T * (2 * jl + 1) + n * (qt + 1) - 1 + 8
                for k, x in enumerate(c): x.lo = lo if k >= 2 else lo - 8; x.target = lo + k * 0.5 - 1
                sn += c
        ev = []; nov = []
        for jl in range(3):
            F = min(2 * T * (jl + 1) + 12 + OPT["fag"], 8 * T - OPT["fbg"])
            b_ = Ins("WAITBAR", kind="bar", vneed={f"SN{jl}"}, lo=F, hi=F); f_ = flag(4 * (2 - jl)); f_.after = [b_]; f_.target = F + 1; f_.hi = F + 3
            for x in sn[jl * len(sn) // 3:(jl + 1) * len(sn) // 3]: x.hi = F - 1
            ev += [b_, f_]; nov += range(F, F + 9)
        return schedule(mfs(MD), [ws, own, sn, ev, [I(poll, dst={f"v{t2}"}, lo=8 * T - OPT["plg"])]], novalu=nov, name="k2fin")
    if "k2head" not in B: B["k2head"] = [x for d in range(A0) for x in step(d)] + (Is(f"s_bitcmp0_b32 s{sWg}, 0\ns_cbranch_scc1 K2_BODYe") if OPT["asy"] else [])
    assert SG < A0 and min(CK) >= A0
    B["k2body" + X] = Is(f"K2_BODY{X}:") + [x for d in range(A0, DM) for x in step(d)] + final()
    sys.stderr.write(f"[k2] SG {SG} CK {CK} loads/step {[len(OS[d]) for d in sorted(OS)]} spare quads {len(RDQ)}\n")
    E = stamp(51) + (Is(f"v_writelane_b32 v22, s{sSp}, 61\ns_getreg_b32 s87, hwreg(HW_REG_XCC_ID)\nv_writelane_b32 v22, s87, 62\nv_writelane_b32 v22, s{sBk}, 59\ns_memrealtime s[90:91]\ns_waitcnt lgkmcnt(0)\nv_writelane_b32 v22, s90, 63") if OPT["stamps"] in (6, 7, 8) else [])
    def rel(L):
        for x in L: x.text = re.sub(r"\b(K2_WX|K2_W1|K2_W2|K2_W3|K2_GO|K2_PS)\b", r"\1" + X, x.text)
        return L
    xadd = lambda: [x for qt in range(5) for x in radd((2, 3), qt)]
    E += stamp(52) + [WAIT(vneed={f"v{t2}"})] + Is(f"""K2_PS:
v_cmp_eq_u32 s[84:85], 1, v{t2}
s_add_u32 s{sSp}, s{sSp}, 1
s_cmp_gt_u32 s{sSp}, 0x40000
s_nop 0
s_cselect_b32 s84, 7, s84
s_andn2_b32 s85, s84, s{sGx}
s_or_b32 s{sGx}, s{sGx}, s84
s_and_b32 s{sGx}, s{sGx}, 7""")
    for rho in (3, 2, 1): E += Is(f"s_bitcmp0_b32 s85, {rho-1}\ns_cbranch_scc1 K2_W{rho}") + rload(rho, sXo[rho]) + Is(f"K2_W{rho}:")
    E += Is(f"s_cmp_lg_u32 s{sGx}, 7\ns_cbranch_scc1 K2_WX")
    B["k2epi" + X] = rel(E)
    B["k2wx" + X] = rel(Is(f"K2_WX:\n{poll}\ns_waitcnt vmcnt(0)\ns_branch K2_PS"))
    E = Is("K2_GO:") + stamp(53)
    def fin(qt):
        a, b = acc(6, qt), acc(7, qt)
        return Is(f"""v_cvt_pk_bf16_f32 v{a}, v{a}, v{a+1}
v_cvt_pk_bf16_f32 v{a+1}, v{a+2}, v{a+3}
v_cvt_pk_bf16_f32 v{a+2}, v{b}, v{b+1}
v_cvt_pk_bf16_f32 v{a+3}, v{b+2}, v{b+3}
s_nop 1
v_permlane16_swap_b32 v{a}, v{a+2}
v_permlane16_swap_b32 v{a+1}, v{a+3}
ds_write_b128 v{vLp}, {V4(a)} offset:{qt*1024}""") + [I(f"ds_read_b128 {V4(144+4*qt)}, v{vRd} offset:{qt*1024}", dst=regs("v", 144 + 4 * qt, 4))]
    out = lambda qt: [I(f"s_mov_b32 s87, {qt*16*2560}"), WAIT(lneed=regs("v", 144 + 4 * qt, 4)), I(f"buffer_store_dwordx4 {V4(144+4*qt)}, v{vSt}, {S4(sOut)}, s87 offen" + " sc1")]
    for qt in range(5):
        E += Is(f"s_waitcnt vmcnt({4 - qt})") + radd((3, 2, 1), qt)
        if qt >= 1: E += fin(qt - 1)
    E += out(0) + out(1) + out(2) + fin(4) + out(3) + out(4)
    E += stamp(54) + (Is("s_waitcnt vmcnt(0)\ns_memrealtime s[94:95]\ns_waitcnt lgkmcnt(0)\nv_writelane_b32 v22, s94, 57") if OPT["enx"] else []) + (Is(f"v_writelane_b32 v22, s{sSp}, 60\nv_writelane_b32 v23, s87, 60") if OPT["stamps"] else [])
    B["k2fin" + X] = rel(E) + (Is("s_branch K1_DONE") if OPT["stamps"] else Is("s_endpgm"))
    def enx():
        lane = 58 if OPT["enx"] & 16 else 57 if OPT["enx"] & 32 else 63; m = OPT["enx"] & 15
        out = Is(f"""s_cmp_lg_u32 s{sWg}, 17
s_cbranch_scc1 K1_END
s_cmp_lg_u32 s{sWave}, 0
s_cbranch_scc1 K1_END
v_readlane_b32 s86, v22, 58
K1_EN1:
s_memrealtime s[90:91]
s_waitcnt lgkmcnt(0)
s_sub_u32 s90, s90, s86
s_cmp_lt_u32 s90, 19000
s_cbranch_scc1 K1_EN1
v_lshlrev_b32 v5, 11, v0
s_mov_b32 s84, {128*2048 + lane*8}
buffer_load_dword v6, v5, s[80:83], s84 offen sc1
s_waitcnt vmcnt(0)
v_subrev_u32 v6, s86, v6
v_add_u32 v6, 2000, v6
s_nop 1""") + [I(f"v_readlane_b32 s{4+k}, v6, {k}") for k in range(8)] + Is("s_nop 3")
        mx = lambda d, ks: Is(f"s_mov_b32 s{d}, s{4+ks[0]}") + [I(f"s_max_u32 s{d}, s{d}, s{4+k}") for k in ks[1:]]
        mn = lambda d, ks: Is(f"s_mov_b32 s{d}, s{4+ks[0]}") + [I(f"s_min_u32 s{d}, s{d}, s{4+k}") for k in ks[1:]]
        if m == 1: out += mx(20, range(8)) + mn(21, range(8))
        if m == 2: out += mx(20, [1, 3, 5, 7]) + mx(21, [0, 2, 4, 6])
        if m == 3: out += mx(20, [4, 5, 6, 7]) + mx(21, [0, 1, 2, 3])
        if m == 4: out += mx(20, range(8)) + Is('s_mov_b32 s21, 13000')
        return out + Is("""s_sub_u32 s85, s20, s21
s_add_u32 s85, s85, 1000
s_min_u32 s85, s85, 4000
s_mul_i32 s85, s85, 20
s_add_u32 s85, s85, 20000
K1_EN2:
s_memrealtime s[90:91]
s_waitcnt lgkmcnt(0)
s_sub_u32 s90, s90, s86
s_cmp_lt_u32 s90, s85
s_cbranch_scc1 K1_EN2""")
    B["k2end"] = Is("K1_DONE:") + stamp_out(S2(sKA), sWg, sWave, t0, 0x4000000) + (Is(f"""s_cmp_lg_u32 s{sWg}, 17
s_cbranch_scc1 K1_END
s_cmp_lg_u32 s{sWave}, 0
s_cbranch_scc1 K1_END
v_readlane_b32 s84, v22, {OPT["enc"] >> 8}
v_readlane_b32 s85, v22, {OPT["enc"] & 255}
v_readlane_b32 s86, v22, 58
s_nop 3
s_sub_u32 s85, s85, s84
{'s_lshl_b32 s85, s85, 2' if OPT['enc'] == 0x3a3f else 's_lshr_b32 s85, s85, 1'}
s_min_u32 s85, s85, 150000
s_add_u32 s85, s85, 20000
K1_ENC:
s_memrealtime s[90:91]
s_waitcnt lgkmcnt(0)
s_sub_u32 s90, s90, s86
s_cmp_lt_u32 s90, s85
s_cbranch_scc1 K1_ENC""") if OPT["enc"] else []) + (enx() if OPT["enx"] else []) + Is("K1_END:\ns_endpgm")
    spin = lambda nm, ret, ld, rd: Is(f"""{nm}:
s_add_u32 s{sSp}, s{sSp}, 1
s_cmp_gt_u32 s{sSp}, 0x40000
s_cbranch_scc1 {ret}
s_sleep 4
{ld}
s_waitcnt vmcnt(0)
{rd}
s_nop 3
s_cmp_lt_u32 s88, 32
s_cbranch_scc1 {nm}
s_branch {ret}""")
    B["k2side"] = Is(f"""K1_REDO:
s_mov_b32 s{sMode}, 1
s_waitcnt vmcnt(0) lgkmcnt(0)
s_barrier""") + B["kre"] + spin("K2_SPIN0", "K2_RET0", f"buffer_load_dwordx2 v[14:15], off, {S4(sDb)}, s{sCo} sc1", "v_min_u32 v14, v14, v15\ns_nop 0\nv_readfirstlane_b32 s88, v14")
    B["k2sp" + X] = [x for m in CK.values() for x in spin(f"K2_SPIN{m}{X}", f"K2_RET{m}{X}", f"buffer_load_dword v{vP2}, off, {S4(sFl)}, s{sC1}" + (" offset:128" if m == 24 else "") + " sc1", f"v_readfirstlane_b32 s88, v{vP2}")]
    D = Is("K2_IDLE:") + [epi_unit(u, False)[-1] for u in range(u0 - 3, u0)] + [I(f"v_mov_b32 v{RCP+2*q+1}, v{RCP+2*q}") for q in range(4)]
    for u in range(u0, 24): D += epi_unit(u, True)
    D += pfit() + pfit() + Is("s_waitcnt vmcnt(16)\ns_barrier") + [atomic(vOne, sC1w, sFl)] + Is("K2_PFL:") + pfit() + Is(f"s_waitcnt vmcnt(24)\ns_cmp_lt_u32 s{sPi}, {768*1280 - 262144*OPT['xpf']}\ns_cbranch_scc1 K2_PFL")
    D += (Is("v_mov_b32 v22, v31\nv_mov_b32 v23, v31") if OPT["stamps"] else []) + (stamp(54) if OPT["stamps"] == 9 else []) + Is("s_branch K1_DONE")
    B["k2idle"] = D
    return ["lastb", "k2head", "k2body" + X, "k2epi" + X, "k2fin" + X]

def oproj(B, *k):
    a = OPT["asy"]
    tr = [oproj1(B, *k, "o", 24 - a)] + ([oproj1(B, *k, "e", 24 + a)] if a else [])
    lay = ["lastb", "k2head"] + [b + x for x in ("oe" if a else "o") for b in ("k2body", "k2epi", "k2fin", "k2wx", "k2sp")] + ["k2end"]
    return tr, lay

def desc(name, vg=512, acc=256):
    return f""".p2align 6
.amdhsa_kernel {name}
  .amdhsa_next_free_vgpr {vg}
  .amdhsa_next_free_sgpr 102
  .amdhsa_accum_offset {acc}
  .amdhsa_group_segment_fixed_size 0
  .amdhsa_kernarg_size 104
  .amdhsa_user_sgpr_count 2
  .amdhsa_user_sgpr_kernarg_segment_ptr 1
  .amdhsa_system_sgpr_workgroup_id_x 1
  .amdhsa_float_denorm_mode_32 3
.end_amdhsa_kernel"""

def align8(lines, mode):
    import subprocess
    ins = [l for l in lines if not (l.startswith(";") or l.startswith(".") or l.endswith(":"))]
    uniq = sorted(set(l for l in ins if "K" not in l))
    r = subprocess.run(["llvm-mc", "-triple=amdgcn-amd-amdhsa", "-mcpu=gfx950", "-show-encoding"], input="\n".join(uniq), capture_output=True, text=True)
    enc = [x.count("0x") for x in (l.split("encoding:")[1] for l in r.stdout.split("\n") if "encoding:" in l)]
    assert len(enc) == len(uniq), r.stderr[:300]
    size = dict(zip(uniq, enc))
    ok = ("v_exp_f32", "v_mul_f32", "v_add_f32", "v_mov_b32", "v_rcp_f32", "v_sub_f32", "v_max_f32")
    out = []; off = 0; cand = None; nfix = nmiss = 0; gap = 0
    for l in lines:
        if l.startswith(".p2align"): off = 0; cand = None
        elif not (l.startswith(";") or l.endswith(":")):
            n = size.get(l, 8 if l.startswith("v_min") else 4)
            if n == 8 and off:
                if cand is not None:
                    op = out[cand].split()[0]; out[cand] = out[cand].replace(op, op + "_e64", 1); off = 0; nfix += 1
                elif mode > 1 and l.startswith("v_mfma") and gap <= 4: out.append("s_nop 0"); off = 0; nfix += 1
                else: nmiss += 1
                cand = None
            elif n == 8: cand = None
            gap = 0 if kind_of(l) == "mfma" else gap + COST[kind_of(l)]
            if n == 4:
                off ^= 4
                if l.split()[0] in ok: cand = len(out)
        out.append(l)
    sys.stderr.write(f"[align] promoted {nfix}, still misaligned {nmiss} of {len(ins)}\n")
    return out

def main():
    k1, e1 = kernel1()
    if OPT["aln"]: k1 = align8(k1, OPT["aln"])
    ref = open("cdna_kernels/" + NAME + ".s.ref").read().split("\n")
    head = [l for l in ref if l.startswith(";") and "@launch" not in l]
    nm = NAME + "_kernel"
    out = head + [f"; @launch grid=(256,1,1) block=(256,1,1) lds=163840"] + """;
; One persistent workgroup per CU (4 waves, 64 query rows each, 512 registers, 16x16x32 bf16 MFMA).
;   per workgroup: two heads of one (branch, batch): Q projection -> flash attention -> O (bf16, fragment order) to d_ws
;   then the output projection in the same launch, behind counters (d_debug, d_ws) that order the hand-offs.
; Softmax shift = true max of the first keys of each row; the row sums are checked at the end and, if the shift was
; too small for any row (sum >= 2^60 or not finite), the workgroup redoes its heads with the exact row max.
; Written by a generator script (static instruction placement between the MFMAs, counted waits).""".split("\n") + ['.amdgcn_target "amdgcn-amd-amdhsa--gfx950"', ".text"]
    out += [f".globl {nm}", ".p2align 8", f".type {nm},@function", f"{nm}:"] + k1
    out += ["K_CODE_END:", "s_endpgm", '.section .rodata,"a"', desc(nm)]
    if e1:
        open(sys.argv[1], "w").write("hazard\n"); sys.exit(1)
    open(sys.argv[1], "w").write("\n".join(out) + "\n")
main()
```
